```python
import torch

def _softmax(x, axis=-1):
    return torch.softmax(x, dim=axis)
def _gelu(x):
    return torch.nn.functional.gelu(x, approximate="tanh")
def _silu(x):
    return torch.nn.functional.silu(x)
def _sigmoid(x):
    return torch.sigmoid(x)
def _layernorm(x, axis=-1, eps=1e-5):
    m = x.mean(dim=axis, keepdim=True)
    v = x.var(dim=axis, keepdim=True, unbiased=False)
    return (x - m) / torch.sqrt(v + eps)
def _scatter_add(tgt, idx, src, axis=0):
    return tgt.clone().index_add_(axis, idx, src)
def _segment_sum(src, seg, n):
    out = torch.zeros((n,) + src.shape[1:], dtype=src.dtype)
    return out.index_add_(0, seg, src)
def _pad(x, pw):
    flat = tuple(v for pair in reversed(pw) for v in pair)
    return torch.nn.functional.pad(x, flat)

kernel_name = 'interleave_layers__sliding_block_cached__glu_gated_swiglu__decode'

def setup_inputs():

    _w = (lambda a: (lambda t: t.to(torch.bfloat16) if t.is_floating_point() else t)(torch.as_tensor(a)))
    def _A_setup():
        B, Sq, D = 1, 1, 512
        Hq, Hkv, Sk, Dh = 32, 32, 4096, 128
        assert Hq % Hkv == 0, (Hq, Hkv)
        return {
            "x": _w((lambda *s: torch.randn(*s, dtype=torch.bfloat16) * 0.05)(B, Sq, D)),
            "k_cache": _w((lambda *s: torch.randn(*s, dtype=torch.bfloat16) * 0.8)(B, Hkv, Sk, Dh)),
            "v_cache": _w((lambda *s: torch.randn(*s, dtype=torch.bfloat16) * 0.8)(B, Hkv, Sk, Dh)),
            "wq": _w((lambda *s: torch.randn(*s, dtype=torch.bfloat16) * 0.8)(D, Hq * Dh) * (D ** -0.5)),
            "wo": _w((lambda *s: torch.randn(*s, dtype=torch.bfloat16) * 0.8)(Hq * Dh, D) * ((Hq * Dh) ** -0.5)),
        }
    _A_in = _A_setup()

    def _B_setup():
        B, S, D, F = 1, 1, 512, 1376
        return {
            "x": _w((lambda *s: torch.randn(*s, dtype=torch.bfloat16) * 0.05)(B, S, D)),
            "w1": _w((lambda *s: torch.randn(*s, dtype=torch.bfloat16) * 0.2)(D, F) * (2.0 / D) ** 0.5),
            "w3": _w((lambda *s: torch.randn(*s, dtype=torch.bfloat16) * 0.2)(D, F) * (2.0 / D) ** 0.5),
            "w2": _w((lambda *s: torch.randn(*s, dtype=torch.bfloat16) * 0.2)(F, D) * (2.0 / F) ** 0.5),
        }
    _B_in = _B_setup()

    return {
        "A_x": _A_in["x"],
        "A_k_cache": _A_in["k_cache"],
        "A_v_cache": _A_in["v_cache"],
        "A_wq": _A_in["wq"],
        "A_wo": _A_in["wo"],
        "B_x": _B_in["x"],
        "B_w1": _B_in["w1"],
        "B_w3": _B_in["w3"],
        "B_w2": _B_in["w2"],
    }

def reference(A_x, A_k_cache, A_v_cache, A_wq, A_wo, B_x, B_w1, B_w3, B_w2):
    def _A_ref(x, k_cache, v_cache, wq, wo):
        B, Sq, D = x.shape
        Hq, Dh = 32, 128
        Hkv, Sk = k_cache.shape[1], k_cache.shape[2]
        W = min(4096, max(256, Sk // 4))
        rep = Hq // Hkv
        q = (lambda x, *d: x.permute(*d))((x @ wq).reshape(B, Sq, Hq, Dh), 0, 2, 1, 3)
        k = (lambda x, n, axis: torch.repeat_interleave(x, n, dim=axis))(k_cache[:, :, Sk - W:, :], rep, axis=1)
        v = (lambda x, n, axis: torch.repeat_interleave(x, n, dim=axis))(v_cache[:, :, Sk - W:, :], rep, axis=1)
        scores = torch.einsum("bhqd,bhkd->bhqk", q, k) * (Dh ** -0.5)
        p = _softmax(scores, axis=-1)
        o = torch.einsum("bhqk,bhkd->bhqd", p, v)
        return (lambda x, *d: x.permute(*d))(o, 0, 2, 1, 3).reshape(B, Sq, Hq * Dh) @ wo

    def _B_ref(x, w1, w3, w2):
        gate = torch.einsum("bsd,df->bsf", x, w1)
        up = torch.einsum("bsd,df->bsf", x, w3)
        h = _silu(gate) * up
        out = torch.einsum("bsf,fd->bsd", h, w2)
        return out

    x = A_x
    x = x + _A_ref(_layernorm(x, axis=-1), A_k_cache, A_v_cache, A_wq, A_wo)
    x = x + _B_ref(_layernorm(x, axis=-1), B_w1, B_w3, B_w2)
    x = x + _A_ref(_layernorm(x, axis=-1), A_k_cache, A_v_cache, A_wq, A_wo)
    x = x + _B_ref(_layernorm(x, axis=-1), B_w1, B_w3, B_w2)
    return x
```

```python
import re

TRANS = ('v_exp_f32', 'v_log_f32', 'v_rcp_f32', 'v_rsq_f32', 'v_sqrt_f32', 'v_sin_f32', 'v_cos_f32')


def regs_of(tok):
    tok = tok.strip()
    neg = tok.lstrip('-')
    m = re.fullmatch(r'abs\((.*)\)', neg)
    if m:
        neg = m.group(1)
    m = re.fullmatch(r'([vsa])(\d+)', neg)
    if m:
        return {(m.group(1), int(m.group(2)))}
    m = re.fullmatch(r'([vsa])\[(\d+):(\d+)\]', neg)
    if m:
        return {(m.group(1), k) for k in range(int(m.group(2)), int(m.group(3)) + 1)}
    if neg == 'vcc':
        return {('s', 'vcc_lo'), ('s', 'vcc_hi')}
    if neg in ('vcc_lo', 'vcc_hi'):
        return {('s', neg)}
    if neg == 'exec':
        return {('s', 'exec_lo'), ('s', 'exec_hi')}
    if neg in ('exec_lo', 'exec_hi', 'm0'):
        return {('s', neg)}
    return set()


class Ins:
    def __init__(self, text):
        self.text = text
        t = text.split(';')[0].strip()
        self.op = t.split()[0]
        rest = t[len(self.op):].strip()
        ops, depth, cur = [], 0, ''
        for ch in rest:
            if ch in '[(':
                depth += 1
            if ch in '])':
                depth -= 1
            if ch == ',' and depth == 0:
                ops.append(cur.strip())
                cur = ''
            else:
                cur += ch
        if cur.strip():
            ops.append(cur.strip())
        mods = ''
        if ops:
            last = ops[-1].split()
            ops[-1] = last[0]
            mods = ' '.join(last[1:])
        self.ops, self.mods = ops, mods
        op = self.op
        R = [regs_of(o) for o in ops]
        self.valu = op.startswith('v_') and not op.startswith('v_mfma') and not op.startswith('v_smfmac')
        self.mfma = op.startswith('v_mfma')
        self.salu = op.startswith('s_')
        self.ds = op.startswith('ds_')
        self.vmem = op.startswith('global_') or op.startswith('buffer_')
        self.dpp = '_dpp' in op
        self.perm = op.startswith('v_permlane')
        self.trans = any(op.startswith(x) for x in TRANS)
        self.rdlane = op.startswith('v_readlane') or op.startswith('v_readfirstlane')
        self.w, self.r = set(), set()
        self.srcC = set()
        self.srcAB = set()
        self.stdata = set()
        self.ws = 1
        if op == 's_nop':
            self.ws = int(ops[0], 0) + 1
        elif self.mfma:
            self.w = R[0]
            self.srcAB = R[1] | R[2]
            self.srcC = R[3]
            self.r = self.srcAB | self.srcC
        elif self.perm and 'swap' in op:
            self.w = R[0] | R[1]
            self.r = R[0] | R[1]
        elif self.valu:
            self.w = set(R[0])
            for x in R[1:]:
                self.r |= x
            if op.startswith(('v_fmac', 'v_dot2c', 'v_writelane', 'v_pk_fmac')) or self.dpp:
                self.r |= R[0]
            if op.startswith(('v_add_co', 'v_sub_co', 'v_addc_co')):
                self.w |= R[1]
        elif self.ds:
            if op.startswith('ds_read') or op.startswith('ds_bpermute'):
                self.w = R[0]
                for x in R[1:]:
                    self.r |= x
            else:
                for x in R:
                    self.r |= x
        elif self.vmem:
            if 'lds' in op or ' lds' in ' ' + mods:
                for x in R:
                    self.r |= x
                self.r |= {('s', 'm0')}
                self.isdma = True
            elif 'load' in op:
                self.w = R[0]
                for x in R[1:]:
                    self.r |= x
            else:
                for x in R:
                    self.r |= x
                if 'x4' in op or 'x3' in op:
                    self.stdata = R[1] if op.startswith('global_') else R[0]
        elif self.salu:
            if op.startswith(('s_cmp', 's_cbranch', 's_branch', 's_waitcnt', 's_barrier', 's_endpgm', 's_setprio', 's_sleep', 's_bitcmp')):
                for x in R:
                    self.r |= x
            elif ops:
                self.w = R[0]
                for x in R[1:]:
                    self.r |= x


def need(p, c):
    n = 0
    pv = {x for x in p.w if x[0] in 'va'}
    ps = {x for x in p.w if x[0] == 's'}
    if p.valu:
        if c.dpp and pv & c.r:
            n = max(n, 2)
        if c.perm and pv & c.r:
            n = max(n, 2)
        if c.mfma and pv & c.r:
            n = max(n, 2)
        if c.rdlane and pv & c.r:
            n = max(n, 1)
        if p.trans and c.valu and not c.trans and pv & c.r:
            n = max(n, 1)
        if p.trans and c.valu and pv & c.r:
            n = max(n, 1)
        if ps:
            if c.valu and ps & c.r:
                n = max(n, 4 if c.op.startswith(('v_readlane', 'v_writelane')) else 2)
            if c.vmem and ps & c.r:
                n = max(n, 5)
            if c.salu and ps & c.r and p.rdlane:
                n = max(n, 1)
        if p.op.endswith('_sdwa') and pv and c.valu and pv & c.r:
            n = max(n, 1)
    if p.mfma:
        if c.mfma:
            if p.w & c.srcAB:
                n = max(n, 8)
            if p.w & c.srcC and not (p.w == c.srcC and p.op == c.op):
                n = max(n, 6)
        elif (c.valu or c.ds or c.vmem) and p.w & (c.r | c.w):
            n = max(n, 8)
        if c.valu and p.srcC & c.w:
            n = max(n, 3)
    if p.salu and ('s', 'm0') in p.w and getattr(c, 'isdma', False):
        n = max(n, 1)
    if p.stdata and (c.valu or c.vmem or c.ds) and p.stdata & c.w:
        n = max(n, 2)
    return n


class Asm:
    def __init__(self):
        self.lines = []
        self.hist = []
        self.nops = 0

    def raw(self, s):
        self.lines.append(s)

    def label(self, s):
        self.lines.append(s + ':')

    def comment(self, s):
        self.lines.append('    ; ' + s)

    def __call__(self, text):
        for t in text.split('\n'):
            t = t.strip()
            if not t:
                continue
            if t.startswith(';'):
                self.lines.append('    ' + t)
                continue
            if t.endswith(':'):
                self.lines.append(t)
                continue
            c = Ins(t)
            pad, dist = 0, 0
            for p in reversed(self.hist):
                if dist >= 12:
                    break
                pad = max(pad, need(p, c) - dist)
                dist += p.ws
            if pad > 0:
                n = Ins('s_nop %d' % (pad - 1))
                self.hist.append(n)
                self.lines.append('    s_nop %d' % (pad - 1))
                self.nops += pad
            self.hist.append(c)
            self.lines.append('    ' + t)

    def text(self):
        return '\n'.join(self.lines) + '\n'
```

```python
import sys, math
from asm import Asm

NAME = 'interleave_layers__sliding_block_cached__glu_gated_swiglu__decode'
OPT = dict(diag=0, fast=1, nt=1, stop=99)
for a_ in sys.argv[1:]:
    k_, v_ = a_.split('=')
    OPT[k_] = int(v_)
DIAG = OPT['diag']
NT = ' nt' if OPT['nt'] else ''

XB, ONES, QB, OB, HB, MB, DUMMY, O32 = 0, 128, 256, 512, 768, 896, 960, 1024
WQ, WO, W1, W3, W2, KI = 4096, 20480, 36864, 45056, 53248, 61440
LDS_BYTES = KI + 32768
WS_G, WS_L, WS_DIAG = 0x20000, 0x40000, 0x200000
BUF_A, BUF_X, BUF_B, STATS = 0, 1024, 2048, 3072
G_C, G_D = 0, 2048

vL, vCons, vPubL, vPubS, vPubG, vStP, vStC, vTagM0, vTagM1 = range(1, 10)
vXw, vQw, vHw, vOpR, vXopR, vO32w, vO32r, vMr, vZero, vMw = range(10, 20)
vDm = 20
vHmask, vX, vCq, vCg, vMean, vRs, vF, vTr = range(24, 32)
vWQ, vK, vV, vWO, vW13, vW2 = 32, 48, 80, 112, 128, 144
T = 152
vA = 176
vD = 192
vP = 208
NVGPR = 232
sW, sJ, sGam, sE, sXcc, sTo, sFast, sC0, sCnt = 28, 29, 30, 32, 35, 36, 37, 33, 34
sLb, sGb = 38, 40
sT0, sT1, sT2 = 42, 44, 46
sCs, sMaskHi, sInv512, sEps, sNl2e = 50, 51, 52, 53, 54
sM0, sM1 = 56, 58
sTag = 60

a = Asm()
slow = []
stamp_regs = list(range(70, 102, 2))
stamps = []


def v(n, cnt=1):
    return 'v%d' % n if cnt == 1 else 'v[%d:%d]' % (n, n + cnt - 1)


def s(n, cnt=1):
    return 's%d' % n if cnt == 1 else 's[%d:%d]' % (n, n + cnt - 1)


def stamp(name):
    if not DIAG:
        return
    if DIAG == 2 and not name.startswith('L1') and name != 'start':
        return
    if DIAG == 1 and name.startswith('L1'):
        return
    if len(stamps) >= len(stamp_regs):
        return
    r = stamp_regs[len(stamps)]
    stamps.append(name)
    a('s_memrealtime %s' % s(r, 2))


def f32(x):
    import struct
    return '0x%08x' % struct.unpack('<I', struct.pack('<f', x))[0]


lbl = [0]


def newlabel(p):
    lbl[0] += 1
    return 'L_%s_%d' % (p, lbl[0])


def lstore(op, addr, data, base, off, first=False):
    ins = '%s %s, %s, %s offset:%d' % (op, addr, data, base, off)
    if first or not OPT['fast']:
        a(ins + ' sc1')
        return
    l1, l2 = newlabel('slow'), newlabel('back')
    a('s_cbranch_scc1 %s' % l1)
    a(ins)
    a.label(l2)
    slow.append((l1, ins + ' sc1', l2))


def setfast():
    if OPT['fast']:
        a('s_cmp_eq_u32 %s, 0' % s(sFast))


def poll(loads, check, pre_wait=None, first_cnt=0):
    top, ent = newlabel('poll'), newlabel('pent')
    if pre_wait is not None:
        for d, vo, b, im in loads:
            a('global_load_dwordx4 %s, %s, %s offset:%d sc1' % (v(d, 4), v(vo), s(b, 2), im))
        pre_wait()
        a('s_waitcnt vmcnt(%d)' % first_cnt)
        a('s_branch %s' % ent)
    a.label(top)
    a('s_sub_u32 %s, %s, 1' % (s(sTo), s(sTo)))
    a('s_cbranch_scc1 L_end')
    for d, vo, b, im in loads:
        a('global_load_dwordx4 %s, %s, %s offset:%d sc1' % (v(d, 4), v(vo), s(b, 2), im))
    a('s_waitcnt vmcnt(0)')
    if pre_wait is not None:
        a.label(ent)
    check()
    a('s_cbranch_vccnz %s' % top)


def chk_byte(regs, tag):
    def f():
        if len(regs) == 1:
            a('v_cmp_ne_u32_sdwa vcc, %s, %s src0_sel:BYTE_0 src1_sel:BYTE_0' % (v(regs[0]), s(tag)))
        else:
            a('v_bitop3_b32 %s, %s, %s, %s bitop3:0x7e' % (v(T + 23), v(regs[0]), v(regs[1]), s(tag)))
            a('v_cmp_ne_u32_sdwa vcc, %s, %s src0_sel:BYTE_0 src1_sel:DWORD' % (v(T + 23), v(vZero)))
    return f


def reduce_j(r, out):
    a('v_permlane32_swap_b32 %s, %s' % (v(r + 1), v(r + 3)))
    a('v_add_f32 %s, %s, %s' % (v(r + 1), v(r + 1), v(r + 3)))
    a('v_permlane32_swap_b32 %s, %s' % (v(r), v(r + 2)))
    a('v_add_f32 %s, %s, %s' % (v(r), v(r), v(r + 2)))
    a('v_permlane16_swap_b32 %s, %s' % (v(r), v(r + 1)))
    a('v_add_f32 %s, %s, %s' % (v(r), v(r), v(r + 1)))
    a('v_add_f32_dpp %s, %s, %s row_ror:8 row_mask:0xf bank_mask:0xf' % (v(out), v(r), v(r)))


def bf16r(dst, src):
    a('v_cvt_pk_bf16_f32 %s, %s, %s' % (v(dst), v(src), v(src)))
    a('v_and_b32 %s, 0xffff0000, %s' % (v(dst), v(dst)))


def allred(op, x, t, bits):
    for b in bits:
        if b == 0:
            a('%s_dpp %s, %s, %s quad_perm:[1,0,3,2] row_mask:0xf bank_mask:0xf' % (op, v(x), v(x), v(x)))
        elif b == 1:
            a('%s_dpp %s, %s, %s quad_perm:[2,3,0,1] row_mask:0xf bank_mask:0xf' % (op, v(x), v(x), v(x)))
        elif b == 3:
            a('%s_dpp %s, %s, %s row_ror:8 row_mask:0xf bank_mask:0xf' % (op, v(x), v(x), v(x)))
        elif b == 4:
            a('v_mov_b32 %s, %s' % (v(t), v(x)))
            a('v_permlane16_swap_b32 %s, %s' % (v(x), v(t)))
            a('%s %s, %s, %s' % (op, v(x), v(x), v(t)))
        elif b == 5:
            a('v_mov_b32 %s, %s' % (v(t), v(x)))
            a('v_permlane32_swap_b32 %s, %s' % (v(x), v(t)))
            a('%s %s, %s, %s' % (op, v(x), v(x), v(t)))


def ln_stats_publish(k, first=False):
    g = T + 4
    a('v_mov_b32 %s, %s' % (v(g), v(vX)))
    a('v_mul_f32 %s, %s, %s' % (v(g + 1), v(vX), v(vX)))
    a('v_mov_b32 %s, %s' % (v(g + 2), s(sTag + k)))
    a('v_mov_b32 %s, %s' % (v(g + 3), s(sXcc)))
    a('v_permlane32_swap_b32 %s, %s' % (v(g), v(g + 1)))
    a('v_add_f32 %s, %s, %s' % (v(g), v(g), v(g + 1)))
    allred('v_add_f32', g, g + 1, [4, 0, 1])
    a('v_mov_b32 %s, %s' % (v(g + 1), v(g)))
    setfast()
    a('v_permlane32_swap_b32 %s, %s' % (v(g), v(g + 1)))
    a('s_mov_b64 exec, 1')
    lstore('global_store_dwordx4', v(vStP), v(g, 4), s(sLb, 2), 512 * (k & 1), first)
    a('s_mov_b64 exec, -1')


def chk_stats(r, k):
    def f():
        a('v_cmp_ne_u32 vcc, %s, %s' % (s(sTag + k), v(r + 2)))
    return f


def ln_stats_consume(r):
    a('v_permlane32_swap_b32 %s, %s' % (v(r), v(r + 1)))
    a('v_add_f32 %s, %s, %s' % (v(r), v(r), v(r + 1)))
    allred('v_add_f32', r, r + 1, [4, 3, 0, 1])
    a('v_mov_b32 %s, %s' % (v(r + 1), v(r)))
    a('v_permlane32_swap_b32 %s, %s' % (v(r), v(r + 1)))
    a('v_mul_f32 %s, %s, %s' % (v(r), s(sInv512), v(r)))
    a('v_mul_f32 %s, %s, %s' % (v(r + 1), s(sInv512), v(r + 1)))
    a('v_fma_f32 %s, -%s, %s, %s' % (v(r + 1), v(r), v(r), v(r + 1)))
    a('v_max_f32 %s, 0, %s' % (v(r + 1), v(r + 1)))
    bf16r(vMean, r)
    bf16r(r + 1, r + 1)
    a('v_add_f32 %s, %s, %s' % (v(r + 1), s(sEps), v(r + 1)))
    bf16r(r + 1, r + 1)
    a('v_sqrt_f32 %s, %s' % (v(r + 1), v(r + 1)))
    bf16r(r + 1, r + 1)
    a('v_rcp_f32 %s, %s' % (v(vRs), v(r + 1)))


def x_gather(gi, imm):
    r = vP
    poll([(r, vCons, sGb, imm), (r + 4, vCons, sGb, imm + 1024)], chk_byte([r, r + 4], sTag + 6 + gi))
    a('v_and_b32 %s, %s, %s' % (v(r), s(sMaskHi), v(r)))
    a('v_and_b32 %s, %s, %s' % (v(r + 4), s(sMaskHi), v(r + 4)))
    a('v_pk_add_f32 %s, %s, %s' % (v(r + 2, 2), v(r + 2, 2), v(r + 6, 2)))
    a('v_pk_add_f32 %s, %s, %s' % (v(r, 2), v(r, 2), v(r + 4, 2)))
    reduce_j(r, r)
    a('v_add_f32_dpp %s, %s, %s row_ror:4 row_mask:0xf bank_mask:0xf' % (v(r), v(r), v(r)))
    bf16r(r, r)
    a('v_add_f32 %s, %s, %s' % (v(r), v(r), v(vX)))
    a('v_cvt_pk_bf16_f32 %s, %s, %s' % (v(T), v(r), v(r)))


def proj_phase(wreg, k, layer, first=False, guard_w3=False):
    rd = vXopR if layer == 0 else vOpR
    a('ds_read_b128 %s, %s offset:%d' % (v(vA, 4), v(rd), XB))
    a('ds_read_b128 %s, %s offset:%d' % (v(vA + 4, 4), v(rd), XB + 64))
    a('s_waitcnt lgkmcnt(0)')
    a('v_mfma_f32_16x16x32_bf16 %s, %s, %s, 0' % (v(vD, 4), v(vA, 4), v(wreg, 4)))
    a('v_mfma_f32_16x16x32_bf16 %s, %s, %s, 0' % (v(vD + 4, 4), v(vA, 4), v(wreg + 8, 4)))
    a('v_mfma_f32_16x16x32_bf16 %s, %s, %s, %s' % (v(vD, 4), v(vA + 4, 4), v(wreg + 4, 4), v(vD, 4)))
    a('v_mfma_f32_16x16x32_bf16 %s, %s, %s, %s' % (v(vD + 4, 4), v(vA + 4, 4), v(wreg + 12, 4), v(vD + 4, 4)))
    setfast()
    if layer == 1:
        a('s_mov_b32 exec_hi, 0')
    a('v_cndmask_b32 %s, %s, %s, %s' % (v(T), v(vD), v(vD + 4), s(sM0, 2)))
    a('v_bfi_b32 %s, %s, %s, %s' % (v(T), v(vTagM0), s(sTag + k), v(T)))
    lstore('global_store_dword', v(vPubL), v(T), s(sLb, 2), BUF_A if k % 2 == 0 else BUF_B, first)
    if layer == 1:
        a('s_mov_b32 exec_hi, -1')


def tr_reads(dst, addr, base, nk, kstride, gstride):
    for kk in range(nk):
        for g in range(2):
            a('ds_read_b64_tr_b16 %s, %s offset:%d' % (v(dst + 4 * kk + 2 * g, 2), v(addr), base + kk * kstride + g * gstride))


def gemv_publish_g(nk, wreg, src, gi, imm):
    for kk in range(nk):
        a('ds_read_b128 %s, %s offset:%d' % (v(vA + 4 * kk, 4), v(vOpR), src + 64 * kk))
    a('s_waitcnt lgkmcnt(0)')
    for kk in range(nk):
        a('v_mfma_f32_16x16x32_bf16 %s, %s, %s, %s' % (v(vD, 4), v(vA + 4 * kk, 4), v(wreg + 4 * kk, 4), '0' if kk == 0 else v(vD, 4)))
    a('s_mov_b64 exec, 0xffff')
    a('v_bfi_b32 %s, %s, %s, %s' % (v(T), v(vTagM0), s(sTag + 6 + gi), v(vD)))
    a('global_store_dword %s, %s, %s offset:%d sc1' % (v(vPubG), v(T), s(sGb, 2), imm))
    a('s_mov_b64 exec, -1')


def finish_if(stage):
    if OPT['stop'] == stage:
        a('s_branch L_fin')


a.raw('''; single persistent launch: 32 groups (head / ffn slice) x 8 members, weights and KV window stay on chip for both layers
; @launch grid=(256,1,1) block=(256,1,1) lds=%d
.amdgcn_target "amdgcn-amd-amdhsa--gfx950"
.text
.globl %s_kernel
.p2align 8
.type %s_kernel,@function
%s_kernel:''' % (LDS_BYTES, NAME, NAME, NAME))
a('s_cmp_ge_u32 s2, 256')
a('s_cbranch_scc1 L_end')
a('s_load_dwordx16 s[4:19], s[0:1], 0')
a('s_load_dwordx8 s[20:27], s[0:1], 64')
stamp('start')
a('s_getpc_b64 %s' % s(sT0, 2))
a.label('L_pc')
a('v_lshlrev_b32 %s, 6, v0' % v(T))
a('v_min_u32 %s, L_codeend-L_pc-64, %s' % (v(T), v(T)))
a('global_load_dword %s, %s, %s' % (v(T + 22), v(T), s(sT0, 2)))
a('v_lshrrev_b32 %s, 6, v0' % v(T))
a('v_and_b32 %s, 63, v0' % v(vL))
a('v_readfirstlane_b32 %s, %s' % (s(sW), v(T)))
a('s_lshr_b32 s3, s2, 3')
a('s_and_b32 %s, s3, 7' % s(sJ))
a('s_lshr_b32 s3, s3, 3')
a('s_and_b32 s31, s2, 7')
a('s_lshl_b32 %s, s31, 2' % s(sGam))
a('s_add_u32 %s, %s, s3' % (s(sGam), s(sGam)))
u16, pos16, u8, pos8, l3, col16 = T + 1, T + 2, T + 3, T + 4, T + 5, T + 6
a('v_lshrrev_b32 %s, 4, %s' % (v(u16), v(vL)))
a('v_and_b32 %s, 15, %s' % (v(pos16), v(vL)))
a('v_and_b32 %s, 3, %s' % (v(l3), v(vL)))
a('v_lshl_add_u32 %s, %s, 2, %s' % (v(col16), v(l3), v(u16)))
a('s_lshl_b32 s48, %s, 5' % s(sW))
a('v_lshl_add_u32 %s, %s, 1, s48' % (v(vXw), v(col16)))
t0, t1, t2, t3 = T + 8, T + 9, T + 10, T + 11
a('v_lshlrev_b32 %s, 1, %s' % (v(t0), v(u16)))
a('v_xor_b32 %s, %s, %s' % (v(t0), v(t0), v(pos16)))
a('v_lshlrev_b32 %s, 4, %s' % (v(t0), v(t0)))
a('v_lshl_add_u32 %s, %s, 13, %s' % (v(t0), v(u16), v(t0)))
a('v_xor_b32 %s, 0x80, %s' % (v(t1), v(t0)))
a('v_add_u32 %s, %d, %s' % (v(t1), 2 * 31744, v(t1)))
k0 = T + 12
a('v_xor_b32 %s, %s, %s' % (v(k0), v(u16), v(pos16)))
a('v_lshlrev_b32 %s, 4, %s' % (v(k0), v(k0)))
a('v_lshl_add_u32 %s, %s, 8, %s' % (v(k0), v(u16), v(k0)))
for i in range(1, 4):
    a('v_xor_b32 %s, %d, %s' % (v(k0 + i), i << 6, v(k0)))
a('v_lshlrev_b32 %s, 4, %s' % (v(t2), v(vL)))
a('s_lshl_b32 s49, %s, 12' % s(sW))
a('v_add_u32 %s, s49, %s' % (v(vCons), v(t2)))
a('s_lshl_b32 s55, %s, 14' % s(sJ))
a('s_lshl_b32 s56, s3, 12')
a('s_add_u32 s55, s55, s56')
a('s_lshl_b32 s56, %s, 10' % s(sW))
a('s_add_u32 s55, s55, s56')
a('s_add_u32 s55, s55, %d' % WS_G)
a('v_lshl_add_u32 %s, %s, 7, s55' % (v(t3), v(vL)))
a('s_lshl_b32 s57, %s, 14' % s(sGam))
a('s_add_u32 s57, s57, %d' % WS_L)
a('s_lshl_b32 s58, %s, 7' % s(sJ))
a('s_add_u32 s58, s58, s57')
a('s_add_u32 s59, s58, s49')
a('s_sub_u32 s59, s59, %d' % (8 * 1024))
a('v_lshl_add_u32 %s, %s, 10, s59' % (v(T + 16), v(vL)))
a('v_cmp_lt_u32 vcc, 7, %s' % v(vL))
a('s_add_u32 s58, s58, %d' % STATS)
a('v_mov_b32 %s, s58' % v(T + 17))
a('v_cndmask_b32 %s, %s, %s, vcc' % (v(t3), v(t3), v(T + 16)))
a('v_cmp_lt_u32 vcc, 10, %s' % v(vL))
a('s_lshl_b32 s48, %s, 7' % s(sJ))
a('v_cndmask_b32 %s, %s, %s, vcc' % (v(t3), v(t3), v(T + 17)))
a('s_lshl_b32 s55, %s, 19' % s(sJ))
a('s_lshl_b32 s56, %s, 17' % s(sW))
a('s_add_u32 s55, s55, s56')
a('s_lshl_b32 s56, %s, 8' % s(sGam))
a('s_add_u32 s55, s55, s56')
a('s_lshl_b32 s56, %s, 20' % s(sGam))
a('s_lshl_b32 s58, %s, 15' % s(sJ))
a('s_add_u32 s56, s56, s58')
a('s_lshl_b32 s58, %s, 13' % s(sW))
a('s_add_u32 s56, s56, s58')
a('s_add_u32 s56, s56, %d' % (3072 * 256))
a('s_add_u32 s59, s49, %d' % WQ)
a('s_mov_b32 m0, s59')
a('s_waitcnt lgkmcnt(0)')
a('s_load_dword %s, s[26:27], 0' % s(sE))
a('s_add_u32 s4, s4, s48')
a('s_addc_u32 s5, s5, 0')
a('global_load_ushort %s, %s, s[4:5]' % (v(vX), v(vXw)))
a('s_add_u32 s10, s10, s55')
a('s_addc_u32 s11, s11, 0')
a('global_load_dword %s, %s, s[26:27]' % (v(T + 21), v(t3)))
a('global_load_lds_dwordx4 %s, s[10:11] offset:0%s' % (v(t0), NT))
a('v_add_u32 %s, 31744, %s' % (v(t0), v(t0)))
a('s_add_u32 s6, s6, s56')
a('s_addc_u32 s7, s7, 0')
a('global_load_lds_dwordx4 %s, s[10:11] offset:1024%s' % (v(t0), NT))
a('global_load_lds_dwordx4 %s, s[10:11] offset:2048%s' % (v(t1), NT))
a('v_add_u32 %s, 31744, %s' % (v(t1), v(t1)))
a('s_add_u32 s58, s58, %d' % KI)
a('global_load_lds_dwordx4 %s, s[10:11] offset:3072%s' % (v(t1), NT))
a('s_mov_b32 m0, s58')
a('s_add_u32 s8, s8, s56')
a('s_addc_u32 s9, s9, 0')
for i in range(4):
    a('global_load_lds_dwordx4 %s, s[6:7] offset:%d%s' % (v(k0 + i), 1024 * i, NT))
a('s_add_u32 s58, s58, 4096')
a('s_mov_b32 m0, s58')
a('s_add_u32 s6, s6, 4096')
a('s_addc_u32 s7, s7, 0')
for i in range(4):
    a('global_load_lds_dwordx4 %s, s[6:7] offset:%d%s' % (v(k0 + i), 1024 * i, NT))
for i in range(4):
    a('global_load_dwordx4 %s, %s, s[8:9] offset:%d%s' % (v(vV + 4 * i, 4), v(t2), 1024 * i, NT))
a('s_add_u32 s8, s8, 4096')
a('s_addc_u32 s9, s9, 0')
for i in range(4):
    a('global_load_dwordx4 %s, %s, s[8:9] offset:%d%s' % (v(vV + 16 + 4 * i, 4), v(t2), 1024 * i, NT))
stamp('issued')
a('s_add_u32 %s, s26, s57' % s(sLb))
a('s_addc_u32 %s, s27, 0' % s(sLb + 1))
a('s_lshl_b32 s55, %s, 14' % s(sJ))
a('s_add_u32 s55, s55, %d' % WS_G)
a('s_add_u32 %s, s26, s55' % s(sGb))
a('s_addc_u32 %s, s27, 0' % s(sGb + 1))
a('s_getreg_b32 %s, hwreg(HW_REG_XCC_ID, 0, 4)' % s(sXcc))
a('s_mov_b32 %s, 0x40000' % s(sTo))
a('s_mov_b32 %s, %s' % (s(sCs), f32(math.log2(math.e) / math.sqrt(128.0))))
a('s_mov_b32 %s, 0xffffff00' % s(sMaskHi))
a('s_mov_b32 %s, %s' % (s(sInv512), f32(1.0 / 512)))
a('s_mov_b32 %s, %s' % (s(sEps), f32(1e-5)))
a('s_mov_b32 %s, %s' % (s(sNl2e), f32(-math.log2(math.e))))
a('s_mov_b32 %s, 0xffff0000' % s(sM0))
a('s_mov_b32 %s, 0xffff0000' % s(sM0 + 1))
a('s_mul_i32 %s, %s, 43' % (s(sC0), s(sGam)))
a('s_add_u32 %s, %s, 43' % (s(sCnt), s(sC0)))
a('s_lshr_b32 %s, %s, 3' % (s(sC0), s(sC0)))
a('s_lshr_b32 %s, %s, 3' % (s(sCnt), s(sCnt)))
a('s_sub_u32 %s, %s, %s' % (s(sCnt), s(sCnt), s(sC0)))
a('s_lshl_b32 %s, %s, 3' % (s(sCnt), s(sCnt)))
a('v_mov_b32 %s, 0' % v(vZero))
a('v_lshrrev_b32 %s, 3, %s' % (v(u8), v(vL)))
a('v_and_b32 %s, 7, %s' % (v(pos8), v(vL)))
a('s_add_u32 s55, s49, s48')
a('v_and_b32 %s, 31, %s' % (v(t0), v(vL)))
a('v_lshl_add_u32 %s, %s, 2, s55' % (v(vPubL), v(t0)))
a('v_lshrrev_b32 %s, 5, %s' % (v(t1), v(vL)))
a('v_lshl_add_u32 %s, %s, 10, %s' % (v(vPubL), v(t1), v(vPubL)))
a('v_lshl_add_u32 %s, %s, 2, %s' % (v(t1), v(pos8), v(u16)))
a('v_lshl_add_u32 %s, %s, 2, s55' % (v(vPubS), v(t1)))
a('s_lshl_b32 s55, %s, 6' % s(sW))
a('v_lshl_add_u32 %s, %s, 1, s55' % (v(vQw), v(t1)))
a('s_lshl_b32 s55, %s, 6' % s(sGam))
a('s_add_u32 s55, s55, s49')
a('v_lshl_add_u32 %s, %s, 2, s55' % (v(vPubG), v(pos16)))
a('s_lshl_b32 s55, %s, 2' % s(sJ))
a('s_add_u32 s55, s55, %s' % s(sW))
a('s_lshl_b32 s55, s55, 4')
a('s_add_u32 s55, s55, %d' % STATS)
a('v_mov_b32 %s, s55' % v(vStP))
a('v_lshlrev_b32 %s, 4, %s' % (v(t1), v(l3)))
a('v_lshl_add_u32 %s, %s, 6, %s' % (v(t1), v(u8), v(t1)))
a('v_add_u32 %s, %d, %s' % (v(vStC), STATS, v(t1)))
a('v_mov_b32 %s, 0xff' % v(t2))
a('v_cmp_eq_u32 vcc, 0, %s' % v(l3))
a('v_lshlrev_b32 %s, 4, %s' % (v(vOpR), v(u16)))
a('v_cndmask_b32 %s, 0, %s, vcc' % (v(vTagM0), v(t2)))
a('v_cmp_eq_u32 vcc, 0, %s' % v(u16))
a('v_and_b32 %s, 8, %s' % (v(t1), v(vL)))
a('v_cndmask_b32 %s, 0, %s, vcc' % (v(vTagM1), v(t2)))
a('v_lshl_add_u32 %s, %s, 4, %s' % (v(vXopR), v(t1), v(vOpR)))
a('v_and_b32 %s, 4, %s' % (v(t1), v(vL)))
a('v_cmp_eq_u32 vcc, 0, %s' % v(t1))
a('v_add_u32 %s, %d, %s' % (v(t1), HB, v(vXw)))
a('v_mov_b32 %s, %d' % (v(t2), DUMMY))
a('v_cndmask_b32 %s, %s, %s, vcc' % (v(vHw), v(t2), v(t1)))
a('v_lshrrev_b32 %s, 1, %s' % (v(t1), v(vXw)))
a('v_cmp_gt_u32 vcc, %s, %s' % (s(sCnt), v(t1)))
a('s_mul_i32 s55, %s, 640' % s(sW))
a('s_add_u32 s55, s55, %d' % O32)
a('v_cndmask_b32 %s, 0, -1, vcc' % v(vHmask))
a('v_lshl_add_u32 %s, %s, 5, %s' % (v(t1), v(pos16), v(vOpR)))
a('v_add_u32 %s, s55, %s' % (v(vO32w), v(t1)))
a('s_lshl_b32 s55, %s, 7' % s(sW))
a('s_add_u32 s55, s55, %d' % O32)
a('v_mul_u32_u24 %s, 640, %s' % (v(t1), v(u16)))
a('v_lshl_add_u32 %s, %s, 4, %s' % (v(t1), v(pos8), v(t1)))
a('v_add_u32 %s, s55, %s' % (v(vO32r), v(t1)))
a('v_lshlrev_b32 %s, 2, %s' % (v(vMr), v(u16)))
a('s_lshl_b32 s55, %s, 2' % s(sW))
a('v_mov_b32 %s, s55' % v(vMw))
a('v_and_b32 %s, 1, %s' % (v(t1), v(vL)))
a('v_cmp_eq_u32 vcc, 1, %s' % v(t1))
a('v_mov_b32 %s, 0xffff' % v(t1))
a('v_mov_b32 %s, 0xffff0000' % v(t2))
a('v_cndmask_b32 %s, %s, %s, vcc' % (v(t1), v(t1), v(t2)))
a('v_lshrrev_b32 %s, 1, %s' % (v(t2), v(pos16)))
for d in range(4):
    a('v_cmp_eq_u32 vcc, %d, %s' % (d, v(t2)))
    a('v_cndmask_b32 %s, 0, %s, vcc' % (v(vDm + d), v(t1)))
a('v_lshlrev_b32 %s, 2, %s' % (v(t0), v(t0)))
a('v_mov_b32 %s, 0x3f803f80' % v(t1))
a('ds_write_b32 %s, %s offset:%d' % (v(t0), v(t1), ONES))
a('v_lshlrev_b32 %s, 2, %s' % (v(t0), v(pos8)))
a('ds_write_b32 %s, %s offset:%d' % (v(t0), v(vZero), HB + 96))
r_, c_ = T + 16, T + 17
trq = T + 18
a('v_lshrrev_b32 %s, 2, %s' % (v(r_), v(pos16)))
a('v_and_b32 %s, 1, %s' % (v(t0), v(u16)))
a('v_lshl_add_u32 %s, %s, 2, %s' % (v(t1), v(t0), v(r_)))
a('v_lshlrev_b32 %s, 1, %s' % (v(t1), v(t1)))
a('s_lshl_b32 s55, %s, 2' % s(sW))
a('v_xor_b32 %s, s55, %s' % (v(t1), v(t1)))
a('v_lshlrev_b32 %s, 4, %s' % (v(t1), v(t1)))
a('v_lshl_add_u32 %s, %s, 3, %s' % (v(t1), v(l3), v(t1)))
a('v_lshl_add_u32 %s, %s, 3, %s' % (v(t2), v(u16), v(r_)))
a('v_lshl_add_u32 %s, %s, 8, %s' % (v(trq), v(t2), v(t1)))
a('v_xor_b32 %s, 32, %s' % (v(trq + 1), v(trq)))
a('v_lshrrev_b32 %s, 1, %s' % (v(t1), v(r_)))
a('v_lshl_add_u32 %s, %s, 1, %s' % (v(t1), v(t0), v(t1)))
a('v_xor_b32 %s, %s, %s' % (v(t1), s(sW), v(t1)))
a('v_lshlrev_b32 %s, 5, %s' % (v(t1), v(t1)))
a('v_lshl_add_u32 %s, %s, 3, %s' % (v(t1), v(l3), v(t1)))
a('v_lshl_add_u32 %s, %s, 7, %s' % (v(vTr), v(t2), v(t1)))
wo0, wo1, f0, f1 = 224, 225, 226, 227
a('v_and_b32 %s, 2, %s' % (v(t0), v(u8)))
a('v_xor_b32 %s, %s, %s' % (v(t0), v(t0), v(pos8)))
a('v_lshlrev_b32 %s, 4, %s' % (v(t1), v(t0)))
a('v_lshl_add_u32 %s, %s, 10, %s' % (v(wo0), v(u8), v(t1)))
a('v_xor_b32 %s, 64, %s' % (v(wo1), v(wo0)))
a('v_add_u32 %s, 7168, %s' % (v(wo1), v(wo1)))
a('v_mul_u32_u24 %s, 2752, %s' % (v(t2), v(u8)))
a('v_min_u32 %s, 5, %s' % (v(t1), v(t0)))
a('v_lshl_add_u32 %s, %s, 4, %s' % (v(f0), v(t1), v(t2)))
a('v_xor_b32 %s, 4, %s' % (v(t0), v(t0)))
a('v_min_u32 %s, 5, %s' % (v(t1), v(t0)))
a('v_lshl_add_u32 %s, %s, 4, %s' % (v(f1), v(t1), v(t2)))
a('v_add_u32 %s, %d, %s' % (v(f1), 8 * 2752 - 1024, v(f1)))
a('s_lshl_b32 s55, %s, 17' % s(sGam))
a('s_lshl_b32 s59, %s, 15' % s(sW))
a('s_add_u32 s55, s55, s59')
a('s_add_u32 s55, s55, s48')
a('s_add_u32 s12, s12, s55')
a('s_addc_u32 s13, s13, 0')
a('s_lshl_b32 s55, %s, 2' % s(sJ))
a('s_add_u32 s55, s55, %s' % s(sW))
a('s_mul_i32 s55, s55, %d' % (16 * 2752))
a('s_lshl_b32 s59, %s, 4' % s(sC0))
a('s_add_u32 s55, s55, s59')
a('s_add_u32 s16, s16, s55')
a('s_addc_u32 s17, s17, 0')
a('s_add_u32 s18, s18, s55')
a('s_addc_u32 s19, s19, 0')
a('s_lshl_b32 s55, %s, 13' % s(sC0))
a('s_lshl_b32 s59, %s, 14' % s(sW))
a('s_add_u32 s55, s55, s59')
a('s_add_u32 s55, s55, s48')
a('s_add_u32 s20, s20, s55')
a('s_addc_u32 s21, s21, 0')
a('s_add_u32 s22, s22, s48')
a('s_addc_u32 s23, s23, 0')
a('s_waitcnt lgkmcnt(0)')
for k in range(10):
    a('s_add_u32 %s, %s, %d' % (s(sTag + k), s(sE), k + 1))


def issue_wo():
    a('s_add_u32 s55, s49, %d' % WO)
    a('s_mov_b32 m0, s55')
    a('v_add_u32 %s, %d, %s' % (v(T + 20), 2 * 7168, v(wo0)))
    a('global_load_lds_dwordx4 %s, s[12:13] offset:0%s' % (v(wo0), NT))
    a('global_load_lds_dwordx4 %s, s[12:13] offset:1024%s' % (v(wo1), NT))
    a('global_load_lds_dwordx4 %s, s[12:13] offset:2048%s' % (v(T + 20), NT))
    a('v_add_u32 %s, %d, %s' % (v(T + 20), 2 * 7168, v(wo1)))
    a('global_load_lds_dwordx4 %s, s[12:13] offset:3072%s' % (v(T + 20), NT))


def issue_ffn():
    a('s_lshl_b32 s59, %s, 11' % s(sW))
    a('s_add_u32 s55, s59, %d' % W1)
    a('s_mov_b32 m0, s55')
    a('s_add_u32 s55, s59, %d' % W3)
    a('global_load_lds_dwordx4 %s, s[16:17] offset:0%s' % (v(f0), NT))
    a('global_load_lds_dwordx4 %s, s[16:17] offset:1024%s' % (v(f1), NT))
    a('s_mov_b32 m0, s55')
    a('s_add_u32 s55, s59, %d' % W2)
    a('global_load_lds_dwordx4 %s, s[18:19] offset:0%s' % (v(f0), NT))
    a('global_load_lds_dwordx4 %s, s[18:19] offset:1024%s' % (v(f1), NT))
    sk = newlabel('now2')
    a('s_cmp_eq_u32 %s, 3' % s(sW))
    a('s_cbranch_scc1 %s' % sk)
    a('s_mov_b32 m0, s55')
    a('s_nop 0')
    a('global_load_lds_dwordx4 %s, s[20:21] offset:0%s' % (v(wo0), NT))
    a('global_load_lds_dwordx4 %s, s[20:21] offset:1024%s' % (v(wo1), NT))
    a.label(sk)


for layer in range(2):
    pre = 'L%d' % layer
    k1, k2, k4 = 3 * layer, 3 * layer + 1, 3 * layer + 2
    a('; ---- layer %d: x slice, query projection partials' % layer)
    if layer == 0:
        a('s_waitcnt vmcnt(21)')
        a('ds_write_b16 %s, %s offset:%d' % (v(vXw), v(vX), XB))
        a('v_lshlrev_b32 %s, 16, %s' % (v(vX), v(vX)))
        ln_stats_publish(k1, first=True)
        a('s_waitcnt vmcnt(17) lgkmcnt(0)')
        stamp('wq landed')
        a('s_barrier')
        tr_reads(vWQ, trq, WQ, 2, 8192, 1024)
        tr_reads(vWQ + 8, trq + 1, WQ, 2, 8192, 1024)
    else:
        x_gather(1, G_D)
        stamp(pre + ' E5 ok')
        a('ds_write_b16 %s, %s offset:%d' % (v(vXw), v(T), XB))
        a('v_and_b32 %s, 0xffff0000, %s' % (v(vX), v(T)))
        ln_stats_publish(k1)
        a('s_waitcnt lgkmcnt(0)')
        a('s_barrier')
    proj_phase(vWQ, k1, layer, first=(layer == 0))
    stamp(pre + ' Q pub')
    a('; ---- layer %d: gather q' % layer)
    r = vP
    if layer == 0:
        a('v_xor_b32 %s, %s, %s' % (v(t0), v(u16), v(pos16)))
        a('v_lshlrev_b32 %s, 4, %s' % (v(t0), v(t0)))
        a('v_lshl_add_u32 %s, %s, 8, %s' % (v(t0), v(pos16), v(t0)))
        a('s_lshl_b32 s55, %s, 13' % s(sW))
        a('s_add_u32 s55, s55, %d' % KI)
        a('v_add_u32 %s, s55, %s' % (v(t0), v(t0)))
        for kk in range(1, 4):
            a('v_xor_b32 %s, %d, %s' % (v(t0 + kk), kk << 6, v(t0)))
        a('s_waitcnt vmcnt(10)')
        stamp('K landed')
        for g in range(2):
            for kk in range(4):
                a('ds_read_b128 %s, %s offset:%d' % (v(vK + 16 * g + 4 * kk, 4), v(t0 + kk), 4096 * g))

        def chk():
            a('v_bitop3_b32 %s, %s, %s, %s bitop3:0x7e' % (v(T + 23), v(r), v(r + 4), s(sTag + k1)))
            a('v_cmp_ne_u32 %s, %s, %s' % (s(sT1, 2), s(sTag + k1), v(r + 10)))
            a('v_cmp_ne_u32_sdwa vcc, %s, %s src0_sel:BYTE_0 src1_sel:DWORD' % (v(T + 23), v(vZero)))
            a('s_or_b64 vcc, vcc, %s' % s(sT1, 2))
        poll([(r + 8, vStC, sLb, 0), (r, vCons, sLb, BUF_A), (r + 4, vCons, sLb, BUF_X)], chk, pre_wait=issue_wo, first_cnt=4)
        a('v_cmp_ne_u32 vcc, %s, %s' % (s(sXcc), v(r + 11)))
        a('v_and_b32 %s, %s, %s' % (v(r + 4), s(sMaskHi), v(r + 4)))
        a('s_cmp_eq_u64 vcc, 0')
        a('s_cselect_b32 %s, 1, 0' % s(sFast))
        reduce_j(r + 4, vCq)
        ln_stats_consume(r + 8)
    else:
        poll([(r + 8, vStC, sLb, 512 * (k1 & 1))], chk_stats(r + 8, k1))
        ln_stats_consume(r + 8)
        poll([(r, vCons, sLb, BUF_B)], chk_byte([r], sTag + k1))
    stamp(pre + ' E1 ok')
    a('v_and_b32 %s, %s, %s' % (v(r), s(sMaskHi), v(r)))
    reduce_j(r, r)
    a('v_fma_f32 %s, -%s, %s, %s' % (v(r), v(vMean), v(vCq), v(r)))
    a('v_mul_f32 %s, %s, %s' % (v(r), v(r), v(vRs)))
    a('v_cvt_pk_bf16_f32 %s, %s, %s' % (v(r), v(r), v(r)))
    a('ds_write_b16 %s, %s offset:%d' % (v(vQw), v(r), QB))
    a('s_waitcnt lgkmcnt(0)')
    a('s_barrier')
    a('; ---- layer %d: attention over this member\'s 128 keys' % layer)
    for kk in range(4):
        a('ds_read_b128 %s, %s offset:%d' % (v(vA + 4 * kk, 4), v(vOpR), QB + 64 * kk))
    a('s_waitcnt lgkmcnt(0)')
    for kk in range(4):
        for g in range(2):
            a('v_mfma_f32_16x16x32_bf16 %s, %s, %s, %s' % (v(vD + 4 * g, 4), v(vA + 4 * kk, 4), v(vK + 16 * g + 4 * kk, 4),
                                                         '0' if kk == 0 else v(vD + 4 * g, 4)))
    sg = T + 4
    mx, e0, e1, p0, p1, q0, q1 = T, T + 1, T + 2, T + 8, T + 9, T + 10, T + 11
    a('v_mov_b32 %s, %s' % (v(sg + 2), s(sTag + k2)))
    a('v_mov_b32 %s, %s' % (v(sg + 3), s(sXcc)))
    a('v_max_f32 %s, %s, %s' % (v(mx), v(vD), v(vD + 4)))
    for ro in (8, 4, 2, 1):
        a('v_max_f32_dpp %s, %s, %s row_ror:%d row_mask:0xf bank_mask:0xf' % (v(mx), v(mx), v(mx), ro))
    a('v_mul_f32 %s, %s, %s' % (v(sg), s(sCs), v(mx)))
    a('v_fma_f32 %s, %s, %s, -%s' % (v(e0), v(vD), s(sCs), v(sg)))
    a('v_fma_f32 %s, %s, %s, -%s' % (v(e1), v(vD + 4), s(sCs), v(sg)))
    a('v_exp_f32 %s, %s' % (v(e0), v(e0)))
    a('v_exp_f32 %s, %s' % (v(e1), v(e1)))
    a('ds_write_b32 %s, %s offset:%d' % (v(vMw), v(sg), MB))
    a('v_cvt_pk_bf16_f32 %s, %s, %s' % (v(p0), v(e0), v(e0)))
    a('v_cvt_pk_bf16_f32 %s, %s, %s' % (v(p1), v(e1), v(e1)))
    a('v_cvt_pk_bf16_f32 %s, %s, %s' % (v(q0), v(e0), v(e0)))
    a('v_cvt_pk_bf16_f32 %s, %s, %s' % (v(q1), v(e1), v(e1)))
    for sh in (1, 2, 3):
        a('v_mov_b32_dpp %s, %s row_shl:%d row_mask:0x%x bank_mask:0xf' % (v(q0), v(p0), sh, 1 << sh))
        a('v_mov_b32_dpp %s, %s row_shl:%d row_mask:0x%x bank_mask:0xf' % (v(q1), v(p1), sh, 1 << sh))
    a('v_add_f32 %s, %s, %s' % (v(sg + 1), v(e0), v(e1)))

    def ands(i):
        for d in range(4):
            a('v_and_b32_dpp %s, %s, %s row_newbcast:%d row_mask:0xf bank_mask:0xf' % (
                v(vA + 4 * (i & 1) + d), v(q0 + (i >> 2)), v(vDm + d), 4 * (i & 3)))
    ands(0)
    for i in range(8):
        if i + 1 < 8:
            ands(i + 1)
        a('v_mfma_f32_16x16x32_bf16 %s, %s, %s, %s' % (v(vD + 8, 4), v(vA + 4 * (i & 1), 4), v(vV + 4 * i, 4), '0' if i == 0 else v(vD + 8, 4)))
    for ro in (8, 4, 2, 1):
        a('v_add_f32_dpp %s, %s, %s row_ror:%d row_mask:0xf bank_mask:0xf' % (v(sg + 1), v(sg + 1), v(sg + 1), ro))
    setfast()
    a('s_mov_b32 exec_hi, 0')
    a('ds_write_b128 %s, %s' % (v(vO32w), v(vD + 8, 4)))
    a('s_mov_b64 exec, 1')
    lstore('global_store_dwordx4', v(vStP), v(sg, 4), s(sLb, 2), 512 * (k2 & 1))
    a('s_mov_b64 exec, -1')
    a('s_waitcnt lgkmcnt(0)')
    a('s_barrier')
    a('ds_read_b128 %s, %s offset:%d' % (v(T + 8, 4), v(vZero), MB))
    a('ds_read_b32 %s, %s offset:%d' % (v(T + 12), v(vMr), MB))
    a('ds_read_b128 %s, %s' % (v(r, 4), v(vO32r)))
    a('s_waitcnt lgkmcnt(1)')
    a('v_max3_f32 %s, %s, %s, %s' % (v(T + 8), v(T + 8), v(T + 9), v(T + 10)))
    a('v_max_f32 %s, %s, %s' % (v(T + 8), v(T + 8), v(T + 11)))
    a('v_sub_f32 %s, %s, %s' % (v(T + 12), v(T + 12), v(T + 8)))
    a('v_exp_f32 %s, %s' % (v(T + 12), v(T + 12)))
    setfast()
    a('s_waitcnt lgkmcnt(0)')
    a('v_pk_mul_f32 %s, %s, %s op_sel_hi:[1,0]' % (v(r + 2, 2), v(r + 2, 2), v(T + 12, 2)))
    a('v_pk_mul_f32 %s, %s, %s op_sel_hi:[1,0]' % (v(r, 2), v(r, 2), v(T + 12, 2)))
    a('v_permlane32_swap_b32 %s, %s' % (v(r + 1), v(r + 3)))
    a('v_permlane32_swap_b32 %s, %s' % (v(r), v(r + 2)))
    a('v_add_f32 %s, %s, %s' % (v(r + 1), v(r + 1), v(r + 3)))
    a('v_add_f32 %s, %s, %s' % (v(r), v(r), v(r + 2)))
    a('v_permlane16_swap_b32 %s, %s' % (v(r), v(r + 1)))
    a('v_add_f32 %s, %s, %s' % (v(r), v(r), v(r + 1)))
    a('v_bfi_b32 %s, %s, %s, %s' % (v(T), v(vTagM1), s(sTag + k2), v(r)))
    lstore('global_store_dword', v(vPubS), v(T), s(sLb, 2), BUF_A if k2 % 2 == 0 else BUF_B)
    stamp(pre + ' S pub')
    a('; ---- layer %d: combine the 8 key blocks, output projection partials' % layer)
    poll([(r + 8, vStC, sLb, 512 * (k2 & 1))], chk_stats(r + 8, k2))
    mj, mm = T, T + 1
    a('v_mov_b32 %s, %s' % (v(mj), v(r + 8)))
    allred('v_max_f32', mj, T + 2, [0, 1])
    a('v_mov_b32 %s, %s' % (v(mm), v(mj)))
    allred('v_max_f32', mm, T + 2, [3, 4, 5])
    a('v_sub_f32 %s, %s, %s' % (v(r + 8), v(r + 8), v(mm)))
    a('v_sub_f32 %s, %s, %s' % (v(mj), v(mj), v(mm)))
    a('v_exp_f32 %s, %s' % (v(r + 8), v(r + 8)))
    a('v_exp_f32 %s, %s' % (v(mj), v(mj)))
    a('v_mul_f32 %s, %s, %s' % (v(r + 8), v(r + 8), v(r + 9)))
    allred('v_add_f32', r + 8, T + 2, [0, 1, 3, 4, 5])
    a('v_rcp_f32 %s, %s' % (v(r + 8), v(r + 8)))
    a('v_mul_f32 %s, %s, %s' % (v(vF), v(mj), v(r + 8)))
    poll([(r, vCons, sLb, BUF_A if k2 % 2 == 0 else BUF_B)], chk_byte([r], sTag + k2))
    stamp(pre + ' E2 ok')
    a('v_and_b32 %s, %s, %s' % (v(r), s(sMaskHi), v(r)))
    a('v_pk_mul_f32 %s, %s, %s op_sel_hi:[1,0]' % (v(r + 2, 2), v(r + 2, 2), v(vF, 2)))
    a('v_pk_mul_f32 %s, %s, %s op_sel_hi:[1,0]' % (v(r, 2), v(r, 2), v(vF, 2)))
    reduce_j(r, r)
    a('v_cvt_pk_bf16_f32 %s, %s, %s' % (v(r), v(r), v(r)))
    a('ds_write_b16 %s, %s offset:%d' % (v(vQw), v(r), OB))
    if layer == 0:
        issue_ffn()
    a('s_waitcnt lgkmcnt(0)')
    a('s_barrier')
    if layer == 0:
        tr_reads(vWO, vTr, WO, 4, 4096, 512)
    gemv_publish_g(4, vWO, OB, 2 * layer, G_C)
    stamp(pre + ' O pub')
    a('; ---- layer %d: x slice, gate/up partials' % layer)
    x_gather(2 * layer, G_C)
    stamp(pre + ' E3 ok')
    a('ds_write_b16 %s, %s offset:%d' % (v(vXw), v(T), XB))
    a('v_and_b32 %s, 0xffff0000, %s' % (v(vX), v(T)))
    ln_stats_publish(k4)
    a('s_waitcnt lgkmcnt(0)')
    a('s_barrier')
    idle = newlabel('idle')
    if layer == 0:
        tr_reads(vW13, vTr, W1, 2, 4096, 512)
        tr_reads(vW13 + 8, vTr, W3, 2, 4096, 512)
        tr_reads(vW2, vTr, W2, 1, 4096, 512)
        a('v_and_b32 %s, 32, %s' % (v(T + 1), v(vL)))
        a('v_lshlrev_b32 %s, 6, %s' % (v(T + 1), v(T + 1)))
        a('v_sub_u32 %s, %s, %s' % (v(T + 1), v(vTr), v(T + 1)))
        tr_reads(vW2 + 4, T + 1, W2 + 4096, 1, 4096, 512)
    a('s_cmp_eq_u32 %s, 3' % s(sW))
    a('s_cbranch_scc1 %s' % idle)
    proj_phase(vW13, k4, layer)
    stamp(pre + ' G pub')
    a('; ---- layer %d: gather gate/up, activation' % layer)
    poll([(r + 8, vStC, sLb, 512 * (k4 & 1))], chk_stats(r + 8, k4))
    ln_stats_consume(r + 8)
    if layer == 0:
        poll([(r, vCons, sLb, BUF_A), (r + 4, vCons, sLb, BUF_X)], chk_byte([r, r + 4], sTag + k4))
        a('v_and_b32 %s, %s, %s' % (v(r + 4), s(sMaskHi), v(r + 4)))
        reduce_j(r + 4, vCg)
    else:
        poll([(r, vCons, sLb, BUF_B)], chk_byte([r], sTag + k4))
    stamp(pre + ' E4 ok')
    a('v_and_b32 %s, %s, %s' % (v(r), s(sMaskHi), v(r)))
    reduce_j(r, r)
    a('v_fma_f32 %s, -%s, %s, %s' % (v(r), v(vMean), v(vCg), v(r)))
    a('v_mul_f32 %s, %s, %s' % (v(r), v(r), v(vRs)))
    bf16r(r, r)
    a('v_mul_f32 %s, %s, %s' % (v(r + 1), s(sNl2e), v(r)))
    a('v_exp_f32 %s, %s' % (v(r + 1), v(r + 1)))
    a('v_mov_b32_dpp %s, %s row_shl:4 row_mask:0xf bank_mask:0xf' % (v(r + 2), v(r)))
    a('v_add_f32 %s, 1.0, %s' % (v(r + 1), v(r + 1)))
    a('v_rcp_f32 %s, %s' % (v(r + 1), v(r + 1)))
    a('v_mul_f32 %s, %s, %s' % (v(r), v(r), v(r + 1)))
    bf16r(r, r)
    a('v_mul_f32 %s, %s, %s' % (v(r), v(r), v(r + 2)))
    a('v_cvt_pk_bf16_f32 %s, %s, %s' % (v(r), v(r), v(r)))
    a('v_and_b32 %s, %s, %s' % (v(r), v(vHmask), v(r)))
    a('ds_write_b16 %s, %s' % (v(vHw), v(r)))
    a.label(idle)
    a('s_waitcnt lgkmcnt(0)')
    a('s_barrier')
    gemv_publish_g(2, vW2, HB, 2 * layer + 1, G_D)
    stamp(pre + ' D pub')

a('s_cmp_lg_u32 %s, 0' % s(sGam))
a('s_cbranch_scc1 L_fin')
x_gather(3, G_D)
a('s_mov_b32 exec_lo, 0x000f000f')
a('s_mov_b32 exec_hi, 0x000f000f')
a('global_store_short %s, %s, s[22:23]' % (v(vXw), v(T)))
a('s_or_b32 s55, %s, %s' % (s(sJ), s(sW)))
a('s_cmp_lg_u32 s55, 0')
a('s_cbranch_scc1 L_fin')
a('s_add_u32 s55, %s, 16' % s(sE))
a('v_mov_b32 %s, s55' % v(T + 1))
a('s_mov_b64 exec, 1')
a('global_store_dword %s, %s, s[26:27]' % (v(vZero), v(T + 1)))
a.label('L_fin')
if DIAG:
    a('s_mov_b64 exec, -1')
    stamp_regs.append(4)
    stamps_n = len(stamps)
    a('s_memrealtime s[4:5]')
    a('s_waitcnt lgkmcnt(0)')
    a('v_mov_b32 %s, 0' % v(T))
    for i in range(stamps_n):
        a('v_writelane_b32 %s, %s, %d' % (v(T), s(stamp_regs[i]), i))
    a('v_writelane_b32 %s, s4, %d' % (v(T), stamps_n))
    a('s_lshl_b32 s55, s2, 2')
    a('s_add_u32 s55, s55, %s' % s(sW))
    a('s_lshl_b32 s55, s55, 8')
    a('s_add_u32 s55, s55, %d' % WS_DIAG)
    a('v_lshl_add_u32 %s, %s, 2, s55' % (v(T + 1), v(vL)))
    a('global_store_dword %s, %s, s[26:27]' % (v(T + 1), v(T)))
    stamps.append('end')
a.label('L_end')
a('s_endpgm')
for l1, ins, l2 in slow:
    a.label(l1)
    a.raw('    ' + ins)
    a.raw('    s_branch %s' % l2)
a.label('L_codeend')
a.raw('''.section .rodata,"a"
.p2align 6
.amdhsa_kernel %s_kernel
  .amdhsa_next_free_vgpr %d
  .amdhsa_next_free_sgpr 102
  .amdhsa_accum_offset %d
  .amdhsa_group_segment_fixed_size 0
  .amdhsa_kernarg_size 96
  .amdhsa_user_sgpr_count 2
  .amdhsa_user_sgpr_kernarg_segment_ptr 1
  .amdhsa_system_sgpr_workgroup_id_x 1
  .amdhsa_float_denorm_mode_32 3
.end_amdhsa_kernel''' % (NAME, NVGPR, NVGPR))
sys.stdout.write(a.text())
if DIAG:
    sys.stderr.write('STAMPS ' + '|'.join(stamps) + '\n')
sys.stderr.write('nops inserted: %d\n' % a.nops)
```

```python
import sys, math
from asm import Asm

NAME = 'interleave_layers__sliding_block_cached__glu_gated_swiglu__decode'
OPT = dict(diag=0, fast=1, nt=1, stop=99)
for a_ in sys.argv[1:]:
    k_, v_ = a_.split('=')
    OPT[k_] = int(v_)
DIAG = OPT['diag']
NT = ' nt' if OPT['nt'] else ''

XB, ONES, QB, OB, HB, MB, DUMMY, O32 = 0, 128, 256, 512, 768, 896, 960, 1024
WQ, WO, W1, W3, W2, KI = 4096, 20480, 36864, 45056, 53248, 61440
LDS_BYTES = KI + 32768
WS_G, WS_L, WS_DIAG = 0x20000, 0x40000, 0x200000
BUF_A, BUF_X, BUF_B, STATS = 0, 1024, 2048, 3072
G_C, G_D = 0, 2048

vL, vCons, vPubL, vPubS, vPubG, vStP, vStC, vTagM0, vTagM1 = range(1, 10)
vXw, vQw, vHw, vOpR, vXopR, vO32w, vO32r, vMr, vZero, vMw = range(10, 20)
vDm = 20
vHmask, vX, vCq, vCg, vMean, vRs, vF, vTr = range(24, 32)
vWQ, vK, vV, vWO, vW13, vW2 = 32, 48, 80, 112, 128, 144
T = 152
vA = 176
vD = 192
vP = 208
NVGPR = 232
sW, sJ, sGam, sE, sXcc, sTo, sFast, sC0, sCnt = 28, 29, 30, 32, 35, 36, 37, 33, 34
sLb, sGb = 38, 40
sT0, sT1, sT2 = 42, 44, 46
sCs, sMaskHi, sInv512, sEps, sNl2e = 50, 51, 52, 53, 54
sM0, sM1 = 56, 58
sTag = 60

a = Asm()
slow = []
stamp_regs = list(range(70, 102, 2))
stamps = []


def v(n, cnt=1):
    return 'v%d' % n if cnt == 1 else 'v[%d:%d]' % (n, n + cnt - 1)


def s(n, cnt=1):
    return 's%d' % n if cnt == 1 else 's[%d:%d]' % (n, n + cnt - 1)


def stamp(name):
    if not DIAG:
        return
    if DIAG == 2 and not name.startswith('L1') and name != 'start':
        return
    if DIAG == 1 and name.startswith('L1'):
        return
    if DIAG == 3 and name not in ('start', 'issued', 'wq landed', 'K landed', 'L0 E1 ok', 'L0 S pub', 'L0 E2 ok', 'L0 E3 ok', 'L0 E4 ok', 'L0 D pub', 'L1 E5 ok', 'L1 E1 ok', 'L1 E2 ok', 'L1 E3 ok', 'L1 D pub'):
        return
    if len(stamps) >= len(stamp_regs):
        return
    r = stamp_regs[len(stamps)]
    stamps.append(name)
    a('s_memrealtime %s' % s(r, 2))


def f32(x):
    import struct
    return '0x%08x' % struct.unpack('<I', struct.pack('<f', x))[0]


lbl = [0]


def newlabel(p):
    lbl[0] += 1
    return 'L_%s_%d' % (p, lbl[0])


def lstore(op, addr, data, base, off, first=False):
    ins = '%s %s, %s, %s offset:%d' % (op, addr, data, base, off)
    if first or not OPT['fast']:
        a(ins + ' sc1')
        return
    l1, l2 = newlabel('slow'), newlabel('back')
    a('s_cbranch_scc1 %s' % l1)
    a(ins)
    a.label(l2)
    slow.append((l1, ins + ' sc1', l2))


def setfast():
    if OPT['fast']:
        a('s_cmp_eq_u32 %s, 0' % s(sFast))


def poll(loads, check, pre_wait=None, first_cnt=0):
    top, ent = newlabel('poll'), newlabel('pent')
    if pre_wait is not None:
        for d, vo, b, im in loads:
            a('global_load_dwordx4 %s, %s, %s offset:%d sc1' % (v(d, 4), v(vo), s(b, 2), im))
        pre_wait()
        a('s_waitcnt vmcnt(%d)' % first_cnt)
        a('s_branch %s' % ent)
    a.label(top)
    a('s_sub_u32 %s, %s, 1' % (s(sTo), s(sTo)))
    a('s_cbranch_scc1 L_end')
    for d, vo, b, im in loads:
        a('global_load_dwordx4 %s, %s, %s offset:%d sc1' % (v(d, 4), v(vo), s(b, 2), im))
    a('s_waitcnt vmcnt(0)')
    if pre_wait is not None:
        a.label(ent)
    check()
    a('s_cbranch_vccnz %s' % top)


def chk_byte(regs, tag):
    def f():
        if len(regs) == 1:
            a('v_cmp_ne_u32_sdwa vcc, %s, %s src0_sel:BYTE_0 src1_sel:BYTE_0' % (v(regs[0]), s(tag)))
        else:
            a('v_bitop3_b32 %s, %s, %s, %s bitop3:0x7e' % (v(T + 23), v(regs[0]), v(regs[1]), s(tag)))
            a('v_cmp_ne_u32_sdwa vcc, %s, %s src0_sel:BYTE_0 src1_sel:DWORD' % (v(T + 23), v(vZero)))
    return f


def reduce_j(r, out):
    a('v_permlane32_swap_b32 %s, %s' % (v(r + 1), v(r + 3)))
    a('v_add_f32 %s, %s, %s' % (v(r + 1), v(r + 1), v(r + 3)))
    a('v_permlane32_swap_b32 %s, %s' % (v(r), v(r + 2)))
    a('v_add_f32 %s, %s, %s' % (v(r), v(r), v(r + 2)))
    a('v_permlane16_swap_b32 %s, %s' % (v(r), v(r + 1)))
    a('v_add_f32 %s, %s, %s' % (v(r), v(r), v(r + 1)))
    a('v_add_f32_dpp %s, %s, %s row_ror:8 row_mask:0xf bank_mask:0xf' % (v(out), v(r), v(r)))


def bf16r(dst, src):
    a('v_cvt_pk_bf16_f32 %s, %s, %s' % (v(dst), v(src), v(src)))
    a('v_and_b32 %s, 0xffff0000, %s' % (v(dst), v(dst)))


def allred(op, x, t, bits):
    for b in bits:
        if b == 0:
            a('%s_dpp %s, %s, %s quad_perm:[1,0,3,2] row_mask:0xf bank_mask:0xf' % (op, v(x), v(x), v(x)))
        elif b == 1:
            a('%s_dpp %s, %s, %s quad_perm:[2,3,0,1] row_mask:0xf bank_mask:0xf' % (op, v(x), v(x), v(x)))
        elif b == 3:
            a('%s_dpp %s, %s, %s row_ror:8 row_mask:0xf bank_mask:0xf' % (op, v(x), v(x), v(x)))
        elif b == 4:
            a('v_mov_b32 %s, %s' % (v(t), v(x)))
            a('v_permlane16_swap_b32 %s, %s' % (v(x), v(t)))
            a('%s %s, %s, %s' % (op, v(x), v(x), v(t)))
        elif b == 5:
            a('v_mov_b32 %s, %s' % (v(t), v(x)))
            a('v_permlane32_swap_b32 %s, %s' % (v(x), v(t)))
            a('%s %s, %s, %s' % (op, v(x), v(x), v(t)))


def ln_stats_publish(k, first=False):
    g = T + 4
    a('v_mov_b32 %s, %s' % (v(g), v(vX)))
    a('v_mul_f32 %s, %s, %s' % (v(g + 1), v(vX), v(vX)))
    a('v_mov_b32 %s, %s' % (v(g + 2), s(sTag + k)))
    a('v_mov_b32 %s, %s' % (v(g + 3), s(sXcc)))
    a('v_permlane32_swap_b32 %s, %s' % (v(g), v(g + 1)))
    a('v_add_f32 %s, %s, %s' % (v(g), v(g), v(g + 1)))
    allred('v_add_f32', g, g + 1, [4, 0, 1])
    a('v_mov_b32 %s, %s' % (v(g + 1), v(g)))
    setfast()
    a('v_permlane32_swap_b32 %s, %s' % (v(g), v(g + 1)))
    a('s_mov_b64 exec, 1')
    lstore('global_store_dwordx4', v(vStP), v(g, 4), s(sLb, 2), 512 * (k & 1), first)
    a('s_mov_b64 exec, -1')


def chk_stats(r, k):
    def f():
        a('v_cmp_ne_u32 vcc, %s, %s' % (s(sTag + k), v(r + 2)))
    return f


def ln_stats_consume(r):
    a('v_permlane32_swap_b32 %s, %s' % (v(r), v(r + 1)))
    a('v_add_f32 %s, %s, %s' % (v(r), v(r), v(r + 1)))
    allred('v_add_f32', r, r + 1, [4, 3, 0, 1])
    a('v_mov_b32 %s, %s' % (v(r + 1), v(r)))
    a('v_permlane32_swap_b32 %s, %s' % (v(r), v(r + 1)))
    a('v_mul_f32 %s, %s, %s' % (v(r), s(sInv512), v(r)))
    a('v_mul_f32 %s, %s, %s' % (v(r + 1), s(sInv512), v(r + 1)))
    a('v_fma_f32 %s, -%s, %s, %s' % (v(r + 1), v(r), v(r), v(r + 1)))
    a('v_max_f32 %s, 0, %s' % (v(r + 1), v(r + 1)))
    bf16r(vMean, r)
    bf16r(r + 1, r + 1)
    a('v_add_f32 %s, %s, %s' % (v(r + 1), s(sEps), v(r + 1)))
    bf16r(r + 1, r + 1)
    a('v_sqrt_f32 %s, %s' % (v(r + 1), v(r + 1)))
    bf16r(r + 1, r + 1)
    a('v_rcp_f32 %s, %s' % (v(vRs), v(r + 1)))


def x_gather(gi, imm):
    r = vP
    poll([(r, vCons, sGb, imm), (r + 4, vCons, sGb, imm + 1024)], chk_byte([r, r + 4], sTag + 6 + gi))
    a('v_and_b32 %s, %s, %s' % (v(r), s(sMaskHi), v(r)))
    a('v_and_b32 %s, %s, %s' % (v(r + 4), s(sMaskHi), v(r + 4)))
    a('v_pk_add_f32 %s, %s, %s' % (v(r + 2, 2), v(r + 2, 2), v(r + 6, 2)))
    a('v_pk_add_f32 %s, %s, %s' % (v(r, 2), v(r, 2), v(r + 4, 2)))
    reduce_j(r, r)
    a('v_add_f32_dpp %s, %s, %s row_ror:4 row_mask:0xf bank_mask:0xf' % (v(r), v(r), v(r)))
    bf16r(r, r)
    a('v_add_f32 %s, %s, %s' % (v(r), v(r), v(vX)))
    a('v_cvt_pk_bf16_f32 %s, %s, %s' % (v(T), v(r), v(r)))


def proj_phase(wreg, k, layer, first=False, guard_w3=False):
    rd = vXopR if layer == 0 else vOpR
    a('ds_read_b128 %s, %s offset:%d' % (v(vA, 4), v(rd), XB))
    a('ds_read_b128 %s, %s offset:%d' % (v(vA + 4, 4), v(rd), XB + 64))
    a('s_waitcnt lgkmcnt(0)')
    a('v_mfma_f32_16x16x32_bf16 %s, %s, %s, 0' % (v(vD, 4), v(vA, 4), v(wreg, 4)))
    a('v_mfma_f32_16x16x32_bf16 %s, %s, %s, 0' % (v(vD + 4, 4), v(vA, 4), v(wreg + 8, 4)))
    a('v_mfma_f32_16x16x32_bf16 %s, %s, %s, %s' % (v(vD, 4), v(vA + 4, 4), v(wreg + 4, 4), v(vD, 4)))
    a('v_mfma_f32_16x16x32_bf16 %s, %s, %s, %s' % (v(vD + 4, 4), v(vA + 4, 4), v(wreg + 12, 4), v(vD + 4, 4)))
    setfast()
    if layer == 1:
        a('s_mov_b32 exec_hi, 0')
    a('v_cndmask_b32 %s, %s, %s, %s' % (v(T), v(vD), v(vD + 4), s(sM0, 2)))
    a('v_bfi_b32 %s, %s, %s, %s' % (v(T), v(vTagM0), s(sTag + k), v(T)))
    lstore('global_store_dword', v(vPubL), v(T), s(sLb, 2), BUF_A if k % 2 == 0 else BUF_B, first)
    if layer == 1:
        a('s_mov_b32 exec_hi, -1')


def tr_reads(dst, addr, base, nk, kstride, gstride):
    for kk in range(nk):
        for g in range(2):
            a('ds_read_b64_tr_b16 %s, %s offset:%d' % (v(dst + 4 * kk + 2 * g, 2), v(addr), base + kk * kstride + g * gstride))


def gemv_publish_g(nk, wreg, src, gi, imm):
    for kk in range(nk):
        a('ds_read_b128 %s, %s offset:%d' % (v(vA + 4 * kk, 4), v(vOpR), src + 64 * kk))
    a('s_waitcnt lgkmcnt(0)')
    for kk in range(nk):
        a('v_mfma_f32_16x16x32_bf16 %s, %s, %s, %s' % (v(vD, 4), v(vA + 4 * kk, 4), v(wreg + 4 * kk, 4), '0' if kk == 0 else v(vD, 4)))
    a('s_mov_b64 exec, 0xffff')
    a('v_bfi_b32 %s, %s, %s, %s' % (v(T), v(vTagM0), s(sTag + 6 + gi), v(vD)))
    a('global_store_dword %s, %s, %s offset:%d sc1' % (v(vPubG), v(T), s(sGb, 2), imm))
    a('s_mov_b64 exec, -1')


def finish_if(stage):
    if OPT['stop'] == stage:
        a('s_branch L_fin')


a.raw('''; single persistent launch: 32 groups (head / ffn slice) x 8 members, weights and KV window stay on chip for both layers
; @launch grid=(256,1,1) block=(256,1,1) lds=%d
.amdgcn_target "amdgcn-amd-amdhsa--gfx950"
.text
.globl %s_kernel
.p2align 8
.type %s_kernel,@function
%s_kernel:''' % (LDS_BYTES, NAME, NAME, NAME))
a('s_cmp_ge_u32 s2, 256')
a('s_cbranch_scc1 L_end')
a('s_load_dwordx16 s[4:19], s[0:1], 0')
a('s_load_dwordx8 s[20:27], s[0:1], 64')
stamp('start')
a('s_getpc_b64 %s' % s(sT0, 2))
a.label('L_pc')
a('v_lshlrev_b32 %s, 6, v0' % v(T))
a('v_min_u32 %s, L_codeend-L_pc-64, %s' % (v(T), v(T)))
a('global_load_dword %s, %s, %s' % (v(T + 22), v(T), s(sT0, 2)))
a('v_lshrrev_b32 %s, 6, v0' % v(T))
a('v_and_b32 %s, 63, v0' % v(vL))
a('v_readfirstlane_b32 %s, %s' % (s(sW), v(T)))
a('s_lshr_b32 s3, s2, 3')
a('s_and_b32 %s, s3, 7' % s(sJ))
a('s_lshr_b32 s3, s3, 3')
a('s_and_b32 s31, s2, 7')
a('s_lshl_b32 %s, s31, 2' % s(sGam))
a('s_add_u32 %s, %s, s3' % (s(sGam), s(sGam)))
u16, pos16, u8, pos8, l3, col16 = T + 1, T + 2, T + 3, T + 4, T + 5, T + 6
a('v_lshrrev_b32 %s, 4, %s' % (v(u16), v(vL)))
a('v_and_b32 %s, 15, %s' % (v(pos16), v(vL)))
a('v_and_b32 %s, 3, %s' % (v(l3), v(vL)))
a('v_lshl_add_u32 %s, %s, 2, %s' % (v(col16), v(l3), v(u16)))
a('s_lshl_b32 s48, %s, 5' % s(sW))
a('v_lshl_add_u32 %s, %s, 1, s48' % (v(vXw), v(col16)))
t0, t1, t2, t3 = T + 8, T + 9, T + 10, T + 11
a('v_lshlrev_b32 %s, 1, %s' % (v(t0), v(u16)))
a('v_xor_b32 %s, %s, %s' % (v(t0), v(t0), v(pos16)))
a('v_lshlrev_b32 %s, 4, %s' % (v(t0), v(t0)))
a('v_lshl_add_u32 %s, %s, 13, %s' % (v(t0), v(u16), v(t0)))
a('v_xor_b32 %s, 0x80, %s' % (v(t1), v(t0)))
a('v_add_u32 %s, %d, %s' % (v(t1), 2 * 31744, v(t1)))
k0 = T + 12
a('v_xor_b32 %s, %s, %s' % (v(k0), v(u16), v(pos16)))
a('v_lshlrev_b32 %s, 4, %s' % (v(k0), v(k0)))
a('v_lshl_add_u32 %s, %s, 8, %s' % (v(k0), v(u16), v(k0)))
for i in range(1, 4):
    a('v_xor_b32 %s, %d, %s' % (v(k0 + i), i << 6, v(k0)))
a('v_lshlrev_b32 %s, 4, %s' % (v(t2), v(vL)))
a('s_lshl_b32 s49, %s, 12' % s(sW))
a('v_add_u32 %s, s49, %s' % (v(vCons), v(t2)))
a('s_lshl_b32 s55, %s, 14' % s(sJ))
a('s_lshl_b32 s56, s3, 12')
a('s_add_u32 s55, s55, s56')
a('s_lshl_b32 s56, %s, 10' % s(sW))
a('s_add_u32 s55, s55, s56')
a('s_add_u32 s55, s55, %d' % WS_G)
a('v_lshl_add_u32 %s, %s, 7, s55' % (v(t3), v(vL)))
a('s_lshl_b32 s57, %s, 14' % s(sGam))
a('s_add_u32 s57, s57, %d' % WS_L)
a('s_lshl_b32 s58, %s, 7' % s(sJ))
a('s_add_u32 s58, s58, s57')
a('s_add_u32 s59, s58, s49')
a('s_sub_u32 s59, s59, %d' % (8 * 1024))
a('v_lshl_add_u32 %s, %s, 10, s59' % (v(T + 16), v(vL)))
a('v_cmp_lt_u32 vcc, 7, %s' % v(vL))
a('s_add_u32 s58, s58, %d' % STATS)
a('v_mov_b32 %s, s58' % v(T + 17))
a('v_cndmask_b32 %s, %s, %s, vcc' % (v(t3), v(t3), v(T + 16)))
a('v_cmp_lt_u32 vcc, 10, %s' % v(vL))
a('s_lshl_b32 s48, %s, 7' % s(sJ))
a('v_cndmask_b32 %s, %s, %s, vcc' % (v(t3), v(t3), v(T + 17)))
a('s_lshl_b32 s55, %s, 19' % s(sJ))
a('s_lshl_b32 s56, %s, 17' % s(sW))
a('s_add_u32 s55, s55, s56')
a('s_lshl_b32 s56, %s, 8' % s(sGam))
a('s_add_u32 s55, s55, s56')
a('s_lshl_b32 s56, %s, 20' % s(sGam))
a('s_lshl_b32 s58, %s, 15' % s(sJ))
a('s_add_u32 s56, s56, s58')
a('s_lshl_b32 s58, %s, 13' % s(sW))
a('s_add_u32 s56, s56, s58')
a('s_add_u32 s56, s56, %d' % (3072 * 256))
a('s_add_u32 s59, s49, %d' % WQ)
a('s_mov_b32 m0, s59')
a('s_waitcnt lgkmcnt(0)')
a('s_load_dword %s, s[26:27], 0' % s(sE))
a('s_add_u32 s4, s4, s48')
a('s_addc_u32 s5, s5, 0')
a('global_load_ushort %s, %s, s[4:5]' % (v(vX), v(vXw)))
a('s_add_u32 s10, s10, s55')
a('s_addc_u32 s11, s11, 0')
a('global_load_dword %s, %s, s[26:27]' % (v(T + 21), v(t3)))
a('global_load_lds_dwordx4 %s, s[10:11] offset:0%s' % (v(t0), NT))
a('v_add_u32 %s, 31744, %s' % (v(t0), v(t0)))
a('s_add_u32 s6, s6, s56')
a('s_addc_u32 s7, s7, 0')
a('global_load_lds_dwordx4 %s, s[10:11] offset:1024%s' % (v(t0), NT))
a('global_load_lds_dwordx4 %s, s[10:11] offset:2048%s' % (v(t1), NT))
a('v_add_u32 %s, 31744, %s' % (v(t1), v(t1)))
a('s_add_u32 s58, s58, %d' % KI)
a('global_load_lds_dwordx4 %s, s[10:11] offset:3072%s' % (v(t1), NT))
a('s_mov_b32 m0, s58')
a('s_add_u32 s8, s8, s56')
a('s_addc_u32 s9, s9, 0')
for i in range(4):
    a('global_load_lds_dwordx4 %s, s[6:7] offset:%d%s' % (v(k0 + i), 1024 * i, NT))
a('s_add_u32 s58, s58, 4096')
a('s_mov_b32 m0, s58')
a('s_add_u32 s6, s6, 4096')
a('s_addc_u32 s7, s7, 0')
for i in range(4):
    a('global_load_lds_dwordx4 %s, s[6:7] offset:%d%s' % (v(k0 + i), 1024 * i, NT))
for i in range(4):
    a('global_load_dwordx4 %s, %s, s[8:9] offset:%d%s' % (v(vV + 4 * i, 4), v(t2), 1024 * i, NT))
a('s_add_u32 s8, s8, 4096')
a('s_addc_u32 s9, s9, 0')
for i in range(4):
    a('global_load_dwordx4 %s, %s, s[8:9] offset:%d%s' % (v(vV + 16 + 4 * i, 4), v(t2), 1024 * i, NT))
stamp('issued')
a('s_add_u32 %s, s26, s57' % s(sLb))
a('s_addc_u32 %s, s27, 0' % s(sLb + 1))
a('s_lshl_b32 s55, %s, 14' % s(sJ))
a('s_add_u32 s55, s55, %d' % WS_G)
a('s_add_u32 %s, s26, s55' % s(sGb))
a('s_addc_u32 %s, s27, 0' % s(sGb + 1))
a('s_getreg_b32 %s, hwreg(HW_REG_XCC_ID, 0, 4)' % s(sXcc))
a('s_mov_b32 %s, 0x40000' % s(sTo))
a('s_mov_b32 %s, %s' % (s(sCs), f32(math.log2(math.e) / math.sqrt(128.0))))
a('s_mov_b32 %s, 0xffffff00' % s(sMaskHi))
a('s_mov_b32 %s, %s' % (s(sInv512), f32(1.0 / 512)))
a('s_mov_b32 %s, %s' % (s(sEps), f32(1e-5)))
a('s_mov_b32 %s, %s' % (s(sNl2e), f32(-math.log2(math.e))))
a('s_mov_b32 %s, 0xffff0000' % s(sM0))
a('s_mov_b32 %s, 0xffff0000' % s(sM0 + 1))
a('s_mul_i32 %s, %s, 43' % (s(sC0), s(sGam)))
a('s_add_u32 %s, %s, 43' % (s(sCnt), s(sC0)))
a('s_lshr_b32 %s, %s, 3' % (s(sC0), s(sC0)))
a('s_lshr_b32 %s, %s, 3' % (s(sCnt), s(sCnt)))
a('s_sub_u32 %s, %s, %s' % (s(sCnt), s(sCnt), s(sC0)))
a('s_lshl_b32 %s, %s, 3' % (s(sCnt), s(sCnt)))
a('v_mov_b32 %s, 0' % v(vZero))
a('v_lshrrev_b32 %s, 3, %s' % (v(u8), v(vL)))
a('v_and_b32 %s, 7, %s' % (v(pos8), v(vL)))
a('s_add_u32 s55, s49, s48')
a('v_and_b32 %s, 31, %s' % (v(t0), v(vL)))
a('v_lshl_add_u32 %s, %s, 2, s55' % (v(vPubL), v(t0)))
a('v_lshrrev_b32 %s, 5, %s' % (v(t1), v(vL)))
a('v_lshl_add_u32 %s, %s, 10, %s' % (v(vPubL), v(t1), v(vPubL)))
a('v_lshl_add_u32 %s, %s, 2, %s' % (v(t1), v(pos8), v(u16)))
a('v_lshl_add_u32 %s, %s, 2, s55' % (v(vPubS), v(t1)))
a('s_lshl_b32 s55, %s, 6' % s(sW))
a('v_lshl_add_u32 %s, %s, 1, s55' % (v(vQw), v(t1)))
a('s_lshl_b32 s55, %s, 6' % s(sGam))
a('s_add_u32 s55, s55, s49')
a('v_lshl_add_u32 %s, %s, 2, s55' % (v(vPubG), v(pos16)))
a('s_lshl_b32 s55, %s, 2' % s(sJ))
a('s_add_u32 s55, s55, %s' % s(sW))
a('s_lshl_b32 s55, s55, 4')
a('s_add_u32 s55, s55, %d' % STATS)
a('v_mov_b32 %s, s55' % v(vStP))
a('v_lshlrev_b32 %s, 4, %s' % (v(t1), v(l3)))
a('v_lshl_add_u32 %s, %s, 6, %s' % (v(t1), v(u8), v(t1)))
a('v_add_u32 %s, %d, %s' % (v(vStC), STATS, v(t1)))
a('v_mov_b32 %s, 0xff' % v(t2))
a('v_cmp_eq_u32 vcc, 0, %s' % v(l3))
a('v_lshlrev_b32 %s, 4, %s' % (v(vOpR), v(u16)))
a('v_cndmask_b32 %s, 0, %s, vcc' % (v(vTagM0), v(t2)))
a('v_cmp_eq_u32 vcc, 0, %s' % v(u16))
a('v_and_b32 %s, 8, %s' % (v(t1), v(vL)))
a('v_cndmask_b32 %s, 0, %s, vcc' % (v(vTagM1), v(t2)))
a('v_lshl_add_u32 %s, %s, 4, %s' % (v(vXopR), v(t1), v(vOpR)))
a('v_and_b32 %s, 4, %s' % (v(t1), v(vL)))
a('v_cmp_eq_u32 vcc, 0, %s' % v(t1))
a('v_add_u32 %s, %d, %s' % (v(t1), HB, v(vXw)))
a('v_mov_b32 %s, %d' % (v(t2), DUMMY))
a('v_cndmask_b32 %s, %s, %s, vcc' % (v(vHw), v(t2), v(t1)))
a('v_lshrrev_b32 %s, 1, %s' % (v(t1), v(vXw)))
a('v_cmp_gt_u32 vcc, %s, %s' % (s(sCnt), v(t1)))
a('s_mul_i32 s55, %s, 640' % s(sW))
a('s_add_u32 s55, s55, %d' % O32)
a('v_cndmask_b32 %s, 0, -1, vcc' % v(vHmask))
a('v_lshl_add_u32 %s, %s, 5, %s' % (v(t1), v(pos16), v(vOpR)))
a('v_add_u32 %s, s55, %s' % (v(vO32w), v(t1)))
a('s_lshl_b32 s55, %s, 7' % s(sW))
a('s_add_u32 s55, s55, %d' % O32)
a('v_mul_u32_u24 %s, 640, %s' % (v(t1), v(u16)))
a('v_lshl_add_u32 %s, %s, 4, %s' % (v(t1), v(pos8), v(t1)))
a('v_add_u32 %s, s55, %s' % (v(vO32r), v(t1)))
a('v_lshlrev_b32 %s, 2, %s' % (v(vMr), v(u16)))
a('s_lshl_b32 s55, %s, 2' % s(sW))
a('v_mov_b32 %s, s55' % v(vMw))
a('v_and_b32 %s, 1, %s' % (v(t1), v(vL)))
a('v_cmp_eq_u32 vcc, 1, %s' % v(t1))
a('v_mov_b32 %s, 0xffff' % v(t1))
a('v_mov_b32 %s, 0xffff0000' % v(t2))
a('v_cndmask_b32 %s, %s, %s, vcc' % (v(t1), v(t1), v(t2)))
a('v_lshrrev_b32 %s, 1, %s' % (v(t2), v(pos16)))
for d in range(4):
    a('v_cmp_eq_u32 vcc, %d, %s' % (d, v(t2)))
    a('v_cndmask_b32 %s, 0, %s, vcc' % (v(vDm + d), v(t1)))
a('v_lshlrev_b32 %s, 2, %s' % (v(t0), v(t0)))
a('v_mov_b32 %s, 0x3f803f80' % v(t1))
a('ds_write_b32 %s, %s offset:%d' % (v(t0), v(t1), ONES))
a('v_lshlrev_b32 %s, 2, %s' % (v(t0), v(pos8)))
a('ds_write_b32 %s, %s offset:%d' % (v(t0), v(vZero), HB + 96))
r_, c_ = T + 16, T + 17
trq = T + 18
a('v_lshrrev_b32 %s, 2, %s' % (v(r_), v(pos16)))
a('v_and_b32 %s, 1, %s' % (v(t0), v(u16)))
a('v_lshl_add_u32 %s, %s, 2, %s' % (v(t1), v(t0), v(r_)))
a('v_lshlrev_b32 %s, 1, %s' % (v(t1), v(t1)))
a('s_lshl_b32 s55, %s, 2' % s(sW))
a('v_xor_b32 %s, s55, %s' % (v(t1), v(t1)))
a('v_lshlrev_b32 %s, 4, %s' % (v(t1), v(t1)))
a('v_lshl_add_u32 %s, %s, 3, %s' % (v(t1), v(l3), v(t1)))
a('v_lshl_add_u32 %s, %s, 3, %s' % (v(t2), v(u16), v(r_)))
a('v_lshl_add_u32 %s, %s, 8, %s' % (v(trq), v(t2), v(t1)))
a('v_xor_b32 %s, 32, %s' % (v(trq + 1), v(trq)))
a('v_lshrrev_b32 %s, 1, %s' % (v(t1), v(r_)))
a('v_lshl_add_u32 %s, %s, 1, %s' % (v(t1), v(t0), v(t1)))
a('v_xor_b32 %s, %s, %s' % (v(t1), s(sW), v(t1)))
a('v_lshlrev_b32 %s, 5, %s' % (v(t1), v(t1)))
a('v_lshl_add_u32 %s, %s, 3, %s' % (v(t1), v(l3), v(t1)))
a('v_lshl_add_u32 %s, %s, 7, %s' % (v(vTr), v(t2), v(t1)))
wo0, wo1, f0, f1 = 224, 225, 226, 227
a('v_and_b32 %s, 2, %s' % (v(t0), v(u8)))
a('v_xor_b32 %s, %s, %s' % (v(t0), v(t0), v(pos8)))
a('v_lshlrev_b32 %s, 4, %s' % (v(t1), v(t0)))
a('v_lshl_add_u32 %s, %s, 10, %s' % (v(wo0), v(u8), v(t1)))
a('v_xor_b32 %s, 64, %s' % (v(wo1), v(wo0)))
a('v_add_u32 %s, 7168, %s' % (v(wo1), v(wo1)))
a('v_mul_u32_u24 %s, 2752, %s' % (v(t2), v(u8)))
a('v_min_u32 %s, 5, %s' % (v(t1), v(t0)))
a('v_lshl_add_u32 %s, %s, 4, %s' % (v(f0), v(t1), v(t2)))
a('v_xor_b32 %s, 4, %s' % (v(t0), v(t0)))
a('v_min_u32 %s, 5, %s' % (v(t1), v(t0)))
a('v_lshl_add_u32 %s, %s, 4, %s' % (v(f1), v(t1), v(t2)))
a('v_add_u32 %s, %d, %s' % (v(f1), 8 * 2752 - 1024, v(f1)))
a('s_lshl_b32 s55, %s, 17' % s(sGam))
a('s_lshl_b32 s59, %s, 15' % s(sW))
a('s_add_u32 s55, s55, s59')
a('s_add_u32 s55, s55, s48')
a('s_add_u32 s12, s12, s55')
a('s_addc_u32 s13, s13, 0')
a('s_lshl_b32 s55, %s, 2' % s(sJ))
a('s_add_u32 s55, s55, %s' % s(sW))
a('s_mul_i32 s55, s55, %d' % (16 * 2752))
a('s_lshl_b32 s59, %s, 4' % s(sC0))
a('s_add_u32 s55, s55, s59')
a('s_add_u32 s16, s16, s55')
a('s_addc_u32 s17, s17, 0')
a('s_add_u32 s18, s18, s55')
a('s_addc_u32 s19, s19, 0')
a('s_lshl_b32 s55, %s, 13' % s(sC0))
a('s_lshl_b32 s59, %s, 14' % s(sW))
a('s_add_u32 s55, s55, s59')
a('s_add_u32 s55, s55, s48')
a('s_add_u32 s20, s20, s55')
a('s_addc_u32 s21, s21, 0')
a('s_add_u32 s22, s22, s48')
a('s_addc_u32 s23, s23, 0')
a('s_waitcnt lgkmcnt(0)')
for k in range(10):
    a('s_add_u32 %s, %s, %d' % (s(sTag + k), s(sE), k + 1))


def issue_wo():
    a('s_add_u32 s55, s49, %d' % WO)
    a('s_mov_b32 m0, s55')
    a('v_add_u32 %s, %d, %s' % (v(T + 20), 2 * 7168, v(wo0)))
    a('global_load_lds_dwordx4 %s, s[12:13] offset:0%s' % (v(wo0), NT))
    a('global_load_lds_dwordx4 %s, s[12:13] offset:1024%s' % (v(wo1), NT))
    a('global_load_lds_dwordx4 %s, s[12:13] offset:2048%s' % (v(T + 20), NT))
    a('v_add_u32 %s, %d, %s' % (v(T + 20), 2 * 7168, v(wo1)))
    a('global_load_lds_dwordx4 %s, s[12:13] offset:3072%s' % (v(T + 20), NT))


def issue_ffn():
    a('s_lshl_b32 s59, %s, 11' % s(sW))
    a('s_add_u32 s55, s59, %d' % W1)
    a('s_mov_b32 m0, s55')
    a('s_add_u32 s55, s59, %d' % W3)
    a('global_load_lds_dwordx4 %s, s[16:17] offset:0%s' % (v(f0), NT))
    a('global_load_lds_dwordx4 %s, s[16:17] offset:1024%s' % (v(f1), NT))
    a('s_mov_b32 m0, s55')
    a('s_add_u32 s55, s59, %d' % W2)
    a('global_load_lds_dwordx4 %s, s[18:19] offset:0%s' % (v(f0), NT))
    a('global_load_lds_dwordx4 %s, s[18:19] offset:1024%s' % (v(f1), NT))
    sk = newlabel('now2')
    a('s_cmp_eq_u32 %s, 3' % s(sW))
    a('s_cbranch_scc1 %s' % sk)
    a('s_mov_b32 m0, s55')
    a('s_nop 0')
    a('global_load_lds_dwordx4 %s, s[20:21] offset:0%s' % (v(wo0), NT))
    a('global_load_lds_dwordx4 %s, s[20:21] offset:1024%s' % (v(wo1), NT))
    a.label(sk)


for layer in range(2):
    pre = 'L%d' % layer
    k1, k2, k4 = 3 * layer, 3 * layer + 1, 3 * layer + 2
    a('; ---- layer %d: x slice, query projection partials' % layer)
    if layer == 0:
        a('s_waitcnt vmcnt(21)')
        a('ds_write_b16 %s, %s offset:%d' % (v(vXw), v(vX), XB))
        a('v_lshlrev_b32 %s, 16, %s' % (v(vX), v(vX)))
        ln_stats_publish(k1, first=True)
        a('s_waitcnt vmcnt(17) lgkmcnt(0)')
        stamp('wq landed')
        a('s_barrier')
        tr_reads(vWQ, trq, WQ, 2, 8192, 1024)
        tr_reads(vWQ + 8, trq + 1, WQ, 2, 8192, 1024)
    else:
        x_gather(1, G_D)
        stamp(pre + ' E5 ok')
        a('ds_write_b16 %s, %s offset:%d' % (v(vXw), v(T), XB))
        a('v_and_b32 %s, 0xffff0000, %s' % (v(vX), v(T)))
        ln_stats_publish(k1)
        a('s_waitcnt lgkmcnt(0)')
        a('s_barrier')
    proj_phase(vWQ, k1, layer, first=(layer == 0))
    stamp(pre + ' Q pub')
    a('; ---- layer %d: gather q' % layer)
    r = vP
    if layer == 0:
        a('v_xor_b32 %s, %s, %s' % (v(t0), v(u16), v(pos16)))
        a('v_lshlrev_b32 %s, 4, %s' % (v(t0), v(t0)))
        a('v_lshl_add_u32 %s, %s, 8, %s' % (v(t0), v(pos16), v(t0)))
        a('s_lshl_b32 s55, %s, 13' % s(sW))
        a('s_add_u32 s55, s55, %d' % KI)
        a('v_add_u32 %s, s55, %s' % (v(t0), v(t0)))
        for kk in range(1, 4):
            a('v_xor_b32 %s, %d, %s' % (v(t0 + kk), kk << 6, v(t0)))
        a('s_waitcnt vmcnt(10)')
        stamp('K landed')
        for g in range(2):
            for kk in range(4):
                a('ds_read_b128 %s, %s offset:%d' % (v(vK + 16 * g + 4 * kk, 4), v(t0 + kk), 4096 * g))

        def chk():
            a('v_bitop3_b32 %s, %s, %s, %s bitop3:0x7e' % (v(T + 23), v(r), v(r + 4), s(sTag + k1)))
            a('v_cmp_ne_u32 %s, %s, %s' % (s(sT1, 2), s(sTag + k1), v(r + 10)))
            a('v_cmp_ne_u32_sdwa vcc, %s, %s src0_sel:BYTE_0 src1_sel:DWORD' % (v(T + 23), v(vZero)))
            a('s_or_b64 vcc, vcc, %s' % s(sT1, 2))
        poll([(r + 8, vStC, sLb, 0), (r, vCons, sLb, BUF_A), (r + 4, vCons, sLb, BUF_X)], chk, pre_wait=issue_wo, first_cnt=4)
        a('v_cmp_ne_u32 vcc, %s, %s' % (s(sXcc), v(r + 11)))
        a('v_and_b32 %s, %s, %s' % (v(r + 4), s(sMaskHi), v(r + 4)))
        a('s_cmp_eq_u64 vcc, 0')
        a('s_cselect_b32 %s, 1, 0' % s(sFast))
        reduce_j(r + 4, vCq)
        ln_stats_consume(r + 8)
    else:
        poll([(r + 8, vStC, sLb, 512 * (k1 & 1))], chk_stats(r + 8, k1))
        ln_stats_consume(r + 8)
        poll([(r, vCons, sLb, BUF_B)], chk_byte([r], sTag + k1))
    stamp(pre + ' E1 ok')
    a('v_and_b32 %s, %s, %s' % (v(r), s(sMaskHi), v(r)))
    reduce_j(r, r)
    a('v_fma_f32 %s, -%s, %s, %s' % (v(r), v(vMean), v(vCq), v(r)))
    a('v_mul_f32 %s, %s, %s' % (v(r), v(r), v(vRs)))
    a('v_cvt_pk_bf16_f32 %s, %s, %s' % (v(r), v(r), v(r)))
    a('ds_write_b16 %s, %s offset:%d' % (v(vQw), v(r), QB))
    a('s_waitcnt lgkmcnt(0)')
    a('s_barrier')
    a('; ---- layer %d: attention over this member\'s 128 keys' % layer)
    for kk in range(4):
        a('ds_read_b128 %s, %s offset:%d' % (v(vA + 4 * kk, 4), v(vOpR), QB + 64 * kk))
    a('s_waitcnt lgkmcnt(0)')
    for kk in range(4):
        for g in range(2):
            a('v_mfma_f32_16x16x32_bf16 %s, %s, %s, %s' % (v(vD + 4 * g, 4), v(vA + 4 * kk, 4), v(vK + 16 * g + 4 * kk, 4),
                                                         '0' if kk == 0 else v(vD + 4 * g, 4)))
    sg = T + 4
    mx, e0, e1, p0, p1, q0, q1 = T, T + 1, T + 2, T + 8, T + 9, T + 10, T + 11
    a('v_mov_b32 %s, %s' % (v(sg + 2), s(sTag + k2)))
    a('v_mov_b32 %s, %s' % (v(sg + 3), s(sXcc)))
    a('v_max_f32 %s, %s, %s' % (v(mx), v(vD), v(vD + 4)))
    for ro in (8, 4, 2, 1):
        a('v_max_f32_dpp %s, %s, %s row_ror:%d row_mask:0xf bank_mask:0xf' % (v(mx), v(mx), v(mx), ro))
    a('v_mul_f32 %s, %s, %s' % (v(sg), s(sCs), v(mx)))
    a('v_fma_f32 %s, %s, %s, -%s' % (v(e0), v(vD), s(sCs), v(sg)))
    a('v_fma_f32 %s, %s, %s, -%s' % (v(e1), v(vD + 4), s(sCs), v(sg)))
    a('v_exp_f32 %s, %s' % (v(e0), v(e0)))
    a('v_exp_f32 %s, %s' % (v(e1), v(e1)))
    a('ds_write_b32 %s, %s offset:%d' % (v(vMw), v(sg), MB))
    a('v_cvt_pk_bf16_f32 %s, %s, %s' % (v(p0), v(e0), v(e0)))
    a('v_cvt_pk_bf16_f32 %s, %s, %s' % (v(p1), v(e1), v(e1)))
    a('v_cvt_pk_bf16_f32 %s, %s, %s' % (v(q0), v(e0), v(e0)))
    a('v_cvt_pk_bf16_f32 %s, %s, %s' % (v(q1), v(e1), v(e1)))
    for sh in (1, 2, 3):
        a('v_mov_b32_dpp %s, %s row_shl:%d row_mask:0x%x bank_mask:0xf' % (v(q0), v(p0), sh, 1 << sh))
        a('v_mov_b32_dpp %s, %s row_shl:%d row_mask:0x%x bank_mask:0xf' % (v(q1), v(p1), sh, 1 << sh))
    a('v_add_f32 %s, %s, %s' % (v(sg + 1), v(e0), v(e1)))

    def ands(i):
        for d in range(4):
            a('v_and_b32_dpp %s, %s, %s row_newbcast:%d row_mask:0xf bank_mask:0xf' % (
                v(vA + 4 * (i & 1) + d), v(q0 + (i >> 2)), v(vDm + d), 4 * (i & 3)))
    ands(0)
    for i in range(8):
        if i + 1 < 8:
            ands(i + 1)
        a('v_mfma_f32_16x16x32_bf16 %s, %s, %s, %s' % (v(vD + 8, 4), v(vA + 4 * (i & 1), 4), v(vV + 4 * i, 4), '0' if i == 0 else v(vD + 8, 4)))
    for ro in (8, 4, 2, 1):
        a('v_add_f32_dpp %s, %s, %s row_ror:%d row_mask:0xf bank_mask:0xf' % (v(sg + 1), v(sg + 1), v(sg + 1), ro))
    setfast()
    a('s_mov_b32 exec_hi, 0')
    a('ds_write_b128 %s, %s' % (v(vO32w), v(vD + 8, 4)))
    a('s_mov_b64 exec, 1')
    lstore('global_store_dwordx4', v(vStP), v(sg, 4), s(sLb, 2), 512 * (k2 & 1))
    a('s_mov_b64 exec, -1')
    a('s_waitcnt lgkmcnt(0)')
    a('s_barrier')
    a('ds_read_b128 %s, %s offset:%d' % (v(T + 8, 4), v(vZero), MB))
    a('ds_read_b32 %s, %s offset:%d' % (v(T + 12), v(vMr), MB))
    a('ds_read_b128 %s, %s' % (v(r, 4), v(vO32r)))
    a('s_waitcnt lgkmcnt(1)')
    a('v_max3_f32 %s, %s, %s, %s' % (v(T + 8), v(T + 8), v(T + 9), v(T + 10)))
    a('v_max_f32 %s, %s, %s' % (v(T + 8), v(T + 8), v(T + 11)))
    a('v_sub_f32 %s, %s, %s' % (v(T + 12), v(T + 12), v(T + 8)))
    a('v_exp_f32 %s, %s' % (v(T + 12), v(T + 12)))
    setfast()
    a('s_waitcnt lgkmcnt(0)')
    a('v_pk_mul_f32 %s, %s, %s op_sel_hi:[1,0]' % (v(r + 2, 2), v(r + 2, 2), v(T + 12, 2)))
    a('v_pk_mul_f32 %s, %s, %s op_sel_hi:[1,0]' % (v(r, 2), v(r, 2), v(T + 12, 2)))
    a('v_permlane32_swap_b32 %s, %s' % (v(r + 1), v(r + 3)))
    a('v_permlane32_swap_b32 %s, %s' % (v(r), v(r + 2)))
    a('v_add_f32 %s, %s, %s' % (v(r + 1), v(r + 1), v(r + 3)))
    a('v_add_f32 %s, %s, %s' % (v(r), v(r), v(r + 2)))
    a('v_permlane16_swap_b32 %s, %s' % (v(r), v(r + 1)))
    a('v_add_f32 %s, %s, %s' % (v(r), v(r), v(r + 1)))
    a('v_bfi_b32 %s, %s, %s, %s' % (v(T), v(vTagM1), s(sTag + k2), v(r)))
    lstore('global_store_dword', v(vPubS), v(T), s(sLb, 2), BUF_A if k2 % 2 == 0 else BUF_B)
    stamp(pre + ' S pub')
    a('; ---- layer %d: combine the 8 key blocks, output projection partials' % layer)
    poll([(r + 8, vStC, sLb, 512 * (k2 & 1))], chk_stats(r + 8, k2))
    mj, mm = T, T + 1
    a('v_mov_b32 %s, %s' % (v(mj), v(r + 8)))
    allred('v_max_f32', mj, T + 2, [0, 1])
    a('v_mov_b32 %s, %s' % (v(mm), v(mj)))
    allred('v_max_f32', mm, T + 2, [3, 4, 5])
    a('v_sub_f32 %s, %s, %s' % (v(r + 8), v(r + 8), v(mm)))
    a('v_sub_f32 %s, %s, %s' % (v(mj), v(mj), v(mm)))
    a('v_exp_f32 %s, %s' % (v(r + 8), v(r + 8)))
    a('v_exp_f32 %s, %s' % (v(mj), v(mj)))
    a('v_mul_f32 %s, %s, %s' % (v(r + 8), v(r + 8), v(r + 9)))
    allred('v_add_f32', r + 8, T + 2, [0, 1, 3, 4, 5])
    a('v_rcp_f32 %s, %s' % (v(r + 8), v(r + 8)))
    a('v_mul_f32 %s, %s, %s' % (v(vF), v(mj), v(r + 8)))
    poll([(r, vCons, sLb, BUF_A if k2 % 2 == 0 else BUF_B)], chk_byte([r], sTag + k2))
    stamp(pre + ' E2 ok')
    a('v_and_b32 %s, %s, %s' % (v(r), s(sMaskHi), v(r)))
    a('v_pk_mul_f32 %s, %s, %s op_sel_hi:[1,0]' % (v(r + 2, 2), v(r + 2, 2), v(vF, 2)))
    a('v_pk_mul_f32 %s, %s, %s op_sel_hi:[1,0]' % (v(r, 2), v(r, 2), v(vF, 2)))
    reduce_j(r, r)
    a('v_cvt_pk_bf16_f32 %s, %s, %s' % (v(r), v(r), v(r)))
    a('ds_write_b16 %s, %s offset:%d' % (v(vQw), v(r), OB))
    if layer == 0:
        issue_ffn()
    a('s_waitcnt lgkmcnt(0)')
    a('s_barrier')
    if layer == 0:
        tr_reads(vWO, vTr, WO, 4, 4096, 512)
    gemv_publish_g(4, vWO, OB, 2 * layer, G_C)
    stamp(pre + ' O pub')
    a('; ---- layer %d: x slice, gate/up partials' % layer)
    x_gather(2 * layer, G_C)
    stamp(pre + ' E3 ok')
    a('ds_write_b16 %s, %s offset:%d' % (v(vXw), v(T), XB))
    a('v_and_b32 %s, 0xffff0000, %s' % (v(vX), v(T)))
    ln_stats_publish(k4)
    a('s_waitcnt lgkmcnt(0)')
    a('s_barrier')
    idle = newlabel('idle')
    if layer == 0:
        tr_reads(vW13, vTr, W1, 2, 4096, 512)
        tr_reads(vW13 + 8, vTr, W3, 2, 4096, 512)
        tr_reads(vW2, vTr, W2, 1, 4096, 512)
        a('v_and_b32 %s, 32, %s' % (v(T + 1), v(vL)))
        a('v_lshlrev_b32 %s, 6, %s' % (v(T + 1), v(T + 1)))
        a('v_sub_u32 %s, %s, %s' % (v(T + 1), v(vTr), v(T + 1)))
        tr_reads(vW2 + 4, T + 1, W2 + 4096, 1, 4096, 512)
    a('s_cmp_eq_u32 %s, 3' % s(sW))
    a('s_cbranch_scc1 %s' % idle)
    proj_phase(vW13, k4, layer)
    stamp(pre + ' G pub')
    a('; ---- layer %d: gather gate/up, activation' % layer)
    poll([(r + 8, vStC, sLb, 512 * (k4 & 1))], chk_stats(r + 8, k4))
    ln_stats_consume(r + 8)
    if layer == 0:
        poll([(r, vCons, sLb, BUF_A), (r + 4, vCons, sLb, BUF_X)], chk_byte([r, r + 4], sTag + k4))
        a('v_and_b32 %s, %s, %s' % (v(r + 4), s(sMaskHi), v(r + 4)))
        reduce_j(r + 4, vCg)
    else:
        poll([(r, vCons, sLb, BUF_B)], chk_byte([r], sTag + k4))
    stamp(pre + ' E4 ok')
    a('v_and_b32 %s, %s, %s' % (v(r), s(sMaskHi), v(r)))
    reduce_j(r, r)
    a('v_fma_f32 %s, -%s, %s, %s' % (v(r), v(vMean), v(vCg), v(r)))
    a('v_mul_f32 %s, %s, %s' % (v(r), v(r), v(vRs)))
    bf16r(r, r)
    a('v_mul_f32 %s, %s, %s' % (v(r + 1), s(sNl2e), v(r)))
    a('v_exp_f32 %s, %s' % (v(r + 1), v(r + 1)))
    a('v_mov_b32_dpp %s, %s row_shl:4 row_mask:0xf bank_mask:0xf' % (v(r + 2), v(r)))
    a('v_add_f32 %s, 1.0, %s' % (v(r + 1), v(r + 1)))
    a('v_rcp_f32 %s, %s' % (v(r + 1), v(r + 1)))
    a('v_mul_f32 %s, %s, %s' % (v(r), v(r), v(r + 1)))
    bf16r(r, r)
    a('v_mul_f32 %s, %s, %s' % (v(r), v(r), v(r + 2)))
    a('v_cvt_pk_bf16_f32 %s, %s, %s' % (v(r), v(r), v(r)))
    a('v_and_b32 %s, %s, %s' % (v(r), v(vHmask), v(r)))
    a('ds_write_b16 %s, %s' % (v(vHw), v(r)))
    a.label(idle)
    a('s_waitcnt lgkmcnt(0)')
    a('s_barrier')
    gemv_publish_g(2, vW2, HB, 2 * layer + 1, G_D)
    stamp(pre + ' D pub')

a('s_cmp_lg_u32 %s, 0' % s(sGam))
a('s_cbranch_scc1 L_fin')
x_gather(3, G_D)
a('s_mov_b32 exec_lo, 0x000f000f')
a('s_mov_b32 exec_hi, 0x000f000f')
a('global_store_short %s, %s, s[22:23]' % (v(vXw), v(T)))
a('s_or_b32 s55, %s, %s' % (s(sJ), s(sW)))
a('s_cmp_lg_u32 s55, 0')
a('s_cbranch_scc1 L_fin')
a('s_add_u32 s55, %s, 16' % s(sE))
a('v_mov_b32 %s, s55' % v(T + 1))
a('s_mov_b64 exec, 1')
a('global_store_dword %s, %s, s[26:27]' % (v(vZero), v(T + 1)))
a.label('L_fin')
if DIAG:
    a('s_mov_b64 exec, -1')
    stamp_regs.append(4)
    stamps_n = len(stamps)
    a('s_memrealtime s[4:5]')
    a('s_waitcnt lgkmcnt(0)')
    a('v_mov_b32 %s, 0' % v(T))
    for i in range(stamps_n):
        a('v_writelane_b32 %s, %s, %d' % (v(T), s(stamp_regs[i]), i))
    a('v_writelane_b32 %s, s4, %d' % (v(T), stamps_n))
    a('s_lshl_b32 s55, s2, 2')
    a('s_add_u32 s55, s55, %s' % s(sW))
    a('s_lshl_b32 s55, s55, 8')
    a('s_add_u32 s55, s55, %d' % WS_DIAG)
    a('v_lshl_add_u32 %s, %s, 2, s55' % (v(T + 1), v(vL)))
    a('global_store_dword %s, %s, s[26:27]' % (v(T + 1), v(T)))
    if DIAG == 3:
        a('s_or_b32 s55, s2, %s' % s(sW))
        a('s_cmp_lg_u32 s55, 0')
        a('s_cbranch_scc1 L_end')
        a('v_subrev_u32 %s, s70, %s' % (v(T), v(T)))
        a('v_lshlrev_b32 %s, 2, %s' % (v(T + 1), v(vL)))
        a('global_store_dword %s, %s, s[24:25]' % (v(T + 1), v(T)))
    stamps.append('end')
a.label('L_end')
a('s_endpgm')
for l1, ins, l2 in slow:
    a.label(l1)
    a.raw('    ' + ins)
    a.raw('    s_branch %s' % l2)
a.label('L_codeend')
a.raw('''.section .rodata,"a"
.p2align 6
.amdhsa_kernel %s_kernel
  .amdhsa_next_free_vgpr %d
  .amdhsa_next_free_sgpr 102
  .amdhsa_accum_offset %d
  .amdhsa_group_segment_fixed_size 0
  .amdhsa_kernarg_size 96
  .amdhsa_user_sgpr_count 2
  .amdhsa_user_sgpr_kernarg_segment_ptr 1
  .amdhsa_system_sgpr_workgroup_id_x 1
  .amdhsa_float_denorm_mode_32 3
.end_amdhsa_kernel''' % (NAME, NVGPR, NVGPR))
sys.stdout.write(a.text())
if DIAG:
    sys.stderr.write('STAMPS ' + '|'.join(stamps) + '\n')
sys.stderr.write('nops inserted: %d\n' % a.nops)
```

```python
import sys, math
from asm import Asm

NAME = 'interleave_layers__sliding_block_cached__glu_gated_swiglu__decode'
OPT = dict(diag=0, fast=1, nt=1, stop=99)
for a_ in sys.argv[1:]:
    k_, v_ = a_.split('=')
    OPT[k_] = int(v_)
DIAG = OPT['diag']
NT = ' nt' if OPT['nt'] else ''

XB, ONES, QB, OB, HB, MB, DUMMY, O32 = 0, 128, 256, 512, 768, 896, 960, 1024
WQ, WO, W1, W3, W2, KI = 4096, 20480, 36864, 45056, 53248, 61440
LDS_BYTES = KI + 32768
WS_G, WS_L, WS_DIAG = 0x20000, 0x40000, 0x200000
BUF_A, BUF_X, BUF_B, STATS = 0, 1024, 2048, 3072
G_C, G_D = 0, 2048

vL, vCons, vPubL, vPubS, vPubG, vStP, vStC, vTagM0, vTagM1 = range(1, 10)
vXw, vQw, vHw, vOpR, vXopR, vO32w, vO32r, vMr, vZero, vMw = range(10, 20)
vDm = 20
vHmask, vX, vCq, vCg, vMean, vRs, vF, vTr = range(24, 32)
vWQ, vK, vV, vWO, vW13, vW2 = 32, 48, 80, 112, 128, 144
T = 152
vA = 176
vD = 192
vP = 208
NVGPR = 232
sW, sJ, sGam, sE, sXcc, sTo, sFast, sC0, sCnt = 28, 29, 30, 32, 35, 36, 37, 33, 34
sLb, sGb = 38, 40
sT0, sT1, sT2 = 42, 44, 46
sCs, sMaskHi, sInv512, sEps, sNl2e = 50, 51, 52, 53, 54
sM0, sM1 = 56, 58
sTag = 60

a = Asm()
slow = []
stamp_regs = list(range(70, 102, 2))
stamps = []


def v(n, cnt=1):
    return 'v%d' % n if cnt == 1 else 'v[%d:%d]' % (n, n + cnt - 1)


def s(n, cnt=1):
    return 's%d' % n if cnt == 1 else 's[%d:%d]' % (n, n + cnt - 1)


def stamp(name):
    if not DIAG:
        return
    if DIAG == 2 and not name.startswith('L1') and name != 'start':
        return
    if DIAG == 1 and name.startswith('L1'):
        return
    if DIAG == 3 and name not in ('start', 'issued', 'wq landed', 'K landed', 'L0 E1 ok', 'L0 S pub', 'L0 E2 ok', 'L0 E3 ok', 'L0 E4 ok', 'L0 D pub', 'L1 E5 ok', 'L1 E1 ok', 'L1 E2 ok', 'L1 E3 ok', 'L1 D pub'):
        return
    if len(stamps) >= len(stamp_regs):
        return
    r = stamp_regs[len(stamps)]
    stamps.append(name)
    a('s_memrealtime %s' % s(r, 2))


def f32(x):
    import struct
    return '0x%08x' % struct.unpack('<I', struct.pack('<f', x))[0]


lbl = [0]


def newlabel(p):
    lbl[0] += 1
    return 'L_%s_%d' % (p, lbl[0])


def lstore(op, addr, data, base, off, first=False):
    ins = '%s %s, %s, %s offset:%d' % (op, addr, data, base, off)
    if first or not OPT['fast']:
        a(ins + ' sc1')
        return
    l1, l2 = newlabel('slow'), newlabel('back')
    a('s_cbranch_scc1 %s' % l1)
    a(ins)
    a.label(l2)
    slow.append((l1, ins + ' sc1', l2))


def setfast():
    if OPT['fast']:
        a('s_cmp_eq_u32 %s, 0' % s(sFast))


def poll(loads, check, pre_wait=None, first_cnt=0):
    top, ent = newlabel('poll'), newlabel('pent')
    if pre_wait is not None:
        for d, vo, b, im in loads:
            a('global_load_dwordx4 %s, %s, %s offset:%d sc1' % (v(d, 4), v(vo), s(b, 2), im))
        pre_wait()
        a('s_waitcnt vmcnt(%d)' % first_cnt)
        a('s_branch %s' % ent)
    a.label(top)
    a('s_sub_u32 %s, %s, 1' % (s(sTo), s(sTo)))
    a('s_cbranch_scc1 L_end')
    for d, vo, b, im in loads:
        a('global_load_dwordx4 %s, %s, %s offset:%d sc1' % (v(d, 4), v(vo), s(b, 2), im))
    a('s_waitcnt vmcnt(0)')
    if pre_wait is not None:
        a.label(ent)
    check()
    a('s_cbranch_vccnz %s' % top)


def chk_byte(regs, tag):
    def f():
        if len(regs) == 1:
            a('v_cmp_ne_u32_sdwa vcc, %s, %s src0_sel:BYTE_0 src1_sel:BYTE_0' % (v(regs[0]), s(tag)))
        else:
            a('v_bitop3_b32 %s, %s, %s, %s bitop3:0x7e' % (v(T + 23), v(regs[0]), v(regs[1]), s(tag)))
            a('v_cmp_ne_u32_sdwa vcc, %s, %s src0_sel:BYTE_0 src1_sel:DWORD' % (v(T + 23), v(vZero)))
    return f


def reduce_j(r, out):
    a('v_permlane32_swap_b32 %s, %s' % (v(r + 1), v(r + 3)))
    a('v_add_f32 %s, %s, %s' % (v(r + 1), v(r + 1), v(r + 3)))
    a('v_permlane32_swap_b32 %s, %s' % (v(r), v(r + 2)))
    a('v_add_f32 %s, %s, %s' % (v(r), v(r), v(r + 2)))
    a('v_permlane16_swap_b32 %s, %s' % (v(r), v(r + 1)))
    a('v_add_f32 %s, %s, %s' % (v(r), v(r), v(r + 1)))
    a('v_add_f32_dpp %s, %s, %s row_ror:8 row_mask:0xf bank_mask:0xf' % (v(out), v(r), v(r)))


def bf16r(dst, src):
    a('v_cvt_pk_bf16_f32 %s, %s, %s' % (v(dst), v(src), v(src)))
    a('v_and_b32 %s, 0xffff0000, %s' % (v(dst), v(dst)))


def allred(op, x, t, bits):
    for b in bits:
        if b == 0:
            a('%s_dpp %s, %s, %s quad_perm:[1,0,3,2] row_mask:0xf bank_mask:0xf' % (op, v(x), v(x), v(x)))
        elif b == 1:
            a('%s_dpp %s, %s, %s quad_perm:[2,3,0,1] row_mask:0xf bank_mask:0xf' % (op, v(x), v(x), v(x)))
        elif b == 3:
            a('%s_dpp %s, %s, %s row_ror:8 row_mask:0xf bank_mask:0xf' % (op, v(x), v(x), v(x)))
        elif b == 4:
            a('v_mov_b32 %s, %s' % (v(t), v(x)))
            a('v_permlane16_swap_b32 %s, %s' % (v(x), v(t)))
            a('%s %s, %s, %s' % (op, v(x), v(x), v(t)))
        elif b == 5:
            a('v_mov_b32 %s, %s' % (v(t), v(x)))
            a('v_permlane32_swap_b32 %s, %s' % (v(x), v(t)))
            a('%s %s, %s, %s' % (op, v(x), v(x), v(t)))


def ln_stats_publish(k, first=False):
    g = T + 4
    a('v_mov_b32 %s, %s' % (v(g), v(vX)))
    a('v_mul_f32 %s, %s, %s' % (v(g + 1), v(vX), v(vX)))
    a('v_mov_b32 %s, %s' % (v(g + 2), s(sTag + k)))
    a('v_mov_b32 %s, %s' % (v(g + 3), s(sXcc)))
    a('v_permlane32_swap_b32 %s, %s' % (v(g), v(g + 1)))
    a('v_add_f32 %s, %s, %s' % (v(g), v(g), v(g + 1)))
    allred('v_add_f32', g, g + 1, [4, 0, 1])
    a('v_mov_b32 %s, %s' % (v(g + 1), v(g)))
    setfast()
    a('v_permlane32_swap_b32 %s, %s' % (v(g), v(g + 1)))
    a('s_mov_b64 exec, 1')
    lstore('global_store_dwordx4', v(vStP), v(g, 4), s(sLb, 2), 512 * (k & 1), first)
    a('s_mov_b64 exec, -1')


def chk_stats(r, k):
    def f():
        a('v_cmp_ne_u32 vcc, %s, %s' % (s(sTag + k), v(r + 2)))
    return f


def ln_stats_consume(r):
    a('v_permlane32_swap_b32 %s, %s' % (v(r), v(r + 1)))
    a('v_add_f32 %s, %s, %s' % (v(r), v(r), v(r + 1)))
    allred('v_add_f32', r, r + 1, [4, 3, 0, 1])
    a('v_mov_b32 %s, %s' % (v(r + 1), v(r)))
    a('v_permlane32_swap_b32 %s, %s' % (v(r), v(r + 1)))
    a('v_mul_f32 %s, %s, %s' % (v(r), s(sInv512), v(r)))
    a('v_mul_f32 %s, %s, %s' % (v(r + 1), s(sInv512), v(r + 1)))
    a('v_fma_f32 %s, -%s, %s, %s' % (v(r + 1), v(r), v(r), v(r + 1)))
    a('v_max_f32 %s, 0, %s' % (v(r + 1), v(r + 1)))
    bf16r(vMean, r)
    bf16r(r + 1, r + 1)
    a('v_add_f32 %s, %s, %s' % (v(r + 1), s(sEps), v(r + 1)))
    bf16r(r + 1, r + 1)
    a('v_sqrt_f32 %s, %s' % (v(r + 1), v(r + 1)))
    bf16r(r + 1, r + 1)
    a('v_rcp_f32 %s, %s' % (v(vRs), v(r + 1)))


def x_gather(gi, imm):
    r = vP
    poll([(r, vCons, sGb, imm), (r + 4, vCons, sGb, imm + 1024)], chk_byte([r, r + 4], sTag + 6 + gi))
    a('v_and_b32 %s, %s, %s' % (v(r), s(sMaskHi), v(r)))
    a('v_and_b32 %s, %s, %s' % (v(r + 4), s(sMaskHi), v(r + 4)))
    a('v_pk_add_f32 %s, %s, %s' % (v(r + 2, 2), v(r + 2, 2), v(r + 6, 2)))
    a('v_pk_add_f32 %s, %s, %s' % (v(r, 2), v(r, 2), v(r + 4, 2)))
    reduce_j(r, r)
    a('v_add_f32_dpp %s, %s, %s row_ror:4 row_mask:0xf bank_mask:0xf' % (v(r), v(r), v(r)))
    bf16r(r, r)
    a('v_add_f32 %s, %s, %s' % (v(r), v(r), v(vX)))
    a('v_cvt_pk_bf16_f32 %s, %s, %s' % (v(T), v(r), v(r)))


def proj_phase(wreg, k, layer, first=False, guard_w3=False):
    rd = vXopR if layer == 0 else vOpR
    a('ds_read_b128 %s, %s offset:%d' % (v(vA, 4), v(rd), XB))
    a('ds_read_b128 %s, %s offset:%d' % (v(vA + 4, 4), v(rd), XB + 64))
    a('s_waitcnt lgkmcnt(0)')
    a('v_mfma_f32_16x16x32_bf16 %s, %s, %s, 0' % (v(vD, 4), v(vA, 4), v(wreg, 4)))
    a('v_mfma_f32_16x16x32_bf16 %s, %s, %s, 0' % (v(vD + 4, 4), v(vA, 4), v(wreg + 8, 4)))
    a('v_mfma_f32_16x16x32_bf16 %s, %s, %s, %s' % (v(vD, 4), v(vA + 4, 4), v(wreg + 4, 4), v(vD, 4)))
    a('v_mfma_f32_16x16x32_bf16 %s, %s, %s, %s' % (v(vD + 4, 4), v(vA + 4, 4), v(wreg + 12, 4), v(vD + 4, 4)))
    setfast()
    if layer == 1:
        a('s_mov_b32 exec_hi, 0')
    a('v_cndmask_b32 %s, %s, %s, %s' % (v(T), v(vD), v(vD + 4), s(sM0, 2)))
    a('v_bfi_b32 %s, %s, %s, %s' % (v(T), v(vTagM0), s(sTag + k), v(T)))
    lstore('global_store_dword', v(vPubL), v(T), s(sLb, 2), BUF_A if k % 2 == 0 else BUF_B, first)
    if layer == 1:
        a('s_mov_b32 exec_hi, -1')


def tr_reads(dst, addr, base, nk, kstride, gstride):
    for kk in range(nk):
        for g in range(2):
            a('ds_read_b64_tr_b16 %s, %s offset:%d' % (v(dst + 4 * kk + 2 * g, 2), v(addr), base + kk * kstride + g * gstride))


def gemv_publish_g(nk, wreg, src, gi, imm):
    for kk in range(nk):
        a('ds_read_b128 %s, %s offset:%d' % (v(vA + 4 * kk, 4), v(vOpR), src + 64 * kk))
    a('s_waitcnt lgkmcnt(0)')
    for kk in range(nk):
        a('v_mfma_f32_16x16x32_bf16 %s, %s, %s, %s' % (v(vD, 4), v(vA + 4 * kk, 4), v(wreg + 4 * kk, 4), '0' if kk == 0 else v(vD, 4)))
    a('s_mov_b64 exec, 0xffff')
    a('v_bfi_b32 %s, %s, %s, %s' % (v(T), v(vTagM0), s(sTag + 6 + gi), v(vD)))
    a('global_store_dword %s, %s, %s offset:%d sc1' % (v(vPubG), v(T), s(sGb, 2), imm))
    a('s_mov_b64 exec, -1')


def finish_if(stage):
    if OPT['stop'] == stage:
        a('s_branch L_fin')


a.raw('''; single persistent launch: 32 groups (head / ffn slice) x 8 members, weights and KV window stay on chip for both layers
; @launch grid=(256,1,1) block=(256,1,1) lds=%d
.amdgcn_target "amdgcn-amd-amdhsa--gfx950"
.text
.globl %s_kernel
.p2align 8
.type %s_kernel,@function
%s_kernel:''' % (LDS_BYTES, NAME, NAME, NAME))
a('s_cmp_ge_u32 s2, 256')
a('s_cbranch_scc1 L_end')
a('s_load_dwordx16 s[4:19], s[0:1], 0')
a('s_load_dwordx8 s[20:27], s[0:1], 64')
stamp('start')
if OPT.get('delay') == 3:
    a('s_memrealtime s[100:101]')
a('s_getpc_b64 %s' % s(sT0, 2))
a.label('L_pc')
a('v_lshlrev_b32 %s, 6, v0' % v(T))
a('v_min_u32 %s, L_codeend-L_pc-64, %s' % (v(T), v(T)))
a('global_load_dword %s, %s, %s' % (v(T + 22), v(T), s(sT0, 2)))
a('v_lshrrev_b32 %s, 6, v0' % v(T))
a('v_and_b32 %s, 63, v0' % v(vL))
a('v_readfirstlane_b32 %s, %s' % (s(sW), v(T)))
a('s_lshr_b32 s3, s2, 3')
a('s_and_b32 %s, s3, 7' % s(sJ))
a('s_lshr_b32 s3, s3, 3')
a('s_and_b32 s31, s2, 7')
a('s_lshl_b32 %s, s31, 2' % s(sGam))
a('s_add_u32 %s, %s, s3' % (s(sGam), s(sGam)))
u16, pos16, u8, pos8, l3, col16 = T + 1, T + 2, T + 3, T + 4, T + 5, T + 6
a('v_lshrrev_b32 %s, 4, %s' % (v(u16), v(vL)))
a('v_and_b32 %s, 15, %s' % (v(pos16), v(vL)))
a('v_and_b32 %s, 3, %s' % (v(l3), v(vL)))
a('v_lshl_add_u32 %s, %s, 2, %s' % (v(col16), v(l3), v(u16)))
a('s_lshl_b32 s48, %s, 5' % s(sW))
a('v_lshl_add_u32 %s, %s, 1, s48' % (v(vXw), v(col16)))
t0, t1, t2, t3 = T + 8, T + 9, T + 10, T + 11
a('v_lshlrev_b32 %s, 1, %s' % (v(t0), v(u16)))
a('v_xor_b32 %s, %s, %s' % (v(t0), v(t0), v(pos16)))
a('v_lshlrev_b32 %s, 4, %s' % (v(t0), v(t0)))
a('v_lshl_add_u32 %s, %s, 13, %s' % (v(t0), v(u16), v(t0)))
a('v_xor_b32 %s, 0x80, %s' % (v(t1), v(t0)))
a('v_add_u32 %s, %d, %s' % (v(t1), 2 * 31744, v(t1)))
k0 = T + 12
a('v_xor_b32 %s, %s, %s' % (v(k0), v(u16), v(pos16)))
a('v_lshlrev_b32 %s, 4, %s' % (v(k0), v(k0)))
a('v_lshl_add_u32 %s, %s, 8, %s' % (v(k0), v(u16), v(k0)))
for i in range(1, 4):
    a('v_xor_b32 %s, %d, %s' % (v(k0 + i), i << 6, v(k0)))
a('v_lshlrev_b32 %s, 4, %s' % (v(t2), v(vL)))
a('s_lshl_b32 s49, %s, 12' % s(sW))
a('v_add_u32 %s, s49, %s' % (v(vCons), v(t2)))
a('s_lshl_b32 s55, %s, 14' % s(sJ))
a('s_lshl_b32 s56, s3, 12')
a('s_add_u32 s55, s55, s56')
a('s_lshl_b32 s56, %s, 10' % s(sW))
a('s_add_u32 s55, s55, s56')
a('s_add_u32 s55, s55, %d' % WS_G)
a('v_lshl_add_u32 %s, %s, 7, s55' % (v(t3), v(vL)))
a('s_lshl_b32 s57, %s, 14' % s(sGam))
a('s_add_u32 s57, s57, %d' % WS_L)
a('s_lshl_b32 s58, %s, 7' % s(sJ))
a('s_add_u32 s58, s58, s57')
a('s_add_u32 s59, s58, s49')
a('s_sub_u32 s59, s59, %d' % (8 * 1024))
a('v_lshl_add_u32 %s, %s, 10, s59' % (v(T + 16), v(vL)))
a('v_cmp_lt_u32 vcc, 7, %s' % v(vL))
a('s_add_u32 s58, s58, %d' % STATS)
a('v_mov_b32 %s, s58' % v(T + 17))
a('v_cndmask_b32 %s, %s, %s, vcc' % (v(t3), v(t3), v(T + 16)))
a('v_cmp_lt_u32 vcc, 10, %s' % v(vL))
a('s_lshl_b32 s48, %s, 7' % s(sJ))
a('v_cndmask_b32 %s, %s, %s, vcc' % (v(t3), v(t3), v(T + 17)))
a('s_lshl_b32 s55, %s, 19' % s(sJ))
a('s_lshl_b32 s56, %s, 17' % s(sW))
a('s_add_u32 s55, s55, s56')
a('s_lshl_b32 s56, %s, 8' % s(sGam))
a('s_add_u32 s55, s55, s56')
a('s_lshl_b32 s56, %s, 20' % s(sGam))
a('s_lshl_b32 s58, %s, 15' % s(sJ))
a('s_add_u32 s56, s56, s58')
a('s_lshl_b32 s58, %s, 13' % s(sW))
a('s_add_u32 s56, s56, s58')
a('s_add_u32 s56, s56, %d' % (3072 * 256))
a('s_add_u32 s59, s49, %d' % WQ)
a('s_mov_b32 m0, s59')
a('s_waitcnt lgkmcnt(0)')
a('s_load_dword %s, s[26:27], 0' % s(sE))
a('s_add_u32 s4, s4, s48')
a('s_addc_u32 s5, s5, 0')
a('global_load_ushort %s, %s, s[4:5]' % (v(vX), v(vXw)))
a('s_add_u32 s10, s10, s55')
a('s_addc_u32 s11, s11, 0')
a('global_load_dword %s, %s, s[26:27]' % (v(T + 21), v(t3)))
a('global_load_lds_dwordx4 %s, s[10:11] offset:0%s' % (v(t0), NT))
a('v_add_u32 %s, 31744, %s' % (v(t0), v(t0)))
a('s_add_u32 s6, s6, s56')
a('s_addc_u32 s7, s7, 0')
a('global_load_lds_dwordx4 %s, s[10:11] offset:1024%s' % (v(t0), NT))
a('global_load_lds_dwordx4 %s, s[10:11] offset:2048%s' % (v(t1), NT))
a('v_add_u32 %s, 31744, %s' % (v(t1), v(t1)))
a('s_add_u32 s58, s58, %d' % KI)
a('global_load_lds_dwordx4 %s, s[10:11] offset:3072%s' % (v(t1), NT))
a('s_mov_b32 m0, s58')
a('s_add_u32 s8, s8, s56')
a('s_addc_u32 s9, s9, 0')
for i in range(4):
    a('global_load_lds_dwordx4 %s, s[6:7] offset:%d%s' % (v(k0 + i), 1024 * i, NT))
a('s_add_u32 s58, s58, 4096')
a('s_mov_b32 m0, s58')
a('s_add_u32 s6, s6, 4096')
a('s_addc_u32 s7, s7, 0')
for i in range(4):
    a('global_load_lds_dwordx4 %s, s[6:7] offset:%d%s' % (v(k0 + i), 1024 * i, NT))
for i in range(4):
    a('global_load_dwordx4 %s, %s, s[8:9] offset:%d%s' % (v(vV + 4 * i, 4), v(t2), 1024 * i, NT))
a('s_add_u32 s8, s8, 4096')
a('s_addc_u32 s9, s9, 0')
for i in range(4):
    a('global_load_dwordx4 %s, %s, s[8:9] offset:%d%s' % (v(vV + 16 + 4 * i, 4), v(t2), 1024 * i, NT))
stamp('issued')
a('s_add_u32 %s, s26, s57' % s(sLb))
a('s_addc_u32 %s, s27, 0' % s(sLb + 1))
a('s_lshl_b32 s55, %s, 14' % s(sJ))
a('s_add_u32 s55, s55, %d' % WS_G)
a('s_add_u32 %s, s26, s55' % s(sGb))
a('s_addc_u32 %s, s27, 0' % s(sGb + 1))
a('s_getreg_b32 %s, hwreg(HW_REG_XCC_ID, 0, 4)' % s(sXcc))
a('s_mov_b32 %s, 0x40000' % s(sTo))
a('s_mov_b32 %s, %s' % (s(sCs), f32(math.log2(math.e) / math.sqrt(128.0))))
a('s_mov_b32 %s, 0xffffff00' % s(sMaskHi))
a('s_mov_b32 %s, %s' % (s(sInv512), f32(1.0 / 512)))
a('s_mov_b32 %s, %s' % (s(sEps), f32(1e-5)))
a('s_mov_b32 %s, %s' % (s(sNl2e), f32(-math.log2(math.e))))
a('s_mov_b32 %s, 0xffff0000' % s(sM0))
a('s_mov_b32 %s, 0xffff0000' % s(sM0 + 1))
a('s_mul_i32 %s, %s, 43' % (s(sC0), s(sGam)))
a('s_add_u32 %s, %s, 43' % (s(sCnt), s(sC0)))
a('s_lshr_b32 %s, %s, 3' % (s(sC0), s(sC0)))
a('s_lshr_b32 %s, %s, 3' % (s(sCnt), s(sCnt)))
a('s_sub_u32 %s, %s, %s' % (s(sCnt), s(sCnt), s(sC0)))
a('s_lshl_b32 %s, %s, 3' % (s(sCnt), s(sCnt)))
a('v_mov_b32 %s, 0' % v(vZero))
a('v_lshrrev_b32 %s, 3, %s' % (v(u8), v(vL)))
a('v_and_b32 %s, 7, %s' % (v(pos8), v(vL)))
a('s_add_u32 s55, s49, s48')
a('v_and_b32 %s, 31, %s' % (v(t0), v(vL)))
a('v_lshl_add_u32 %s, %s, 2, s55' % (v(vPubL), v(t0)))
a('v_lshrrev_b32 %s, 5, %s' % (v(t1), v(vL)))
a('v_lshl_add_u32 %s, %s, 10, %s' % (v(vPubL), v(t1), v(vPubL)))
a('v_lshl_add_u32 %s, %s, 2, %s' % (v(t1), v(pos8), v(u16)))
a('v_lshl_add_u32 %s, %s, 2, s55' % (v(vPubS), v(t1)))
a('s_lshl_b32 s55, %s, 6' % s(sW))
a('v_lshl_add_u32 %s, %s, 1, s55' % (v(vQw), v(t1)))
a('s_lshl_b32 s55, %s, 6' % s(sGam))
a('s_add_u32 s55, s55, s49')
a('v_lshl_add_u32 %s, %s, 2, s55' % (v(vPubG), v(pos16)))
a('s_lshl_b32 s55, %s, 2' % s(sJ))
a('s_add_u32 s55, s55, %s' % s(sW))
a('s_lshl_b32 s55, s55, 4')
a('s_add_u32 s55, s55, %d' % STATS)
a('v_mov_b32 %s, s55' % v(vStP))
a('v_lshlrev_b32 %s, 4, %s' % (v(t1), v(l3)))
a('v_lshl_add_u32 %s, %s, 6, %s' % (v(t1), v(u8), v(t1)))
a('v_add_u32 %s, %d, %s' % (v(vStC), STATS, v(t1)))
a('v_mov_b32 %s, 0xff' % v(t2))
a('v_cmp_eq_u32 vcc, 0, %s' % v(l3))
a('v_lshlrev_b32 %s, 4, %s' % (v(vOpR), v(u16)))
a('v_cndmask_b32 %s, 0, %s, vcc' % (v(vTagM0), v(t2)))
a('v_cmp_eq_u32 vcc, 0, %s' % v(u16))
a('v_and_b32 %s, 8, %s' % (v(t1), v(vL)))
a('v_cndmask_b32 %s, 0, %s, vcc' % (v(vTagM1), v(t2)))
a('v_lshl_add_u32 %s, %s, 4, %s' % (v(vXopR), v(t1), v(vOpR)))
a('v_and_b32 %s, 4, %s' % (v(t1), v(vL)))
a('v_cmp_eq_u32 vcc, 0, %s' % v(t1))
a('v_add_u32 %s, %d, %s' % (v(t1), HB, v(vXw)))
a('v_mov_b32 %s, %d' % (v(t2), DUMMY))
a('v_cndmask_b32 %s, %s, %s, vcc' % (v(vHw), v(t2), v(t1)))
a('v_lshrrev_b32 %s, 1, %s' % (v(t1), v(vXw)))
a('v_cmp_gt_u32 vcc, %s, %s' % (s(sCnt), v(t1)))
a('s_mul_i32 s55, %s, 640' % s(sW))
a('s_add_u32 s55, s55, %d' % O32)
a('v_cndmask_b32 %s, 0, -1, vcc' % v(vHmask))
a('v_lshl_add_u32 %s, %s, 5, %s' % (v(t1), v(pos16), v(vOpR)))
a('v_add_u32 %s, s55, %s' % (v(vO32w), v(t1)))
a('s_lshl_b32 s55, %s, 7' % s(sW))
a('s_add_u32 s55, s55, %d' % O32)
a('v_mul_u32_u24 %s, 640, %s' % (v(t1), v(u16)))
a('v_lshl_add_u32 %s, %s, 4, %s' % (v(t1), v(pos8), v(t1)))
a('v_add_u32 %s, s55, %s' % (v(vO32r), v(t1)))
a('v_lshlrev_b32 %s, 2, %s' % (v(vMr), v(u16)))
a('s_lshl_b32 s55, %s, 2' % s(sW))
a('v_mov_b32 %s, s55' % v(vMw))
a('v_and_b32 %s, 1, %s' % (v(t1), v(vL)))
a('v_cmp_eq_u32 vcc, 1, %s' % v(t1))
a('v_mov_b32 %s, 0xffff' % v(t1))
a('v_mov_b32 %s, 0xffff0000' % v(t2))
a('v_cndmask_b32 %s, %s, %s, vcc' % (v(t1), v(t1), v(t2)))
a('v_lshrrev_b32 %s, 1, %s' % (v(t2), v(pos16)))
for d in range(4):
    a('v_cmp_eq_u32 vcc, %d, %s' % (d, v(t2)))
    a('v_cndmask_b32 %s, 0, %s, vcc' % (v(vDm + d), v(t1)))
a('v_lshlrev_b32 %s, 2, %s' % (v(t0), v(t0)))
a('v_mov_b32 %s, 0x3f803f80' % v(t1))
a('ds_write_b32 %s, %s offset:%d' % (v(t0), v(t1), ONES))
a('v_lshlrev_b32 %s, 2, %s' % (v(t0), v(pos8)))
a('ds_write_b32 %s, %s offset:%d' % (v(t0), v(vZero), HB + 96))
r_, c_ = T + 16, T + 17
trq = T + 18
a('v_lshrrev_b32 %s, 2, %s' % (v(r_), v(pos16)))
a('v_and_b32 %s, 1, %s' % (v(t0), v(u16)))
a('v_lshl_add_u32 %s, %s, 2, %s' % (v(t1), v(t0), v(r_)))
a('v_lshlrev_b32 %s, 1, %s' % (v(t1), v(t1)))
a('s_lshl_b32 s55, %s, 2' % s(sW))
a('v_xor_b32 %s, s55, %s' % (v(t1), v(t1)))
a('v_lshlrev_b32 %s, 4, %s' % (v(t1), v(t1)))
a('v_lshl_add_u32 %s, %s, 3, %s' % (v(t1), v(l3), v(t1)))
a('v_lshl_add_u32 %s, %s, 3, %s' % (v(t2), v(u16), v(r_)))
a('v_lshl_add_u32 %s, %s, 8, %s' % (v(trq), v(t2), v(t1)))
a('v_xor_b32 %s, 32, %s' % (v(trq + 1), v(trq)))
a('v_lshrrev_b32 %s, 1, %s' % (v(t1), v(r_)))
a('v_lshl_add_u32 %s, %s, 1, %s' % (v(t1), v(t0), v(t1)))
a('v_xor_b32 %s, %s, %s' % (v(t1), s(sW), v(t1)))
a('v_lshlrev_b32 %s, 5, %s' % (v(t1), v(t1)))
a('v_lshl_add_u32 %s, %s, 3, %s' % (v(t1), v(l3), v(t1)))
a('v_lshl_add_u32 %s, %s, 7, %s' % (v(vTr), v(t2), v(t1)))
wo0, wo1, f0, f1 = 224, 225, 226, 227
a('v_and_b32 %s, 2, %s' % (v(t0), v(u8)))
a('v_xor_b32 %s, %s, %s' % (v(t0), v(t0), v(pos8)))
a('v_lshlrev_b32 %s, 4, %s' % (v(t1), v(t0)))
a('v_lshl_add_u32 %s, %s, 10, %s' % (v(wo0), v(u8), v(t1)))
a('v_xor_b32 %s, 64, %s' % (v(wo1), v(wo0)))
a('v_add_u32 %s, 7168, %s' % (v(wo1), v(wo1)))
a('v_mul_u32_u24 %s, 2752, %s' % (v(t2), v(u8)))
a('v_min_u32 %s, 5, %s' % (v(t1), v(t0)))
a('v_lshl_add_u32 %s, %s, 4, %s' % (v(f0), v(t1), v(t2)))
a('v_xor_b32 %s, 4, %s' % (v(t0), v(t0)))
a('v_min_u32 %s, 5, %s' % (v(t1), v(t0)))
a('v_lshl_add_u32 %s, %s, 4, %s' % (v(f1), v(t1), v(t2)))
a('v_add_u32 %s, %d, %s' % (v(f1), 8 * 2752 - 1024, v(f1)))
a('s_lshl_b32 s55, %s, 17' % s(sGam))
a('s_lshl_b32 s59, %s, 15' % s(sW))
a('s_add_u32 s55, s55, s59')
a('s_add_u32 s55, s55, s48')
a('s_add_u32 s12, s12, s55')
a('s_addc_u32 s13, s13, 0')
a('s_lshl_b32 s55, %s, 2' % s(sJ))
a('s_add_u32 s55, s55, %s' % s(sW))
a('s_mul_i32 s55, s55, %d' % (16 * 2752))
a('s_lshl_b32 s59, %s, 4' % s(sC0))
a('s_add_u32 s55, s55, s59')
a('s_add_u32 s16, s16, s55')
a('s_addc_u32 s17, s17, 0')
a('s_add_u32 s18, s18, s55')
a('s_addc_u32 s19, s19, 0')
a('s_lshl_b32 s55, %s, 13' % s(sC0))
a('s_lshl_b32 s59, %s, 14' % s(sW))
a('s_add_u32 s55, s55, s59')
a('s_add_u32 s55, s55, s48')
a('s_add_u32 s20, s20, s55')
a('s_addc_u32 s21, s21, 0')
a('s_add_u32 s22, s22, s48')
a('s_addc_u32 s23, s23, 0')
a('s_waitcnt lgkmcnt(0)')
for k in range(10):
    a('s_add_u32 %s, %s, %d' % (s(sTag + k), s(sE), k + 1))


def issue_wo():
    a('s_add_u32 s55, s49, %d' % WO)
    a('s_mov_b32 m0, s55')
    a('v_add_u32 %s, %d, %s' % (v(T + 20), 2 * 7168, v(wo0)))
    a('global_load_lds_dwordx4 %s, s[12:13] offset:0%s' % (v(wo0), NT))
    a('global_load_lds_dwordx4 %s, s[12:13] offset:1024%s' % (v(wo1), NT))
    a('global_load_lds_dwordx4 %s, s[12:13] offset:2048%s' % (v(T + 20), NT))
    a('v_add_u32 %s, %d, %s' % (v(T + 20), 2 * 7168, v(wo1)))
    a('global_load_lds_dwordx4 %s, s[12:13] offset:3072%s' % (v(T + 20), NT))


def issue_ffn():
    a('s_lshl_b32 s59, %s, 11' % s(sW))
    a('s_add_u32 s55, s59, %d' % W1)
    a('s_mov_b32 m0, s55')
    a('s_add_u32 s55, s59, %d' % W3)
    a('global_load_lds_dwordx4 %s, s[16:17] offset:0%s' % (v(f0), NT))
    a('global_load_lds_dwordx4 %s, s[16:17] offset:1024%s' % (v(f1), NT))
    a('s_mov_b32 m0, s55')
    a('s_add_u32 s55, s59, %d' % W2)
    a('global_load_lds_dwordx4 %s, s[18:19] offset:0%s' % (v(f0), NT))
    a('global_load_lds_dwordx4 %s, s[18:19] offset:1024%s' % (v(f1), NT))
    sk = newlabel('now2')
    a('s_cmp_eq_u32 %s, 3' % s(sW))
    a('s_cbranch_scc1 %s' % sk)
    a('s_mov_b32 m0, s55')
    a('s_nop 0')
    a('global_load_lds_dwordx4 %s, s[20:21] offset:0%s' % (v(wo0), NT))
    a('global_load_lds_dwordx4 %s, s[20:21] offset:1024%s' % (v(wo1), NT))
    a.label(sk)


for layer in range(2):
    pre = 'L%d' % layer
    k1, k2, k4 = 3 * layer, 3 * layer + 1, 3 * layer + 2
    a('; ---- layer %d: x slice, query projection partials' % layer)
    if layer == 0:
        a('s_waitcnt vmcnt(21)')
        a('ds_write_b16 %s, %s offset:%d' % (v(vXw), v(vX), XB))
        a('v_lshlrev_b32 %s, 16, %s' % (v(vX), v(vX)))
        ln_stats_publish(k1, first=True)
        a('s_waitcnt vmcnt(17) lgkmcnt(0)')
        stamp('wq landed')
        a('s_barrier')
        tr_reads(vWQ, trq, WQ, 2, 8192, 1024)
        tr_reads(vWQ + 8, trq + 1, WQ, 2, 8192, 1024)
    else:
        x_gather(1, G_D)
        stamp(pre + ' E5 ok')
        a('ds_write_b16 %s, %s offset:%d' % (v(vXw), v(T), XB))
        a('v_and_b32 %s, 0xffff0000, %s' % (v(vX), v(T)))
        ln_stats_publish(k1)
        a('s_waitcnt lgkmcnt(0)')
        a('s_barrier')
    proj_phase(vWQ, k1, layer, first=(layer == 0))
    stamp(pre + ' Q pub')
    a('; ---- layer %d: gather q' % layer)
    r = vP
    if layer == 0:
        a('v_xor_b32 %s, %s, %s' % (v(t0), v(u16), v(pos16)))
        a('v_lshlrev_b32 %s, 4, %s' % (v(t0), v(t0)))
        a('v_lshl_add_u32 %s, %s, 8, %s' % (v(t0), v(pos16), v(t0)))
        a('s_lshl_b32 s55, %s, 13' % s(sW))
        a('s_add_u32 s55, s55, %d' % KI)
        a('v_add_u32 %s, s55, %s' % (v(t0), v(t0)))
        for kk in range(1, 4):
            a('v_xor_b32 %s, %d, %s' % (v(t0 + kk), kk << 6, v(t0)))
        a('s_waitcnt vmcnt(10)')
        stamp('K landed')
        for g in range(2):
            for kk in range(4):
                a('ds_read_b128 %s, %s offset:%d' % (v(vK + 16 * g + 4 * kk, 4), v(t0 + kk), 4096 * g))

        def chk():
            a('v_bitop3_b32 %s, %s, %s, %s bitop3:0x7e' % (v(T + 23), v(r), v(r + 4), s(sTag + k1)))
            a('v_cmp_ne_u32 %s, %s, %s' % (s(sT1, 2), s(sTag + k1), v(r + 10)))
            a('v_cmp_ne_u32_sdwa vcc, %s, %s src0_sel:BYTE_0 src1_sel:DWORD' % (v(T + 23), v(vZero)))
            a('s_or_b64 vcc, vcc, %s' % s(sT1, 2))
        poll([(r + 8, vStC, sLb, 0), (r, vCons, sLb, BUF_A), (r + 4, vCons, sLb, BUF_X)], chk, pre_wait=issue_wo, first_cnt=4)
        a('v_cmp_ne_u32 vcc, %s, %s' % (s(sXcc), v(r + 11)))
        a('v_and_b32 %s, %s, %s' % (v(r + 4), s(sMaskHi), v(r + 4)))
        a('s_cmp_eq_u64 vcc, 0')
        a('s_cselect_b32 %s, 1, 0' % s(sFast))
        reduce_j(r + 4, vCq)
        ln_stats_consume(r + 8)
    else:
        poll([(r + 8, vStC, sLb, 512 * (k1 & 1))], chk_stats(r + 8, k1))
        ln_stats_consume(r + 8)
        poll([(r, vCons, sLb, BUF_B)], chk_byte([r], sTag + k1))
    stamp(pre + ' E1 ok')
    a('v_and_b32 %s, %s, %s' % (v(r), s(sMaskHi), v(r)))
    reduce_j(r, r)
    a('v_fma_f32 %s, -%s, %s, %s' % (v(r), v(vMean), v(vCq), v(r)))
    a('v_mul_f32 %s, %s, %s' % (v(r), v(r), v(vRs)))
    a('v_cvt_pk_bf16_f32 %s, %s, %s' % (v(r), v(r), v(r)))
    a('ds_write_b16 %s, %s offset:%d' % (v(vQw), v(r), QB))
    a('s_waitcnt lgkmcnt(0)')
    a('s_barrier')
    a('; ---- layer %d: attention over this member\'s 128 keys' % layer)
    for kk in range(4):
        a('ds_read_b128 %s, %s offset:%d' % (v(vA + 4 * kk, 4), v(vOpR), QB + 64 * kk))
    a('s_waitcnt lgkmcnt(0)')
    for kk in range(4):
        for g in range(2):
            a('v_mfma_f32_16x16x32_bf16 %s, %s, %s, %s' % (v(vD + 4 * g, 4), v(vA + 4 * kk, 4), v(vK + 16 * g + 4 * kk, 4),
                                                         '0' if kk == 0 else v(vD + 4 * g, 4)))
    sg = T + 4
    mx, e0, e1, p0, p1, q0, q1 = T, T + 1, T + 2, T + 8, T + 9, T + 10, T + 11
    a('v_mov_b32 %s, %s' % (v(sg + 2), s(sTag + k2)))
    a('v_mov_b32 %s, %s' % (v(sg + 3), s(sXcc)))
    a('v_max_f32 %s, %s, %s' % (v(mx), v(vD), v(vD + 4)))
    for ro in (8, 4, 2, 1):
        a('v_max_f32_dpp %s, %s, %s row_ror:%d row_mask:0xf bank_mask:0xf' % (v(mx), v(mx), v(mx), ro))
    a('v_mul_f32 %s, %s, %s' % (v(sg), s(sCs), v(mx)))
    a('v_fma_f32 %s, %s, %s, -%s' % (v(e0), v(vD), s(sCs), v(sg)))
    a('v_fma_f32 %s, %s, %s, -%s' % (v(e1), v(vD + 4), s(sCs), v(sg)))
    a('v_exp_f32 %s, %s' % (v(e0), v(e0)))
    a('v_exp_f32 %s, %s' % (v(e1), v(e1)))
    a('ds_write_b32 %s, %s offset:%d' % (v(vMw), v(sg), MB))
    a('v_cvt_pk_bf16_f32 %s, %s, %s' % (v(p0), v(e0), v(e0)))
    a('v_cvt_pk_bf16_f32 %s, %s, %s' % (v(p1), v(e1), v(e1)))
    a('v_cvt_pk_bf16_f32 %s, %s, %s' % (v(q0), v(e0), v(e0)))
    a('v_cvt_pk_bf16_f32 %s, %s, %s' % (v(q1), v(e1), v(e1)))
    for sh in (1, 2, 3):
        a('v_mov_b32_dpp %s, %s row_shl:%d row_mask:0x%x bank_mask:0xf' % (v(q0), v(p0), sh, 1 << sh))
        a('v_mov_b32_dpp %s, %s row_shl:%d row_mask:0x%x bank_mask:0xf' % (v(q1), v(p1), sh, 1 << sh))
    a('v_add_f32 %s, %s, %s' % (v(sg + 1), v(e0), v(e1)))

    def ands(i):
        for d in range(4):
            a('v_and_b32_dpp %s, %s, %s row_newbcast:%d row_mask:0xf bank_mask:0xf' % (
                v(vA + 4 * (i & 1) + d), v(q0 + (i >> 2)), v(vDm + d), 4 * (i & 3)))
    ands(0)
    for i in range(8):
        if i + 1 < 8:
            ands(i + 1)
        a('v_mfma_f32_16x16x32_bf16 %s, %s, %s, %s' % (v(vD + 8, 4), v(vA + 4 * (i & 1), 4), v(vV + 4 * i, 4), '0' if i == 0 else v(vD + 8, 4)))
    for ro in (8, 4, 2, 1):
        a('v_add_f32_dpp %s, %s, %s row_ror:%d row_mask:0xf bank_mask:0xf' % (v(sg + 1), v(sg + 1), v(sg + 1), ro))
    setfast()
    a('s_mov_b32 exec_hi, 0')
    a('ds_write_b128 %s, %s' % (v(vO32w), v(vD + 8, 4)))
    a('s_mov_b64 exec, 1')
    lstore('global_store_dwordx4', v(vStP), v(sg, 4), s(sLb, 2), 512 * (k2 & 1))
    a('s_mov_b64 exec, -1')
    a('s_waitcnt lgkmcnt(0)')
    a('s_barrier')
    a('ds_read_b128 %s, %s offset:%d' % (v(T + 8, 4), v(vZero), MB))
    a('ds_read_b32 %s, %s offset:%d' % (v(T + 12), v(vMr), MB))
    a('ds_read_b128 %s, %s' % (v(r, 4), v(vO32r)))
    a('s_waitcnt lgkmcnt(1)')
    a('v_max3_f32 %s, %s, %s, %s' % (v(T + 8), v(T + 8), v(T + 9), v(T + 10)))
    a('v_max_f32 %s, %s, %s' % (v(T + 8), v(T + 8), v(T + 11)))
    a('v_sub_f32 %s, %s, %s' % (v(T + 12), v(T + 12), v(T + 8)))
    a('v_exp_f32 %s, %s' % (v(T + 12), v(T + 12)))
    setfast()
    a('s_waitcnt lgkmcnt(0)')
    a('v_pk_mul_f32 %s, %s, %s op_sel_hi:[1,0]' % (v(r + 2, 2), v(r + 2, 2), v(T + 12, 2)))
    a('v_pk_mul_f32 %s, %s, %s op_sel_hi:[1,0]' % (v(r, 2), v(r, 2), v(T + 12, 2)))
    a('v_permlane32_swap_b32 %s, %s' % (v(r + 1), v(r + 3)))
    a('v_permlane32_swap_b32 %s, %s' % (v(r), v(r + 2)))
    a('v_add_f32 %s, %s, %s' % (v(r + 1), v(r + 1), v(r + 3)))
    a('v_add_f32 %s, %s, %s' % (v(r), v(r), v(r + 2)))
    a('v_permlane16_swap_b32 %s, %s' % (v(r), v(r + 1)))
    a('v_add_f32 %s, %s, %s' % (v(r), v(r), v(r + 1)))
    a('v_bfi_b32 %s, %s, %s, %s' % (v(T), v(vTagM1), s(sTag + k2), v(r)))
    lstore('global_store_dword', v(vPubS), v(T), s(sLb, 2), BUF_A if k2 % 2 == 0 else BUF_B)
    stamp(pre + ' S pub')
    a('; ---- layer %d: combine the 8 key blocks, output projection partials' % layer)
    poll([(r + 8, vStC, sLb, 512 * (k2 & 1))], chk_stats(r + 8, k2))
    mj, mm = T, T + 1
    a('v_mov_b32 %s, %s' % (v(mj), v(r + 8)))
    allred('v_max_f32', mj, T + 2, [0, 1])
    a('v_mov_b32 %s, %s' % (v(mm), v(mj)))
    allred('v_max_f32', mm, T + 2, [3, 4, 5])
    a('v_sub_f32 %s, %s, %s' % (v(r + 8), v(r + 8), v(mm)))
    a('v_sub_f32 %s, %s, %s' % (v(mj), v(mj), v(mm)))
    a('v_exp_f32 %s, %s' % (v(r + 8), v(r + 8)))
    a('v_exp_f32 %s, %s' % (v(mj), v(mj)))
    a('v_mul_f32 %s, %s, %s' % (v(r + 8), v(r + 8), v(r + 9)))
    allred('v_add_f32', r + 8, T + 2, [0, 1, 3, 4, 5])
    a('v_rcp_f32 %s, %s' % (v(r + 8), v(r + 8)))
    a('v_mul_f32 %s, %s, %s' % (v(vF), v(mj), v(r + 8)))
    poll([(r, vCons, sLb, BUF_A if k2 % 2 == 0 else BUF_B)], chk_byte([r], sTag + k2))
    stamp(pre + ' E2 ok')
    a('v_and_b32 %s, %s, %s' % (v(r), s(sMaskHi), v(r)))
    a('v_pk_mul_f32 %s, %s, %s op_sel_hi:[1,0]' % (v(r + 2, 2), v(r + 2, 2), v(vF, 2)))
    a('v_pk_mul_f32 %s, %s, %s op_sel_hi:[1,0]' % (v(r, 2), v(r, 2), v(vF, 2)))
    reduce_j(r, r)
    a('v_cvt_pk_bf16_f32 %s, %s, %s' % (v(r), v(r), v(r)))
    a('ds_write_b16 %s, %s offset:%d' % (v(vQw), v(r), OB))
    if layer == 0:
        issue_ffn()
    a('s_waitcnt lgkmcnt(0)')
    a('s_barrier')
    if layer == 0:
        tr_reads(vWO, vTr, WO, 4, 4096, 512)
    gemv_publish_g(4, vWO, OB, 2 * layer, G_C)
    stamp(pre + ' O pub')
    a('; ---- layer %d: x slice, gate/up partials' % layer)
    x_gather(2 * layer, G_C)
    stamp(pre + ' E3 ok')
    a('ds_write_b16 %s, %s offset:%d' % (v(vXw), v(T), XB))
    a('v_and_b32 %s, 0xffff0000, %s' % (v(vX), v(T)))
    ln_stats_publish(k4)
    a('s_waitcnt lgkmcnt(0)')
    a('s_barrier')
    idle = newlabel('idle')
    if layer == 0:
        tr_reads(vW13, vTr, W1, 2, 4096, 512)
        tr_reads(vW13 + 8, vTr, W3, 2, 4096, 512)
        tr_reads(vW2, vTr, W2, 1, 4096, 512)
        a('v_and_b32 %s, 32, %s' % (v(T + 1), v(vL)))
        a('v_lshlrev_b32 %s, 6, %s' % (v(T + 1), v(T + 1)))
        a('v_sub_u32 %s, %s, %s' % (v(T + 1), v(vTr), v(T + 1)))
        tr_reads(vW2 + 4, T + 1, W2 + 4096, 1, 4096, 512)
    a('s_cmp_eq_u32 %s, 3' % s(sW))
    a('s_cbranch_scc1 %s' % idle)
    proj_phase(vW13, k4, layer)
    stamp(pre + ' G pub')
    a('; ---- layer %d: gather gate/up, activation' % layer)
    poll([(r + 8, vStC, sLb, 512 * (k4 & 1))], chk_stats(r + 8, k4))
    ln_stats_consume(r + 8)
    if layer == 0:
        poll([(r, vCons, sLb, BUF_A), (r + 4, vCons, sLb, BUF_X)], chk_byte([r, r + 4], sTag + k4))
        a('v_and_b32 %s, %s, %s' % (v(r + 4), s(sMaskHi), v(r + 4)))
        reduce_j(r + 4, vCg)
    else:
        poll([(r, vCons, sLb, BUF_B)], chk_byte([r], sTag + k4))
    stamp(pre + ' E4 ok')
    a('v_and_b32 %s, %s, %s' % (v(r), s(sMaskHi), v(r)))
    reduce_j(r, r)
    a('v_fma_f32 %s, -%s, %s, %s' % (v(r), v(vMean), v(vCg), v(r)))
    a('v_mul_f32 %s, %s, %s' % (v(r), v(r), v(vRs)))
    bf16r(r, r)
    a('v_mul_f32 %s, %s, %s' % (v(r + 1), s(sNl2e), v(r)))
    a('v_exp_f32 %s, %s' % (v(r + 1), v(r + 1)))
    a('v_mov_b32_dpp %s, %s row_shl:4 row_mask:0xf bank_mask:0xf' % (v(r + 2), v(r)))
    a('v_add_f32 %s, 1.0, %s' % (v(r + 1), v(r + 1)))
    a('v_rcp_f32 %s, %s' % (v(r + 1), v(r + 1)))
    a('v_mul_f32 %s, %s, %s' % (v(r), v(r), v(r + 1)))
    bf16r(r, r)
    a('v_mul_f32 %s, %s, %s' % (v(r), v(r), v(r + 2)))
    a('v_cvt_pk_bf16_f32 %s, %s, %s' % (v(r), v(r), v(r)))
    a('v_and_b32 %s, %s, %s' % (v(r), v(vHmask), v(r)))
    a('ds_write_b16 %s, %s' % (v(vHw), v(r)))
    a.label(idle)
    a('s_waitcnt lgkmcnt(0)')
    a('s_barrier')
    gemv_publish_g(2, vW2, HB, 2 * layer + 1, G_D)
    stamp(pre + ' D pub')

a('; ---- final sum (group 0 only)')
a('s_cmp_lg_u32 %s, 0' % s(sGam))
a('s_cbranch_scc1 L_fin')
x_gather(3, G_D)
a('s_mov_b32 exec_lo, 0x000f000f')
a('s_mov_b32 exec_hi, 0x000f000f')
a('global_store_short %s, %s, s[22:23]' % (v(vXw), v(T)))
a('s_or_b32 s55, %s, %s' % (s(sJ), s(sW)))
a('s_cmp_lg_u32 s55, 0')
a('s_cbranch_scc1 L_fin')
a('s_add_u32 s55, %s, 16' % s(sE))
a('v_mov_b32 %s, s55' % v(T + 1))
a('s_mov_b64 exec, 1')
a('global_store_dword %s, %s, s[26:27]' % (v(vZero), v(T + 1)))
a.label('L_fin')
if OPT.get('delay'):
    ins = 's_memtime' if OPT['delay'] == 1 else 's_memrealtime'
    if 'only' in OPT:
        a('s_cmp_lg_u32 s2, %d' % OPT['only'])
        a('s_cbranch_scc1 L_end')
    a('%s s[4:5]' % ins)
    a('s_waitcnt lgkmcnt(0)')
    if OPT['delay'] == 3:
        a('s_mov_b32 s4, s100')
    a.label('L_dly')
    a('%s s[6:7]' % ins)
    a('s_waitcnt lgkmcnt(0)')
    a('s_sub_u32 s8, s6, s4')
    a('s_cmp_lt_u32 s8, %d' % {1: 24000, 2: 1000, 3: OPT.get('until', 3000)}[OPT['delay']])
    a('s_cbranch_scc1 L_dly')
if DIAG:
    a('s_mov_b64 exec, -1')
    stamp_regs.append(4)
    stamps_n = len(stamps)
    a('s_memrealtime s[4:5]')
    a('s_waitcnt lgkmcnt(0)')
    a('v_mov_b32 %s, 0' % v(T))
    for i in range(stamps_n):
        a('v_writelane_b32 %s, %s, %d' % (v(T), s(stamp_regs[i]), i))
    a('v_writelane_b32 %s, s4, %d' % (v(T), stamps_n))
    a('s_lshl_b32 s55, s2, 2')
    a('s_add_u32 s55, s55, %s' % s(sW))
    a('s_lshl_b32 s55, s55, 8')
    a('s_add_u32 s55, s55, %d' % WS_DIAG)
    a('v_lshl_add_u32 %s, %s, 2, s55' % (v(T + 1), v(vL)))
    a('global_store_dword %s, %s, s[26:27]' % (v(T + 1), v(T)))
    if DIAG == 3:
        a('s_or_b32 s55, s2, %s' % s(sW))
        a('s_cmp_lg_u32 s55, 0')
        a('s_cbranch_scc1 L_end')
        a('v_subrev_u32 %s, s70, %s' % (v(T), v(T)))
        a('v_lshlrev_b32 %s, 2, %s' % (v(T + 1), v(vL)))
        a('global_store_dword %s, %s, s[24:25]' % (v(T + 1), v(T)))
    stamps.append('end')
a.label('L_end')
a('s_endpgm')
for l1, ins, l2 in slow:
    a.label(l1)
    a.raw('    ' + ins)
    a.raw('    s_branch %s' % l2)
a.label('L_codeend')
a.raw('''.section .rodata,"a"
.p2align 6
.amdhsa_kernel %s_kernel
  .amdhsa_next_free_vgpr %d
  .amdhsa_next_free_sgpr 102
  .amdhsa_accum_offset %d
  .amdhsa_group_segment_fixed_size 0
  .amdhsa_kernarg_size 96
  .amdhsa_user_sgpr_count 2
  .amdhsa_user_sgpr_kernarg_segment_ptr 1
  .amdhsa_system_sgpr_workgroup_id_x 1
  .amdhsa_float_denorm_mode_32 3
.end_amdhsa_kernel''' % (NAME, NVGPR, NVGPR))
sys.stdout.write(a.text())
if DIAG:
    sys.stderr.write('STAMPS ' + '|'.join(stamps) + '\n')
sys.stderr.write('nops inserted: %d\n' % a.nops)
```

```python
import sys, math
from asm import Asm

NAME = 'interleave_layers__sliding_block_cached__glu_gated_swiglu__decode'
OPT = dict(diag=0, fast=1, nt=1, stop=99)
for a_ in sys.argv[1:]:
    k_, v_ = a_.split('=')
    OPT[k_] = int(v_)
DIAG = OPT['diag']
NT = ' nt' if OPT['nt'] else ''

XB, ONES, QB, OB, HB, MB, DUMMY, O32 = 0, 128, 256, 512, 768, 896, 960, 1024
WQ, WO, W1, W3, W2, KI = 4096, 20480, 36864, 45056, 53248, 61440
LDS_BYTES = KI + 32768
WS_G, WS_L, WS_DIAG = 0x20000, 0x40000, 0x200000
BUF_A, BUF_X, BUF_B, STATS = 0, 1024, 2048, 3072
G_C, G_D = 0, 2048

vL, vCons, vPubL, vPubS, vPubG, vStP, vStC, vTagM0, vTagM1 = range(1, 10)
vXw, vQw, vHw, vOpR, vXopR, vO32w, vO32r, vMr, vZero, vMw = range(10, 20)
vDm = 20
vHmask, vX, vCq, vCg, vMean, vRs, vF, vTr = range(24, 32)
vWQ, vK, vV, vWO, vW13, vW2 = 32, 48, 80, 112, 128, 144
T = 152
vA = 176
vD = 192
vP = 208
NVGPR = 232
sW, sJ, sGam, sE, sXcc, sTo, sFast, sC0, sCnt = 28, 29, 30, 32, 35, 36, 37, 33, 34
sLb, sGb = 38, 40
sT0, sT1, sT2 = 42, 44, 46
sCs, sMaskHi, sInv512, sEps, sNl2e = 50, 51, 52, 53, 54
sM0, sM1 = 56, 58
sTag = 60

a = Asm()
slow = []
stamp_regs = list(range(70, 102, 2))
stamps = []


def v(n, cnt=1):
    return 'v%d' % n if cnt == 1 else 'v[%d:%d]' % (n, n + cnt - 1)


def s(n, cnt=1):
    return 's%d' % n if cnt == 1 else 's[%d:%d]' % (n, n + cnt - 1)


nstamp = [0]


def stamp(name):
    nstamp[0] += 1
    if OPT.get('delay') == 3 and OPT.get('at', 1) == nstamp[0]:
        a('s_memrealtime s[100:101]')
        sys.stderr.write('delay anchored at ' + name + '\n')
    if not DIAG:
        return
    if DIAG == 2 and not name.startswith('L1') and name != 'start':
        return
    if DIAG == 1 and name.startswith('L1'):
        return
    if DIAG == 3 and name not in ('start', 'issued', 'wq landed', 'K landed', 'L0 E1 ok', 'L0 S pub', 'L0 E2 ok', 'L0 E3 ok', 'L0 E4 ok', 'L0 D pub', 'L1 E5 ok', 'L1 E1 ok', 'L1 E2 ok', 'L1 E3 ok', 'L1 D pub'):
        return
    if len(stamps) >= len(stamp_regs):
        return
    r = stamp_regs[len(stamps)]
    stamps.append(name)
    a('s_memrealtime %s' % s(r, 2))


def f32(x):
    import struct
    return '0x%08x' % struct.unpack('<I', struct.pack('<f', x))[0]


lbl = [0]


def newlabel(p):
    lbl[0] += 1
    return 'L_%s_%d' % (p, lbl[0])


def lstore(op, addr, data, base, off, first=False):
    ins = '%s %s, %s, %s offset:%d' % (op, addr, data, base, off)
    if first or not OPT['fast']:
        a(ins + ' sc1')
        return
    l1, l2 = newlabel('slow'), newlabel('back')
    a('s_cbranch_scc1 %s' % l1)
    a(ins)
    a.label(l2)
    slow.append((l1, ins + ' sc1', l2))


def setfast():
    if OPT['fast']:
        a('s_cmp_eq_u32 %s, 0' % s(sFast))


def poll(loads, check, pre_wait=None, first_cnt=0):
    top, ent = newlabel('poll'), newlabel('pent')
    if pre_wait is not None:
        for d, vo, b, im in loads:
            a('global_load_dwordx4 %s, %s, %s offset:%d sc1' % (v(d, 4), v(vo), s(b, 2), im))
        pre_wait()
        a('s_waitcnt vmcnt(%d)' % first_cnt)
        a('s_branch %s' % ent)
    a.label(top)
    a('s_sub_u32 %s, %s, 1' % (s(sTo), s(sTo)))
    a('s_cbranch_scc1 L_end')
    for d, vo, b, im in loads:
        a('global_load_dwordx4 %s, %s, %s offset:%d sc1' % (v(d, 4), v(vo), s(b, 2), im))
    a('s_waitcnt vmcnt(0)')
    if pre_wait is not None:
        a.label(ent)
    check()
    a('s_cbranch_vccnz %s' % top)


def chk_byte(regs, tag):
    def f():
        if len(regs) == 1:
            a('v_cmp_ne_u32_sdwa vcc, %s, %s src0_sel:BYTE_0 src1_sel:BYTE_0' % (v(regs[0]), s(tag)))
        else:
            a('v_bitop3_b32 %s, %s, %s, %s bitop3:0x7e' % (v(T + 23), v(regs[0]), v(regs[1]), s(tag)))
            a('v_cmp_ne_u32_sdwa vcc, %s, %s src0_sel:BYTE_0 src1_sel:DWORD' % (v(T + 23), v(vZero)))
    return f


def reduce_j(r, out):
    a('v_permlane32_swap_b32 %s, %s' % (v(r + 1), v(r + 3)))
    a('v_add_f32 %s, %s, %s' % (v(r + 1), v(r + 1), v(r + 3)))
    a('v_permlane32_swap_b32 %s, %s' % (v(r), v(r + 2)))
    a('v_add_f32 %s, %s, %s' % (v(r), v(r), v(r + 2)))
    a('v_permlane16_swap_b32 %s, %s' % (v(r), v(r + 1)))
    a('v_add_f32 %s, %s, %s' % (v(r), v(r), v(r + 1)))
    a('v_add_f32_dpp %s, %s, %s row_ror:8 row_mask:0xf bank_mask:0xf' % (v(out), v(r), v(r)))


def bf16r(dst, src):
    a('v_cvt_pk_bf16_f32 %s, %s, %s' % (v(dst), v(src), v(src)))
    a('v_and_b32 %s, 0xffff0000, %s' % (v(dst), v(dst)))


def allred(op, x, t, bits):
    for b in bits:
        if b == 0:
            a('%s_dpp %s, %s, %s quad_perm:[1,0,3,2] row_mask:0xf bank_mask:0xf' % (op, v(x), v(x), v(x)))
        elif b == 1:
            a('%s_dpp %s, %s, %s quad_perm:[2,3,0,1] row_mask:0xf bank_mask:0xf' % (op, v(x), v(x), v(x)))
        elif b == 3:
            a('%s_dpp %s, %s, %s row_ror:8 row_mask:0xf bank_mask:0xf' % (op, v(x), v(x), v(x)))
        elif b == 4:
            a('v_mov_b32 %s, %s' % (v(t), v(x)))
            a('v_permlane16_swap_b32 %s, %s' % (v(x), v(t)))
            a('%s %s, %s, %s' % (op, v(x), v(x), v(t)))
        elif b == 5:
            a('v_mov_b32 %s, %s' % (v(t), v(x)))
            a('v_permlane32_swap_b32 %s, %s' % (v(x), v(t)))
            a('%s %s, %s, %s' % (op, v(x), v(x), v(t)))


def ln_stats_publish(k, first=False):
    g = T + 4
    a('v_mov_b32 %s, %s' % (v(g), v(vX)))
    a('v_mul_f32 %s, %s, %s' % (v(g + 1), v(vX), v(vX)))
    a('v_mov_b32 %s, %s' % (v(g + 2), s(sTag + k)))
    a('v_mov_b32 %s, %s' % (v(g + 3), s(sXcc)))
    a('v_permlane32_swap_b32 %s, %s' % (v(g), v(g + 1)))
    a('v_add_f32 %s, %s, %s' % (v(g), v(g), v(g + 1)))
    allred('v_add_f32', g, g + 1, [4, 0, 1])
    a('v_mov_b32 %s, %s' % (v(g + 1), v(g)))
    setfast()
    a('v_permlane32_swap_b32 %s, %s' % (v(g), v(g + 1)))
    a('s_mov_b64 exec, 1')
    lstore('global_store_dwordx4', v(vStP), v(g, 4), s(sLb, 2), 512 * (k & 1), first)
    a('s_mov_b64 exec, -1')


def chk_stats(r, k):
    def f():
        a('v_cmp_ne_u32 vcc, %s, %s' % (s(sTag + k), v(r + 2)))
    return f


def ln_stats_consume(r):
    a('v_permlane32_swap_b32 %s, %s' % (v(r), v(r + 1)))
    a('v_add_f32 %s, %s, %s' % (v(r), v(r), v(r + 1)))
    allred('v_add_f32', r, r + 1, [4, 3, 0, 1])
    a('v_mov_b32 %s, %s' % (v(r + 1), v(r)))
    a('v_permlane32_swap_b32 %s, %s' % (v(r), v(r + 1)))
    a('v_mul_f32 %s, %s, %s' % (v(r), s(sInv512), v(r)))
    a('v_mul_f32 %s, %s, %s' % (v(r + 1), s(sInv512), v(r + 1)))
    a('v_fma_f32 %s, -%s, %s, %s' % (v(r + 1), v(r), v(r), v(r + 1)))
    a('v_max_f32 %s, 0, %s' % (v(r + 1), v(r + 1)))
    bf16r(vMean, r)
    bf16r(r + 1, r + 1)
    a('v_add_f32 %s, %s, %s' % (v(r + 1), s(sEps), v(r + 1)))
    bf16r(r + 1, r + 1)
    a('v_sqrt_f32 %s, %s' % (v(r + 1), v(r + 1)))
    bf16r(r + 1, r + 1)
    a('v_rcp_f32 %s, %s' % (v(vRs), v(r + 1)))


def x_gather(gi, imm):
    r = vP
    poll([(r, vCons, sGb, imm), (r + 4, vCons, sGb, imm + 1024)], chk_byte([r, r + 4], sTag + 6 + gi))
    a('v_and_b32 %s, %s, %s' % (v(r), s(sMaskHi), v(r)))
    a('v_and_b32 %s, %s, %s' % (v(r + 4), s(sMaskHi), v(r + 4)))
    a('v_pk_add_f32 %s, %s, %s' % (v(r + 2, 2), v(r + 2, 2), v(r + 6, 2)))
    a('v_pk_add_f32 %s, %s, %s' % (v(r, 2), v(r, 2), v(r + 4, 2)))
    reduce_j(r, r)
    a('v_add_f32_dpp %s, %s, %s row_ror:4 row_mask:0xf bank_mask:0xf' % (v(r), v(r), v(r)))
    bf16r(r, r)
    a('v_add_f32 %s, %s, %s' % (v(r), v(r), v(vX)))
    a('v_cvt_pk_bf16_f32 %s, %s, %s' % (v(T), v(r), v(r)))


def proj_phase(wreg, k, layer, first=False, guard_w3=False):
    rd = vXopR if layer == 0 else vOpR
    a('ds_read_b128 %s, %s offset:%d' % (v(vA, 4), v(rd), XB))
    a('ds_read_b128 %s, %s offset:%d' % (v(vA + 4, 4), v(rd), XB + 64))
    a('s_waitcnt lgkmcnt(0)')
    a('v_mfma_f32_16x16x32_bf16 %s, %s, %s, 0' % (v(vD, 4), v(vA, 4), v(wreg, 4)))
    a('v_mfma_f32_16x16x32_bf16 %s, %s, %s, 0' % (v(vD + 4, 4), v(vA, 4), v(wreg + 8, 4)))
    a('v_mfma_f32_16x16x32_bf16 %s, %s, %s, %s' % (v(vD, 4), v(vA + 4, 4), v(wreg + 4, 4), v(vD, 4)))
    a('v_mfma_f32_16x16x32_bf16 %s, %s, %s, %s' % (v(vD + 4, 4), v(vA + 4, 4), v(wreg + 12, 4), v(vD + 4, 4)))
    setfast()
    if layer == 1:
        a('s_mov_b32 exec_hi, 0')
    a('v_cndmask_b32 %s, %s, %s, %s' % (v(T), v(vD), v(vD + 4), s(sM0, 2)))
    a('v_bfi_b32 %s, %s, %s, %s' % (v(T), v(vTagM0), s(sTag + k), v(T)))
    lstore('global_store_dword', v(vPubL), v(T), s(sLb, 2), BUF_A if k % 2 == 0 else BUF_B, first)
    if layer == 1:
        a('s_mov_b32 exec_hi, -1')


def tr_reads(dst, addr, base, nk, kstride, gstride):
    for kk in range(nk):
        for g in range(2):
            a('ds_read_b64_tr_b16 %s, %s offset:%d' % (v(dst + 4 * kk + 2 * g, 2), v(addr), base + kk * kstride + g * gstride))


def gemv_publish_g(nk, wreg, src, gi, imm):
    for kk in range(nk):
        a('ds_read_b128 %s, %s offset:%d' % (v(vA + 4 * kk, 4), v(vOpR), src + 64 * kk))
    a('s_waitcnt lgkmcnt(0)')
    for kk in range(nk):
        a('v_mfma_f32_16x16x32_bf16 %s, %s, %s, %s' % (v(vD, 4), v(vA + 4 * kk, 4), v(wreg + 4 * kk, 4), '0' if kk == 0 else v(vD, 4)))
    a('s_mov_b64 exec, 0xffff')
    a('v_bfi_b32 %s, %s, %s, %s' % (v(T), v(vTagM0), s(sTag + 6 + gi), v(vD)))
    a('global_store_dword %s, %s, %s offset:%d sc1' % (v(vPubG), v(T), s(sGb, 2), imm))
    a('s_mov_b64 exec, -1')


def finish_if(stage):
    if OPT['stop'] == stage:
        a('s_branch L_fin')


a.raw('''; single persistent launch: 32 groups (head / ffn slice) x 8 members, weights and KV window stay on chip for both layers
; @launch grid=(256,1,1) block=(256,1,1) lds=%d
.amdgcn_target "amdgcn-amd-amdhsa--gfx950"
.text
.globl %s_kernel
.p2align 8
.type %s_kernel,@function
%s_kernel:''' % (LDS_BYTES, NAME, NAME, NAME))
a('s_cmp_ge_u32 s2, 256')
a('s_cbranch_scc1 L_end')
a('s_load_dwordx16 s[4:19], s[0:1], 0')
a('s_load_dwordx8 s[20:27], s[0:1], 64')
stamp('start')
a('s_getpc_b64 %s' % s(sT0, 2))
a.label('L_pc')
a('v_lshlrev_b32 %s, 6, v0' % v(T))
a('v_min_u32 %s, L_codeend-L_pc-64, %s' % (v(T), v(T)))
a('global_load_dword %s, %s, %s' % (v(T + 22), v(T), s(sT0, 2)))
a('v_lshrrev_b32 %s, 6, v0' % v(T))
a('v_and_b32 %s, 63, v0' % v(vL))
a('v_readfirstlane_b32 %s, %s' % (s(sW), v(T)))
a('s_lshr_b32 s3, s2, 3')
a('s_and_b32 %s, s3, 7' % s(sJ))
a('s_lshr_b32 s3, s3, 3')
a('s_and_b32 s31, s2, 7')
a('s_lshl_b32 %s, s31, 2' % s(sGam))
a('s_add_u32 %s, %s, s3' % (s(sGam), s(sGam)))
u16, pos16, u8, pos8, l3, col16 = T + 1, T + 2, T + 3, T + 4, T + 5, T + 6
a('v_lshrrev_b32 %s, 4, %s' % (v(u16), v(vL)))
a('v_and_b32 %s, 15, %s' % (v(pos16), v(vL)))
a('v_and_b32 %s, 3, %s' % (v(l3), v(vL)))
a('v_lshl_add_u32 %s, %s, 2, %s' % (v(col16), v(l3), v(u16)))
a('s_lshl_b32 s48, %s, 5' % s(sW))
a('v_lshl_add_u32 %s, %s, 1, s48' % (v(vXw), v(col16)))
t0, t1, t2, t3 = T + 8, T + 9, T + 10, T + 11
a('v_lshlrev_b32 %s, 1, %s' % (v(t0), v(u16)))
a('v_xor_b32 %s, %s, %s' % (v(t0), v(t0), v(pos16)))
a('v_lshlrev_b32 %s, 4, %s' % (v(t0), v(t0)))
a('v_lshl_add_u32 %s, %s, 13, %s' % (v(t0), v(u16), v(t0)))
a('v_xor_b32 %s, 0x80, %s' % (v(t1), v(t0)))
a('v_add_u32 %s, %d, %s' % (v(t1), 2 * 31744, v(t1)))
k0 = T + 12
a('v_xor_b32 %s, %s, %s' % (v(k0), v(u16), v(pos16)))
a('v_lshlrev_b32 %s, 4, %s' % (v(k0), v(k0)))
a('v_lshl_add_u32 %s, %s, 8, %s' % (v(k0), v(u16), v(k0)))
for i in range(1, 4):
    a('v_xor_b32 %s, %d, %s' % (v(k0 + i), i << 6, v(k0)))
a('v_lshlrev_b32 %s, 4, %s' % (v(t2), v(vL)))
a('s_lshl_b32 s49, %s, 12' % s(sW))
a('v_add_u32 %s, s49, %s' % (v(vCons), v(t2)))
a('s_lshl_b32 s55, %s, 14' % s(sJ))
a('s_lshl_b32 s56, s3, 12')
a('s_add_u32 s55, s55, s56')
a('s_lshl_b32 s56, %s, 10' % s(sW))
a('s_add_u32 s55, s55, s56')
a('s_add_u32 s55, s55, %d' % WS_G)
a('v_lshl_add_u32 %s, %s, 7, s55' % (v(t3), v(vL)))
a('s_lshl_b32 s57, %s, 14' % s(sGam))
a('s_add_u32 s57, s57, %d' % WS_L)
a('s_lshl_b32 s58, %s, 7' % s(sJ))
a('s_add_u32 s58, s58, s57')
a('s_add_u32 s59, s58, s49')
a('s_sub_u32 s59, s59, %d' % (8 * 1024))
a('v_lshl_add_u32 %s, %s, 10, s59' % (v(T + 16), v(vL)))
a('v_cmp_lt_u32 vcc, 7, %s' % v(vL))
a('s_add_u32 s58, s58, %d' % STATS)
a('v_mov_b32 %s, s58' % v(T + 17))
a('v_cndmask_b32 %s, %s, %s, vcc' % (v(t3), v(t3), v(T + 16)))
a('v_cmp_lt_u32 vcc, 10, %s' % v(vL))
a('s_lshl_b32 s48, %s, 7' % s(sJ))
a('v_cndmask_b32 %s, %s, %s, vcc' % (v(t3), v(t3), v(T + 17)))
a('s_lshl_b32 s55, %s, 19' % s(sJ))
a('s_lshl_b32 s56, %s, 17' % s(sW))
a('s_add_u32 s55, s55, s56')
a('s_lshl_b32 s56, %s, 8' % s(sGam))
a('s_add_u32 s55, s55, s56')
a('s_lshl_b32 s56, %s, 20' % s(sGam))
a('s_lshl_b32 s58, %s, 15' % s(sJ))
a('s_add_u32 s56, s56, s58')
a('s_lshl_b32 s58, %s, 13' % s(sW))
a('s_add_u32 s56, s56, s58')
a('s_add_u32 s56, s56, %d' % (3072 * 256))
a('s_add_u32 s59, s49, %d' % WQ)
a('s_mov_b32 m0, s59')
a('s_waitcnt lgkmcnt(0)')
a('s_load_dword %s, s[26:27], 0' % s(sE))
a('s_add_u32 s4, s4, s48')
a('s_addc_u32 s5, s5, 0')
a('global_load_ushort %s, %s, s[4:5]' % (v(vX), v(vXw)))
a('s_add_u32 s10, s10, s55')
a('s_addc_u32 s11, s11, 0')
a('global_load_dword %s, %s, s[26:27]' % (v(T + 21), v(t3)))
a('global_load_lds_dwordx4 %s, s[10:11] offset:0%s' % (v(t0), NT))
a('v_add_u32 %s, 31744, %s' % (v(t0), v(t0)))
a('s_add_u32 s6, s6, s56')
a('s_addc_u32 s7, s7, 0')
a('global_load_lds_dwordx4 %s, s[10:11] offset:1024%s' % (v(t0), NT))
a('global_load_lds_dwordx4 %s, s[10:11] offset:2048%s' % (v(t1), NT))
a('v_add_u32 %s, 31744, %s' % (v(t1), v(t1)))
a('s_add_u32 s58, s58, %d' % KI)
a('global_load_lds_dwordx4 %s, s[10:11] offset:3072%s' % (v(t1), NT))
a('s_mov_b32 m0, s58')
a('s_add_u32 s8, s8, s56')
a('s_addc_u32 s9, s9, 0')
for i in range(4):
    a('global_load_lds_dwordx4 %s, s[6:7] offset:%d%s' % (v(k0 + i), 1024 * i, NT))
a('s_add_u32 s58, s58, 4096')
a('s_mov_b32 m0, s58')
a('s_add_u32 s6, s6, 4096')
a('s_addc_u32 s7, s7, 0')
for i in range(4):
    a('global_load_lds_dwordx4 %s, s[6:7] offset:%d%s' % (v(k0 + i), 1024 * i, NT))
for i in range(4):
    a('global_load_dwordx4 %s, %s, s[8:9] offset:%d%s' % (v(vV + 4 * i, 4), v(t2), 1024 * i, NT))
a('s_add_u32 s8, s8, 4096')
a('s_addc_u32 s9, s9, 0')
for i in range(4):
    a('global_load_dwordx4 %s, %s, s[8:9] offset:%d%s' % (v(vV + 16 + 4 * i, 4), v(t2), 1024 * i, NT))
stamp('issued')
a('s_add_u32 %s, s26, s57' % s(sLb))
a('s_addc_u32 %s, s27, 0' % s(sLb + 1))
a('s_lshl_b32 s55, %s, 14' % s(sJ))
a('s_add_u32 s55, s55, %d' % WS_G)
a('s_add_u32 %s, s26, s55' % s(sGb))
a('s_addc_u32 %s, s27, 0' % s(sGb + 1))
a('s_getreg_b32 %s, hwreg(HW_REG_XCC_ID, 0, 4)' % s(sXcc))
a('s_mov_b32 %s, 0x40000' % s(sTo))
a('s_mov_b32 %s, %s' % (s(sCs), f32(math.log2(math.e) / math.sqrt(128.0))))
a('s_mov_b32 %s, 0xffffff00' % s(sMaskHi))
a('s_mov_b32 %s, %s' % (s(sInv512), f32(1.0 / 512)))
a('s_mov_b32 %s, %s' % (s(sEps), f32(1e-5)))
a('s_mov_b32 %s, %s' % (s(sNl2e), f32(-math.log2(math.e))))
a('s_mov_b32 %s, 0xffff0000' % s(sM0))
a('s_mov_b32 %s, 0xffff0000' % s(sM0 + 1))
a('s_mul_i32 %s, %s, 43' % (s(sC0), s(sGam)))
a('s_add_u32 %s, %s, 43' % (s(sCnt), s(sC0)))
a('s_lshr_b32 %s, %s, 3' % (s(sC0), s(sC0)))
a('s_lshr_b32 %s, %s, 3' % (s(sCnt), s(sCnt)))
a('s_sub_u32 %s, %s, %s' % (s(sCnt), s(sCnt), s(sC0)))
a('s_lshl_b32 %s, %s, 3' % (s(sCnt), s(sCnt)))
a('v_mov_b32 %s, 0' % v(vZero))
a('v_lshrrev_b32 %s, 3, %s' % (v(u8), v(vL)))
a('v_and_b32 %s, 7, %s' % (v(pos8), v(vL)))
a('s_add_u32 s55, s49, s48')
a('v_and_b32 %s, 31, %s' % (v(t0), v(vL)))
a('v_lshl_add_u32 %s, %s, 2, s55' % (v(vPubL), v(t0)))
a('v_lshrrev_b32 %s, 5, %s' % (v(t1), v(vL)))
a('v_lshl_add_u32 %s, %s, 10, %s' % (v(vPubL), v(t1), v(vPubL)))
a('v_lshl_add_u32 %s, %s, 2, %s' % (v(t1), v(pos8), v(u16)))
a('v_lshl_add_u32 %s, %s, 2, s55' % (v(vPubS), v(t1)))
a('s_lshl_b32 s55, %s, 6' % s(sW))
a('v_lshl_add_u32 %s, %s, 1, s55' % (v(vQw), v(t1)))
a('s_lshl_b32 s55, %s, 6' % s(sGam))
a('s_add_u32 s55, s55, s49')
a('v_lshl_add_u32 %s, %s, 2, s55' % (v(vPubG), v(pos16)))
a('s_lshl_b32 s55, %s, 2' % s(sJ))
a('s_add_u32 s55, s55, %s' % s(sW))
a('s_lshl_b32 s55, s55, 4')
a('s_add_u32 s55, s55, %d' % STATS)
a('v_mov_b32 %s, s55' % v(vStP))
a('v_lshlrev_b32 %s, 4, %s' % (v(t1), v(l3)))
a('v_lshl_add_u32 %s, %s, 6, %s' % (v(t1), v(u8), v(t1)))
a('v_add_u32 %s, %d, %s' % (v(vStC), STATS, v(t1)))
a('v_mov_b32 %s, 0xff' % v(t2))
a('v_cmp_eq_u32 vcc, 0, %s' % v(l3))
a('v_lshlrev_b32 %s, 4, %s' % (v(vOpR), v(u16)))
a('v_cndmask_b32 %s, 0, %s, vcc' % (v(vTagM0), v(t2)))
a('v_cmp_eq_u32 vcc, 0, %s' % v(u16))
a('v_and_b32 %s, 8, %s' % (v(t1), v(vL)))
a('v_cndmask_b32 %s, 0, %s, vcc' % (v(vTagM1), v(t2)))
a('v_lshl_add_u32 %s, %s, 4, %s' % (v(vXopR), v(t1), v(vOpR)))
a('v_and_b32 %s, 4, %s' % (v(t1), v(vL)))
a('v_cmp_eq_u32 vcc, 0, %s' % v(t1))
a('v_add_u32 %s, %d, %s' % (v(t1), HB, v(vXw)))
a('v_mov_b32 %s, %d' % (v(t2), DUMMY))
a('v_cndmask_b32 %s, %s, %s, vcc' % (v(vHw), v(t2), v(t1)))
a('v_lshrrev_b32 %s, 1, %s' % (v(t1), v(vXw)))
a('v_cmp_gt_u32 vcc, %s, %s' % (s(sCnt), v(t1)))
a('s_mul_i32 s55, %s, 640' % s(sW))
a('s_add_u32 s55, s55, %d' % O32)
a('v_cndmask_b32 %s, 0, -1, vcc' % v(vHmask))
a('v_lshl_add_u32 %s, %s, 5, %s' % (v(t1), v(pos16), v(vOpR)))
a('v_add_u32 %s, s55, %s' % (v(vO32w), v(t1)))
a('s_lshl_b32 s55, %s, 7' % s(sW))
a('s_add_u32 s55, s55, %d' % O32)
a('v_mul_u32_u24 %s, 640, %s' % (v(t1), v(u16)))
a('v_lshl_add_u32 %s, %s, 4, %s' % (v(t1), v(pos8), v(t1)))
a('v_add_u32 %s, s55, %s' % (v(vO32r), v(t1)))
a('v_lshlrev_b32 %s, 2, %s' % (v(vMr), v(u16)))
a('s_lshl_b32 s55, %s, 2' % s(sW))
a('v_mov_b32 %s, s55' % v(vMw))
a('v_and_b32 %s, 1, %s' % (v(t1), v(vL)))
a('v_cmp_eq_u32 vcc, 1, %s' % v(t1))
a('v_mov_b32 %s, 0xffff' % v(t1))
a('v_mov_b32 %s, 0xffff0000' % v(t2))
a('v_cndmask_b32 %s, %s, %s, vcc' % (v(t1), v(t1), v(t2)))
a('v_lshrrev_b32 %s, 1, %s' % (v(t2), v(pos16)))
for d in range(4):
    a('v_cmp_eq_u32 vcc, %d, %s' % (d, v(t2)))
    a('v_cndmask_b32 %s, 0, %s, vcc' % (v(vDm + d), v(t1)))
a('v_lshlrev_b32 %s, 2, %s' % (v(t0), v(t0)))
a('v_mov_b32 %s, 0x3f803f80' % v(t1))
a('ds_write_b32 %s, %s offset:%d' % (v(t0), v(t1), ONES))
a('v_lshlrev_b32 %s, 2, %s' % (v(t0), v(pos8)))
a('ds_write_b32 %s, %s offset:%d' % (v(t0), v(vZero), HB + 96))
r_, c_ = T + 16, T + 17
trq = T + 18
a('v_lshrrev_b32 %s, 2, %s' % (v(r_), v(pos16)))
a('v_and_b32 %s, 1, %s' % (v(t0), v(u16)))
a('v_lshl_add_u32 %s, %s, 2, %s' % (v(t1), v(t0), v(r_)))
a('v_lshlrev_b32 %s, 1, %s' % (v(t1), v(t1)))
a('s_lshl_b32 s55, %s, 2' % s(sW))
a('v_xor_b32 %s, s55, %s' % (v(t1), v(t1)))
a('v_lshlrev_b32 %s, 4, %s' % (v(t1), v(t1)))
a('v_lshl_add_u32 %s, %s, 3, %s' % (v(t1), v(l3), v(t1)))
a('v_lshl_add_u32 %s, %s, 3, %s' % (v(t2), v(u16), v(r_)))
a('v_lshl_add_u32 %s, %s, 8, %s' % (v(trq), v(t2), v(t1)))
a('v_xor_b32 %s, 32, %s' % (v(trq + 1), v(trq)))
a('v_lshrrev_b32 %s, 1, %s' % (v(t1), v(r_)))
a('v_lshl_add_u32 %s, %s, 1, %s' % (v(t1), v(t0), v(t1)))
a('v_xor_b32 %s, %s, %s' % (v(t1), s(sW), v(t1)))
a('v_lshlrev_b32 %s, 5, %s' % (v(t1), v(t1)))
a('v_lshl_add_u32 %s, %s, 3, %s' % (v(t1), v(l3), v(t1)))
a('v_lshl_add_u32 %s, %s, 7, %s' % (v(vTr), v(t2), v(t1)))
wo0, wo1, f0, f1 = 224, 225, 226, 227
a('v_and_b32 %s, 2, %s' % (v(t0), v(u8)))
a('v_xor_b32 %s, %s, %s' % (v(t0), v(t0), v(pos8)))
a('v_lshlrev_b32 %s, 4, %s' % (v(t1), v(t0)))
a('v_lshl_add_u32 %s, %s, 10, %s' % (v(wo0), v(u8), v(t1)))
a('v_xor_b32 %s, 64, %s' % (v(wo1), v(wo0)))
a('v_add_u32 %s, 7168, %s' % (v(wo1), v(wo1)))
a('v_mul_u32_u24 %s, 2752, %s' % (v(t2), v(u8)))
a('v_min_u32 %s, 5, %s' % (v(t1), v(t0)))
a('v_lshl_add_u32 %s, %s, 4, %s' % (v(f0), v(t1), v(t2)))
a('v_xor_b32 %s, 4, %s' % (v(t0), v(t0)))
a('v_min_u32 %s, 5, %s' % (v(t1), v(t0)))
a('v_lshl_add_u32 %s, %s, 4, %s' % (v(f1), v(t1), v(t2)))
a('v_add_u32 %s, %d, %s' % (v(f1), 8 * 2752 - 1024, v(f1)))
a('s_lshl_b32 s55, %s, 17' % s(sGam))
a('s_lshl_b32 s59, %s, 15' % s(sW))
a('s_add_u32 s55, s55, s59')
a('s_add_u32 s55, s55, s48')
a('s_add_u32 s12, s12, s55')
a('s_addc_u32 s13, s13, 0')
a('s_lshl_b32 s55, %s, 2' % s(sJ))
a('s_add_u32 s55, s55, %s' % s(sW))
a('s_mul_i32 s55, s55, %d' % (16 * 2752))
a('s_lshl_b32 s59, %s, 4' % s(sC0))
a('s_add_u32 s55, s55, s59')
a('s_add_u32 s16, s16, s55')
a('s_addc_u32 s17, s17, 0')
a('s_add_u32 s18, s18, s55')
a('s_addc_u32 s19, s19, 0')
a('s_lshl_b32 s55, %s, 13' % s(sC0))
a('s_lshl_b32 s59, %s, 14' % s(sW))
a('s_add_u32 s55, s55, s59')
a('s_add_u32 s55, s55, s48')
a('s_add_u32 s20, s20, s55')
a('s_addc_u32 s21, s21, 0')
a('s_add_u32 s22, s22, s48')
a('s_addc_u32 s23, s23, 0')
a('s_waitcnt lgkmcnt(0)')
for k in range(10):
    a('s_add_u32 %s, %s, %d' % (s(sTag + k), s(sE), k + 1))


def issue_wo():
    a('s_add_u32 s55, s49, %d' % WO)
    a('s_mov_b32 m0, s55')
    a('v_add_u32 %s, %d, %s' % (v(T + 20), 2 * 7168, v(wo0)))
    a('global_load_lds_dwordx4 %s, s[12:13] offset:0%s' % (v(wo0), NT))
    a('global_load_lds_dwordx4 %s, s[12:13] offset:1024%s' % (v(wo1), NT))
    a('global_load_lds_dwordx4 %s, s[12:13] offset:2048%s' % (v(T + 20), NT))
    a('v_add_u32 %s, %d, %s' % (v(T + 20), 2 * 7168, v(wo1)))
    a('global_load_lds_dwordx4 %s, s[12:13] offset:3072%s' % (v(T + 20), NT))


def issue_ffn():
    a('s_lshl_b32 s59, %s, 11' % s(sW))
    a('s_add_u32 s55, s59, %d' % W1)
    a('s_mov_b32 m0, s55')
    a('s_add_u32 s55, s59, %d' % W3)
    a('global_load_lds_dwordx4 %s, s[16:17] offset:0%s' % (v(f0), NT))
    a('global_load_lds_dwordx4 %s, s[16:17] offset:1024%s' % (v(f1), NT))
    a('s_mov_b32 m0, s55')
    a('s_add_u32 s55, s59, %d' % W2)
    a('global_load_lds_dwordx4 %s, s[18:19] offset:0%s' % (v(f0), NT))
    a('global_load_lds_dwordx4 %s, s[18:19] offset:1024%s' % (v(f1), NT))
    sk = newlabel('now2')
    a('s_cmp_eq_u32 %s, 3' % s(sW))
    a('s_cbranch_scc1 %s' % sk)
    a('s_mov_b32 m0, s55')
    a('s_nop 0')
    a('global_load_lds_dwordx4 %s, s[20:21] offset:0%s' % (v(wo0), NT))
    a('global_load_lds_dwordx4 %s, s[20:21] offset:1024%s' % (v(wo1), NT))
    a.label(sk)


for layer in range(2):
    pre = 'L%d' % layer
    k1, k2, k4 = 3 * layer, 3 * layer + 1, 3 * layer + 2
    a('; ---- layer %d: x slice, query projection partials' % layer)
    if layer == 0:
        a('s_waitcnt vmcnt(21)')
        a('ds_write_b16 %s, %s offset:%d' % (v(vXw), v(vX), XB))
        a('v_lshlrev_b32 %s, 16, %s' % (v(vX), v(vX)))
        ln_stats_publish(k1, first=True)
        a('s_waitcnt vmcnt(17) lgkmcnt(0)')
        stamp('wq landed')
        a('s_barrier')
        tr_reads(vWQ, trq, WQ, 2, 8192, 1024)
        tr_reads(vWQ + 8, trq + 1, WQ, 2, 8192, 1024)
    else:
        x_gather(1, G_D)
        stamp(pre + ' E5 ok')
        a('ds_write_b16 %s, %s offset:%d' % (v(vXw), v(T), XB))
        a('v_and_b32 %s, 0xffff0000, %s' % (v(vX), v(T)))
        ln_stats_publish(k1)
        a('s_waitcnt lgkmcnt(0)')
        a('s_barrier')
    proj_phase(vWQ, k1, layer, first=(layer == 0))
    stamp(pre + ' Q pub')
    a('; ---- layer %d: gather q' % layer)
    r = vP
    if layer == 0:
        a('v_xor_b32 %s, %s, %s' % (v(t0), v(u16), v(pos16)))
        a('v_lshlrev_b32 %s, 4, %s' % (v(t0), v(t0)))
        a('v_lshl_add_u32 %s, %s, 8, %s' % (v(t0), v(pos16), v(t0)))
        a('s_lshl_b32 s55, %s, 13' % s(sW))
        a('s_add_u32 s55, s55, %d' % KI)
        a('v_add_u32 %s, s55, %s' % (v(t0), v(t0)))
        for kk in range(1, 4):
            a('v_xor_b32 %s, %d, %s' % (v(t0 + kk), kk << 6, v(t0)))
        a('s_waitcnt vmcnt(10)')
        stamp('K landed')
        for g in range(2):
            for kk in range(4):
                a('ds_read_b128 %s, %s offset:%d' % (v(vK + 16 * g + 4 * kk, 4), v(t0 + kk), 4096 * g))

        def chk():
            a('v_bitop3_b32 %s, %s, %s, %s bitop3:0x7e' % (v(T + 23), v(r), v(r + 4), s(sTag + k1)))
            a('v_cmp_ne_u32 %s, %s, %s' % (s(sT1, 2), s(sTag + k1), v(r + 10)))
            a('v_cmp_ne_u32_sdwa vcc, %s, %s src0_sel:BYTE_0 src1_sel:DWORD' % (v(T + 23), v(vZero)))
            a('s_or_b64 vcc, vcc, %s' % s(sT1, 2))
        poll([(r + 8, vStC, sLb, 0), (r, vCons, sLb, BUF_A), (r + 4, vCons, sLb, BUF_X)], chk, pre_wait=issue_wo, first_cnt=4)
        a('v_cmp_ne_u32 vcc, %s, %s' % (s(sXcc), v(r + 11)))
        a('v_and_b32 %s, %s, %s' % (v(r + 4), s(sMaskHi), v(r + 4)))
        a('s_cmp_eq_u64 vcc, 0')
        a('s_cselect_b32 %s, 1, 0' % s(sFast))
        reduce_j(r + 4, vCq)
        ln_stats_consume(r + 8)
    else:
        poll([(r + 8, vStC, sLb, 512 * (k1 & 1))], chk_stats(r + 8, k1))
        ln_stats_consume(r + 8)
        poll([(r, vCons, sLb, BUF_B)], chk_byte([r], sTag + k1))
    stamp(pre + ' E1 ok')
    a('v_and_b32 %s, %s, %s' % (v(r), s(sMaskHi), v(r)))
    reduce_j(r, r)
    a('v_fma_f32 %s, -%s, %s, %s' % (v(r), v(vMean), v(vCq), v(r)))
    a('v_mul_f32 %s, %s, %s' % (v(r), v(r), v(vRs)))
    a('v_cvt_pk_bf16_f32 %s, %s, %s' % (v(r), v(r), v(r)))
    a('ds_write_b16 %s, %s offset:%d' % (v(vQw), v(r), QB))
    a('s_waitcnt lgkmcnt(0)')
    a('s_barrier')
    a('; ---- layer %d: attention over this member\'s 128 keys' % layer)
    for kk in range(4):
        a('ds_read_b128 %s, %s offset:%d' % (v(vA + 4 * kk, 4), v(vOpR), QB + 64 * kk))
    a('s_waitcnt lgkmcnt(0)')
    for kk in range(4):
        for g in range(2):
            a('v_mfma_f32_16x16x32_bf16 %s, %s, %s, %s' % (v(vD + 4 * g, 4), v(vA + 4 * kk, 4), v(vK + 16 * g + 4 * kk, 4),
                                                         '0' if kk == 0 else v(vD + 4 * g, 4)))
    sg = T + 4
    mx, e0, e1, p0, p1, q0, q1 = T, T + 1, T + 2, T + 8, T + 9, T + 10, T + 11
    a('v_mov_b32 %s, %s' % (v(sg + 2), s(sTag + k2)))
    a('v_mov_b32 %s, %s' % (v(sg + 3), s(sXcc)))
    a('v_max_f32 %s, %s, %s' % (v(mx), v(vD), v(vD + 4)))
    for ro in (8, 4, 2, 1):
        a('v_max_f32_dpp %s, %s, %s row_ror:%d row_mask:0xf bank_mask:0xf' % (v(mx), v(mx), v(mx), ro))
    a('v_mul_f32 %s, %s, %s' % (v(sg), s(sCs), v(mx)))
    a('v_fma_f32 %s, %s, %s, -%s' % (v(e0), v(vD), s(sCs), v(sg)))
    a('v_fma_f32 %s, %s, %s, -%s' % (v(e1), v(vD + 4), s(sCs), v(sg)))
    a('v_exp_f32 %s, %s' % (v(e0), v(e0)))
    a('v_exp_f32 %s, %s' % (v(e1), v(e1)))
    a('ds_write_b32 %s, %s offset:%d' % (v(vMw), v(sg), MB))
    a('v_cvt_pk_bf16_f32 %s, %s, %s' % (v(p0), v(e0), v(e0)))
    a('v_cvt_pk_bf16_f32 %s, %s, %s' % (v(p1), v(e1), v(e1)))
    a('v_cvt_pk_bf16_f32 %s, %s, %s' % (v(q0), v(e0), v(e0)))
    a('v_cvt_pk_bf16_f32 %s, %s, %s' % (v(q1), v(e1), v(e1)))
    for sh in (1, 2, 3):
        a('v_mov_b32_dpp %s, %s row_shl:%d row_mask:0x%x bank_mask:0xf' % (v(q0), v(p0), sh, 1 << sh))
        a('v_mov_b32_dpp %s, %s row_shl:%d row_mask:0x%x bank_mask:0xf' % (v(q1), v(p1), sh, 1 << sh))
    a('v_add_f32 %s, %s, %s' % (v(sg + 1), v(e0), v(e1)))

    def ands(i):
        for d in range(4):
            a('v_and_b32_dpp %s, %s, %s row_newbcast:%d row_mask:0xf bank_mask:0xf' % (
                v(vA + 4 * (i & 1) + d), v(q0 + (i >> 2)), v(vDm + d), 4 * (i & 3)))
    ands(0)
    for i in range(8):
        if i + 1 < 8:
            ands(i + 1)
        a('v_mfma_f32_16x16x32_bf16 %s, %s, %s, %s' % (v(vD + 8, 4), v(vA + 4 * (i & 1), 4), v(vV + 4 * i, 4), '0' if i == 0 else v(vD + 8, 4)))
    for ro in (8, 4, 2, 1):
        a('v_add_f32_dpp %s, %s, %s row_ror:%d row_mask:0xf bank_mask:0xf' % (v(sg + 1), v(sg + 1), v(sg + 1), ro))
    setfast()
    a('s_mov_b32 exec_hi, 0')
    a('ds_write_b128 %s, %s' % (v(vO32w), v(vD + 8, 4)))
    a('s_mov_b64 exec, 1')
    lstore('global_store_dwordx4', v(vStP), v(sg, 4), s(sLb, 2), 512 * (k2 & 1))
    a('s_mov_b64 exec, -1')
    a('s_waitcnt lgkmcnt(0)')
    a('s_barrier')
    a('ds_read_b128 %s, %s offset:%d' % (v(T + 8, 4), v(vZero), MB))
    a('ds_read_b32 %s, %s offset:%d' % (v(T + 12), v(vMr), MB))
    a('ds_read_b128 %s, %s' % (v(r, 4), v(vO32r)))
    a('s_waitcnt lgkmcnt(1)')
    a('v_max3_f32 %s, %s, %s, %s' % (v(T + 8), v(T + 8), v(T + 9), v(T + 10)))
    a('v_max_f32 %s, %s, %s' % (v(T + 8), v(T + 8), v(T + 11)))
    a('v_sub_f32 %s, %s, %s' % (v(T + 12), v(T + 12), v(T + 8)))
    a('v_exp_f32 %s, %s' % (v(T + 12), v(T + 12)))
    setfast()
    a('s_waitcnt lgkmcnt(0)')
    a('v_pk_mul_f32 %s, %s, %s op_sel_hi:[1,0]' % (v(r + 2, 2), v(r + 2, 2), v(T + 12, 2)))
    a('v_pk_mul_f32 %s, %s, %s op_sel_hi:[1,0]' % (v(r, 2), v(r, 2), v(T + 12, 2)))
    a('v_permlane32_swap_b32 %s, %s' % (v(r + 1), v(r + 3)))
    a('v_permlane32_swap_b32 %s, %s' % (v(r), v(r + 2)))
    a('v_add_f32 %s, %s, %s' % (v(r + 1), v(r + 1), v(r + 3)))
    a('v_add_f32 %s, %s, %s' % (v(r), v(r), v(r + 2)))
    a('v_permlane16_swap_b32 %s, %s' % (v(r), v(r + 1)))
    a('v_add_f32 %s, %s, %s' % (v(r), v(r), v(r + 1)))
    a('v_bfi_b32 %s, %s, %s, %s' % (v(T), v(vTagM1), s(sTag + k2), v(r)))
    lstore('global_store_dword', v(vPubS), v(T), s(sLb, 2), BUF_A if k2 % 2 == 0 else BUF_B)
    stamp(pre + ' S pub')
    a('; ---- layer %d: combine the 8 key blocks, output projection partials' % layer)
    poll([(r + 8, vStC, sLb, 512 * (k2 & 1))], chk_stats(r + 8, k2))
    mj, mm = T, T + 1
    a('v_mov_b32 %s, %s' % (v(mj), v(r + 8)))
    allred('v_max_f32', mj, T + 2, [0, 1])
    a('v_mov_b32 %s, %s' % (v(mm), v(mj)))
    allred('v_max_f32', mm, T + 2, [3, 4, 5])
    a('v_sub_f32 %s, %s, %s' % (v(r + 8), v(r + 8), v(mm)))
    a('v_sub_f32 %s, %s, %s' % (v(mj), v(mj), v(mm)))
    a('v_exp_f32 %s, %s' % (v(r + 8), v(r + 8)))
    a('v_exp_f32 %s, %s' % (v(mj), v(mj)))
    a('v_mul_f32 %s, %s, %s' % (v(r + 8), v(r + 8), v(r + 9)))
    allred('v_add_f32', r + 8, T + 2, [0, 1, 3, 4, 5])
    a('v_rcp_f32 %s, %s' % (v(r + 8), v(r + 8)))
    a('v_mul_f32 %s, %s, %s' % (v(vF), v(mj), v(r + 8)))
    poll([(r, vCons, sLb, BUF_A if k2 % 2 == 0 else BUF_B)], chk_byte([r], sTag + k2))
    stamp(pre + ' E2 ok')
    a('v_and_b32 %s, %s, %s' % (v(r), s(sMaskHi), v(r)))
    a('v_pk_mul_f32 %s, %s, %s op_sel_hi:[1,0]' % (v(r + 2, 2), v(r + 2, 2), v(vF, 2)))
    a('v_pk_mul_f32 %s, %s, %s op_sel_hi:[1,0]' % (v(r, 2), v(r, 2), v(vF, 2)))
    reduce_j(r, r)
    a('v_cvt_pk_bf16_f32 %s, %s, %s' % (v(r), v(r), v(r)))
    a('ds_write_b16 %s, %s offset:%d' % (v(vQw), v(r), OB))
    if layer == 0:
        issue_ffn()
    a('s_waitcnt lgkmcnt(0)')
    a('s_barrier')
    if layer == 0:
        tr_reads(vWO, vTr, WO, 4, 4096, 512)
    gemv_publish_g(4, vWO, OB, 2 * layer, G_C)
    stamp(pre + ' O pub')
    a('; ---- layer %d: x slice, gate/up partials' % layer)
    x_gather(2 * layer, G_C)
    stamp(pre + ' E3 ok')
    a('ds_write_b16 %s, %s offset:%d' % (v(vXw), v(T), XB))
    a('v_and_b32 %s, 0xffff0000, %s' % (v(vX), v(T)))
    ln_stats_publish(k4)
    a('s_waitcnt lgkmcnt(0)')
    a('s_barrier')
    idle = newlabel('idle')
    if layer == 0:
        tr_reads(vW13, vTr, W1, 2, 4096, 512)
        tr_reads(vW13 + 8, vTr, W3, 2, 4096, 512)
        tr_reads(vW2, vTr, W2, 1, 4096, 512)
        a('v_and_b32 %s, 32, %s' % (v(T + 1), v(vL)))
        a('v_lshlrev_b32 %s, 6, %s' % (v(T + 1), v(T + 1)))
        a('v_sub_u32 %s, %s, %s' % (v(T + 1), v(vTr), v(T + 1)))
        tr_reads(vW2 + 4, T + 1, W2 + 4096, 1, 4096, 512)
    a('s_cmp_eq_u32 %s, 3' % s(sW))
    a('s_cbranch_scc1 %s' % idle)
    proj_phase(vW13, k4, layer)
    stamp(pre + ' G pub')
    a('; ---- layer %d: gather gate/up, activation' % layer)
    poll([(r + 8, vStC, sLb, 512 * (k4 & 1))], chk_stats(r + 8, k4))
    ln_stats_consume(r + 8)
    if layer == 0:
        poll([(r, vCons, sLb, BUF_A), (r + 4, vCons, sLb, BUF_X)], chk_byte([r, r + 4], sTag + k4))
        a('v_and_b32 %s, %s, %s' % (v(r + 4), s(sMaskHi), v(r + 4)))
        reduce_j(r + 4, vCg)
    else:
        poll([(r, vCons, sLb, BUF_B)], chk_byte([r], sTag + k4))
    stamp(pre + ' E4 ok')
    a('v_and_b32 %s, %s, %s' % (v(r), s(sMaskHi), v(r)))
    reduce_j(r, r)
    a('v_fma_f32 %s, -%s, %s, %s' % (v(r), v(vMean), v(vCg), v(r)))
    a('v_mul_f32 %s, %s, %s' % (v(r), v(r), v(vRs)))
    bf16r(r, r)
    a('v_mul_f32 %s, %s, %s' % (v(r + 1), s(sNl2e), v(r)))
    a('v_exp_f32 %s, %s' % (v(r + 1), v(r + 1)))
    a('v_mov_b32_dpp %s, %s row_shl:4 row_mask:0xf bank_mask:0xf' % (v(r + 2), v(r)))
    a('v_add_f32 %s, 1.0, %s' % (v(r + 1), v(r + 1)))
    a('v_rcp_f32 %s, %s' % (v(r + 1), v(r + 1)))
    a('v_mul_f32 %s, %s, %s' % (v(r), v(r), v(r + 1)))
    bf16r(r, r)
    a('v_mul_f32 %s, %s, %s' % (v(r), v(r), v(r + 2)))
    a('v_cvt_pk_bf16_f32 %s, %s, %s' % (v(r), v(r), v(r)))
    a('v_and_b32 %s, %s, %s' % (v(r), v(vHmask), v(r)))
    a('ds_write_b16 %s, %s' % (v(vHw), v(r)))
    a.label(idle)
    a('s_waitcnt lgkmcnt(0)')
    a('s_barrier')
    gemv_publish_g(2, vW2, HB, 2 * layer + 1, G_D)
    stamp(pre + ' D pub')

a('; ---- final sum (group 0 only)')
a('s_cmp_lg_u32 %s, 0' % s(sGam))
a('s_cbranch_scc1 L_fin')
x_gather(3, G_D)
a('s_mov_b32 exec_lo, 0x000f000f')
a('s_mov_b32 exec_hi, 0x000f000f')
a('global_store_short %s, %s, s[22:23]' % (v(vXw), v(T)))
a('s_or_b32 s55, %s, %s' % (s(sJ), s(sW)))
a('s_cmp_lg_u32 s55, 0')
a('s_cbranch_scc1 L_fin')
a('s_add_u32 s55, %s, 16' % s(sE))
a('v_mov_b32 %s, s55' % v(T + 1))
a('s_mov_b64 exec, 1')
a('global_store_dword %s, %s, s[26:27]' % (v(vZero), v(T + 1)))
a.label('L_fin')
if OPT.get('delay'):
    ins = 's_memtime' if OPT['delay'] == 1 else 's_memrealtime'
    if 'only' in OPT:
        a('s_cmp_lg_u32 s2, %d' % OPT['only'])
        a('s_cbranch_scc1 L_end')
    a('%s s[4:5]' % ins)
    a('s_waitcnt lgkmcnt(0)')
    if OPT['delay'] == 3:
        a('s_mov_b32 s4, s100')
    a.label('L_dly')
    a('%s s[6:7]' % ins)
    a('s_waitcnt lgkmcnt(0)')
    a('s_sub_u32 s8, s6, s4')
    a('s_cmp_lt_u32 s8, %d' % {1: 24000, 2: 1000, 3: OPT.get('until', 3000)}[OPT['delay']])
    a('s_cbranch_scc1 L_dly')
if DIAG:
    a('s_mov_b64 exec, -1')
    stamp_regs.append(4)
    stamps_n = len(stamps)
    a('s_memrealtime s[4:5]')
    a('s_waitcnt lgkmcnt(0)')
    a('v_mov_b32 %s, 0' % v(T))
    for i in range(stamps_n):
        a('v_writelane_b32 %s, %s, %d' % (v(T), s(stamp_regs[i]), i))
    a('v_writelane_b32 %s, s4, %d' % (v(T), stamps_n))
    a('s_lshl_b32 s55, s2, 2')
    a('s_add_u32 s55, s55, %s' % s(sW))
    a('s_lshl_b32 s55, s55, 8')
    a('s_add_u32 s55, s55, %d' % WS_DIAG)
    a('v_lshl_add_u32 %s, %s, 2, s55' % (v(T + 1), v(vL)))
    a('global_store_dword %s, %s, s[26:27]' % (v(T + 1), v(T)))
    if DIAG == 3:
        a('s_or_b32 s55, s2, %s' % s(sW))
        a('s_cmp_lg_u32 s55, 0')
        a('s_cbranch_scc1 L_end')
        a('v_subrev_u32 %s, s70, %s' % (v(T), v(T)))
        a('v_lshlrev_b32 %s, 2, %s' % (v(T + 1), v(vL)))
        a('global_store_dword %s, %s, s[24:25]' % (v(T + 1), v(T)))
    stamps.append('end')
a.label('L_end')
a('s_endpgm')
for l1, ins, l2 in slow:
    a.label(l1)
    a.raw('    ' + ins)
    a.raw('    s_branch %s' % l2)
a.label('L_codeend')
a.raw('''.section .rodata,"a"
.p2align 6
.amdhsa_kernel %s_kernel
  .amdhsa_next_free_vgpr %d
  .amdhsa_next_free_sgpr 102
  .amdhsa_accum_offset %d
  .amdhsa_group_segment_fixed_size 0
  .amdhsa_kernarg_size 96
  .amdhsa_user_sgpr_count 2
  .amdhsa_user_sgpr_kernarg_segment_ptr 1
  .amdhsa_system_sgpr_workgroup_id_x 1
  .amdhsa_float_denorm_mode_32 3
.end_amdhsa_kernel''' % (NAME, NVGPR, NVGPR))
sys.stdout.write(a.text())
if DIAG:
    sys.stderr.write('STAMPS ' + '|'.join(stamps) + '\n')
sys.stderr.write('nops inserted: %d\n' % a.nops)
```

```python
import sys, math
from asm import Asm

NAME = 'interleave_layers__sliding_block_cached__glu_gated_swiglu__decode'
OPT = dict(diag=0, fast=1, nt=1, stop=99)
for a_ in sys.argv[1:]:
    k_, v_ = a_.split('=')
    OPT[k_] = int(v_)
DIAG = OPT['diag']
NT = ' nt' if OPT['nt'] else ''

XB, ONES, QB, OB, HB, MB, DUMMY, O32 = 0, 128, 256, 512, 768, 896, 960, 1024
WQ, WO, W1, W3, W2, KI = 4096, 20480, 36864, 45056, 53248, 61440
LDS_BYTES = KI + 32768
WS_G, WS_L, WS_DIAG = 0x100000, 0x40000, 0x200000
BUF_A, BUF_X, BUF_B, STATS = 0, 1024, 2048, 3072
G_C, G_D = 0, 2048

vL, vCons, vPubL, vPubS, vPubG, vStP, vStC, vTagM0, vTagM1 = range(1, 10)
vXw, vQw, vHw, vOpR, vXopR, vO32w, vO32r, vMr, vZero, vMw = range(10, 20)
vDm = 20
vHmask, vX, vCq, vCg, vMean, vRs, vF, vTr = range(24, 32)
vWQ, vK, vV, vWO, vW13, vW2 = 32, 48, 80, 112, 128, 144
T = 152
vA = 176
vD = 192
vP = 208
NVGPR = 232
sW, sJ, sGam, sE, sXcc, sTo, sFast, sC0, sCnt = 28, 29, 30, 32, 35, 36, 37, 33, 34
sLb, sGb0, sGb1 = 38, 40, 14
sT0, sT1, sT2 = 42, 44, 46
sCs, sMaskHi, sInv512, sEps, sNl2e = 50, 51, 52, 53, 54
sM0, sM1 = 56, 58
sTag = 60

a = Asm()
slow = []
stamp_regs = list(range(70, 102, 2))
stamps = []


def v(n, cnt=1):
    return 'v%d' % n if cnt == 1 else 'v[%d:%d]' % (n, n + cnt - 1)


def s(n, cnt=1):
    return 's%d' % n if cnt == 1 else 's[%d:%d]' % (n, n + cnt - 1)


nstamp = [0]


def stamp(name):
    nstamp[0] += 1
    if OPT.get('delay') == 3 and OPT.get('at', 1) == nstamp[0]:
        a('s_memrealtime s[100:101]')
        sys.stderr.write('delay anchored at ' + name + '\n')
    if not DIAG:
        return
    if DIAG == 2 and not name.startswith('L1') and name != 'start':
        return
    if DIAG == 1 and name.startswith('L1'):
        return
    if DIAG == 3 and name not in ('start', 'issued', 'wq landed', 'K landed', 'L0 E1 ok', 'L0 S pub', 'L0 E2 ok', 'L0 E3 ok', 'L0 E4 ok', 'L0 D pub', 'L1 E5 ok', 'L1 E1 ok', 'L1 E2 ok', 'L1 E3 ok', 'L1 D pub'):
        return
    if len(stamps) >= len(stamp_regs):
        return
    r = stamp_regs[len(stamps)]
    stamps.append(name)
    a('s_memrealtime %s' % s(r, 2))


def f32(x):
    import struct
    return '0x%08x' % struct.unpack('<I', struct.pack('<f', x))[0]


lbl = [0]


def newlabel(p):
    lbl[0] += 1
    return 'L_%s_%d' % (p, lbl[0])


def lstore(op, addr, data, base, off, first=False):
    ins = '%s %s, %s, %s offset:%d' % (op, addr, data, base, off)
    if first or not OPT['fast']:
        a(ins + ' sc1')
        return
    l1, l2 = newlabel('slow'), newlabel('back')
    a('s_cbranch_scc1 %s' % l1)
    a(ins)
    a.label(l2)
    slow.append((l1, ins + ' sc1', l2))


def setfast():
    if OPT['fast']:
        a('s_cmp_eq_u32 %s, 0' % s(sFast))


def poll(loads, check, pre_wait=None, first_cnt=0):
    top, ent = newlabel('poll'), newlabel('pent')
    if pre_wait is not None:
        for d, vo, b, im in loads:
            a('global_load_dwordx4 %s, %s, %s offset:%d sc1' % (v(d, 4), v(vo), s(b, 2), im))
        pre_wait()
        a('s_waitcnt vmcnt(%d)' % first_cnt)
        a('s_branch %s' % ent)
    a.label(top)
    a('s_sub_u32 %s, %s, 1' % (s(sTo), s(sTo)))
    a('s_cbranch_scc1 L_end')
    for d, vo, b, im in loads:
        a('global_load_dwordx4 %s, %s, %s offset:%d sc1' % (v(d, 4), v(vo), s(b, 2), im))
    a('s_waitcnt vmcnt(0)')
    if pre_wait is not None:
        a.label(ent)
    check()
    a('s_cbranch_vccnz %s' % top)


def chk_byte(regs, tag):
    def f():
        if len(regs) == 1:
            a('v_cmp_ne_u32_sdwa vcc, %s, %s src0_sel:BYTE_0 src1_sel:BYTE_0' % (v(regs[0]), s(tag)))
        else:
            a('v_bitop3_b32 %s, %s, %s, %s bitop3:0x7e' % (v(T + 23), v(regs[0]), v(regs[1]), s(tag)))
            a('v_cmp_ne_u32_sdwa vcc, %s, %s src0_sel:BYTE_0 src1_sel:DWORD' % (v(T + 23), v(vZero)))
    return f


def reduce_j(r, out):
    a('v_permlane32_swap_b32 %s, %s' % (v(r + 1), v(r + 3)))
    a('v_add_f32 %s, %s, %s' % (v(r + 1), v(r + 1), v(r + 3)))
    a('v_permlane32_swap_b32 %s, %s' % (v(r), v(r + 2)))
    a('v_add_f32 %s, %s, %s' % (v(r), v(r), v(r + 2)))
    a('v_permlane16_swap_b32 %s, %s' % (v(r), v(r + 1)))
    a('v_add_f32 %s, %s, %s' % (v(r), v(r), v(r + 1)))
    a('v_add_f32_dpp %s, %s, %s row_ror:8 row_mask:0xf bank_mask:0xf' % (v(out), v(r), v(r)))


def bf16r(dst, src):
    a('v_cvt_pk_bf16_f32 %s, %s, %s' % (v(dst), v(src), v(src)))
    a('v_and_b32 %s, 0xffff0000, %s' % (v(dst), v(dst)))


def allred(op, x, t, bits):
    for b in bits:
        if b == 0:
            a('%s_dpp %s, %s, %s quad_perm:[1,0,3,2] row_mask:0xf bank_mask:0xf' % (op, v(x), v(x), v(x)))
        elif b == 1:
            a('%s_dpp %s, %s, %s quad_perm:[2,3,0,1] row_mask:0xf bank_mask:0xf' % (op, v(x), v(x), v(x)))
        elif b == 3:
            a('%s_dpp %s, %s, %s row_ror:8 row_mask:0xf bank_mask:0xf' % (op, v(x), v(x), v(x)))
        elif b == 4:
            a('v_mov_b32 %s, %s' % (v(t), v(x)))
            a('v_permlane16_swap_b32 %s, %s' % (v(x), v(t)))
            a('%s %s, %s, %s' % (op, v(x), v(x), v(t)))
        elif b == 5:
            a('v_mov_b32 %s, %s' % (v(t), v(x)))
            a('v_permlane32_swap_b32 %s, %s' % (v(x), v(t)))
            a('%s %s, %s, %s' % (op, v(x), v(x), v(t)))


def ln_stats_publish(k, first=False):
    g = T + 4
    a('v_mov_b32 %s, %s' % (v(g), v(vX)))
    a('v_mul_f32 %s, %s, %s' % (v(g + 1), v(vX), v(vX)))
    a('v_mov_b32 %s, %s' % (v(g + 2), s(sTag + k)))
    a('v_mov_b32 %s, %s' % (v(g + 3), s(sXcc)))
    a('v_permlane32_swap_b32 %s, %s' % (v(g), v(g + 1)))
    a('v_add_f32 %s, %s, %s' % (v(g), v(g), v(g + 1)))
    allred('v_add_f32', g, g + 1, [4, 0, 1])
    a('v_mov_b32 %s, %s' % (v(g + 1), v(g)))
    setfast()
    a('v_permlane32_swap_b32 %s, %s' % (v(g), v(g + 1)))
    a('s_mov_b64 exec, 1')
    lstore('global_store_dwordx4', v(vStP), v(g, 4), s(sLb, 2), 512 * (k & 1), first)
    a('s_mov_b64 exec, -1')


def chk_stats(r, k):
    def f():
        a('v_cmp_ne_u32 vcc, %s, %s' % (s(sTag + k), v(r + 2)))
    return f


def ln_stats_consume(r):
    a('v_permlane32_swap_b32 %s, %s' % (v(r), v(r + 1)))
    a('v_add_f32 %s, %s, %s' % (v(r), v(r), v(r + 1)))
    allred('v_add_f32', r, r + 1, [4, 3, 0, 1])
    a('v_mov_b32 %s, %s' % (v(r + 1), v(r)))
    a('v_permlane32_swap_b32 %s, %s' % (v(r), v(r + 1)))
    a('v_mul_f32 %s, %s, %s' % (v(r), s(sInv512), v(r)))
    a('v_mul_f32 %s, %s, %s' % (v(r + 1), s(sInv512), v(r + 1)))
    a('v_fma_f32 %s, -%s, %s, %s' % (v(r + 1), v(r), v(r), v(r + 1)))
    a('v_max_f32 %s, 0, %s' % (v(r + 1), v(r + 1)))
    bf16r(vMean, r)
    bf16r(r + 1, r + 1)
    a('v_add_f32 %s, %s, %s' % (v(r + 1), s(sEps), v(r + 1)))
    bf16r(r + 1, r + 1)
    a('v_sqrt_f32 %s, %s' % (v(r + 1), v(r + 1)))
    bf16r(r + 1, r + 1)
    a('v_rcp_f32 %s, %s' % (v(vRs), v(r + 1)))


def x_gather(gi, imm, after_issue=None, cnt=0):
    r = vP
    base = sGb0 if gi < 2 else sGb1
    poll([(r, vCons, base, imm), (r + 4, vCons, base, imm + 1024)], chk_byte([r, r + 4], sTag + 6 + gi), pre_wait=after_issue, first_cnt=cnt)
    a('v_and_b32 %s, %s, %s' % (v(r), s(sMaskHi), v(r)))
    a('v_and_b32 %s, %s, %s' % (v(r + 4), s(sMaskHi), v(r + 4)))
    a('v_pk_add_f32 %s, %s, %s' % (v(r + 2, 2), v(r + 2, 2), v(r + 6, 2)))
    a('v_pk_add_f32 %s, %s, %s' % (v(r, 2), v(r, 2), v(r + 4, 2)))
    reduce_j(r, r)
    a('v_add_f32_dpp %s, %s, %s row_ror:4 row_mask:0xf bank_mask:0xf' % (v(r), v(r), v(r)))
    bf16r(r, r)
    a('v_add_f32 %s, %s, %s' % (v(r), v(r), v(vX)))
    a('v_cvt_pk_bf16_f32 %s, %s, %s' % (v(T), v(r), v(r)))


def stats_load(k):
    a('global_load_dwordx4 %s, %s, %s offset:%d sc1' % (v(vP + 8, 4), v(vStC), s(sLb, 2), 512 * (k & 1)))


def l_gather(k, loads, check, consume_stats):
    r = vP
    top, ok = newlabel('stp'), newlabel('sok')
    a('s_waitcnt vmcnt(1)')
    chk_stats(r + 8, k)()
    a('s_cbranch_vccz %s' % ok)
    poll([(r + 8, vStC, sLb, 512 * (k & 1))], chk_stats(r + 8, k))
    a.label(ok)
    poll(loads, check, pre_wait=consume_stats, first_cnt=0)


def proj_phase(wreg, k, layer, first=False):
    rd = vXopR if layer == 0 else vOpR
    a('ds_read_b128 %s, %s offset:%d' % (v(vA, 4), v(rd), XB))
    a('ds_read_b128 %s, %s offset:%d' % (v(vA + 4, 4), v(rd), XB + 64))
    a('s_waitcnt lgkmcnt(0)')
    a('v_mfma_f32_16x16x32_bf16 %s, %s, %s, 0' % (v(vD, 4), v(vA, 4), v(wreg, 4)))
    a('v_mfma_f32_16x16x32_bf16 %s, %s, %s, 0' % (v(vD + 4, 4), v(vA, 4), v(wreg + 8, 4)))
    a('v_mfma_f32_16x16x32_bf16 %s, %s, %s, %s' % (v(vD, 4), v(vA + 4, 4), v(wreg + 4, 4), v(vD, 4)))
    a('v_mfma_f32_16x16x32_bf16 %s, %s, %s, %s' % (v(vD + 4, 4), v(vA + 4, 4), v(wreg + 12, 4), v(vD + 4, 4)))
    if not first:
        stats_load(k)
    setfast()
    if layer == 1:
        a('s_mov_b32 exec_hi, 0')
    a('v_cndmask_b32 %s, %s, %s, %s' % (v(T), v(vD), v(vD + 4), s(sM0, 2)))
    a('v_bfi_b32 %s, %s, %s, %s' % (v(T), v(vTagM0), s(sTag + k), v(T)))
    lstore('global_store_dword', v(vPubL), v(T), s(sLb, 2), BUF_A if k % 2 == 0 else BUF_B, first)
    if layer == 1:
        a('s_mov_b32 exec_hi, -1')


def tr_reads(dst, addr, base, nk, kstride, gstride):
    for kk in range(nk):
        for g in range(2):
            a('ds_read_b64_tr_b16 %s, %s offset:%d' % (v(dst + 4 * kk + 2 * g, 2), v(addr), base + kk * kstride + g * gstride))


def gemv_publish_g(nk, wreg, src, gi, imm):
    for kk in range(nk):
        a('ds_read_b128 %s, %s offset:%d' % (v(vA + 4 * kk, 4), v(vOpR), src + 64 * kk))
    for kk in range(nk):
        a('s_waitcnt lgkmcnt(%d)' % (0 if DIAG else nk - 1 - kk))
        a('v_mfma_f32_16x16x32_bf16 %s, %s, %s, %s' % (v(vD, 4), v(vA + 4 * kk, 4), v(wreg + 4 * kk, 4), '0' if kk == 0 else v(vD, 4)))
    a('s_mov_b32 exec_hi, 0')
    a('v_bfi_b32 %s, %s, %s, %s' % (v(T), v(vTagM0), s(sTag + 6 + gi), v(vD)))
    a('global_store_dword %s, %s, %s offset:%d sc1' % (v(vPubG), v(T), s(sGb0 if gi < 2 else sGb1, 2), imm))
    a('s_mov_b32 exec_hi, -1')


def finish_if(stage):
    if OPT['stop'] == stage:
        a('s_branch L_fin')


a.raw('''; single persistent launch: 32 groups (head / ffn slice) x 8 members, weights and KV window stay on chip for both layers
; @launch grid=(256,1,1) block=(256,1,1) lds=%d
.amdgcn_target "amdgcn-amd-amdhsa--gfx950"
.text
.globl %s_kernel
.p2align 8
.type %s_kernel,@function
%s_kernel:''' % (LDS_BYTES, NAME, NAME, NAME))
a('s_cmp_ge_u32 s2, 256')
a('s_cbranch_scc1 L_end')
a('s_load_dwordx16 s[4:19], s[0:1], 0')
a('s_load_dwordx8 s[20:27], s[0:1], 64')
stamp('start')
a('s_getpc_b64 %s' % s(sT0, 2))
a.label('L_pc')
a('v_lshlrev_b32 %s, 6, v0' % v(T))
a('v_min_u32 %s, L_codeend-L_pc-64, %s' % (v(T), v(T)))
a('global_load_dword %s, %s, %s' % (v(T + 22), v(T), s(sT0, 2)))
a('v_lshrrev_b32 %s, 6, v0' % v(T))
a('v_and_b32 %s, 63, v0' % v(vL))
a('v_readfirstlane_b32 %s, %s' % (s(sW), v(T)))
a('s_lshr_b32 s3, s2, 3')
a('s_and_b32 %s, s3, 7' % s(sJ))
a('s_lshr_b32 s3, s3, 3')
a('s_and_b32 s31, s2, 7')
a('s_lshl_b32 %s, s31, 2' % s(sGam))
a('s_add_u32 %s, %s, s3' % (s(sGam), s(sGam)))
u16, pos16, u8, pos8, l3, col16 = T + 1, T + 2, T + 3, T + 4, T + 5, T + 6
a('v_lshrrev_b32 %s, 4, %s' % (v(u16), v(vL)))
a('v_and_b32 %s, 15, %s' % (v(pos16), v(vL)))
a('v_and_b32 %s, 3, %s' % (v(l3), v(vL)))
a('v_lshl_add_u32 %s, %s, 2, %s' % (v(col16), v(l3), v(u16)))
a('s_lshl_b32 s48, %s, 5' % s(sW))
a('v_lshl_add_u32 %s, %s, 1, s48' % (v(vXw), v(col16)))
t0, t1, t2, t3 = T + 8, T + 9, T + 10, T + 11
a('v_lshlrev_b32 %s, 1, %s' % (v(t0), v(u16)))
a('v_xor_b32 %s, %s, %s' % (v(t0), v(t0), v(pos16)))
a('v_lshlrev_b32 %s, 4, %s' % (v(t0), v(t0)))
a('v_lshl_add_u32 %s, %s, 13, %s' % (v(t0), v(u16), v(t0)))
a('v_xor_b32 %s, 0x80, %s' % (v(t1), v(t0)))
a('v_add_u32 %s, %d, %s' % (v(t1), 2 * 31744, v(t1)))
k0 = T + 12
a('v_xor_b32 %s, %s, %s' % (v(k0), v(u16), v(pos16)))
a('v_lshlrev_b32 %s, 4, %s' % (v(k0), v(k0)))
a('v_lshl_add_u32 %s, %s, 8, %s' % (v(k0), v(u16), v(k0)))
for i in range(1, 4):
    a('v_xor_b32 %s, %d, %s' % (v(k0 + i), i << 6, v(k0)))
a('v_lshlrev_b32 %s, 4, %s' % (v(t2), v(vL)))
a('s_lshl_b32 s49, %s, 12' % s(sW))
a('v_add_u32 %s, s49, %s' % (v(vCons), v(t2)))
a('s_lshl_b32 s57, %s, 14' % s(sGam))
a('s_add_u32 s57, s57, %d' % WS_L)
a('s_lshl_b32 s48, %s, 7' % s(sJ))
a('s_add_u32 s58, s48, s57')
a('s_add_u32 s59, s58, s49')
a('v_lshl_add_u32 %s, %s, 10, s59' % (v(t3), v(vL)))
a('v_cmp_lt_u32 vcc, 2, %s' % v(vL))
a('s_add_u32 s58, s58, %d' % STATS)
a('v_mov_b32 %s, s58' % v(T + 17))
a('v_cndmask_b32 %s, %s, %s, vcc' % (v(t3), v(t3), v(T + 17)))
a('s_lshl_b32 s55, %s, 19' % s(sJ))
a('s_lshl_b32 s56, %s, 17' % s(sW))
a('s_add_u32 s55, s55, s56')
a('s_lshl_b32 s56, %s, 8' % s(sGam))
a('s_add_u32 s55, s55, s56')
a('s_lshl_b32 s56, %s, 20' % s(sGam))
a('s_lshl_b32 s58, %s, 15' % s(sJ))
a('s_add_u32 s56, s56, s58')
a('s_lshl_b32 s58, %s, 13' % s(sW))
a('s_add_u32 s56, s56, s58')
a('s_add_u32 s56, s56, %d' % (3072 * 256))
a('s_add_u32 s59, s49, %d' % WQ)
a('s_mov_b32 m0, s59')
a('s_waitcnt lgkmcnt(0)')
a('s_load_dword %s, s[26:27], 0' % s(sE))
a('s_add_u32 s4, s4, s48')
a('s_addc_u32 s5, s5, 0')
a('global_load_ushort %s, %s, s[4:5]' % (v(vX), v(vXw)))
a('s_add_u32 s10, s10, s55')
a('s_addc_u32 s11, s11, 0')
a('global_load_dword %s, %s, s[26:27]' % (v(T + 21), v(t3)))
a('global_load_lds_dwordx4 %s, s[10:11] offset:0%s' % (v(t0), NT))
a('v_add_u32 %s, 31744, %s' % (v(t0), v(t0)))
a('s_add_u32 s6, s6, s56')
a('s_addc_u32 s7, s7, 0')
a('global_load_lds_dwordx4 %s, s[10:11] offset:1024%s' % (v(t0), NT))
a('global_load_lds_dwordx4 %s, s[10:11] offset:2048%s' % (v(t1), NT))
a('v_add_u32 %s, 31744, %s' % (v(t1), v(t1)))
a('s_add_u32 s58, s58, %d' % KI)
a('global_load_lds_dwordx4 %s, s[10:11] offset:3072%s' % (v(t1), NT))
a('s_mov_b32 m0, s58')
if OPT.get('bar0', 1):
    a('s_barrier')
a('s_add_u32 s8, s8, s56')
a('s_addc_u32 s9, s9, 0')
for i in range(4):
    a('global_load_lds_dwordx4 %s, s[6:7] offset:%d%s' % (v(k0 + i), 1024 * i, NT))
a('s_add_u32 s58, s58, 4096')
a('s_mov_b32 m0, s58')
a('s_add_u32 s6, s6, 4096')
a('s_addc_u32 s7, s7, 0')
for i in range(4):
    a('global_load_lds_dwordx4 %s, s[6:7] offset:%d%s' % (v(k0 + i), 1024 * i, NT))
for i in range(4):
    a('global_load_dwordx4 %s, %s, s[8:9] offset:%d%s' % (v(vV + 4 * i, 4), v(t2), 1024 * i, NT))
a('s_add_u32 s8, s8, 4096')
a('s_addc_u32 s9, s9, 0')
VS = OPT.get('vsplit', 1)
vV2 = 228


def issue_v2(reg):
    for i in range(4):
        a('global_load_dwordx4 %s, %s, s[8:9] offset:%d%s' % (v(vV + 16 + 4 * i, 4), v(reg), 1024 * i, NT))


if VS:
    a('v_mov_b32 %s, %s' % (v(vV2), v(t2)))
else:
    issue_v2(t2)
stamp('issued')
a('s_add_u32 %s, s26, s57' % s(sLb))
a('s_addc_u32 %s, s27, 0' % s(sLb + 1))
a('s_lshl_b32 s55, %s, 14' % s(sJ))
a('s_add_u32 s55, s55, %d' % WS_G)
a('s_add_u32 %s, s26, s55' % s(sGb0))
a('s_addc_u32 %s, s27, 0' % s(sGb0 + 1))
a('s_add_u32 %s, %s, 0x40000' % (s(sGb1), s(sGb0)))
a('s_addc_u32 %s, %s, 0' % (s(sGb1 + 1), s(sGb0 + 1)))
a('s_getreg_b32 %s, hwreg(HW_REG_XCC_ID, 0, 4)' % s(sXcc))
a('s_mov_b32 %s, 0x40000' % s(sTo))
a('s_mov_b32 %s, %s' % (s(sCs), f32(math.log2(math.e) / math.sqrt(128.0))))
a('s_mov_b32 %s, 0xffffff00' % s(sMaskHi))
a('s_mov_b32 %s, %s' % (s(sInv512), f32(1.0 / 512)))
a('s_mov_b32 %s, %s' % (s(sEps), f32(1e-5)))
a('s_mov_b32 %s, %s' % (s(sNl2e), f32(-math.log2(math.e))))
a('s_mov_b32 %s, 0xffff0000' % s(sM0))
a('s_mov_b32 %s, 0xffff0000' % s(sM0 + 1))
a('s_mul_i32 %s, %s, 43' % (s(sC0), s(sGam)))
a('s_add_u32 %s, %s, 43' % (s(sCnt), s(sC0)))
a('s_lshr_b32 %s, %s, 3' % (s(sC0), s(sC0)))
a('s_lshr_b32 %s, %s, 3' % (s(sCnt), s(sCnt)))
a('s_sub_u32 %s, %s, %s' % (s(sCnt), s(sCnt), s(sC0)))
a('s_lshl_b32 %s, %s, 3' % (s(sCnt), s(sCnt)))
a('v_mov_b32 %s, 0' % v(vZero))
a('v_lshrrev_b32 %s, 3, %s' % (v(u8), v(vL)))
a('v_and_b32 %s, 7, %s' % (v(pos8), v(vL)))
a('s_add_u32 s55, s49, s48')
a('v_and_b32 %s, 31, %s' % (v(t0), v(vL)))
a('v_lshl_add_u32 %s, %s, 2, s55' % (v(vPubL), v(t0)))
a('v_lshrrev_b32 %s, 5, %s' % (v(t1), v(vL)))
a('v_lshl_add_u32 %s, %s, 10, %s' % (v(vPubL), v(t1), v(vPubL)))
a('v_lshl_add_u32 %s, %s, 2, %s' % (v(t1), v(pos8), v(u16)))
a('v_lshl_add_u32 %s, %s, 2, s55' % (v(vPubS), v(t1)))
a('s_lshl_b32 s55, %s, 6' % s(sW))
a('v_lshl_add_u32 %s, %s, 1, s55' % (v(vQw), v(t1)))
a('s_lshl_b32 s55, %s, 6' % s(sGam))
a('s_add_u32 s55, s55, s49')
a('v_lshl_add_u32 %s, %s, 2, s55' % (v(vPubG), v(pos16)))
a('v_and_b32 %s, 1, %s' % (v(t2), v(u16)))
a('v_mul_u32_u24 %s, 0x22000, %s' % (v(t2), v(t2)))
a('v_xor_b32 %s, %s, %s' % (v(vPubG), v(vPubG), v(t2)))
a('v_lshl_add_u32 %s, %s, 3, s55' % (v(229), v(pos8)))
a('v_and_b32 %s, 1, %s' % (v(t2), v(u8)))
a('v_lshl_add_u32 %s, %s, 11, %s' % (v(229), v(t2), v(229)))
a('v_bfe_u32 %s, %s, 4, 1' % (v(t2), v(vL)))
a('v_mul_u32_u24 %s, 0x22000, %s' % (v(t2), v(t2)))
a('v_xor_b32 %s, %s, %s' % (v(229), v(229), v(t2)))
a('v_lshrrev_b32 %s, 5, %s' % (v(t2), v(vL)))
a('v_lshl_add_u32 %s, %s, 18, %s' % (v(229), v(t2), v(229)))
a('s_lshl_b32 s55, %s, 2' % s(sJ))
a('s_add_u32 s55, s55, %s' % s(sW))
a('s_lshl_b32 s55, s55, 4')
a('s_add_u32 s55, s55, %d' % STATS)
a('v_mov_b32 %s, s55' % v(vStP))
a('v_lshlrev_b32 %s, 4, %s' % (v(t1), v(l3)))
a('v_lshl_add_u32 %s, %s, 6, %s' % (v(t1), v(u8), v(t1)))
a('v_add_u32 %s, %d, %s' % (v(vStC), STATS, v(t1)))
a('v_mov_b32 %s, 0xff' % v(t2))
a('v_cmp_eq_u32 vcc, 0, %s' % v(l3))
a('v_lshlrev_b32 %s, 4, %s' % (v(vOpR), v(u16)))
a('v_cndmask_b32 %s, 0, %s, vcc' % (v(vTagM0), v(t2)))
a('v_cmp_eq_u32 vcc, 0, %s' % v(u16))
a('v_and_b32 %s, 8, %s' % (v(t1), v(vL)))
a('v_cndmask_b32 %s, 0, %s, vcc' % (v(vTagM1), v(t2)))
a('v_lshl_add_u32 %s, %s, 4, %s' % (v(vXopR), v(t1), v(vOpR)))
a('v_and_b32 %s, 4, %s' % (v(t1), v(vL)))
a('v_cmp_eq_u32 vcc, 0, %s' % v(t1))
a('v_add_u32 %s, %d, %s' % (v(t1), HB, v(vXw)))
a('v_mov_b32 %s, %d' % (v(t2), DUMMY))
a('v_cndmask_b32 %s, %s, %s, vcc' % (v(vHw), v(t2), v(t1)))
a('v_lshrrev_b32 %s, 1, %s' % (v(t1), v(vXw)))
a('v_cmp_gt_u32 vcc, %s, %s' % (s(sCnt), v(t1)))
a('s_mul_i32 s55, %s, 640' % s(sW))
a('s_add_u32 s55, s55, %d' % O32)
a('v_cndmask_b32 %s, 0, -1, vcc' % v(vHmask))
a('v_lshl_add_u32 %s, %s, 5, %s' % (v(t1), v(pos16), v(vOpR)))
a('v_add_u32 %s, s55, %s' % (v(vO32w), v(t1)))
a('s_lshl_b32 s55, %s, 7' % s(sW))
a('s_add_u32 s55, s55, %d' % O32)
a('v_mul_u32_u24 %s, 640, %s' % (v(t1), v(u16)))
a('v_lshl_add_u32 %s, %s, 4, %s' % (v(t1), v(pos8), v(t1)))
a('v_add_u32 %s, s55, %s' % (v(vO32r), v(t1)))
a('v_lshlrev_b32 %s, 2, %s' % (v(vMr), v(u16)))
a('s_lshl_b32 s55, %s, 2' % s(sW))
a('v_mov_b32 %s, s55' % v(vMw))
a('v_and_b32 %s, 1, %s' % (v(t1), v(vL)))
a('v_cmp_eq_u32 vcc, 1, %s' % v(t1))
a('v_mov_b32 %s, 0xffff' % v(t1))
a('v_mov_b32 %s, 0xffff0000' % v(t2))
a('v_cndmask_b32 %s, %s, %s, vcc' % (v(t1), v(t1), v(t2)))
a('v_lshrrev_b32 %s, 1, %s' % (v(t2), v(pos16)))
for d in range(4):
    a('v_cmp_eq_u32 vcc, %d, %s' % (d, v(t2)))
    a('v_cndmask_b32 %s, 0, %s, vcc' % (v(vDm + d), v(t1)))
a('v_lshlrev_b32 %s, 2, %s' % (v(t0), v(t0)))
a('v_mov_b32 %s, 0x3f803f80' % v(t1))
a('ds_write_b32 %s, %s offset:%d' % (v(t0), v(t1), ONES))
a('v_lshlrev_b32 %s, 2, %s' % (v(t0), v(pos8)))
a('ds_write_b32 %s, %s offset:%d' % (v(t0), v(vZero), HB + 96))
r_, c_ = T + 16, T + 17
trq = T + 18
a('v_lshrrev_b32 %s, 2, %s' % (v(r_), v(pos16)))
a('v_and_b32 %s, 1, %s' % (v(t0), v(u16)))
a('v_lshl_add_u32 %s, %s, 2, %s' % (v(t1), v(t0), v(r_)))
a('v_lshlrev_b32 %s, 1, %s' % (v(t1), v(t1)))
a('s_lshl_b32 s55, %s, 2' % s(sW))
a('v_xor_b32 %s, s55, %s' % (v(t1), v(t1)))
a('v_lshlrev_b32 %s, 4, %s' % (v(t1), v(t1)))
a('v_lshl_add_u32 %s, %s, 3, %s' % (v(t1), v(l3), v(t1)))
a('v_lshl_add_u32 %s, %s, 3, %s' % (v(t2), v(u16), v(r_)))
a('v_lshl_add_u32 %s, %s, 8, %s' % (v(trq), v(t2), v(t1)))
a('v_xor_b32 %s, 32, %s' % (v(trq + 1), v(trq)))
a('v_lshrrev_b32 %s, 1, %s' % (v(t1), v(r_)))
a('v_lshl_add_u32 %s, %s, 1, %s' % (v(t1), v(t0), v(t1)))
a('v_xor_b32 %s, %s, %s' % (v(t1), s(sW), v(t1)))
a('v_lshlrev_b32 %s, 5, %s' % (v(t1), v(t1)))
a('v_lshl_add_u32 %s, %s, 3, %s' % (v(t1), v(l3), v(t1)))
a('v_lshl_add_u32 %s, %s, 7, %s' % (v(vTr), v(t2), v(t1)))
wo0, wo1, f0, f1 = 224, 225, 226, 227
a('v_and_b32 %s, 2, %s' % (v(t0), v(u8)))
a('v_xor_b32 %s, %s, %s' % (v(t0), v(t0), v(pos8)))
a('v_lshlrev_b32 %s, 4, %s' % (v(t1), v(t0)))
a('v_lshl_add_u32 %s, %s, 10, %s' % (v(wo0), v(u8), v(t1)))
a('v_xor_b32 %s, 64, %s' % (v(wo1), v(wo0)))
a('v_add_u32 %s, 7168, %s' % (v(wo1), v(wo1)))
a('v_mul_u32_u24 %s, 2752, %s' % (v(t2), v(u8)))
a('v_min_u32 %s, 5, %s' % (v(t1), v(t0)))
a('v_lshl_add_u32 %s, %s, 4, %s' % (v(f0), v(t1), v(t2)))
a('v_xor_b32 %s, 4, %s' % (v(t0), v(t0)))
a('v_min_u32 %s, 5, %s' % (v(t1), v(t0)))
a('v_lshl_add_u32 %s, %s, 4, %s' % (v(f1), v(t1), v(t2)))
a('v_add_u32 %s, %d, %s' % (v(f1), 8 * 2752 - 1024, v(f1)))
a('s_lshl_b32 s55, %s, 17' % s(sGam))
a('s_lshl_b32 s59, %s, 15' % s(sW))
a('s_add_u32 s55, s55, s59')
a('s_add_u32 s55, s55, s48')
a('s_add_u32 s12, s12, s55')
a('s_addc_u32 s13, s13, 0')
a('s_lshl_b32 s55, %s, 2' % s(sJ))
a('s_add_u32 s55, s55, %s' % s(sW))
a('s_mul_i32 s55, s55, %d' % (16 * 2752))
a('s_lshl_b32 s59, %s, 4' % s(sC0))
a('s_add_u32 s55, s55, s59')
a('s_add_u32 s16, s16, s55')
a('s_addc_u32 s17, s17, 0')
a('s_add_u32 s18, s18, s55')
a('s_addc_u32 s19, s19, 0')
a('s_lshl_b32 s55, %s, 13' % s(sC0))
a('s_min_u32 s59, %s, 2' % s(sW))
a('s_lshl_b32 s59, s59, 14')
a('s_add_u32 s55, s55, s59')
a('s_add_u32 s55, s55, s48')
a('s_add_u32 s20, s20, s55')
a('s_addc_u32 s21, s21, 0')
a('s_add_u32 s22, s22, s48')
a('s_addc_u32 s23, s23, 0')
a('s_waitcnt lgkmcnt(0)')
for k in range(10):
    a('s_add_u32 %s, %s, %d' % (s(sTag + k), s(sE), k + 1))


def issue_wo():
    a('s_add_u32 s55, s49, %d' % WO)
    a('s_mov_b32 m0, s55')
    a('v_add_u32 %s, %d, %s' % (v(T + 20), 2 * 7168, v(wo0)))
    a('global_load_lds_dwordx4 %s, s[12:13] offset:0%s' % (v(wo0), NT))
    a('global_load_lds_dwordx4 %s, s[12:13] offset:1024%s' % (v(wo1), NT))
    a('global_load_lds_dwordx4 %s, s[12:13] offset:2048%s' % (v(T + 20), NT))
    a('v_add_u32 %s, %d, %s' % (v(T + 20), 2 * 7168, v(wo1)))
    a('global_load_lds_dwordx4 %s, s[12:13] offset:3072%s' % (v(T + 20), NT))


def issue_w13():
    a('s_lshl_b32 s59, %s, 11' % s(sW))
    a('s_add_u32 s55, s59, %d' % W1)
    a('s_mov_b32 m0, s55')
    a('s_add_u32 s55, s59, %d' % W3)
    a('global_load_lds_dwordx4 %s, s[16:17] offset:0%s' % (v(f0), NT))
    a('global_load_lds_dwordx4 %s, s[16:17] offset:1024%s' % (v(f1), NT))
    a('s_mov_b32 m0, s55')
    a('s_nop 0')
    a('global_load_lds_dwordx4 %s, s[18:19] offset:0%s' % (v(f0), NT))
    a('global_load_lds_dwordx4 %s, s[18:19] offset:1024%s' % (v(f1), NT))


def issue_w2():
    a('s_min_u32 s59, %s, 2' % s(sW))
    a('s_lshl_b32 s59, s59, 11')
    a('s_add_u32 s55, s59, %d' % W2)
    a('s_mov_b32 m0, s55')
    a('s_nop 0')
    a('global_load_lds_dwordx4 %s, s[20:21] offset:0%s' % (v(wo0), NT))
    a('global_load_lds_dwordx4 %s, s[20:21] offset:1024%s' % (v(wo1), NT))


FF = OPT.get('ff', 1)


for layer in range(2):
    pre = 'L%d' % layer
    k1, k2, k4 = 3 * layer, 3 * layer + 1, 3 * layer + 2
    a('; ---- layer %d: x slice, query projection partials' % layer)
    if layer == 0:
        nv = 4 if VS else 8
        a('s_waitcnt vmcnt(%d)' % (13 + nv))
        a('ds_write_b16 %s, %s offset:%d' % (v(vXw), v(vX), XB))
        a('v_lshlrev_b32 %s, 16, %s' % (v(vX), v(vX)))
        ln_stats_publish(k1, first=True)
        a('v_mov_b32 %s, %s' % (v(T + 8), s(sE)))
        a('v_mov_b32 %s, %s' % (v(T + 9), s(sE)))
        a('global_store_dwordx2 %s, %s, %s sc1' % (v(229), v(T + 8, 2), s(sGb0, 2)))
        a('s_waitcnt vmcnt(%d) lgkmcnt(0)' % (10 + nv))
        stamp('wq landed')
        a('s_barrier')
        tr_reads(vWQ, trq, WQ, 2, 8192, 1024)
        tr_reads(vWQ + 8, trq + 1, WQ, 2, 8192, 1024)
    else:
        a('s_waitcnt vmcnt(0)')
        x_gather(1, G_D)
        stamp(pre + ' E5 ok')
        a('ds_write_b16 %s, %s offset:%d' % (v(vXw), v(T), XB))
        a('v_and_b32 %s, 0xffff0000, %s' % (v(vX), v(T)))
        ln_stats_publish(k1)
        a('s_waitcnt lgkmcnt(0)')
        a('s_barrier')
    proj_phase(vWQ, k1, layer, first=(layer == 0))
    stamp(pre + ' Q pub')
    a('; ---- layer %d: gather q' % layer)
    r = vP
    if layer == 0:
        if VS:
            issue_v2(vV2)
        a('v_xor_b32 %s, %s, %s' % (v(t0), v(u16), v(pos16)))
        a('v_lshlrev_b32 %s, 4, %s' % (v(t0), v(t0)))
        a('v_lshl_add_u32 %s, %s, 8, %s' % (v(t0), v(pos16), v(t0)))
        a('s_lshl_b32 s55, %s, 13' % s(sW))
        a('s_add_u32 s55, s55, %d' % KI)
        a('v_add_u32 %s, s55, %s' % (v(t0), v(t0)))
        for kk in range(1, 4):
            a('v_xor_b32 %s, %d, %s' % (v(t0 + kk), kk << 6, v(t0)))
        a('s_waitcnt vmcnt(11)')
        stamp('K landed')
        for g in range(2):
            for kk in range(4):
                a('ds_read_b128 %s, %s offset:%d' % (v(vK + 16 * g + 4 * kk, 4), v(t0 + kk), 4096 * g))

        def chk():
            a('v_bitop3_b32 %s, %s, %s, %s bitop3:0x7e' % (v(T + 23), v(r), v(r + 4), s(sTag + k1)))
            a('v_cmp_ne_u32 %s, %s, %s' % (s(sT1, 2), s(sTag + k1), v(r + 10)))
            a('v_cmp_ne_u32_sdwa vcc, %s, %s src0_sel:BYTE_0 src1_sel:DWORD' % (v(T + 23), v(vZero)))
            a('s_or_b64 vcc, vcc, %s' % s(sT1, 2))
        if OPT.get('e1late'):
            a('s_waitcnt vmcnt(%d)' % (4 if VS and OPT['e1late'] == 1 else 8 - OPT['e1late']))

        def late_loads():
            issue_wo()
            if FF == 0:
                issue_w13()
                issue_w2()
        poll([(r + 8, vStC, sLb, 0), (r, vCons, sLb, BUF_A), (r + 4, vCons, sLb, BUF_X)], chk, pre_wait=late_loads, first_cnt=4 if FF else 10)
        a('v_cmp_ne_u32 vcc, %s, %s' % (s(sXcc), v(r + 11)))
        a('v_and_b32 %s, %s, %s' % (v(r + 4), s(sMaskHi), v(r + 4)))
        a('s_cmp_eq_u64 vcc, 0')
        a('s_cselect_b32 %s, 1, 0' % s(sFast))
        reduce_j(r + 4, vCq)
        ln_stats_consume(r + 8)
    else:
        l_gather(k1, [(r, vCons, sLb, BUF_B)], chk_byte([r], sTag + k1), lambda: ln_stats_consume(r + 8))
    stamp(pre + ' E1 ok')
    a('v_and_b32 %s, %s, %s' % (v(r), s(sMaskHi), v(r)))
    reduce_j(r, r)
    a('v_fma_f32 %s, -%s, %s, %s' % (v(r), v(vMean), v(vCq), v(r)))
    a('v_mul_f32 %s, %s, %s' % (v(r), v(r), v(vRs)))
    a('v_cvt_pk_bf16_f32 %s, %s, %s' % (v(r), v(r), v(r)))
    a('ds_write_b16 %s, %s offset:%d' % (v(vQw), v(r), QB))
    a('s_waitcnt lgkmcnt(0)')
    a('s_barrier')
    a('; ---- layer %d: attention over this member\'s 128 keys' % layer)
    for kk in range(4):
        a('ds_read_b128 %s, %s offset:%d' % (v(vA + 4 * kk, 4), v(vOpR), QB + 64 * kk))
    for kk in range(4):
        a('s_waitcnt lgkmcnt(%d)' % (0 if DIAG else 3 - kk))
        for g in range(2):
            a('v_mfma_f32_16x16x32_bf16 %s, %s, %s, %s' % (v(vD + 4 * g, 4), v(vA + 4 * kk, 4), v(vK + 16 * g + 4 * kk, 4),
                                                         '0' if kk == 0 else v(vD + 4 * g, 4)))
    sg = T + 4
    mx, e0, e1, p0, p1, q0, q1 = T, T + 1, T + 2, T + 8, T + 9, T + 10, T + 11
    a('v_mov_b32 %s, %s' % (v(sg + 2), s(sTag + k2)))
    a('v_mov_b32 %s, %s' % (v(sg + 3), s(sXcc)))
    a('v_max_f32 %s, %s, %s' % (v(mx), v(vD), v(vD + 4)))
    for ro in (8, 4, 2, 1):
        a('v_max_f32_dpp %s, %s, %s row_ror:%d row_mask:0xf bank_mask:0xf' % (v(mx), v(mx), v(mx), ro))
    a('v_mul_f32 %s, %s, %s' % (v(sg), s(sCs), v(mx)))
    a('v_fma_f32 %s, %s, %s, -%s' % (v(e0), v(vD), s(sCs), v(sg)))
    a('v_fma_f32 %s, %s, %s, -%s' % (v(e1), v(vD + 4), s(sCs), v(sg)))
    a('v_exp_f32 %s, %s' % (v(e0), v(e0)))
    a('v_exp_f32 %s, %s' % (v(e1), v(e1)))
    a('ds_write_b32 %s, %s offset:%d' % (v(vMw), v(sg), MB))
    a('v_cvt_pk_bf16_f32 %s, %s, %s' % (v(p0), v(e0), v(e0)))
    a('v_cvt_pk_bf16_f32 %s, %s, %s' % (v(p1), v(e1), v(e1)))
    a('v_cvt_pk_bf16_f32 %s, %s, %s' % (v(q0), v(e0), v(e0)))
    a('v_cvt_pk_bf16_f32 %s, %s, %s' % (v(q1), v(e1), v(e1)))
    for sh in (1, 2, 3):
        a('v_mov_b32_dpp %s, %s row_shl:%d row_mask:0x%x bank_mask:0xf' % (v(q0), v(p0), sh, 1 << sh))
        a('v_mov_b32_dpp %s, %s row_shl:%d row_mask:0x%x bank_mask:0xf' % (v(q1), v(p1), sh, 1 << sh))
    a('v_add_f32 %s, %s, %s' % (v(sg + 1), v(e0), v(e1)))

    def ands(i):
        for d in range(4):
            a('v_and_b32_dpp %s, %s, %s row_newbcast:%d row_mask:0xf bank_mask:0xf' % (
                v(vA + 4 * (i & 1) + d), v(q0 + (i >> 2)), v(vDm + d), 4 * (i & 3)))
    ands(0)
    for i in range(8):
        if i + 1 < 8:
            ands(i + 1)
        a('v_mfma_f32_16x16x32_bf16 %s, %s, %s, %s' % (v(vD + 8, 4), v(vA + 4 * (i & 1), 4), v(vV + 4 * i, 4), '0' if i == 0 else v(vD + 8, 4)))
    for ro in (8, 4, 2, 1):
        a('v_add_f32_dpp %s, %s, %s row_ror:%d row_mask:0xf bank_mask:0xf' % (v(sg + 1), v(sg + 1), v(sg + 1), ro))
    setfast()
    a('s_mov_b32 exec_hi, 0')
    a('ds_write_b128 %s, %s' % (v(vO32w), v(vD + 8, 4)))
    a('s_mov_b64 exec, 1')
    lstore('global_store_dwordx4', v(vStP), v(sg, 4), s(sLb, 2), 512 * (k2 & 1))
    a('s_mov_b64 exec, -1')
    a('s_waitcnt lgkmcnt(0)')
    a('s_barrier')
    a('ds_read_b128 %s, %s offset:%d' % (v(T + 8, 4), v(vZero), MB))
    a('ds_read_b32 %s, %s offset:%d' % (v(T + 12), v(vMr), MB))
    a('ds_read_b128 %s, %s' % (v(r, 4), v(vO32r)))
    a('s_waitcnt lgkmcnt(1)')
    a('v_max3_f32 %s, %s, %s, %s' % (v(T + 8), v(T + 8), v(T + 9), v(T + 10)))
    a('v_max_f32 %s, %s, %s' % (v(T + 8), v(T + 8), v(T + 11)))
    a('v_sub_f32 %s, %s, %s' % (v(T + 12), v(T + 12), v(T + 8)))
    a('v_exp_f32 %s, %s' % (v(T + 12), v(T + 12)))
    stats_load(k2)
    setfast()
    a('s_waitcnt lgkmcnt(0)')
    a('v_pk_mul_f32 %s, %s, %s op_sel_hi:[1,0]' % (v(r + 2, 2), v(r + 2, 2), v(T + 12, 2)))
    a('v_pk_mul_f32 %s, %s, %s op_sel_hi:[1,0]' % (v(r, 2), v(r, 2), v(T + 12, 2)))
    a('v_permlane32_swap_b32 %s, %s' % (v(r + 1), v(r + 3)))
    a('v_permlane32_swap_b32 %s, %s' % (v(r), v(r + 2)))
    a('v_add_f32 %s, %s, %s' % (v(r + 1), v(r + 1), v(r + 3)))
    a('v_add_f32 %s, %s, %s' % (v(r), v(r), v(r + 2)))
    a('v_permlane16_swap_b32 %s, %s' % (v(r), v(r + 1)))
    a('v_add_f32 %s, %s, %s' % (v(r), v(r), v(r + 1)))
    a('v_bfi_b32 %s, %s, %s, %s' % (v(T), v(vTagM1), s(sTag + k2), v(r)))
    lstore('global_store_dword', v(vPubS), v(T), s(sLb, 2), BUF_A if k2 % 2 == 0 else BUF_B)
    stamp(pre + ' S pub')
    a('; ---- layer %d: combine the 8 key blocks, output projection partials' % layer)

    def sm_stats():
        mj, mm = T, T + 1
        a('v_mov_b32 %s, %s' % (v(mj), v(r + 8)))
        allred('v_max_f32', mj, T + 2, [0, 1])
        a('v_mov_b32 %s, %s' % (v(mm), v(mj)))
        allred('v_max_f32', mm, T + 2, [3, 4, 5])
        a('v_sub_f32 %s, %s, %s' % (v(r + 8), v(r + 8), v(mm)))
        a('v_sub_f32 %s, %s, %s' % (v(mj), v(mj), v(mm)))
        a('v_exp_f32 %s, %s' % (v(r + 8), v(r + 8)))
        a('v_exp_f32 %s, %s' % (v(mj), v(mj)))
        a('v_mul_f32 %s, %s, %s' % (v(r + 8), v(r + 8), v(r + 9)))
        allred('v_add_f32', r + 8, T + 2, [0, 1, 3, 4, 5])
        a('v_rcp_f32 %s, %s' % (v(r + 8), v(r + 8)))
        a('v_mul_f32 %s, %s, %s' % (v(vF), v(mj), v(r + 8)))
    l_gather(k2, [(r, vCons, sLb, BUF_A if k2 % 2 == 0 else BUF_B)], chk_byte([r], sTag + k2), sm_stats)
    stamp(pre + ' E2 ok')
    a('v_and_b32 %s, %s, %s' % (v(r), s(sMaskHi), v(r)))
    a('v_pk_mul_f32 %s, %s, %s op_sel_hi:[1,0]' % (v(r + 2, 2), v(r + 2, 2), v(vF, 2)))
    a('v_pk_mul_f32 %s, %s, %s op_sel_hi:[1,0]' % (v(r, 2), v(r, 2), v(vF, 2)))
    reduce_j(r, r)
    a('v_cvt_pk_bf16_f32 %s, %s, %s' % (v(r), v(r), v(r)))
    a('ds_write_b16 %s, %s offset:%d' % (v(vQw), v(r), OB))
    if layer == 0 and FF == 2:
        issue_w13()
        issue_w2()
    a('s_waitcnt lgkmcnt(0)')
    a('s_barrier')
    if layer == 0:
        tr_reads(vWO, vTr, WO, 4, 4096, 512)
    gemv_publish_g(4, vWO, OB, 2 * layer, G_C)
    stamp(pre + ' O pub')
    a('; ---- layer %d: x slice, gate/up partials' % layer)
    if layer == 0 and FF == 1:
        issue_w13()
        a('s_waitcnt vmcnt(4)')
        x_gather(0, G_C, after_issue=issue_w2, cnt=2)
    else:
        a('s_waitcnt vmcnt(0)')
        x_gather(2 * layer, G_C)
    stamp(pre + ' E3 ok')
    a('ds_write_b16 %s, %s offset:%d' % (v(vXw), v(T), XB))
    a('v_and_b32 %s, 0xffff0000, %s' % (v(vX), v(T)))
    ln_stats_publish(k4)
    a('s_waitcnt lgkmcnt(0)')
    a('s_barrier')
    idle = newlabel('idle')
    if layer == 0:
        tr_reads(vW13, vTr, W1, 2, 4096, 512)
        tr_reads(vW13 + 8, vTr, W3, 2, 4096, 512)
    a('s_cmp_eq_u32 %s, 3' % s(sW))
    a('s_cbranch_scc1 %s' % idle)
    proj_phase(vW13, k4, layer)
    stamp(pre + ' G pub')
    a('; ---- layer %d: gather gate/up, activation' % layer)
    if layer == 0:
        l_gather(k4, [(r, vCons, sLb, BUF_A), (r + 4, vCons, sLb, BUF_X)], chk_byte([r, r + 4], sTag + k4), lambda: ln_stats_consume(r + 8))
        a('v_and_b32 %s, %s, %s' % (v(r + 4), s(sMaskHi), v(r + 4)))
        reduce_j(r + 4, vCg)
    else:
        l_gather(k4, [(r, vCons, sLb, BUF_B)], chk_byte([r], sTag + k4), lambda: ln_stats_consume(r + 8))
    stamp(pre + ' E4 ok')
    a('v_and_b32 %s, %s, %s' % (v(r), s(sMaskHi), v(r)))
    reduce_j(r, r)
    a('v_fma_f32 %s, -%s, %s, %s' % (v(r), v(vMean), v(vCg), v(r)))
    a('v_mul_f32 %s, %s, %s' % (v(r), v(r), v(vRs)))
    bf16r(r, r)
    a('v_mul_f32 %s, %s, %s' % (v(r + 1), s(sNl2e), v(r)))
    a('v_exp_f32 %s, %s' % (v(r + 1), v(r + 1)))
    a('v_mov_b32_dpp %s, %s row_shl:4 row_mask:0xf bank_mask:0xf' % (v(r + 2), v(r)))
    a('v_add_f32 %s, 1.0, %s' % (v(r + 1), v(r + 1)))
    a('v_rcp_f32 %s, %s' % (v(r + 1), v(r + 1)))
    a('v_mul_f32 %s, %s, %s' % (v(r), v(r), v(r + 1)))
    bf16r(r, r)
    a('v_mul_f32 %s, %s, %s' % (v(r), v(r), v(r + 2)))
    a('v_cvt_pk_bf16_f32 %s, %s, %s' % (v(r), v(r), v(r)))
    a('v_and_b32 %s, %s, %s' % (v(r), v(vHmask), v(r)))
    a('ds_write_b16 %s, %s' % (v(vHw), v(r)))
    a.label(idle)
    a('s_waitcnt vmcnt(0) lgkmcnt(0)' if layer == 0 else 's_waitcnt lgkmcnt(0)')
    a('s_barrier')
    if layer == 0:
        tr_reads(vW2, vTr, W2, 1, 4096, 512)
        a('v_and_b32 %s, 32, %s' % (v(T + 1), v(vL)))
        a('v_lshlrev_b32 %s, 6, %s' % (v(T + 1), v(T + 1)))
        a('v_sub_u32 %s, %s, %s' % (v(T + 1), v(vTr), v(T + 1)))
        tr_reads(vW2 + 4, T + 1, W2 + 4096, 1, 4096, 512)
    gemv_publish_g(2, vW2, HB, 2 * layer + 1, G_D)
    stamp(pre + ' D pub')

a('; ---- final sum (group 0 only)')
a('s_cmp_lg_u32 %s, 0' % s(sGam))
a('s_cbranch_scc1 L_fin')
a('s_waitcnt vmcnt(0)')
x_gather(3, G_D)
a('s_mov_b32 exec_lo, 0x000f000f')
a('s_mov_b32 exec_hi, 0x000f000f')
a('global_store_short %s, %s, s[22:23]' % (v(vXw), v(T)))
a('s_or_b32 s55, %s, %s' % (s(sJ), s(sW)))
a('s_cmp_lg_u32 s55, 0')
a('s_cbranch_scc1 L_fin')
a('s_add_u32 s55, %s, 16' % s(sE))
a('v_mov_b32 %s, s55' % v(T + 1))
a('s_mov_b64 exec, 1')
a('global_store_dword %s, %s, s[26:27]' % (v(vZero), v(T + 1)))
a.label('L_fin')
if OPT.get('delay'):
    ins = 's_memtime' if OPT['delay'] == 1 else 's_memrealtime'
    if 'only' in OPT:
        a('s_cmp_lg_u32 s2, %d' % OPT['only'])
        a('s_cbranch_scc1 L_end')
    a('%s s[4:5]' % ins)
    a('s_waitcnt lgkmcnt(0)')
    if OPT['delay'] == 3:
        a('s_mov_b32 s4, s100')
    a.label('L_dly')
    a('%s s[6:7]' % ins)
    a('s_waitcnt lgkmcnt(0)')
    a('s_sub_u32 s8, s6, s4')
    a('s_cmp_lt_u32 s8, %d' % {1: 24000, 2: 1000, 3: OPT.get('until', 3000)}[OPT['delay']])
    a('s_cbranch_scc1 L_dly')
if DIAG:
    a('s_mov_b64 exec, -1')
    stamp_regs.append(4)
    stamps_n = len(stamps)
    a('s_memrealtime s[4:5]')
    a('s_waitcnt lgkmcnt(0)')
    a('v_mov_b32 %s, 0' % v(T))
    for i in range(stamps_n):
        a('v_writelane_b32 %s, %s, %d' % (v(T), s(stamp_regs[i]), i))
    a('v_writelane_b32 %s, s4, %d' % (v(T), stamps_n))
    a('s_lshl_b32 s55, s2, 2')
    a('s_add_u32 s55, s55, %s' % s(sW))
    a('s_lshl_b32 s55, s55, 8')
    a('s_add_u32 s55, s55, %d' % WS_DIAG)
    a('v_lshl_add_u32 %s, %s, 2, s55' % (v(T + 1), v(vL)))
    a('global_store_dword %s, %s, s[26:27]' % (v(T + 1), v(T)))
    if DIAG == 3:
        a('s_or_b32 s55, s2, %s' % s(sW))
        a('s_cmp_lg_u32 s55, 0')
        a('s_cbranch_scc1 L_end')
        a('v_subrev_u32 %s, s70, %s' % (v(T), v(T)))
        a('v_lshlrev_b32 %s, 2, %s' % (v(T + 1), v(vL)))
        a('global_store_dword %s, %s, s[24:25]' % (v(T + 1), v(T)))
    stamps.append('end')
a.label('L_end')
a('s_endpgm')
for l1, ins, l2 in slow:
    a.label(l1)
    a.raw('    ' + ins)
    a.raw('    s_branch %s' % l2)
a.label('L_codeend')
a.raw('''.section .rodata,"a"
.p2align 6
.amdhsa_kernel %s_kernel
  .amdhsa_next_free_vgpr %d
  .amdhsa_next_free_sgpr 102
  .amdhsa_accum_offset %d
  .amdhsa_group_segment_fixed_size 0
  .amdhsa_kernarg_size 96
  .amdhsa_user_sgpr_count 2
  .amdhsa_user_sgpr_kernarg_segment_ptr 1
  .amdhsa_system_sgpr_workgroup_id_x 1
  .amdhsa_float_denorm_mode_32 3
.end_amdhsa_kernel''' % (NAME, NVGPR, NVGPR))
sys.stdout.write(a.text())
if DIAG:
    sys.stderr.write('STAMPS ' + '|'.join(stamps) + '\n')
sys.stderr.write('nops inserted: %d\n' % a.nops)
```

```python
import re

TRANS = ('v_exp_f32', 'v_log_f32', 'v_rcp_f32', 'v_rsq_f32', 'v_sqrt_f32', 'v_sin_f32', 'v_cos_f32')


def regs_of(tok):
    tok = tok.strip()
    neg = tok.lstrip('-')
    m = re.fullmatch(r'abs\((.*)\)', neg)
    if m:
        neg = m.group(1)
    m = re.fullmatch(r'([vsa])(\d+)', neg)
    if m:
        return {(m.group(1), int(m.group(2)))}
    m = re.fullmatch(r'([vsa])\[(\d+):(\d+)\]', neg)
    if m:
        return {(m.group(1), k) for k in range(int(m.group(2)), int(m.group(3)) + 1)}
    if neg == 'vcc':
        return {('s', 'vcc_lo'), ('s', 'vcc_hi')}
    if neg in ('vcc_lo', 'vcc_hi'):
        return {('s', neg)}
    if neg == 'exec':
        return {('s', 'exec_lo'), ('s', 'exec_hi')}
    if neg in ('exec_lo', 'exec_hi', 'm0'):
        return {('s', neg)}
    return set()


class Ins:
    def __init__(self, text):
        self.text = text
        t = text.split(';')[0].strip()
        self.op = t.split()[0]
        rest = t[len(self.op):].strip()
        ops, depth, cur = [], 0, ''
        for ch in rest:
            if ch in '[(':
                depth += 1
            if ch in '])':
                depth -= 1
            if ch == ',' and depth == 0:
                ops.append(cur.strip())
                cur = ''
            else:
                cur += ch
        if cur.strip():
            ops.append(cur.strip())
        mods = ''
        if ops:
            last = ops[-1].split()
            ops[-1] = last[0]
            mods = ' '.join(last[1:])
        self.ops, self.mods = ops, mods
        op = self.op
        R = [regs_of(o) for o in ops]
        self.valu = op.startswith('v_') and not op.startswith('v_mfma') and not op.startswith('v_smfmac')
        self.mfma = op.startswith('v_mfma')
        self.salu = op.startswith('s_')
        self.ds = op.startswith('ds_')
        self.vmem = op.startswith('global_') or op.startswith('buffer_')
        self.dpp = '_dpp' in op
        self.perm = op.startswith('v_permlane')
        self.trans = any(op.startswith(x) for x in TRANS)
        self.rdlane = op.startswith('v_readlane') or op.startswith('v_readfirstlane')
        self.w, self.r = set(), set()
        self.dppsrc = set()
        if self.dpp:
            for x in R[1:]:
                self.dppsrc |= x
            if 'row_mask:0xf' not in text or 'row_sh' in text or op.startswith('v_fmac'):
                self.dppsrc |= R[0]
        self.srcC = set()
        self.srcAB = set()
        self.stdata = set()
        self.ws = 1
        if op == 's_nop':
            self.ws = int(ops[0], 0) + 1
        elif self.mfma:
            self.w = R[0]
            self.srcAB = R[1] | R[2]
            self.srcC = R[3]
            self.r = self.srcAB | self.srcC
        elif self.perm and 'swap' in op:
            self.w = R[0] | R[1]
            self.r = R[0] | R[1]
        elif self.valu:
            self.w = set(R[0])
            for x in R[1:]:
                self.r |= x
            if op.startswith(('v_fmac', 'v_dot2c', 'v_writelane', 'v_pk_fmac')) or self.dpp:
                self.r |= R[0]
            if op.startswith(('v_add_co', 'v_sub_co', 'v_addc_co')):
                self.w |= R[1]
        elif self.ds:
            if op.startswith('ds_read') or op.startswith('ds_bpermute'):
                self.w = R[0]
                for x in R[1:]:
                    self.r |= x
            else:
                for x in R:
                    self.r |= x
        elif self.vmem:
            if 'lds' in op or ' lds' in ' ' + mods:
                for x in R:
                    self.r |= x
                self.r |= {('s', 'm0')}
                self.isdma = True
            elif 'load' in op:
                self.w = R[0]
                for x in R[1:]:
                    self.r |= x
            else:
                for x in R:
                    self.r |= x
                if 'x4' in op or 'x3' in op:
                    self.stdata = R[1] if op.startswith('global_') else R[0]
        elif self.salu:
            if op.startswith(('s_cmp', 's_cbranch', 's_branch', 's_waitcnt', 's_barrier', 's_endpgm', 's_setprio', 's_sleep', 's_bitcmp')):
                for x in R:
                    self.r |= x
            elif ops:
                self.w = R[0]
                for x in R[1:]:
                    self.r |= x


def need(p, c):
    n = 0
    pv = {x for x in p.w if x[0] in 'va'}
    ps = {x for x in p.w if x[0] == 's'}
    if p.valu:
        if c.dpp and pv & c.dppsrc:
            n = max(n, 2)
        if c.perm and pv & c.r:
            n = max(n, 2)
        if c.mfma and pv & c.r:
            n = max(n, 2)
        if c.rdlane and pv & c.r:
            n = max(n, 1)
        if p.trans and c.valu and not c.trans and pv & c.r:
            n = max(n, 1)
        if p.trans and c.valu and pv & c.r:
            n = max(n, 1)
        if ps:
            if c.valu and ps & c.r:
                n = max(n, 4 if c.op.startswith(('v_readlane', 'v_writelane')) else 2)
            if c.vmem and ps & c.r:
                n = max(n, 5)
            if c.salu and ps & c.r and p.rdlane:
                n = max(n, 1)
        if p.op.endswith('_sdwa') and pv and c.valu and pv & c.r:
            n = max(n, 1)
    if p.mfma:
        if c.mfma:
            if p.w & c.srcAB:
                n = max(n, 8)
            if p.w & c.srcC and not (p.w == c.srcC and p.op == c.op):
                n = max(n, 6)
        elif (c.valu or c.ds or c.vmem) and p.w & (c.r | c.w):
            n = max(n, 8)
        if c.valu and p.srcC & c.w:
            n = max(n, 3)
    if p.salu and ('s', 'm0') in p.w and getattr(c, 'isdma', False):
        n = max(n, 1)
    if p.stdata and (c.valu or c.vmem or c.ds) and p.stdata & c.w:
        n = max(n, 2)
    return n


class Asm:
    def __init__(self):
        self.lines = []
        self.hist = []
        self.nops = 0

    def raw(self, s):
        self.lines.append(s)

    def label(self, s):
        self.lines.append(s + ':')

    def comment(self, s):
        self.lines.append('    ; ' + s)

    def __call__(self, text):
        for t in text.split('\n'):
            t = t.strip()
            if not t:
                continue
            if t.startswith(';'):
                self.lines.append('    ' + t)
                continue
            if t.endswith(':'):
                self.lines.append(t)
                continue
            c = Ins(t)
            pad, dist = 0, 0
            for p in reversed(self.hist):
                if dist >= 12:
                    break
                pad = max(pad, need(p, c) - dist)
                dist += p.ws
            if pad > 0:
                n = Ins('s_nop %d' % (pad - 1))
                self.hist.append(n)
                self.lines.append('    s_nop %d' % (pad - 1))
                self.nops += pad
            self.hist.append(c)
            self.lines.append('    ' + t)

    def text(self):
        return '\n'.join(self.lines) + '\n'
```

```python
import sys, math, struct
from asm import Asm

NAME = 'interleave_layers__sliding_block_cached__glu_gated_swiglu__decode'
OPT = dict(diag=0, fast=1, nt=1, kw=5, fe=0, wol=1, probe=1, vw=1, thr=90, pages=1, cnt=0, early=2, d0=0, refresh=0, spipe=1, late_rs=1, na=0, nsl=0, w2e=0, ff=2, vlate=0, fl=0, flp=0, pad=0)
for a_ in sys.argv[1:]:
    k_, v_ = a_.split('=')
    OPT[k_] = int(v_)
DIAG = OPT['diag']
NT = ' nt' if OPT['nt'] else ''
STAGE = not DIAG or DIAG == 6

XB, ONES, QB, OB, HB, MB, DUMMY, PB = 0, 128, 256, 512, 768, 896, 960, 1024
WQ, VI, WO = 4096, 20480, 53248
W1, W3, W2 = WO + 16384, WO + 24576, WO + 32768
KI = WO + 38912
LDS_BYTES = KI + 32768
WS_F = 0x10000
WS_L, WS_P, WS_G, WS_DIAG = 0x40000, 0xc0000, 0x100000, 0x200000
WS_L2D = 0x140000 + 0x100000 * OPT['pad']
BUF_A, BUF_X, BUF_B, STATS, VOTES = 0, 1024, 2048, 3072, 7168
PAD = OPT['pad']
GOFF = 4096 * PAD
G_C, G_D, G_H = -GOFF, (2048 << PAD) - GOFF, 1024 << PAD
G_X = (0x20000 << PAD) | 0x2000
WSH = 1 - PAD

vL, vCons, vPubL, vPw, vPubG, vStP, vStC, vTagM, vStP2 = range(1, 10)
vXw, vQw, vHw, vOpR, vXopR, vConsG, vConsG0, vCs, vZero, vMw = range(10, 20)
trq, vTr, vHmask, vX, vCq, vCg, vMean, vRs = 20, 22, 23, 24, 25, 26, 27, 28
vMr, vF = 29, 30
vWQ, vK, vV, vWO, vW13, vW2 = 32, 48, 80, 112, 128, 144
wo0, wo1, f0, f1, vPre, vVo = 144, 145, 146, 147, 148, 149
T = 152
vC = T + 12
vA = 176
vD = 192
vP = 224
vSt, vSt4 = 232, 236
vDs, vSs = [240, 244], [248, 252]
NVGPR = 256
sW, sJ, sGam, sPr, sE, sC0, sCnt, sXcc, sTo = 28, 29, 30, 31, 32, 33, 34, 35, 36
sLb, sGb0, sGb1 = 38, 40, 14
sPc, sT1 = 42, 44
sCs, sMaskHi, sInv512, sEps, sNl2e = 50, 51, 52, 53, 54
sM0, sM1, sHi, sM2 = 56, 42, 46, 58
sTag = 60

a = Asm()
stamp_regs = list(range(70, 102, 2))
stamps = []
nstamp = [0]
lbl = [0]
FAST = [False]


def v(n, cnt=1):
    return 'v%d' % n if cnt == 1 else 'v[%d:%d]' % (n, n + cnt - 1)


def s(n, cnt=1):
    return 's%d' % n if cnt == 1 else 's[%d:%d]' % (n, n + cnt - 1)


def stamp(name):
    nstamp[0] += 1
    if OPT.get('delay') == 3 and OPT.get('at', 1) == nstamp[0]:
        a('s_memrealtime s[100:101]')
        sys.stderr.write('delay anchored at ' + name + '\n')
    keep = {0: False, 1: name[:2] not in ('L1', 'x ') and name[0] not in 'Gz', 2: name[:2] == 'L1', 5: name[0] == 'G' or name[3:] in ('O pub', 'D pub', 'E3 ok', 'E5 ok') or name in ('L0 E1 ok', 'L0 S pub', 'L0 E2 ok'),
            6: False, 7: name[:2] in ('L1', 'x '), 8: name[:2] == 'z1' or name in ('L1 E1 ok', 'L1 S pub', 'L1 E2 ok', 'L1 O pub', 'L1 E5 ok', 'L1 Q pub')}[DIAG]
    if not (keep or DIAG and name == 'start'):
        return
    if name not in stamps:
        if len(stamps) >= len(stamp_regs):
            return
        stamps.append(name)
    r = stamp_regs[stamps.index(name)]
    if OPT['cnt'] and name != 'start':
        a('s_sub_u32 %s, 0x40000, %s' % (s(r), s(sTo)))
    else:
        a('%s %s' % ('s_memtime' if DIAG in (7, 8) and name != 'x rt0' else 's_memrealtime', s(r, 2)))


def f32(x):
    return '0x%08x' % struct.unpack('<I', struct.pack('<f', x))[0]


def newlabel(p):
    lbl[0] += 1
    return 'L_%s_%d' % (p, lbl[0])


def lgkm(n):
    a('s_waitcnt lgkmcnt(%d)' % (n if STAGE else 0))


def mfma(d, x, y, c=None):
    a('v_mfma_f32_16x16x32_bf16 %s, %s, %s, %s' % (v(d, 4), v(x, 4), v(y, 4), '0' if c is None else v(c, 4)))


def dpp(op, d, x, y, ctl, rm=0xf):
    a('%s_dpp %s, %s, %s %s row_mask:0x%x bank_mask:0xf' % (op, v(d), v(x), v(y), ctl, rm))


X1, X2 = 'quad_perm:[1,0,3,2]', 'quad_perm:[2,3,0,1]'


def lstore(op, addr, data, off):
    a('%s %s, %s, %s offset:%d%s' % (op, addr, data, s(sLb, 2), off, '' if FAST[0] else ' sc1'))


def gload(d, vo, b, im):
    a('global_load_dwordx4 %s, %s, %s offset:%d sc1' % (v(d, 4), v(vo), s(b, 2), im))


def tick():
    a('s_sub_u32 %s, %s, 1' % (s(sTo), s(sTo)))
    a('s_cbranch_scc1 L_end')


def poll(loads, check, spec, work=None, cnt=0, issued=False, backoff=0):
    top, ent = newlabel('poll'), newlabel('pent')
    if not issued:
        for x in loads:
            gload(*x)
    if work:
        work()
    a('s_branch %s' % ent)
    a.label(top)
    tick()
    if backoff:
        a('s_sleep %d' % backoff)
    for x in loads:
        gload(*x)
    if cnt:
        a('s_waitcnt vmcnt(0)')
    a.label(ent)
    a('s_waitcnt vmcnt(%d)' % cnt)
    check()
    if spec:
        spec()
    a('s_cbranch_vccnz %s' % top)


def ring2(sets, issue, check, spec, cnt1, cnt0, first):
    top, ent, done = newlabel('ring'), newlabel('rent'), newlabel('rdone')
    a('s_branch %s' % ent)
    a.label(top)
    tick()
    issue(sets[0])
    a('s_waitcnt vmcnt(%d)' % cnt1)
    check(sets[1])
    spec(sets[1])
    a('s_cbranch_vccz %s' % done)
    issue(sets[1])
    if first != cnt0:
        a('s_waitcnt vmcnt(%d)' % cnt0)
    a.label(ent)
    a('s_waitcnt vmcnt(%d)' % first)
    check(sets[0])
    spec(sets[0])
    a('s_cbranch_vccnz %s' % top)
    a.label(done)


def chk_byte(regs, tag):
    if len(regs) == 1:
        a('v_cmp_ne_u32_sdwa vcc, %s, %s src0_sel:BYTE_0 src1_sel:BYTE_0' % (v(regs[0]), s(tag)))
    else:
        a('v_bitop3_b32 %s, %s, %s, %s bitop3:0x7e' % (v(T + 23), v(regs[0]), v(regs[1]), s(tag)))
        a('v_cmp_ne_u32_sdwa vcc, %s, %s src0_sel:BYTE_0 src1_sel:DWORD' % (v(T + 23), v(vZero)))


def chk_stats(x, k):
    a('v_cmp_ne_u32 vcc, %s, %s' % (s(sTag + k), v(x + (2 if k % 3 == 1 else 1))))


def red_a(x, c):
    a('v_permlane32_swap_b32 %s, %s' % (v(x + 1), v(x + 3)))
    a('v_add_f32 %s, %s, %s' % (v(c + 1), v(x + 1), v(x + 3)))
    a('v_permlane32_swap_b32 %s, %s' % (v(x), v(x + 2)))
    a('v_add_f32 %s, %s, %s' % (v(c), v(x), v(x + 2)))


def red_b(c, out):
    a('v_permlane16_swap_b32 %s, %s' % (v(c), v(c + 1)))
    a('v_add_f32 %s, %s, %s' % (v(c), v(c), v(c + 1)))
    dpp('v_add_f32', out, c, c, 'row_ror:8')


def mask_tag(x):
    a('v_and_b32 %s, %s, %s' % (v(x), s(sMaskHi), v(x)))


def bf16r(dst, src):
    a('v_cvt_pk_bf16_f32 %s, %s, %s' % (v(dst), v(src), v(src)))
    a('v_and_b32 %s, 0xffff0000, %s' % (v(dst), v(dst)))


def allred(op, x, t, bits):
    for b in bits:
        if b < 4:
            dpp(op, x, x, x, {0: X1, 1: X2, 3: 'row_ror:8'}[b])
        else:
            a('v_mov_b32 %s, %s' % (v(t), v(x)))
            a('v_permlane%d_swap_b32 %s, %s' % (16 if b == 4 else 32, v(x), v(t)))
            a('%s %s, %s, %s' % (op, v(x), v(x), v(t)))


def set_tags(k):
    a('v_mov_b32 %s, %s' % (v(vSt + 2), s(sTag + k)))
    if k % 3 != 1:
        a('v_cndmask_b32 %s, %s, %s, %s' % (v(vSt4 + 1), v(vSt + 2), v(vSt + 3), s(sHi, 2)))


def ln_stats(k):
    g = vSt4
    a('v_mul_f32 %s, %s, %s' % (v(T + 7), v(vX), v(vX)))
    a('v_permlane32_swap_b32 %s, %s' % (v(g), v(T + 7)))
    a('v_add_f32 %s, %s, %s' % (v(g), v(g), v(T + 7)))
    allred('v_add_f32', g, None, [0, 1])
    dpp('v_add_f32', g, g, g, 'row_bcast:15', 0xa)
    a('s_mov_b64 exec, %s' % s(sM1, 2))
    lstore('global_store_dwordx2', v(vStP2), v(g, 2), 512 * (k & 1))
    a('s_mov_b64 exec, -1')


def ln_spec(x):
    a('v_permlane32_swap_b32 %s, %s' % (v(x), v(x + 2)))
    a('v_add_f32 %s, %s, %s' % (v(vC), v(x), v(x + 2)))


def ln_mean():
    c = vC
    allred('v_add_f32', c, c + 1, [4, 3, 0, 1])
    a('v_mul_f32 %s, %s, %s' % (v(c), s(sInv512), v(c)))
    a('v_mov_b32 %s, %s' % (v(c + 1), v(c)))
    a('v_permlane32_swap_b32 %s, %s' % (v(c), v(c + 1)))
    bf16r(vMean, c)


def ln_rstd_a():
    c = vC
    a('v_fma_f32 %s, -%s, %s, %s' % (v(c + 1), v(c), v(c), v(c + 1)))
    a('v_max_f32 %s, 0, %s' % (v(c + 1), v(c + 1)))
    bf16r(c + 1, c + 1)
    a('v_add_f32 %s, %s, %s' % (v(c + 1), s(sEps), v(c + 1)))
    bf16r(c + 1, c + 1)
    a('v_sqrt_f32 %s, %s' % (v(c + 1), v(c + 1)))


def ln_rstd_b(scale):
    c = vC
    bf16r(c + 1, c + 1)
    a('v_rcp_f32 %s, %s' % (v(vRs), v(c + 1)))
    if scale:
        a('v_mul_f32 %s, %s, %s' % (v(vCs), s(sCs), v(vRs)))


def stats_load(k, x=vSs[0]):
    gload(x, vStC, sLb, 512 * (k & 1))


def l_gather(k, spec, st_spec, chain, hook=None):
    buf = BUF_A if k % 2 == 0 else BUF_B

    def d_issue(x):
        gload(x, vCons, sLb, buf)
    rf = OPT['refresh'] and OPT['d0']

    def s_issue(x):
        stats_load(k, x)
        if rf:
            d_issue(vDs[0])
    if OPT['d0']:
        d_issue(vDs[0])
    if OPT['spipe']:
        stats_load(k, vSs[1])
        ring2(vSs, s_issue, lambda x: chk_stats(x, k), st_spec, 2 if rf else 1, 3 if rf else 1, 2 + OPT['d0'])
    else:
        poll([(vSs[0], vStC, sLb, 512 * (k & 1))], lambda: chk_stats(vSs[0], k), lambda: st_spec(vSs[0]), cnt=1 + OPT['d0'], issued=True)
    if k >= 3:
        stamp('x st%d' % k)
    if not OPT['d0']:
        d_issue(vDs[0])
        chain[0]()
        d_issue(vDs[1])
    else:
        d_issue(vDs[1])
        chain[0]()
    if hook:
        hook()
    for c in chain[1:]:
        c()
    ring2(vDs, d_issue, lambda x: chk_byte([x], sTag + k), spec, 1, 1, 1)


def x_gather(gi, imm, work=None):
    r = vP
    base = sGb0 if gi < 2 else sGb1

    def spec():
        mask_tag(r)
        mask_tag(r + 4)
        a('v_pk_add_f32 %s, %s, %s' % (v(r + 2, 2), v(r + 2, 2), v(r + 6, 2)))
        a('v_pk_add_f32 %s, %s, %s' % (v(r, 2), v(r, 2), v(r + 4, 2)))
        red_a(r, r)
    poll([(r, vConsG, base, imm), (r + 4, vConsG, base, imm + G_H)], lambda: chk_byte([r, r + 4], sTag + 6 + gi), spec, work=work, backoff=OPT.get('g%ds' % gi, 0))
    red_b(r, r)
    dpp('v_add_f32', r, r, r, 'row_ror:4')
    bf16r(r, r)
    a('v_add_f32 %s, %s, %s' % (v(r), v(r), v(vX)))
    a('v_cvt_pk_bf16_f32 %s, %s, %s' % (v(T), v(r), v(r)))


def x_to_lds(k):
    a('ds_write_b16 %s, %s offset:%d' % (v(vXw), v(T), XB))
    a('v_and_b32 %s, 0xffff0000, %s' % (v(vX), v(T)))
    a('v_and_b32 %s, 0xffff0000, %s' % (v(vSt4), v(T)))
    ln_stats(k)


def proj(wreg, k, layer, extra=None, first=False, skip=None):
    rd = vXopR if layer == 0 else vOpR
    a('s_barrier')
    if extra:
        extra()
    a('ds_read_b128 %s, %s offset:%d' % (v(vA, 4), v(rd), XB))
    a('ds_read_b128 %s, %s offset:%d' % (v(vA + 4, 4), v(rd), XB + 64))
    if skip:
        a('s_cbranch_scc1 %s' % skip)
    if not first and OPT['early'] == 1:
        stats_load(k)
    lgkm(1)
    mfma(vD, vA, wreg)
    mfma(vD + 4, vA, wreg + 8)
    if not first and OPT['early'] == 2:
        stats_load(k)
    lgkm(0)
    mfma(vD, vA + 4, wreg + 4, vD)
    mfma(vD + 4, vA + 4, wreg + 12, vD + 4)
    if not first and OPT['early'] == 0:
        stats_load(k)
    if layer == 1:
        a('s_mov_b32 exec_hi, 0')
    a('v_cndmask_b32 %s, %s, %s, %s' % (v(T), v(vD), v(vD + 4), s(sM0, 2)))
    a('v_bfi_b32 %s, %s, %s, %s' % (v(T), v(vTagM), s(sTag + k), v(T)))
    lstore('global_store_dword', v(vPubL), v(T), BUF_A if k % 2 == 0 else BUF_B)
    if layer == 1:
        a('s_mov_b32 exec_hi, -1')


def tr_reads(dst, addr, base, nk, kstride, gstride):
    for kk in range(nk):
        for g in range(2):
            a('ds_read_b64_tr_b16 %s, %s offset:%d' % (v(dst + 4 * kk + 2 * g, 2), v(addr), base + kk * kstride + g * gstride))


def gemv_publish_g(nk, wreg, src, gi, imm):
    for kk in range(nk):
        a('ds_read_b128 %s, %s offset:%d' % (v(vA + 4 * kk, 4), v(vOpR), src + 64 * kk))
    for kk in range(nk):
        lgkm(nk - 1 - kk)
        mfma(vD, vA + 4 * kk, wreg + 4 * kk, vD if kk else None)
    if not PAD:
        a('s_mov_b32 exec_hi, 0')
    a('v_bfi_b32 %s, %s, %s, %s' % (v(T), v(vTagM), s(sTag + 6 + gi), v(vD)))
    st = 'global_store_dword %s, %s, %s offset:%d sc1' % (v(vPubG), v(T), s(sGb0 if gi < 2 else sGb1, 2), imm)
    if OPT['na'] and gi:
        a('s_mov_b32 exec_lo, s37')
        a(st)
        a('s_not_b32 exec_lo, s37')
        a(st)
        a('s_mov_b64 exec, -1')
    else:
        a(st)
        if not PAD:
            a('s_mov_b32 exec_hi, -1')


def g_pace(gi):
    if OPT['na'] and gi:
        a('s_waitcnt vmcnt(1)')
        for i in range(OPT['nsl']):
            a('s_nop 7')
    else:
        a('s_waitcnt vmcnt(0)')
    if OPT.get('g%dd' % gi):
        a('s_sleep %d' % OPT['g%dd' % gi])
    stamp('G%d ack' % gi)


def probe_near():
    a('s_not_b32 s4, %s' % s(sE))
    a('s_xor_b32 s55, %s, 8192' % s(sPr))
    a('s_waitcnt lgkmcnt(0)')
    a('s_load_dword s4, s[26:27], %s' % s(sPr))
    a('s_load_dword s5, s[26:27], s55')
    a('s_lshl_b32 s59, %s, 2' % s(sJ))
    a('s_add_u32 s59, s59, %s' % s(sW))
    a('s_lshl_b32 s59, s59, 3')
    a('s_add_u32 s59, s59, %d' % VOTES)
    a('v_mov_b32 %s, s59' % v(T + 1))
    a('v_mov_b32 %s, %s' % (v(T + 3), s(sTag + 2)))
    a('s_waitcnt lgkmcnt(1)')
    a('s_memtime s[8:9]')
    a('s_cmp_eq_u32 s4, %s' % s(sE))
    a('s_cselect_b32 s6, %d, -1' % OPT['thr'])
    a('s_waitcnt lgkmcnt(0)')
    a('s_memtime s[10:11]')
    a('s_waitcnt lgkmcnt(0)')
    a('s_sub_u32 s7, s10, s8')
    a('s_cmp_gt_u32 s7, s6')
    a('s_cselect_b32 s6, 1, 0')
    if DIAG:
        a('s_mov_b32 s12, s7')
    a('v_mov_b32 %s, s6' % v(T + 2))
    a('s_mov_b64 exec, 1')
    lstore('global_store_dwordx2', v(T + 1), v(T + 2, 2), 0)
    a('s_mov_b64 exec, -1')


def count_votes():
    a('v_and_b32 %s, 31, %s' % (v(T + 4), v(vL)))
    a('v_lshlrev_b32 %s, 3, %s' % (v(T + 4), v(T + 4)))
    a('v_add_u32 %s, %d, %s' % (v(T + 4), VOTES, v(T + 4)))
    if OPT['vw'] and not OPT['vlate']:
        a('s_waitcnt vmcnt(0)')
    a('global_load_dwordx2 %s, %s, %s sc1' % (v(T + 2, 2), v(T + 4), s(sLb, 2)))
    a('s_lshr_b32 s55, %s, 1' % s(sW) if WSH else 's_and_b32 s55, %s, 1' % s(sW))
    a('s_xor_b32 s59, s55, 1')
    a('s_waitcnt vmcnt(0)')
    a('v_xor_b32 %s, %s, %s' % (v(T + 3), s(sTag + 2), v(T + 3)))
    a('v_xor_b32 %s, 1, %s' % (v(T + 2), v(T + 2)))
    a('v_or_b32 %s, %s, %s' % (v(T + 2), v(T + 2), v(T + 3)))
    a('v_cmp_eq_u32 vcc, 0, %s' % v(T + 2))
    a('s_and_b32 s4, vcc_lo, 0x%x' % (0x33333333 if WSH else 0x55555555))
    a('s_and_b32 s5, vcc_lo, 0x%x' % (0xcccccccc if WSH else 0xaaaaaaaa))
    a('s_bcnt1_i32_b32 s4, s4')
    a('s_bcnt1_i32_b32 s5, s5')
    if DIAG:
        a('s_lshl_b32 s13, s4, 8')
        a('s_add_u32 s13, s13, s5')
    a('s_cmp_ge_u32 s4, s5')
    a('s_cselect_b32 s55, s55, s59')
    a('s_cmp_eq_u32 s55, 0')
    a('s_cselect_b32 s37, 0xffff, %s' % s(sM0))
    a('s_mul_i32 s55, s55, 0x%x' % G_X)
    a('v_xor_b32 %s, s55, %s' % (v(vConsG), v(vConsG0)))


def flag_store(val):
    sk = newlabel('nofl')
    a('s_or_b32 s55, %s, %s' % (s(sJ), s(sW)))
    a('s_cbranch_scc1 %s' % sk)
    a('s_lshl_b32 s55, %s, 7' % s(sGam))
    a('s_add_u32 s55, s55, %d' % WS_F)
    a('v_lshl_add_u32 %s, %s, 2, s55' % (v(T + 21), v(vL)))
    a('v_mov_b32 %s, %s' % (v(T + 20), s(val)))
    a('s_mov_b32 exec_hi, 0')
    a('global_store_dword %s, %s, s[26:27] sc1' % (v(T + 21), v(T + 20)))
    a('s_mov_b32 exec_hi, -1')
    a.label(sk)


def flag_load():
    a('s_mov_b32 exec_hi, 0')
    a('global_load_dword %s, %s, s[26:27] sc1' % (v(T + 6), v(T + 5)))
    a('s_mov_b32 exec_hi, -1')


def flag_wait(cnt):
    top, ent = newlabel('fl'), newlabel('fle')
    a('s_branch %s' % ent)
    a.label(top)
    tick()
    flag_load()
    a('s_waitcnt vmcnt(0)')
    a.label(ent)
    a('s_waitcnt vmcnt(%d)' % cnt)
    a('v_cmp_ne_u32 vcc, %s, %s' % (s(sTag + 6), v(T + 6)))
    a('s_cmp_lg_u32 vcc_lo, 0')
    a('s_cbranch_scc1 %s' % top)


def page_break(force=False):
    if OPT['pages'] and (FAST[0] or force):
        l = newlabel('page')
        a('s_branch %s' % l)
        a.raw('.p2align 12')
        a.label(l)


a.raw('''; One persistent launch, 256 workgroups = 32 groups (attention head / slice of the ffn columns) x 8 members.
; Weights and the K/V window are read once and stay in registers for both layers; workgroups hand over partial sums
; through d_ws in 64-byte tagged sectors (tag = epoch word found in d_ws + index of the hand-off).
; @launch grid=(256,1,1) block=(256,1,1) lds=%d
.amdgcn_target "amdgcn-amd-amdhsa--gfx950"
.text
.p2align 12
.globl %s_kernel
.p2align 8
.type %s_kernel,@function
%s_kernel:''' % (LDS_BYTES, NAME, NAME, NAME))
a('s_cmp_ge_u32 s2, 256')
a('s_cbranch_scc1 L_end')
a('s_load_dwordx16 s[4:19], s[0:1], 0')
a('s_load_dwordx8 s[20:27], s[0:1], 64')
stamp('start')
stamp('x rt0')
a('s_getpc_b64 %s' % s(sPc, 2))
a.label('L_pc')
a('v_lshlrev_b32 %s, 6, v0' % v(T))
a('v_min_u32 %s, L_fastend-L_pc-64, %s' % (v(T), v(T)))
a('global_load_dword %s, %s, %s' % (v(T + 22), v(T), s(sPc, 2)))
a('v_lshrrev_b32 %s, 6, v0' % v(T))
a('v_and_b32 %s, 63, v0' % v(vL))
a('v_readfirstlane_b32 %s, %s' % (s(sW), v(T)))
a('s_lshr_b32 s3, s2, 3')
a('s_and_b32 %s, s3, 7' % s(sJ))
a('s_lshr_b32 s3, s3, 3')
a('s_and_b32 s31, s2, 7')
a('s_lshl_b32 %s, s31, 2' % s(sGam))
a('s_add_u32 %s, %s, s3' % (s(sGam), s(sGam)))
u16, pos16, u8, pos8, l3, col16 = T + 1, T + 2, T + 3, T + 4, T + 5, T + 6
t0, t1, t2, t3 = T + 8, T + 9, T + 10, T + 11
k0 = T + 12
a('v_lshrrev_b32 %s, 4, %s' % (v(u16), v(vL)))
a('v_and_b32 %s, 15, %s' % (v(pos16), v(vL)))
a('v_and_b32 %s, 3, %s' % (v(l3), v(vL)))
a('v_lshl_add_u32 %s, %s, 2, %s' % (v(col16), v(l3), v(u16)))
a('s_lshl_b32 s48, %s, 5' % s(sW))
a('v_lshl_add_u32 %s, %s, 1, s48' % (v(vXw), v(col16)))
a('v_lshlrev_b32 %s, 1, %s' % (v(t0), v(u16)))
a('v_xor_b32 %s, %s, %s' % (v(t0), v(t0), v(pos16)))
a('v_lshlrev_b32 %s, 4, %s' % (v(t0), v(t0)))
a('v_lshl_add_u32 %s, %s, 8, %s' % (v(vVo), v(u16), v(t0)))
a('v_xor_b32 %s, 0x80, %s' % (v(vVo + 1), v(vVo)))
a('v_lshl_add_u32 %s, %s, 13, %s' % (v(t0), v(u16), v(t0)))
a('v_xor_b32 %s, 0x80, %s' % (v(t1), v(t0)))
a('v_add_u32 %s, %d, %s' % (v(t1), 2 * 31744, v(t1)))
a('v_xor_b32 %s, %s, %s' % (v(k0), v(u16), v(pos16)))
a('v_lshlrev_b32 %s, 4, %s' % (v(k0), v(k0)))
a('v_lshl_add_u32 %s, %s, 8, %s' % (v(k0), v(u16), v(k0)))
for i in range(1, 4):
    a('v_xor_b32 %s, %d, %s' % (v(k0 + i), i << 6, v(k0)))
a('s_lshl_b32 s49, %s, 12' % s(sW))
a('v_lshl_add_u32 %s, %s, 4, s49' % (v(vCons), v(vL)))
a('s_lshl_b32 s57, %s, 14' % s(sGam))
a('s_add_u32 s57, s57, %d' % WS_L)
a('s_lshl_b32 s48, %s, 7' % s(sJ))
a('s_add_u32 s58, s48, s57')
a('s_add_u32 s59, s58, s49')
a('v_lshl_add_u32 %s, %s, 10, s59' % (v(t3), v(vL)))
a('v_cmp_lt_u32 vcc, 2, %s' % v(vL))
a('s_add_u32 s58, s58, %d' % STATS)
a('v_mov_b32 %s, s58' % v(T + 17))
a('v_cndmask_b32 %s, %s, %s, vcc' % (v(t3), v(t3), v(T + 17)))
a('s_add_u32 s58, s57, %d' % VOTES)
a('v_writelane_b32 %s, s58, 3' % v(t3))
a('s_add_u32 s58, s58, 128')
a('v_writelane_b32 %s, s58, 4' % v(t3))
a('s_lshl_b32 s55, %s, 19' % s(sJ))
a('s_lshl_b32 s56, %s, 17' % s(sW))
a('s_add_u32 s55, s55, s56')
a('s_lshl_b32 s56, %s, 8' % s(sGam))
a('s_add_u32 s55, s55, s56')
a('s_lshl_b32 s56, %s, 20' % s(sGam))
a('s_lshl_b32 s58, %s, 15' % s(sJ))
a('s_add_u32 s56, s56, s58')
a('s_lshl_b32 s58, %s, 13' % s(sW))
a('s_add_u32 s56, s56, s58')
a('s_add_u32 s56, s56, %d' % (3072 * 256))
a('s_add_u32 m0, s49, %d' % WQ)
a('s_waitcnt lgkmcnt(0)')
a('s_load_dword %s, s[26:27], 0' % s(sE))
a('s_add_u32 s10, s10, s55')
a('s_addc_u32 s11, s11, 0')
a('global_load_lds_dwordx4 %s, s[10:11] offset:0%s' % (v(t0), NT))
a('v_add_u32 %s, 31744, %s' % (v(t0), v(t0)))
a('s_add_u32 s4, s4, s48')
a('s_addc_u32 s5, s5, 0')
a('global_load_lds_dwordx4 %s, s[10:11] offset:1024%s' % (v(t0), NT))
a('global_load_lds_dwordx4 %s, s[10:11] offset:2048%s' % (v(t1), NT))
a('v_add_u32 %s, 31744, %s' % (v(t1), v(t1)))
a('s_add_u32 s6, s6, s56')
a('s_addc_u32 s7, s7, 0')
a('global_load_lds_dwordx4 %s, s[10:11] offset:3072%s' % (v(t1), NT))
a('global_load_ushort %s, %s, s[4:5]' % (v(vX), v(vXw)))
a('global_load_dword %s, %s, s[26:27]' % (v(T + 22), v(t3)))
a('s_add_u32 m0, s58, %d' % KI)
a('s_barrier')
for i in range(4):
    a('global_load_lds_dwordx4 %s, s[6:7] offset:%d%s' % (v(k0 + i), 1024 * i, NT))
a('s_add_u32 m0, s58, %d' % (KI + 4096))
a('s_add_u32 s6, s6, 4096')
a('s_addc_u32 s7, s7, 0')
for i in range(4):
    a('global_load_lds_dwordx4 %s, s[6:7] offset:%d%s' % (v(k0 + i), 1024 * i, NT))
stamp('issued')
a('s_add_u32 s8, s8, s56')
a('s_addc_u32 s9, s9, 0')
a('s_add_u32 %s, s26, s57' % s(sLb))
a('s_addc_u32 %s, s27, 0' % s(sLb + 1))
a('s_lshl_b32 s55, %s, %d' % (s(sJ), 14 + PAD))
a('s_add_u32 s55, s55, %d' % (WS_G + GOFF))
a('s_add_u32 %s, s26, s55' % s(sGb0))
a('s_addc_u32 %s, s27, 0' % s(sGb0 + 1))
a('s_add_u32 %s, %s, 0x%x' % (s(sGb1), s(sGb0), 0x40000 << PAD))
a('s_addc_u32 %s, %s, 0' % (s(sGb1 + 1), s(sGb0 + 1)))
a('s_getreg_b32 %s, hwreg(HW_REG_XCC_ID, 0, 4)' % s(sXcc))
a('s_lshl_b32 %s, s2, 2' % s(sPr))
a('s_add_u32 %s, %s, %s' % (s(sPr), s(sPr), s(sW)))
a('s_and_b32 s55, %s, 63' % s(sPr))
a('s_lshl_b32 s55, s55, 7')
a('s_lshr_b32 %s, %s, 6' % (s(sPr), s(sPr)))
a('s_lshl_b32 %s, %s, 14' % (s(sPr), s(sPr)))
a('s_add_u32 %s, %s, s55' % (s(sPr), s(sPr)))
a('s_add_u32 %s, %s, %d' % (s(sPr), s(sPr), WS_P))
a('s_lshl_b32 s55, s49, %d' % PAD)
a('s_and_b32 s55, s55, 8192')
a('s_add_u32 %s, %s, s55' % (s(sPr), s(sPr)))
a('s_mov_b32 %s, 0x40000' % s(sTo))
a('s_mov_b32 %s, %s' % (s(sCs), f32(math.log2(math.e) / math.sqrt(128.0))))
a('s_mov_b32 %s, 0xffffff00' % s(sMaskHi))
a('s_mov_b32 %s, %s' % (s(sInv512), f32(1.0 / 512)))
a('s_mov_b32 %s, %s' % (s(sEps), f32(1e-5)))
a('s_mov_b32 %s, %s' % (s(sNl2e), f32(-math.log2(math.e))))
a('s_mov_b32 %s, 0xffff0000' % s(sM0))
a('s_mov_b32 %s, 0xffff0000' % s(sM0 + 1))
a('s_mov_b32 %s, 0x10000' % s(sM1))
a('s_mov_b32 %s, 0x10000' % s(sM1 + 1))
a('s_mov_b32 %s, 0' % s(sHi))
a('s_mov_b32 %s, -1' % s(sHi + 1))
a('s_mul_i32 %s, %s, 43' % (s(sC0), s(sGam)))
a('s_add_u32 %s, %s, 43' % (s(sCnt), s(sC0)))
a('s_lshr_b32 %s, %s, 3' % (s(sC0), s(sC0)))
a('s_lshr_b32 %s, %s, 3' % (s(sCnt), s(sCnt)))
a('s_sub_u32 %s, %s, %s' % (s(sCnt), s(sCnt), s(sC0)))
a('s_lshl_b32 %s, %s, 3' % (s(sCnt), s(sCnt)))
a('v_mov_b32 %s, 0' % v(vZero))
a('v_lshrrev_b32 %s, 3, %s' % (v(u8), v(vL)))
a('v_and_b32 %s, 7, %s' % (v(pos8), v(vL)))
a('s_add_u32 s55, s49, s48')
a('v_and_b32 %s, 31, %s' % (v(t0), v(vL)))
a('v_lshl_add_u32 %s, %s, 2, s55' % (v(vPubL), v(t0)))
a('v_lshrrev_b32 %s, 5, %s' % (v(t3), v(vL)))
a('v_lshl_add_u32 %s, %s, 10, %s' % (v(vPubL), v(t3), v(vPubL)))
a('s_lshl_b32 s55, %s, 6' % s(sW))
a('v_lshl_add_u32 %s, %s, 1, s55' % (v(vPw), v(t0)))
a('v_lshl_add_u32 %s, %s, 2, %s' % (v(t1), v(pos8), v(u16)))
a('v_lshl_add_u32 %s, %s, 1, s55' % (v(vQw), v(t1)))
a('s_lshl_b32 s55, %s, 6' % s(sGam))
a('s_add_u32 s55, s55, s49')
if PAD:
    a('s_lshl_b32 s55, s55, 1')
a('v_lshl_add_u32 %s, %s, 2, s55' % (v(vPubG), v(pos16)))
if PAD:
    a('v_lshl_add_u32 %s, %s, 6, %s' % (v(vPubG), v(t3), v(vPubG)))
a('v_and_b32 %s, 1, %s' % (v(t2), v(u16)))
a('v_mul_u32_u24 %s, 0x%x, %s' % (v(t2), G_X, v(t2)))
a('v_xor_b32 %s, %s, %s' % (v(vPubG), v(vPubG), v(t2)))
a('v_lshl_add_u32 %s, %s, %d, s55' % (v(vPre), v(pos8), 3 + PAD))
a('v_xor_b32 %s, %s, %s' % (v(vPre), v(vPre), v(t2)))
a('v_and_b32 %s, 1, %s' % (v(t2), v(u8)))
a('v_lshl_add_u32 %s, %s, %d, %s' % (v(vPre), v(t2), 11 + PAD, v(vPre)))
a('v_lshl_add_u32 %s, %s, %d, %s' % (v(vPre), v(t3), 18 + PAD, v(vPre)))
a('s_lshl_b32 s55, %s, 2' % s(sJ))
a('s_add_u32 s55, s55, %s' % s(sW))
a('s_lshl_b32 s55, s55, 4')
a('s_add_u32 s55, s55, %d' % STATS)
a('v_mov_b32 %s, s55' % v(vStP))
a('v_lshl_add_u32 %s, %s, 3, s55' % (v(vStP2), v(t3)))
a('v_lshlrev_b32 %s, 4, %s' % (v(t1), v(l3)))
a('v_lshl_add_u32 %s, %s, 6, %s' % (v(t1), v(u8), v(t1)))
a('v_add_u32 %s, %d, %s' % (v(vStC), STATS, v(t1)))
a('v_mov_b32 %s, 0xff' % v(t2))
a('v_cmp_eq_u32 vcc, 0, %s' % v(l3))
a('v_lshlrev_b32 %s, 4, %s' % (v(vOpR), v(u16)))
a('v_and_b32 %s, 8, %s' % (v(t1), v(vL)))
a('v_cndmask_b32 %s, 0, %s, vcc' % (v(vTagM), v(t2)))
a('v_lshl_add_u32 %s, %s, 4, %s' % (v(vXopR), v(t1), v(vOpR)))
a('v_and_b32 %s, 4, %s' % (v(t1), v(vL)))
a('v_cmp_eq_u32 vcc, 0, %s' % v(t1))
a('v_add_u32 %s, %d, %s' % (v(t1), HB, v(vXw)))
a('v_mov_b32 %s, %d' % (v(t2), DUMMY))
a('v_cndmask_b32 %s, %s, %s, vcc' % (v(vHw), v(t2), v(t1)))
a('v_lshrrev_b32 %s, 1, %s' % (v(t1), v(vXw)))
a('v_cmp_gt_u32 vcc, %s, %s' % (s(sCnt), v(t1)))
a('s_lshl_b32 s55, %s, 2' % s(sW))
a('v_mov_b32 %s, s55' % v(vMw))
a('v_lshlrev_b32 %s, 2, %s' % (v(vMr), v(l3)))
a('v_cndmask_b32 %s, 0, -1, vcc' % v(vHmask))
a('v_lshlrev_b32 %s, 2, %s' % (v(t0), v(t0)))
a('v_mov_b32 %s, 0x3f803f80' % v(t1))
a('ds_write_b32 %s, %s offset:%d' % (v(t0), v(t1), ONES))
a('v_lshlrev_b32 %s, 2, %s' % (v(t0), v(pos8)))
a('ds_write_b32 %s, %s offset:%d' % (v(t0), v(vZero), HB + 96))
if PAD:
    a('v_lshrrev_b32 %s, 2, %s' % (v(t1), v(vL)))
    a('v_lshlrev_b32 %s, 4, %s' % (v(t2), v(l3)))
    a('v_lshl_add_u32 %s, %s, 7, %s' % (v(t1), v(t1), v(t2)))
    a('s_lshl_b32 s59, s49, 1')
    a('v_add_u32 %s, s59, %s' % (v(vConsG), v(t1)))
else:
    a('v_mov_b32 %s, %s' % (v(vConsG), v(vCons)))
a('v_mov_b32 %s, %s' % (v(vConsG0), v(vConsG)))
a('v_mov_b32 %s, %s' % (v(vSt + 3), s(sXcc)))
r_ = T + 16
a('v_lshrrev_b32 %s, 2, %s' % (v(r_), v(pos16)))
a('v_and_b32 %s, 1, %s' % (v(t0), v(u16)))
a('v_lshl_add_u32 %s, %s, 2, %s' % (v(t1), v(t0), v(r_)))
a('v_lshlrev_b32 %s, 1, %s' % (v(t1), v(t1)))
a('v_xor_b32 %s, s55, %s' % (v(t1), v(t1)))
a('v_lshlrev_b32 %s, 4, %s' % (v(t1), v(t1)))
a('v_lshl_add_u32 %s, %s, 3, %s' % (v(t1), v(l3), v(t1)))
a('v_lshl_add_u32 %s, %s, 3, %s' % (v(t2), v(u16), v(r_)))
a('v_lshl_add_u32 %s, %s, 8, %s' % (v(trq), v(t2), v(t1)))
a('v_xor_b32 %s, 32, %s' % (v(trq + 1), v(trq)))
a('v_lshrrev_b32 %s, 1, %s' % (v(t1), v(r_)))
a('v_lshl_add_u32 %s, %s, 1, %s' % (v(t1), v(t0), v(t1)))
a('v_xor_b32 %s, %s, %s' % (v(t1), s(sW), v(t1)))
a('v_lshlrev_b32 %s, 5, %s' % (v(t1), v(t1)))
a('v_lshl_add_u32 %s, %s, 3, %s' % (v(t1), v(l3), v(t1)))
a('v_lshl_add_u32 %s, %s, 7, %s' % (v(vTr), v(t2), v(t1)))
a('v_add_u32 %s, %d, %s' % (v(vTr), WO, v(vTr)))
a('v_and_b32 %s, 2, %s' % (v(t0), v(u8)))
a('v_xor_b32 %s, %s, %s' % (v(t0), v(t0), v(pos8)))
a('v_lshlrev_b32 %s, 4, %s' % (v(t1), v(t0)))
a('v_lshl_add_u32 %s, %s, 10, %s' % (v(wo0), v(u8), v(t1)))
a('v_xor_b32 %s, 64, %s' % (v(wo1), v(wo0)))
a('v_add_u32 %s, 7168, %s' % (v(wo1), v(wo1)))
a('v_mul_u32_u24 %s, 2752, %s' % (v(t2), v(u8)))
a('v_min_u32 %s, 5, %s' % (v(t1), v(t0)))
a('v_lshl_add_u32 %s, %s, 4, %s' % (v(f0), v(t1), v(t2)))
a('v_xor_b32 %s, 4, %s' % (v(t0), v(t0)))
a('v_min_u32 %s, 5, %s' % (v(t1), v(t0)))
a('v_lshl_add_u32 %s, %s, 4, %s' % (v(f1), v(t1), v(t2)))
a('v_add_u32 %s, %d, %s' % (v(f1), 8 * 2752 - 1024, v(f1)))
a('s_lshl_b32 s55, %s, 17' % s(sGam))
a('s_lshl_b32 s59, %s, 15' % s(sW))
a('s_add_u32 s55, s55, s59')
a('s_add_u32 s55, s55, s48')
a('s_add_u32 s12, s12, s55')
a('s_addc_u32 s13, s13, 0')
a('s_lshl_b32 s55, %s, 2' % s(sJ))
a('s_add_u32 s55, s55, %s' % s(sW))
a('s_mul_i32 s55, s55, %d' % (16 * 2752))
a('s_lshl_b32 s59, %s, 4' % s(sC0))
a('s_add_u32 s55, s55, s59')
a('s_add_u32 s16, s16, s55')
a('s_addc_u32 s17, s17, 0')
a('s_add_u32 s18, s18, s55')
a('s_addc_u32 s19, s19, 0')
a('s_lshl_b32 s55, %s, 13' % s(sC0))
a('s_min_u32 s59, %s, 2' % s(sW))
a('s_lshl_b32 s59, s59, 14')
a('s_add_u32 s55, s55, s59')
a('s_add_u32 s55, s55, s48')
a('s_add_u32 s20, s20, s55')
a('s_addc_u32 s21, s21, 0')
a('s_add_u32 s22, s22, s48')
a('s_addc_u32 s23, s23, 0')
a('s_waitcnt lgkmcnt(0)')
for k in range(10):
    a('s_add_u32 %s, %s, %d' % (s(sTag + k), s(sE), k + 1))


def issue_v():
    for h in range(2):
        a('s_add_u32 m0, s58, %d' % (VI + 4096 * h))
        if h:
            a('s_add_u32 s8, s8, 4096')
            a('s_addc_u32 s9, s9, 0')
        else:
            a('s_nop 0')
        for i in range(4):
            a('global_load_lds_dwordx4 %s, s[8:9] offset:%d%s' % (v(vVo + (i >> 1)), 1024 * i, NT))


def issue_wo():
    a('s_add_u32 m0, s49, %d' % WO)
    a('v_add_u32 %s, %d, %s' % (v(T + 20), 2 * 7168, v(wo0)))
    a('global_load_lds_dwordx4 %s, s[12:13] offset:0%s' % (v(wo0), NT))
    a('global_load_lds_dwordx4 %s, s[12:13] offset:1024%s' % (v(wo1), NT))
    a('global_load_lds_dwordx4 %s, s[12:13] offset:2048%s' % (v(T + 20), NT))
    a('v_add_u32 %s, %d, %s' % (v(T + 20), 2 * 7168, v(wo1)))
    a('global_load_lds_dwordx4 %s, s[12:13] offset:3072%s' % (v(T + 20), NT))


def issue_w13(lo, hi):
    for i in range(lo, hi):
        if i == lo or i == 2:
            a('s_lshl_b32 s59, %s, 11' % s(sW))
            a('s_add_u32 m0, s59, %d' % (W1 if i < 2 else W3))
            a('s_nop 0')
        a('global_load_lds_dwordx4 %s, s[%d:%d] offset:%d%s' % (v(f0 + (i & 1)), 16 + (i & 2), 17 + (i & 2), 1024 * (i & 1), NT))


def issue_w2():
    a('s_min_u32 s59, %s, 2' % s(sW))
    a('s_lshl_b32 s59, s59, 11')
    a('s_add_u32 m0, s59, %d' % W2)
    a('s_nop 0')
    a('global_load_lds_dwordx4 %s, s[20:21] offset:0%s' % (v(wo0), NT))
    a('global_load_lds_dwordx4 %s, s[20:21] offset:1024%s' % (v(wo1), NT))


r = vP
FE, KW, WOL = OPT['fe'], OPT['kw'], OPT['wol']
NPRE = 1 + OPT['probe']
NLATE = 0 if WOL else 4 + FE + 2 * OPT['w2e']


def front():
    a('; ---- layer 0: x slice, query projection partials')
    set_tags(0)
    a('v_add_u32 %s, 0x%x, %s' % (v(T + 12), WS_L2D, v(vStP2)))
    a('v_add_u32 %s, 0x%x, %s' % (v(T + 13), WS_L2D, v(vPubL)))
    a('s_waitcnt vmcnt(9)')
    stamp('wq landed')
    a('ds_write_b16 %s, %s offset:%d' % (v(vXw), v(vX), XB))
    a('v_lshlrev_b32 %s, 16, %s' % (v(vSt4), v(vX)))
    a('v_lshlrev_b32 %s, 16, %s' % (v(vX), v(vX)))
    FAST[0] = True
    ln_stats(0)
    a('s_waitcnt lgkmcnt(0)')

    def wq_regs():
        tr_reads(vWQ, trq, WQ, 2, 8192, 1024)
        tr_reads(vWQ + 8, trq + 1, WQ, 2, 8192, 1024)
    proj(vWQ, 0, 0, extra=wq_regs, first=True)
    FAST[0] = False
    stamp('L0 Q pub')
    issue_v()
    lstore('global_store_dword', v(T + 13), v(T), BUF_A)
    a('s_mov_b64 exec, %s' % s(sM1, 2))
    lstore('global_store_dwordx2', v(T + 12), v(vSt4, 2), 0)
    a('s_mov_b64 exec, -1')
    a('v_mov_b32 %s, %s' % (v(T + 16), s(sE)))
    a('v_mov_b32 %s, %s' % (v(T + 17), s(sE)))
    if PAD:
        a('v_mov_b32 %s, %s' % (v(T + 18), s(sE)))
        a('v_mov_b32 %s, %s' % (v(T + 19), s(sE)))
    a('global_store_dwordx%d %s, %s, %s offset:%d sc1' % (2 << PAD, v(vPre), v(T + 16, 2 << PAD), s(sGb0, 2), -GOFF))
    if OPT['probe']:
        a('v_and_b32 %s, 31, %s' % (v(T + 18), v(vL)))
        a('v_lshl_add_u32 %s, %s, 2, %s' % (v(T + 18), v(T + 18), s(sPr)))
        a('v_lshrrev_b32 %s, 5, %s' % (v(T + 19), v(vL)))
        a('v_lshlrev_b32 %s, 13, %s' % (v(T + 19), v(T + 19)))
        a('v_xor_b32 %s, %s, %s' % (v(T + 18), v(T + 19), v(T + 18)))
        a('global_store_dword %s, %s, s[26:27] sc1' % (v(T + 18), v(T + 16)))
    a('; ---- layer 0: gather q')
    a('v_xor_b32 %s, %s, %s' % (v(t0), v(u16), v(pos16)))
    a('v_lshlrev_b32 %s, 4, %s' % (v(t0), v(t0)))
    a('v_lshl_add_u32 %s, %s, 8, %s' % (v(t0), v(pos16), v(t0)))
    a('s_add_u32 s55, s58, %d' % KI)
    a('v_add_u32 %s, s55, %s' % (v(t0), v(t0)))
    for kk in range(1, 4):
        a('v_xor_b32 %s, %d, %s' % (v(t0 + kk), kk << 6, v(t0)))
    alt, both, alts, boths = T + 13, T + 14, T + 15, T + 21
    a('v_mov_b32 %s, %s' % (v(alt), v(vCons)))
    a('v_lshlrev_b32 %s, 1, %s' % (v(both), v(vCons)))
    a('v_add_u32 %s, 0x%x, %s' % (v(both), WS_L2D, v(both)))
    a('v_mov_b32 %s, %s' % (v(alts), v(vStC)))
    a('v_lshlrev_b32 %s, 1, %s' % (v(boths), v(vStC)))
    a('v_add_u32 %s, 0x%x, %s' % (v(boths), WS_L2D, v(boths)))
    page_break(True)
    behind_k = 2 + 8 + 2 + NPRE
    a('s_waitcnt vmcnt(%d)' % (8 - KW + behind_k))
    stamp('K part')
    loads = [(vSs[0], alts, sLb, 0), (r, alt, sLb, BUF_A), (r + 4, alt, sLb, BUF_X)]
    for x in loads:
        gload(*x)

    def wo_etc():
        issue_wo()
        if OPT['w2e']:
            issue_w2()
        issue_w13(0, FE)
    if not WOL:
        wo_etc()
    a('s_waitcnt vmcnt(%d)' % (behind_k + 3 + NLATE))
    stamp('K landed')
    for g in range(2):
        for kk in range(4):
            a('ds_read_b128 %s, %s offset:%d' % (v(vK + 16 * g + 4 * kk, 4), v(t0 + kk), 4096 * g))
    a('s_branch L_e1ent')
    a.label('L_e1top')
    tick()
    a('v_sub_u32 %s, %s, %s' % (v(alt), v(both), v(alt)))
    a('v_sub_u32 %s, %s, %s' % (v(alts), v(boths), v(alts)))
    for x in loads:
        gload(*x)
    if NLATE:
        a('s_waitcnt vmcnt(0)')
    a.label('L_e1ent')
    a('s_waitcnt vmcnt(%d)' % NLATE)
    a('v_bitop3_b32 %s, %s, %s, %s bitop3:0x7e' % (v(T + 23), v(r), v(r + 4), s(sTag)))
    a('v_cmp_ne_u32 %s, %s, %s' % (s(sT1, 2), s(sTag), v(vSs[0] + 1)))
    a('v_cmp_ne_u32_sdwa vcc, %s, %s src0_sel:BYTE_0 src1_sel:DWORD' % (v(T + 23), v(vZero)))
    a('s_or_b64 vcc, vcc, %s' % s(sT1, 2))
    a('s_cbranch_vccnz L_e1top')
    stamp('L0 E1 ok')
    if OPT['fl']:
        flag_store(sE)
    if WOL:
        wo_etc()
    a('v_cmp_ne_u32 vcc, %s, %s' % (s(sXcc), v(vSs[0] + 3)))
    ln_spec(vSs[0])
    mask_tag(r + 4)
    red_a(r + 4, r + 4)
    mask_tag(r)
    red_b(r + 4, vCq)
    red_a(r, r)
    ln_mean()
    if OPT['fast']:
        a('s_cbranch_vccnz L_slowtail')


def tail():
    for layer in range(2):
        pre = 'L%d' % layer
        k1, k2, k4 = 3 * layer, 3 * layer + 1, 3 * layer + 2

        def spec(x):
            mask_tag(x)
            red_a(x, r)
        if layer == 1:
            a('; ---- layer 1: x slice, query projection partials')
            set_tags(k1)
            page_break()
            if OPT['probe'] and OPT['vlate']:
                count_votes()
            g_pace(1)
            x_gather(1, G_D)
            stamp(pre + ' E5 ok')
            x_to_lds(k1)
            a('s_waitcnt lgkmcnt(0)')
            proj(vWQ, k1, layer)
            stamp(pre + ' Q pub')
            a('; ---- layer 1: gather q')
            l_gather(k1, spec, ln_spec, [ln_mean])
            stamp(pre + ' E1 ok')
        red_b(r, r)
        a('v_fma_f32 %s, -%s, %s, %s' % (v(r), v(vMean), v(vCq), v(r)))
        a('v_cvt_pk_bf16_f32 %s, %s, %s' % (v(r), v(r), v(r)))
        a('ds_write_b16 %s, %s offset:%d' % (v(vQw), v(r), QB))
        ln_rstd_a()
        a('s_waitcnt lgkmcnt(0)')
        stamp('z%d qw' % layer)
        a('s_barrier')
        stamp('z%d qb' % layer)
        a('; ---- layer %d: attention over this member\'s 128 keys' % layer)
        for kk in range(4):
            a('ds_read_b128 %s, %s offset:%d' % (v(vA + 4 * kk, 4), v(vOpR), QB + 64 * kk))
        ln_rstd_b(True)
        set_tags(k2)
        for kk in range(4):
            lgkm(3 - kk)
            for g in range(2):
                mfma(vD + 4 * g, vA + 4 * kk, vK + 16 * g + 4 * kk, vD + 4 * g if kk else None)
        stamp('z%d qk' % layer)
        if layer == 0:
            tr_reads(vV, trq, VI, 4, 8192, 1024)
        sg = vSt
        mx, e0 = T, T + 1
        a('v_max_f32 %s, %s, %s' % (v(mx), v(vD), v(vD + 4)))
        a('v_cndmask_b32 %s, %s, %s, %s' % (v(e0), v(vD), v(vD + 4), s(sM0, 2)))
        for ro in (8, 4, 2, 1):
            dpp('v_max_f32', mx, mx, mx, 'row_ror:%d' % ro)
        a('v_mul_f32 %s, %s, %s' % (v(sg), v(vCs), v(mx)))
        a('v_fma_f32 %s, %s, %s, -%s' % (v(e0), v(e0), v(vCs), v(sg)))
        a('v_exp_f32 %s, %s' % (v(sg + 1), v(e0)))
        stamp('z%d ex' % layer)
        a('ds_write_b32 %s, %s offset:%d' % (v(vMw), v(sg), MB))
        a('v_cvt_pk_bf16_f32 %s, %s, %s' % (v(e0), v(sg + 1), v(sg + 1)))
        a('ds_write_b16 %s, %s offset:%d' % (v(vPw), v(e0), PB))
        if layer == 0:
            tr_reads(vV + 16, trq + 1, VI, 4, 8192, 1024)
        for ro in (8, 4, 2):
            dpp('v_add_f32', sg + 1, sg + 1, sg + 1, 'row_ror:%d' % ro)
        a('s_waitcnt lgkmcnt(0)')
        stamp('z%d pw' % layer)
        a('s_barrier')
        stamp('z%d pb' % layer)
        mm = T + 4
        a('ds_read_b32 %s, %s offset:%d' % (v(mm), v(vMr), MB))
        for kk in range(4):
            a('ds_read_b128 %s, %s offset:%d' % (v(vA + 4 * kk, 4), v(vOpR), PB + 64 * kk))
        dpp('v_add_f32', sg + 1, sg + 1, sg + 1, 'row_ror:1')
        dpp('v_add_f32', sg + 1, sg + 1, sg + 1, 'row_bcast:15', 0xa)
        a('s_mov_b64 exec, 0x10000')
        lstore('global_store_dwordx4', v(vStP), v(sg, 4), 512 * (k2 & 1))
        a('s_mov_b64 exec, -1')

        def sel(kk):
            a('v_cndmask_b32 %s, %s, %s, %s' % (v(T + 8 + kk), v(vD + 8 * kk), v(vD + 8 * kk + 4), s(sM0, 2)))

        def bc(kk):
            a('v_mov_b32_dpp %s, %s quad_perm:[%d,%d,%d,%d] row_mask:0xf bank_mask:0xf' % (v(T + 16 + kk), v(mm), kk, kk, kk, kk))

        def acc(kk):
            a('%s %s, %s, %s' % ('v_fmac_f32' if kk else 'v_mul_f32', v(T), v(T + 16 + kk), v(T + 8 + kk)))
        lgkm(3)
        stamp('z%d pr' % layer)
        mfma(vD, vA, vV)
        dpp('v_max_f32', mx, mm, mm, X1)
        mfma(vD + 4, vA, vV + 16)
        lgkm(2)
        mfma(vD + 8, vA + 4, vV + 4)
        dpp('v_max_f32', mx, mx, mx, X2)
        mfma(vD + 12, vA + 4, vV + 20)
        a('v_sub_f32 %s, %s, %s' % (v(mm), v(mm), v(mx)))
        lgkm(1)
        mfma(vD + 16, vA + 8, vV + 8)
        a('v_exp_f32 %s, %s' % (v(mm), v(mm)))
        mfma(vD + 20, vA + 8, vV + 24)
        lgkm(0)
        bc(0)
        mfma(vD + 24, vA + 12, vV + 12)
        bc(1)
        bc(2)
        mfma(vD + 28, vA + 12, vV + 28)
        stamp('z%d pv' % layer)
        stats_load(k2)
        sel(0)
        sel(1)
        acc(0)
        acc(1)
        sel(2)
        acc(2)
        bc(3)
        a('s_mov_b32 exec_hi, 0')
        sel(3)
        acc(3)
        a('v_bfi_b32 %s, %s, %s, %s' % (v(T), v(vTagM), s(sTag + k2), v(T)))
        lstore('global_store_dword', v(vPubL), v(T), BUF_A if k2 % 2 == 0 else BUF_B)
        a('s_mov_b32 exec_hi, -1')
        stamp(pre + ' S pub')
        if layer == 0 and OPT['fl'] and OPT['flp'] == 1:
            a('s_waitcnt vmcnt(0)')
            flag_store(sTag + 6)
            stats_load(k2)
            lstore('global_store_dword', v(vStP), v(vSt), 512 * (k2 & 1))
        a('; ---- layer %d: combine the 8 key blocks, output projection partials' % layer)
        mj, mg, mo, lo = T, T + 1, vC, vC + 1

        def sm_spec(x):
            dpp('v_max_f32', mj, x, x, X1)
            a('v_mov_b32 %s, %s' % (v(mo), v(x)))
            a('v_mov_b32 %s, %s' % (v(lo), v(x + 1)))

        def sm0():
            allred('v_max_f32', mj, T + 2, [1])
            dpp('v_max_f32', mg, mj, mj, 'row_ror:8')
            allred('v_max_f32', mg, T + 2, [4, 5])

        def sm1():
            a('v_sub_f32 %s, %s, %s' % (v(mo), v(mo), v(mg)))
            a('v_sub_f32 %s, %s, %s' % (v(mj), v(mj), v(mg)))
            a('v_exp_f32 %s, %s' % (v(mo), v(mo)))
            a('v_exp_f32 %s, %s' % (v(mj), v(mj)))
            a('v_mul_f32 %s, %s, %s' % (v(mo), v(mo), v(lo)))
            allred('v_add_f32', mo, T + 2, [0, 1, 3, 4, 5])
            a('v_rcp_f32 %s, %s' % (v(mo), v(mo)))
            a('v_mul_f32 %s, %s, %s' % (v(vF), v(mj), v(mo)))

        def spec2(x):
            mask_tag(x)
            a('v_pk_mul_f32 %s, %s, %s op_sel_hi:[1,0]' % (v(x + 2, 2), v(x + 2, 2), v(vF, 2)))
            a('v_pk_mul_f32 %s, %s, %s op_sel_hi:[1,0]' % (v(x, 2), v(x, 2), v(vF, 2)))
            red_a(x, r)
        l_gather(k2, spec2, sm_spec, [sm0, sm1], hook=(lambda: flag_store(sTag + 6)) if layer == 0 and OPT['fl'] and OPT['flp'] == 0 else None)
        stamp(pre + ' E2 ok')
        red_b(r, r)
        a('v_cvt_pk_bf16_f32 %s, %s, %s' % (v(r), v(r), v(r)))
        a('ds_write_b16 %s, %s offset:%d' % (v(vQw), v(r), OB))

        def ffn_rest():
            issue_w13(FE, 4)
            if not OPT['w2e']:
                issue_w2()
        if layer == 0 and OPT['ff'] >= 2:
            ffn_rest()
        a('s_waitcnt lgkmcnt(0)')
        a('s_barrier')
        if layer == 0:
            tr_reads(vWO, vTr, 0, 4, 4096, 512)
        gemv_publish_g(4, vWO, OB, 2 * layer, G_C)
        stamp(pre + ' O pub')
        a('; ---- layer %d: x slice, gate/up partials' % layer)
        set_tags(k4)
        if layer == 0 and OPT['ff'] == 1:
            nrest = 4 - FE + (0 if OPT['w2e'] else 2)
            if OPT['fl']:
                a('v_lshlrev_b32 %s, 7, %s' % (v(T + 5), v(vL)))
                a('v_add_u32 %s, %d, %s' % (v(T + 5), WS_F, v(T + 5)))
                flag_load()
            ffn_rest()
            if OPT['fl']:
                flag_wait(nrest)
            else:
                a('s_waitcnt vmcnt(%d)' % nrest)
            stamp('G0 ack')
            x_gather(0, G_C, work=probe_near if OPT['probe'] else None)
        else:
            if layer == 0 and OPT['probe']:
                probe_near()
                if not OPT['vlate']:
                    count_votes()
            if layer == 0 and OPT['fl']:
                a('v_lshlrev_b32 %s, 7, %s' % (v(T + 5), v(vL)))
                a('v_add_u32 %s, %d, %s' % (v(T + 5), WS_F, v(T + 5)))
                flag_load()
                flag_wait(0)
            if layer or OPT['ff'] != 3:
                g_pace(2 * layer)
            else:
                for i in range(OPT.get('xs', 0)):
                    a('s_nop 15')
                stamp('G0 ack')
            x_gather(2 * layer, G_C)
        stamp(pre + ' E3 ok')
        x_to_lds(k4)
        a('s_cmp_eq_u32 %s, 3' % s(sW))
        a('s_waitcnt lgkmcnt(0)')
        idle = newlabel('idle')

        def w_regs():
            tr_reads(vW13, vTr, W1 - WO, 2, 4096, 512)
            tr_reads(vW13 + 8, vTr, W3 - WO, 2, 4096, 512)
        proj(vW13, k4, layer, extra=w_regs if layer == 0 else None, skip=idle)
        stamp(pre + ' G pub')
        a('; ---- layer %d: gather gate/up, activation' % layer)

        def ln_all():
            ln_mean()
            ln_rstd_a()
            ln_rstd_b(False)
        if layer == 0:
            loads = [(r, vCons, sLb, BUF_A), (r + 4, vCons, sLb, BUF_X)]

            def data():
                ln_spec(vSs[0])
                for x in loads:
                    gload(*x)

            def spec4():
                mask_tag(r)
                mask_tag(r + 4)
                red_a(r, r)
            poll([(vSs[0], vStC, sLb, 0)], lambda: chk_stats(vSs[0], k4), data, cnt=1, issued=True)
            poll(loads, lambda: chk_byte([r, r + 4], sTag + k4), spec4, work=ln_all, issued=True)
            red_a(r + 4, r + 4)
            red_b(r + 4, vCg)
        else:
            l_gather(k4, spec, ln_spec, [ln_mean, ln_rstd_a, lambda: ln_rstd_b(False)])
        stamp(pre + ' E4 ok')
        red_b(r, r)
        a('v_fma_f32 %s, -%s, %s, %s' % (v(r), v(vMean), v(vCg), v(r)))
        a('v_mul_f32 %s, %s, %s' % (v(r), v(r), v(vRs)))
        bf16r(r, r)
        a('v_mul_f32 %s, %s, %s' % (v(r + 1), s(sNl2e), v(r)))
        a('v_exp_f32 %s, %s' % (v(r + 1), v(r + 1)))
        a('v_and_b32_dpp %s, %s, %s row_shl:4 row_mask:0xf bank_mask:0xf' % (v(r + 2), v(r), v(vHmask)))
        a('v_add_f32 %s, 1.0, %s' % (v(r + 1), v(r + 1)))
        a('v_rcp_f32 %s, %s' % (v(r + 1), v(r + 1)))
        a('v_mul_f32 %s, %s, %s' % (v(r), v(r), v(r + 1)))
        bf16r(r, r)
        a('v_mul_f32 %s, %s, %s' % (v(r), v(r), v(r + 2)))
        a('v_cvt_pk_bf16_f32 %s, %s, %s' % (v(r), v(r), v(r)))
        a('ds_write_b16 %s, %s' % (v(vHw), v(r)))
        a.label(idle)
        if layer == 0:
            a('v_and_b32 %s, 32, %s' % (v(T + 1), v(vL)))
            a('v_lshlrev_b32 %s, 6, %s' % (v(T + 1), v(T + 1)))
            a('v_sub_u32 %s, %s, %s' % (v(T + 1), v(vTr), v(T + 1)))
            tr_reads(vW2, vTr, W2 - WO, 1, 4096, 512)
            tr_reads(vW2 + 4, T + 1, W2 - WO + 4096, 1, 4096, 512)
        a('s_waitcnt lgkmcnt(0)')
        a('s_barrier')
        gemv_publish_g(2, vW2, HB, 2 * layer + 1, G_D)
        stamp(pre + ' D pub')

    a('; ---- final sum (group 0 only)')
    a('s_cmp_lg_u32 %s, 0' % s(sGam))
    a('s_cbranch_scc1 L_fin')
    g_pace(3)
    x_gather(3, G_D)
    a('s_mov_b32 exec_lo, 0x000f000f')
    a('s_mov_b32 exec_hi, 0x000f000f')
    a('global_store_short %s, %s, s[22:23]' % (v(vXw), v(T)))
    a('s_or_b32 s55, %s, %s' % (s(sJ), s(sW)))
    a('s_cmp_lg_u32 s55, 0')
    a('s_cbranch_scc1 L_fin')
    a('s_add_u32 s55, %s, 16' % s(sE))
    a('v_mov_b32 %s, s55' % v(T + 1))
    a('s_mov_b64 exec, 1')
    a('global_store_dword %s, %s, s[26:27]' % (v(vZero), v(T + 1)))


front()
FAST[0] = bool(OPT['fast'])
tail()
a.label('L_fin')
if OPT.get('wb'):
    a('buffer_wbl2 sc1')
if OPT.get('delay'):
    if 'only' in OPT:
        a('s_cmp_lg_u32 s2, %d' % OPT['only'])
        a('s_cbranch_scc1 L_end')
    a.label('L_dly')
    a('s_memrealtime s[6:7]')
    a('s_waitcnt lgkmcnt(0)')
    a('s_sub_u32 s8, s6, s100')
    a('s_cmp_lt_u32 s8, %d' % OPT.get('until', 3000))
    a('s_cbranch_scc1 L_dly')
if DIAG:
    a('s_mov_b64 exec, -1')
    a('s_memrealtime s[4:5]')
    a('s_waitcnt lgkmcnt(0)')
    a('v_mov_b32 %s, 0' % v(T))
    for i in range(len(stamps)):
        a('v_writelane_b32 %s, %s, %d' % (v(T), s(stamp_regs[i]), i))
    a('v_writelane_b32 %s, s4, %d' % (v(T), len(stamps)))
    a('v_xor_b32 %s, %s, %s' % (v(T + 2), v(vConsG), v(vConsG0)))
    a('v_readfirstlane_b32 s6, %s' % v(T + 2))
    a('v_writelane_b32 %s, s6, 62' % v(T))
    a('v_writelane_b32 %s, s12, 61' % v(T))
    a('v_writelane_b32 %s, s13, 60' % v(T))
    a('v_writelane_b32 %s, %s, 63' % (v(T), s(sXcc)))
    a('s_lshl_b32 s55, s2, 2')
    a('s_add_u32 s55, s55, %s' % s(sW))
    a('s_lshl_b32 s55, s55, 8')
    a('s_add_u32 s55, s55, %d' % WS_DIAG)
    a('v_lshl_add_u32 %s, %s, 2, s55' % (v(T + 1), v(vL)))
    a('global_store_dword %s, %s, s[26:27]' % (v(T + 1), v(T)))
a.label('L_end')
a('s_endpgm')
a.label('L_fastend')
if OPT['fast']:
    a('; ==== the same phases with write-through stores: taken when the group is spread over several XCDs')
    a.label('L_slowtail')
    FAST[0] = False
    a.hist = []
    a('s_nop 1')
    tail()
    a('s_branch L_fin')
a.raw('''.section .rodata,"a"
.p2align 6
.amdhsa_kernel %s_kernel
  .amdhsa_next_free_vgpr %d
  .amdhsa_next_free_sgpr 102
  .amdhsa_accum_offset %d
  .amdhsa_group_segment_fixed_size 0
  .amdhsa_kernarg_size 96
  .amdhsa_user_sgpr_count 2
  .amdhsa_user_sgpr_kernarg_segment_ptr 1
  .amdhsa_system_sgpr_workgroup_id_x 1
  .amdhsa_float_denorm_mode_32 3
.end_amdhsa_kernel''' % (NAME, NVGPR, NVGPR))
sys.stdout.write(a.text())
if DIAG:
    sys.stderr.write('STAMPS ' + '|'.join(stamps + ['end']) + '\n')
sys.stderr.write('nops inserted: %d\n' % a.nops)
```

```python
import sys, math, struct
from asm import Asm

NAME = 'interleave_layers__sliding_block_cached__glu_gated_swiglu__decode'
OPT = dict(diag=0, fast=1, nt=1, kw=5, fe=0, wol=1, probe=1, vw=1, thr=90, pages=1, cnt=0, early=2, d0=0, refresh=0, spipe=1, late_rs=1, na=0, nsl=0, w2e=0, ff=7, vlate=0, fl=0, flp=0, pad=0, nva=8, ksplit=0, wopos=0, ool=0, stg=1, vq=0)
for a_ in sys.argv[1:]:
    k_, v_ = a_.split('=')
    OPT[k_] = int(v_)
DIAG = OPT['diag']
NT = ' nt' if OPT['nt'] else ''
STAGE = not DIAG or DIAG == 6

XB, ONES, QB, OB, HB, MB, DUMMY, PB = 0, 128, 256, 512, 768, 896, 960, 1024
WQ, VI, WO = 4096, 20480, 53248
W1, W3, W2 = WO + 16384, WO + 24576, WO + 32768
KI = WO + 38912
LDS_BYTES = KI + 32768
WS_F = 0x10000
WS_L, WS_P, WS_G, WS_DIAG = 0x40000, 0xc0000, 0x100000, 0x200000
WS_L2D = 0x140000 + 0x100000 * OPT['pad']
BUF_A, BUF_X, BUF_B, STATS, VOTES = 0, 1024, 2048, 3072, 7168
ST0 = 8192
PAD = OPT['pad']
GOFF = 4096 * PAD
G_C, G_D, G_H = -GOFF, (2048 << PAD) - GOFF, 1024 << PAD
G_X = (0x20000 << PAD) | 0x2000
WSH = 1 - PAD

vL, vCons, vPubL, vPw, vPubG, vStP, vStC, vTagM, vStP2 = range(1, 10)
vXw, vQw, vHw, vOpR, vXopR, vConsG, vConsG0, vCs, vZero, vMw = range(10, 20)
trq, vTr, vHmask, vX, vCq, vCg, vMean, vRs = 20, 22, 23, 24, 25, 26, 27, 28
vMr, vF = 29, 30
vWQ, vK, vV, vWO, vW13, vW2 = 32, 48, 80, 112, 128, 144
wo0, wo1, f0, f1, vPre, vVo = 144, 145, 146, 147, 148, 149
T = 152
vC = T + 12
vA = 176
vD = 192
vP = 224
vSt, vSt4 = 232, 236
vDs, vSs = [240, 244], [248, 252]
NVGPR = 256
sW, sJ, sGam, sPr, sE, sC0, sCnt, sXcc, sTo = 28, 29, 30, 31, 32, 33, 34, 35, 36
sLb, sGb0, sGb1 = 38, 40, 14
sPc, sT1 = 42, 44
sCs, sMaskHi, sInv512, sEps, sNl2e = 50, 51, 52, 53, 54
sM0, sM1, sHi, sM2 = 56, 42, 46, 58
sTag = 60

a = Asm()
stamp_regs = list(range(70, 102, 2))
stamps = []
nstamp = [0]
lbl = [0]
FAST = [False]


def v(n, cnt=1):
    return 'v%d' % n if cnt == 1 else 'v[%d:%d]' % (n, n + cnt - 1)


def s(n, cnt=1):
    return 's%d' % n if cnt == 1 else 's[%d:%d]' % (n, n + cnt - 1)


def stamp(name):
    nstamp[0] += 1
    if OPT.get('delay') == 3 and OPT.get('at', 1) == nstamp[0]:
        a('s_memrealtime s[100:101]')
        sys.stderr.write('delay anchored at ' + name + '\n')
    keep = {0: False, 1: name[:2] not in ('L1', 'x ') and name[0] not in 'Gz', 2: name[:2] == 'L1', 5: name[0] == 'G' or name[3:] in ('O pub', 'D pub', 'E3 ok', 'E5 ok') or name in ('L0 E1 ok', 'L0 S pub', 'L0 E2 ok'),
            6: False, 7: name[:2] in ('L1', 'x '), 8: name[:2] == 'z1' or name in ('L1 E1 ok', 'L1 S pub', 'L1 E2 ok', 'L1 O pub', 'L1 E5 ok', 'L1 Q pub')}[DIAG]
    if not (keep or DIAG and name == 'start'):
        return
    if name not in stamps:
        if len(stamps) >= len(stamp_regs):
            return
        stamps.append(name)
    r = stamp_regs[stamps.index(name)]
    if OPT['cnt'] and name != 'start':
        a('s_sub_u32 %s, 0x40000, %s' % (s(r), s(sTo)))
    else:
        a('%s %s' % ('s_memtime' if DIAG in (7, 8) and name != 'x rt0' else 's_memrealtime', s(r, 2)))


def f32(x):
    return '0x%08x' % struct.unpack('<I', struct.pack('<f', x))[0]


def newlabel(p):
    lbl[0] += 1
    return 'L_%s_%d' % (p, lbl[0])


def lgkm(n):
    a('s_waitcnt lgkmcnt(%d)' % (n if STAGE else 0))


def mfma(d, x, y, c=None):
    a('v_mfma_f32_16x16x32_bf16 %s, %s, %s, %s' % (v(d, 4), v(x, 4), v(y, 4), '0' if c is None else v(c, 4)))


def dpp(op, d, x, y, ctl, rm=0xf):
    a('%s_dpp %s, %s, %s %s row_mask:0x%x bank_mask:0xf' % (op, v(d), v(x), v(y), ctl, rm))


X1, X2 = 'quad_perm:[1,0,3,2]', 'quad_perm:[2,3,0,1]'


def lstore(op, addr, data, off):
    a('%s %s, %s, %s offset:%d%s' % (op, addr, data, s(sLb, 2), off, '' if FAST[0] else ' sc1'))


def gload(d, vo, b, im):
    a('global_load_dwordx4 %s, %s, %s offset:%d sc1' % (v(d, 4), v(vo), s(b, 2), im))


def tick():
    a('s_sub_u32 %s, %s, 1' % (s(sTo), s(sTo)))
    a('s_cbranch_scc1 L_end')


deferred = []


def flush_deferred(jump=True):
    if not deferred:
        return
    l = newlabel('skip')
    if jump:
        a('s_branch %s' % l)
    hist = a.hist
    while deferred:
        a.hist = []
        deferred.pop(0)()
    a.hist = hist
    a.label(l)


def poll(loads, check, spec, work=None, cnt=0, issued=False, backoff=0):
    top, ent = newlabel('poll'), newlabel('pent')
    if not issued:
        for x in loads:
            gload(*x)
    if work:
        work()

    def retry():
        a.label(top)
        tick()
        if backoff:
            a('s_sleep %d' % backoff)
        for x in loads:
            gload(*x)
        if cnt:
            a('s_waitcnt vmcnt(0)')
        if OPT['ool']:
            a('s_branch %s' % ent)
    if OPT['ool']:
        deferred.append(retry)
    else:
        a('s_branch %s' % ent)
        retry()
    a.label(ent)
    a('s_waitcnt vmcnt(%d)' % cnt)
    check()
    if spec:
        spec()
    a('s_cbranch_vccnz %s' % top)


def ring2(sets, issue, check, spec, cnt1, cnt0, first):
    top, ent, done = newlabel('ring'), newlabel('rent'), newlabel('rdone')

    def retry():
        a.label(top)
        tick()
        issue(sets[0])
        a('s_waitcnt vmcnt(%d)' % cnt1)
        check(sets[1])
        spec(sets[1])
        a('s_cbranch_vccz %s' % done)
        issue(sets[1])
        if first != cnt0:
            a('s_waitcnt vmcnt(%d)' % cnt0)
        if OPT['ool']:
            a('s_branch %s' % ent)
    if OPT['ool']:
        deferred.append(retry)
    else:
        a('s_branch %s' % ent)
        retry()
    a.label(ent)
    a('s_waitcnt vmcnt(%d)' % first)
    check(sets[0])
    spec(sets[0])
    a('s_cbranch_vccnz %s' % top)
    a.label(done)


def chk_byte(regs, tag):
    if len(regs) == 1:
        a('v_cmp_ne_u32_sdwa vcc, %s, %s src0_sel:BYTE_0 src1_sel:BYTE_0' % (v(regs[0]), s(tag)))
    else:
        a('v_bitop3_b32 %s, %s, %s, %s bitop3:0x7e' % (v(T + 23), v(regs[0]), v(regs[1]), s(tag)))
        a('v_cmp_ne_u32_sdwa vcc, %s, %s src0_sel:BYTE_0 src1_sel:DWORD' % (v(T + 23), v(vZero)))


def chk_stats(x, k):
    a('v_cmp_ne_u32 vcc, %s, %s' % (s(sTag + k), v(x + (2 if k % 3 == 1 else 1))))


def red_a(x, c):
    a('v_permlane32_swap_b32 %s, %s' % (v(x + 1), v(x + 3)))
    a('v_add_f32 %s, %s, %s' % (v(c + 1), v(x + 1), v(x + 3)))
    a('v_permlane32_swap_b32 %s, %s' % (v(x), v(x + 2)))
    a('v_add_f32 %s, %s, %s' % (v(c), v(x), v(x + 2)))


def red_b(c, out):
    a('v_permlane16_swap_b32 %s, %s' % (v(c), v(c + 1)))
    a('v_add_f32 %s, %s, %s' % (v(c), v(c), v(c + 1)))
    dpp('v_add_f32', out, c, c, 'row_ror:8')


def mask_tag(x):
    a('v_and_b32 %s, %s, %s' % (v(x), s(sMaskHi), v(x)))


def bf16r(dst, src):
    a('v_cvt_pk_bf16_f32 %s, %s, %s' % (v(dst), v(src), v(src)))
    a('v_and_b32 %s, 0xffff0000, %s' % (v(dst), v(dst)))


def allred(op, x, t, bits):
    for b in bits:
        if b < 4:
            dpp(op, x, x, x, {0: X1, 1: X2, 3: 'row_ror:8'}[b])
        else:
            a('v_mov_b32 %s, %s' % (v(t), v(x)))
            a('v_permlane%d_swap_b32 %s, %s' % (16 if b == 4 else 32, v(x), v(t)))
            a('%s %s, %s, %s' % (op, v(x), v(x), v(t)))


def set_tags(k):
    a('v_mov_b32 %s, %s' % (v(vSt + 2), s(sTag + k)))
    if k % 3 != 1:
        a('v_cndmask_b32 %s, %s, %s, %s' % (v(vSt4 + 1), v(vSt + 2), v(vSt + 3), s(sHi, 2)))


def ln_stats(k, addr=None):
    g = vSt4
    a('v_mul_f32 %s, %s, %s' % (v(T + 7), v(vX), v(vX)))
    a('v_permlane32_swap_b32 %s, %s' % (v(g), v(T + 7)))
    a('v_add_f32 %s, %s, %s' % (v(g), v(g), v(T + 7)))
    allred('v_add_f32', g, None, [0, 1])
    dpp('v_add_f32', g, g, g, 'row_bcast:15', 0xa)
    a('s_mov_b64 exec, %s' % s(sM1, 2))
    lstore('global_store_dwordx2', v(addr or vStP2), v(g, 2), 512 * (k & 1))
    a('s_mov_b64 exec, -1')


def ln_spec(x):
    a('v_permlane32_swap_b32 %s, %s' % (v(x), v(x + 2)))
    a('v_add_f32 %s, %s, %s' % (v(vC), v(x), v(x + 2)))


def ln_mean():
    c = vC
    allred('v_add_f32', c, c + 1, [4, 3, 0, 1])
    a('v_mul_f32 %s, %s, %s' % (v(c), s(sInv512), v(c)))
    a('v_mov_b32 %s, %s' % (v(c + 1), v(c)))
    a('v_permlane32_swap_b32 %s, %s' % (v(c), v(c + 1)))
    bf16r(vMean, c)


def ln_rstd_a():
    c = vC
    a('v_fma_f32 %s, -%s, %s, %s' % (v(c + 1), v(c), v(c), v(c + 1)))
    a('v_max_f32 %s, 0, %s' % (v(c + 1), v(c + 1)))
    bf16r(c + 1, c + 1)
    a('v_add_f32 %s, %s, %s' % (v(c + 1), s(sEps), v(c + 1)))
    bf16r(c + 1, c + 1)
    a('v_sqrt_f32 %s, %s' % (v(c + 1), v(c + 1)))


def ln_rstd_b(scale):
    c = vC
    bf16r(c + 1, c + 1)
    a('v_rcp_f32 %s, %s' % (v(vRs), v(c + 1)))
    if scale:
        a('v_mul_f32 %s, %s, %s' % (v(vCs), s(sCs), v(vRs)))


def stats_load(k, x=vSs[0]):
    gload(x, vStC, sLb, 512 * (k & 1))


def l_gather(k, spec, st_spec, chain, hook=None):
    buf = BUF_A if k % 2 == 0 else BUF_B

    def d_issue(x):
        gload(x, vCons, sLb, buf)
    rf = OPT['refresh'] and OPT['d0']

    def s_issue(x):
        stats_load(k, x)
        if rf:
            d_issue(vDs[0])
    if OPT['d0']:
        d_issue(vDs[0])
    if OPT['spipe']:
        stats_load(k, vSs[1])
        flush_deferred()
        ring2(vSs, s_issue, lambda x: chk_stats(x, k), st_spec, 2 if rf else 1, 3 if rf else 1, 2 + OPT['d0'])
    else:
        flush_deferred()
        poll([(vSs[0], vStC, sLb, 512 * (k & 1))], lambda: chk_stats(vSs[0], k), lambda: st_spec(vSs[0]), cnt=1 + OPT['d0'], issued=True)
    if k >= 3:
        stamp('x st%d' % k)
    if not OPT['d0']:
        d_issue(vDs[0])
        chain[0]()
        d_issue(vDs[1])
    else:
        d_issue(vDs[1])
        chain[0]()
    if hook:
        hook()
    for c in chain[1:]:
        c()
    ring2(vDs, d_issue, lambda x: chk_byte([x], sTag + k), spec, 1, 1, 1)


def x_gather(gi, imm, work=None):
    r = vP
    base = sGb0 if gi < 2 else sGb1

    def spec():
        a('v_pk_add_f32 %s, %s, %s' % (v(r + 2, 2), v(r + 2, 2), v(r + 6, 2)))
        a('v_add_f32 %s, %s, %s' % (v(r + 1), v(r + 1), v(r + 5)))
        mask_tag(r)
        mask_tag(r + 4)
        a('v_add_f32 %s, %s, %s' % (v(r), v(r), v(r + 4)))
        red_a(r, r)
    poll([(r, vConsG, base, imm), (r + 4, vConsG, base, imm + G_H)], lambda: chk_byte([r, r + 4], sTag + 6 + gi), spec, work=work, backoff=OPT.get('g%ds' % gi, 0))
    red_b(r, r)
    dpp('v_add_f32', r, r, r, 'row_ror:4')
    bf16r(r, r)
    a('v_add_f32 %s, %s, %s' % (v(r), v(r), v(vX)))
    a('v_cvt_pk_bf16_f32 %s, %s, %s' % (v(T), v(r), v(r)))


def x_to_lds(k):
    a('ds_write_b16 %s, %s offset:%d' % (v(vXw), v(T), XB))
    a('v_and_b32 %s, 0xffff0000, %s' % (v(vX), v(T)))
    a('v_and_b32 %s, 0xffff0000, %s' % (v(vSt4), v(T)))
    ln_stats(k)


def tr_pair(dst, addr, off, gstride):
    for g in range(2):
        a('ds_read_b64_tr_b16 %s, %s offset:%d' % (v(dst + 2 * g, 2), v(addr), off + g * gstride))


def proj(wreg, k, layer, wsrc=None, first=False, skip=None):
    rd = vXopR if layer == 0 else vOpR
    a('s_barrier')
    for kk in range(2):
        a('ds_read_b128 %s, %s offset:%d' % (v(vA + 4 * kk, 4), v(rd), XB + 64 * kk))
        if wsrc:
            for cg in range(2):
                ad, off, ks, gs = wsrc[cg]
                tr_pair(wreg + 8 * cg + 4 * kk, ad, off + kk * ks, gs)
    if skip:
        a('s_cbranch_scc1 %s' % skip)
    if not first and OPT['early'] == 1:
        stats_load(k)
    lgkm(7 if wsrc else 1)
    mfma(vD, vA, wreg)
    if wsrc:
        lgkm(5)
    mfma(vD + 4, vA, wreg + 8)
    if not first and OPT['early'] == 2:
        stats_load(k)
    lgkm(2 if wsrc else 0)
    mfma(vD, vA + 4, wreg + 4, vD)
    if wsrc:
        lgkm(0)
    mfma(vD + 4, vA + 4, wreg + 12, vD + 4)
    if not first and OPT['early'] == 0:
        stats_load(k)
    if layer == 1:
        a('s_mov_b32 exec_hi, 0')
    a('v_cndmask_b32 %s, %s, %s, %s' % (v(T), v(vD), v(vD + 4), s(sM0, 2)))
    a('v_bfi_b32 %s, %s, %s, %s' % (v(T), v(vTagM), s(sTag + k), v(T)))
    lstore('global_store_dword', v(vPubL), v(T), BUF_A if k % 2 == 0 else BUF_B)
    if layer == 1:
        a('s_mov_b32 exec_hi, -1')


def tr_reads(dst, addr, base, nk, kstride, gstride):
    for kk in range(nk):
        for g in range(2):
            a('ds_read_b64_tr_b16 %s, %s offset:%d' % (v(dst + 4 * kk + 2 * g, 2), v(addr), base + kk * kstride + g * gstride))


def gemv_publish_g(nk, wreg, src, gi, imm, tr=False, mid=None, post=None):
    for kk in range(nk):
        a('ds_read_b128 %s, %s offset:%d' % (v(vA + 4 * kk, 4), v(vOpR), src + 64 * kk))
        if tr:
            tr_pair(wreg + 4 * kk, vTr, 4096 * kk, 512)
    if mid:
        mid()
    for kk in range(nk):
        lgkm((nk - 1 - kk) * (3 if tr else 1))
        mfma(vD, vA + 4 * kk, wreg + 4 * kk, vD if kk else None)
    if post:
        post()
    if not PAD:
        a('s_mov_b32 exec_hi, 0')
    a('v_bfi_b32 %s, %s, %s, %s' % (v(T), v(vTagM), s(sTag + 6 + gi), v(vD)))
    st = 'global_store_dword %s, %s, %s offset:%d sc1' % (v(vPubG), v(T), s(sGb0 if gi < 2 else sGb1, 2), imm)
    if OPT['na'] and gi:
        a('s_mov_b32 exec_lo, s37')
        a(st)
        a('s_not_b32 exec_lo, s37')
        a(st)
        a('s_mov_b64 exec, -1')
    else:
        a(st)
        if not PAD:
            a('s_mov_b32 exec_hi, -1')


def g_pace(gi):
    flush_deferred()
    if OPT['na'] and gi:
        a('s_waitcnt vmcnt(1)')
        for i in range(OPT['nsl']):
            a('s_nop 7')
    else:
        a('s_waitcnt vmcnt(0)')
    if OPT.get('g%dd' % gi):
        a('s_sleep %d' % OPT['g%dd' % gi])
    stamp('G%d ack' % gi)


def probe_near():
    a('s_not_b32 s4, %s' % s(sE))
    a('s_xor_b32 s55, %s, 8192' % s(sPr))
    a('s_waitcnt lgkmcnt(0)')
    a('s_load_dword s4, s[26:27], %s' % s(sPr))
    a('s_load_dword s5, s[26:27], s55')
    a('s_lshl_b32 s59, %s, 2' % s(sJ))
    a('s_add_u32 s59, s59, %s' % s(sW))
    a('s_lshl_b32 s59, s59, 3')
    a('s_add_u32 s59, s59, %d' % VOTES)
    a('v_mov_b32 %s, s59' % v(T + 1))
    a('v_mov_b32 %s, %s' % (v(T + 3), s(sTag + 2)))
    a('s_waitcnt lgkmcnt(1)')
    a('s_memtime s[8:9]')
    a('s_cmp_eq_u32 s4, %s' % s(sE))
    a('s_cselect_b32 s6, %d, -1' % OPT['thr'])
    a('s_waitcnt lgkmcnt(0)')
    a('s_memtime s[10:11]')
    a('s_waitcnt lgkmcnt(0)')
    a('s_sub_u32 s7, s10, s8')
    a('s_cmp_gt_u32 s7, s6')
    a('s_cselect_b32 s6, 1, 0')
    if DIAG:
        a('s_mov_b32 s12, s7')
    a('v_mov_b32 %s, s6' % v(T + 2))
    a('s_mov_b64 exec, 1')
    lstore('global_store_dwordx2', v(T + 1), v(T + 2, 2), 0)
    a('s_mov_b64 exec, -1')


def count_votes():
    a('v_and_b32 %s, 31, %s' % (v(T + 4), v(vL)))
    a('v_lshlrev_b32 %s, 3, %s' % (v(T + 4), v(T + 4)))
    a('v_add_u32 %s, %d, %s' % (v(T + 4), VOTES, v(T + 4)))
    if OPT['vw'] and not OPT['vlate']:
        a('s_waitcnt vmcnt(0)')
    a('global_load_dwordx2 %s, %s, %s sc1' % (v(T + 2, 2), v(T + 4), s(sLb, 2)))
    a('s_lshr_b32 s55, %s, 1' % s(sW) if WSH else 's_and_b32 s55, %s, 1' % s(sW))
    a('s_xor_b32 s59, s55, 1')
    a('s_waitcnt vmcnt(0)')
    a('v_xor_b32 %s, %s, %s' % (v(T + 3), s(sTag + 2), v(T + 3)))
    a('v_xor_b32 %s, 1, %s' % (v(T + 2), v(T + 2)))
    a('v_or_b32 %s, %s, %s' % (v(T + 2), v(T + 2), v(T + 3)))
    a('v_cmp_eq_u32 vcc, 0, %s' % v(T + 2))
    a('s_and_b32 s4, vcc_lo, 0x%x' % (0x33333333 if WSH else 0x55555555))
    a('s_and_b32 s5, vcc_lo, 0x%x' % (0xcccccccc if WSH else 0xaaaaaaaa))
    a('s_bcnt1_i32_b32 s4, s4')
    a('s_bcnt1_i32_b32 s5, s5')
    if DIAG:
        a('s_lshl_b32 s13, s4, 8')
        a('s_add_u32 s13, s13, s5')
    a('s_cmp_ge_u32 s4, s5')
    a('s_cselect_b32 s55, s55, s59')
    if OPT['na']:
        a('s_cmp_eq_u32 s55, 0')
        a('s_cselect_b32 s37, 0xffff, %s' % s(sM0))
    a('s_mul_i32 s55, s55, 0x%x' % G_X)
    a('v_xor_b32 %s, s55, %s' % (v(vConsG), v(vConsG0)))


def flag_store(val):
    sk = newlabel('nofl')
    a('s_or_b32 s55, %s, %s' % (s(sJ), s(sW)))
    a('s_cbranch_scc1 %s' % sk)
    a('s_lshl_b32 s55, %s, 7' % s(sGam))
    a('s_add_u32 s55, s55, %d' % WS_F)
    a('v_lshl_add_u32 %s, %s, 2, s55' % (v(T + 21), v(vL)))
    a('v_mov_b32 %s, %s' % (v(T + 20), s(val)))
    a('s_mov_b32 exec_hi, 0')
    a('global_store_dword %s, %s, s[26:27] sc1' % (v(T + 21), v(T + 20)))
    a('s_mov_b32 exec_hi, -1')
    a.label(sk)


def flag_load():
    a('s_mov_b32 exec_hi, 0')
    a('global_load_dword %s, %s, s[26:27] sc1' % (v(T + 6), v(T + 5)))
    a('s_mov_b32 exec_hi, -1')


def flag_wait(cnt):
    top, ent = newlabel('fl'), newlabel('fle')
    a('s_branch %s' % ent)
    a.label(top)
    tick()
    flag_load()
    a('s_waitcnt vmcnt(0)')
    a.label(ent)
    a('s_waitcnt vmcnt(%d)' % cnt)
    a('v_cmp_ne_u32 vcc, %s, %s' % (s(sTag + 6), v(T + 6)))
    a('s_cmp_lg_u32 vcc_lo, 0')
    a('s_cbranch_scc1 %s' % top)


def page_break(force=False):
    if OPT['pages'] and (FAST[0] or force):
        l = newlabel('page')
        a('s_branch %s' % l)
        flush_deferred(False)
        a.raw('.p2align 12')
        a.label(l)


a.raw('''; One persistent launch, 256 workgroups = 32 groups (attention head / slice of the ffn columns) x 8 members.
; Weights and the K/V window are read once and stay in registers for both layers; workgroups hand over partial sums
; through d_ws in 64-byte tagged sectors (tag = epoch word found in d_ws + index of the hand-off).
; @launch grid=(256,1,1) block=(256,1,1) lds=%d
.amdgcn_target "amdgcn-amd-amdhsa--gfx950"
.text
.p2align 12
.globl %s_kernel
.p2align 8
.type %s_kernel,@function
%s_kernel:''' % (LDS_BYTES, NAME, NAME, NAME))
a('s_cmp_ge_u32 s2, 256')
a('s_cbranch_scc1 L_end')
a('s_load_dwordx16 s[4:19], s[0:1], 0')
a('s_load_dwordx8 s[20:27], s[0:1], 64')
stamp('start')
stamp('x rt0')
a('s_getpc_b64 %s' % s(sPc, 2))
a.label('L_pc')
a('v_lshlrev_b32 %s, 6, v0' % v(T))
a('v_min_u32 %s, L_fastend-L_pc-64, %s' % (v(T), v(T)))
a('global_load_dword %s, %s, %s' % (v(T + 22), v(T), s(sPc, 2)))
a('v_lshrrev_b32 %s, 6, v0' % v(T))
a('v_and_b32 %s, 63, v0' % v(vL))
a('v_readfirstlane_b32 %s, %s' % (s(sW), v(T)))
a('s_lshr_b32 s3, s2, 3')
a('s_and_b32 %s, s3, 7' % s(sJ))
a('s_lshr_b32 s3, s3, 3')
a('s_and_b32 s31, s2, 7')
a('s_lshl_b32 %s, s31, 2' % s(sGam))
a('s_add_u32 %s, %s, s3' % (s(sGam), s(sGam)))
u16, pos16, u8, pos8, l3, col16 = T + 1, T + 2, T + 3, T + 4, T + 5, T + 6
t0, t1, t2, t3 = T + 8, T + 9, T + 10, T + 11
k0 = T + 12


def pro_wq():
    a('v_lshrrev_b32 %s, 4, %s' % (v(u16), v(vL)))
    a('v_and_b32 %s, 15, %s' % (v(pos16), v(vL)))
    a('v_lshlrev_b32 %s, 1, %s' % (v(t2), v(u16)))
    a('v_xor_b32 %s, %s, %s' % (v(t2), v(t2), v(pos16)))
    a('v_lshlrev_b32 %s, 4, %s' % (v(t2), v(t2)))
    a('v_lshl_add_u32 %s, %s, 13, %s' % (v(t0), v(u16), v(t2)))
    a('v_xor_b32 %s, 0x80, %s' % (v(t1), v(t0)))
    a('v_add_u32 %s, %d, %s' % (v(t1), 2 * 31744, v(t1)))
    a('s_lshl_b32 s49, %s, 12' % s(sW))
    a('s_lshl_b32 s55, %s, 19' % s(sJ))
    a('s_lshl_b32 s56, %s, 17' % s(sW))
    a('s_add_u32 s55, s55, s56')
    a('s_lshl_b32 s56, %s, 8' % s(sGam))
    a('s_add_u32 s55, s55, s56')
    a('s_add_u32 m0, s49, %d' % WQ)


def pro_rest():
    a('v_and_b32 %s, 3, %s' % (v(l3), v(vL)))
    a('v_lshl_add_u32 %s, %s, 2, %s' % (v(col16), v(l3), v(u16)))
    a('s_lshl_b32 s48, %s, 5' % s(sW))
    a('v_lshl_add_u32 %s, %s, 1, s48' % (v(vXw), v(col16)))
    a('v_lshl_add_u32 %s, %s, 8, %s' % (v(vVo), v(u16), v(t2)))
    a('v_xor_b32 %s, 0x80, %s' % (v(vVo + 1), v(vVo)))
    a('v_xor_b32 %s, %s, %s' % (v(k0), v(u16), v(pos16)))
    a('v_lshlrev_b32 %s, 4, %s' % (v(k0), v(k0)))
    a('v_lshl_add_u32 %s, %s, 8, %s' % (v(k0), v(u16), v(k0)))
    for i in range(1, 4):
        a('v_xor_b32 %s, %d, %s' % (v(k0 + i), i << 6, v(k0)))
    a('s_lshl_b32 s48, %s, 7' % s(sJ))
    a('s_lshl_b32 s56, %s, 20' % s(sGam))
    a('s_lshl_b32 s58, %s, 15' % s(sJ))
    a('s_add_u32 s56, s56, s58')
    a('s_lshl_b32 s58, %s, 13' % s(sW))
    a('s_add_u32 s56, s56, s58')
    a('s_add_u32 s56, s56, %d' % (3072 * 256))


def pro_touch():
    a('v_lshl_add_u32 %s, %s, 4, s49' % (v(vCons), v(vL)))
    a('s_lshl_b32 s57, %s, 14' % s(sGam))
    a('s_add_u32 s57, s57, %d' % WS_L)
    a('s_add_u32 s3, s48, s57')
    a('s_add_u32 s59, s3, s49')
    a('v_lshl_add_u32 %s, %s, 10, s59' % (v(t3), v(vL)))
    a('v_cmp_lt_u32 vcc, 2, %s' % v(vL))
    a('s_add_u32 s3, s3, %d' % STATS)
    a('v_mov_b32 %s, s3' % v(T + 17))
    a('v_cndmask_b32 %s, %s, %s, vcc' % (v(t3), v(t3), v(T + 17)))
    a('s_add_u32 s3, s57, %d' % VOTES)
    a('v_writelane_b32 %s, s3, 3' % v(t3))
    a('s_add_u32 s3, s3, 128')
    a('v_writelane_b32 %s, s3, 4' % v(t3))
    a('s_and_b32 s3, s48, 0x180')
    a('s_add_u32 s3, s3, s57')
    a('s_add_u32 s3, s3, %d' % (STATS + ST0))
    a('v_writelane_b32 %s, s3, 5' % v(t3))


PRO = OPT.get('pro', 2)
pro_wq()
if PRO < 2:
    pro_rest()
if PRO < 1:
    pro_touch()
stamp('pre ka')
a('s_waitcnt lgkmcnt(0)')
stamp('ka')
a('s_add_u32 s10, s10, s55')
a('s_addc_u32 s11, s11, 0')
a('global_load_lds_dwordx4 %s, s[10:11] offset:0%s' % (v(t0), NT))
a('v_add_u32 %s, 31744, %s' % (v(t0), v(t0)))
a('s_load_dword %s, s[26:27], 0' % s(sE))
a('global_load_lds_dwordx4 %s, s[10:11] offset:1024%s' % (v(t0), NT))
a('global_load_lds_dwordx4 %s, s[10:11] offset:2048%s' % (v(t1), NT))
a('v_add_u32 %s, 31744, %s' % (v(t1), v(t1)))
a('global_load_lds_dwordx4 %s, s[10:11] offset:3072%s' % (v(t1), NT))
if PRO >= 2:
    pro_rest()
a('s_add_u32 s4, s4, s48')
a('s_addc_u32 s5, s5, 0')
a('global_load_ushort %s, %s, s[4:5]' % (v(vX), v(vXw)))
a('s_add_u32 s6, s6, s56')
a('s_addc_u32 s7, s7, 0')
if PRO < 1:
    a('global_load_dword %s, %s, s[26:27]' % (v(T + 22), v(t3)))
a('s_add_u32 m0, s58, %d' % KI)
stamp('wq iss')
a('s_barrier')
for i in range(4):
    a('global_load_lds_dwordx4 %s, s[6:7] offset:%d%s' % (v(k0 + i), 1024 * i, NT))


def k_second():
    a('s_add_u32 m0, s58, %d' % (KI + 4096))
    a('s_add_u32 s6, s6, 4096')
    a('s_addc_u32 s7, s7, 0')
    for i in range(4):
        a('global_load_lds_dwordx4 %s, s[6:7] offset:%d%s' % (v(k0 + i), 1024 * i, NT))


if not OPT['ksplit']:
    k_second()
if PRO >= 1:
    pro_touch()
    a('global_load_dword %s, %s, s[26:27]' % (v(T + 22), v(t3)))
stamp('issued')
a('s_add_u32 s8, s8, s56')
a('s_addc_u32 s9, s9, 0')
a('s_add_u32 %s, s26, s57' % s(sLb))
a('s_addc_u32 %s, s27, 0' % s(sLb + 1))
a('s_lshl_b32 s55, %s, %d' % (s(sJ), 14 + PAD))
a('s_add_u32 s55, s55, %d' % (WS_G + GOFF))
a('s_add_u32 %s, s26, s55' % s(sGb0))
a('s_addc_u32 %s, s27, 0' % s(sGb0 + 1))
a('s_add_u32 %s, %s, 0x%x' % (s(sGb1), s(sGb0), 0x40000 << PAD))
a('s_addc_u32 %s, %s, 0' % (s(sGb1 + 1), s(sGb0 + 1)))
a('s_getreg_b32 %s, hwreg(HW_REG_XCC_ID, 0, 4)' % s(sXcc))
a('s_lshl_b32 %s, s2, 2' % s(sPr))
a('s_add_u32 %s, %s, %s' % (s(sPr), s(sPr), s(sW)))
a('s_and_b32 s55, %s, 63' % s(sPr))
a('s_lshl_b32 s55, s55, 7')
a('s_lshr_b32 %s, %s, 6' % (s(sPr), s(sPr)))
a('s_lshl_b32 %s, %s, 14' % (s(sPr), s(sPr)))
a('s_add_u32 %s, %s, s55' % (s(sPr), s(sPr)))
a('s_add_u32 %s, %s, %d' % (s(sPr), s(sPr), WS_P))
a('s_lshl_b32 s55, s49, %d' % PAD)
a('s_and_b32 s55, s55, 8192')
a('s_add_u32 %s, %s, s55' % (s(sPr), s(sPr)))
a('s_mov_b32 %s, 0x40000' % s(sTo))
a('s_mov_b32 %s, %s' % (s(sCs), f32(math.log2(math.e) / math.sqrt(128.0))))
a('s_mov_b32 %s, 0xffffff00' % s(sMaskHi))
a('s_mov_b32 %s, %s' % (s(sInv512), f32(1.0 / 512)))
a('s_mov_b32 %s, %s' % (s(sEps), f32(1e-5)))
a('s_mov_b32 %s, %s' % (s(sNl2e), f32(-math.log2(math.e))))
a('s_mov_b32 %s, 0xffff0000' % s(sM0))
a('s_mov_b32 %s, 0xffff0000' % s(sM0 + 1))
a('s_mov_b32 %s, 0x10000' % s(sM1))
a('s_mov_b32 %s, 0x10000' % s(sM1 + 1))
a('s_mov_b32 %s, 0' % s(sHi))
a('s_mov_b32 %s, -1' % s(sHi + 1))
a('s_mul_i32 %s, %s, 43' % (s(sC0), s(sGam)))
a('s_add_u32 %s, %s, 43' % (s(sCnt), s(sC0)))
a('s_lshr_b32 %s, %s, 3' % (s(sC0), s(sC0)))
a('s_lshr_b32 %s, %s, 3' % (s(sCnt), s(sCnt)))
a('s_sub_u32 %s, %s, %s' % (s(sCnt), s(sCnt), s(sC0)))
a('s_lshl_b32 %s, %s, 3' % (s(sCnt), s(sCnt)))
a('v_mov_b32 %s, 0' % v(vZero))
a('v_lshrrev_b32 %s, 3, %s' % (v(u8), v(vL)))
a('v_and_b32 %s, 7, %s' % (v(pos8), v(vL)))
a('s_add_u32 s55, s49, s48')
a('v_and_b32 %s, 31, %s' % (v(t0), v(vL)))
a('v_lshl_add_u32 %s, %s, 2, s55' % (v(vPubL), v(t0)))
a('v_lshrrev_b32 %s, 5, %s' % (v(t3), v(vL)))
a('v_lshl_add_u32 %s, %s, 10, %s' % (v(vPubL), v(t3), v(vPubL)))
a('s_lshl_b32 s55, %s, 6' % s(sW))
a('v_lshl_add_u32 %s, %s, 1, s55' % (v(vPw), v(t0)))
a('v_lshl_add_u32 %s, %s, 2, %s' % (v(t1), v(pos8), v(u16)))
a('v_lshl_add_u32 %s, %s, 1, s55' % (v(vQw), v(t1)))
a('s_lshl_b32 s55, %s, 6' % s(sGam))
a('s_add_u32 s55, s55, s49')
if PAD:
    a('s_lshl_b32 s55, s55, 1')
a('v_lshl_add_u32 %s, %s, 2, s55' % (v(vPubG), v(pos16)))
if PAD:
    a('v_lshl_add_u32 %s, %s, 6, %s' % (v(vPubG), v(t3), v(vPubG)))
a('v_and_b32 %s, 1, %s' % (v(t2), v(u16)))
a('v_mul_u32_u24 %s, 0x%x, %s' % (v(t2), G_X, v(t2)))
a('v_xor_b32 %s, %s, %s' % (v(vPubG), v(vPubG), v(t2)))
a('v_lshl_add_u32 %s, %s, %d, s55' % (v(vPre), v(pos8), 3 + PAD))
a('v_xor_b32 %s, %s, %s' % (v(vPre), v(vPre), v(t2)))
a('v_and_b32 %s, 1, %s' % (v(t2), v(u8)))
a('v_lshl_add_u32 %s, %s, %d, %s' % (v(vPre), v(t2), 11 + PAD, v(vPre)))
a('v_lshl_add_u32 %s, %s, %d, %s' % (v(vPre), v(t3), 18 + PAD, v(vPre)))
a('s_lshl_b32 s55, %s, 2' % s(sJ))
a('s_add_u32 s55, s55, %s' % s(sW))
a('s_lshl_b32 s55, s55, 4')
a('s_add_u32 s55, s55, %d' % STATS)
a('v_mov_b32 %s, s55' % v(vStP))
a('v_lshl_add_u32 %s, %s, 3, s55' % (v(vStP2), v(t3)))
a('v_lshlrev_b32 %s, 4, %s' % (v(t1), v(l3)))
a('v_lshl_add_u32 %s, %s, 6, %s' % (v(t1), v(u8), v(t1)))
a('v_add_u32 %s, %d, %s' % (v(vStC), STATS, v(t1)))
a('v_mov_b32 %s, 0xff' % v(t2))
a('v_cmp_eq_u32 vcc, 0, %s' % v(l3))
a('v_lshlrev_b32 %s, 4, %s' % (v(vOpR), v(u16)))
a('v_and_b32 %s, 8, %s' % (v(t1), v(vL)))
a('v_cndmask_b32 %s, 0, %s, vcc' % (v(vTagM), v(t2)))
a('v_lshl_add_u32 %s, %s, 4, %s' % (v(vXopR), v(t1), v(vOpR)))
a('v_and_b32 %s, 4, %s' % (v(t1), v(vL)))
a('v_cmp_eq_u32 vcc, 0, %s' % v(t1))
a('v_add_u32 %s, %d, %s' % (v(t1), HB, v(vXw)))
a('v_mov_b32 %s, %d' % (v(t2), DUMMY))
a('v_cndmask_b32 %s, %s, %s, vcc' % (v(vHw), v(t2), v(t1)))
a('v_lshrrev_b32 %s, 1, %s' % (v(t1), v(vXw)))
a('v_cmp_gt_u32 vcc, %s, %s' % (s(sCnt), v(t1)))
a('s_lshl_b32 s55, %s, 2' % s(sW))
a('v_mov_b32 %s, s55' % v(vMw))
a('v_lshlrev_b32 %s, 2, %s' % (v(vMr), v(l3)))
a('v_cndmask_b32 %s, 0, -1, vcc' % v(vHmask))
a('v_lshlrev_b32 %s, 2, %s' % (v(t0), v(t0)))
a('v_mov_b32 %s, 0x3f803f80' % v(t1))
a('ds_write_b32 %s, %s offset:%d' % (v(t0), v(t1), ONES))
a('v_lshlrev_b32 %s, 2, %s' % (v(t0), v(pos8)))
a('ds_write_b32 %s, %s offset:%d' % (v(t0), v(vZero), HB + 96))
if PAD:
    a('v_lshrrev_b32 %s, 2, %s' % (v(t1), v(vL)))
    a('v_lshlrev_b32 %s, 4, %s' % (v(t2), v(l3)))
    a('v_lshl_add_u32 %s, %s, 7, %s' % (v(t1), v(t1), v(t2)))
    a('s_lshl_b32 s59, s49, 1')
    a('v_add_u32 %s, s59, %s' % (v(vConsG), v(t1)))
else:
    a('v_mov_b32 %s, %s' % (v(vConsG), v(vCons)))
a('v_mov_b32 %s, %s' % (v(vConsG0), v(vConsG)))
a('v_mov_b32 %s, %s' % (v(vSt + 3), s(sXcc)))
r_ = T + 16
a('v_lshrrev_b32 %s, 2, %s' % (v(r_), v(pos16)))
a('v_and_b32 %s, 1, %s' % (v(t0), v(u16)))
a('v_lshl_add_u32 %s, %s, 2, %s' % (v(t1), v(t0), v(r_)))
a('v_lshlrev_b32 %s, 1, %s' % (v(t1), v(t1)))
a('v_xor_b32 %s, s55, %s' % (v(t1), v(t1)))
a('v_lshlrev_b32 %s, 4, %s' % (v(t1), v(t1)))
a('v_lshl_add_u32 %s, %s, 3, %s' % (v(t1), v(l3), v(t1)))
a('v_lshl_add_u32 %s, %s, 3, %s' % (v(t2), v(u16), v(r_)))
a('v_lshl_add_u32 %s, %s, 8, %s' % (v(trq), v(t2), v(t1)))
a('v_xor_b32 %s, 32, %s' % (v(trq + 1), v(trq)))
a('v_lshrrev_b32 %s, 1, %s' % (v(t1), v(r_)))
a('v_lshl_add_u32 %s, %s, 1, %s' % (v(t1), v(t0), v(t1)))
a('v_xor_b32 %s, %s, %s' % (v(t1), s(sW), v(t1)))
a('v_lshlrev_b32 %s, 5, %s' % (v(t1), v(t1)))
a('v_lshl_add_u32 %s, %s, 3, %s' % (v(t1), v(l3), v(t1)))
a('v_lshl_add_u32 %s, %s, 7, %s' % (v(vTr), v(t2), v(t1)))
a('v_add_u32 %s, %d, %s' % (v(vTr), WO, v(vTr)))
a('v_and_b32 %s, 2, %s' % (v(t0), v(u8)))
a('v_xor_b32 %s, %s, %s' % (v(t0), v(t0), v(pos8)))
a('v_lshlrev_b32 %s, 4, %s' % (v(t1), v(t0)))
a('v_lshl_add_u32 %s, %s, 10, %s' % (v(wo0), v(u8), v(t1)))
a('v_xor_b32 %s, 64, %s' % (v(wo1), v(wo0)))
a('v_add_u32 %s, 7168, %s' % (v(wo1), v(wo1)))
a('v_mul_u32_u24 %s, 2752, %s' % (v(t2), v(u8)))
a('v_min_u32 %s, 5, %s' % (v(t1), v(t0)))
a('v_lshl_add_u32 %s, %s, 4, %s' % (v(f0), v(t1), v(t2)))
a('v_xor_b32 %s, 4, %s' % (v(t0), v(t0)))
a('v_min_u32 %s, 5, %s' % (v(t1), v(t0)))
a('v_lshl_add_u32 %s, %s, 4, %s' % (v(f1), v(t1), v(t2)))
a('v_add_u32 %s, %d, %s' % (v(f1), 8 * 2752 - 1024, v(f1)))
a('s_lshl_b32 s55, %s, 17' % s(sGam))
a('s_lshl_b32 s59, %s, 15' % s(sW))
a('s_add_u32 s55, s55, s59')
a('s_add_u32 s55, s55, s48')
a('s_add_u32 s12, s12, s55')
a('s_addc_u32 s13, s13, 0')
a('s_lshl_b32 s55, %s, 2' % s(sJ))
a('s_add_u32 s55, s55, %s' % s(sW))
a('s_mul_i32 s55, s55, %d' % (16 * 2752))
a('s_lshl_b32 s59, %s, 4' % s(sC0))
a('s_add_u32 s55, s55, s59')
a('s_add_u32 s16, s16, s55')
a('s_addc_u32 s17, s17, 0')
a('s_add_u32 s18, s18, s55')
a('s_addc_u32 s19, s19, 0')
a('s_lshl_b32 s55, %s, 13' % s(sC0))
a('s_min_u32 s59, %s, 2' % s(sW))
a('s_lshl_b32 s59, s59, 14')
a('s_add_u32 s55, s55, s59')
a('s_add_u32 s55, s55, s48')
a('s_add_u32 s20, s20, s55')
a('s_addc_u32 s21, s21, 0')
a('s_add_u32 s22, s22, s48')
a('s_addc_u32 s23, s23, 0')
if OPT['ksplit']:
    k_second()
a('s_add_u32 s6, s8, 4096')
a('s_addc_u32 s7, s9, 0')
a('s_waitcnt lgkmcnt(0)')
for k in range(10):
    a('s_add_u32 %s, %s, %d' % (s(sTag + k), s(sE), k + 1))


def issue_v(lo, hi):
    for i in range(lo, hi):
        if i == lo or i == 4:
            a('s_add_u32 m0, s58, %d' % (VI + 4096 * (i >> 2)))
            a('s_nop 0')
        a('global_load_lds_dwordx4 %s, %s offset:%d%s' % (v(vVo + ((i >> 1) & 1)), 's[6:7]' if i >= 4 else 's[8:9]', 1024 * (i & 3), NT))


def issue_wo():
    a('s_add_u32 m0, s49, %d' % WO)
    a('v_add_u32 %s, %d, %s' % (v(T + 20), 2 * 7168, v(wo0)))
    a('global_load_lds_dwordx4 %s, s[12:13] offset:0%s' % (v(wo0), NT))
    a('global_load_lds_dwordx4 %s, s[12:13] offset:1024%s' % (v(wo1), NT))
    a('global_load_lds_dwordx4 %s, s[12:13] offset:2048%s' % (v(T + 20), NT))
    a('v_add_u32 %s, %d, %s' % (v(T + 20), 2 * 7168, v(wo1)))
    a('global_load_lds_dwordx4 %s, s[12:13] offset:3072%s' % (v(T + 20), NT))


def issue_w13(lo, hi):
    for i in range(lo, hi):
        if i == lo or i == 2:
            a('s_lshl_b32 s59, %s, 11' % s(sW))
            a('s_add_u32 m0, s59, %d' % (W1 if i < 2 else W3))
            a('s_nop 0')
        a('global_load_lds_dwordx4 %s, s[%d:%d] offset:%d%s' % (v(f0 + (i & 1)), 16 + (i & 2), 17 + (i & 2), 1024 * (i & 1), NT))


def issue_w2():
    a('s_min_u32 s59, %s, 2' % s(sW))
    a('s_lshl_b32 s59, s59, 11')
    a('s_add_u32 m0, s59, %d' % W2)
    a('s_nop 0')
    a('global_load_lds_dwordx4 %s, s[20:21] offset:0%s' % (v(wo0), NT))
    a('global_load_lds_dwordx4 %s, s[20:21] offset:1024%s' % (v(wo1), NT))


r = vP
FE, KW, WOL = OPT['fe'], OPT['kw'], OPT['wol']
NPRE = 1 + OPT['probe']
NVA = OPT['nva']
NVB = 8 - NVA
NLATE = 0 if WOL else 4 + FE + 2 * OPT['w2e']


WOETC = []


def front():
    a('; ---- layer 0: x slice, query projection partials')
    set_tags(0)
    a('v_add_u32 %s, 0x%x, %s' % (v(T + 12), WS_L2D, v(vStP2)))
    a('v_add_u32 %s, 0x%x, %s' % (v(T + 13), WS_L2D, v(vPubL)))
    a('v_add_u32 %s, 0x%x, %s' % (v(T + 14), ST0, v(vStP2)))
    stamp('consts')
    a('s_waitcnt vmcnt(9)')
    stamp('wq landed')
    a('ds_write_b16 %s, %s offset:%d' % (v(vXw), v(vX), XB))
    issue_v(0, OPT['vq'])
    a('v_lshlrev_b32 %s, 16, %s' % (v(vSt4), v(vX)))
    a('v_lshlrev_b32 %s, 16, %s' % (v(vX), v(vX)))
    FAST[0] = True
    ln_stats(0, T + 14)
    a('s_waitcnt lgkmcnt(0)')

    proj(vWQ, 0, 0, wsrc=[(trq, WQ, 8192, 1024), (trq + 1, WQ, 8192, 1024)], first=True)
    FAST[0] = False
    stamp('L0 Q pub')
    if OPT.get('te'):
        h = OPT.get('th', 4)
        issue_v(OPT['vq'], h)
        sk = newlabel('noth')
        a('s_cmp_ge_u32 %s, 4' % s(sXcc))
        a('s_cbranch_scc1 %s' % sk)
        a('s_waitcnt vmcnt(%d)' % max(8 - OPT['te'] + (PRO >= 1) + 2 + h, 0))
        a.label(sk)
        issue_v(h, NVA)
    else:
        issue_v(OPT['vq'], NVA)
    lstore('global_store_dword', v(T + 13), v(T), BUF_A)
    a('s_mov_b64 exec, %s' % s(sM1, 2))
    lstore('global_store_dwordx2', v(T + 12), v(vSt4, 2), 0)
    a('s_mov_b64 exec, -1')
    a('v_mov_b32 %s, %s' % (v(T + 16), s(sE)))
    a('v_mov_b32 %s, %s' % (v(T + 17), s(sE)))
    if PAD:
        a('v_mov_b32 %s, %s' % (v(T + 18), s(sE)))
        a('v_mov_b32 %s, %s' % (v(T + 19), s(sE)))
    a('global_store_dwordx%d %s, %s, %s offset:%d sc1' % (2 << PAD, v(vPre), v(T + 16, 2 << PAD), s(sGb0, 2), -GOFF))
    if OPT['probe']:
        a('v_and_b32 %s, 31, %s' % (v(T + 18), v(vL)))
        a('v_lshl_add_u32 %s, %s, 2, %s' % (v(T + 18), v(T + 18), s(sPr)))
        a('v_lshrrev_b32 %s, 5, %s' % (v(T + 19), v(vL)))
        a('v_lshlrev_b32 %s, 13, %s' % (v(T + 19), v(T + 19)))
        a('v_xor_b32 %s, %s, %s' % (v(T + 18), v(T + 19), v(T + 18)))
        a('global_store_dword %s, %s, s[26:27] sc1' % (v(T + 18), v(T + 16)))
    a('; ---- layer 0: gather q')
    a('v_xor_b32 %s, %s, %s' % (v(t0), v(u16), v(pos16)))
    a('v_lshlrev_b32 %s, 4, %s' % (v(t0), v(t0)))
    a('v_lshl_add_u32 %s, %s, 8, %s' % (v(t0), v(pos16), v(t0)))
    a('s_add_u32 s55, s58, %d' % KI)
    a('v_add_u32 %s, s55, %s' % (v(t0), v(t0)))
    for kk in range(1, 4):
        a('v_xor_b32 %s, %d, %s' % (v(t0 + kk), kk << 6, v(t0)))
    alt, both, alts, boths = T + 13, T + 14, T + 15, T + 21
    a('v_mov_b32 %s, %s' % (v(alt), v(vCons)))
    a('v_lshlrev_b32 %s, 1, %s' % (v(both), v(vCons)))
    a('v_add_u32 %s, 0x%x, %s' % (v(both), WS_L2D, v(both)))
    a('v_add_u32 %s, 0x%x, %s' % (v(alts), ST0, v(vStC)))
    a('v_lshlrev_b32 %s, 1, %s' % (v(boths), v(vStC)))
    a('v_add_u32 %s, 0x%x, %s' % (v(boths), WS_L2D + ST0, v(boths)))
    page_break(True)
    behind_k = 2 + NVA + 2 + NPRE + (PRO >= 1)
    a('s_waitcnt vmcnt(%d)' % (8 - KW + behind_k))
    stamp('K part')
    loads = [(vSs[0], alts, sLb, 0), (r, alt, sLb, BUF_A), (r + 4, alt, sLb, BUF_X)]
    for x in loads:
        gload(*x)
    issue_v(NVA, 8)

    def wo_etc():
        issue_wo()
        if OPT['w2e']:
            issue_w2()
        issue_w13(0, FE)
    if not WOL:
        wo_etc()
    a('s_waitcnt vmcnt(%d)' % (behind_k + 3 + NVB + NLATE))
    stamp('K landed')
    for g in range(2):
        for kk in range(4):
            a('ds_read_b128 %s, %s offset:%d' % (v(vK + 16 * g + 4 * kk, 4), v(t0 + kk), 4096 * g))
    a('s_branch L_e1ent')
    a.label('L_e1top')
    tick()
    a('v_sub_u32 %s, %s, %s' % (v(alt), v(both), v(alt)))
    a('v_sub_u32 %s, %s, %s' % (v(alts), v(boths), v(alts)))
    for x in loads:
        gload(*x)
    if NLATE + NVB:
        a('s_waitcnt vmcnt(0)')
    a.label('L_e1ent')
    a('s_waitcnt vmcnt(%d)' % (NLATE + NVB))
    a('v_bitop3_b32 %s, %s, %s, %s bitop3:0x7e' % (v(T + 23), v(r), v(r + 4), s(sTag)))
    a('v_cmp_ne_u32 %s, %s, %s' % (s(sT1, 2), s(sTag), v(vSs[0] + 1)))
    a('v_cmp_ne_u32_sdwa vcc, %s, %s src0_sel:BYTE_0 src1_sel:DWORD' % (v(T + 23), v(vZero)))
    a('s_or_b64 vcc, vcc, %s' % s(sT1, 2))
    a('s_cbranch_vccnz L_e1top')
    stamp('L0 E1 ok')
    if OPT['fl']:
        flag_store(sE)
    if WOL and OPT['wopos'] == 0:
        wo_etc()
    WOETC.append(wo_etc)
    a('v_cmp_ne_u32 vcc, %s, %s' % (s(sXcc), v(vSs[0] + 3)))
    c, x, y = vC, vSs[0], r + 4
    ln_spec(x)
    mask_tag(y)
    a('v_mov_b32 %s, %s' % (v(c + 1), v(c)))
    a('v_permlane32_swap_b32 %s, %s' % (v(y + 1), v(y + 3)))
    mask_tag(r)
    a('v_permlane16_swap_b32 %s, %s' % (v(c), v(c + 1)))
    a('v_add_f32 %s, %s, %s' % (v(c), v(c), v(c + 1)))
    a('v_add_f32 %s, %s, %s' % (v(y + 1), v(y + 1), v(y + 3)))
    a('v_permlane32_swap_b32 %s, %s' % (v(y), v(y + 2)))
    dpp('v_add_f32', c, c, c, 'row_ror:8')
    a('v_add_f32 %s, %s, %s' % (v(y), v(y), v(y + 2)))
    a('v_permlane32_swap_b32 %s, %s' % (v(r + 1), v(r + 3)))
    dpp('v_add_f32', c, c, c, X1)
    a('v_add_f32 %s, %s, %s' % (v(r + 1), v(r + 1), v(r + 3)))
    a('v_permlane16_swap_b32 %s, %s' % (v(y), v(y + 1)))
    dpp('v_add_f32', c, c, c, X2)
    a('v_add_f32 %s, %s, %s' % (v(y), v(y), v(y + 1)))
    a('v_mul_f32 %s, %s, %s' % (v(c), s(sInv512), v(c)))
    a('v_mov_b32 %s, %s' % (v(c + 1), v(c)))
    a('v_permlane32_swap_b32 %s, %s' % (v(r), v(r + 2)))
    dpp('v_add_f32', vCq, y, y, 'row_ror:8')
    a('v_permlane32_swap_b32 %s, %s' % (v(c), v(c + 1)))
    a('v_add_f32 %s, %s, %s' % (v(r), v(r), v(r + 2)))
    bf16r(vMean, c)
    if OPT['fast']:
        a('s_cbranch_vccnz L_slowtail')


def tail():
    for layer in range(2):
        pre = 'L%d' % layer
        k1, k2, k4 = 3 * layer, 3 * layer + 1, 3 * layer + 2

        def spec(x):
            mask_tag(x)
            red_a(x, r)
        if layer == 1:
            a('; ---- layer 1: x slice, query projection partials')
            set_tags(k1)
            page_break()
            if OPT['probe'] and OPT['vlate']:
                count_votes()
            g_pace(1)
            x_gather(1, G_D)
            stamp(pre + ' E5 ok')
            x_to_lds(k1)
            a('s_waitcnt lgkmcnt(0)')
            proj(vWQ, k1, layer)
            stamp(pre + ' Q pub')
            a('; ---- layer 1: gather q')
            l_gather(k1, spec, ln_spec, [ln_mean])
            stamp(pre + ' E1 ok')
        red_b(r, r)
        a('v_fma_f32 %s, -%s, %s, %s' % (v(r), v(vMean), v(vCq), v(r)))
        a('v_cvt_pk_bf16_f32 %s, %s, %s' % (v(r), v(r), v(r)))
        a('ds_write_b16 %s, %s offset:%d' % (v(vQw), v(r), QB))
        ln_rstd_a()
        if layer == 0 and WOL and OPT['wopos'] == 1:
            WOETC[0]()
        a('s_waitcnt lgkmcnt(0)')
        stamp('z%d qw' % layer)
        a('s_barrier')
        stamp('z%d qb' % layer)
        a('; ---- layer %d: attention over this member\'s 128 keys' % layer)
        for kk in range(4):
            a('ds_read_b128 %s, %s offset:%d' % (v(vA + 4 * kk, 4), v(vOpR), QB + 64 * kk))
        ln_rstd_b(True)
        set_tags(k2)
        for kk in range(4):
            lgkm(3 - kk)
            for g in range(2):
                mfma(vD + 4 * g, vA + 4 * kk, vK + 16 * g + 4 * kk, vD + 4 * g if kk else None)
        stamp('z%d qk' % layer)
        if layer == 0:
            if WOL and OPT['wopos'] == 2:
                WOETC[0]()
            if NVB:
                a('s_waitcnt vmcnt(%d)' % (4 + FE + 2 * OPT['w2e']))
                a('s_barrier')
            tr_reads(vV, trq, VI, 4, 8192, 1024)
        sg = vSt
        mx, e0 = T, T + 1
        a('v_max_f32 %s, %s, %s' % (v(mx), v(vD), v(vD + 4)))
        a('v_cndmask_b32 %s, %s, %s, %s' % (v(e0), v(vD), v(vD + 4), s(sM0, 2)))
        for ro in (8, 4, 2, 1):
            dpp('v_max_f32', mx, mx, mx, 'row_ror:%d' % ro)
        a('v_mul_f32 %s, %s, %s' % (v(sg), v(vCs), v(mx)))
        a('v_fma_f32 %s, %s, %s, -%s' % (v(e0), v(e0), v(vCs), v(sg)))
        a('v_exp_f32 %s, %s' % (v(sg + 1), v(e0)))
        stamp('z%d ex' % layer)
        a('ds_write_b32 %s, %s offset:%d' % (v(vMw), v(sg), MB))
        a('v_cvt_pk_bf16_f32 %s, %s, %s' % (v(e0), v(sg + 1), v(sg + 1)))
        a('ds_write_b16 %s, %s offset:%d' % (v(vPw), v(e0), PB))
        if layer == 0:
            tr_reads(vV + 16, trq + 1, VI, 4, 8192, 1024)
        for ro in (8, 4, 2):
            dpp('v_add_f32', sg + 1, sg + 1, sg + 1, 'row_ror:%d' % ro)
        a('s_waitcnt lgkmcnt(0)')
        stamp('z%d pw' % layer)
        a('s_barrier')
        stamp('z%d pb' % layer)
        mm = T + 4
        a('ds_read_b32 %s, %s offset:%d' % (v(mm), v(vMr), MB))
        for kk in range(4):
            a('ds_read_b128 %s, %s offset:%d' % (v(vA + 4 * kk, 4), v(vOpR), PB + 64 * kk))
        dpp('v_add_f32', sg + 1, sg + 1, sg + 1, 'row_ror:1')
        dpp('v_add_f32', sg + 1, sg + 1, sg + 1, 'row_bcast:15', 0xa)
        a('s_mov_b64 exec, 0x10000')
        lstore('global_store_dwordx4', v(vStP), v(sg, 4), 512 * (k2 & 1))
        a('s_mov_b64 exec, -1')

        def sel(kk):
            a('v_cndmask_b32 %s, %s, %s, %s' % (v(T + 8 + kk), v(vD + 8 * kk), v(vD + 8 * kk + 4), s(sM0, 2)))

        def bc(kk):
            a('v_mov_b32_dpp %s, %s quad_perm:[%d,%d,%d,%d] row_mask:0xf bank_mask:0xf' % (v(T + 16 + kk), v(mm), kk, kk, kk, kk))

        def acc(kk):
            a('%s %s, %s, %s' % ('v_fmac_f32' if kk else 'v_mul_f32', v(T), v(T + 16 + kk), v(T + 8 + kk)))
        lgkm(3)
        stamp('z%d pr' % layer)
        mfma(vD, vA, vV)
        dpp('v_max_f32', mx, mm, mm, X1)
        mfma(vD + 4, vA, vV + 16)
        lgkm(2)
        mfma(vD + 8, vA + 4, vV + 4)
        dpp('v_max_f32', mx, mx, mx, X2)
        mfma(vD + 12, vA + 4, vV + 20)
        a('v_sub_f32 %s, %s, %s' % (v(mm), v(mm), v(mx)))
        lgkm(1)
        mfma(vD + 16, vA + 8, vV + 8)
        a('v_exp_f32 %s, %s' % (v(mm), v(mm)))
        mfma(vD + 20, vA + 8, vV + 24)
        lgkm(0)
        bc(0)
        mfma(vD + 24, vA + 12, vV + 12)
        bc(1)
        bc(2)
        mfma(vD + 28, vA + 12, vV + 28)
        stamp('z%d pv' % layer)
        stats_load(k2)
        sel(0)
        sel(1)
        acc(0)
        acc(1)
        sel(2)
        acc(2)
        bc(3)
        a('s_mov_b32 exec_hi, 0')
        sel(3)
        acc(3)
        a('v_bfi_b32 %s, %s, %s, %s' % (v(T), v(vTagM), s(sTag + k2), v(T)))
        lstore('global_store_dword', v(vPubL), v(T), BUF_A if k2 % 2 == 0 else BUF_B)
        a('s_mov_b32 exec_hi, -1')
        stamp(pre + ' S pub')
        if layer == 0 and OPT['fl'] and OPT['flp'] == 1:
            a('s_waitcnt vmcnt(0)')
            flag_store(sTag + 6)
            stats_load(k2)
            lstore('global_store_dword', v(vStP), v(vSt), 512 * (k2 & 1))
        a('; ---- layer %d: combine the 8 key blocks, output projection partials' % layer)
        mj, mg, mo, lo = T, T + 1, vC, vC + 1

        def sm_spec(x):
            dpp('v_max_f32', mj, x, x, X1)
            a('v_mov_b32 %s, %s' % (v(mo), v(x)))
            a('v_mov_b32 %s, %s' % (v(lo), v(x + 1)))

        def sm0():
            allred('v_max_f32', mj, T + 2, [1])
            dpp('v_max_f32', mg, mj, mj, 'row_ror:8')
            allred('v_max_f32', mg, T + 2, [4, 5])

        def sm1():
            a('v_sub_f32 %s, %s, %s' % (v(mo), v(mo), v(mg)))
            a('v_sub_f32 %s, %s, %s' % (v(mj), v(mj), v(mg)))
            a('v_exp_f32 %s, %s' % (v(mo), v(mo)))
            a('v_exp_f32 %s, %s' % (v(mj), v(mj)))
            a('v_mul_f32 %s, %s, %s' % (v(mo), v(mo), v(lo)))
            allred('v_add_f32', mo, T + 2, [0, 1, 3, 4, 5])
            a('v_rcp_f32 %s, %s' % (v(mo), v(mo)))
            a('v_mul_f32 %s, %s, %s' % (v(vF), v(mj), v(mo)))

        def spec2(x):
            mask_tag(x)
            a('v_pk_mul_f32 %s, %s, %s op_sel_hi:[1,0]' % (v(x + 2, 2), v(x + 2, 2), v(vF, 2)))
            a('v_pk_mul_f32 %s, %s, %s op_sel_hi:[1,0]' % (v(x, 2), v(x, 2), v(vF, 2)))
            red_a(x, r)
        l_gather(k2, spec2, sm_spec, [sm0, sm1], hook=(lambda: flag_store(sTag + 6)) if layer == 0 and OPT['fl'] and OPT['flp'] == 0 else None)
        stamp(pre + ' E2 ok')
        red_b(r, r)
        a('v_cvt_pk_bf16_f32 %s, %s, %s' % (v(r), v(r), v(r)))
        a('ds_write_b16 %s, %s offset:%d' % (v(vQw), v(r), OB))

        def ffn_rest():
            issue_w13(FE, 4)
            if not OPT['w2e']:
                issue_w2()
        if layer == 0 and OPT['ff'] in (2, 3):
            ffn_rest()
        if layer == 0 and OPT['ff'] == 6:
            issue_w13(FE, 4)
        if layer == 0 and OPT['ff'] == 7:
            issue_w13(FE, 2)
        a('s_waitcnt lgkmcnt(0)')
        a('s_barrier')
        if layer == 0 and OPT['ff'] == 5:
            gemv_publish_g(4, vWO, OB, 0, G_C, tr=True, mid=lambda: issue_w13(FE, 2), post=lambda: issue_w13(2, 4))
            issue_w2()
        else:
            gemv_publish_g(4, vWO, OB, 2 * layer, G_C, tr=layer == 0)
        stamp(pre + ' O pub')
        a('; ---- layer %d: x slice, gate/up partials' % layer)
        set_tags(k4)
        if layer == 0 and OPT['ff'] == 1:
            nrest = 4 - FE + (0 if OPT['w2e'] else 2)
            if OPT['fl']:
                a('v_lshlrev_b32 %s, 7, %s' % (v(T + 5), v(vL)))
                a('v_add_u32 %s, %d, %s' % (v(T + 5), WS_F, v(T + 5)))
                flag_load()
            ffn_rest()
            if OPT['fl']:
                flag_wait(nrest)
            else:
                a('s_waitcnt vmcnt(%d)' % nrest)
            stamp('G0 ack')
            x_gather(0, G_C, work=probe_near if OPT['probe'] else None)
        else:
            flush_deferred()
            if layer == 0 and OPT['ff'] == 4:
                ffn_rest()
            if layer == 0 and OPT['ff'] == 7:
                issue_w13(2, 4)
            if layer == 0 and OPT['ff'] in (6, 7):
                issue_w2()
            if layer == 0 and OPT['probe']:
                probe_near()
                if not OPT['vlate']:
                    count_votes()
            if layer == 0 and OPT['fl']:
                a('v_lshlrev_b32 %s, 7, %s' % (v(T + 5), v(vL)))
                a('v_add_u32 %s, %d, %s' % (v(T + 5), WS_F, v(T + 5)))
                flag_load()
                flag_wait(0)
            if layer or OPT['ff'] != 3:
                g_pace(2 * layer)
            else:
                for i in range(OPT.get('xs', 0)):
                    a('s_nop 15')
                stamp('G0 ack')
            x_gather(2 * layer, G_C)
        stamp(pre + ' E3 ok')
        x_to_lds(k4)
        a('s_cmp_eq_u32 %s, 3' % s(sW))
        a('s_waitcnt lgkmcnt(0)')
        idle = newlabel('idle')

        proj(vW13, k4, layer, wsrc=[(vTr, W1 - WO, 4096, 512), (vTr, W3 - WO, 4096, 512)] if layer == 0 else None, skip=idle)
        stamp(pre + ' G pub')
        a('; ---- layer %d: gather gate/up, activation' % layer)

        def w2_regs():
            a('v_and_b32 %s, 32, %s' % (v(T + 1), v(vL)))
            a('v_lshlrev_b32 %s, 6, %s' % (v(T + 1), v(T + 1)))
            a('v_sub_u32 %s, %s, %s' % (v(T + 1), v(vTr), v(T + 1)))
            tr_reads(vW2, vTr, W2 - WO, 1, 4096, 512)
            tr_reads(vW2 + 4, T + 1, W2 - WO + 4096, 1, 4096, 512)

        def ln_all():
            w2_regs()
            ln_mean()
            ln_rstd_a()
            ln_rstd_b(False)
        if layer == 0:
            loads = [(r, vCons, sLb, BUF_A), (r + 4, vCons, sLb, BUF_X)]

            def data():
                ln_spec(vSs[0])
                for x in loads:
                    gload(*x)

            def spec4():
                mask_tag(r)
                mask_tag(r + 4)
                red_a(r, r)
            flush_deferred()
            poll([(vSs[0], vStC, sLb, 0)], lambda: chk_stats(vSs[0], k4), data, cnt=1, issued=True)
            poll(loads, lambda: chk_byte([r, r + 4], sTag + k4), spec4, work=ln_all, issued=True)
            red_a(r + 4, r + 4)
            red_b(r + 4, vCg)
        else:
            l_gather(k4, spec, ln_spec, [ln_mean, ln_rstd_a, lambda: ln_rstd_b(False)])
        stamp(pre + ' E4 ok')
        red_b(r, r)
        a('v_fma_f32 %s, -%s, %s, %s' % (v(r), v(vMean), v(vCg), v(r)))
        a('v_mul_f32 %s, %s, %s' % (v(r), v(r), v(vRs)))
        bf16r(r, r)
        a('v_mul_f32 %s, %s, %s' % (v(r + 1), s(sNl2e), v(r)))
        a('v_exp_f32 %s, %s' % (v(r + 1), v(r + 1)))
        a('v_and_b32_dpp %s, %s, %s row_shl:4 row_mask:0xf bank_mask:0xf' % (v(r + 2), v(r), v(vHmask)))
        a('v_add_f32 %s, 1.0, %s' % (v(r + 1), v(r + 1)))
        a('v_rcp_f32 %s, %s' % (v(r + 1), v(r + 1)))
        a('v_mul_f32 %s, %s, %s' % (v(r), v(r), v(r + 1)))
        bf16r(r, r)
        a('v_mul_f32 %s, %s, %s' % (v(r), v(r), v(r + 2)))
        a('v_cvt_pk_bf16_f32 %s, %s, %s' % (v(r), v(r), v(r)))
        a('ds_write_b16 %s, %s' % (v(vHw), v(r)))
        if layer == 0:
            join = newlabel('join')

            def idle_path(idle=idle, join=join, w2_regs=w2_regs):
                a.label(idle)
                w2_regs()
                a('s_cmp_lg_u32 s2, 0')
                a('s_cbranch_scc1 %s' % join)
                a('s_add_u32 s55, %s, 16' % s(sE))
                a('v_mov_b32 %s, s55' % v(T + 2))
                a('s_mov_b64 exec, 1')
                a('global_store_dword %s, %s, s[26:27]' % (v(vZero), v(T + 2)))
                a('s_mov_b64 exec, -1')
                a('s_branch %s' % join)
            deferred.append(idle_path)
            a.label(join)
        else:
            a.label(idle)
        a('s_waitcnt lgkmcnt(0)')
        a('s_barrier')
        gemv_publish_g(2, vW2, HB, 2 * layer + 1, G_D)
        stamp(pre + ' D pub')

    a('; ---- final sum (group 0 only)')
    a('s_cmp_lg_u32 %s, 0' % s(sGam))
    a('s_cbranch_scc1 L_fin')
    g_pace(3)
    x_gather(3, G_D)
    a('s_mov_b32 exec_lo, 0x000f000f')
    a('s_mov_b32 exec_hi, 0x000f000f')
    a('global_store_short %s, %s, s[22:23]' % (v(vXw), v(T)))


front()
FAST[0] = bool(OPT['fast'])
tail()
a.label('L_fin')
if OPT.get('wb'):
    a('buffer_wbl2 sc1')
if OPT.get('delay'):
    if 'only' in OPT:
        a('s_cmp_lg_u32 s2, %d' % OPT['only'])
        a('s_cbranch_scc1 L_end')
    a.label('L_dly')
    a('s_memrealtime s[6:7]')
    a('s_waitcnt lgkmcnt(0)')
    a('s_sub_u32 s8, s6, s100')
    a('s_cmp_lt_u32 s8, %d' % OPT.get('until', 3000))
    a('s_cbranch_scc1 L_dly')
if DIAG:
    a('s_mov_b64 exec, -1')
    a('s_memrealtime s[4:5]')
    a('s_waitcnt lgkmcnt(0)')
    a('v_mov_b32 %s, 0' % v(T))
    for i in range(len(stamps)):
        a('v_writelane_b32 %s, %s, %d' % (v(T), s(stamp_regs[i]), i))
    a('v_writelane_b32 %s, s4, %d' % (v(T), len(stamps)))
    a('v_xor_b32 %s, %s, %s' % (v(T + 2), v(vConsG), v(vConsG0)))
    a('v_readfirstlane_b32 s6, %s' % v(T + 2))
    a('v_writelane_b32 %s, s6, 62' % v(T))
    a('v_writelane_b32 %s, s12, 61' % v(T))
    a('v_writelane_b32 %s, s13, 60' % v(T))
    a('v_writelane_b32 %s, %s, 63' % (v(T), s(sXcc)))
    a('s_lshl_b32 s55, s2, 2')
    a('s_add_u32 s55, s55, %s' % s(sW))
    a('s_lshl_b32 s55, s55, 8')
    a('s_add_u32 s55, s55, %d' % WS_DIAG)
    a('v_lshl_add_u32 %s, %s, 2, s55' % (v(T + 1), v(vL)))
    a('global_store_dword %s, %s, s[26:27]' % (v(T + 1), v(T)))
a.label('L_end')
a('s_endpgm')
flush_deferred(False)
a.label('L_fastend')
if OPT['fast']:
    a('; ==== the same phases with write-through stores: taken when the group is spread over several XCDs')
    a.label('L_slowtail')
    FAST[0] = False
    a.hist = []
    a('s_nop 1')
    tail()
    a('s_branch L_fin')
    flush_deferred(False)
    a('s_endpgm')
a.raw('''.section .rodata,"a"
.p2align 6
.amdhsa_kernel %s_kernel
  .amdhsa_next_free_vgpr %d
  .amdhsa_next_free_sgpr 102
  .amdhsa_accum_offset %d
  .amdhsa_group_segment_fixed_size 0
  .amdhsa_kernarg_size 96
  .amdhsa_user_sgpr_count 2
  .amdhsa_user_sgpr_kernarg_segment_ptr 1
  .amdhsa_system_sgpr_workgroup_id_x 1
  .amdhsa_float_denorm_mode_32 3
.end_amdhsa_kernel''' % (NAME, NVGPR, NVGPR))
sys.stdout.write(a.text())
if DIAG:
    sys.stderr.write('STAMPS ' + '|'.join(stamps + ['end']) + '\n')
sys.stderr.write('nops inserted: %d\n' % a.nops)
```

```python
import sys, math, struct
from asm import Asm

NAME = 'interleave_layers__sliding_block_cached__glu_gated_swiglu__decode'
OPT = dict(diag=0, fast=1, nt=1, kw=5, fe=0, wol=1, probe=1, vw=1, thr=90, pages=1, cnt=0, early=2, d0=0, refresh=0, spipe=1, late_rs=1, na=0, nsl=0, w2e=0, ff=7, vlate=0, fl=0, flp=0, pad=0, nva=8, ksplit=0, wopos=0, ool=0, stg=1, vq=0)
for a_ in sys.argv[1:]:
    k_, v_ = a_.split('=')
    OPT[k_] = int(v_)
DIAG = OPT['diag']
NT = {0: '', 1: ' nt', 2: ' sc1 nt', 3: ' sc0 sc1 nt', 4: ' sc0 nt', 5: ' sc1', 6: ' sc0 sc1'}[OPT['nt']]
STAGE = not DIAG or DIAG == 6

XB, ONES, QB, OB, HB, MB, DUMMY, PB = 0, 128, 256, 512, 768, 896, 960, 1024
WQ, VI, WO = 4096, 20480, 53248
W1, W3, W2 = WO + 16384, WO + 24576, WO + 32768
KI = WO + 38912
LDS_BYTES = KI + 32768
WS_F = 0x10000
WS_L, WS_P, WS_G, WS_DIAG = 0x40000, 0xc0000, 0x100000, 0x200000
WS_L2D = 0x140000 + 0x100000 * OPT['pad']
BUF_A, BUF_X, BUF_B, STATS, VOTES = 0, 1024, 2048, 3072, 7168
ST0 = 8192
PAD = OPT['pad']
GOFF = 4096 * PAD
G_C, G_D, G_H = -GOFF, (2048 << PAD) - GOFF, 1024 << PAD
G_X = (0x20000 << PAD) | 0x2000
WSH = 1 - PAD

vL, vCons, vPubL, vPw, vPubG, vStP, vStC, vTagM, vStP2 = range(1, 10)
vXw, vQw, vHw, vOpR, vXopR, vConsG, vConsG0, vCs, vZero, vMw = range(10, 20)
trq, vTr, vHmask, vX, vCq, vCg, vMean, vRs = 20, 22, 23, 24, 25, 26, 27, 28
vMr, vF = 29, 30
vWQ, vK, vV, vWO, vW13, vW2 = 32, 48, 80, 112, 128, 144
wo0, wo1, f0, f1, vPre, vVo = 144, 145, 146, 147, 148, 149
T = 152
vC = T + 12
vA = 176
vD = 192
vP = 224
vSt, vSt4 = 232, 236
vDs, vSs = [240, 244], [248, 252]
NVGPR = 256
sW, sJ, sGam, sPr, sE, sC0, sCnt, sXcc, sTo = 28, 29, 30, 31, 32, 33, 34, 35, 36
sLb, sGb0, sGb1 = 38, 40, 14
sPc, sT1 = 42, 44
sCs, sMaskHi, sInv512, sEps, sNl2e = 50, 51, 52, 53, 54
sM0, sM1, sHi, sM2 = 56, 42, 46, 58
sTag = 60

a = Asm()
stamp_regs = list(range(70, 102, 2))
stamps = []
nstamp = [0]
lbl = [0]
FAST = [False]


def v(n, cnt=1):
    return 'v%d' % n if cnt == 1 else 'v[%d:%d]' % (n, n + cnt - 1)


def s(n, cnt=1):
    return 's%d' % n if cnt == 1 else 's[%d:%d]' % (n, n + cnt - 1)


def stamp(name):
    nstamp[0] += 1
    if OPT.get('delay') == 3 and OPT.get('at', 1) == nstamp[0]:
        a('s_memrealtime s[100:101]')
        sys.stderr.write('delay anchored at ' + name + '\n')
    keep = {0: False, 1: name[:2] not in ('L1', 'x ') and name[0] not in 'Gz', 2: name[:2] == 'L1', 5: name[0] == 'G' or name[3:] in ('O pub', 'D pub', 'E3 ok', 'E5 ok') or name in ('L0 E1 ok', 'L0 S pub', 'L0 E2 ok'),
            6: False, 7: name[:2] in ('L1', 'x '), 8: name[:2] == 'z1' or name in ('L1 E1 ok', 'L1 S pub', 'L1 E2 ok', 'L1 O pub', 'L1 E5 ok', 'L1 Q pub')}[DIAG]
    if not (keep or DIAG and name == 'start'):
        return
    if name not in stamps:
        if len(stamps) >= len(stamp_regs):
            return
        stamps.append(name)
    r = stamp_regs[stamps.index(name)]
    if OPT['cnt'] and name != 'start':
        a('s_sub_u32 %s, 0x40000, %s' % (s(r), s(sTo)))
    else:
        a('%s %s' % ('s_memtime' if DIAG in (7, 8) and name != 'x rt0' else 's_memrealtime', s(r, 2)))


def f32(x):
    return '0x%08x' % struct.unpack('<I', struct.pack('<f', x))[0]


def newlabel(p):
    lbl[0] += 1
    return 'L_%s_%d' % (p, lbl[0])


def lgkm(n):
    a('s_waitcnt lgkmcnt(%d)' % (n if STAGE else 0))


def mfma(d, x, y, c=None):
    a('v_mfma_f32_16x16x32_bf16 %s, %s, %s, %s' % (v(d, 4), v(x, 4), v(y, 4), '0' if c is None else v(c, 4)))


def dpp(op, d, x, y, ctl, rm=0xf):
    a('%s_dpp %s, %s, %s %s row_mask:0x%x bank_mask:0xf' % (op, v(d), v(x), v(y), ctl, rm))


X1, X2 = 'quad_perm:[1,0,3,2]', 'quad_perm:[2,3,0,1]'


def lstore(op, addr, data, off):
    a('%s %s, %s, %s offset:%d%s' % (op, addr, data, s(sLb, 2), off, '' if FAST[0] and not OPT.get('allsc') else ' sc1'))


def gload(d, vo, b, im):
    a('global_load_dwordx4 %s, %s, %s offset:%d sc1' % (v(d, 4), v(vo), s(b, 2), im))


def tick():
    a('s_sub_u32 %s, %s, 1' % (s(sTo), s(sTo)))
    a('s_cbranch_scc1 L_end')


deferred = []


def flush_deferred(jump=True):
    if not deferred:
        return
    l = newlabel('skip')
    if jump:
        a('s_branch %s' % l)
    hist = a.hist
    while deferred:
        a.hist = []
        deferred.pop(0)()
    a.hist = hist
    a.label(l)


def poll(loads, check, spec, work=None, cnt=0, issued=False, backoff=0):
    top, ent = newlabel('poll'), newlabel('pent')
    if not issued:
        for x in loads:
            gload(*x)
    if work:
        work()

    def retry():
        a.label(top)
        tick()
        if backoff:
            a('s_sleep %d' % backoff)
        for x in loads:
            gload(*x)
        if cnt:
            a('s_waitcnt vmcnt(0)')
        if OPT['ool']:
            a('s_branch %s' % ent)
    if OPT['ool']:
        deferred.append(retry)
    else:
        a('s_branch %s' % ent)
        retry()
    a.label(ent)
    a('s_waitcnt vmcnt(%d)' % cnt)
    check()
    if spec:
        spec()
    a('s_cbranch_vccnz %s' % top)


def ring2(sets, issue, check, spec, cnt1, cnt0, first):
    top, ent, done = newlabel('ring'), newlabel('rent'), newlabel('rdone')

    def retry():
        a.label(top)
        tick()
        issue(sets[0])
        a('s_waitcnt vmcnt(%d)' % cnt1)
        check(sets[1])
        spec(sets[1])
        a('s_cbranch_vccz %s' % done)
        issue(sets[1])
        if first != cnt0:
            a('s_waitcnt vmcnt(%d)' % cnt0)
        if OPT['ool']:
            a('s_branch %s' % ent)
    if OPT['ool']:
        deferred.append(retry)
    else:
        a('s_branch %s' % ent)
        retry()
    a.label(ent)
    a('s_waitcnt vmcnt(%d)' % first)
    check(sets[0])
    spec(sets[0])
    a('s_cbranch_vccnz %s' % top)
    a.label(done)


def chk_byte(regs, tag):
    if len(regs) == 1:
        a('v_cmp_ne_u32_sdwa vcc, %s, %s src0_sel:BYTE_0 src1_sel:BYTE_0' % (v(regs[0]), s(tag)))
    else:
        a('v_bitop3_b32 %s, %s, %s, %s bitop3:0x7e' % (v(T + 23), v(regs[0]), v(regs[1]), s(tag)))
        a('v_cmp_ne_u32_sdwa vcc, %s, %s src0_sel:BYTE_0 src1_sel:DWORD' % (v(T + 23), v(vZero)))


def chk_stats(x, k):
    a('v_cmp_ne_u32 vcc, %s, %s' % (s(sTag + k), v(x + (2 if k % 3 == 1 else 1))))


def red_a(x, c):
    a('v_permlane32_swap_b32 %s, %s' % (v(x + 1), v(x + 3)))
    a('v_add_f32 %s, %s, %s' % (v(c + 1), v(x + 1), v(x + 3)))
    a('v_permlane32_swap_b32 %s, %s' % (v(x), v(x + 2)))
    a('v_add_f32 %s, %s, %s' % (v(c), v(x), v(x + 2)))


def red_b(c, out):
    a('v_permlane16_swap_b32 %s, %s' % (v(c), v(c + 1)))
    a('v_add_f32 %s, %s, %s' % (v(c), v(c), v(c + 1)))
    dpp('v_add_f32', out, c, c, 'row_ror:8')


def mask_tag(x):
    a('v_and_b32 %s, %s, %s' % (v(x), s(sMaskHi), v(x)))


def bf16r(dst, src):
    a('v_cvt_pk_bf16_f32 %s, %s, %s' % (v(dst), v(src), v(src)))
    a('v_and_b32 %s, 0xffff0000, %s' % (v(dst), v(dst)))


def allred(op, x, t, bits):
    for b in bits:
        if b < 4:
            dpp(op, x, x, x, {0: X1, 1: X2, 3: 'row_ror:8'}[b])
        else:
            a('v_mov_b32 %s, %s' % (v(t), v(x)))
            a('v_permlane%d_swap_b32 %s, %s' % (16 if b == 4 else 32, v(x), v(t)))
            a('%s %s, %s, %s' % (op, v(x), v(x), v(t)))


def set_tags(k):
    a('v_mov_b32 %s, %s' % (v(vSt + 2), s(sTag + k)))
    if k % 3 != 1:
        a('v_cndmask_b32 %s, %s, %s, %s' % (v(vSt4 + 1), v(vSt + 2), v(vSt + 3), s(sHi, 2)))


def ln_stats(k, addr=None):
    g = vSt4
    a('v_mul_f32 %s, %s, %s' % (v(T + 7), v(vX), v(vX)))
    a('v_permlane32_swap_b32 %s, %s' % (v(g), v(T + 7)))
    a('v_add_f32 %s, %s, %s' % (v(g), v(g), v(T + 7)))
    allred('v_add_f32', g, None, [0, 1])
    dpp('v_add_f32', g, g, g, 'row_bcast:15', 0xa)
    a('s_mov_b64 exec, %s' % s(sM1, 2))
    lstore('global_store_dwordx2', v(addr or vStP2), v(g, 2), 512 * (k & 1))
    a('s_mov_b64 exec, -1')


def ln_spec(x):
    a('v_permlane32_swap_b32 %s, %s' % (v(x), v(x + 2)))
    a('v_add_f32 %s, %s, %s' % (v(vC), v(x), v(x + 2)))


def ln_mean():
    c = vC
    allred('v_add_f32', c, c + 1, [4, 3, 0, 1])
    a('v_mul_f32 %s, %s, %s' % (v(c), s(sInv512), v(c)))
    a('v_mov_b32 %s, %s' % (v(c + 1), v(c)))
    a('v_permlane32_swap_b32 %s, %s' % (v(c), v(c + 1)))
    bf16r(vMean, c)


def ln_rstd_a():
    c = vC
    a('v_fma_f32 %s, -%s, %s, %s' % (v(c + 1), v(c), v(c), v(c + 1)))
    a('v_max_f32 %s, 0, %s' % (v(c + 1), v(c + 1)))
    bf16r(c + 1, c + 1)
    a('v_add_f32 %s, %s, %s' % (v(c + 1), s(sEps), v(c + 1)))
    bf16r(c + 1, c + 1)
    a('v_sqrt_f32 %s, %s' % (v(c + 1), v(c + 1)))


def ln_rstd_b(scale):
    c = vC
    bf16r(c + 1, c + 1)
    a('v_rcp_f32 %s, %s' % (v(vRs), v(c + 1)))
    if scale:
        a('v_mul_f32 %s, %s, %s' % (v(vCs), s(sCs), v(vRs)))


def stats_load(k, x=vSs[0]):
    gload(x, vStC, sLb, 512 * (k & 1))


def l_gather(k, spec, st_spec, chain, hook=None):
    buf = BUF_A if k % 2 == 0 else BUF_B

    def d_issue(x):
        gload(x, vCons, sLb, buf)
    rf = OPT['refresh'] and OPT['d0']

    def s_issue(x):
        stats_load(k, x)
        if rf:
            d_issue(vDs[0])
    if OPT['d0']:
        d_issue(vDs[0])
    if OPT['spipe']:
        stats_load(k, vSs[1])
        flush_deferred()
        ring2(vSs, s_issue, lambda x: chk_stats(x, k), st_spec, 2 if rf else 1, 3 if rf else 1, 2 + OPT['d0'])
    else:
        flush_deferred()
        poll([(vSs[0], vStC, sLb, 512 * (k & 1))], lambda: chk_stats(vSs[0], k), lambda: st_spec(vSs[0]), cnt=1 + OPT['d0'], issued=True)
    if k >= 3:
        stamp('x st%d' % k)
    if not OPT['d0']:
        d_issue(vDs[0])
        chain[0]()
        d_issue(vDs[1])
    else:
        d_issue(vDs[1])
        chain[0]()
    if hook:
        hook()
    for c in chain[1:]:
        c()
    ring2(vDs, d_issue, lambda x: chk_byte([x], sTag + k), spec, 1, 1, 1)


def x_gather(gi, imm, work=None):
    r = vP
    base = sGb0 if gi < 2 else sGb1

    def spec():
        a('v_pk_add_f32 %s, %s, %s' % (v(r + 2, 2), v(r + 2, 2), v(r + 6, 2)))
        a('v_add_f32 %s, %s, %s' % (v(r + 1), v(r + 1), v(r + 5)))
        mask_tag(r)
        mask_tag(r + 4)
        a('v_add_f32 %s, %s, %s' % (v(r), v(r), v(r + 4)))
        red_a(r, r)
    poll([(r, vConsG, base, imm), (r + 4, vConsG, base, imm + G_H)], lambda: chk_byte([r, r + 4], sTag + 6 + gi), spec, work=work, backoff=OPT.get('g%ds' % gi, 0))
    red_b(r, r)
    dpp('v_add_f32', r, r, r, 'row_ror:4')
    bf16r(r, r)
    a('v_add_f32 %s, %s, %s' % (v(r), v(r), v(vX)))
    a('v_cvt_pk_bf16_f32 %s, %s, %s' % (v(T), v(r), v(r)))


def x_to_lds(k):
    a('ds_write_b16 %s, %s offset:%d' % (v(vXw), v(T), XB))
    a('v_and_b32 %s, 0xffff0000, %s' % (v(vX), v(T)))
    a('v_and_b32 %s, 0xffff0000, %s' % (v(vSt4), v(T)))
    ln_stats(k)


def tr_pair(dst, addr, off, gstride):
    for g in range(2):
        a('ds_read_b64_tr_b16 %s, %s offset:%d' % (v(dst + 2 * g, 2), v(addr), off + g * gstride))


def proj(wreg, k, layer, wsrc=None, first=False, skip=None):
    rd = vXopR if layer == 0 else vOpR
    a('s_barrier')
    for kk in range(2):
        a('ds_read_b128 %s, %s offset:%d' % (v(vA + 4 * kk, 4), v(rd), XB + 64 * kk))
        if wsrc:
            for cg in range(2):
                ad, off, ks, gs = wsrc[cg]
                tr_pair(wreg + 8 * cg + 4 * kk, ad, off + kk * ks, gs)
    if skip:
        a('s_cbranch_scc1 %s' % skip)
    if not first and OPT['early'] == 1:
        stats_load(k)
    lgkm(7 if wsrc else 1)
    mfma(vD, vA, wreg)
    if wsrc:
        lgkm(5)
    mfma(vD + 4, vA, wreg + 8)
    if not first and OPT['early'] == 2:
        stats_load(k)
    lgkm(2 if wsrc else 0)
    mfma(vD, vA + 4, wreg + 4, vD)
    if wsrc:
        lgkm(0)
    mfma(vD + 4, vA + 4, wreg + 12, vD + 4)
    if not first and OPT['early'] == 0:
        stats_load(k)
    if layer == 1:
        a('s_mov_b32 exec_hi, 0')
    a('v_cndmask_b32 %s, %s, %s, %s' % (v(T), v(vD), v(vD + 4), s(sM0, 2)))
    a('v_bfi_b32 %s, %s, %s, %s' % (v(T), v(vTagM), s(sTag + k), v(T)))
    lstore('global_store_dword', v(vPubL), v(T), BUF_A if k % 2 == 0 else BUF_B)
    if layer == 1:
        a('s_mov_b32 exec_hi, -1')


def tr_reads(dst, addr, base, nk, kstride, gstride):
    for kk in range(nk):
        for g in range(2):
            a('ds_read_b64_tr_b16 %s, %s offset:%d' % (v(dst + 4 * kk + 2 * g, 2), v(addr), base + kk * kstride + g * gstride))


def gemv_publish_g(nk, wreg, src, gi, imm, tr=False, mid=None, post=None):
    for kk in range(nk):
        a('ds_read_b128 %s, %s offset:%d' % (v(vA + 4 * kk, 4), v(vOpR), src + 64 * kk))
        if tr:
            tr_pair(wreg + 4 * kk, vTr, 4096 * kk, 512)
    if mid:
        mid()
    for kk in range(nk):
        lgkm((nk - 1 - kk) * (3 if tr else 1))
        mfma(vD, vA + 4 * kk, wreg + 4 * kk, vD if kk else None)
    if post:
        post()
    if not PAD:
        a('s_mov_b32 exec_hi, 0')
    a('v_bfi_b32 %s, %s, %s, %s' % (v(T), v(vTagM), s(sTag + 6 + gi), v(vD)))
    st = 'global_store_dword %s, %s, %s offset:%d sc1' % (v(vPubG), v(T), s(sGb0 if gi < 2 else sGb1, 2), imm)
    if OPT['na'] and gi:
        a('s_mov_b32 exec_lo, s37')
        a(st)
        a('s_not_b32 exec_lo, s37')
        a(st)
        a('s_mov_b64 exec, -1')
    else:
        a(st)
        if not PAD:
            a('s_mov_b32 exec_hi, -1')


def g_pace(gi):
    flush_deferred()
    if OPT['na'] and gi:
        a('s_waitcnt vmcnt(1)')
        for i in range(OPT['nsl']):
            a('s_nop 7')
    else:
        a('s_waitcnt vmcnt(0)')
    if OPT.get('g%dd' % gi):
        a('s_sleep %d' % OPT['g%dd' % gi])
    stamp('G%d ack' % gi)


def probe_near():
    a('s_not_b32 s4, %s' % s(sE))
    a('s_xor_b32 s55, %s, 8192' % s(sPr))
    a('s_waitcnt lgkmcnt(0)')
    a('s_load_dword s4, s[26:27], %s' % s(sPr))
    a('s_load_dword s5, s[26:27], s55')
    a('s_lshl_b32 s59, %s, 2' % s(sJ))
    a('s_add_u32 s59, s59, %s' % s(sW))
    a('s_lshl_b32 s59, s59, 3')
    a('s_add_u32 s59, s59, %d' % VOTES)
    a('v_mov_b32 %s, s59' % v(T + 1))
    a('v_mov_b32 %s, %s' % (v(T + 3), s(sTag + 2)))
    a('s_waitcnt lgkmcnt(1)')
    a('s_memtime s[8:9]')
    a('s_cmp_eq_u32 s4, %s' % s(sE))
    a('s_cselect_b32 s6, %d, -1' % OPT['thr'])
    a('s_waitcnt lgkmcnt(0)')
    a('s_memtime s[10:11]')
    a('s_waitcnt lgkmcnt(0)')
    a('s_sub_u32 s7, s10, s8')
    a('s_cmp_gt_u32 s7, s6')
    a('s_cselect_b32 s6, 1, 0')
    if DIAG:
        a('s_mov_b32 s12, s7')
    a('v_mov_b32 %s, s6' % v(T + 2))
    a('s_mov_b64 exec, 1')
    lstore('global_store_dwordx2', v(T + 1), v(T + 2, 2), 0)
    a('s_mov_b64 exec, -1')


def count_votes():
    a('v_and_b32 %s, 31, %s' % (v(T + 4), v(vL)))
    a('v_lshlrev_b32 %s, 3, %s' % (v(T + 4), v(T + 4)))
    a('v_add_u32 %s, %d, %s' % (v(T + 4), VOTES, v(T + 4)))
    if OPT['vw'] and not OPT['vlate']:
        a('s_waitcnt vmcnt(0)')
    a('global_load_dwordx2 %s, %s, %s sc1' % (v(T + 2, 2), v(T + 4), s(sLb, 2)))
    a('s_lshr_b32 s55, %s, 1' % s(sW) if WSH else 's_and_b32 s55, %s, 1' % s(sW))
    a('s_xor_b32 s59, s55, 1')
    a('s_waitcnt vmcnt(0)')
    a('v_xor_b32 %s, %s, %s' % (v(T + 3), s(sTag + 2), v(T + 3)))
    a('v_xor_b32 %s, 1, %s' % (v(T + 2), v(T + 2)))
    a('v_or_b32 %s, %s, %s' % (v(T + 2), v(T + 2), v(T + 3)))
    a('v_cmp_eq_u32 vcc, 0, %s' % v(T + 2))
    a('s_and_b32 s4, vcc_lo, 0x%x' % (0x33333333 if WSH else 0x55555555))
    a('s_and_b32 s5, vcc_lo, 0x%x' % (0xcccccccc if WSH else 0xaaaaaaaa))
    a('s_bcnt1_i32_b32 s4, s4')
    a('s_bcnt1_i32_b32 s5, s5')
    if DIAG:
        a('s_lshl_b32 s13, s4, 8')
        a('s_add_u32 s13, s13, s5')
    a('s_cmp_ge_u32 s4, s5')
    a('s_cselect_b32 s55, s55, s59')
    if OPT['na']:
        a('s_cmp_eq_u32 s55, 0')
        a('s_cselect_b32 s37, 0xffff, %s' % s(sM0))
    a('s_mul_i32 s55, s55, 0x%x' % G_X)
    a('v_xor_b32 %s, s55, %s' % (v(vConsG), v(vConsG0)))


def flag_store(val):
    sk = newlabel('nofl')
    a('s_or_b32 s55, %s, %s' % (s(sJ), s(sW)))
    a('s_cbranch_scc1 %s' % sk)
    a('s_lshl_b32 s55, %s, 7' % s(sGam))
    a('s_add_u32 s55, s55, %d' % WS_F)
    a('v_lshl_add_u32 %s, %s, 2, s55' % (v(T + 21), v(vL)))
    a('v_mov_b32 %s, %s' % (v(T + 20), s(val)))
    a('s_mov_b32 exec_hi, 0')
    a('global_store_dword %s, %s, s[26:27] sc1' % (v(T + 21), v(T + 20)))
    a('s_mov_b32 exec_hi, -1')
    a.label(sk)


def flag_load():
    a('s_mov_b32 exec_hi, 0')
    a('global_load_dword %s, %s, s[26:27] sc1' % (v(T + 6), v(T + 5)))
    a('s_mov_b32 exec_hi, -1')


def flag_wait(cnt):
    top, ent = newlabel('fl'), newlabel('fle')
    a('s_branch %s' % ent)
    a.label(top)
    tick()
    flag_load()
    a('s_waitcnt vmcnt(0)')
    a.label(ent)
    a('s_waitcnt vmcnt(%d)' % cnt)
    a('v_cmp_ne_u32 vcc, %s, %s' % (s(sTag + 6), v(T + 6)))
    a('s_cmp_lg_u32 vcc_lo, 0')
    a('s_cbranch_scc1 %s' % top)


def page_break(force=False):
    if OPT['pages'] and (FAST[0] or force):
        l = newlabel('page')
        a('s_branch %s' % l)
        flush_deferred(False)
        a.raw('.p2align 12')
        a.label(l)


a.raw('''; One persistent launch, 256 workgroups = 32 groups (attention head / slice of the ffn columns) x 8 members.
; Weights and the K/V window are read once and stay in registers for both layers; workgroups hand over partial sums
; through d_ws in 64-byte tagged sectors (tag = epoch word found in d_ws + index of the hand-off).
; @launch grid=(256,1,1) block=(256,1,1) lds=%d
.amdgcn_target "amdgcn-amd-amdhsa--gfx950"
.text
.p2align 12
.globl %s_kernel
.p2align 8
.type %s_kernel,@function
%s_kernel:''' % (LDS_BYTES, NAME, NAME, NAME))
a('s_cmp_ge_u32 s2, 256')
a('s_cbranch_scc1 L_end')
a('s_load_dwordx16 s[4:19], s[0:1], 0')
a('s_load_dwordx8 s[20:27], s[0:1], 64')
stamp('start')
stamp('x rt0')
a('s_getpc_b64 %s' % s(sPc, 2))
a.label('L_pc')
a('v_lshlrev_b32 %s, 6, v0' % v(T))
a('v_min_u32 %s, L_fastend-L_pc-64, %s' % (v(T), v(T)))
a('global_load_dword %s, %s, %s' % (v(T + 22), v(T), s(sPc, 2)))
a('v_lshrrev_b32 %s, 6, v0' % v(T))
a('v_and_b32 %s, 63, v0' % v(vL))
a('v_readfirstlane_b32 %s, %s' % (s(sW), v(T)))
a('s_lshr_b32 s3, s2, 3')
a('s_and_b32 %s, s3, 7' % s(sJ))
a('s_lshr_b32 s3, s3, 3')
a('s_and_b32 s31, s2, 7')
a('s_lshl_b32 %s, s31, 2' % s(sGam))
a('s_add_u32 %s, %s, s3' % (s(sGam), s(sGam)))
u16, pos16, u8, pos8, l3, col16 = T + 1, T + 2, T + 3, T + 4, T + 5, T + 6
t0, t1, t2, t3 = T + 8, T + 9, T + 10, T + 11
k0 = T + 12


def pro_wq():
    a('v_lshrrev_b32 %s, 4, %s' % (v(u16), v(vL)))
    a('v_and_b32 %s, 15, %s' % (v(pos16), v(vL)))
    a('v_lshlrev_b32 %s, 1, %s' % (v(t2), v(u16)))
    a('v_xor_b32 %s, %s, %s' % (v(t2), v(t2), v(pos16)))
    a('v_lshlrev_b32 %s, 4, %s' % (v(t2), v(t2)))
    a('v_lshl_add_u32 %s, %s, 13, %s' % (v(t0), v(u16), v(t2)))
    a('v_xor_b32 %s, 0x80, %s' % (v(t1), v(t0)))
    a('v_add_u32 %s, %d, %s' % (v(t1), 2 * 31744, v(t1)))
    a('s_lshl_b32 s49, %s, 12' % s(sW))
    a('s_lshl_b32 s55, %s, 19' % s(sJ))
    a('s_lshl_b32 s56, %s, 17' % s(sW))
    a('s_add_u32 s55, s55, s56')
    a('s_lshl_b32 s56, %s, 8' % s(sGam))
    a('s_add_u32 s55, s55, s56')
    a('s_add_u32 m0, s49, %d' % WQ)


def pro_rest():
    a('v_and_b32 %s, 3, %s' % (v(l3), v(vL)))
    a('v_lshl_add_u32 %s, %s, 2, %s' % (v(col16), v(l3), v(u16)))
    a('s_lshl_b32 s48, %s, 5' % s(sW))
    a('v_lshl_add_u32 %s, %s, 1, s48' % (v(vXw), v(col16)))
    a('v_lshl_add_u32 %s, %s, 8, %s' % (v(vVo), v(u16), v(t2)))
    a('v_xor_b32 %s, 0x80, %s' % (v(vVo + 1), v(vVo)))
    a('v_xor_b32 %s, %s, %s' % (v(k0), v(u16), v(pos16)))
    a('v_lshlrev_b32 %s, 4, %s' % (v(k0), v(k0)))
    a('v_lshl_add_u32 %s, %s, 8, %s' % (v(k0), v(u16), v(k0)))
    for i in range(1, 4):
        a('v_xor_b32 %s, %d, %s' % (v(k0 + i), i << 6, v(k0)))
    a('s_lshl_b32 s48, %s, 7' % s(sJ))
    a('s_lshl_b32 s56, %s, 20' % s(sGam))
    a('s_lshl_b32 s58, %s, 15' % s(sJ))
    a('s_add_u32 s56, s56, s58')
    a('s_lshl_b32 s58, %s, 13' % s(sW))
    a('s_add_u32 s56, s56, s58')
    a('s_add_u32 s56, s56, %d' % (3072 * 256))


def pro_touch():
    a('v_lshl_add_u32 %s, %s, 4, s49' % (v(vCons), v(vL)))
    a('s_lshl_b32 s57, %s, 14' % s(sGam))
    a('s_add_u32 s57, s57, %d' % WS_L)
    a('s_add_u32 s3, s48, s57')
    a('s_add_u32 s59, s3, s49')
    a('v_lshl_add_u32 %s, %s, 10, s59' % (v(t3), v(vL)))
    a('v_cmp_lt_u32 vcc, 2, %s' % v(vL))
    a('s_add_u32 s3, s3, %d' % STATS)
    a('v_mov_b32 %s, s3' % v(T + 17))
    a('v_cndmask_b32 %s, %s, %s, vcc' % (v(t3), v(t3), v(T + 17)))
    a('s_add_u32 s3, s57, %d' % VOTES)
    a('v_writelane_b32 %s, s3, 3' % v(t3))
    a('s_add_u32 s3, s3, 128')
    a('v_writelane_b32 %s, s3, 4' % v(t3))
    a('s_and_b32 s3, s48, 0x180')
    a('s_add_u32 s3, s3, s57')
    a('s_add_u32 s3, s3, %d' % (STATS + ST0))
    a('v_writelane_b32 %s, s3, 5' % v(t3))


PRO = OPT.get('pro', 2)
pro_wq()
if PRO < 2:
    pro_rest()
if PRO < 1:
    pro_touch()
stamp('pre ka')
a('s_waitcnt lgkmcnt(0)')
stamp('ka')
a('s_add_u32 s10, s10, s55')
a('s_addc_u32 s11, s11, 0')
a('global_load_lds_dwordx4 %s, s[10:11] offset:0%s' % (v(t0), NT))
a('v_add_u32 %s, 31744, %s' % (v(t0), v(t0)))
a('s_load_dword %s, s[26:27], 0' % s(sE))
a('global_load_lds_dwordx4 %s, s[10:11] offset:1024%s' % (v(t0), NT))
a('global_load_lds_dwordx4 %s, s[10:11] offset:2048%s' % (v(t1), NT))
a('v_add_u32 %s, 31744, %s' % (v(t1), v(t1)))
a('global_load_lds_dwordx4 %s, s[10:11] offset:3072%s' % (v(t1), NT))
if PRO >= 2:
    pro_rest()
a('s_add_u32 s4, s4, s48')
a('s_addc_u32 s5, s5, 0')
a('global_load_ushort %s, %s, s[4:5]' % (v(vX), v(vXw)))
a('s_add_u32 s6, s6, s56')
a('s_addc_u32 s7, s7, 0')
if PRO < 1:
    a('global_load_dword %s, %s, s[26:27]' % (v(T + 22), v(t3)))
a('s_add_u32 m0, s58, %d' % KI)
stamp('wq iss')
a('s_barrier')
for i in range(4):
    a('global_load_lds_dwordx4 %s, s[6:7] offset:%d%s' % (v(k0 + i), 1024 * i, NT))


def k_second():
    a('s_add_u32 m0, s58, %d' % (KI + 4096))
    a('s_add_u32 s6, s6, 4096')
    a('s_addc_u32 s7, s7, 0')
    for i in range(4):
        a('global_load_lds_dwordx4 %s, s[6:7] offset:%d%s' % (v(k0 + i), 1024 * i, NT))


if not OPT['ksplit']:
    k_second()
if PRO >= 1:
    pro_touch()
    a('global_load_dword %s, %s, s[26:27]' % (v(T + 22), v(t3)))
stamp('issued')
a('s_add_u32 s8, s8, s56')
a('s_addc_u32 s9, s9, 0')
a('s_add_u32 %s, s26, s57' % s(sLb))
a('s_addc_u32 %s, s27, 0' % s(sLb + 1))
a('s_lshl_b32 s55, %s, %d' % (s(sJ), 14 + PAD))
a('s_add_u32 s55, s55, %d' % (WS_G + GOFF))
a('s_add_u32 %s, s26, s55' % s(sGb0))
a('s_addc_u32 %s, s27, 0' % s(sGb0 + 1))
a('s_add_u32 %s, %s, 0x%x' % (s(sGb1), s(sGb0), 0x40000 << PAD))
a('s_addc_u32 %s, %s, 0' % (s(sGb1 + 1), s(sGb0 + 1)))
a('s_getreg_b32 %s, hwreg(HW_REG_XCC_ID, 0, 4)' % s(sXcc))
a('s_lshl_b32 %s, s2, 2' % s(sPr))
a('s_add_u32 %s, %s, %s' % (s(sPr), s(sPr), s(sW)))
a('s_and_b32 s55, %s, 63' % s(sPr))
a('s_lshl_b32 s55, s55, 7')
a('s_lshr_b32 %s, %s, 6' % (s(sPr), s(sPr)))
a('s_lshl_b32 %s, %s, 14' % (s(sPr), s(sPr)))
a('s_add_u32 %s, %s, s55' % (s(sPr), s(sPr)))
a('s_add_u32 %s, %s, %d' % (s(sPr), s(sPr), WS_P))
a('s_lshl_b32 s55, s49, %d' % PAD)
a('s_and_b32 s55, s55, 8192')
a('s_add_u32 %s, %s, s55' % (s(sPr), s(sPr)))
a('s_mov_b32 %s, 0x40000' % s(sTo))
a('s_mov_b32 %s, %s' % (s(sCs), f32(math.log2(math.e) / math.sqrt(128.0))))
a('s_mov_b32 %s, 0xffffff00' % s(sMaskHi))
a('s_mov_b32 %s, %s' % (s(sInv512), f32(1.0 / 512)))
a('s_mov_b32 %s, %s' % (s(sEps), f32(1e-5)))
a('s_mov_b32 %s, %s' % (s(sNl2e), f32(-math.log2(math.e))))
a('s_mov_b32 %s, 0xffff0000' % s(sM0))
a('s_mov_b32 %s, 0xffff0000' % s(sM0 + 1))
a('s_mov_b32 %s, 0x10000' % s(sM1))
a('s_mov_b32 %s, 0x10000' % s(sM1 + 1))
a('s_mov_b32 %s, 0' % s(sHi))
a('s_mov_b32 %s, -1' % s(sHi + 1))
a('s_mul_i32 %s, %s, 43' % (s(sC0), s(sGam)))
a('s_add_u32 %s, %s, 43' % (s(sCnt), s(sC0)))
a('s_lshr_b32 %s, %s, 3' % (s(sC0), s(sC0)))
a('s_lshr_b32 %s, %s, 3' % (s(sCnt), s(sCnt)))
a('s_sub_u32 %s, %s, %s' % (s(sCnt), s(sCnt), s(sC0)))
a('s_lshl_b32 %s, %s, 3' % (s(sCnt), s(sCnt)))
a('v_mov_b32 %s, 0' % v(vZero))
a('v_lshrrev_b32 %s, 3, %s' % (v(u8), v(vL)))
a('v_and_b32 %s, 7, %s' % (v(pos8), v(vL)))
a('s_add_u32 s55, s49, s48')
a('v_and_b32 %s, 31, %s' % (v(t0), v(vL)))
a('v_lshl_add_u32 %s, %s, 2, s55' % (v(vPubL), v(t0)))
a('v_lshrrev_b32 %s, 5, %s' % (v(t3), v(vL)))
a('v_lshl_add_u32 %s, %s, 10, %s' % (v(vPubL), v(t3), v(vPubL)))
a('s_lshl_b32 s55, %s, 6' % s(sW))
a('v_lshl_add_u32 %s, %s, 1, s55' % (v(vPw), v(t0)))
a('v_lshl_add_u32 %s, %s, 2, %s' % (v(t1), v(pos8), v(u16)))
a('v_lshl_add_u32 %s, %s, 1, s55' % (v(vQw), v(t1)))
a('s_lshl_b32 s55, %s, 6' % s(sGam))
a('s_add_u32 s55, s55, s49')
if PAD:
    a('s_lshl_b32 s55, s55, 1')
a('v_lshl_add_u32 %s, %s, 2, s55' % (v(vPubG), v(pos16)))
if PAD:
    a('v_lshl_add_u32 %s, %s, 6, %s' % (v(vPubG), v(t3), v(vPubG)))
a('v_and_b32 %s, 1, %s' % (v(t2), v(u16)))
a('v_mul_u32_u24 %s, 0x%x, %s' % (v(t2), G_X, v(t2)))
a('v_xor_b32 %s, %s, %s' % (v(vPubG), v(vPubG), v(t2)))
a('v_lshl_add_u32 %s, %s, %d, s55' % (v(vPre), v(pos8), 3 + PAD))
a('v_xor_b32 %s, %s, %s' % (v(vPre), v(vPre), v(t2)))
a('v_and_b32 %s, 1, %s' % (v(t2), v(u8)))
a('v_lshl_add_u32 %s, %s, %d, %s' % (v(vPre), v(t2), 11 + PAD, v(vPre)))
a('v_lshl_add_u32 %s, %s, %d, %s' % (v(vPre), v(t3), 18 + PAD, v(vPre)))
a('s_lshl_b32 s55, %s, 2' % s(sJ))
a('s_add_u32 s55, s55, %s' % s(sW))
a('s_lshl_b32 s55, s55, 4')
a('s_add_u32 s55, s55, %d' % STATS)
a('v_mov_b32 %s, s55' % v(vStP))
a('v_lshl_add_u32 %s, %s, 3, s55' % (v(vStP2), v(t3)))
a('v_lshlrev_b32 %s, 4, %s' % (v(t1), v(l3)))
a('v_lshl_add_u32 %s, %s, 6, %s' % (v(t1), v(u8), v(t1)))
a('v_add_u32 %s, %d, %s' % (v(vStC), STATS, v(t1)))
a('v_mov_b32 %s, 0xff' % v(t2))
a('v_cmp_eq_u32 vcc, 0, %s' % v(l3))
a('v_lshlrev_b32 %s, 4, %s' % (v(vOpR), v(u16)))
a('v_and_b32 %s, 8, %s' % (v(t1), v(vL)))
a('v_cndmask_b32 %s, 0, %s, vcc' % (v(vTagM), v(t2)))
a('v_lshl_add_u32 %s, %s, 4, %s' % (v(vXopR), v(t1), v(vOpR)))
a('v_and_b32 %s, 4, %s' % (v(t1), v(vL)))
a('v_cmp_eq_u32 vcc, 0, %s' % v(t1))
a('v_add_u32 %s, %d, %s' % (v(t1), HB, v(vXw)))
a('v_mov_b32 %s, %d' % (v(t2), DUMMY))
a('v_cndmask_b32 %s, %s, %s, vcc' % (v(vHw), v(t2), v(t1)))
a('v_lshrrev_b32 %s, 1, %s' % (v(t1), v(vXw)))
a('v_cmp_gt_u32 vcc, %s, %s' % (s(sCnt), v(t1)))
a('s_lshl_b32 s55, %s, 2' % s(sW))
a('v_mov_b32 %s, s55' % v(vMw))
a('v_lshlrev_b32 %s, 2, %s' % (v(vMr), v(l3)))
a('v_cndmask_b32 %s, 0, -1, vcc' % v(vHmask))
a('v_lshlrev_b32 %s, 2, %s' % (v(t0), v(t0)))
a('v_mov_b32 %s, 0x3f803f80' % v(t1))
a('ds_write_b32 %s, %s offset:%d' % (v(t0), v(t1), ONES))
a('v_lshlrev_b32 %s, 2, %s' % (v(t0), v(pos8)))
a('ds_write_b32 %s, %s offset:%d' % (v(t0), v(vZero), HB + 96))
if PAD:
    a('v_lshrrev_b32 %s, 2, %s' % (v(t1), v(vL)))
    a('v_lshlrev_b32 %s, 4, %s' % (v(t2), v(l3)))
    a('v_lshl_add_u32 %s, %s, 7, %s' % (v(t1), v(t1), v(t2)))
    a('s_lshl_b32 s59, s49, 1')
    a('v_add_u32 %s, s59, %s' % (v(vConsG), v(t1)))
else:
    a('v_mov_b32 %s, %s' % (v(vConsG), v(vCons)))
a('v_mov_b32 %s, %s' % (v(vConsG0), v(vConsG)))
a('v_mov_b32 %s, %s' % (v(vSt + 3), s(sXcc)))
r_ = T + 16
a('v_lshrrev_b32 %s, 2, %s' % (v(r_), v(pos16)))
a('v_and_b32 %s, 1, %s' % (v(t0), v(u16)))
a('v_lshl_add_u32 %s, %s, 2, %s' % (v(t1), v(t0), v(r_)))
a('v_lshlrev_b32 %s, 1, %s' % (v(t1), v(t1)))
a('v_xor_b32 %s, s55, %s' % (v(t1), v(t1)))
a('v_lshlrev_b32 %s, 4, %s' % (v(t1), v(t1)))
a('v_lshl_add_u32 %s, %s, 3, %s' % (v(t1), v(l3), v(t1)))
a('v_lshl_add_u32 %s, %s, 3, %s' % (v(t2), v(u16), v(r_)))
a('v_lshl_add_u32 %s, %s, 8, %s' % (v(trq), v(t2), v(t1)))
a('v_xor_b32 %s, 32, %s' % (v(trq + 1), v(trq)))
a('v_lshrrev_b32 %s, 1, %s' % (v(t1), v(r_)))
a('v_lshl_add_u32 %s, %s, 1, %s' % (v(t1), v(t0), v(t1)))
a('v_xor_b32 %s, %s, %s' % (v(t1), s(sW), v(t1)))
a('v_lshlrev_b32 %s, 5, %s' % (v(t1), v(t1)))
a('v_lshl_add_u32 %s, %s, 3, %s' % (v(t1), v(l3), v(t1)))
a('v_lshl_add_u32 %s, %s, 7, %s' % (v(vTr), v(t2), v(t1)))
a('v_add_u32 %s, %d, %s' % (v(vTr), WO, v(vTr)))
a('v_and_b32 %s, 2, %s' % (v(t0), v(u8)))
a('v_xor_b32 %s, %s, %s' % (v(t0), v(t0), v(pos8)))
a('v_lshlrev_b32 %s, 4, %s' % (v(t1), v(t0)))
a('v_lshl_add_u32 %s, %s, 10, %s' % (v(wo0), v(u8), v(t1)))
a('v_xor_b32 %s, 64, %s' % (v(wo1), v(wo0)))
a('v_add_u32 %s, 7168, %s' % (v(wo1), v(wo1)))
a('v_mul_u32_u24 %s, 2752, %s' % (v(t2), v(u8)))
a('v_min_u32 %s, 5, %s' % (v(t1), v(t0)))
a('v_lshl_add_u32 %s, %s, 4, %s' % (v(f0), v(t1), v(t2)))
a('v_xor_b32 %s, 4, %s' % (v(t0), v(t0)))
a('v_min_u32 %s, 5, %s' % (v(t1), v(t0)))
a('v_lshl_add_u32 %s, %s, 4, %s' % (v(f1), v(t1), v(t2)))
a('v_add_u32 %s, %d, %s' % (v(f1), 8 * 2752 - 1024, v(f1)))
a('s_lshl_b32 s55, %s, 17' % s(sGam))
a('s_lshl_b32 s59, %s, 15' % s(sW))
a('s_add_u32 s55, s55, s59')
a('s_add_u32 s55, s55, s48')
a('s_add_u32 s12, s12, s55')
a('s_addc_u32 s13, s13, 0')
a('s_lshl_b32 s55, %s, 2' % s(sJ))
a('s_add_u32 s55, s55, %s' % s(sW))
a('s_mul_i32 s55, s55, %d' % (16 * 2752))
a('s_lshl_b32 s59, %s, 4' % s(sC0))
a('s_add_u32 s55, s55, s59')
a('s_add_u32 s16, s16, s55')
a('s_addc_u32 s17, s17, 0')
a('s_add_u32 s18, s18, s55')
a('s_addc_u32 s19, s19, 0')
a('s_lshl_b32 s55, %s, 13' % s(sC0))
a('s_min_u32 s59, %s, 2' % s(sW))
a('s_lshl_b32 s59, s59, 14')
a('s_add_u32 s55, s55, s59')
a('s_add_u32 s55, s55, s48')
a('s_add_u32 s20, s20, s55')
a('s_addc_u32 s21, s21, 0')
a('s_add_u32 s22, s22, s48')
a('s_addc_u32 s23, s23, 0')
if OPT['ksplit']:
    k_second()
a('s_add_u32 s6, s8, 4096')
a('s_addc_u32 s7, s9, 0')
a('s_waitcnt lgkmcnt(0)')
for k in range(10):
    a('s_add_u32 %s, %s, %d' % (s(sTag + k), s(sE), k + 1))


def issue_v(lo, hi):
    for i in range(lo, hi):
        if i == lo or i == 4:
            a('s_add_u32 m0, s58, %d' % (VI + 4096 * (i >> 2)))
            a('s_nop 0')
        a('global_load_lds_dwordx4 %s, %s offset:%d%s' % (v(vVo + ((i >> 1) & 1)), 's[6:7]' if i >= 4 else 's[8:9]', 1024 * (i & 3), NT))


def issue_wo():
    a('s_add_u32 m0, s49, %d' % WO)
    a('v_add_u32 %s, %d, %s' % (v(T + 20), 2 * 7168, v(wo0)))
    a('global_load_lds_dwordx4 %s, s[12:13] offset:0%s' % (v(wo0), NT))
    a('global_load_lds_dwordx4 %s, s[12:13] offset:1024%s' % (v(wo1), NT))
    a('global_load_lds_dwordx4 %s, s[12:13] offset:2048%s' % (v(T + 20), NT))
    a('v_add_u32 %s, %d, %s' % (v(T + 20), 2 * 7168, v(wo1)))
    a('global_load_lds_dwordx4 %s, s[12:13] offset:3072%s' % (v(T + 20), NT))


def issue_w13(lo, hi):
    for i in range(lo, hi):
        if i == lo or i == 2:
            a('s_lshl_b32 s59, %s, 11' % s(sW))
            a('s_add_u32 m0, s59, %d' % (W1 if i < 2 else W3))
            a('s_nop 0')
        a('global_load_lds_dwordx4 %s, s[%d:%d] offset:%d%s' % (v(f0 + (i & 1)), 16 + (i & 2), 17 + (i & 2), 1024 * (i & 1), NT))


def issue_w2():
    a('s_min_u32 s59, %s, 2' % s(sW))
    a('s_lshl_b32 s59, s59, 11')
    a('s_add_u32 m0, s59, %d' % W2)
    a('s_nop 0')
    a('global_load_lds_dwordx4 %s, s[20:21] offset:0%s' % (v(wo0), NT))
    a('global_load_lds_dwordx4 %s, s[20:21] offset:1024%s' % (v(wo1), NT))


r = vP
FE, KW, WOL = OPT['fe'], OPT['kw'], OPT['wol']
NPRE = 1 + OPT['probe']
NVA = OPT['nva']
NVB = 8 - NVA
NLATE = 0 if WOL else 4 + FE + 2 * OPT['w2e']


WOETC = []


def front():
    a('; ---- layer 0: x slice, query projection partials')
    set_tags(0)
    a('v_add_u32 %s, 0x%x, %s' % (v(T + 12), WS_L2D, v(vStP2)))
    a('v_add_u32 %s, 0x%x, %s' % (v(T + 13), WS_L2D, v(vPubL)))
    a('v_add_u32 %s, 0x%x, %s' % (v(T + 14), ST0, v(vStP2)))
    stamp('consts')
    a('s_waitcnt vmcnt(9)')
    stamp('wq landed')
    a('ds_write_b16 %s, %s offset:%d' % (v(vXw), v(vX), XB))
    issue_v(0, OPT['vq'])
    a('v_lshlrev_b32 %s, 16, %s' % (v(vSt4), v(vX)))
    a('v_lshlrev_b32 %s, 16, %s' % (v(vX), v(vX)))
    FAST[0] = True
    ln_stats(0, T + 14)
    a('s_waitcnt lgkmcnt(0)')

    proj(vWQ, 0, 0, wsrc=[(trq, WQ, 8192, 1024), (trq + 1, WQ, 8192, 1024)], first=True)
    FAST[0] = False
    stamp('L0 Q pub')
    if OPT.get('te'):
        h = OPT.get('th', 4)
        issue_v(OPT['vq'], h)
        sk = newlabel('noth')
        a('s_cmp_ge_u32 %s, 4' % s(sXcc))
        a('s_cbranch_scc1 %s' % sk)
        a('s_waitcnt vmcnt(%d)' % max(8 - OPT['te'] + (PRO >= 1) + 2 + h, 0))
        a.label(sk)
        issue_v(h, NVA)
    else:
        issue_v(OPT['vq'], NVA)
    lstore('global_store_dword', v(T + 13), v(T), BUF_A)
    a('s_mov_b64 exec, %s' % s(sM1, 2))
    lstore('global_store_dwordx2', v(T + 12), v(vSt4, 2), 0)
    a('s_mov_b64 exec, -1')
    a('v_mov_b32 %s, %s' % (v(T + 16), s(sE)))
    a('v_mov_b32 %s, %s' % (v(T + 17), s(sE)))
    if PAD:
        a('v_mov_b32 %s, %s' % (v(T + 18), s(sE)))
        a('v_mov_b32 %s, %s' % (v(T + 19), s(sE)))
    a('global_store_dwordx%d %s, %s, %s offset:%d sc1' % (2 << PAD, v(vPre), v(T + 16, 2 << PAD), s(sGb0, 2), -GOFF))
    if OPT['probe']:
        a('v_and_b32 %s, 31, %s' % (v(T + 18), v(vL)))
        a('v_lshl_add_u32 %s, %s, 2, %s' % (v(T + 18), v(T + 18), s(sPr)))
        a('v_lshrrev_b32 %s, 5, %s' % (v(T + 19), v(vL)))
        a('v_lshlrev_b32 %s, 13, %s' % (v(T + 19), v(T + 19)))
        a('v_xor_b32 %s, %s, %s' % (v(T + 18), v(T + 19), v(T + 18)))
        a('global_store_dword %s, %s, s[26:27] sc1' % (v(T + 18), v(T + 16)))
    a('; ---- layer 0: gather q')
    a('v_xor_b32 %s, %s, %s' % (v(t0), v(u16), v(pos16)))
    a('v_lshlrev_b32 %s, 4, %s' % (v(t0), v(t0)))
    a('v_lshl_add_u32 %s, %s, 8, %s' % (v(t0), v(pos16), v(t0)))
    a('s_add_u32 s55, s58, %d' % KI)
    a('v_add_u32 %s, s55, %s' % (v(t0), v(t0)))
    for kk in range(1, 4):
        a('v_xor_b32 %s, %d, %s' % (v(t0 + kk), kk << 6, v(t0)))
    alt, both, alts, boths = T + 13, T + 14, T + 15, T + 21
    a('v_mov_b32 %s, %s' % (v(alt), v(vCons)))
    a('v_lshlrev_b32 %s, 1, %s' % (v(both), v(vCons)))
    a('v_add_u32 %s, 0x%x, %s' % (v(both), WS_L2D, v(both)))
    a('v_add_u32 %s, 0x%x, %s' % (v(alts), ST0, v(vStC)))
    a('v_lshlrev_b32 %s, 1, %s' % (v(boths), v(vStC)))
    a('v_add_u32 %s, 0x%x, %s' % (v(boths), WS_L2D + ST0, v(boths)))
    page_break(True)
    behind_k = 2 + NVA + 2 + NPRE + (PRO >= 1)
    a('s_waitcnt vmcnt(%d)' % (8 - KW + behind_k))
    stamp('K part')
    loads = [(vSs[0], alts, sLb, 0), (r, alt, sLb, BUF_A), (r + 4, alt, sLb, BUF_X)]
    for x in loads:
        gload(*x)
    issue_v(NVA, 8)

    def wo_etc():
        issue_wo()
        if OPT['w2e']:
            issue_w2()
        issue_w13(0, FE)
    if not WOL:
        wo_etc()
    a('s_waitcnt vmcnt(%d)' % (behind_k + 3 + NVB + NLATE))
    stamp('K landed')
    for g in range(2):
        for kk in range(4):
            a('ds_read_b128 %s, %s offset:%d' % (v(vK + 16 * g + 4 * kk, 4), v(t0 + kk), 4096 * g))
    a('s_branch L_e1ent')
    a.label('L_e1top')
    tick()
    a('v_sub_u32 %s, %s, %s' % (v(alt), v(both), v(alt)))
    a('v_sub_u32 %s, %s, %s' % (v(alts), v(boths), v(alts)))
    for x in loads:
        gload(*x)
    if NLATE + NVB:
        a('s_waitcnt vmcnt(0)')
    a.label('L_e1ent')
    a('s_waitcnt vmcnt(%d)' % (NLATE + NVB))
    a('v_bitop3_b32 %s, %s, %s, %s bitop3:0x7e' % (v(T + 23), v(r), v(r + 4), s(sTag)))
    a('v_cmp_ne_u32 %s, %s, %s' % (s(sT1, 2), s(sTag), v(vSs[0] + 1)))
    a('v_cmp_ne_u32_sdwa vcc, %s, %s src0_sel:BYTE_0 src1_sel:DWORD' % (v(T + 23), v(vZero)))
    a('s_or_b64 vcc, vcc, %s' % s(sT1, 2))
    a('s_cbranch_vccnz L_e1top')
    stamp('L0 E1 ok')
    if OPT['fl']:
        flag_store(sE)
    if WOL and OPT['wopos'] == 0:
        wo_etc()
    WOETC.append(wo_etc)
    a('v_cmp_ne_u32 vcc, %s, %s' % (s(sXcc), v(vSs[0] + 3)))
    c, x, y = vC, vSs[0], r + 4
    ln_spec(x)
    mask_tag(y)
    a('v_mov_b32 %s, %s' % (v(c + 1), v(c)))
    a('v_permlane32_swap_b32 %s, %s' % (v(y + 1), v(y + 3)))
    mask_tag(r)
    a('v_permlane16_swap_b32 %s, %s' % (v(c), v(c + 1)))
    a('v_add_f32 %s, %s, %s' % (v(c), v(c), v(c + 1)))
    a('v_add_f32 %s, %s, %s' % (v(y + 1), v(y + 1), v(y + 3)))
    a('v_permlane32_swap_b32 %s, %s' % (v(y), v(y + 2)))
    dpp('v_add_f32', c, c, c, 'row_ror:8')
    a('v_add_f32 %s, %s, %s' % (v(y), v(y), v(y + 2)))
    a('v_permlane32_swap_b32 %s, %s' % (v(r + 1), v(r + 3)))
    dpp('v_add_f32', c, c, c, X1)
    a('v_add_f32 %s, %s, %s' % (v(r + 1), v(r + 1), v(r + 3)))
    a('v_permlane16_swap_b32 %s, %s' % (v(y), v(y + 1)))
    dpp('v_add_f32', c, c, c, X2)
    a('v_add_f32 %s, %s, %s' % (v(y), v(y), v(y + 1)))
    a('v_mul_f32 %s, %s, %s' % (v(c), s(sInv512), v(c)))
    a('v_mov_b32 %s, %s' % (v(c + 1), v(c)))
    a('v_permlane32_swap_b32 %s, %s' % (v(r), v(r + 2)))
    dpp('v_add_f32', vCq, y, y, 'row_ror:8')
    a('v_permlane32_swap_b32 %s, %s' % (v(c), v(c + 1)))
    a('v_add_f32 %s, %s, %s' % (v(r), v(r), v(r + 2)))
    bf16r(vMean, c)
    if OPT['fast']:
        a('s_cbranch_vccnz L_slowtail')


def tail():
    for layer in range(2):
        pre = 'L%d' % layer
        k1, k2, k4 = 3 * layer, 3 * layer + 1, 3 * layer + 2

        def spec(x):
            mask_tag(x)
            red_a(x, r)
        if layer == 1:
            a('; ---- layer 1: x slice, query projection partials')
            set_tags(k1)
            page_break()
            if OPT['probe'] and OPT['vlate']:
                count_votes()
            g_pace(1)
            x_gather(1, G_D)
            stamp(pre + ' E5 ok')
            x_to_lds(k1)
            a('s_waitcnt lgkmcnt(0)')
            proj(vWQ, k1, layer)
            stamp(pre + ' Q pub')
            a('; ---- layer 1: gather q')
            l_gather(k1, spec, ln_spec, [ln_mean])
            stamp(pre + ' E1 ok')
        red_b(r, r)
        a('v_fma_f32 %s, -%s, %s, %s' % (v(r), v(vMean), v(vCq), v(r)))
        a('v_cvt_pk_bf16_f32 %s, %s, %s' % (v(r), v(r), v(r)))
        a('ds_write_b16 %s, %s offset:%d' % (v(vQw), v(r), QB))
        ln_rstd_a()
        if layer == 0 and WOL and OPT['wopos'] == 1:
            WOETC[0]()
        a('s_waitcnt lgkmcnt(0)')
        stamp('z%d qw' % layer)
        a('s_barrier')
        stamp('z%d qb' % layer)
        a('; ---- layer %d: attention over this member\'s 128 keys' % layer)
        for kk in range(4):
            a('ds_read_b128 %s, %s offset:%d' % (v(vA + 4 * kk, 4), v(vOpR), QB + 64 * kk))
        ln_rstd_b(True)
        set_tags(k2)
        for kk in range(4):
            lgkm(3 - kk)
            for g in range(2):
                mfma(vD + 4 * g, vA + 4 * kk, vK + 16 * g + 4 * kk, vD + 4 * g if kk else None)
        stamp('z%d qk' % layer)
        if layer == 0:
            if WOL and OPT['wopos'] == 2:
                WOETC[0]()
            if NVB:
                a('s_waitcnt vmcnt(%d)' % (4 + FE + 2 * OPT['w2e']))
                a('s_barrier')
            tr_reads(vV, trq, VI, 4, 8192, 1024)
        sg = vSt
        mx, e0 = T, T + 1
        a('v_max_f32 %s, %s, %s' % (v(mx), v(vD), v(vD + 4)))
        a('v_cndmask_b32 %s, %s, %s, %s' % (v(e0), v(vD), v(vD + 4), s(sM0, 2)))
        for ro in (8, 4, 2, 1):
            dpp('v_max_f32', mx, mx, mx, 'row_ror:%d' % ro)
        a('v_mul_f32 %s, %s, %s' % (v(sg), v(vCs), v(mx)))
        a('v_fma_f32 %s, %s, %s, -%s' % (v(e0), v(e0), v(vCs), v(sg)))
        a('v_exp_f32 %s, %s' % (v(sg + 1), v(e0)))
        stamp('z%d ex' % layer)
        a('ds_write_b32 %s, %s offset:%d' % (v(vMw), v(sg), MB))
        a('v_cvt_pk_bf16_f32 %s, %s, %s' % (v(e0), v(sg + 1), v(sg + 1)))
        a('ds_write_b16 %s, %s offset:%d' % (v(vPw), v(e0), PB))
        if layer == 0:
            tr_reads(vV + 16, trq + 1, VI, 4, 8192, 1024)
        for ro in (8, 4, 2):
            dpp('v_add_f32', sg + 1, sg + 1, sg + 1, 'row_ror:%d' % ro)
        a('s_waitcnt lgkmcnt(0)')
        stamp('z%d pw' % layer)
        a('s_barrier')
        stamp('z%d pb' % layer)
        mm = T + 4
        a('ds_read_b32 %s, %s offset:%d' % (v(mm), v(vMr), MB))
        for kk in range(4):
            a('ds_read_b128 %s, %s offset:%d' % (v(vA + 4 * kk, 4), v(vOpR), PB + 64 * kk))
        dpp('v_add_f32', sg + 1, sg + 1, sg + 1, 'row_ror:1')
        dpp('v_add_f32', sg + 1, sg + 1, sg + 1, 'row_bcast:15', 0xa)
        a('s_mov_b64 exec, 0x10000')
        lstore('global_store_dwordx4', v(vStP), v(sg, 4), 512 * (k2 & 1))
        a('s_mov_b64 exec, -1')

        def sel(kk):
            a('v_cndmask_b32 %s, %s, %s, %s' % (v(T + 8 + kk), v(vD + 8 * kk), v(vD + 8 * kk + 4), s(sM0, 2)))

        def bc(kk):
            a('v_mov_b32_dpp %s, %s quad_perm:[%d,%d,%d,%d] row_mask:0xf bank_mask:0xf' % (v(T + 16 + kk), v(mm), kk, kk, kk, kk))

        def acc(kk):
            a('%s %s, %s, %s' % ('v_fmac_f32' if kk else 'v_mul_f32', v(T), v(T + 16 + kk), v(T + 8 + kk)))
        lgkm(3)
        stamp('z%d pr' % layer)
        mfma(vD, vA, vV)
        dpp('v_max_f32', mx, mm, mm, X1)
        mfma(vD + 4, vA, vV + 16)
        lgkm(2)
        mfma(vD + 8, vA + 4, vV + 4)
        dpp('v_max_f32', mx, mx, mx, X2)
        mfma(vD + 12, vA + 4, vV + 20)
        a('v_sub_f32 %s, %s, %s' % (v(mm), v(mm), v(mx)))
        lgkm(1)
        mfma(vD + 16, vA + 8, vV + 8)
        a('v_exp_f32 %s, %s' % (v(mm), v(mm)))
        mfma(vD + 20, vA + 8, vV + 24)
        lgkm(0)
        bc(0)
        mfma(vD + 24, vA + 12, vV + 12)
        bc(1)
        bc(2)
        mfma(vD + 28, vA + 12, vV + 28)
        stamp('z%d pv' % layer)
        stats_load(k2)
        sel(0)
        sel(1)
        acc(0)
        acc(1)
        sel(2)
        acc(2)
        bc(3)
        a('s_mov_b32 exec_hi, 0')
        sel(3)
        acc(3)
        a('v_bfi_b32 %s, %s, %s, %s' % (v(T), v(vTagM), s(sTag + k2), v(T)))
        lstore('global_store_dword', v(vPubL), v(T), BUF_A if k2 % 2 == 0 else BUF_B)
        a('s_mov_b32 exec_hi, -1')
        stamp(pre + ' S pub')
        if layer == 0 and OPT['fl'] and OPT['flp'] == 1:
            a('s_waitcnt vmcnt(0)')
            flag_store(sTag + 6)
            stats_load(k2)
            lstore('global_store_dword', v(vStP), v(vSt), 512 * (k2 & 1))
        a('; ---- layer %d: combine the 8 key blocks, output projection partials' % layer)
        mj, mg, mo, lo = T, T + 1, vC, vC + 1

        def sm_spec(x):
            dpp('v_max_f32', mj, x, x, X1)
            a('v_mov_b32 %s, %s' % (v(mo), v(x)))
            a('v_mov_b32 %s, %s' % (v(lo), v(x + 1)))

        def sm0():
            allred('v_max_f32', mj, T + 2, [1])
            dpp('v_max_f32', mg, mj, mj, 'row_ror:8')
            allred('v_max_f32', mg, T + 2, [4, 5])

        def sm1():
            a('v_sub_f32 %s, %s, %s' % (v(mo), v(mo), v(mg)))
            a('v_sub_f32 %s, %s, %s' % (v(mj), v(mj), v(mg)))
            a('v_exp_f32 %s, %s' % (v(mo), v(mo)))
            a('v_exp_f32 %s, %s' % (v(mj), v(mj)))
            a('v_mul_f32 %s, %s, %s' % (v(mo), v(mo), v(lo)))
            allred('v_add_f32', mo, T + 2, [0, 1, 3, 4, 5])
            a('v_rcp_f32 %s, %s' % (v(mo), v(mo)))
            a('v_mul_f32 %s, %s, %s' % (v(vF), v(mj), v(mo)))

        def spec2(x):
            mask_tag(x)
            a('v_pk_mul_f32 %s, %s, %s op_sel_hi:[1,0]' % (v(x + 2, 2), v(x + 2, 2), v(vF, 2)))
            a('v_pk_mul_f32 %s, %s, %s op_sel_hi:[1,0]' % (v(x, 2), v(x, 2), v(vF, 2)))
            red_a(x, r)
        l_gather(k2, spec2, sm_spec, [sm0, sm1], hook=(lambda: flag_store(sTag + 6)) if layer == 0 and OPT['fl'] and OPT['flp'] == 0 else None)
        stamp(pre + ' E2 ok')
        red_b(r, r)
        a('v_cvt_pk_bf16_f32 %s, %s, %s' % (v(r), v(r), v(r)))
        a('ds_write_b16 %s, %s offset:%d' % (v(vQw), v(r), OB))

        def ffn_rest():
            issue_w13(FE, 4)
            if not OPT['w2e']:
                issue_w2()
        if layer == 0 and OPT['ff'] in (2, 3):
            ffn_rest()
        if layer == 0 and OPT['ff'] == 6:
            issue_w13(FE, 4)
        if layer == 0 and OPT['ff'] == 7:
            issue_w13(FE, 2)
        a('s_waitcnt lgkmcnt(0)')
        a('s_barrier')
        if layer == 0 and OPT['ff'] == 5:
            gemv_publish_g(4, vWO, OB, 0, G_C, tr=True, mid=lambda: issue_w13(FE, 2), post=lambda: issue_w13(2, 4))
            issue_w2()
        else:
            gemv_publish_g(4, vWO, OB, 2 * layer, G_C, tr=layer == 0)
        stamp(pre + ' O pub')
        a('; ---- layer %d: x slice, gate/up partials' % layer)
        set_tags(k4)
        if layer == 0 and OPT['ff'] == 1:
            nrest = 4 - FE + (0 if OPT['w2e'] else 2)
            if OPT['fl']:
                a('v_lshlrev_b32 %s, 7, %s' % (v(T + 5), v(vL)))
                a('v_add_u32 %s, %d, %s' % (v(T + 5), WS_F, v(T + 5)))
                flag_load()
            ffn_rest()
            if OPT['fl']:
                flag_wait(nrest)
            else:
                a('s_waitcnt vmcnt(%d)' % nrest)
            stamp('G0 ack')
            x_gather(0, G_C, work=probe_near if OPT['probe'] else None)
        else:
            flush_deferred()
            if layer == 0 and OPT['ff'] == 4:
                ffn_rest()
            if layer == 0 and OPT['ff'] == 7:
                issue_w13(2, 4)
            if layer == 0 and OPT['ff'] in (6, 7):
                issue_w2()
            if layer == 0 and OPT['probe']:
                probe_near()
                if not OPT['vlate']:
                    count_votes()
            if layer == 0 and OPT['fl']:
                a('v_lshlrev_b32 %s, 7, %s' % (v(T + 5), v(vL)))
                a('v_add_u32 %s, %d, %s' % (v(T + 5), WS_F, v(T + 5)))
                flag_load()
                flag_wait(0)
            if layer or OPT['ff'] != 3:
                g_pace(2 * layer)
            else:
                for i in range(OPT.get('xs', 0)):
                    a('s_nop 15')
                stamp('G0 ack')
            x_gather(2 * layer, G_C)
        stamp(pre + ' E3 ok')
        x_to_lds(k4)
        a('s_cmp_eq_u32 %s, 3' % s(sW))
        a('s_waitcnt lgkmcnt(0)')
        idle = newlabel('idle')

        proj(vW13, k4, layer, wsrc=[(vTr, W1 - WO, 4096, 512), (vTr, W3 - WO, 4096, 512)] if layer == 0 else None, skip=idle)
        stamp(pre + ' G pub')
        a('; ---- layer %d: gather gate/up, activation' % layer)

        def w2_regs():
            a('v_and_b32 %s, 32, %s' % (v(T + 1), v(vL)))
            a('v_lshlrev_b32 %s, 6, %s' % (v(T + 1), v(T + 1)))
            a('v_sub_u32 %s, %s, %s' % (v(T + 1), v(vTr), v(T + 1)))
            tr_reads(vW2, vTr, W2 - WO, 1, 4096, 512)
            tr_reads(vW2 + 4, T + 1, W2 - WO + 4096, 1, 4096, 512)

        def ln_all():
            w2_regs()
            ln_mean()
            ln_rstd_a()
            ln_rstd_b(False)
        if layer == 0:
            loads = [(r, vCons, sLb, BUF_A), (r + 4, vCons, sLb, BUF_X)]

            def data():
                ln_spec(vSs[0])
                for x in loads:
                    gload(*x)

            def spec4():
                mask_tag(r)
                mask_tag(r + 4)
                red_a(r, r)
            flush_deferred()
            poll([(vSs[0], vStC, sLb, 0)], lambda: chk_stats(vSs[0], k4), data, cnt=1, issued=True)
            poll(loads, lambda: chk_byte([r, r + 4], sTag + k4), spec4, work=ln_all, issued=True)
            red_a(r + 4, r + 4)
            red_b(r + 4, vCg)
        else:
            l_gather(k4, spec, ln_spec, [ln_mean, ln_rstd_a, lambda: ln_rstd_b(False)])
        stamp(pre + ' E4 ok')
        red_b(r, r)
        a('v_fma_f32 %s, -%s, %s, %s' % (v(r), v(vMean), v(vCg), v(r)))
        a('v_mul_f32 %s, %s, %s' % (v(r), v(r), v(vRs)))
        bf16r(r, r)
        a('v_mul_f32 %s, %s, %s' % (v(r + 1), s(sNl2e), v(r)))
        a('v_exp_f32 %s, %s' % (v(r + 1), v(r + 1)))
        a('v_and_b32_dpp %s, %s, %s row_shl:4 row_mask:0xf bank_mask:0xf' % (v(r + 2), v(r), v(vHmask)))
        a('v_add_f32 %s, 1.0, %s' % (v(r + 1), v(r + 1)))
        a('v_rcp_f32 %s, %s' % (v(r + 1), v(r + 1)))
        a('v_mul_f32 %s, %s, %s' % (v(r), v(r), v(r + 1)))
        bf16r(r, r)
        a('v_mul_f32 %s, %s, %s' % (v(r), v(r), v(r + 2)))
        a('v_cvt_pk_bf16_f32 %s, %s, %s' % (v(r), v(r), v(r)))
        a('ds_write_b16 %s, %s' % (v(vHw), v(r)))
        if layer == 0:
            join = newlabel('join')

            def idle_path(idle=idle, join=join, w2_regs=w2_regs):
                a.label(idle)
                w2_regs()
                a('s_cmp_lg_u32 s2, 0')
                a('s_cbranch_scc1 %s' % join)
                a('s_add_u32 s55, %s, 16' % s(sE))
                a('v_mov_b32 %s, s55' % v(T + 2))
                a('s_mov_b64 exec, 1')
                a('global_store_dword %s, %s, s[26:27]%s' % (v(vZero), v(T + 2), ' sc1' if OPT.get('allsc') else ''))
                a('s_mov_b64 exec, -1')
                a('s_branch %s' % join)
            deferred.append(idle_path)
            a.label(join)
        else:
            a.label(idle)
        a('s_waitcnt lgkmcnt(0)')
        a('s_barrier')
        gemv_publish_g(2, vW2, HB, 2 * layer + 1, G_D)
        stamp(pre + ' D pub')

    a('; ---- final sum (group 0 only)')
    a('s_cmp_lg_u32 %s, 0' % s(sGam))
    a('s_cbranch_scc1 L_fin')
    g_pace(3)
    x_gather(3, G_D)
    a('s_mov_b32 exec_lo, 0x000f000f')
    a('s_mov_b32 exec_hi, 0x000f000f')
    a('global_store_short %s, %s, s[22:23]%s' % (v(vXw), v(T), ' sc1' if OPT.get('allsc') or OPT.get('outsc') else ''))


front()
FAST[0] = bool(OPT['fast'])
tail()
a.label('L_fin')
if OPT.get('dirty'):
    a('s_mov_b64 exec, -1')
    a('s_lshl_b32 s55, s2, 2')
    a('s_add_u32 s55, s55, %s' % s(sW))
    a('s_lshl_b32 s55, s55, 15')
    a('s_add_u32 s55, s55, 0x400000')
    a('v_lshl_add_u32 %s, %s, 4, s55' % (v(T + 1), v(vL)))
    for i in range(OPT['dirty']):
        a('global_store_dwordx4 %s, %s, s[26:27]' % (v(T + 1), v(vD, 4)))
        a('v_add_u32 %s, 1024, %s' % (v(T + 1), v(T + 1)))
if OPT.get('wb'):
    a('buffer_wbl2 sc1')
if OPT.get('delay'):
    if 'only' in OPT:
        a('s_cmp_lg_u32 s2, %d' % OPT['only'])
        a('s_cbranch_scc1 L_end')
    a.label('L_dly')
    a('s_memrealtime s[6:7]')
    a('s_waitcnt lgkmcnt(0)')
    a('s_sub_u32 s8, s6, s100')
    a('s_cmp_lt_u32 s8, %d' % OPT.get('until', 3000))
    a('s_cbranch_scc1 L_dly')
if DIAG:
    a('s_mov_b64 exec, -1')
    a('s_memrealtime s[4:5]')
    a('s_waitcnt lgkmcnt(0)')
    a('v_mov_b32 %s, 0' % v(T))
    for i in range(len(stamps)):
        a('v_writelane_b32 %s, %s, %d' % (v(T), s(stamp_regs[i]), i))
    a('v_writelane_b32 %s, s4, %d' % (v(T), len(stamps)))
    a('v_xor_b32 %s, %s, %s' % (v(T + 2), v(vConsG), v(vConsG0)))
    a('v_readfirstlane_b32 s6, %s' % v(T + 2))
    a('v_writelane_b32 %s, s6, 62' % v(T))
    a('v_writelane_b32 %s, s12, 61' % v(T))
    a('v_writelane_b32 %s, s13, 60' % v(T))
    a('v_writelane_b32 %s, %s, 63' % (v(T), s(sXcc)))
    a('s_lshl_b32 s55, s2, 2')
    a('s_add_u32 s55, s55, %s' % s(sW))
    a('s_lshl_b32 s55, s55, 8')
    a('s_add_u32 s55, s55, %d' % WS_DIAG)
    a('v_lshl_add_u32 %s, %s, 2, s55' % (v(T + 1), v(vL)))
    a('global_store_dword %s, %s, s[26:27]' % (v(T + 1), v(T)))
a.label('L_end')
a('s_endpgm')
flush_deferred(False)
a.label('L_fastend')
if OPT['fast']:
    a('; ==== the same phases with write-through stores: taken when the group is spread over several XCDs')
    a.label('L_slowtail')
    FAST[0] = False
    a.hist = []
    a('s_nop 1')
    tail()
    a('s_branch L_fin')
    flush_deferred(False)
    a('s_endpgm')
a.raw('''.section .rodata,"a"
.p2align 6
.amdhsa_kernel %s_kernel
  .amdhsa_next_free_vgpr %d
  .amdhsa_next_free_sgpr 102
  .amdhsa_accum_offset %d
  .amdhsa_group_segment_fixed_size 0
  .amdhsa_kernarg_size 96
  .amdhsa_user_sgpr_count 2
  .amdhsa_user_sgpr_kernarg_segment_ptr 1
  .amdhsa_system_sgpr_workgroup_id_x 1
  .amdhsa_float_denorm_mode_32 3
.end_amdhsa_kernel''' % (NAME, NVGPR, NVGPR))
sys.stdout.write(a.text())
if DIAG:
    sys.stderr.write('STAMPS ' + '|'.join(stamps + ['end']) + '\n')
sys.stderr.write('nops inserted: %d\n' % a.nops)
```

```python
import sys, math, struct
from asm import Asm

NAME = 'interleave_layers__sliding_block_cached__glu_gated_swiglu__decode'
OPT = dict(diag=0, fast=1, nt=1, kw=5, fe=0, wol=1, probe=1, vw=1, thr=90, pages=1, cnt=0, early=2, d0=0, refresh=0, spipe=1, late_rs=1, na=0, nsl=0, w2e=0, ff=7, vlate=0, fl=0, flp=0, pad=0, nva=8, ksplit=0, wopos=0, ool=0, stg=1, vq=0, clean=15)
for a_ in sys.argv[1:]:
    k_, v_ = a_.split('=')
    OPT[k_] = int(v_)
DIAG = OPT['diag']
NT = {0: '', 1: ' nt', 2: ' sc1 nt', 3: ' sc0 sc1 nt', 4: ' sc0 nt', 5: ' sc1', 6: ' sc0 sc1'}[OPT['nt']]
STAGE = not DIAG or DIAG == 6

XB, ONES, QB, OB, HB, MB, DUMMY, PB = 0, 128, 256, 512, 768, 896, 960, 1024
WQ, VI, WO = 4096, 20480, 53248
W1, W3, W2 = WO + 16384, WO + 24576, WO + 32768
KI = WO + 38912
LDS_BYTES = KI + 32768
WS_F = 0x10000
WS_L, WS_P, WS_G, WS_DIAG = 0x40000, 0xc0000, 0x100000, 0x200000
WS_L2D = 0x140000 + 0x100000 * OPT['pad']
BUF_A, BUF_X, BUF_B, STATS, VOTES = 0, 1024, 2048, 3072, 7168
ST0 = 8192
PAD = OPT['pad']
GOFF = 4096 * PAD
G_C, G_D, G_H = -GOFF, (2048 << PAD) - GOFF, 1024 << PAD
G_X = (0x20000 << PAD) | 0x2000
WSH = 1 - PAD

vL, vCons, vPubL, vPw, vPubG, vStP, vStC, vTagM, vStP2 = range(1, 10)
vXw, vQw, vHw, vOpR, vXopR, vConsG, vConsG0, vCs, vZero, vMw = range(10, 20)
trq, vTr, vHmask, vX, vCq, vCg, vMean, vRs = 20, 22, 23, 24, 25, 26, 27, 28
vMr, vF = 29, 30
vWQ, vK, vV, vWO, vW13, vW2 = 32, 48, 80, 112, 128, 144
wo0, wo1, f0, f1, vPre, vVo = 144, 145, 146, 147, 148, 149
T = 152
vC = T + 12
vA = 176
vD = 192
vP = 224
vSt, vSt4, vKeep = 232, 236, 238
vCl = 20
vDs, vSs = [240, 244], [248, 252]
NVGPR = 256
sW, sJ, sGam, sPr, sE, sC0, sCnt, sXcc, sTo = 28, 29, 30, 31, 32, 33, 34, 35, 36
sLb, sGb0, sGb1 = 38, 40, 14
sPc, sT1 = 42, 44
sCs, sMaskHi, sInv512, sEps, sNl2e = 50, 51, 52, 53, 54
sM0, sM1, sHi, sCl = 56, 42, 46, 44
sTag = 60

a = Asm()
stamp_regs = list(range(70, 102, 2))
stamps = []
nstamp = [0]
lbl = [0]
FAST = [False]


def v(n, cnt=1):
    return 'v%d' % n if cnt == 1 else 'v[%d:%d]' % (n, n + cnt - 1)


def s(n, cnt=1):
    return 's%d' % n if cnt == 1 else 's[%d:%d]' % (n, n + cnt - 1)


def stamp(name):
    nstamp[0] += 1
    if OPT.get('delay') == 3 and OPT.get('at', 1) == nstamp[0]:
        a('s_memrealtime s[100:101]')
        sys.stderr.write('delay anchored at ' + name + '\n')
    keep = {0: False, 1: name[:2] not in ('L1', 'x ') and name[0] not in 'Gz', 2: name[:2] == 'L1', 5: name[0] == 'G' or name[3:] in ('O pub', 'D pub', 'E3 ok', 'E5 ok') or name in ('L0 E1 ok', 'L0 S pub', 'L0 E2 ok'),
            6: False, 7: name[:2] in ('L1', 'x '), 8: name[:2] == 'z1' or name in ('L1 E1 ok', 'L1 S pub', 'L1 E2 ok', 'L1 O pub', 'L1 E5 ok', 'L1 Q pub')}[DIAG]
    if not (keep or DIAG and name == 'start'):
        return
    if name not in stamps:
        if len(stamps) >= len(stamp_regs):
            return
        stamps.append(name)
    r = stamp_regs[stamps.index(name)]
    if OPT['cnt'] and name != 'start':
        a('s_sub_u32 %s, 0x40000, %s' % (s(r), s(sTo)))
    else:
        a('%s %s' % ('s_memtime' if DIAG in (7, 8) and name != 'x rt0' else 's_memrealtime', s(r, 2)))


def f32(x):
    return '0x%08x' % struct.unpack('<I', struct.pack('<f', x))[0]


def newlabel(p):
    lbl[0] += 1
    return 'L_%s_%d' % (p, lbl[0])


def lgkm(n):
    a('s_waitcnt lgkmcnt(%d)' % (n if STAGE else 0))


def mfma(d, x, y, c=None):
    a('v_mfma_f32_16x16x32_bf16 %s, %s, %s, %s' % (v(d, 4), v(x, 4), v(y, 4), '0' if c is None else v(c, 4)))


def dpp(op, d, x, y, ctl, rm=0xf):
    a('%s_dpp %s, %s, %s %s row_mask:0x%x bank_mask:0xf' % (op, v(d), v(x), v(y), ctl, rm))


X1, X2 = 'quad_perm:[1,0,3,2]', 'quad_perm:[2,3,0,1]'


def lstore(op, addr, data, off):
    a('%s %s, %s, %s offset:%d%s' % (op, addr, data, s(sLb, 2), off, '' if FAST[0] and not OPT.get('allsc') else ' sc1'))


def gload(d, vo, b, im):
    a('global_load_dwordx4 %s, %s, %s offset:%d sc1' % (v(d, 4), v(vo), s(b, 2), im))


def tick():
    a('s_sub_u32 %s, %s, 1' % (s(sTo), s(sTo)))
    a('s_cbranch_scc1 L_end')


deferred = []


def flush_deferred(jump=True):
    if not deferred:
        return
    l = newlabel('skip')
    if jump:
        a('s_branch %s' % l)
    hist = a.hist
    while deferred:
        a.hist = []
        deferred.pop(0)()
    a.hist = hist
    a.label(l)


def poll(loads, check, spec, work=None, cnt=0, issued=False, backoff=0):
    top, ent = newlabel('poll'), newlabel('pent')
    if not issued:
        for x in loads:
            gload(*x)
    if work:
        work()

    def retry():
        a.label(top)
        tick()
        if backoff:
            a('s_sleep %d' % backoff)
        for x in loads:
            gload(*x)
        if cnt:
            a('s_waitcnt vmcnt(0)')
        if OPT['ool']:
            a('s_branch %s' % ent)
    if OPT['ool']:
        deferred.append(retry)
    else:
        a('s_branch %s' % ent)
        retry()
    a.label(ent)
    a('s_waitcnt vmcnt(%d)' % cnt)
    check()
    if spec:
        spec()
    a('s_cbranch_vccnz %s' % top)


def ring2(sets, issue, check, spec, cnt1, cnt0, first):
    top, ent, done = newlabel('ring'), newlabel('rent'), newlabel('rdone')

    def retry():
        a.label(top)
        tick()
        issue(sets[0])
        a('s_waitcnt vmcnt(%d)' % cnt1)
        check(sets[1])
        spec(sets[1])
        a('s_cbranch_vccz %s' % done)
        issue(sets[1])
        if first != cnt0:
            a('s_waitcnt vmcnt(%d)' % cnt0)
        if OPT['ool']:
            a('s_branch %s' % ent)
    if OPT['ool']:
        deferred.append(retry)
    else:
        a('s_branch %s' % ent)
        retry()
    a.label(ent)
    a('s_waitcnt vmcnt(%d)' % first)
    check(sets[0])
    spec(sets[0])
    a('s_cbranch_vccnz %s' % top)
    a.label(done)


def chk_byte(regs, tag):
    if len(regs) == 1:
        a('v_cmp_ne_u32_sdwa vcc, %s, %s src0_sel:BYTE_0 src1_sel:BYTE_0' % (v(regs[0]), s(tag)))
    else:
        a('v_bitop3_b32 %s, %s, %s, %s bitop3:0x7e' % (v(T + 23), v(regs[0]), v(regs[1]), s(tag)))
        a('v_cmp_ne_u32_sdwa vcc, %s, %s src0_sel:BYTE_0 src1_sel:DWORD' % (v(T + 23), v(vZero)))


def chk_stats(x, k):
    a('v_cmp_ne_u32 vcc, %s, %s' % (s(sTag + k), v(x + (2 if k % 3 == 1 else 1))))


def red_a(x, c):
    a('v_permlane32_swap_b32 %s, %s' % (v(x + 1), v(x + 3)))
    a('v_add_f32 %s, %s, %s' % (v(c + 1), v(x + 1), v(x + 3)))
    a('v_permlane32_swap_b32 %s, %s' % (v(x), v(x + 2)))
    a('v_add_f32 %s, %s, %s' % (v(c), v(x), v(x + 2)))


def red_b(c, out):
    a('v_permlane16_swap_b32 %s, %s' % (v(c), v(c + 1)))
    a('v_add_f32 %s, %s, %s' % (v(c), v(c), v(c + 1)))
    dpp('v_add_f32', out, c, c, 'row_ror:8')


def mask_tag(x):
    a('v_and_b32 %s, %s, %s' % (v(x), s(sMaskHi), v(x)))


def bf16r(dst, src):
    a('v_cvt_pk_bf16_f32 %s, %s, %s' % (v(dst), v(src), v(src)))
    a('v_and_b32 %s, 0xffff0000, %s' % (v(dst), v(dst)))


def allred(op, x, t, bits):
    for b in bits:
        if b < 4:
            dpp(op, x, x, x, {0: X1, 1: X2, 3: 'row_ror:8'}[b])
        else:
            a('v_mov_b32 %s, %s' % (v(t), v(x)))
            a('v_permlane%d_swap_b32 %s, %s' % (16 if b == 4 else 32, v(x), v(t)))
            a('%s %s, %s, %s' % (op, v(x), v(x), v(t)))


def set_tags(k):
    a('v_mov_b32 %s, %s' % (v(vSt + 2), s(sTag + k)))
    if k % 3 != 1:
        a('v_cndmask_b32 %s, %s, %s, %s' % (v(vSt4 + 1), v(vSt + 2), v(vSt + 3), s(sHi, 2)))


def ln_stats(k, addr=None):
    g = vSt4
    a('v_mul_f32 %s, %s, %s' % (v(T + 7), v(vX), v(vX)))
    a('v_permlane32_swap_b32 %s, %s' % (v(g), v(T + 7)))
    a('v_add_f32 %s, %s, %s' % (v(g), v(g), v(T + 7)))
    allred('v_add_f32', g, None, [0, 1])
    dpp('v_add_f32', g, g, g, 'row_bcast:15', 0xa)
    a('s_mov_b64 exec, %s' % s(sM1, 2))
    lstore('global_store_dwordx2', v(addr or vStP2), v(g, 2), 512 * (k & 1))
    a('s_mov_b64 exec, -1')


def ln_spec(x):
    a('v_permlane32_swap_b32 %s, %s' % (v(x), v(x + 2)))
    a('v_add_f32 %s, %s, %s' % (v(vC), v(x), v(x + 2)))


def ln_mean():
    c = vC
    allred('v_add_f32', c, c + 1, [4, 3, 0, 1])
    a('v_mul_f32 %s, %s, %s' % (v(c), s(sInv512), v(c)))
    a('v_mov_b32 %s, %s' % (v(c + 1), v(c)))
    a('v_permlane32_swap_b32 %s, %s' % (v(c), v(c + 1)))
    bf16r(vMean, c)


def ln_rstd_a():
    c = vC
    a('v_fma_f32 %s, -%s, %s, %s' % (v(c + 1), v(c), v(c), v(c + 1)))
    a('v_max_f32 %s, 0, %s' % (v(c + 1), v(c + 1)))
    bf16r(c + 1, c + 1)
    a('v_add_f32 %s, %s, %s' % (v(c + 1), s(sEps), v(c + 1)))
    bf16r(c + 1, c + 1)
    a('v_sqrt_f32 %s, %s' % (v(c + 1), v(c + 1)))


def ln_rstd_b(scale):
    c = vC
    bf16r(c + 1, c + 1)
    a('v_rcp_f32 %s, %s' % (v(vRs), v(c + 1)))
    if scale:
        a('v_mul_f32 %s, %s, %s' % (v(vCs), s(sCs), v(vRs)))


def stats_load(k, x=vSs[0]):
    gload(x, vStC, sLb, 512 * (k & 1))


def l_gather(k, spec, st_spec, chain, hook=None):
    buf = BUF_A if k % 2 == 0 else BUF_B

    def d_issue(x):
        gload(x, vCons, sLb, buf)
    rf = OPT['refresh'] and OPT['d0']

    def s_issue(x):
        stats_load(k, x)
        if rf:
            d_issue(vDs[0])
    if OPT['d0']:
        d_issue(vDs[0])
    if OPT['spipe']:
        stats_load(k, vSs[1])
        flush_deferred()
        ring2(vSs, s_issue, lambda x: chk_stats(x, k), st_spec, 2 if rf else 1, 3 if rf else 1, 2 + OPT['d0'])
    else:
        flush_deferred()
        poll([(vSs[0], vStC, sLb, 512 * (k & 1))], lambda: chk_stats(vSs[0], k), lambda: st_spec(vSs[0]), cnt=1 + OPT['d0'], issued=True)
    if k >= 3:
        stamp('x st%d' % k)
    if not OPT['d0']:
        d_issue(vDs[0])
        chain[0]()
        d_issue(vDs[1])
    else:
        d_issue(vDs[1])
        chain[0]()
    if hook:
        hook()
    for c in chain[1:]:
        c()
    ring2(vDs, d_issue, lambda x: chk_byte([x], sTag + k), spec, 1, 1, 1)


def x_gather(gi, imm, work=None, cnt=0):
    r = vP
    base = sGb0 if gi < 2 else sGb1

    def spec():
        a('v_pk_add_f32 %s, %s, %s' % (v(r + 2, 2), v(r + 2, 2), v(r + 6, 2)))
        a('v_add_f32 %s, %s, %s' % (v(r + 1), v(r + 1), v(r + 5)))
        mask_tag(r)
        mask_tag(r + 4)
        a('v_add_f32 %s, %s, %s' % (v(r), v(r), v(r + 4)))
        red_a(r, r)
    poll([(r, vConsG, base, imm), (r + 4, vConsG, base, imm + G_H)], lambda: chk_byte([r, r + 4], sTag + 6 + gi), spec, work=work, cnt=cnt, backoff=OPT.get('g%ds' % gi, 0))
    red_b(r, r)
    dpp('v_add_f32', r, r, r, 'row_ror:4')
    bf16r(r, r)
    a('v_add_f32 %s, %s, %s' % (v(r), v(r), v(vX)))
    a('v_cvt_pk_bf16_f32 %s, %s, %s' % (v(T), v(r), v(r)))


def x_to_lds(k):
    a('ds_write_b16 %s, %s offset:%d' % (v(vXw), v(T), XB))
    a('v_and_b32 %s, 0xffff0000, %s' % (v(vX), v(T)))
    a('v_and_b32 %s, 0xffff0000, %s' % (v(vSt4), v(T)))
    ln_stats(k)


def tr_pair(dst, addr, off, gstride):
    for g in range(2):
        a('ds_read_b64_tr_b16 %s, %s offset:%d' % (v(dst + 2 * g, 2), v(addr), off + g * gstride))


def proj(wreg, k, layer, wsrc=None, first=False, skip=None):
    rd = vXopR if layer == 0 else vOpR
    a('s_barrier')
    for kk in range(2):
        a('ds_read_b128 %s, %s offset:%d' % (v(vA + 4 * kk, 4), v(rd), XB + 64 * kk))
        if wsrc:
            for cg in range(2):
                ad, off, ks, gs = wsrc[cg]
                tr_pair(wreg + 8 * cg + 4 * kk, ad, off + kk * ks, gs)
    if skip:
        a('s_cbranch_scc1 %s' % skip)
    if not first and OPT['early'] == 1:
        stats_load(k)
    lgkm(7 if wsrc else 1)
    mfma(vD, vA, wreg)
    if wsrc:
        lgkm(5)
    mfma(vD + 4, vA, wreg + 8)
    if not first and OPT['early'] == 2:
        stats_load(k)
    lgkm(2 if wsrc else 0)
    mfma(vD, vA + 4, wreg + 4, vD)
    if wsrc:
        lgkm(0)
    mfma(vD + 4, vA + 4, wreg + 12, vD + 4)
    if not first and OPT['early'] == 0:
        stats_load(k)
    if layer == 1:
        a('s_mov_b32 exec_hi, 0')
    a('v_cndmask_b32 %s, %s, %s, %s' % (v(T), v(vD), v(vD + 4), s(sM0, 2)))
    a('v_bfi_b32 %s, %s, %s, %s' % (v(T), v(vTagM), s(sTag + k), v(T)))
    lstore('global_store_dword', v(vPubL), v(T), BUF_A if k % 2 == 0 else BUF_B)
    if layer == 1:
        a('s_mov_b32 exec_hi, -1')


def tr_reads(dst, addr, base, nk, kstride, gstride):
    for kk in range(nk):
        for g in range(2):
            a('ds_read_b64_tr_b16 %s, %s offset:%d' % (v(dst + 4 * kk + 2 * g, 2), v(addr), base + kk * kstride + g * gstride))


def gemv_publish_g(nk, wreg, src, gi, imm, tr=False, mid=None, post=None):
    for kk in range(nk):
        a('ds_read_b128 %s, %s offset:%d' % (v(vA + 4 * kk, 4), v(vOpR), src + 64 * kk))
        if tr:
            tr_pair(wreg + 4 * kk, vTr, 4096 * kk, 512)
    if mid:
        mid()
    for kk in range(nk):
        lgkm((nk - 1 - kk) * (3 if tr else 1))
        mfma(vD, vA + 4 * kk, wreg + 4 * kk, vD if kk else None)
    if post:
        post()
    if not PAD:
        a('s_mov_b32 exec_hi, 0')
    a('v_bfi_b32 %s, %s, %s, %s' % (v(T), v(vTagM), s(sTag + 6 + gi), v(vD)))
    st = 'global_store_dword %s, %s, %s offset:%d sc1' % (v(vPubG), v(T), s(sGb0 if gi < 2 else sGb1, 2), imm)
    if OPT['na'] and gi:
        a('s_mov_b32 exec_lo, s37')
        a(st)
        a('s_not_b32 exec_lo, s37')
        a(st)
        a('s_mov_b64 exec, -1')
    else:
        a(st)
        if not PAD:
            a('s_mov_b32 exec_hi, -1')


def g_pace(gi):
    flush_deferred()
    if OPT['na'] and gi:
        a('s_waitcnt vmcnt(1)')
        for i in range(OPT['nsl']):
            a('s_nop 7')
    else:
        a('s_waitcnt vmcnt(0)')
    if OPT.get('g%dd' % gi):
        a('s_sleep %d' % OPT['g%dd' % gi])
    stamp('G%d ack' % gi)


def probe_near():
    a('s_not_b32 s4, %s' % s(sE))
    a('s_xor_b32 s55, %s, 8192' % s(sPr))
    a('s_waitcnt lgkmcnt(0)')
    a('s_load_dword s4, s[26:27], %s' % s(sPr))
    a('s_load_dword s5, s[26:27], s55')
    a('s_lshl_b32 s59, %s, 2' % s(sJ))
    a('s_add_u32 s59, s59, %s' % s(sW))
    a('s_lshl_b32 s59, s59, 3')
    a('s_add_u32 s59, s59, %d' % VOTES)
    a('v_mov_b32 %s, s59' % v(T + 1))
    a('v_mov_b32 %s, %s' % (v(T + 3), s(sTag + 2)))
    a('s_waitcnt lgkmcnt(1)')
    a('s_memtime s[8:9]')
    a('s_cmp_eq_u32 s4, %s' % s(sE))
    a('s_cselect_b32 s6, %d, -1' % OPT['thr'])
    a('s_waitcnt lgkmcnt(0)')
    a('s_memtime s[10:11]')
    a('s_waitcnt lgkmcnt(0)')
    a('s_sub_u32 s7, s10, s8')
    a('s_cmp_gt_u32 s7, s6')
    a('s_cselect_b32 s6, 1, 0')
    if DIAG:
        a('s_mov_b32 s12, s7')
    a('v_mov_b32 %s, s6' % v(T + 2))
    a('s_mov_b64 exec, 1')
    lstore('global_store_dwordx2', v(T + 1), v(T + 2, 2), 0)
    a('s_mov_b64 exec, -1')


def count_votes():
    a('v_and_b32 %s, 31, %s' % (v(T + 4), v(vL)))
    a('v_lshlrev_b32 %s, 3, %s' % (v(T + 4), v(T + 4)))
    a('v_add_u32 %s, %d, %s' % (v(T + 4), VOTES, v(T + 4)))
    if OPT['vw'] and not OPT['vlate']:
        a('s_waitcnt vmcnt(0)')
    a('global_load_dwordx2 %s, %s, %s sc1' % (v(T + 2, 2), v(T + 4), s(sLb, 2)))
    a('s_lshr_b32 s55, %s, 1' % s(sW) if WSH else 's_and_b32 s55, %s, 1' % s(sW))
    a('s_xor_b32 s59, s55, 1')
    a('s_waitcnt vmcnt(0)')
    a('v_xor_b32 %s, %s, %s' % (v(T + 3), s(sTag + 2), v(T + 3)))
    a('v_xor_b32 %s, 1, %s' % (v(T + 2), v(T + 2)))
    a('v_or_b32 %s, %s, %s' % (v(T + 2), v(T + 2), v(T + 3)))
    a('v_cmp_eq_u32 vcc, 0, %s' % v(T + 2))
    a('s_and_b32 s4, vcc_lo, 0x%x' % (0x33333333 if WSH else 0x55555555))
    a('s_and_b32 s5, vcc_lo, 0x%x' % (0xcccccccc if WSH else 0xaaaaaaaa))
    a('s_bcnt1_i32_b32 s4, s4')
    a('s_bcnt1_i32_b32 s5, s5')
    if DIAG:
        a('s_lshl_b32 s13, s4, 8')
        a('s_add_u32 s13, s13, s5')
    a('s_cmp_ge_u32 s4, s5')
    a('s_cselect_b32 s55, s55, s59')
    if OPT['na']:
        a('s_cmp_eq_u32 s55, 0')
        a('s_cselect_b32 s37, 0xffff, %s' % s(sM0))
    a('s_mul_i32 s55, s55, 0x%x' % G_X)
    a('v_xor_b32 %s, s55, %s' % (v(vConsG), v(vConsG0)))


def flag_store(val):
    sk = newlabel('nofl')
    a('s_or_b32 s55, %s, %s' % (s(sJ), s(sW)))
    a('s_cbranch_scc1 %s' % sk)
    a('s_lshl_b32 s55, %s, 7' % s(sGam))
    a('s_add_u32 s55, s55, %d' % WS_F)
    a('v_lshl_add_u32 %s, %s, 2, s55' % (v(T + 21), v(vL)))
    a('v_mov_b32 %s, %s' % (v(T + 20), s(val)))
    a('s_mov_b32 exec_hi, 0')
    a('global_store_dword %s, %s, s[26:27] sc1' % (v(T + 21), v(T + 20)))
    a('s_mov_b32 exec_hi, -1')
    a.label(sk)


def flag_load():
    a('s_mov_b32 exec_hi, 0')
    a('global_load_dword %s, %s, s[26:27] sc1' % (v(T + 6), v(T + 5)))
    a('s_mov_b32 exec_hi, -1')


def flag_wait(cnt):
    top, ent = newlabel('fl'), newlabel('fle')
    a('s_branch %s' % ent)
    a.label(top)
    tick()
    flag_load()
    a('s_waitcnt vmcnt(0)')
    a.label(ent)
    a('s_waitcnt vmcnt(%d)' % cnt)
    a('v_cmp_ne_u32 vcc, %s, %s' % (s(sTag + 6), v(T + 6)))
    a('s_cmp_lg_u32 vcc_lo, 0')
    a('s_cbranch_scc1 %s' % top)


def clean_prep():
    a('v_and_b32 %s, 31, %s' % (v(T + 9), v(vL)))
    a('s_and_b32 s59, %s, 3' % s(sJ))
    a('s_lshl_b32 s59, s59, 7')
    a('s_add_u32 s59, s59, %d' % STATS)
    a('v_lshl_add_u32 %s, %s, 2, s59' % (v(T + 9), v(T + 9)))
    a('v_cndmask_b32 %s, %s, %s, %s' % (v(vCl), v(vPubL), v(T + 9), s(sHi, 2)))
    a('s_add_u32 s55, s59, %d' % (VOTES - STATS))
    a('s_add_u32 s59, s59, %d' % ST0)
    a('s_cmp_lt_u32 %s, 4' % s(sJ))
    a('s_cselect_b32 s59, s59, s55')
    a('v_and_b32 %s, 31, %s' % (v(T + 9), v(vL)))
    a('v_lshl_add_u32 %s, %s, 2, s59' % (v(T + 9), v(T + 9)))
    a('v_add_u32 %s, %d, %s' % (v(T + 10), BUF_X, v(vPubL)))
    a('v_cndmask_b32 %s, %s, %s, %s' % (v(vCl + 1), v(T + 10), v(T + 9), s(sHi, 2)))
    a('v_mov_b32 %s, %s' % (v(vCl + 2), s(sTag + 3)))
    a('s_cmp_lt_u32 %s, 6' % s(sJ))
    a('s_cselect_b32 %s, -1, 0' % s(sCl + 1))
    a('s_cmp_lt_u32 %s, 4' % s(sJ))
    a('s_cselect_b32 %s, -1, 0' % s(sCl))
    a('s_cmp_eq_u32 %s, 0' % s(sW))
    a('s_cselect_b32 %s, %s, 0' % (s(sCl), s(sCl)))
    a('s_cselect_b32 %s, %s, 0' % (s(sCl + 1), s(sCl + 1)))


def clean_x():
    a('s_mov_b32 exec_hi, %s' % s(sCl + 1))
    a('global_store_dword %s, %s, %s sc1' % (v(vCl + 1), v(vCl + 2), s(sLb, 2)))
    a('s_mov_b32 exec_hi, -1')


def clean_a():
    a('s_mov_b32 exec_hi, %s' % s(sCl))
    a('global_store_dword %s, %s, %s sc1' % (v(vCl), v(vCl + 2), s(sLb, 2)))
    a('s_mov_b32 exec_hi, -1')


def clean_b_prep():
    a('v_add_u32 %s, %d, %s' % (v(T + 9), 512, v(vCl)))
    a('v_add_u32 %s, %d, %s' % (v(T + 8), BUF_B, v(vCl)))
    a('v_cndmask_b32 %s, %s, %s, %s' % (v(T + 8), v(T + 8), v(T + 9), s(sHi, 2)))
    a('s_mov_b32 exec_lo, 0')
    a('s_mov_b32 exec_hi, %s' % s(sCl))
    sk = newlabel('nold')
    a('s_cbranch_execz %s' % sk)
    a('global_load_dword %s, %s, %s sc1' % (v(vKeep), v(T + 8), s(sLb, 2)))
    a.label(sk)
    a('s_mov_b64 exec, -1')


def clean_b():
    a('s_mov_b32 exec_hi, %s' % s(sCl))
    a('global_store_dword %s, %s, %s sc1' % (v(T + 8), v(vKeep), s(sLb, 2)))
    a('s_mov_b32 exec_hi, -1')


def page_break(force=False):
    if OPT['pages'] and (FAST[0] or force):
        l = newlabel('page')
        a('s_branch %s' % l)
        flush_deferred(False)
        a.raw('.p2align 12')
        a.label(l)


a.raw('''; One persistent launch, 256 workgroups = 32 groups (attention head / slice of the ffn columns) x 8 members.
; Weights and the K/V window are read once and stay in registers for both layers; workgroups hand over partial sums
; through d_ws in 64-byte tagged sectors (tag = epoch word found in d_ws + index of the hand-off).
; @launch grid=(256,1,1) block=(256,1,1) lds=%d
.amdgcn_target "amdgcn-amd-amdhsa--gfx950"
.text
.p2align 12
.globl %s_kernel
.p2align 8
.type %s_kernel,@function
%s_kernel:''' % (LDS_BYTES, NAME, NAME, NAME))
a('s_cmp_ge_u32 s2, 256')
a('s_cbranch_scc1 L_end')
a('s_load_dwordx16 s[4:19], s[0:1], 0')
a('s_load_dwordx8 s[20:27], s[0:1], 64')
stamp('start')
stamp('x rt0')
a('s_getpc_b64 %s' % s(sPc, 2))
a.label('L_pc')
a('v_lshlrev_b32 %s, 6, v0' % v(T))
a('v_min_u32 %s, L_fastend-L_pc-64, %s' % (v(T), v(T)))
a('global_load_dword %s, %s, %s' % (v(T + 22), v(T), s(sPc, 2)))
a('v_lshrrev_b32 %s, 6, v0' % v(T))
a('v_and_b32 %s, 63, v0' % v(vL))
a('v_readfirstlane_b32 %s, %s' % (s(sW), v(T)))
a('s_lshr_b32 s3, s2, 3')
a('s_and_b32 %s, s3, 7' % s(sJ))
a('s_lshr_b32 s3, s3, 3')
a('s_and_b32 s31, s2, 7')
a('s_lshl_b32 %s, s31, 2' % s(sGam))
a('s_add_u32 %s, %s, s3' % (s(sGam), s(sGam)))
u16, pos16, u8, pos8, l3, col16 = T + 1, T + 2, T + 3, T + 4, T + 5, T + 6
t0, t1, t2, t3 = T + 8, T + 9, T + 10, T + 11
k0 = T + 12


def pro_wq():
    a('v_lshrrev_b32 %s, 4, %s' % (v(u16), v(vL)))
    a('v_and_b32 %s, 15, %s' % (v(pos16), v(vL)))
    a('v_lshlrev_b32 %s, 1, %s' % (v(t2), v(u16)))
    a('v_xor_b32 %s, %s, %s' % (v(t2), v(t2), v(pos16)))
    a('v_lshlrev_b32 %s, 4, %s' % (v(t2), v(t2)))
    a('v_lshl_add_u32 %s, %s, 13, %s' % (v(t0), v(u16), v(t2)))
    a('v_xor_b32 %s, 0x80, %s' % (v(t1), v(t0)))
    a('v_add_u32 %s, %d, %s' % (v(t1), 2 * 31744, v(t1)))
    a('s_lshl_b32 s49, %s, 12' % s(sW))
    a('s_lshl_b32 s55, %s, 19' % s(sJ))
    a('s_lshl_b32 s56, %s, 17' % s(sW))
    a('s_add_u32 s55, s55, s56')
    a('s_lshl_b32 s56, %s, 8' % s(sGam))
    a('s_add_u32 s55, s55, s56')
    a('s_add_u32 m0, s49, %d' % WQ)


def pro_rest():
    a('v_and_b32 %s, 3, %s' % (v(l3), v(vL)))
    a('v_lshl_add_u32 %s, %s, 2, %s' % (v(col16), v(l3), v(u16)))
    a('s_lshl_b32 s48, %s, 5' % s(sW))
    a('v_lshl_add_u32 %s, %s, 1, s48' % (v(vXw), v(col16)))
    a('v_lshl_add_u32 %s, %s, 8, %s' % (v(vVo), v(u16), v(t2)))
    a('v_xor_b32 %s, 0x80, %s' % (v(vVo + 1), v(vVo)))
    a('v_xor_b32 %s, %s, %s' % (v(k0), v(u16), v(pos16)))
    a('v_lshlrev_b32 %s, 4, %s' % (v(k0), v(k0)))
    a('v_lshl_add_u32 %s, %s, 8, %s' % (v(k0), v(u16), v(k0)))
    for i in range(1, 4):
        a('v_xor_b32 %s, %d, %s' % (v(k0 + i), i << 6, v(k0)))
    a('s_lshl_b32 s48, %s, 7' % s(sJ))
    a('s_lshl_b32 s56, %s, 20' % s(sGam))
    a('s_lshl_b32 s58, %s, 15' % s(sJ))
    a('s_add_u32 s56, s56, s58')
    a('s_lshl_b32 s58, %s, 13' % s(sW))
    a('s_add_u32 s56, s56, s58')
    a('s_add_u32 s56, s56, %d' % (3072 * 256))


def pro_touch():
    a('v_lshl_add_u32 %s, %s, 4, s49' % (v(vCons), v(vL)))
    a('s_lshl_b32 s57, %s, 14' % s(sGam))
    a('s_add_u32 s57, s57, %d' % WS_L)
    a('s_add_u32 s3, s48, s57')
    a('s_add_u32 s59, s3, s49')
    a('v_lshl_add_u32 %s, %s, 10, s59' % (v(t3), v(vL)))
    a('v_cmp_lt_u32 vcc, 2, %s' % v(vL))
    a('s_add_u32 s3, s3, %d' % STATS)
    a('v_mov_b32 %s, s3' % v(T + 17))
    a('v_cndmask_b32 %s, %s, %s, vcc' % (v(t3), v(t3), v(T + 17)))
    a('s_add_u32 s3, s57, %d' % VOTES)
    a('v_writelane_b32 %s, s3, 3' % v(t3))
    a('s_add_u32 s3, s3, 128')
    a('v_writelane_b32 %s, s3, 4' % v(t3))
    a('s_and_b32 s3, s48, 0x180')
    a('s_add_u32 s3, s3, s57')
    a('s_add_u32 s3, s3, %d' % (STATS + ST0))
    a('v_writelane_b32 %s, s3, 5' % v(t3))


PRO = OPT.get('pro', 2)
pro_wq()
if PRO < 2:
    pro_rest()
if PRO < 1:
    pro_touch()
stamp('pre ka')
a('s_waitcnt lgkmcnt(0)')
stamp('ka')
a('s_add_u32 s10, s10, s55')
a('s_addc_u32 s11, s11, 0')
a('global_load_lds_dwordx4 %s, s[10:11] offset:0%s' % (v(t0), NT))
a('v_add_u32 %s, 31744, %s' % (v(t0), v(t0)))
a('s_load_dword %s, s[26:27], 0' % s(sE))
a('global_load_lds_dwordx4 %s, s[10:11] offset:1024%s' % (v(t0), NT))
a('global_load_lds_dwordx4 %s, s[10:11] offset:2048%s' % (v(t1), NT))
a('v_add_u32 %s, 31744, %s' % (v(t1), v(t1)))
a('global_load_lds_dwordx4 %s, s[10:11] offset:3072%s' % (v(t1), NT))
if PRO >= 2:
    pro_rest()
a('s_add_u32 s4, s4, s48')
a('s_addc_u32 s5, s5, 0')
a('global_load_ushort %s, %s, s[4:5]' % (v(vX), v(vXw)))
a('s_add_u32 s6, s6, s56')
a('s_addc_u32 s7, s7, 0')
if PRO < 1:
    a('global_load_dword %s, %s, s[26:27]' % (v(T + 22), v(t3)))
a('s_add_u32 m0, s58, %d' % KI)
stamp('wq iss')
a('s_barrier')
for i in range(4):
    a('global_load_lds_dwordx4 %s, s[6:7] offset:%d%s' % (v(k0 + i), 1024 * i, NT))


def k_second():
    a('s_add_u32 m0, s58, %d' % (KI + 4096))
    a('s_add_u32 s6, s6, 4096')
    a('s_addc_u32 s7, s7, 0')
    for i in range(4):
        a('global_load_lds_dwordx4 %s, s[6:7] offset:%d%s' % (v(k0 + i), 1024 * i, NT))


if not OPT['ksplit']:
    k_second()
if PRO >= 1:
    pro_touch()
    a('global_load_dword %s, %s, s[26:27]' % (v(T + 22), v(t3)))
stamp('issued')
a('s_add_u32 s8, s8, s56')
a('s_addc_u32 s9, s9, 0')
a('s_add_u32 %s, s26, s57' % s(sLb))
a('s_addc_u32 %s, s27, 0' % s(sLb + 1))
a('s_lshl_b32 s55, %s, %d' % (s(sJ), 14 + PAD))
a('s_add_u32 s55, s55, %d' % (WS_G + GOFF))
a('s_add_u32 %s, s26, s55' % s(sGb0))
a('s_addc_u32 %s, s27, 0' % s(sGb0 + 1))
a('s_add_u32 %s, %s, 0x%x' % (s(sGb1), s(sGb0), 0x40000 << PAD))
a('s_addc_u32 %s, %s, 0' % (s(sGb1 + 1), s(sGb0 + 1)))
a('s_getreg_b32 %s, hwreg(HW_REG_XCC_ID, 0, 4)' % s(sXcc))
a('s_lshl_b32 %s, s2, 2' % s(sPr))
a('s_add_u32 %s, %s, %s' % (s(sPr), s(sPr), s(sW)))
a('s_and_b32 s55, %s, 63' % s(sPr))
a('s_lshl_b32 s55, s55, 7')
a('s_lshr_b32 %s, %s, 6' % (s(sPr), s(sPr)))
a('s_lshl_b32 %s, %s, 14' % (s(sPr), s(sPr)))
a('s_add_u32 %s, %s, s55' % (s(sPr), s(sPr)))
a('s_add_u32 %s, %s, %d' % (s(sPr), s(sPr), WS_P))
a('s_lshl_b32 s55, s49, %d' % PAD)
a('s_and_b32 s55, s55, 8192')
a('s_add_u32 %s, %s, s55' % (s(sPr), s(sPr)))
a('s_mov_b32 %s, 0x40000' % s(sTo))
a('s_mov_b32 %s, %s' % (s(sCs), f32(math.log2(math.e) / math.sqrt(128.0))))
a('s_mov_b32 %s, 0xffffff00' % s(sMaskHi))
a('s_mov_b32 %s, %s' % (s(sInv512), f32(1.0 / 512)))
a('s_mov_b32 %s, %s' % (s(sEps), f32(1e-5)))
a('s_mov_b32 %s, %s' % (s(sNl2e), f32(-math.log2(math.e))))
a('s_mov_b32 %s, 0xffff0000' % s(sM0))
a('s_mov_b32 %s, 0xffff0000' % s(sM0 + 1))
a('s_mov_b32 %s, 0x10000' % s(sM1))
a('s_mov_b32 %s, 0x10000' % s(sM1 + 1))
a('s_mov_b32 %s, 0' % s(sHi))
a('s_mov_b32 %s, -1' % s(sHi + 1))
a('s_mul_i32 %s, %s, 43' % (s(sC0), s(sGam)))
a('s_add_u32 %s, %s, 43' % (s(sCnt), s(sC0)))
a('s_lshr_b32 %s, %s, 3' % (s(sC0), s(sC0)))
a('s_lshr_b32 %s, %s, 3' % (s(sCnt), s(sCnt)))
a('s_sub_u32 %s, %s, %s' % (s(sCnt), s(sCnt), s(sC0)))
a('s_lshl_b32 %s, %s, 3' % (s(sCnt), s(sCnt)))
a('v_mov_b32 %s, 0' % v(vZero))
a('v_lshrrev_b32 %s, 3, %s' % (v(u8), v(vL)))
a('v_and_b32 %s, 7, %s' % (v(pos8), v(vL)))
a('s_add_u32 s55, s49, s48')
a('v_and_b32 %s, 31, %s' % (v(t0), v(vL)))
a('v_lshl_add_u32 %s, %s, 2, s55' % (v(vPubL), v(t0)))
a('v_lshrrev_b32 %s, 5, %s' % (v(t3), v(vL)))
a('v_lshl_add_u32 %s, %s, 10, %s' % (v(vPubL), v(t3), v(vPubL)))
a('s_lshl_b32 s55, %s, 6' % s(sW))
a('v_lshl_add_u32 %s, %s, 1, s55' % (v(vPw), v(t0)))
a('v_lshl_add_u32 %s, %s, 2, %s' % (v(t1), v(pos8), v(u16)))
a('v_lshl_add_u32 %s, %s, 1, s55' % (v(vQw), v(t1)))
a('s_lshl_b32 s55, %s, 6' % s(sGam))
a('s_add_u32 s55, s55, s49')
if PAD:
    a('s_lshl_b32 s55, s55, 1')
a('v_lshl_add_u32 %s, %s, 2, s55' % (v(vPubG), v(pos16)))
if PAD:
    a('v_lshl_add_u32 %s, %s, 6, %s' % (v(vPubG), v(t3), v(vPubG)))
a('v_and_b32 %s, 1, %s' % (v(t2), v(u16)))
a('v_mul_u32_u24 %s, 0x%x, %s' % (v(t2), G_X, v(t2)))
a('v_xor_b32 %s, %s, %s' % (v(vPubG), v(vPubG), v(t2)))
a('v_lshl_add_u32 %s, %s, %d, s55' % (v(vPre), v(pos8), 3 + PAD))
a('v_xor_b32 %s, %s, %s' % (v(vPre), v(vPre), v(t2)))
a('v_and_b32 %s, 1, %s' % (v(t2), v(u8)))
a('v_lshl_add_u32 %s, %s, %d, %s' % (v(vPre), v(t2), 11 + PAD, v(vPre)))
a('v_lshl_add_u32 %s, %s, %d, %s' % (v(vPre), v(t3), 18 + PAD, v(vPre)))
a('s_lshl_b32 s55, %s, 2' % s(sJ))
a('s_add_u32 s55, s55, %s' % s(sW))
a('s_lshl_b32 s55, s55, 4')
a('s_add_u32 s55, s55, %d' % STATS)
a('v_mov_b32 %s, s55' % v(vStP))
a('v_lshl_add_u32 %s, %s, 3, s55' % (v(vStP2), v(t3)))
a('v_lshlrev_b32 %s, 4, %s' % (v(t1), v(l3)))
a('v_lshl_add_u32 %s, %s, 6, %s' % (v(t1), v(u8), v(t1)))
a('v_add_u32 %s, %d, %s' % (v(vStC), STATS, v(t1)))
a('v_mov_b32 %s, 0xff' % v(t2))
a('v_cmp_eq_u32 vcc, 0, %s' % v(l3))
a('v_lshlrev_b32 %s, 4, %s' % (v(vOpR), v(u16)))
a('v_and_b32 %s, 8, %s' % (v(t1), v(vL)))
a('v_cndmask_b32 %s, 0, %s, vcc' % (v(vTagM), v(t2)))
a('v_lshl_add_u32 %s, %s, 4, %s' % (v(vXopR), v(t1), v(vOpR)))
a('v_and_b32 %s, 4, %s' % (v(t1), v(vL)))
a('v_cmp_eq_u32 vcc, 0, %s' % v(t1))
a('v_add_u32 %s, %d, %s' % (v(t1), HB, v(vXw)))
a('v_mov_b32 %s, %d' % (v(t2), DUMMY))
a('v_cndmask_b32 %s, %s, %s, vcc' % (v(vHw), v(t2), v(t1)))
a('v_lshrrev_b32 %s, 1, %s' % (v(t1), v(vXw)))
a('v_cmp_gt_u32 vcc, %s, %s' % (s(sCnt), v(t1)))
a('s_lshl_b32 s55, %s, 2' % s(sW))
a('v_mov_b32 %s, s55' % v(vMw))
a('v_lshlrev_b32 %s, 2, %s' % (v(vMr), v(l3)))
a('v_cndmask_b32 %s, 0, -1, vcc' % v(vHmask))
a('v_lshlrev_b32 %s, 2, %s' % (v(t0), v(t0)))
a('v_mov_b32 %s, 0x3f803f80' % v(t1))
a('ds_write_b32 %s, %s offset:%d' % (v(t0), v(t1), ONES))
a('v_lshlrev_b32 %s, 2, %s' % (v(t0), v(pos8)))
a('ds_write_b32 %s, %s offset:%d' % (v(t0), v(vZero), HB + 96))
if PAD:
    a('v_lshrrev_b32 %s, 2, %s' % (v(t1), v(vL)))
    a('v_lshlrev_b32 %s, 4, %s' % (v(t2), v(l3)))
    a('v_lshl_add_u32 %s, %s, 7, %s' % (v(t1), v(t1), v(t2)))
    a('s_lshl_b32 s59, s49, 1')
    a('v_add_u32 %s, s59, %s' % (v(vConsG), v(t1)))
else:
    a('v_mov_b32 %s, %s' % (v(vConsG), v(vCons)))
a('v_mov_b32 %s, %s' % (v(vConsG0), v(vConsG)))
a('v_mov_b32 %s, %s' % (v(vSt + 3), s(sXcc)))
r_ = T + 16
a('v_lshrrev_b32 %s, 2, %s' % (v(r_), v(pos16)))
a('v_and_b32 %s, 1, %s' % (v(t0), v(u16)))
a('v_lshl_add_u32 %s, %s, 2, %s' % (v(t1), v(t0), v(r_)))
a('v_lshlrev_b32 %s, 1, %s' % (v(t1), v(t1)))
a('v_xor_b32 %s, s55, %s' % (v(t1), v(t1)))
a('v_lshlrev_b32 %s, 4, %s' % (v(t1), v(t1)))
a('v_lshl_add_u32 %s, %s, 3, %s' % (v(t1), v(l3), v(t1)))
a('v_lshl_add_u32 %s, %s, 3, %s' % (v(t2), v(u16), v(r_)))
a('v_lshl_add_u32 %s, %s, 8, %s' % (v(trq), v(t2), v(t1)))
a('v_xor_b32 %s, 32, %s' % (v(trq + 1), v(trq)))
a('v_lshrrev_b32 %s, 1, %s' % (v(t1), v(r_)))
a('v_lshl_add_u32 %s, %s, 1, %s' % (v(t1), v(t0), v(t1)))
a('v_xor_b32 %s, %s, %s' % (v(t1), s(sW), v(t1)))
a('v_lshlrev_b32 %s, 5, %s' % (v(t1), v(t1)))
a('v_lshl_add_u32 %s, %s, 3, %s' % (v(t1), v(l3), v(t1)))
a('v_lshl_add_u32 %s, %s, 7, %s' % (v(vTr), v(t2), v(t1)))
a('v_add_u32 %s, %d, %s' % (v(vTr), WO, v(vTr)))
a('v_and_b32 %s, 2, %s' % (v(t0), v(u8)))
a('v_xor_b32 %s, %s, %s' % (v(t0), v(t0), v(pos8)))
a('v_lshlrev_b32 %s, 4, %s' % (v(t1), v(t0)))
a('v_lshl_add_u32 %s, %s, 10, %s' % (v(wo0), v(u8), v(t1)))
a('v_xor_b32 %s, 64, %s' % (v(wo1), v(wo0)))
a('v_add_u32 %s, 7168, %s' % (v(wo1), v(wo1)))
a('v_mul_u32_u24 %s, 2752, %s' % (v(t2), v(u8)))
a('v_min_u32 %s, 5, %s' % (v(t1), v(t0)))
a('v_lshl_add_u32 %s, %s, 4, %s' % (v(f0), v(t1), v(t2)))
a('v_xor_b32 %s, 4, %s' % (v(t0), v(t0)))
a('v_min_u32 %s, 5, %s' % (v(t1), v(t0)))
a('v_lshl_add_u32 %s, %s, 4, %s' % (v(f1), v(t1), v(t2)))
a('v_add_u32 %s, %d, %s' % (v(f1), 8 * 2752 - 1024, v(f1)))
a('s_lshl_b32 s55, %s, 17' % s(sGam))
a('s_lshl_b32 s59, %s, 15' % s(sW))
a('s_add_u32 s55, s55, s59')
a('s_add_u32 s55, s55, s48')
a('s_add_u32 s12, s12, s55')
a('s_addc_u32 s13, s13, 0')
a('s_lshl_b32 s55, %s, 2' % s(sJ))
a('s_add_u32 s55, s55, %s' % s(sW))
a('s_mul_i32 s55, s55, %d' % (16 * 2752))
a('s_lshl_b32 s59, %s, 4' % s(sC0))
a('s_add_u32 s55, s55, s59')
a('s_add_u32 s16, s16, s55')
a('s_addc_u32 s17, s17, 0')
a('s_add_u32 s18, s18, s55')
a('s_addc_u32 s19, s19, 0')
a('s_lshl_b32 s55, %s, 13' % s(sC0))
a('s_min_u32 s59, %s, 2' % s(sW))
a('s_lshl_b32 s59, s59, 14')
a('s_add_u32 s55, s55, s59')
a('s_add_u32 s55, s55, s48')
a('s_add_u32 s20, s20, s55')
a('s_addc_u32 s21, s21, 0')
a('s_add_u32 s22, s22, s48')
a('s_addc_u32 s23, s23, 0')
if OPT['ksplit']:
    k_second()
a('s_add_u32 s6, s8, 4096')
a('s_addc_u32 s7, s9, 0')
a('s_waitcnt lgkmcnt(0)')
for k in range(10):
    a('s_add_u32 %s, %s, %d' % (s(sTag + k), s(sE), k + 1))


def issue_v(lo, hi):
    for i in range(lo, hi):
        if i == lo or i == 4:
            a('s_add_u32 m0, s58, %d' % (VI + 4096 * (i >> 2)))
            a('s_nop 0')
        a('global_load_lds_dwordx4 %s, %s offset:%d%s' % (v(vVo + ((i >> 1) & 1)), 's[6:7]' if i >= 4 else 's[8:9]', 1024 * (i & 3), NT))


def issue_wo():
    a('s_add_u32 m0, s49, %d' % WO)
    a('v_add_u32 %s, %d, %s' % (v(T + 20), 2 * 7168, v(wo0)))
    a('global_load_lds_dwordx4 %s, s[12:13] offset:0%s' % (v(wo0), NT))
    a('global_load_lds_dwordx4 %s, s[12:13] offset:1024%s' % (v(wo1), NT))
    a('global_load_lds_dwordx4 %s, s[12:13] offset:2048%s' % (v(T + 20), NT))
    a('v_add_u32 %s, %d, %s' % (v(T + 20), 2 * 7168, v(wo1)))
    a('global_load_lds_dwordx4 %s, s[12:13] offset:3072%s' % (v(T + 20), NT))


def issue_w13(lo, hi):
    for i in range(lo, hi):
        if i == lo or i == 2:
            a('s_lshl_b32 s59, %s, 11' % s(sW))
            a('s_add_u32 m0, s59, %d' % (W1 if i < 2 else W3))
            a('s_nop 0')
        a('global_load_lds_dwordx4 %s, s[%d:%d] offset:%d%s' % (v(f0 + (i & 1)), 16 + (i & 2), 17 + (i & 2), 1024 * (i & 1), NT))


def issue_w2():
    a('s_min_u32 s59, %s, 2' % s(sW))
    a('s_lshl_b32 s59, s59, 11')
    a('s_add_u32 m0, s59, %d' % W2)
    a('s_nop 0')
    a('global_load_lds_dwordx4 %s, s[20:21] offset:0%s' % (v(wo0), NT))
    a('global_load_lds_dwordx4 %s, s[20:21] offset:1024%s' % (v(wo1), NT))


r = vP
FE, KW, WOL = OPT['fe'], OPT['kw'], OPT['wol']
NPRE = 1 + OPT['probe']
NVA = OPT['nva']
NVB = 8 - NVA
NLATE = 0 if WOL else 4 + FE + 2 * OPT['w2e']


WOETC = []


def front():
    a('; ---- layer 0: x slice, query projection partials')
    set_tags(0)
    a('v_add_u32 %s, 0x%x, %s' % (v(T + 12), WS_L2D, v(vStP2)))
    a('v_add_u32 %s, 0x%x, %s' % (v(T + 13), WS_L2D, v(vPubL)))
    a('v_add_u32 %s, 0x%x, %s' % (v(T + 14), ST0, v(vStP2)))
    stamp('consts')
    a('s_waitcnt vmcnt(9)')
    stamp('wq landed')
    a('ds_write_b16 %s, %s offset:%d' % (v(vXw), v(vX), XB))
    issue_v(0, OPT['vq'])
    a('v_lshlrev_b32 %s, 16, %s' % (v(vSt4), v(vX)))
    a('v_lshlrev_b32 %s, 16, %s' % (v(vX), v(vX)))
    FAST[0] = True
    ln_stats(0, T + 14)
    a('s_waitcnt lgkmcnt(0)')

    proj(vWQ, 0, 0, wsrc=[(trq, WQ, 8192, 1024), (trq + 1, WQ, 8192, 1024)], first=True)
    FAST[0] = False
    stamp('L0 Q pub')
    if OPT.get('te'):
        h = OPT.get('th', 4)
        issue_v(OPT['vq'], h)
        sk = newlabel('noth')
        a('s_cmp_ge_u32 %s, 4' % s(sXcc))
        a('s_cbranch_scc1 %s' % sk)
        a('s_waitcnt vmcnt(%d)' % max(8 - OPT['te'] + (PRO >= 1) + 2 + h, 0))
        a.label(sk)
        issue_v(h, NVA)
    else:
        issue_v(OPT['vq'], NVA)
    lstore('global_store_dword', v(T + 13), v(T), BUF_A)
    a('s_mov_b64 exec, %s' % s(sM1, 2))
    lstore('global_store_dwordx2', v(T + 12), v(vSt4, 2), 0)
    a('s_mov_b64 exec, -1')
    a('v_mov_b32 %s, %s' % (v(T + 16), s(sE)))
    a('v_mov_b32 %s, %s' % (v(T + 17), s(sE)))
    if PAD:
        a('v_mov_b32 %s, %s' % (v(T + 18), s(sE)))
        a('v_mov_b32 %s, %s' % (v(T + 19), s(sE)))
    a('global_store_dwordx%d %s, %s, %s offset:%d sc1' % (2 << PAD, v(vPre), v(T + 16, 2 << PAD), s(sGb0, 2), -GOFF))
    if OPT['probe']:
        a('v_and_b32 %s, 31, %s' % (v(T + 18), v(vL)))
        a('v_lshl_add_u32 %s, %s, 2, %s' % (v(T + 18), v(T + 18), s(sPr)))
        a('v_lshrrev_b32 %s, 5, %s' % (v(T + 19), v(vL)))
        a('v_lshlrev_b32 %s, 13, %s' % (v(T + 19), v(T + 19)))
        a('v_xor_b32 %s, %s, %s' % (v(T + 18), v(T + 19), v(T + 18)))
        a('global_store_dword %s, %s, s[26:27] sc1' % (v(T + 18), v(T + 16)))
    a('; ---- layer 0: gather q')
    a('v_xor_b32 %s, %s, %s' % (v(t0), v(u16), v(pos16)))
    a('v_lshlrev_b32 %s, 4, %s' % (v(t0), v(t0)))
    a('v_lshl_add_u32 %s, %s, 8, %s' % (v(t0), v(pos16), v(t0)))
    a('s_add_u32 s55, s58, %d' % KI)
    a('v_add_u32 %s, s55, %s' % (v(t0), v(t0)))
    for kk in range(1, 4):
        a('v_xor_b32 %s, %d, %s' % (v(t0 + kk), kk << 6, v(t0)))
    alt, both, alts, boths = T + 13, T + 14, T + 15, T + 21
    a('v_mov_b32 %s, %s' % (v(alt), v(vCons)))
    a('v_lshlrev_b32 %s, 1, %s' % (v(both), v(vCons)))
    a('v_add_u32 %s, 0x%x, %s' % (v(both), WS_L2D, v(both)))
    a('v_add_u32 %s, 0x%x, %s' % (v(alts), ST0, v(vStC)))
    a('v_lshlrev_b32 %s, 1, %s' % (v(boths), v(vStC)))
    a('v_add_u32 %s, 0x%x, %s' % (v(boths), WS_L2D + ST0, v(boths)))
    page_break(True)
    behind_k = 2 + NVA + 2 + NPRE + (PRO >= 1)
    a('s_waitcnt vmcnt(%d)' % (8 - KW + behind_k))
    stamp('K part')
    loads = [(vSs[0], alts, sLb, 0), (r, alt, sLb, BUF_A), (r + 4, alt, sLb, BUF_X)]
    for x in loads:
        gload(*x)
    issue_v(NVA, 8)

    def wo_etc():
        issue_wo()
        if OPT['w2e']:
            issue_w2()
        issue_w13(0, FE)
    if not WOL:
        wo_etc()
    a('s_waitcnt vmcnt(%d)' % (behind_k + 3 + NVB + NLATE))
    stamp('K landed')
    for g in range(2):
        for kk in range(4):
            a('ds_read_b128 %s, %s offset:%d' % (v(vK + 16 * g + 4 * kk, 4), v(t0 + kk), 4096 * g))
    a('s_branch L_e1ent')
    a.label('L_e1top')
    tick()
    a('v_sub_u32 %s, %s, %s' % (v(alt), v(both), v(alt)))
    a('v_sub_u32 %s, %s, %s' % (v(alts), v(boths), v(alts)))
    for x in loads:
        gload(*x)
    if NLATE + NVB:
        a('s_waitcnt vmcnt(0)')
    a.label('L_e1ent')
    a('s_waitcnt vmcnt(%d)' % (NLATE + NVB))
    a('v_bitop3_b32 %s, %s, %s, %s bitop3:0x7e' % (v(T + 23), v(r), v(r + 4), s(sTag)))
    a('v_cmp_ne_u32 %s, %s, %s' % (s(sT1, 2), s(sTag), v(vSs[0] + 1)))
    a('v_cmp_ne_u32_sdwa vcc, %s, %s src0_sel:BYTE_0 src1_sel:DWORD' % (v(T + 23), v(vZero)))
    a('s_or_b64 vcc, vcc, %s' % s(sT1, 2))
    a('s_cbranch_vccnz L_e1top')
    stamp('L0 E1 ok')
    if OPT['fl']:
        flag_store(sE)
    if WOL and OPT['wopos'] == 0:
        wo_etc()
    WOETC.append(wo_etc)
    a('v_cmp_ne_u32 vcc, %s, %s' % (s(sXcc), v(vSs[0] + 3)))
    c, x, y = vC, vSs[0], r + 4
    ln_spec(x)
    mask_tag(y)
    a('v_mov_b32 %s, %s' % (v(c + 1), v(c)))
    a('v_permlane32_swap_b32 %s, %s' % (v(y + 1), v(y + 3)))
    mask_tag(r)
    a('v_permlane16_swap_b32 %s, %s' % (v(c), v(c + 1)))
    a('v_add_f32 %s, %s, %s' % (v(c), v(c), v(c + 1)))
    a('v_add_f32 %s, %s, %s' % (v(y + 1), v(y + 1), v(y + 3)))
    a('v_permlane32_swap_b32 %s, %s' % (v(y), v(y + 2)))
    dpp('v_add_f32', c, c, c, 'row_ror:8')
    a('v_add_f32 %s, %s, %s' % (v(y), v(y), v(y + 2)))
    a('v_permlane32_swap_b32 %s, %s' % (v(r + 1), v(r + 3)))
    dpp('v_add_f32', c, c, c, X1)
    a('v_add_f32 %s, %s, %s' % (v(r + 1), v(r + 1), v(r + 3)))
    a('v_permlane16_swap_b32 %s, %s' % (v(y), v(y + 1)))
    dpp('v_add_f32', c, c, c, X2)
    a('v_add_f32 %s, %s, %s' % (v(y), v(y), v(y + 1)))
    a('v_mul_f32 %s, %s, %s' % (v(c), s(sInv512), v(c)))
    a('v_mov_b32 %s, %s' % (v(c + 1), v(c)))
    a('v_permlane32_swap_b32 %s, %s' % (v(r), v(r + 2)))
    dpp('v_add_f32', vCq, y, y, 'row_ror:8')
    a('v_permlane32_swap_b32 %s, %s' % (v(c), v(c + 1)))
    a('v_add_f32 %s, %s, %s' % (v(r), v(r), v(r + 2)))
    bf16r(vMean, c)
    if OPT['fast']:
        a('s_cbranch_vccnz L_slowtail')


def CLEAN():
    return OPT['clean'] if FAST[0] else 0


def tail():
    for layer in range(2):
        pre = 'L%d' % layer
        k1, k2, k4 = 3 * layer, 3 * layer + 1, 3 * layer + 2

        def spec(x):
            mask_tag(x)
            red_a(x, r)
        if layer == 1:
            a('; ---- layer 1: x slice, query projection partials')
            set_tags(k1)
            page_break()
            if OPT['probe'] and OPT['vlate']:
                count_votes()
            if CLEAN():
                clean_prep()
            g_pace(1)
            x_gather(1, G_D)
            stamp(pre + ' E5 ok')
            x_to_lds(k1)
            a('s_waitcnt lgkmcnt(0)')
            proj(vWQ, k1, layer)
            stamp(pre + ' Q pub')
            a('; ---- layer 1: gather q')
            l_gather(k1, spec, ln_spec, [ln_mean])
            stamp(pre + ' E1 ok')
        red_b(r, r)
        a('v_fma_f32 %s, -%s, %s, %s' % (v(r), v(vMean), v(vCq), v(r)))
        a('v_cvt_pk_bf16_f32 %s, %s, %s' % (v(r), v(r), v(r)))
        a('ds_write_b16 %s, %s offset:%d' % (v(vQw), v(r), QB))
        if layer == 1 and CLEAN() & 1:
            clean_x()
        ln_rstd_a()
        if layer == 0 and WOL and OPT['wopos'] == 1:
            WOETC[0]()
        a('s_waitcnt lgkmcnt(0)')
        stamp('z%d qw' % layer)
        a('s_barrier')
        stamp('z%d qb' % layer)
        a('; ---- layer %d: attention over this member\'s 128 keys' % layer)
        for kk in range(4):
            a('ds_read_b128 %s, %s offset:%d' % (v(vA + 4 * kk, 4), v(vOpR), QB + 64 * kk))
        ln_rstd_b(True)
        set_tags(k2)
        for kk in range(4):
            lgkm(3 - kk)
            for g in range(2):
                mfma(vD + 4 * g, vA + 4 * kk, vK + 16 * g + 4 * kk, vD + 4 * g if kk else None)
        stamp('z%d qk' % layer)
        if layer == 0:
            if WOL and OPT['wopos'] == 2:
                WOETC[0]()
            if NVB:
                a('s_waitcnt vmcnt(%d)' % (4 + FE + 2 * OPT['w2e']))
                a('s_barrier')
            tr_reads(vV, trq, VI, 4, 8192, 1024)
        sg = vSt
        mx, e0 = T, T + 1
        a('v_max_f32 %s, %s, %s' % (v(mx), v(vD), v(vD + 4)))
        a('v_cndmask_b32 %s, %s, %s, %s' % (v(e0), v(vD), v(vD + 4), s(sM0, 2)))
        for ro in (8, 4, 2, 1):
            dpp('v_max_f32', mx, mx, mx, 'row_ror:%d' % ro)
        a('v_mul_f32 %s, %s, %s' % (v(sg), v(vCs), v(mx)))
        a('v_fma_f32 %s, %s, %s, -%s' % (v(e0), v(e0), v(vCs), v(sg)))
        a('v_exp_f32 %s, %s' % (v(sg + 1), v(e0)))
        stamp('z%d ex' % layer)
        a('ds_write_b32 %s, %s offset:%d' % (v(vMw), v(sg), MB))
        a('v_cvt_pk_bf16_f32 %s, %s, %s' % (v(e0), v(sg + 1), v(sg + 1)))
        a('ds_write_b16 %s, %s offset:%d' % (v(vPw), v(e0), PB))
        if layer == 0:
            tr_reads(vV + 16, trq + 1, VI, 4, 8192, 1024)
        for ro in (8, 4, 2):
            dpp('v_add_f32', sg + 1, sg + 1, sg + 1, 'row_ror:%d' % ro)
        a('s_waitcnt lgkmcnt(0)')
        stamp('z%d pw' % layer)
        a('s_barrier')
        stamp('z%d pb' % layer)
        mm = T + 4
        a('ds_read_b32 %s, %s offset:%d' % (v(mm), v(vMr), MB))
        for kk in range(4):
            a('ds_read_b128 %s, %s offset:%d' % (v(vA + 4 * kk, 4), v(vOpR), PB + 64 * kk))
        dpp('v_add_f32', sg + 1, sg + 1, sg + 1, 'row_ror:1')
        dpp('v_add_f32', sg + 1, sg + 1, sg + 1, 'row_bcast:15', 0xa)
        a('s_mov_b64 exec, 0x10000')
        lstore('global_store_dwordx4', v(vStP), v(sg, 4), 512 * (k2 & 1))
        a('s_mov_b64 exec, -1')

        def sel(kk):
            a('v_cndmask_b32 %s, %s, %s, %s' % (v(T + 8 + kk), v(vD + 8 * kk), v(vD + 8 * kk + 4), s(sM0, 2)))

        def bc(kk):
            a('v_mov_b32_dpp %s, %s quad_perm:[%d,%d,%d,%d] row_mask:0xf bank_mask:0xf' % (v(T + 16 + kk), v(mm), kk, kk, kk, kk))

        def acc(kk):
            a('%s %s, %s, %s' % ('v_fmac_f32' if kk else 'v_mul_f32', v(T), v(T + 16 + kk), v(T + 8 + kk)))
        lgkm(3)
        stamp('z%d pr' % layer)
        mfma(vD, vA, vV)
        dpp('v_max_f32', mx, mm, mm, X1)
        mfma(vD + 4, vA, vV + 16)
        lgkm(2)
        mfma(vD + 8, vA + 4, vV + 4)
        dpp('v_max_f32', mx, mx, mx, X2)
        mfma(vD + 12, vA + 4, vV + 20)
        a('v_sub_f32 %s, %s, %s' % (v(mm), v(mm), v(mx)))
        lgkm(1)
        mfma(vD + 16, vA + 8, vV + 8)
        a('v_exp_f32 %s, %s' % (v(mm), v(mm)))
        mfma(vD + 20, vA + 8, vV + 24)
        lgkm(0)
        bc(0)
        mfma(vD + 24, vA + 12, vV + 12)
        bc(1)
        bc(2)
        mfma(vD + 28, vA + 12, vV + 28)
        stamp('z%d pv' % layer)
        stats_load(k2)
        sel(0)
        sel(1)
        acc(0)
        acc(1)
        sel(2)
        acc(2)
        bc(3)
        a('s_mov_b32 exec_hi, 0')
        sel(3)
        acc(3)
        a('v_bfi_b32 %s, %s, %s, %s' % (v(T), v(vTagM), s(sTag + k2), v(T)))
        lstore('global_store_dword', v(vPubL), v(T), BUF_A if k2 % 2 == 0 else BUF_B)
        a('s_mov_b32 exec_hi, -1')
        stamp(pre + ' S pub')
        if layer == 0 and OPT['fl'] and OPT['flp'] == 1:
            a('s_waitcnt vmcnt(0)')
            flag_store(sTag + 6)
            stats_load(k2)
            lstore('global_store_dword', v(vStP), v(vSt), 512 * (k2 & 1))
        a('; ---- layer %d: combine the 8 key blocks, output projection partials' % layer)
        mj, mg, mo, lo = T, T + 1, vC, vC + 1

        def sm_spec(x):
            dpp('v_max_f32', mj, x, x, X1)
            a('v_mov_b32 %s, %s' % (v(mo), v(x)))
            a('v_mov_b32 %s, %s' % (v(lo), v(x + 1)))

        def sm0():
            allred('v_max_f32', mj, T + 2, [1])
            dpp('v_max_f32', mg, mj, mj, 'row_ror:8')
            allred('v_max_f32', mg, T + 2, [4, 5])

        def sm1():
            a('v_sub_f32 %s, %s, %s' % (v(mo), v(mo), v(mg)))
            a('v_sub_f32 %s, %s, %s' % (v(mj), v(mj), v(mg)))
            a('v_exp_f32 %s, %s' % (v(mo), v(mo)))
            a('v_exp_f32 %s, %s' % (v(mj), v(mj)))
            a('v_mul_f32 %s, %s, %s' % (v(mo), v(mo), v(lo)))
            allred('v_add_f32', mo, T + 2, [0, 1, 3, 4, 5])
            a('v_rcp_f32 %s, %s' % (v(mo), v(mo)))
            a('v_mul_f32 %s, %s, %s' % (v(vF), v(mj), v(mo)))

        def spec2(x):
            mask_tag(x)
            a('v_pk_mul_f32 %s, %s, %s op_sel_hi:[1,0]' % (v(x + 2, 2), v(x + 2, 2), v(vF, 2)))
            a('v_pk_mul_f32 %s, %s, %s op_sel_hi:[1,0]' % (v(x, 2), v(x, 2), v(vF, 2)))
            red_a(x, r)
        l_gather(k2, spec2, sm_spec, [sm0, sm1], hook=(lambda: flag_store(sTag + 6)) if layer == 0 and OPT['fl'] and OPT['flp'] == 0 else None)
        stamp(pre + ' E2 ok')
        red_b(r, r)
        a('v_cvt_pk_bf16_f32 %s, %s, %s' % (v(r), v(r), v(r)))
        a('ds_write_b16 %s, %s offset:%d' % (v(vQw), v(r), OB))

        def ffn_rest():
            issue_w13(FE, 4)
            if not OPT['w2e']:
                issue_w2()
        if layer == 0 and OPT['ff'] in (2, 3):
            ffn_rest()
        if layer == 0 and OPT['ff'] == 6:
            issue_w13(FE, 4)
        if layer == 0 and OPT['ff'] == 7:
            issue_w13(FE, 2)
        a('s_waitcnt lgkmcnt(0)')
        a('s_barrier')
        if layer == 0 and OPT['ff'] == 5:
            gemv_publish_g(4, vWO, OB, 0, G_C, tr=True, mid=lambda: issue_w13(FE, 2), post=lambda: issue_w13(2, 4))
            issue_w2()
        else:
            gemv_publish_g(4, vWO, OB, 2 * layer, G_C, tr=layer == 0)
        stamp(pre + ' O pub')
        a('; ---- layer %d: x slice, gate/up partials' % layer)
        set_tags(k4)
        if layer == 0 and OPT['ff'] == 1:
            nrest = 4 - FE + (0 if OPT['w2e'] else 2)
            if OPT['fl']:
                a('v_lshlrev_b32 %s, 7, %s' % (v(T + 5), v(vL)))
                a('v_add_u32 %s, %d, %s' % (v(T + 5), WS_F, v(T + 5)))
                flag_load()
            ffn_rest()
            if OPT['fl']:
                flag_wait(nrest)
            else:
                a('s_waitcnt vmcnt(%d)' % nrest)
            stamp('G0 ack')
            x_gather(0, G_C, work=probe_near if OPT['probe'] else None)
        else:
            flush_deferred()
            if layer == 0 and OPT['ff'] == 4:
                ffn_rest()
            if layer == 0 and OPT['ff'] == 7:
                issue_w13(2, 4)
            if layer == 0 and OPT['ff'] in (6, 7):
                issue_w2()
            if layer == 0 and OPT['probe']:
                probe_near()
                if not OPT['vlate']:
                    count_votes()
            if layer == 0 and OPT['fl']:
                a('v_lshlrev_b32 %s, 7, %s' % (v(T + 5), v(vL)))
                a('v_add_u32 %s, %d, %s' % (v(T + 5), WS_F, v(T + 5)))
                flag_load()
                flag_wait(0)
            if layer or OPT['ff'] != 3:
                g_pace(2 * layer)
            else:
                for i in range(OPT.get('xs', 0)):
                    a('s_nop 15')
                stamp('G0 ack')
            x_gather(2 * layer, G_C)
        stamp(pre + ' E3 ok')
        x_to_lds(k4)
        a('s_cmp_eq_u32 %s, 3' % s(sW))
        a('s_waitcnt lgkmcnt(0)')
        idle = newlabel('idle')

        proj(vW13, k4, layer, wsrc=[(vTr, W1 - WO, 4096, 512), (vTr, W3 - WO, 4096, 512)] if layer == 0 else None, skip=idle)
        stamp(pre + ' G pub')
        if layer == 1 and CLEAN():
            a('v_mov_b32 %s, %s' % (v(vKeep), v(T)))
        a('; ---- layer %d: gather gate/up, activation' % layer)

        def w2_regs():
            a('v_and_b32 %s, 32, %s' % (v(T + 1), v(vL)))
            a('v_lshlrev_b32 %s, 6, %s' % (v(T + 1), v(T + 1)))
            a('v_sub_u32 %s, %s, %s' % (v(T + 1), v(vTr), v(T + 1)))
            tr_reads(vW2, vTr, W2 - WO, 1, 4096, 512)
            tr_reads(vW2 + 4, T + 1, W2 - WO + 4096, 1, 4096, 512)

        def ln_all():
            w2_regs()
            ln_mean()
            ln_rstd_a()
            ln_rstd_b(False)
        if layer == 0:
            loads = [(r, vCons, sLb, BUF_A), (r + 4, vCons, sLb, BUF_X)]

            def data():
                ln_spec(vSs[0])
                for x in loads:
                    gload(*x)

            def spec4():
                mask_tag(r)
                mask_tag(r + 4)
                red_a(r, r)
            flush_deferred()
            poll([(vSs[0], vStC, sLb, 0)], lambda: chk_stats(vSs[0], k4), data, cnt=1, issued=True)
            poll(loads, lambda: chk_byte([r, r + 4], sTag + k4), spec4, work=ln_all, issued=True)
            red_a(r + 4, r + 4)
            red_b(r + 4, vCg)
        else:
            l_gather(k4, spec, ln_spec, [ln_mean, ln_rstd_a, lambda: ln_rstd_b(False)])
        stamp(pre + ' E4 ok')
        red_b(r, r)
        a('v_fma_f32 %s, -%s, %s, %s' % (v(r), v(vMean), v(vCg), v(r)))
        a('v_mul_f32 %s, %s, %s' % (v(r), v(r), v(vRs)))
        bf16r(r, r)
        a('v_mul_f32 %s, %s, %s' % (v(r + 1), s(sNl2e), v(r)))
        a('v_exp_f32 %s, %s' % (v(r + 1), v(r + 1)))
        a('v_and_b32_dpp %s, %s, %s row_shl:4 row_mask:0xf bank_mask:0xf' % (v(r + 2), v(r), v(vHmask)))
        a('v_add_f32 %s, 1.0, %s' % (v(r + 1), v(r + 1)))
        a('v_rcp_f32 %s, %s' % (v(r + 1), v(r + 1)))
        a('v_mul_f32 %s, %s, %s' % (v(r), v(r), v(r + 1)))
        bf16r(r, r)
        a('v_mul_f32 %s, %s, %s' % (v(r), v(r), v(r + 2)))
        a('v_cvt_pk_bf16_f32 %s, %s, %s' % (v(r), v(r), v(r)))
        a('ds_write_b16 %s, %s' % (v(vHw), v(r)))
        if layer == 0:
            join = newlabel('join')

            def idle_path(idle=idle, join=join, w2_regs=w2_regs):
                a.label(idle)
                w2_regs()
                a('s_branch %s' % join)
            deferred.append(idle_path)
            a.label(join)
        else:
            join = newlabel('join')

            def idle_path1(idle=idle, join=join):
                a.label(idle)
                a('v_mov_b32 %s, %s' % (v(vKeep), s(sTag + 5)))
                a('s_cmp_lg_u32 s2, 255')
                a('s_cbranch_scc1 %s' % join)
                a('s_add_u32 s55, %s, 16' % s(sE))
                a('v_mov_b32 %s, s55' % v(T + 2))
                a('s_mov_b64 exec, 1')
                a('global_store_dword %s, %s, s[26:27] sc1' % (v(vZero), v(T + 2)))
                a('s_mov_b64 exec, -1')
                a('s_branch %s' % join)
            deferred.append(idle_path1)
            a.label(join)
        a('s_waitcnt lgkmcnt(0)')
        a('s_barrier')
        gemv_publish_g(2, vW2, HB, 2 * layer + 1, G_D, mid=clean_a if layer == 1 and CLEAN() & 2 else None)
        stamp(pre + ' D pub')

    a('; ---- final sum (group 0 only)')
    if CLEAN() & 4:
        fin = newlabel('last')
        clean_b_prep()
        a('s_cmp_eq_u32 %s, 0' % s(sGam))
        a('s_cbranch_scc1 %s' % fin)
        a('s_waitcnt vmcnt(0)')
        clean_b()
        a('s_branch L_fin')
        flush_deferred(False)
        a.label(fin)
        g_pace(3)
        x_gather(3, G_D, work=clean_b, cnt=1)
    else:
        a('s_cmp_lg_u32 %s, 0' % s(sGam))
        a('s_cbranch_scc1 L_fin')
        g_pace(3)
        x_gather(3, G_D)
    a('s_mov_b32 exec_lo, 0x000f000f')
    a('s_mov_b32 exec_hi, 0x000f000f')
    a('global_store_short %s, %s, s[22:23]%s' % (v(vXw), v(T), ' sc1' if OPT['clean'] & 8 else ''))


front()
FAST[0] = bool(OPT['fast'])
tail()
a.label('L_fin')
if OPT.get('dirty'):
    a('s_mov_b64 exec, -1')
    a('s_lshl_b32 s55, s2, 2')
    a('s_add_u32 s55, s55, %s' % s(sW))
    a('s_lshl_b32 s55, s55, 15')
    a('s_add_u32 s55, s55, 0x400000')
    a('v_lshl_add_u32 %s, %s, 4, s55' % (v(T + 1), v(vL)))
    for i in range(OPT['dirty']):
        a('global_store_dwordx4 %s, %s, s[26:27]' % (v(T + 1), v(vD, 4)))
        a('v_add_u32 %s, 1024, %s' % (v(T + 1), v(T + 1)))
if OPT.get('wb'):
    a('buffer_wbl2 sc1')
if OPT.get('delay'):
    if 'only' in OPT:
        a('s_cmp_lg_u32 s2, %d' % OPT['only'])
        a('s_cbranch_scc1 L_end')
    a.label('L_dly')
    a('s_memrealtime s[6:7]')
    a('s_waitcnt lgkmcnt(0)')
    a('s_sub_u32 s8, s6, s100')
    a('s_cmp_lt_u32 s8, %d' % OPT.get('until', 3000))
    a('s_cbranch_scc1 L_dly')
if DIAG:
    a('s_mov_b64 exec, -1')
    a('s_memrealtime s[4:5]')
    a('s_waitcnt lgkmcnt(0)')
    a('v_mov_b32 %s, 0' % v(T))
    for i in range(len(stamps)):
        a('v_writelane_b32 %s, %s, %d' % (v(T), s(stamp_regs[i]), i))
    a('v_writelane_b32 %s, s4, %d' % (v(T), len(stamps)))
    a('v_xor_b32 %s, %s, %s' % (v(T + 2), v(vConsG), v(vConsG0)))
    a('v_readfirstlane_b32 s6, %s' % v(T + 2))
    a('v_writelane_b32 %s, s6, 62' % v(T))
    a('v_writelane_b32 %s, s12, 61' % v(T))
    a('v_writelane_b32 %s, s13, 60' % v(T))
    a('v_writelane_b32 %s, %s, 63' % (v(T), s(sXcc)))
    a('s_lshl_b32 s55, s2, 2')
    a('s_add_u32 s55, s55, %s' % s(sW))
    a('s_lshl_b32 s55, s55, 8')
    a('s_add_u32 s55, s55, %d' % WS_DIAG)
    a('v_lshl_add_u32 %s, %s, 2, s55' % (v(T + 1), v(vL)))
    a('global_store_dword %s, %s, s[26:27]' % (v(T + 1), v(T)))
a.label('L_end')
a('s_endpgm')
flush_deferred(False)
a.label('L_fastend')
if OPT['fast']:
    a('; ==== the same phases with write-through stores: taken when the group is spread over several XCDs')
    a.label('L_slowtail')
    FAST[0] = False
    a.hist = []
    a('s_nop 1')
    tail()
    a('s_branch L_fin')
    flush_deferred(False)
    a('s_endpgm')
a.raw('''.section .rodata,"a"
.p2align 6
.amdhsa_kernel %s_kernel
  .amdhsa_next_free_vgpr %d
  .amdhsa_next_free_sgpr 102
  .amdhsa_accum_offset %d
  .amdhsa_group_segment_fixed_size 0
  .amdhsa_kernarg_size 96
  .amdhsa_user_sgpr_count 2
  .amdhsa_user_sgpr_kernarg_segment_ptr 1
  .amdhsa_system_sgpr_workgroup_id_x 1
  .amdhsa_float_denorm_mode_32 3
.end_amdhsa_kernel''' % (NAME, NVGPR, NVGPR))
sys.stdout.write(a.text())
if DIAG:
    sys.stderr.write('STAMPS ' + '|'.join(stamps + ['end']) + '\n')
sys.stderr.write('nops inserted: %d\n' % a.nops)
```

```python
import sys, math, struct
from asm import Asm

NAME = 'interleave_layers__sliding_block_cached__glu_gated_swiglu__decode'
OPT = dict(diag=0, fast=1, nt=1, kw=5, fe=0, wol=1, probe=1, vw=1, thr=90, pages=1, cnt=0, early=2, d0=0, refresh=0, spipe=1, late_rs=1, na=0, nsl=0, w2e=0, ff=7, vlate=1, fl=0, flp=0, pad=0, nva=8, ksplit=0, wopos=0, ool=0, stg=1, vq=0, clean=0, cend=1, opre=1)
for a_ in sys.argv[1:]:
    k_, v_ = a_.split('=')
    OPT[k_] = int(v_)
DIAG = OPT['diag']
NT = {0: '', 1: ' nt', 2: ' sc1 nt', 3: ' sc0 sc1 nt', 4: ' sc0 nt', 5: ' sc1', 6: ' sc0 sc1'}[OPT['nt']]
STAGE = not DIAG or DIAG == 6

XB, ONES, QB, OB, HB, MB, DUMMY, PB = 0, 128, 256, 512, 768, 896, 960, 1024
WQ, VI, WO = 4096, 20480, 53248
W1, W3, W2 = WO + 16384, WO + 24576, WO + 32768
KI = WO + 38912
LDS_BYTES = KI + 32768
WS_F = 0x10000
WS_L, WS_P, WS_G, WS_DIAG = 0x40000, 0xc0000, 0x100000, 0x200000
WS_L2D = 0x140000 + 0x100000 * OPT['pad']
BUF_A, BUF_X, BUF_B, STATS, VOTES = 0, 1024, 2048, 3072, 7168
ST0 = 8192
PAD = OPT['pad']
GOFF = 4096 * PAD
G_C, G_D, G_H = -GOFF, (2048 << PAD) - GOFF, 1024 << PAD
G_X = (0x20000 << PAD) | 0x2000
WSH = 1 - PAD

vL, vCons, vPubL, vPw, vPubG, vStP, vStC, vTagM, vStP2 = range(1, 10)
vXw, vQw, vHw, vOpR, vXopR, vConsG, vConsG0, vCs, vZero, vMw = range(10, 20)
trq, vTr, vHmask, vX, vCq, vCg, vMean, vRs = 20, 22, 23, 24, 25, 26, 27, 28
vMr, vF = 29, 30
vWQ, vK, vV, vWO, vW13, vW2 = 32, 48, 80, 112, 128, 144
wo0, wo1, f0, f1, vPre, vVo = 144, 145, 146, 147, 148, 149
T = 152
vC = T + 12
vA = 176
vD = 192
vP = 224
vSt, vSt4, vKeep = 232, 236, 238
vCl = 20
vDs, vSs = [240, 244], [248, 252]
NVGPR = 256
sW, sJ, sGam, sPr, sE, sC0, sCnt, sXcc, sTo = 28, 29, 30, 31, 32, 33, 34, 35, 36
sLb, sGb0, sGb1 = 38, 40, 14
sPc, sT1 = 42, 44
sCs, sMaskHi, sInv512, sEps, sNl2e = 50, 51, 52, 53, 54
sM0, sM1, sHi, sCl = 56, 42, 46, 44
sTag = 60

a = Asm()
stamp_regs = list(range(70, 102, 2))
stamps = []
nstamp = [0]
lbl = [0]
FAST = [False]


def v(n, cnt=1):
    return 'v%d' % n if cnt == 1 else 'v[%d:%d]' % (n, n + cnt - 1)


def s(n, cnt=1):
    return 's%d' % n if cnt == 1 else 's[%d:%d]' % (n, n + cnt - 1)


def stamp(name):
    nstamp[0] += 1
    if OPT.get('delay') == 3 and OPT.get('at', 1) == nstamp[0]:
        a('s_memrealtime s[100:101]')
        sys.stderr.write('delay anchored at ' + name + '\n')
    keep = {0: False, 1: name[:2] not in ('L1', 'x ') and name[0] not in 'Gz', 2: name[:2] == 'L1', 5: name[0] == 'G' or name[3:] in ('O pub', 'D pub', 'E3 ok', 'E5 ok') or name in ('L0 E1 ok', 'L0 S pub', 'L0 E2 ok'),
            6: False, 7: name[:2] in ('L1', 'x '), 8: name[:2] == 'z1' or name in ('L1 E1 ok', 'L1 S pub', 'L1 E2 ok', 'L1 O pub', 'L1 E5 ok', 'L1 Q pub')}[DIAG]
    if not (keep or DIAG and name == 'start'):
        return
    if name not in stamps:
        if len(stamps) >= len(stamp_regs):
            return
        stamps.append(name)
    r = stamp_regs[stamps.index(name)]
    if OPT['cnt'] and name != 'start':
        a('s_sub_u32 %s, 0x40000, %s' % (s(r), s(sTo)))
    else:
        a('%s %s' % ('s_memtime' if DIAG in (7, 8) and name != 'x rt0' else 's_memrealtime', s(r, 2)))


def f32(x):
    return '0x%08x' % struct.unpack('<I', struct.pack('<f', x))[0]


def newlabel(p):
    lbl[0] += 1
    return 'L_%s_%d' % (p, lbl[0])


def lgkm(n):
    a('s_waitcnt lgkmcnt(%d)' % (n if STAGE else 0))


def mfma(d, x, y, c=None):
    a('v_mfma_f32_16x16x32_bf16 %s, %s, %s, %s' % (v(d, 4), v(x, 4), v(y, 4), '0' if c is None else v(c, 4)))


def dpp(op, d, x, y, ctl, rm=0xf):
    a('%s_dpp %s, %s, %s %s row_mask:0x%x bank_mask:0xf' % (op, v(d), v(x), v(y), ctl, rm))


X1, X2 = 'quad_perm:[1,0,3,2]', 'quad_perm:[2,3,0,1]'


def lstore(op, addr, data, off):
    a('%s %s, %s, %s offset:%d%s' % (op, addr, data, s(sLb, 2), off, '' if FAST[0] and not OPT.get('allsc') else ' sc1'))


def gload(d, vo, b, im):
    a('global_load_dwordx4 %s, %s, %s offset:%d sc1' % (v(d, 4), v(vo), s(b, 2), im))


def tick():
    a('s_sub_u32 %s, %s, 1' % (s(sTo), s(sTo)))
    a('s_cbranch_scc1 L_end')


deferred = []


def flush_deferred(jump=True):
    if not deferred:
        return
    l = newlabel('skip')
    if jump:
        a('s_branch %s' % l)
    hist = a.hist
    while deferred:
        a.hist = []
        deferred.pop(0)()
    a.hist = hist
    a.label(l)


def poll(loads, check, spec, work=None, cnt=0, issued=False, backoff=0):
    top, ent = newlabel('poll'), newlabel('pent')
    if not issued:
        for x in loads:
            gload(*x)
    if work:
        work()

    def retry():
        a.label(top)
        tick()
        if backoff:
            a('s_sleep %d' % backoff)
        for x in loads:
            gload(*x)
        if cnt:
            a('s_waitcnt vmcnt(0)')
        if OPT['ool']:
            a('s_branch %s' % ent)
    if OPT['ool']:
        deferred.append(retry)
    else:
        a('s_branch %s' % ent)
        retry()
    a.label(ent)
    a('s_waitcnt vmcnt(%d)' % cnt)
    check()
    if spec:
        spec()
    a('s_cbranch_vccnz %s' % top)


def ring2(sets, issue, check, spec, cnt1, cnt0, first):
    top, ent, done = newlabel('ring'), newlabel('rent'), newlabel('rdone')

    def retry():
        a.label(top)
        tick()
        issue(sets[0])
        a('s_waitcnt vmcnt(%d)' % cnt1)
        check(sets[1])
        spec(sets[1])
        a('s_cbranch_vccz %s' % done)
        issue(sets[1])
        if first != cnt0:
            a('s_waitcnt vmcnt(%d)' % cnt0)
        if OPT['ool']:
            a('s_branch %s' % ent)
    if OPT['ool']:
        deferred.append(retry)
    else:
        a('s_branch %s' % ent)
        retry()
    a.label(ent)
    a('s_waitcnt vmcnt(%d)' % first)
    check(sets[0])
    spec(sets[0])
    a('s_cbranch_vccnz %s' % top)
    a.label(done)


def chk_byte(regs, tag):
    if len(regs) == 1:
        a('v_cmp_ne_u32_sdwa vcc, %s, %s src0_sel:BYTE_0 src1_sel:BYTE_0' % (v(regs[0]), s(tag)))
    else:
        a('v_bitop3_b32 %s, %s, %s, %s bitop3:0x7e' % (v(T + 23), v(regs[0]), v(regs[1]), s(tag)))
        a('v_cmp_ne_u32_sdwa vcc, %s, %s src0_sel:BYTE_0 src1_sel:DWORD' % (v(T + 23), v(vZero)))


def chk_stats(x, k):
    a('v_cmp_ne_u32 vcc, %s, %s' % (s(sTag + k), v(x + (2 if k % 3 == 1 else 1))))


def red_a(x, c):
    a('v_permlane32_swap_b32 %s, %s' % (v(x + 1), v(x + 3)))
    a('v_add_f32 %s, %s, %s' % (v(c + 1), v(x + 1), v(x + 3)))
    a('v_permlane32_swap_b32 %s, %s' % (v(x), v(x + 2)))
    a('v_add_f32 %s, %s, %s' % (v(c), v(x), v(x + 2)))


def red_b(c, out):
    a('v_permlane16_swap_b32 %s, %s' % (v(c), v(c + 1)))
    a('v_add_f32 %s, %s, %s' % (v(c), v(c), v(c + 1)))
    dpp('v_add_f32', out, c, c, 'row_ror:8')


def mask_tag(x):
    a('v_and_b32 %s, %s, %s' % (v(x), s(sMaskHi), v(x)))


def bf16r(dst, src):
    a('v_cvt_pk_bf16_f32 %s, %s, %s' % (v(dst), v(src), v(src)))
    a('v_and_b32 %s, 0xffff0000, %s' % (v(dst), v(dst)))


def allred(op, x, t, bits):
    for b in bits:
        if b < 4:
            dpp(op, x, x, x, {0: X1, 1: X2, 3: 'row_ror:8'}[b])
        else:
            a('v_mov_b32 %s, %s' % (v(t), v(x)))
            a('v_permlane%d_swap_b32 %s, %s' % (16 if b == 4 else 32, v(x), v(t)))
            a('%s %s, %s, %s' % (op, v(x), v(x), v(t)))


def set_tags(k):
    a('v_mov_b32 %s, %s' % (v(vSt + 2), s(sTag + k)))
    if k % 3 != 1:
        a('v_cndmask_b32 %s, %s, %s, %s' % (v(vSt4 + 1), v(vSt + 2), v(vSt + 3), s(sHi, 2)))


def ln_stats(k, addr=None):
    g = vSt4
    a('v_mul_f32 %s, %s, %s' % (v(T + 7), v(vX), v(vX)))
    a('v_permlane32_swap_b32 %s, %s' % (v(g), v(T + 7)))
    a('v_add_f32 %s, %s, %s' % (v(g), v(g), v(T + 7)))
    allred('v_add_f32', g, None, [0, 1])
    dpp('v_add_f32', g, g, g, 'row_bcast:15', 0xa)
    a('s_mov_b64 exec, %s' % s(sM1, 2))
    lstore('global_store_dwordx2', v(addr or vStP2), v(g, 2), 512 * (k & 1))
    a('s_mov_b64 exec, -1')


def ln_spec(x):
    a('v_permlane32_swap_b32 %s, %s' % (v(x), v(x + 2)))
    a('v_add_f32 %s, %s, %s' % (v(vC), v(x), v(x + 2)))


def ln_mean():
    c = vC
    allred('v_add_f32', c, c + 1, [4, 3, 0, 1])
    a('v_mul_f32 %s, %s, %s' % (v(c), s(sInv512), v(c)))
    a('v_mov_b32 %s, %s' % (v(c + 1), v(c)))
    a('v_permlane32_swap_b32 %s, %s' % (v(c), v(c + 1)))
    bf16r(vMean, c)


def ln_rstd_a():
    c = vC
    a('v_fma_f32 %s, -%s, %s, %s' % (v(c + 1), v(c), v(c), v(c + 1)))
    a('v_max_f32 %s, 0, %s' % (v(c + 1), v(c + 1)))
    bf16r(c + 1, c + 1)
    a('v_add_f32 %s, %s, %s' % (v(c + 1), s(sEps), v(c + 1)))
    bf16r(c + 1, c + 1)
    a('v_sqrt_f32 %s, %s' % (v(c + 1), v(c + 1)))


def ln_rstd_b(scale):
    c = vC
    bf16r(c + 1, c + 1)
    a('v_rcp_f32 %s, %s' % (v(vRs), v(c + 1)))
    if scale:
        a('v_mul_f32 %s, %s, %s' % (v(vCs), s(sCs), v(vRs)))


def stats_load(k, x=vSs[0]):
    gload(x, vStC, sLb, 512 * (k & 1))


def l_gather(k, spec, st_spec, chain, hook=None):
    buf = BUF_A if k % 2 == 0 else BUF_B

    def d_issue(x):
        gload(x, vCons, sLb, buf)
    rf = OPT['refresh'] and OPT['d0']

    def s_issue(x):
        stats_load(k, x)
        if rf:
            d_issue(vDs[0])
    if OPT['d0']:
        d_issue(vDs[0])
    if OPT['spipe']:
        stats_load(k, vSs[1])
        flush_deferred()
        ring2(vSs, s_issue, lambda x: chk_stats(x, k), st_spec, 2 if rf else 1, 3 if rf else 1, 2 + OPT['d0'])
    else:
        flush_deferred()
        poll([(vSs[0], vStC, sLb, 512 * (k & 1))], lambda: chk_stats(vSs[0], k), lambda: st_spec(vSs[0]), cnt=1 + OPT['d0'], issued=True)
    if k >= 3:
        stamp('x st%d' % k)
    if not OPT['d0']:
        d_issue(vDs[0])
        chain[0]()
        d_issue(vDs[1])
    else:
        d_issue(vDs[1])
        chain[0]()
    if hook:
        hook()
    for c in chain[1:]:
        c()
    ring2(vDs, d_issue, lambda x: chk_byte([x], sTag + k), spec, 1, 1, 1)


def x_gather(gi, imm, work=None, cnt=0):
    r = vP
    base = sGb0 if gi < 2 else sGb1

    def spec():
        a('v_pk_add_f32 %s, %s, %s' % (v(r + 2, 2), v(r + 2, 2), v(r + 6, 2)))
        a('v_add_f32 %s, %s, %s' % (v(r + 1), v(r + 1), v(r + 5)))
        mask_tag(r)
        mask_tag(r + 4)
        a('v_add_f32 %s, %s, %s' % (v(r), v(r), v(r + 4)))
        red_a(r, r)
    poll([(r, vConsG, base, imm), (r + 4, vConsG, base, imm + G_H)], lambda: chk_byte([r, r + 4], sTag + 6 + gi), spec, work=work, cnt=cnt, backoff=OPT.get('g%ds' % gi, 0))
    red_b(r, r)
    dpp('v_add_f32', r, r, r, 'row_ror:4')
    bf16r(r, r)
    a('v_add_f32 %s, %s, %s' % (v(r), v(r), v(vX)))
    a('v_cvt_pk_bf16_f32 %s, %s, %s' % (v(T), v(r), v(r)))


def x_to_lds(k):
    a('ds_write_b16 %s, %s offset:%d' % (v(vXw), v(T), XB))
    a('v_and_b32 %s, 0xffff0000, %s' % (v(vX), v(T)))
    a('v_and_b32 %s, 0xffff0000, %s' % (v(vSt4), v(T)))
    ln_stats(k)


def tr_pair(dst, addr, off, gstride):
    for g in range(2):
        a('ds_read_b64_tr_b16 %s, %s offset:%d' % (v(dst + 2 * g, 2), v(addr), off + g * gstride))


def proj(wreg, k, layer, wsrc=None, first=False, skip=None):
    rd = vXopR if layer == 0 else vOpR
    a('s_barrier')
    for kk in range(2):
        a('ds_read_b128 %s, %s offset:%d' % (v(vA + 4 * kk, 4), v(rd), XB + 64 * kk))
        if wsrc:
            for cg in range(2):
                ad, off, ks, gs = wsrc[cg]
                tr_pair(wreg + 8 * cg + 4 * kk, ad, off + kk * ks, gs)
    if skip:
        a('s_cbranch_scc1 %s' % skip)
    if not first and OPT['early'] == 1:
        stats_load(k)
    lgkm(7 if wsrc else 1)
    mfma(vD, vA, wreg)
    if wsrc:
        lgkm(5)
    mfma(vD + 4, vA, wreg + 8)
    if not first and OPT['early'] == 2:
        stats_load(k)
    lgkm(2 if wsrc else 0)
    mfma(vD, vA + 4, wreg + 4, vD)
    if wsrc:
        lgkm(0)
    mfma(vD + 4, vA + 4, wreg + 12, vD + 4)
    if not first and OPT['early'] == 0:
        stats_load(k)
    if layer == 1:
        a('s_mov_b32 exec_hi, 0')
    a('v_cndmask_b32 %s, %s, %s, %s' % (v(T), v(vD), v(vD + 4), s(sM0, 2)))
    a('v_bfi_b32 %s, %s, %s, %s' % (v(T), v(vTagM), s(sTag + k), v(T)))
    lstore('global_store_dword', v(vPubL), v(T), BUF_A if k % 2 == 0 else BUF_B)
    if layer == 1:
        a('s_mov_b32 exec_hi, -1')


def tr_reads(dst, addr, base, nk, kstride, gstride):
    for kk in range(nk):
        for g in range(2):
            a('ds_read_b64_tr_b16 %s, %s offset:%d' % (v(dst + 4 * kk + 2 * g, 2), v(addr), base + kk * kstride + g * gstride))


def gemv_publish_g(nk, wreg, src, gi, imm, tr=False, mid=None, post=None):
    for kk in range(nk):
        a('ds_read_b128 %s, %s offset:%d' % (v(vA + 4 * kk, 4), v(vOpR), src + 64 * kk))
        if tr:
            tr_pair(wreg + 4 * kk, vTr, 4096 * kk, 512)
    if mid:
        mid()
    for kk in range(nk):
        lgkm((nk - 1 - kk) * (3 if tr else 1))
        mfma(vD, vA + 4 * kk, wreg + 4 * kk, vD if kk else None)
    if post:
        post()
    if not PAD:
        a('s_mov_b32 exec_hi, 0')
    a('v_bfi_b32 %s, %s, %s, %s' % (v(T), v(vTagM), s(sTag + 6 + gi), v(vD)))
    st = 'global_store_dword %s, %s, %s offset:%d sc1' % (v(vPubG), v(T), s(sGb0 if gi < 2 else sGb1, 2), imm)
    if OPT['na'] and gi:
        a('s_mov_b32 exec_lo, s37')
        a(st)
        a('s_not_b32 exec_lo, s37')
        a(st)
        a('s_mov_b64 exec, -1')
    else:
        a(st)
        if not PAD:
            a('s_mov_b32 exec_hi, -1')


def g_pace(gi):
    flush_deferred()
    if OPT['na'] and gi:
        a('s_waitcnt vmcnt(1)')
        for i in range(OPT['nsl']):
            a('s_nop 7')
    else:
        a('s_waitcnt vmcnt(0)')
    if OPT.get('g%dd' % gi):
        a('s_sleep %d' % OPT['g%dd' % gi])
    stamp('G%d ack' % gi)


def probe_near():
    a('s_not_b32 s4, %s' % s(sE))
    a('s_xor_b32 s55, %s, 8192' % s(sPr))
    a('s_waitcnt lgkmcnt(0)')
    a('s_load_dword s4, s[26:27], %s' % s(sPr))
    a('s_load_dword s5, s[26:27], s55')
    a('s_lshl_b32 s59, %s, 2' % s(sJ))
    a('s_add_u32 s59, s59, %s' % s(sW))
    a('s_lshl_b32 s59, s59, 3')
    a('s_add_u32 s59, s59, %d' % VOTES)
    a('v_mov_b32 %s, s59' % v(T + 1))
    a('v_mov_b32 %s, %s' % (v(T + 3), s(sTag + 2)))
    a('s_waitcnt lgkmcnt(1)')
    a('s_memtime s[8:9]')
    a('s_cmp_eq_u32 s4, %s' % s(sE))
    a('s_cselect_b32 s6, %d, -1' % OPT['thr'])
    a('s_waitcnt lgkmcnt(0)')
    a('s_memtime s[10:11]')
    a('s_waitcnt lgkmcnt(0)')
    a('s_sub_u32 s7, s10, s8')
    a('s_cmp_gt_u32 s7, s6')
    a('s_cselect_b32 s6, 1, 0')
    if DIAG:
        a('s_mov_b32 s12, s7')
    a('v_mov_b32 %s, s6' % v(T + 2))
    a('s_mov_b64 exec, 1')
    lstore('global_store_dwordx2', v(T + 1), v(T + 2, 2), 0)
    a('s_mov_b64 exec, -1')


def count_votes():
    a('v_and_b32 %s, 31, %s' % (v(T + 4), v(vL)))
    a('v_lshlrev_b32 %s, 3, %s' % (v(T + 4), v(T + 4)))
    a('v_add_u32 %s, %d, %s' % (v(T + 4), VOTES, v(T + 4)))
    if OPT['vw'] and not OPT['vlate']:
        a('s_waitcnt vmcnt(0)')
    a('global_load_dwordx2 %s, %s, %s sc1' % (v(T + 2, 2), v(T + 4), s(sLb, 2)))
    a('s_lshr_b32 s55, %s, 1' % s(sW) if WSH else 's_and_b32 s55, %s, 1' % s(sW))
    a('s_xor_b32 s59, s55, 1')
    a('s_waitcnt vmcnt(0)')
    a('v_xor_b32 %s, %s, %s' % (v(T + 3), s(sTag + 2), v(T + 3)))
    a('v_xor_b32 %s, 1, %s' % (v(T + 2), v(T + 2)))
    a('v_or_b32 %s, %s, %s' % (v(T + 2), v(T + 2), v(T + 3)))
    a('v_cmp_eq_u32 vcc, 0, %s' % v(T + 2))
    a('s_and_b32 s4, vcc_lo, 0x%x' % (0x33333333 if WSH else 0x55555555))
    a('s_and_b32 s5, vcc_lo, 0x%x' % (0xcccccccc if WSH else 0xaaaaaaaa))
    a('s_bcnt1_i32_b32 s4, s4')
    a('s_bcnt1_i32_b32 s5, s5')
    if DIAG:
        a('s_lshl_b32 s13, s4, 8')
        a('s_add_u32 s13, s13, s5')
    a('s_cmp_ge_u32 s4, s5')
    a('s_cselect_b32 s55, s55, s59')
    if OPT['na']:
        a('s_cmp_eq_u32 s55, 0')
        a('s_cselect_b32 s37, 0xffff, %s' % s(sM0))
    a('s_mul_i32 s55, s55, 0x%x' % G_X)
    a('v_xor_b32 %s, s55, %s' % (v(vConsG), v(vConsG0)))


def flag_store(val):
    sk = newlabel('nofl')
    a('s_or_b32 s55, %s, %s' % (s(sJ), s(sW)))
    a('s_cbranch_scc1 %s' % sk)
    a('s_lshl_b32 s55, %s, 7' % s(sGam))
    a('s_add_u32 s55, s55, %d' % WS_F)
    a('v_lshl_add_u32 %s, %s, 2, s55' % (v(T + 21), v(vL)))
    a('v_mov_b32 %s, %s' % (v(T + 20), s(val)))
    a('s_mov_b32 exec_hi, 0')
    a('global_store_dword %s, %s, s[26:27] sc1' % (v(T + 21), v(T + 20)))
    a('s_mov_b32 exec_hi, -1')
    a.label(sk)


def flag_load():
    a('s_mov_b32 exec_hi, 0')
    a('global_load_dword %s, %s, s[26:27] sc1' % (v(T + 6), v(T + 5)))
    a('s_mov_b32 exec_hi, -1')


def flag_wait(cnt):
    top, ent = newlabel('fl'), newlabel('fle')
    a('s_branch %s' % ent)
    a.label(top)
    tick()
    flag_load()
    a('s_waitcnt vmcnt(0)')
    a.label(ent)
    a('s_waitcnt vmcnt(%d)' % cnt)
    a('v_cmp_ne_u32 vcc, %s, %s' % (s(sTag + 6), v(T + 6)))
    a('s_cmp_lg_u32 vcc_lo, 0')
    a('s_cbranch_scc1 %s' % top)


def clean_prep():
    a('v_and_b32 %s, 31, %s' % (v(T + 9), v(vL)))
    a('s_and_b32 s59, %s, 3' % s(sJ))
    a('s_lshl_b32 s59, s59, 7')
    a('s_add_u32 s59, s59, %d' % STATS)
    a('v_lshl_add_u32 %s, %s, 2, s59' % (v(T + 9), v(T + 9)))
    a('v_cndmask_b32 %s, %s, %s, %s' % (v(vCl), v(vPubL), v(T + 9), s(sHi, 2)))
    a('s_add_u32 s55, s59, %d' % (VOTES - STATS))
    a('s_add_u32 s59, s59, %d' % ST0)
    a('s_cmp_lt_u32 %s, 4' % s(sJ))
    a('s_cselect_b32 s59, s59, s55')
    a('v_and_b32 %s, 31, %s' % (v(T + 9), v(vL)))
    a('v_lshl_add_u32 %s, %s, 2, s59' % (v(T + 9), v(T + 9)))
    a('v_add_u32 %s, %d, %s' % (v(T + 10), BUF_X, v(vPubL)))
    a('v_cndmask_b32 %s, %s, %s, %s' % (v(vCl + 1), v(T + 10), v(T + 9), s(sHi, 2)))
    a('v_mov_b32 %s, %s' % (v(vCl + 2), s(sTag + 3)))
    a('s_cmp_lt_u32 %s, 6' % s(sJ))
    a('s_cselect_b32 %s, -1, 0' % s(sCl + 1))
    a('s_cmp_lt_u32 %s, 4' % s(sJ))
    a('s_cselect_b32 %s, -1, 0' % s(sCl))
    a('s_cmp_eq_u32 %s, 0' % s(sW))
    a('s_cselect_b32 %s, %s, 0' % (s(sCl), s(sCl)))
    a('s_cselect_b32 %s, %s, 0' % (s(sCl + 1), s(sCl + 1)))


def clean_x():
    a('s_mov_b32 exec_hi, %s' % s(sCl + 1))
    a('global_store_dword %s, %s, %s sc1' % (v(vCl + 1), v(vCl + 2), s(sLb, 2)))
    a('s_mov_b32 exec_hi, -1')


def clean_a():
    a('s_mov_b32 exec_hi, %s' % s(sCl))
    a('global_store_dword %s, %s, %s sc1' % (v(vCl), v(vCl + 2), s(sLb, 2)))
    a('s_mov_b32 exec_hi, -1')


def clean_b_prep():
    a('v_add_u32 %s, %d, %s' % (v(T + 9), 512, v(vCl)))
    a('v_add_u32 %s, %d, %s' % (v(T + 8), BUF_B, v(vCl)))
    a('v_cndmask_b32 %s, %s, %s, %s' % (v(T + 8), v(T + 8), v(T + 9), s(sHi, 2)))
    a('s_mov_b32 exec_lo, 0')
    a('s_mov_b32 exec_hi, %s' % s(sCl))
    sk = newlabel('nold')
    a('s_cbranch_execz %s' % sk)
    a('global_load_dword %s, %s, %s sc1' % (v(vKeep), v(T + 8), s(sLb, 2)))
    a.label(sk)
    a('s_mov_b64 exec, -1')


def clean_b():
    a('s_mov_b32 exec_hi, %s' % s(sCl))
    a('global_store_dword %s, %s, %s sc1' % (v(T + 8), v(vKeep), s(sLb, 2)))
    a('s_mov_b32 exec_hi, -1')


def page_break(force=False):
    if OPT['pages'] and (FAST[0] or force):
        l = newlabel('page')
        a('s_branch %s' % l)
        flush_deferred(False)
        a.raw('.p2align 12')
        a.label(l)


a.raw('''; One persistent launch, 256 workgroups = 32 groups (attention head / slice of the ffn columns) x 8 members.
; Weights and the K/V window are read once and stay in registers for both layers; workgroups hand over partial sums
; through d_ws in 64-byte tagged sectors (tag = epoch word found in d_ws + index of the hand-off).
; @launch grid=(256,1,1) block=(256,1,1) lds=%d
.amdgcn_target "amdgcn-amd-amdhsa--gfx950"
.text
.p2align 12
.globl %s_kernel
.p2align 8
.type %s_kernel,@function
%s_kernel:''' % (LDS_BYTES, NAME, NAME, NAME))
a('s_cmp_ge_u32 s2, 256')
a('s_cbranch_scc1 L_end')
a('s_load_dwordx16 s[4:19], s[0:1], 0')
a('s_load_dwordx8 s[20:27], s[0:1], 64')
stamp('start')
stamp('x rt0')
a('s_getpc_b64 %s' % s(sPc, 2))
a.label('L_pc')
a('v_lshlrev_b32 %s, 6, v0' % v(T))
a('v_min_u32 %s, L_fastend-L_pc-64, %s' % (v(T), v(T)))
a('global_load_dword %s, %s, %s' % (v(T + 22), v(T), s(sPc, 2)))
a('v_lshrrev_b32 %s, 6, v0' % v(T))
a('v_and_b32 %s, 63, v0' % v(vL))
a('v_readfirstlane_b32 %s, %s' % (s(sW), v(T)))
a('s_lshr_b32 s3, s2, 3')
a('s_and_b32 %s, s3, 7' % s(sJ))
a('s_lshr_b32 s3, s3, 3')
a('s_and_b32 s31, s2, 7')
a('s_lshl_b32 %s, s31, 2' % s(sGam))
a('s_add_u32 %s, %s, s3' % (s(sGam), s(sGam)))
u16, pos16, u8, pos8, l3, col16 = T + 1, T + 2, T + 3, T + 4, T + 5, T + 6
t0, t1, t2, t3 = T + 8, T + 9, T + 10, T + 11
k0 = T + 12


def pro_wq():
    a('v_lshrrev_b32 %s, 4, %s' % (v(u16), v(vL)))
    a('v_and_b32 %s, 15, %s' % (v(pos16), v(vL)))
    a('v_lshlrev_b32 %s, 1, %s' % (v(t2), v(u16)))
    a('v_xor_b32 %s, %s, %s' % (v(t2), v(t2), v(pos16)))
    a('v_lshlrev_b32 %s, 4, %s' % (v(t2), v(t2)))
    a('v_lshl_add_u32 %s, %s, 13, %s' % (v(t0), v(u16), v(t2)))
    a('v_xor_b32 %s, 0x80, %s' % (v(t1), v(t0)))
    a('v_add_u32 %s, %d, %s' % (v(t1), 2 * 31744, v(t1)))
    a('s_lshl_b32 s49, %s, 12' % s(sW))
    a('s_lshl_b32 s55, %s, 19' % s(sJ))
    a('s_lshl_b32 s56, %s, 17' % s(sW))
    a('s_add_u32 s55, s55, s56')
    a('s_lshl_b32 s56, %s, 8' % s(sGam))
    a('s_add_u32 s55, s55, s56')
    a('s_add_u32 m0, s49, %d' % WQ)


def pro_rest():
    a('v_and_b32 %s, 3, %s' % (v(l3), v(vL)))
    a('v_lshl_add_u32 %s, %s, 2, %s' % (v(col16), v(l3), v(u16)))
    a('s_lshl_b32 s48, %s, 5' % s(sW))
    a('v_lshl_add_u32 %s, %s, 1, s48' % (v(vXw), v(col16)))
    a('v_lshl_add_u32 %s, %s, 8, %s' % (v(vVo), v(u16), v(t2)))
    a('v_xor_b32 %s, 0x80, %s' % (v(vVo + 1), v(vVo)))
    a('v_xor_b32 %s, %s, %s' % (v(k0), v(u16), v(pos16)))
    a('v_lshlrev_b32 %s, 4, %s' % (v(k0), v(k0)))
    a('v_lshl_add_u32 %s, %s, 8, %s' % (v(k0), v(u16), v(k0)))
    for i in range(1, 4):
        a('v_xor_b32 %s, %d, %s' % (v(k0 + i), i << 6, v(k0)))
    a('s_lshl_b32 s48, %s, 7' % s(sJ))
    a('s_lshl_b32 s56, %s, 20' % s(sGam))
    a('s_lshl_b32 s58, %s, 15' % s(sJ))
    a('s_add_u32 s56, s56, s58')
    a('s_lshl_b32 s58, %s, 13' % s(sW))
    a('s_add_u32 s56, s56, s58')
    a('s_add_u32 s56, s56, %d' % (3072 * 256))


def pro_touch():
    a('v_lshl_add_u32 %s, %s, 4, s49' % (v(vCons), v(vL)))
    a('s_lshl_b32 s57, %s, 14' % s(sGam))
    a('s_add_u32 s57, s57, %d' % WS_L)
    a('s_add_u32 s3, s48, s57')
    a('s_add_u32 s59, s3, s49')
    a('v_lshl_add_u32 %s, %s, 10, s59' % (v(t3), v(vL)))
    a('v_cmp_lt_u32 vcc, 2, %s' % v(vL))
    a('s_add_u32 s3, s3, %d' % STATS)
    a('v_mov_b32 %s, s3' % v(T + 17))
    a('v_cndmask_b32 %s, %s, %s, vcc' % (v(t3), v(t3), v(T + 17)))
    a('s_add_u32 s3, s57, %d' % VOTES)
    a('v_writelane_b32 %s, s3, 3' % v(t3))
    a('s_add_u32 s3, s3, 128')
    a('v_writelane_b32 %s, s3, 4' % v(t3))
    a('s_and_b32 s3, s48, 0x180')
    a('s_add_u32 s3, s3, s57')
    a('s_add_u32 s3, s3, %d' % (STATS + ST0))
    a('v_writelane_b32 %s, s3, 5' % v(t3))


PRO = OPT.get('pro', 2)
pro_wq()
if PRO < 2:
    pro_rest()
if PRO < 1:
    pro_touch()
stamp('pre ka')
a('s_waitcnt lgkmcnt(0)')
stamp('ka')
a('s_add_u32 s10, s10, s55')
a('s_addc_u32 s11, s11, 0')
a('global_load_lds_dwordx4 %s, s[10:11] offset:0%s' % (v(t0), NT))
a('v_add_u32 %s, 31744, %s' % (v(t0), v(t0)))
a('s_load_dword %s, s[26:27], 0' % s(sE))
a('global_load_lds_dwordx4 %s, s[10:11] offset:1024%s' % (v(t0), NT))
a('global_load_lds_dwordx4 %s, s[10:11] offset:2048%s' % (v(t1), NT))
a('v_add_u32 %s, 31744, %s' % (v(t1), v(t1)))
a('global_load_lds_dwordx4 %s, s[10:11] offset:3072%s' % (v(t1), NT))
if PRO >= 2:
    pro_rest()
a('s_add_u32 s4, s4, s48')
a('s_addc_u32 s5, s5, 0')
a('global_load_ushort %s, %s, s[4:5]' % (v(vX), v(vXw)))
a('s_add_u32 s6, s6, s56')
a('s_addc_u32 s7, s7, 0')
if PRO < 1:
    a('global_load_dword %s, %s, s[26:27]' % (v(T + 22), v(t3)))
a('s_add_u32 m0, s58, %d' % KI)
stamp('wq iss')
a('s_barrier')
for i in range(4):
    a('global_load_lds_dwordx4 %s, s[6:7] offset:%d%s' % (v(k0 + i), 1024 * i, NT))


def k_second():
    a('s_add_u32 m0, s58, %d' % (KI + 4096))
    a('s_add_u32 s6, s6, 4096')
    a('s_addc_u32 s7, s7, 0')
    for i in range(4):
        a('global_load_lds_dwordx4 %s, s[6:7] offset:%d%s' % (v(k0 + i), 1024 * i, NT))


if not OPT['ksplit']:
    k_second()
if PRO >= 1:
    pro_touch()
    a('global_load_dword %s, %s, s[26:27]' % (v(T + 22), v(t3)))
stamp('issued')
a('s_add_u32 s8, s8, s56')
a('s_addc_u32 s9, s9, 0')
a('s_add_u32 %s, s26, s57' % s(sLb))
a('s_addc_u32 %s, s27, 0' % s(sLb + 1))
a('s_lshl_b32 s55, %s, %d' % (s(sJ), 14 + PAD))
a('s_add_u32 s55, s55, %d' % (WS_G + GOFF))
a('s_add_u32 %s, s26, s55' % s(sGb0))
a('s_addc_u32 %s, s27, 0' % s(sGb0 + 1))
a('s_add_u32 %s, %s, 0x%x' % (s(sGb1), s(sGb0), 0x40000 << PAD))
a('s_addc_u32 %s, %s, 0' % (s(sGb1 + 1), s(sGb0 + 1)))
a('s_getreg_b32 %s, hwreg(HW_REG_XCC_ID, 0, 4)' % s(sXcc))
a('s_lshl_b32 %s, s2, 2' % s(sPr))
a('s_add_u32 %s, %s, %s' % (s(sPr), s(sPr), s(sW)))
a('s_and_b32 s55, %s, 63' % s(sPr))
a('s_lshl_b32 s55, s55, 7')
a('s_lshr_b32 %s, %s, 6' % (s(sPr), s(sPr)))
a('s_lshl_b32 %s, %s, 14' % (s(sPr), s(sPr)))
a('s_add_u32 %s, %s, s55' % (s(sPr), s(sPr)))
a('s_add_u32 %s, %s, %d' % (s(sPr), s(sPr), WS_P))
a('s_lshl_b32 s55, s49, %d' % PAD)
a('s_and_b32 s55, s55, 8192')
a('s_add_u32 %s, %s, s55' % (s(sPr), s(sPr)))
a('s_mov_b32 %s, 0x40000' % s(sTo))
a('s_mov_b32 %s, %s' % (s(sCs), f32(math.log2(math.e) / math.sqrt(128.0))))
a('s_mov_b32 %s, 0xffffff00' % s(sMaskHi))
a('s_mov_b32 %s, %s' % (s(sInv512), f32(1.0 / 512)))
a('s_mov_b32 %s, %s' % (s(sEps), f32(1e-5)))
a('s_mov_b32 %s, %s' % (s(sNl2e), f32(-math.log2(math.e))))
a('s_mov_b32 %s, 0xffff0000' % s(sM0))
a('s_mov_b32 %s, 0xffff0000' % s(sM0 + 1))
a('s_mov_b32 %s, 0x10000' % s(sM1))
a('s_mov_b32 %s, 0x10000' % s(sM1 + 1))
a('s_mov_b32 %s, 0' % s(sHi))
a('s_mov_b32 %s, -1' % s(sHi + 1))
a('s_mul_i32 %s, %s, 43' % (s(sC0), s(sGam)))
a('s_add_u32 %s, %s, 43' % (s(sCnt), s(sC0)))
a('s_lshr_b32 %s, %s, 3' % (s(sC0), s(sC0)))
a('s_lshr_b32 %s, %s, 3' % (s(sCnt), s(sCnt)))
a('s_sub_u32 %s, %s, %s' % (s(sCnt), s(sCnt), s(sC0)))
a('s_lshl_b32 %s, %s, 3' % (s(sCnt), s(sCnt)))
a('v_mov_b32 %s, 0' % v(vZero))
a('v_lshrrev_b32 %s, 3, %s' % (v(u8), v(vL)))
a('v_and_b32 %s, 7, %s' % (v(pos8), v(vL)))
a('s_add_u32 s55, s49, s48')
a('v_and_b32 %s, 31, %s' % (v(t0), v(vL)))
a('v_lshl_add_u32 %s, %s, 2, s55' % (v(vPubL), v(t0)))
a('v_lshrrev_b32 %s, 5, %s' % (v(t3), v(vL)))
a('v_lshl_add_u32 %s, %s, 10, %s' % (v(vPubL), v(t3), v(vPubL)))
a('s_lshl_b32 s55, %s, 6' % s(sW))
a('v_lshl_add_u32 %s, %s, 1, s55' % (v(vPw), v(t0)))
a('v_lshl_add_u32 %s, %s, 2, %s' % (v(t1), v(pos8), v(u16)))
a('v_lshl_add_u32 %s, %s, 1, s55' % (v(vQw), v(t1)))
a('s_lshl_b32 s55, %s, 6' % s(sGam))
a('s_add_u32 s55, s55, s49')
if PAD:
    a('s_lshl_b32 s55, s55, 1')
a('v_lshl_add_u32 %s, %s, 2, s55' % (v(vPubG), v(pos16)))
if PAD:
    a('v_lshl_add_u32 %s, %s, 6, %s' % (v(vPubG), v(t3), v(vPubG)))
a('v_and_b32 %s, 1, %s' % (v(t2), v(u16)))
a('v_mul_u32_u24 %s, 0x%x, %s' % (v(t2), G_X, v(t2)))
a('v_xor_b32 %s, %s, %s' % (v(vPubG), v(vPubG), v(t2)))
a('v_lshl_add_u32 %s, %s, %d, s55' % (v(vPre), v(pos8), 3 + PAD))
a('v_xor_b32 %s, %s, %s' % (v(vPre), v(vPre), v(t2)))
a('v_and_b32 %s, 1, %s' % (v(t2), v(u8)))
a('v_lshl_add_u32 %s, %s, %d, %s' % (v(vPre), v(t2), 11 + PAD, v(vPre)))
a('v_lshl_add_u32 %s, %s, %d, %s' % (v(vPre), v(t3), 18 + PAD, v(vPre)))
a('s_lshl_b32 s55, %s, 2' % s(sJ))
a('s_add_u32 s55, s55, %s' % s(sW))
a('s_lshl_b32 s55, s55, 4')
a('s_add_u32 s55, s55, %d' % STATS)
a('v_mov_b32 %s, s55' % v(vStP))
a('v_lshl_add_u32 %s, %s, 3, s55' % (v(vStP2), v(t3)))
a('v_lshlrev_b32 %s, 4, %s' % (v(t1), v(l3)))
a('v_lshl_add_u32 %s, %s, 6, %s' % (v(t1), v(u8), v(t1)))
a('v_add_u32 %s, %d, %s' % (v(vStC), STATS, v(t1)))
a('v_mov_b32 %s, 0xff' % v(t2))
a('v_cmp_eq_u32 vcc, 0, %s' % v(l3))
a('v_lshlrev_b32 %s, 4, %s' % (v(vOpR), v(u16)))
a('v_and_b32 %s, 8, %s' % (v(t1), v(vL)))
a('v_cndmask_b32 %s, 0, %s, vcc' % (v(vTagM), v(t2)))
a('v_lshl_add_u32 %s, %s, 4, %s' % (v(vXopR), v(t1), v(vOpR)))
a('v_and_b32 %s, 4, %s' % (v(t1), v(vL)))
a('v_cmp_eq_u32 vcc, 0, %s' % v(t1))
a('v_add_u32 %s, %d, %s' % (v(t1), HB, v(vXw)))
a('v_mov_b32 %s, %d' % (v(t2), DUMMY))
a('v_cndmask_b32 %s, %s, %s, vcc' % (v(vHw), v(t2), v(t1)))
a('v_lshrrev_b32 %s, 1, %s' % (v(t1), v(vXw)))
a('v_cmp_gt_u32 vcc, %s, %s' % (s(sCnt), v(t1)))
a('s_lshl_b32 s55, %s, 2' % s(sW))
a('v_mov_b32 %s, s55' % v(vMw))
a('v_lshlrev_b32 %s, 2, %s' % (v(vMr), v(l3)))
a('v_cndmask_b32 %s, 0, -1, vcc' % v(vHmask))
a('v_lshlrev_b32 %s, 2, %s' % (v(t0), v(t0)))
a('v_mov_b32 %s, 0x3f803f80' % v(t1))
a('ds_write_b32 %s, %s offset:%d' % (v(t0), v(t1), ONES))
a('v_lshlrev_b32 %s, 2, %s' % (v(t0), v(pos8)))
a('ds_write_b32 %s, %s offset:%d' % (v(t0), v(vZero), HB + 96))
if PAD:
    a('v_lshrrev_b32 %s, 2, %s' % (v(t1), v(vL)))
    a('v_lshlrev_b32 %s, 4, %s' % (v(t2), v(l3)))
    a('v_lshl_add_u32 %s, %s, 7, %s' % (v(t1), v(t1), v(t2)))
    a('s_lshl_b32 s59, s49, 1')
    a('v_add_u32 %s, s59, %s' % (v(vConsG), v(t1)))
else:
    a('v_mov_b32 %s, %s' % (v(vConsG), v(vCons)))
a('v_mov_b32 %s, %s' % (v(vConsG0), v(vConsG)))
a('v_mov_b32 %s, %s' % (v(vSt + 3), s(sXcc)))
r_ = T + 16
a('v_lshrrev_b32 %s, 2, %s' % (v(r_), v(pos16)))
a('v_and_b32 %s, 1, %s' % (v(t0), v(u16)))
a('v_lshl_add_u32 %s, %s, 2, %s' % (v(t1), v(t0), v(r_)))
a('v_lshlrev_b32 %s, 1, %s' % (v(t1), v(t1)))
a('v_xor_b32 %s, s55, %s' % (v(t1), v(t1)))
a('v_lshlrev_b32 %s, 4, %s' % (v(t1), v(t1)))
a('v_lshl_add_u32 %s, %s, 3, %s' % (v(t1), v(l3), v(t1)))
a('v_lshl_add_u32 %s, %s, 3, %s' % (v(t2), v(u16), v(r_)))
a('v_lshl_add_u32 %s, %s, 8, %s' % (v(trq), v(t2), v(t1)))
a('v_xor_b32 %s, 32, %s' % (v(trq + 1), v(trq)))
a('v_lshrrev_b32 %s, 1, %s' % (v(t1), v(r_)))
a('v_lshl_add_u32 %s, %s, 1, %s' % (v(t1), v(t0), v(t1)))
a('v_xor_b32 %s, %s, %s' % (v(t1), s(sW), v(t1)))
a('v_lshlrev_b32 %s, 5, %s' % (v(t1), v(t1)))
a('v_lshl_add_u32 %s, %s, 3, %s' % (v(t1), v(l3), v(t1)))
a('v_lshl_add_u32 %s, %s, 7, %s' % (v(vTr), v(t2), v(t1)))
a('v_add_u32 %s, %d, %s' % (v(vTr), WO, v(vTr)))
a('v_and_b32 %s, 2, %s' % (v(t0), v(u8)))
a('v_xor_b32 %s, %s, %s' % (v(t0), v(t0), v(pos8)))
a('v_lshlrev_b32 %s, 4, %s' % (v(t1), v(t0)))
a('v_lshl_add_u32 %s, %s, 10, %s' % (v(wo0), v(u8), v(t1)))
a('v_xor_b32 %s, 64, %s' % (v(wo1), v(wo0)))
a('v_add_u32 %s, 7168, %s' % (v(wo1), v(wo1)))
a('v_mul_u32_u24 %s, 2752, %s' % (v(t2), v(u8)))
a('v_min_u32 %s, 5, %s' % (v(t1), v(t0)))
a('v_lshl_add_u32 %s, %s, 4, %s' % (v(f0), v(t1), v(t2)))
a('v_xor_b32 %s, 4, %s' % (v(t0), v(t0)))
a('v_min_u32 %s, 5, %s' % (v(t1), v(t0)))
a('v_lshl_add_u32 %s, %s, 4, %s' % (v(f1), v(t1), v(t2)))
a('v_add_u32 %s, %d, %s' % (v(f1), 8 * 2752 - 1024, v(f1)))
a('s_lshl_b32 s55, %s, 17' % s(sGam))
a('s_lshl_b32 s59, %s, 15' % s(sW))
a('s_add_u32 s55, s55, s59')
a('s_add_u32 s55, s55, s48')
a('s_add_u32 s12, s12, s55')
a('s_addc_u32 s13, s13, 0')
a('s_lshl_b32 s55, %s, 2' % s(sJ))
a('s_add_u32 s55, s55, %s' % s(sW))
a('s_mul_i32 s55, s55, %d' % (16 * 2752))
a('s_lshl_b32 s59, %s, 4' % s(sC0))
a('s_add_u32 s55, s55, s59')
a('s_add_u32 s16, s16, s55')
a('s_addc_u32 s17, s17, 0')
a('s_add_u32 s18, s18, s55')
a('s_addc_u32 s19, s19, 0')
a('s_lshl_b32 s55, %s, 13' % s(sC0))
a('s_min_u32 s59, %s, 2' % s(sW))
a('s_lshl_b32 s59, s59, 14')
a('s_add_u32 s55, s55, s59')
a('s_add_u32 s55, s55, s48')
a('s_add_u32 s20, s20, s55')
a('s_addc_u32 s21, s21, 0')
a('s_add_u32 s22, s22, s48')
a('s_addc_u32 s23, s23, 0')
if OPT['ksplit']:
    k_second()
a('s_add_u32 s6, s8, 4096')
a('s_addc_u32 s7, s9, 0')
a('s_waitcnt lgkmcnt(0)')
for k in range(10):
    a('s_add_u32 %s, %s, %d' % (s(sTag + k), s(sE), k + 1))


def issue_v(lo, hi):
    for i in range(lo, hi):
        if i == lo or i == 4:
            a('s_add_u32 m0, s58, %d' % (VI + 4096 * (i >> 2)))
            a('s_nop 0')
        a('global_load_lds_dwordx4 %s, %s offset:%d%s' % (v(vVo + ((i >> 1) & 1)), 's[6:7]' if i >= 4 else 's[8:9]', 1024 * (i & 3), NT))


def issue_wo():
    a('s_add_u32 m0, s49, %d' % WO)
    a('v_add_u32 %s, %d, %s' % (v(T + 20), 2 * 7168, v(wo0)))
    a('global_load_lds_dwordx4 %s, s[12:13] offset:0%s' % (v(wo0), NT))
    a('global_load_lds_dwordx4 %s, s[12:13] offset:1024%s' % (v(wo1), NT))
    a('global_load_lds_dwordx4 %s, s[12:13] offset:2048%s' % (v(T + 20), NT))
    a('v_add_u32 %s, %d, %s' % (v(T + 20), 2 * 7168, v(wo1)))
    a('global_load_lds_dwordx4 %s, s[12:13] offset:3072%s' % (v(T + 20), NT))


def issue_w13(lo, hi):
    for i in range(lo, hi):
        if i == lo or i == 2:
            a('s_lshl_b32 s59, %s, 11' % s(sW))
            a('s_add_u32 m0, s59, %d' % (W1 if i < 2 else W3))
            a('s_nop 0')
        a('global_load_lds_dwordx4 %s, s[%d:%d] offset:%d%s' % (v(f0 + (i & 1)), 16 + (i & 2), 17 + (i & 2), 1024 * (i & 1), NT))


def issue_w2():
    a('s_min_u32 s59, %s, 2' % s(sW))
    a('s_lshl_b32 s59, s59, 11')
    a('s_add_u32 m0, s59, %d' % W2)
    a('s_nop 0')
    a('global_load_lds_dwordx4 %s, s[20:21] offset:0%s' % (v(wo0), NT))
    a('global_load_lds_dwordx4 %s, s[20:21] offset:1024%s' % (v(wo1), NT))


r = vP
FE, KW, WOL = OPT['fe'], OPT['kw'], OPT['wol']
NPRE = 1 + OPT['probe']
NVA = OPT['nva']
NVB = 8 - NVA
NLATE = 0 if WOL else 4 + FE + 2 * OPT['w2e']


WOETC = []


def front():
    a('; ---- layer 0: x slice, query projection partials')
    set_tags(0)
    a('v_add_u32 %s, 0x%x, %s' % (v(T + 12), WS_L2D, v(vStP2)))
    a('v_add_u32 %s, 0x%x, %s' % (v(T + 13), WS_L2D, v(vPubL)))
    a('v_add_u32 %s, 0x%x, %s' % (v(T + 14), ST0, v(vStP2)))
    stamp('consts')
    a('s_waitcnt vmcnt(9)')
    stamp('wq landed')
    a('ds_write_b16 %s, %s offset:%d' % (v(vXw), v(vX), XB))
    issue_v(0, OPT['vq'])
    a('v_lshlrev_b32 %s, 16, %s' % (v(vSt4), v(vX)))
    a('v_lshlrev_b32 %s, 16, %s' % (v(vX), v(vX)))
    FAST[0] = True
    ln_stats(0, T + 14)
    a('s_waitcnt lgkmcnt(0)')

    proj(vWQ, 0, 0, wsrc=[(trq, WQ, 8192, 1024), (trq + 1, WQ, 8192, 1024)], first=True)
    FAST[0] = False
    stamp('L0 Q pub')
    if OPT.get('te'):
        h = OPT.get('th', 4)
        issue_v(OPT['vq'], h)
        sk = newlabel('noth')
        a('s_cmp_ge_u32 %s, 4' % s(sXcc))
        a('s_cbranch_scc1 %s' % sk)
        a('s_waitcnt vmcnt(%d)' % max(8 - OPT['te'] + (PRO >= 1) + 2 + h, 0))
        a.label(sk)
        issue_v(h, NVA)
    else:
        issue_v(OPT['vq'], NVA)
    lstore('global_store_dword', v(T + 13), v(T), BUF_A)
    a('s_mov_b64 exec, %s' % s(sM1, 2))
    lstore('global_store_dwordx2', v(T + 12), v(vSt4, 2), 0)
    a('s_mov_b64 exec, -1')
    a('v_mov_b32 %s, %s' % (v(T + 16), s(sE)))
    a('v_mov_b32 %s, %s' % (v(T + 17), s(sE)))
    if PAD:
        a('v_mov_b32 %s, %s' % (v(T + 18), s(sE)))
        a('v_mov_b32 %s, %s' % (v(T + 19), s(sE)))
    a('global_store_dwordx%d %s, %s, %s offset:%d sc1' % (2 << PAD, v(vPre), v(T + 16, 2 << PAD), s(sGb0, 2), -GOFF))
    if OPT['probe']:
        a('v_and_b32 %s, 31, %s' % (v(T + 18), v(vL)))
        a('v_lshl_add_u32 %s, %s, 2, %s' % (v(T + 18), v(T + 18), s(sPr)))
        a('v_lshrrev_b32 %s, 5, %s' % (v(T + 19), v(vL)))
        a('v_lshlrev_b32 %s, 13, %s' % (v(T + 19), v(T + 19)))
        a('v_xor_b32 %s, %s, %s' % (v(T + 18), v(T + 19), v(T + 18)))
        a('global_store_dword %s, %s, s[26:27] sc1' % (v(T + 18), v(T + 16)))
    a('; ---- layer 0: gather q')
    a('v_xor_b32 %s, %s, %s' % (v(t0), v(u16), v(pos16)))
    a('v_lshlrev_b32 %s, 4, %s' % (v(t0), v(t0)))
    a('v_lshl_add_u32 %s, %s, 8, %s' % (v(t0), v(pos16), v(t0)))
    a('s_add_u32 s55, s58, %d' % KI)
    a('v_add_u32 %s, s55, %s' % (v(t0), v(t0)))
    for kk in range(1, 4):
        a('v_xor_b32 %s, %d, %s' % (v(t0 + kk), kk << 6, v(t0)))
    alt, both, alts, boths = T + 13, T + 14, T + 15, T + 21
    a('v_mov_b32 %s, %s' % (v(alt), v(vCons)))
    a('v_lshlrev_b32 %s, 1, %s' % (v(both), v(vCons)))
    a('v_add_u32 %s, 0x%x, %s' % (v(both), WS_L2D, v(both)))
    a('v_add_u32 %s, 0x%x, %s' % (v(alts), ST0, v(vStC)))
    a('v_lshlrev_b32 %s, 1, %s' % (v(boths), v(vStC)))
    a('v_add_u32 %s, 0x%x, %s' % (v(boths), WS_L2D + ST0, v(boths)))
    page_break(True)
    behind_k = 2 + NVA + 2 + NPRE + (PRO >= 1)
    a('s_waitcnt vmcnt(%d)' % (8 - KW + behind_k))
    stamp('K part')
    loads = [(vSs[0], alts, sLb, 0), (r, alt, sLb, BUF_A), (r + 4, alt, sLb, BUF_X)]
    for x in loads:
        gload(*x)
    issue_v(NVA, 8)

    def wo_etc():
        issue_wo()
        if OPT['w2e']:
            issue_w2()
        issue_w13(0, FE)
    if not WOL:
        wo_etc()
    a('s_waitcnt vmcnt(%d)' % (behind_k + 3 + NVB + NLATE))
    stamp('K landed')
    for g in range(2):
        for kk in range(4):
            a('ds_read_b128 %s, %s offset:%d' % (v(vK + 16 * g + 4 * kk, 4), v(t0 + kk), 4096 * g))
    a('s_branch L_e1ent')
    a.label('L_e1top')
    tick()
    a('v_sub_u32 %s, %s, %s' % (v(alt), v(both), v(alt)))
    a('v_sub_u32 %s, %s, %s' % (v(alts), v(boths), v(alts)))
    for x in loads:
        gload(*x)
    if NLATE + NVB:
        a('s_waitcnt vmcnt(0)')
    a.label('L_e1ent')
    a('s_waitcnt vmcnt(%d)' % (NLATE + NVB))
    a('v_bitop3_b32 %s, %s, %s, %s bitop3:0x7e' % (v(T + 23), v(r), v(r + 4), s(sTag)))
    a('v_cmp_ne_u32 %s, %s, %s' % (s(sT1, 2), s(sTag), v(vSs[0] + 1)))
    a('v_cmp_ne_u32_sdwa vcc, %s, %s src0_sel:BYTE_0 src1_sel:DWORD' % (v(T + 23), v(vZero)))
    a('s_or_b64 vcc, vcc, %s' % s(sT1, 2))
    a('s_cbranch_vccnz L_e1top')
    stamp('L0 E1 ok')
    if OPT['fl']:
        flag_store(sE)
    if WOL and OPT['wopos'] == 0:
        wo_etc()
    WOETC.append(wo_etc)
    a('v_cmp_ne_u32 vcc, %s, %s' % (s(sXcc), v(vSs[0] + 3)))
    c, x, y = vC, vSs[0], r + 4
    ln_spec(x)
    mask_tag(y)
    a('v_mov_b32 %s, %s' % (v(c + 1), v(c)))
    a('v_permlane32_swap_b32 %s, %s' % (v(y + 1), v(y + 3)))
    mask_tag(r)
    a('v_permlane16_swap_b32 %s, %s' % (v(c), v(c + 1)))
    a('v_add_f32 %s, %s, %s' % (v(c), v(c), v(c + 1)))
    a('v_add_f32 %s, %s, %s' % (v(y + 1), v(y + 1), v(y + 3)))
    a('v_permlane32_swap_b32 %s, %s' % (v(y), v(y + 2)))
    dpp('v_add_f32', c, c, c, 'row_ror:8')
    a('v_add_f32 %s, %s, %s' % (v(y), v(y), v(y + 2)))
    a('v_permlane32_swap_b32 %s, %s' % (v(r + 1), v(r + 3)))
    dpp('v_add_f32', c, c, c, X1)
    a('v_add_f32 %s, %s, %s' % (v(r + 1), v(r + 1), v(r + 3)))
    a('v_permlane16_swap_b32 %s, %s' % (v(y), v(y + 1)))
    dpp('v_add_f32', c, c, c, X2)
    a('v_add_f32 %s, %s, %s' % (v(y), v(y), v(y + 1)))
    a('v_mul_f32 %s, %s, %s' % (v(c), s(sInv512), v(c)))
    a('v_mov_b32 %s, %s' % (v(c + 1), v(c)))
    a('v_permlane32_swap_b32 %s, %s' % (v(r), v(r + 2)))
    dpp('v_add_f32', vCq, y, y, 'row_ror:8')
    a('v_permlane32_swap_b32 %s, %s' % (v(c), v(c + 1)))
    a('v_add_f32 %s, %s, %s' % (v(r), v(r), v(r + 2)))
    bf16r(vMean, c)
    if OPT['fast']:
        a('s_cbranch_vccnz L_slowtail')


def CLEAN():
    return OPT['clean'] if FAST[0] else 0


def tail():
    for layer in range(2):
        pre = 'L%d' % layer
        k1, k2, k4 = 3 * layer, 3 * layer + 1, 3 * layer + 2

        def spec(x):
            mask_tag(x)
            red_a(x, r)
        if layer == 1:
            a('; ---- layer 1: x slice, query projection partials')
            set_tags(k1)
            page_break()
            if OPT['probe'] and OPT['vlate']:
                count_votes()
            if CLEAN():
                clean_prep()
            g_pace(1)
            x_gather(1, G_D)
            stamp(pre + ' E5 ok')
            x_to_lds(k1)
            a('s_waitcnt lgkmcnt(0)')
            proj(vWQ, k1, layer)
            stamp(pre + ' Q pub')
            a('; ---- layer 1: gather q')
            l_gather(k1, spec, ln_spec, [ln_mean])
            stamp(pre + ' E1 ok')
        red_b(r, r)
        a('v_fma_f32 %s, -%s, %s, %s' % (v(r), v(vMean), v(vCq), v(r)))
        a('v_cvt_pk_bf16_f32 %s, %s, %s' % (v(r), v(r), v(r)))
        a('ds_write_b16 %s, %s offset:%d' % (v(vQw), v(r), QB))
        if layer == 1 and CLEAN() & 1 and not OPT['cend'] & 1:
            clean_x()
        ln_rstd_a()
        if layer == 0 and WOL and OPT['wopos'] == 1:
            WOETC[0]()
        a('s_waitcnt lgkmcnt(0)')
        stamp('z%d qw' % layer)
        a('s_barrier')
        stamp('z%d qb' % layer)
        a('; ---- layer %d: attention over this member\'s 128 keys' % layer)
        for kk in range(4):
            a('ds_read_b128 %s, %s offset:%d' % (v(vA + 4 * kk, 4), v(vOpR), QB + 64 * kk))
        ln_rstd_b(True)
        set_tags(k2)
        for kk in range(4):
            lgkm(3 - kk)
            for g in range(2):
                mfma(vD + 4 * g, vA + 4 * kk, vK + 16 * g + 4 * kk, vD + 4 * g if kk else None)
        stamp('z%d qk' % layer)
        if layer == 0:
            if WOL and OPT['wopos'] == 2:
                WOETC[0]()
            if NVB:
                a('s_waitcnt vmcnt(%d)' % (4 + FE + 2 * OPT['w2e']))
                a('s_barrier')
            tr_reads(vV, trq, VI, 4, 8192, 1024)
        sg = vSt
        mx, e0 = T, T + 1
        a('v_max_f32 %s, %s, %s' % (v(mx), v(vD), v(vD + 4)))
        a('v_cndmask_b32 %s, %s, %s, %s' % (v(e0), v(vD), v(vD + 4), s(sM0, 2)))
        for ro in (8, 4, 2, 1):
            dpp('v_max_f32', mx, mx, mx, 'row_ror:%d' % ro)
        a('v_mul_f32 %s, %s, %s' % (v(sg), v(vCs), v(mx)))
        a('v_fma_f32 %s, %s, %s, -%s' % (v(e0), v(e0), v(vCs), v(sg)))
        a('v_exp_f32 %s, %s' % (v(sg + 1), v(e0)))
        stamp('z%d ex' % layer)
        a('ds_write_b32 %s, %s offset:%d' % (v(vMw), v(sg), MB))
        a('v_cvt_pk_bf16_f32 %s, %s, %s' % (v(e0), v(sg + 1), v(sg + 1)))
        a('ds_write_b16 %s, %s offset:%d' % (v(vPw), v(e0), PB))
        if layer == 0:
            tr_reads(vV + 16, trq + 1, VI, 4, 8192, 1024)
        for ro in (8, 4, 2):
            dpp('v_add_f32', sg + 1, sg + 1, sg + 1, 'row_ror:%d' % ro)
        a('s_waitcnt lgkmcnt(0)')
        stamp('z%d pw' % layer)
        a('s_barrier')
        stamp('z%d pb' % layer)
        mm = T + 4
        a('ds_read_b32 %s, %s offset:%d' % (v(mm), v(vMr), MB))
        for kk in range(4):
            a('ds_read_b128 %s, %s offset:%d' % (v(vA + 4 * kk, 4), v(vOpR), PB + 64 * kk))
        dpp('v_add_f32', sg + 1, sg + 1, sg + 1, 'row_ror:1')
        dpp('v_add_f32', sg + 1, sg + 1, sg + 1, 'row_bcast:15', 0xa)
        a('s_mov_b64 exec, 0x10000')
        lstore('global_store_dwordx4', v(vStP), v(sg, 4), 512 * (k2 & 1))
        a('s_mov_b64 exec, -1')

        def sel(kk):
            a('v_cndmask_b32 %s, %s, %s, %s' % (v(T + 8 + kk), v(vD + 8 * kk), v(vD + 8 * kk + 4), s(sM0, 2)))

        def bc(kk):
            a('v_mov_b32_dpp %s, %s quad_perm:[%d,%d,%d,%d] row_mask:0xf bank_mask:0xf' % (v(T + 16 + kk), v(mm), kk, kk, kk, kk))

        def acc(kk):
            a('%s %s, %s, %s' % ('v_fmac_f32' if kk else 'v_mul_f32', v(T), v(T + 16 + kk), v(T + 8 + kk)))
        lgkm(3)
        stamp('z%d pr' % layer)
        mfma(vD, vA, vV)
        dpp('v_max_f32', mx, mm, mm, X1)
        mfma(vD + 4, vA, vV + 16)
        lgkm(2)
        mfma(vD + 8, vA + 4, vV + 4)
        dpp('v_max_f32', mx, mx, mx, X2)
        mfma(vD + 12, vA + 4, vV + 20)
        a('v_sub_f32 %s, %s, %s' % (v(mm), v(mm), v(mx)))
        lgkm(1)
        mfma(vD + 16, vA + 8, vV + 8)
        a('v_exp_f32 %s, %s' % (v(mm), v(mm)))
        mfma(vD + 20, vA + 8, vV + 24)
        lgkm(0)
        bc(0)
        mfma(vD + 24, vA + 12, vV + 12)
        bc(1)
        bc(2)
        mfma(vD + 28, vA + 12, vV + 28)
        stamp('z%d pv' % layer)
        stats_load(k2)
        sel(0)
        sel(1)
        acc(0)
        acc(1)
        sel(2)
        acc(2)
        bc(3)
        a('s_mov_b32 exec_hi, 0')
        sel(3)
        acc(3)
        a('v_bfi_b32 %s, %s, %s, %s' % (v(T), v(vTagM), s(sTag + k2), v(T)))
        lstore('global_store_dword', v(vPubL), v(T), BUF_A if k2 % 2 == 0 else BUF_B)
        a('s_mov_b32 exec_hi, -1')
        stamp(pre + ' S pub')
        if layer == 0 and OPT['fl'] and OPT['flp'] == 1:
            a('s_waitcnt vmcnt(0)')
            flag_store(sTag + 6)
            stats_load(k2)
            lstore('global_store_dword', v(vStP), v(vSt), 512 * (k2 & 1))
        a('; ---- layer %d: combine the 8 key blocks, output projection partials' % layer)
        mj, mg, mo, lo = T, T + 1, vC, vC + 1

        def sm_spec(x):
            dpp('v_max_f32', mj, x, x, X1)
            a('v_mov_b32 %s, %s' % (v(mo), v(x)))
            a('v_mov_b32 %s, %s' % (v(lo), v(x + 1)))

        def sm0():
            allred('v_max_f32', mj, T + 2, [1])
            dpp('v_max_f32', mg, mj, mj, 'row_ror:8')
            allred('v_max_f32', mg, T + 2, [4, 5])

        def sm1():
            a('v_sub_f32 %s, %s, %s' % (v(mo), v(mo), v(mg)))
            a('v_sub_f32 %s, %s, %s' % (v(mj), v(mj), v(mg)))
            a('v_exp_f32 %s, %s' % (v(mo), v(mo)))
            a('v_exp_f32 %s, %s' % (v(mj), v(mj)))
            a('v_mul_f32 %s, %s, %s' % (v(mo), v(mo), v(lo)))
            allred('v_add_f32', mo, T + 2, [0, 1, 3, 4, 5])
            a('v_rcp_f32 %s, %s' % (v(mo), v(mo)))
            a('v_mul_f32 %s, %s, %s' % (v(vF), v(mj), v(mo)))

        def spec2(x):
            mask_tag(x)
            a('v_pk_mul_f32 %s, %s, %s op_sel_hi:[1,0]' % (v(x + 2, 2), v(x + 2, 2), v(vF, 2)))
            a('v_pk_mul_f32 %s, %s, %s op_sel_hi:[1,0]' % (v(x, 2), v(x, 2), v(vF, 2)))
            red_a(x, r)
        l_gather(k2, spec2, sm_spec, [sm0, sm1], hook=(lambda: flag_store(sTag + 6)) if layer == 0 and OPT['fl'] and OPT['flp'] == 0 else None)
        stamp(pre + ' E2 ok')
        red_b(r, r)
        a('v_cvt_pk_bf16_f32 %s, %s, %s' % (v(r), v(r), v(r)))
        a('ds_write_b16 %s, %s offset:%d' % (v(vQw), v(r), OB))

        def ffn_rest():
            issue_w13(FE, 4)
            if not OPT['w2e']:
                issue_w2()
        if layer == 0 and OPT['ff'] in (2, 3):
            ffn_rest()
        if layer == 0 and OPT['ff'] == 6:
            issue_w13(FE, 4)
        if layer == 0 and OPT['ff'] == 7:
            issue_w13(FE, 2)
        a('s_waitcnt lgkmcnt(0)')
        a('s_barrier')
        if layer == 0 and OPT['ff'] == 5:
            gemv_publish_g(4, vWO, OB, 0, G_C, tr=True, mid=lambda: issue_w13(FE, 2), post=lambda: issue_w13(2, 4))
            issue_w2()
        else:
            gemv_publish_g(4, vWO, OB, 2 * layer, G_C, tr=layer == 0)
        stamp(pre + ' O pub')
        a('; ---- layer %d: x slice, gate/up partials' % layer)
        set_tags(k4)
        if layer == 0 and OPT['ff'] == 1:
            nrest = 4 - FE + (0 if OPT['w2e'] else 2)
            if OPT['fl']:
                a('v_lshlrev_b32 %s, 7, %s' % (v(T + 5), v(vL)))
                a('v_add_u32 %s, %d, %s' % (v(T + 5), WS_F, v(T + 5)))
                flag_load()
            ffn_rest()
            if OPT['fl']:
                flag_wait(nrest)
            else:
                a('s_waitcnt vmcnt(%d)' % nrest)
            stamp('G0 ack')
            x_gather(0, G_C, work=probe_near if OPT['probe'] else None)
        else:
            flush_deferred()
            if layer == 0 and OPT['ff'] == 4:
                ffn_rest()
            if layer == 0 and OPT['ff'] == 7:
                issue_w13(2, 4)
            if layer == 0 and OPT['ff'] in (6, 7):
                issue_w2()
            if layer == 0 and OPT['opre'] and OPT['clean'] & 8:
                sk = newlabel('noout')
                a('s_cmp_lg_u32 %s, 0' % s(sGam))
                a('s_cbranch_scc1 %s' % sk)
                a('s_mov_b32 exec_lo, 0x000f000f')
                a('s_mov_b32 exec_hi, 0x000f000f')
                a('global_store_short %s, %s, s[22:23] sc1' % (v(vXw), v(vZero)))
                a('s_mov_b64 exec, -1')
                a.label(sk)
            if layer == 0 and OPT['probe']:
                probe_near()
                if not OPT['vlate']:
                    count_votes()
            if layer == 0 and OPT['fl']:
                a('v_lshlrev_b32 %s, 7, %s' % (v(T + 5), v(vL)))
                a('v_add_u32 %s, %d, %s' % (v(T + 5), WS_F, v(T + 5)))
                flag_load()
                flag_wait(0)
            if layer or OPT['ff'] != 3:
                g_pace(2 * layer)
            else:
                for i in range(OPT.get('xs', 0)):
                    a('s_nop 15')
                stamp('G0 ack')
            x_gather(2 * layer, G_C)
        stamp(pre + ' E3 ok')
        x_to_lds(k4)
        a('s_cmp_eq_u32 %s, 3' % s(sW))
        a('s_waitcnt lgkmcnt(0)')
        idle = newlabel('idle')

        proj(vW13, k4, layer, wsrc=[(vTr, W1 - WO, 4096, 512), (vTr, W3 - WO, 4096, 512)] if layer == 0 else None, skip=idle)
        stamp(pre + ' G pub')
        if layer == 1 and CLEAN():
            a('v_mov_b32 %s, %s' % (v(vKeep), v(T)))
        a('; ---- layer %d: gather gate/up, activation' % layer)

        def w2_regs():
            a('v_and_b32 %s, 32, %s' % (v(T + 1), v(vL)))
            a('v_lshlrev_b32 %s, 6, %s' % (v(T + 1), v(T + 1)))
            a('v_sub_u32 %s, %s, %s' % (v(T + 1), v(vTr), v(T + 1)))
            tr_reads(vW2, vTr, W2 - WO, 1, 4096, 512)
            tr_reads(vW2 + 4, T + 1, W2 - WO + 4096, 1, 4096, 512)

        def ln_all():
            w2_regs()
            ln_mean()
            ln_rstd_a()
            ln_rstd_b(False)
        if layer == 0:
            loads = [(r, vCons, sLb, BUF_A), (r + 4, vCons, sLb, BUF_X)]

            def data():
                ln_spec(vSs[0])
                for x in loads:
                    gload(*x)

            def spec4():
                mask_tag(r)
                mask_tag(r + 4)
                red_a(r, r)
            flush_deferred()
            poll([(vSs[0], vStC, sLb, 0)], lambda: chk_stats(vSs[0], k4), data, cnt=1, issued=True)
            poll(loads, lambda: chk_byte([r, r + 4], sTag + k4), spec4, work=ln_all, issued=True)
            red_a(r + 4, r + 4)
            red_b(r + 4, vCg)
        else:
            l_gather(k4, spec, ln_spec, [ln_mean, ln_rstd_a, lambda: ln_rstd_b(False)])
        stamp(pre + ' E4 ok')
        red_b(r, r)
        a('v_fma_f32 %s, -%s, %s, %s' % (v(r), v(vMean), v(vCg), v(r)))
        a('v_mul_f32 %s, %s, %s' % (v(r), v(r), v(vRs)))
        bf16r(r, r)
        a('v_mul_f32 %s, %s, %s' % (v(r + 1), s(sNl2e), v(r)))
        a('v_exp_f32 %s, %s' % (v(r + 1), v(r + 1)))
        a('v_and_b32_dpp %s, %s, %s row_shl:4 row_mask:0xf bank_mask:0xf' % (v(r + 2), v(r), v(vHmask)))
        a('v_add_f32 %s, 1.0, %s' % (v(r + 1), v(r + 1)))
        a('v_rcp_f32 %s, %s' % (v(r + 1), v(r + 1)))
        a('v_mul_f32 %s, %s, %s' % (v(r), v(r), v(r + 1)))
        bf16r(r, r)
        a('v_mul_f32 %s, %s, %s' % (v(r), v(r), v(r + 2)))
        a('v_cvt_pk_bf16_f32 %s, %s, %s' % (v(r), v(r), v(r)))
        a('ds_write_b16 %s, %s' % (v(vHw), v(r)))
        if layer == 0:
            join = newlabel('join')

            def idle_path(idle=idle, join=join, w2_regs=w2_regs):
                a.label(idle)
                w2_regs()
                a('s_branch %s' % join)
            deferred.append(idle_path)
            a.label(join)
        else:
            join = newlabel('join')

            def idle_path1(idle=idle, join=join):
                a.label(idle)
                a('v_mov_b32 %s, %s' % (v(vKeep), s(sTag + 5)))
                a('s_cmp_lg_u32 s2, 255')
                a('s_cbranch_scc1 %s' % join)
                a('s_add_u32 s55, %s, 16' % s(sE))
                a('v_mov_b32 %s, s55' % v(T + 2))
                a('s_mov_b64 exec, 1')
                a('global_store_dword %s, %s, s[26:27] sc1' % (v(vZero), v(T + 2)))
                a('s_mov_b64 exec, -1')
                a('s_branch %s' % join)
            deferred.append(idle_path1)
            a.label(join)
        a('s_waitcnt lgkmcnt(0)')
        a('s_barrier')
        gemv_publish_g(2, vW2, HB, 2 * layer + 1, G_D, mid=clean_a if layer == 1 and CLEAN() & 2 and not OPT['cend'] & 2 else None)
        stamp(pre + ' D pub')

    a('; ---- final sum (group 0 only)')
    if OPT.get('opack'):
        a('v_mov_b32 %s, 0xffff' % v(T + 11))
        a('v_and_b32 %s, 0x7c, %s' % (v(T + 12), v(vXw)))
    if CLEAN() & 4:
        fin = newlabel('last')
        clean_b_prep()
        a('s_cmp_eq_u32 %s, 0' % s(sGam))
        a('s_cbranch_scc1 %s' % fin)

        def clean_all():
            clean_b()
            if OPT['cend'] & 2:
                clean_a()
            if OPT['cend'] & 1:
                clean_x()
        a('s_waitcnt vmcnt(0)')
        clean_all()
        a('s_branch L_fin')
        flush_deferred(False)
        a.label(fin)
        g_pace(3)
        x_gather(3, G_D, work=clean_all, cnt=1 + bin(OPT['cend'] & 3).count('1'))
    else:
        a('s_cmp_lg_u32 %s, 0' % s(sGam))
        a('s_cbranch_scc1 L_fin')
        g_pace(3)
        x_gather(3, G_D)
    sc = ' sc1' if OPT['clean'] & 8 else ''
    if OPT.get('opack'):
        a('v_mov_b32 %s, %s' % (v(T + 1), v(T)))
        a('v_permlane16_swap_b32 %s, %s' % (v(T), v(T + 1)))
        a('v_bfi_b32 %s, %s, %s, %s' % (v(T), v(T + 11), v(T), v(T + 1)))
        if OPT['opack'] == 2:
            a('v_mov_b32 %s, %s' % (v(T + 1), v(T)))
            a('v_permlane32_swap_b32 %s, %s' % (v(T), v(T + 1)))
            a('s_mov_b64 exec, 15')
            a('global_store_dwordx2 %s, %s, s[22:23]%s' % (v(T + 12), v(T, 2), sc))
        else:
            a('s_mov_b32 exec_lo, 15')
            a('s_mov_b32 exec_hi, 15')
            a('global_store_dword %s, %s, s[22:23]%s' % (v(T + 12), v(T), sc))
    else:
        a('s_mov_b32 exec_lo, 0x000f000f')
        a('s_mov_b32 exec_hi, 0x000f000f')
        a('global_store_short %s, %s, s[22:23]%s' % (v(vXw), v(T), sc))


front()
FAST[0] = bool(OPT['fast'])
tail()
a.label('L_fin')
if OPT.get('dirty'):
    a('s_mov_b64 exec, -1')
    a('s_lshl_b32 s55, s2, 2')
    a('s_add_u32 s55, s55, %s' % s(sW))
    a('s_lshl_b32 s55, s55, 15')
    a('s_add_u32 s55, s55, 0x400000')
    a('v_lshl_add_u32 %s, %s, 4, s55' % (v(T + 1), v(vL)))
    for i in range(OPT['dirty']):
        a('global_store_dwordx4 %s, %s, s[26:27]' % (v(T + 1), v(vD, 4)))
        a('v_add_u32 %s, 1024, %s' % (v(T + 1), v(T + 1)))
if OPT.get('wb'):
    a('buffer_wbl2 sc1')
if OPT.get('delay'):
    if 'only' in OPT:
        a('s_cmp_lg_u32 s2, %d' % OPT['only'])
        a('s_cbranch_scc1 L_end')
    a.label('L_dly')
    a('s_memrealtime s[6:7]')
    a('s_waitcnt lgkmcnt(0)')
    a('s_sub_u32 s8, s6, s100')
    a('s_cmp_lt_u32 s8, %d' % OPT.get('until', 3000))
    a('s_cbranch_scc1 L_dly')
if DIAG:
    a('s_mov_b64 exec, -1')
    a('s_memrealtime s[4:5]')
    a('s_waitcnt lgkmcnt(0)')
    a('v_mov_b32 %s, 0' % v(T))
    for i in range(len(stamps)):
        a('v_writelane_b32 %s, %s, %d' % (v(T), s(stamp_regs[i]), i))
    a('v_writelane_b32 %s, s4, %d' % (v(T), len(stamps)))
    a('v_xor_b32 %s, %s, %s' % (v(T + 2), v(vConsG), v(vConsG0)))
    a('v_readfirstlane_b32 s6, %s' % v(T + 2))
    a('v_writelane_b32 %s, s6, 62' % v(T))
    a('v_writelane_b32 %s, s12, 61' % v(T))
    a('v_writelane_b32 %s, s13, 60' % v(T))
    a('v_writelane_b32 %s, %s, 63' % (v(T), s(sXcc)))
    a('s_lshl_b32 s55, s2, 2')
    a('s_add_u32 s55, s55, %s' % s(sW))
    a('s_lshl_b32 s55, s55, 8')
    a('s_add_u32 s55, s55, %d' % WS_DIAG)
    a('v_lshl_add_u32 %s, %s, 2, s55' % (v(T + 1), v(vL)))
    a('global_store_dword %s, %s, s[26:27]' % (v(T + 1), v(T)))
a.label('L_end')
a('s_endpgm')
flush_deferred(False)
a.label('L_fastend')
if OPT['fast']:
    a('; ==== the same phases with write-through stores: taken when the group is spread over several XCDs')
    a.label('L_slowtail')
    FAST[0] = False
    a.hist = []
    a('s_nop 1')
    tail()
    a('s_branch L_fin')
    flush_deferred(False)
    a('s_endpgm')
a.raw('''.section .rodata,"a"
.p2align 6
.amdhsa_kernel %s_kernel
  .amdhsa_next_free_vgpr %d
  .amdhsa_next_free_sgpr 102
  .amdhsa_accum_offset %d
  .amdhsa_group_segment_fixed_size 0
  .amdhsa_kernarg_size 96
  .amdhsa_user_sgpr_count 2
  .amdhsa_user_sgpr_kernarg_segment_ptr 1
  .amdhsa_system_sgpr_workgroup_id_x 1
  .amdhsa_float_denorm_mode_32 3
.end_amdhsa_kernel''' % (NAME, NVGPR, NVGPR))
sys.stdout.write(a.text())
if DIAG:
    sys.stderr.write('STAMPS ' + '|'.join(stamps + ['end']) + '\n')
sys.stderr.write('nops inserted: %d\n' % a.nops)
```

```python
import sys, math, struct
from asm import Asm

NAME = 'interleave_layers__sliding_block_cached__glu_gated_swiglu__decode'
OPT = dict(diag=0, fast=1, nt=1, kw=5, fe=0, wol=1, probe=3, vw=1, thr=90, pages=2, cnt=0, early=2, d0=0, refresh=0, spipe=1, late_rs=1, na=0, nsl=0, w2e=0, ff=7, vlate=1, fl=0, flp=0, pad=0, nva=8, ksplit=0, wopos=0, ool=0, stg=1, vq=0, clean=0, cend=1, opre=1)
for a_ in sys.argv[1:]:
    k_, v_ = a_.split('=')
    OPT[k_] = int(v_)
DIAG = OPT['diag']
NT = {0: '', 1: ' nt', 2: ' sc1 nt', 3: ' sc0 sc1 nt', 4: ' sc0 nt', 5: ' sc1', 6: ' sc0 sc1'}[OPT['nt']]
STAGE = not DIAG or DIAG == 6

XB, ONES, QB, OB, HB, MB, DUMMY, PB = 0, 128, 256, 512, 768, 896, 960, 1024
WQ, VI, WO = 4096, 20480, 53248
W1, W3, W2 = WO + 16384, WO + 24576, WO + 32768
KI = WO + 38912
LDS_BYTES = KI + 32768
WS_F = 0x10000
WS_L, WS_P, WS_G, WS_DIAG = 0x40000, 0xc0000, 0x100000, 0x200000
WS_L2D = 0x140000 + 0x100000 * OPT['pad']
BUF_A, BUF_X, BUF_B, STATS, VOTES = 0, 1024, 2048, 3072, 7168
ST0 = 8192
PAD = OPT['pad']
GOFF = 4096 * PAD
G_C, G_D, G_H = -GOFF, (2048 << PAD) - GOFF, 1024 << PAD
G_X = (0x20000 << PAD) | 0x2000
WSH = 1 - PAD

vL, vCons, vPubL, vPw, vPubG, vStP, vStC, vTagM, vStP2 = range(1, 10)
vXw, vQw, vHw, vOpR, vXopR, vConsG, vConsG0, vCs, vZero, vMw = range(10, 20)
trq, vTr, vHmask, vX, vCq, vCg, vMean, vRs = 20, 22, 23, 24, 25, 26, 27, 28
vMr, vF = 29, 30
vWQ, vK, vV, vWO, vW13, vW2 = 32, 48, 80, 112, 128, 144
wo0, wo1, f0, f1, vPre, vVo = 144, 145, 146, 147, 148, 149
T = 152
vC = T + 12
vA = 176
vD = 192
vP = 224
vSt, vSt4, vKeep = 232, 236, 238
vCl = 20
vDs, vSs = [240, 244], [248, 252]
NVGPR = 256
sW, sJ, sGam, sPr, sE, sC0, sCnt, sXcc, sTo = 28, 29, 30, 31, 32, 33, 34, 35, 36
sLb, sGb0, sGb1 = 38, 40, 14
sPc, sT1 = 42, 44
sCs, sMaskHi, sInv512, sEps, sNl2e = 50, 51, 52, 53, 54
sM0, sM1, sHi, sCl = 56, 42, 46, 44
sTag = 60

a = Asm()
stamp_regs = list(range(70, 102, 2))
stamps = []
nstamp = [0]
lbl = [0]
FAST = [False]


def v(n, cnt=1):
    return 'v%d' % n if cnt == 1 else 'v[%d:%d]' % (n, n + cnt - 1)


def s(n, cnt=1):
    return 's%d' % n if cnt == 1 else 's[%d:%d]' % (n, n + cnt - 1)


def stamp(name):
    nstamp[0] += 1
    if OPT.get('delay') == 3 and OPT.get('at', 1) == nstamp[0]:
        a('s_memrealtime s[100:101]')
        sys.stderr.write('delay anchored at ' + name + '\n')
    keep = {0: False, 1: name[:2] not in ('L1', 'x ') and name[0] not in 'Gz', 2: name[:2] == 'L1', 5: name[0] == 'G' or name[3:] in ('O pub', 'D pub', 'E3 ok', 'E5 ok') or name in ('L0 E1 ok', 'L0 S pub', 'L0 E2 ok'),
            6: False, 7: name[:2] in ('L1', 'x '), 8: name[:2] == 'z1' or name in ('L1 E1 ok', 'L1 S pub', 'L1 E2 ok', 'L1 O pub', 'L1 E5 ok', 'L1 Q pub')}[DIAG]
    if not (keep or DIAG and name == 'start'):
        return
    if name not in stamps:
        if len(stamps) >= len(stamp_regs):
            return
        stamps.append(name)
    r = stamp_regs[stamps.index(name)]
    if OPT['cnt'] and name != 'start':
        a('s_sub_u32 %s, 0x40000, %s' % (s(r), s(sTo)))
    else:
        a('%s %s' % ('s_memtime' if DIAG in (7, 8) and name != 'x rt0' else 's_memrealtime', s(r, 2)))


def f32(x):
    return '0x%08x' % struct.unpack('<I', struct.pack('<f', x))[0]


def newlabel(p):
    lbl[0] += 1
    return 'L_%s_%d' % (p, lbl[0])


def lgkm(n):
    a('s_waitcnt lgkmcnt(%d)' % (n if STAGE else 0))


def mfma(d, x, y, c=None):
    a('v_mfma_f32_16x16x32_bf16 %s, %s, %s, %s' % (v(d, 4), v(x, 4), v(y, 4), '0' if c is None else v(c, 4)))


def dpp(op, d, x, y, ctl, rm=0xf):
    a('%s_dpp %s, %s, %s %s row_mask:0x%x bank_mask:0xf' % (op, v(d), v(x), v(y), ctl, rm))


X1, X2 = 'quad_perm:[1,0,3,2]', 'quad_perm:[2,3,0,1]'


def lstore(op, addr, data, off):
    a('%s %s, %s, %s offset:%d%s' % (op, addr, data, s(sLb, 2), off, '' if FAST[0] and not OPT.get('allsc') else ' sc1'))


def gload(d, vo, b, im):
    a('global_load_dwordx4 %s, %s, %s offset:%d sc1' % (v(d, 4), v(vo), s(b, 2), im))


def tick():
    a('s_sub_u32 %s, %s, 1' % (s(sTo), s(sTo)))
    a('s_cbranch_scc1 L_end')


deferred = []


def flush_deferred(jump=True):
    if not deferred:
        return
    l = newlabel('skip')
    if jump:
        a('s_branch %s' % l)
    hist = a.hist
    while deferred:
        a.hist = []
        deferred.pop(0)()
    a.hist = hist
    a.label(l)


def poll(loads, check, spec, work=None, cnt=0, issued=False, backoff=0):
    top, ent = newlabel('poll'), newlabel('pent')
    if not issued:
        for x in loads:
            gload(*x)
    if work:
        work()

    def retry():
        a.label(top)
        tick()
        if backoff:
            a('s_sleep %d' % backoff)
        for x in loads:
            gload(*x)
        if cnt:
            a('s_waitcnt vmcnt(0)')
        if OPT['ool']:
            a('s_branch %s' % ent)
    if OPT['ool']:
        deferred.append(retry)
    else:
        a('s_branch %s' % ent)
        retry()
    a.label(ent)
    a('s_waitcnt vmcnt(%d)' % cnt)
    check()
    if spec:
        spec()
    a('s_cbranch_vccnz %s' % top)


def ring2(sets, issue, check, spec, cnt1, cnt0, first):
    top, ent, done = newlabel('ring'), newlabel('rent'), newlabel('rdone')

    def retry():
        a.label(top)
        tick()
        issue(sets[0])
        a('s_waitcnt vmcnt(%d)' % cnt1)
        check(sets[1])
        spec(sets[1])
        a('s_cbranch_vccz %s' % done)
        issue(sets[1])
        if first != cnt0:
            a('s_waitcnt vmcnt(%d)' % cnt0)
        if OPT['ool']:
            a('s_branch %s' % ent)
    if OPT['ool']:
        deferred.append(retry)
    else:
        a('s_branch %s' % ent)
        retry()
    a.label(ent)
    a('s_waitcnt vmcnt(%d)' % first)
    check(sets[0])
    spec(sets[0])
    a('s_cbranch_vccnz %s' % top)
    a.label(done)


def chk_byte(regs, tag):
    if len(regs) == 1:
        a('v_cmp_ne_u32_sdwa vcc, %s, %s src0_sel:BYTE_0 src1_sel:BYTE_0' % (v(regs[0]), s(tag)))
    else:
        a('v_bitop3_b32 %s, %s, %s, %s bitop3:0x7e' % (v(T + 23), v(regs[0]), v(regs[1]), s(tag)))
        a('v_cmp_ne_u32_sdwa vcc, %s, %s src0_sel:BYTE_0 src1_sel:DWORD' % (v(T + 23), v(vZero)))


def chk_stats(x, k):
    a('v_cmp_ne_u32 vcc, %s, %s' % (s(sTag + k), v(x + (2 if k % 3 == 1 else 1))))


def red_a(x, c):
    a('v_permlane32_swap_b32 %s, %s' % (v(x + 1), v(x + 3)))
    a('v_add_f32 %s, %s, %s' % (v(c + 1), v(x + 1), v(x + 3)))
    a('v_permlane32_swap_b32 %s, %s' % (v(x), v(x + 2)))
    a('v_add_f32 %s, %s, %s' % (v(c), v(x), v(x + 2)))


def red_b(c, out):
    a('v_permlane16_swap_b32 %s, %s' % (v(c), v(c + 1)))
    a('v_add_f32 %s, %s, %s' % (v(c), v(c), v(c + 1)))
    dpp('v_add_f32', out, c, c, 'row_ror:8')


def mask_tag(x):
    a('v_and_b32 %s, %s, %s' % (v(x), s(sMaskHi), v(x)))


def bf16r(dst, src):
    a('v_cvt_pk_bf16_f32 %s, %s, %s' % (v(dst), v(src), v(src)))
    a('v_and_b32 %s, 0xffff0000, %s' % (v(dst), v(dst)))


def allred(op, x, t, bits):
    for b in bits:
        if b < 4:
            dpp(op, x, x, x, {0: X1, 1: X2, 3: 'row_ror:8'}[b])
        else:
            a('v_mov_b32 %s, %s' % (v(t), v(x)))
            a('v_permlane%d_swap_b32 %s, %s' % (16 if b == 4 else 32, v(x), v(t)))
            a('%s %s, %s, %s' % (op, v(x), v(x), v(t)))


def set_tags(k):
    a('v_mov_b32 %s, %s' % (v(vSt + 2), s(sTag + k)))
    if k % 3 != 1:
        a('v_cndmask_b32 %s, %s, %s, %s' % (v(vSt4 + 1), v(vSt + 2), v(vSt + 3), s(sHi, 2)))


def ln_stats(k, addr=None):
    g = vSt4
    a('v_mul_f32 %s, %s, %s' % (v(T + 7), v(vX), v(vX)))
    a('v_permlane32_swap_b32 %s, %s' % (v(g), v(T + 7)))
    a('v_add_f32 %s, %s, %s' % (v(g), v(g), v(T + 7)))
    allred('v_add_f32', g, None, [0, 1])
    dpp('v_add_f32', g, g, g, 'row_bcast:15', 0xa)
    a('s_mov_b64 exec, %s' % s(sM1, 2))
    lstore('global_store_dwordx2', v(addr or vStP2), v(g, 2), 512 * (k & 1))
    a('s_mov_b64 exec, -1')


def ln_spec(x):
    a('v_permlane32_swap_b32 %s, %s' % (v(x), v(x + 2)))
    a('v_add_f32 %s, %s, %s' % (v(vC), v(x), v(x + 2)))


def ln_mean():
    c = vC
    allred('v_add_f32', c, c + 1, [4, 3, 0, 1])
    a('v_mul_f32 %s, %s, %s' % (v(c), s(sInv512), v(c)))
    a('v_mov_b32 %s, %s' % (v(c + 1), v(c)))
    a('v_permlane32_swap_b32 %s, %s' % (v(c), v(c + 1)))
    bf16r(vMean, c)


def ln_rstd_a():
    c = vC
    a('v_fma_f32 %s, -%s, %s, %s' % (v(c + 1), v(c), v(c), v(c + 1)))
    a('v_max_f32 %s, 0, %s' % (v(c + 1), v(c + 1)))
    bf16r(c + 1, c + 1)
    a('v_add_f32 %s, %s, %s' % (v(c + 1), s(sEps), v(c + 1)))
    bf16r(c + 1, c + 1)
    a('v_sqrt_f32 %s, %s' % (v(c + 1), v(c + 1)))


def ln_rstd_b(scale):
    c = vC
    bf16r(c + 1, c + 1)
    a('v_rcp_f32 %s, %s' % (v(vRs), v(c + 1)))
    if scale:
        a('v_mul_f32 %s, %s, %s' % (v(vCs), s(sCs), v(vRs)))


def stats_load(k, x=vSs[0]):
    gload(x, vStC, sLb, 512 * (k & 1))


def l_gather(k, spec, st_spec, chain, hook=None):
    buf = BUF_A if k % 2 == 0 else BUF_B

    def d_issue(x):
        gload(x, vCons, sLb, buf)
    rf = OPT['refresh'] and OPT['d0']

    def s_issue(x):
        stats_load(k, x)
        if rf:
            d_issue(vDs[0])
    if OPT['d0']:
        d_issue(vDs[0])
    if OPT['spipe']:
        stats_load(k, vSs[1])
        flush_deferred()
        ring2(vSs, s_issue, lambda x: chk_stats(x, k), st_spec, 2 if rf else 1, 3 if rf else 1, 2 + OPT['d0'])
    else:
        flush_deferred()
        poll([(vSs[0], vStC, sLb, 512 * (k & 1))], lambda: chk_stats(vSs[0], k), lambda: st_spec(vSs[0]), cnt=1 + OPT['d0'], issued=True)
    if k >= 3:
        stamp('x st%d' % k)
    if not OPT['d0']:
        d_issue(vDs[0])
        chain[0]()
        d_issue(vDs[1])
    else:
        d_issue(vDs[1])
        chain[0]()
    if hook:
        hook()
    for c in chain[1:]:
        c()
    ring2(vDs, d_issue, lambda x: chk_byte([x], sTag + k), spec, 1, 1, 1)


def x_gather(gi, imm, work=None, cnt=0):
    r = vP
    base = sGb0 if gi < 2 else sGb1

    def spec():
        a('v_pk_add_f32 %s, %s, %s' % (v(r + 2, 2), v(r + 2, 2), v(r + 6, 2)))
        a('v_add_f32 %s, %s, %s' % (v(r + 1), v(r + 1), v(r + 5)))
        mask_tag(r)
        mask_tag(r + 4)
        a('v_add_f32 %s, %s, %s' % (v(r), v(r), v(r + 4)))
        red_a(r, r)
    poll([(r, vConsG, base, imm), (r + 4, vConsG, base, imm + G_H)], lambda: chk_byte([r, r + 4], sTag + 6 + gi), spec, work=work, cnt=cnt, backoff=OPT.get('g%ds' % gi, 0))
    red_b(r, r)
    dpp('v_add_f32', r, r, r, 'row_ror:4')
    bf16r(r, r)
    a('v_add_f32 %s, %s, %s' % (v(r), v(r), v(vX)))
    a('v_cvt_pk_bf16_f32 %s, %s, %s' % (v(T), v(r), v(r)))


def x_to_lds(k):
    a('ds_write_b16 %s, %s offset:%d' % (v(vXw), v(T), XB))
    a('v_and_b32 %s, 0xffff0000, %s' % (v(vX), v(T)))
    a('v_and_b32 %s, 0xffff0000, %s' % (v(vSt4), v(T)))
    ln_stats(k)


def tr_pair(dst, addr, off, gstride):
    for g in range(2):
        a('ds_read_b64_tr_b16 %s, %s offset:%d' % (v(dst + 2 * g, 2), v(addr), off + g * gstride))


def proj(wreg, k, layer, wsrc=None, first=False, skip=None):
    rd = vXopR if layer == 0 else vOpR
    a('s_barrier')
    for kk in range(2):
        a('ds_read_b128 %s, %s offset:%d' % (v(vA + 4 * kk, 4), v(rd), XB + 64 * kk))
        if wsrc:
            for cg in range(2):
                ad, off, ks, gs = wsrc[cg]
                tr_pair(wreg + 8 * cg + 4 * kk, ad, off + kk * ks, gs)
    if skip:
        a('s_cbranch_scc1 %s' % skip)
    if not first and OPT['early'] == 1:
        stats_load(k)
    lgkm(7 if wsrc else 1)
    mfma(vD, vA, wreg)
    if wsrc:
        lgkm(5)
    mfma(vD + 4, vA, wreg + 8)
    if not first and OPT['early'] == 2:
        stats_load(k)
    lgkm(2 if wsrc else 0)
    mfma(vD, vA + 4, wreg + 4, vD)
    if wsrc:
        lgkm(0)
    mfma(vD + 4, vA + 4, wreg + 12, vD + 4)
    if not first and OPT['early'] == 0:
        stats_load(k)
    if layer == 1:
        a('s_mov_b32 exec_hi, 0')
    a('v_cndmask_b32 %s, %s, %s, %s' % (v(T), v(vD), v(vD + 4), s(sM0, 2)))
    a('v_bfi_b32 %s, %s, %s, %s' % (v(T), v(vTagM), s(sTag + k), v(T)))
    lstore('global_store_dword', v(vPubL), v(T), BUF_A if k % 2 == 0 else BUF_B)
    if layer == 1:
        a('s_mov_b32 exec_hi, -1')


def tr_reads(dst, addr, base, nk, kstride, gstride):
    for kk in range(nk):
        for g in range(2):
            a('ds_read_b64_tr_b16 %s, %s offset:%d' % (v(dst + 4 * kk + 2 * g, 2), v(addr), base + kk * kstride + g * gstride))


def gemv_publish_g(nk, wreg, src, gi, imm, tr=False, mid=None, post=None):
    for kk in range(nk):
        a('ds_read_b128 %s, %s offset:%d' % (v(vA + 4 * kk, 4), v(vOpR), src + 64 * kk))
        if tr:
            tr_pair(wreg + 4 * kk, vTr, 4096 * kk, 512)
    if mid:
        mid()
    for kk in range(nk):
        lgkm((nk - 1 - kk) * (3 if tr else 1))
        mfma(vD, vA + 4 * kk, wreg + 4 * kk, vD if kk else None)
    if post:
        post()
    if not PAD:
        a('s_mov_b32 exec_hi, 0')
    a('v_bfi_b32 %s, %s, %s, %s' % (v(T), v(vTagM), s(sTag + 6 + gi), v(vD)))
    st = 'global_store_dword %s, %s, %s offset:%d sc1' % (v(vPubG), v(T), s(sGb0 if gi < 2 else sGb1, 2), imm)
    if OPT['na'] and gi:
        a('s_mov_b32 exec_lo, s37')
        a(st)
        a('s_not_b32 exec_lo, s37')
        a(st)
        a('s_mov_b64 exec, -1')
    else:
        a(st)
        if not PAD:
            a('s_mov_b32 exec_hi, -1')


def g_pace(gi):
    flush_deferred()
    if OPT['na'] and gi:
        a('s_waitcnt vmcnt(1)')
        for i in range(OPT['nsl']):
            a('s_nop 7')
    else:
        a('s_waitcnt vmcnt(0)')
    if OPT.get('g%dd' % gi):
        a('s_sleep %d' % OPT['g%dd' % gi])
    stamp('G%d ack' % gi)


def probe_near():
    a('s_not_b32 s4, %s' % s(sE))
    a('s_xor_b32 s55, %s, 8192' % s(sPr))
    a('s_waitcnt lgkmcnt(0)')
    a('s_load_dword s4, s[26:27], %s' % s(sPr))
    a('s_load_dword s5, s[26:27], s55')
    a('s_lshl_b32 s59, %s, 2' % s(sJ))
    a('s_add_u32 s59, s59, %s' % s(sW))
    a('s_lshl_b32 s59, s59, 3')
    a('s_add_u32 s59, s59, %d' % VOTES)
    a('v_mov_b32 %s, s59' % v(T + 1))
    a('v_mov_b32 %s, %s' % (v(T + 3), s(sTag + 2)))
    a('s_waitcnt lgkmcnt(1)')
    a('s_memtime s[8:9]')
    a('s_cmp_eq_u32 s4, %s' % s(sE))
    a('s_cselect_b32 s6, %d, -1' % OPT['thr'])
    a('s_waitcnt lgkmcnt(0)')
    a('s_memtime s[10:11]')
    a('s_waitcnt lgkmcnt(0)')
    a('s_sub_u32 s7, s10, s8')
    a('s_cmp_gt_u32 s7, s6')
    a('s_cselect_b32 s6, 1, 0')
    if DIAG:
        a('s_mov_b32 s12, s7')
    a('v_mov_b32 %s, s6' % v(T + 2))
    a('s_mov_b64 exec, 1')
    lstore('global_store_dwordx2', v(T + 1), v(T + 2, 2), 0)
    a('s_mov_b64 exec, -1')


def race_prep():
    a('s_not_b32 s4, %s' % s(sE))
    a('s_xor_b32 s5, %s, 8192' % s(sPr))
    a('v_mov_b32 %s, %s' % (v(T + 4), s(sPr)))


def race_start():
    a('global_load_dword %s, %s, s[26:27] sc1' % (v(T + 5), v(T + 4)))
    a('s_load_dword s4, s[26:27], s5')


def race_finish(behind):
    a('s_lshl_b32 s59, %s, 2' % s(sJ))
    a('s_add_u32 s59, s59, %s' % s(sW))
    a('s_lshl_b32 s59, s59, 3')
    a('s_add_u32 s59, s59, %d' % VOTES)
    a('v_mov_b32 %s, s59' % v(T + 1))
    a('v_mov_b32 %s, %s' % (v(T + 3), s(sTag + 2)))
    a('s_waitcnt vmcnt(%d)' % behind)
    a('s_cmp_eq_u32 s4, %s' % s(sE))
    a('s_cselect_b32 s6, 1, 0')
    if DIAG:
        a('s_mov_b32 s12, s6')
    a('v_mov_b32 %s, s6' % v(T + 2))
    a('s_mov_b64 exec, 1')
    lstore('global_store_dwordx2', v(T + 1), v(T + 2, 2), 0)
    a('s_mov_b64 exec, -1')
    a('s_waitcnt lgkmcnt(0)')


def race_pick():
    a('s_lshr_b32 s55, %s, 1' % s(sW))
    a('s_xor_b32 s59, s55, 1')
    a('s_mul_i32 s55, s55, 0x%x' % G_X)
    a('s_mul_i32 s59, s59, 0x%x' % G_X)
    a('s_waitcnt vmcnt(1)')
    a('s_cmp_eq_u32 s4, %s' % s(sE))
    a('s_cselect_b32 s55, s59, s55')
    a('v_xor_b32 %s, s55, %s' % (v(vConsG), v(vConsG0)))


def count_votes():
    a('v_and_b32 %s, 31, %s' % (v(T + 4), v(vL)))
    a('v_lshlrev_b32 %s, 3, %s' % (v(T + 4), v(T + 4)))
    a('v_add_u32 %s, %d, %s' % (v(T + 4), VOTES, v(T + 4)))
    if OPT['vw'] and not OPT['vlate']:
        a('s_waitcnt vmcnt(0)')
    a('global_load_dwordx2 %s, %s, %s sc1' % (v(T + 2, 2), v(T + 4), s(sLb, 2)))
    a('s_lshr_b32 s55, %s, 1' % s(sW) if WSH else 's_and_b32 s55, %s, 1' % s(sW))
    a('s_xor_b32 s59, s55, 1')
    a('s_waitcnt vmcnt(0)')
    if OPT['probe'] == 2:
        a('v_cmp_eq_u32 vcc, %s, %s' % (s(sTag + 2), v(T + 3)))
        a('v_cmp_eq_u32 s[6:7], 0, %s' % v(T + 2))
        a('s_and_b32 s4, vcc_lo, s6')
        a('s_andn2_b32 s5, vcc_lo, s6')
    else:
        a('v_xor_b32 %s, %s, %s' % (v(T + 3), s(sTag + 2), v(T + 3)))
        a('v_xor_b32 %s, 1, %s' % (v(T + 2), v(T + 2)))
        a('v_or_b32 %s, %s, %s' % (v(T + 2), v(T + 2), v(T + 3)))
        a('v_cmp_eq_u32 vcc, 0, %s' % v(T + 2))
        a('s_and_b32 s4, vcc_lo, 0x%x' % (0x33333333 if WSH else 0x55555555))
        a('s_and_b32 s5, vcc_lo, 0x%x' % (0xcccccccc if WSH else 0xaaaaaaaa))
    a('s_bcnt1_i32_b32 s4, s4')
    a('s_bcnt1_i32_b32 s5, s5')
    if DIAG:
        a('s_lshl_b32 s13, s4, 8')
        a('s_add_u32 s13, s13, s5')
    a('s_cmp_ge_u32 s4, s5')
    a('s_cselect_b32 s55, s55, s59')
    if OPT['na']:
        a('s_cmp_eq_u32 s55, 0')
        a('s_cselect_b32 s37, 0xffff, %s' % s(sM0))
    a('s_mul_i32 s55, s55, 0x%x' % G_X)
    a('v_xor_b32 %s, s55, %s' % (v(vConsG), v(vConsG0)))


def flag_store(val):
    sk = newlabel('nofl')
    a('s_or_b32 s55, %s, %s' % (s(sJ), s(sW)))
    a('s_cbranch_scc1 %s' % sk)
    a('s_lshl_b32 s55, %s, 7' % s(sGam))
    a('s_add_u32 s55, s55, %d' % WS_F)
    a('v_lshl_add_u32 %s, %s, 2, s55' % (v(T + 21), v(vL)))
    a('v_mov_b32 %s, %s' % (v(T + 20), s(val)))
    a('s_mov_b32 exec_hi, 0')
    a('global_store_dword %s, %s, s[26:27] sc1' % (v(T + 21), v(T + 20)))
    a('s_mov_b32 exec_hi, -1')
    a.label(sk)


def flag_load():
    a('s_mov_b32 exec_hi, 0')
    a('global_load_dword %s, %s, s[26:27] sc1' % (v(T + 6), v(T + 5)))
    a('s_mov_b32 exec_hi, -1')


def flag_wait(cnt):
    top, ent = newlabel('fl'), newlabel('fle')
    a('s_branch %s' % ent)
    a.label(top)
    tick()
    flag_load()
    a('s_waitcnt vmcnt(0)')
    a.label(ent)
    a('s_waitcnt vmcnt(%d)' % cnt)
    a('v_cmp_ne_u32 vcc, %s, %s' % (s(sTag + 6), v(T + 6)))
    a('s_cmp_lg_u32 vcc_lo, 0')
    a('s_cbranch_scc1 %s' % top)


def clean_prep():
    a('v_and_b32 %s, 31, %s' % (v(T + 9), v(vL)))
    a('s_and_b32 s59, %s, 3' % s(sJ))
    a('s_lshl_b32 s59, s59, 7')
    a('s_add_u32 s59, s59, %d' % STATS)
    a('v_lshl_add_u32 %s, %s, 2, s59' % (v(T + 9), v(T + 9)))
    a('v_cndmask_b32 %s, %s, %s, %s' % (v(vCl), v(vPubL), v(T + 9), s(sHi, 2)))
    a('s_add_u32 s55, s59, %d' % (VOTES - STATS))
    a('s_add_u32 s59, s59, %d' % ST0)
    a('s_cmp_lt_u32 %s, 4' % s(sJ))
    a('s_cselect_b32 s59, s59, s55')
    a('v_and_b32 %s, 31, %s' % (v(T + 9), v(vL)))
    a('v_lshl_add_u32 %s, %s, 2, s59' % (v(T + 9), v(T + 9)))
    a('v_add_u32 %s, %d, %s' % (v(T + 10), BUF_X, v(vPubL)))
    a('v_cndmask_b32 %s, %s, %s, %s' % (v(vCl + 1), v(T + 10), v(T + 9), s(sHi, 2)))
    a('v_mov_b32 %s, %s' % (v(vCl + 2), s(sTag + 3)))
    a('s_cmp_lt_u32 %s, 6' % s(sJ))
    a('s_cselect_b32 %s, -1, 0' % s(sCl + 1))
    a('s_cmp_lt_u32 %s, 4' % s(sJ))
    a('s_cselect_b32 %s, -1, 0' % s(sCl))
    a('s_cmp_eq_u32 %s, 0' % s(sW))
    a('s_cselect_b32 %s, %s, 0' % (s(sCl), s(sCl)))
    a('s_cselect_b32 %s, %s, 0' % (s(sCl + 1), s(sCl + 1)))


def clean_x():
    a('s_mov_b32 exec_hi, %s' % s(sCl + 1))
    a('global_store_dword %s, %s, %s sc1' % (v(vCl + 1), v(vCl + 2), s(sLb, 2)))
    a('s_mov_b32 exec_hi, -1')


def clean_a():
    a('s_mov_b32 exec_hi, %s' % s(sCl))
    a('global_store_dword %s, %s, %s sc1' % (v(vCl), v(vCl + 2), s(sLb, 2)))
    a('s_mov_b32 exec_hi, -1')


def clean_b_prep():
    a('v_add_u32 %s, %d, %s' % (v(T + 9), 512, v(vCl)))
    a('v_add_u32 %s, %d, %s' % (v(T + 8), BUF_B, v(vCl)))
    a('v_cndmask_b32 %s, %s, %s, %s' % (v(T + 8), v(T + 8), v(T + 9), s(sHi, 2)))
    a('s_mov_b32 exec_lo, 0')
    a('s_mov_b32 exec_hi, %s' % s(sCl))
    sk = newlabel('nold')
    a('s_cbranch_execz %s' % sk)
    a('global_load_dword %s, %s, %s sc1' % (v(vKeep), v(T + 8), s(sLb, 2)))
    a.label(sk)
    a('s_mov_b64 exec, -1')


def clean_b():
    a('s_mov_b32 exec_hi, %s' % s(sCl))
    a('global_store_dword %s, %s, %s sc1' % (v(T + 8), v(vKeep), s(sLb, 2)))
    a('s_mov_b32 exec_hi, -1')


def page_break(force=False):
    if OPT['pages'] and (FAST[0] or force):
        l = newlabel('page')
        a('s_branch %s' % l)
        flush_deferred(False)
        a.raw('.p2align 12')
        a.label(l)


a.raw('''; One persistent launch, 256 workgroups = 32 groups (attention head / slice of the ffn columns) x 8 members.
; Weights and the K/V window are read once and stay in registers for both layers; workgroups hand over partial sums
; through d_ws in 64-byte tagged sectors (tag = epoch word found in d_ws + index of the hand-off).
; @launch grid=(256,1,1) block=(256,1,1) lds=%d
.amdgcn_target "amdgcn-amd-amdhsa--gfx950"
.text
.p2align 12
.globl %s_kernel
.p2align 8
.type %s_kernel,@function
%s_kernel:''' % (LDS_BYTES, NAME, NAME, NAME))
a('s_cmp_ge_u32 s2, 256')
a('s_cbranch_scc1 L_end')
a('s_load_dwordx16 s[4:19], s[0:1], 0')
a('s_load_dwordx8 s[20:27], s[0:1], 64')
stamp('start')
stamp('x rt0')
a('s_getpc_b64 %s' % s(sPc, 2))
a.label('L_pc')
a('v_lshlrev_b32 %s, 6, v0' % v(T))
a('v_min_u32 %s, L_fastend-L_pc-64, %s' % (v(T), v(T)))
a('global_load_dword %s, %s, %s' % (v(T + 22), v(T), s(sPc, 2)))
a('v_lshrrev_b32 %s, 6, v0' % v(T))
a('v_and_b32 %s, 63, v0' % v(vL))
a('v_readfirstlane_b32 %s, %s' % (s(sW), v(T)))
a('s_lshr_b32 s3, s2, 3')
a('s_and_b32 %s, s3, 7' % s(sJ))
a('s_lshr_b32 s3, s3, 3')
a('s_and_b32 s31, s2, 7')
a('s_lshl_b32 %s, s31, 2' % s(sGam))
a('s_add_u32 %s, %s, s3' % (s(sGam), s(sGam)))
u16, pos16, u8, pos8, l3, col16 = T + 1, T + 2, T + 3, T + 4, T + 5, T + 6
t0, t1, t2, t3 = T + 8, T + 9, T + 10, T + 11
k0 = T + 12


def pro_wq():
    a('v_lshrrev_b32 %s, 4, %s' % (v(u16), v(vL)))
    a('v_and_b32 %s, 15, %s' % (v(pos16), v(vL)))
    a('v_lshlrev_b32 %s, 1, %s' % (v(t2), v(u16)))
    a('v_xor_b32 %s, %s, %s' % (v(t2), v(t2), v(pos16)))
    a('v_lshlrev_b32 %s, 4, %s' % (v(t2), v(t2)))
    a('v_lshl_add_u32 %s, %s, 13, %s' % (v(t0), v(u16), v(t2)))
    a('v_xor_b32 %s, 0x80, %s' % (v(t1), v(t0)))
    a('v_add_u32 %s, %d, %s' % (v(t1), 2 * 31744, v(t1)))
    a('s_lshl_b32 s49, %s, 12' % s(sW))
    a('s_lshl_b32 s55, %s, 19' % s(sJ))
    a('s_lshl_b32 s56, %s, 17' % s(sW))
    a('s_add_u32 s55, s55, s56')
    a('s_lshl_b32 s56, %s, 8' % s(sGam))
    a('s_add_u32 s55, s55, s56')
    a('s_add_u32 m0, s49, %d' % WQ)


def pro_rest():
    a('v_and_b32 %s, 3, %s' % (v(l3), v(vL)))
    a('v_lshl_add_u32 %s, %s, 2, %s' % (v(col16), v(l3), v(u16)))
    a('s_lshl_b32 s48, %s, 5' % s(sW))
    a('v_lshl_add_u32 %s, %s, 1, s48' % (v(vXw), v(col16)))
    a('v_lshl_add_u32 %s, %s, 8, %s' % (v(vVo), v(u16), v(t2)))
    a('v_xor_b32 %s, 0x80, %s' % (v(vVo + 1), v(vVo)))
    a('v_xor_b32 %s, %s, %s' % (v(k0), v(u16), v(pos16)))
    a('v_lshlrev_b32 %s, 4, %s' % (v(k0), v(k0)))
    a('v_lshl_add_u32 %s, %s, 8, %s' % (v(k0), v(u16), v(k0)))
    for i in range(1, 4):
        a('v_xor_b32 %s, %d, %s' % (v(k0 + i), i << 6, v(k0)))
    a('s_lshl_b32 s48, %s, 7' % s(sJ))
    a('s_lshl_b32 s56, %s, 20' % s(sGam))
    a('s_lshl_b32 s58, %s, 15' % s(sJ))
    a('s_add_u32 s56, s56, s58')
    a('s_lshl_b32 s58, %s, 13' % s(sW))
    a('s_add_u32 s56, s56, s58')
    a('s_add_u32 s56, s56, %d' % (3072 * 256))


def pro_touch():
    a('v_lshl_add_u32 %s, %s, 4, s49' % (v(vCons), v(vL)))
    a('s_lshl_b32 s57, %s, 14' % s(sGam))
    a('s_add_u32 s57, s57, %d' % WS_L)
    a('s_add_u32 s3, s48, s57')
    a('s_add_u32 s59, s3, s49')
    a('v_lshl_add_u32 %s, %s, 10, s59' % (v(t3), v(vL)))
    a('v_cmp_lt_u32 vcc, 2, %s' % v(vL))
    a('s_add_u32 s3, s3, %d' % STATS)
    a('v_mov_b32 %s, s3' % v(T + 17))
    a('v_cndmask_b32 %s, %s, %s, vcc' % (v(t3), v(t3), v(T + 17)))
    if OPT['probe'] in (1, 2):
        a('s_add_u32 s3, s57, %d' % VOTES)
        a('v_writelane_b32 %s, s3, 3' % v(t3))
        a('s_add_u32 s3, s3, 128')
        a('v_writelane_b32 %s, s3, 4' % v(t3))
    a('s_and_b32 s3, s48, 0x180')
    a('s_add_u32 s3, s3, s57')
    a('s_add_u32 s3, s3, %d' % (STATS + ST0))
    a('v_writelane_b32 %s, s3, 5' % v(t3))


PRO = OPT.get('pro', 2)
pro_wq()
if PRO < 2:
    pro_rest()
if PRO < 1:
    pro_touch()
stamp('pre ka')
a('s_waitcnt lgkmcnt(0)')
stamp('ka')
a('s_add_u32 s10, s10, s55')
a('s_addc_u32 s11, s11, 0')
a('global_load_lds_dwordx4 %s, s[10:11] offset:0%s' % (v(t0), NT))
a('v_add_u32 %s, 31744, %s' % (v(t0), v(t0)))
a('s_load_dword %s, s[26:27], 0' % s(sE))
a('global_load_lds_dwordx4 %s, s[10:11] offset:1024%s' % (v(t0), NT))
a('global_load_lds_dwordx4 %s, s[10:11] offset:2048%s' % (v(t1), NT))
a('v_add_u32 %s, 31744, %s' % (v(t1), v(t1)))
a('global_load_lds_dwordx4 %s, s[10:11] offset:3072%s' % (v(t1), NT))
if PRO >= 2:
    pro_rest()
a('s_add_u32 s4, s4, s48')
a('s_addc_u32 s5, s5, 0')
a('global_load_ushort %s, %s, s[4:5]' % (v(vX), v(vXw)))
a('s_add_u32 s6, s6, s56')
a('s_addc_u32 s7, s7, 0')
if PRO < 1:
    a('global_load_dword %s, %s, s[26:27]' % (v(T + 22), v(t3)))
a('s_add_u32 m0, s58, %d' % KI)
stamp('wq iss')
a('s_barrier')
for i in range(4):
    a('global_load_lds_dwordx4 %s, s[6:7] offset:%d%s' % (v(k0 + i), 1024 * i, NT))


def k_second():
    a('s_add_u32 m0, s58, %d' % (KI + 4096))
    a('s_add_u32 s6, s6, 4096')
    a('s_addc_u32 s7, s7, 0')
    for i in range(4):
        a('global_load_lds_dwordx4 %s, s[6:7] offset:%d%s' % (v(k0 + i), 1024 * i, NT))


if not OPT['ksplit']:
    k_second()
if PRO >= 1:
    pro_touch()
    a('global_load_dword %s, %s, s[26:27]' % (v(T + 22), v(t3)))
stamp('issued')
a('s_add_u32 s8, s8, s56')
a('s_addc_u32 s9, s9, 0')
a('s_add_u32 %s, s26, s57' % s(sLb))
a('s_addc_u32 %s, s27, 0' % s(sLb + 1))
a('s_lshl_b32 s55, %s, %d' % (s(sJ), 14 + PAD))
a('s_add_u32 s55, s55, %d' % (WS_G + GOFF))
a('s_add_u32 %s, s26, s55' % s(sGb0))
a('s_addc_u32 %s, s27, 0' % s(sGb0 + 1))
a('s_add_u32 %s, %s, 0x%x' % (s(sGb1), s(sGb0), 0x40000 << PAD))
a('s_addc_u32 %s, %s, 0' % (s(sGb1 + 1), s(sGb0 + 1)))
a('s_getreg_b32 %s, hwreg(HW_REG_XCC_ID, 0, 4)' % s(sXcc))
a('s_lshl_b32 %s, s2, 2' % s(sPr))
a('s_add_u32 %s, %s, %s' % (s(sPr), s(sPr), s(sW)))
a('s_and_b32 s55, %s, 63' % s(sPr))
a('s_lshl_b32 s55, s55, 7')
a('s_lshr_b32 %s, %s, 6' % (s(sPr), s(sPr)))
a('s_lshl_b32 %s, %s, 14' % (s(sPr), s(sPr)))
a('s_add_u32 %s, %s, s55' % (s(sPr), s(sPr)))
a('s_add_u32 %s, %s, %d' % (s(sPr), s(sPr), WS_P))
if OPT['probe'] == 1:
    a('s_lshl_b32 s55, s49, %d' % PAD)
    a('s_and_b32 s55, s55, 8192')
    a('s_add_u32 %s, %s, s55' % (s(sPr), s(sPr)))
a('s_mov_b32 %s, 0x40000' % s(sTo))
a('s_mov_b32 %s, %s' % (s(sCs), f32(math.log2(math.e) / math.sqrt(128.0))))
a('s_mov_b32 %s, 0xffffff00' % s(sMaskHi))
a('s_mov_b32 %s, %s' % (s(sInv512), f32(1.0 / 512)))
a('s_mov_b32 %s, %s' % (s(sEps), f32(1e-5)))
a('s_mov_b32 %s, %s' % (s(sNl2e), f32(-math.log2(math.e))))
a('s_mov_b32 %s, 0xffff0000' % s(sM0))
a('s_mov_b32 %s, 0xffff0000' % s(sM0 + 1))
a('s_mov_b32 %s, 0x10000' % s(sM1))
a('s_mov_b32 %s, 0x10000' % s(sM1 + 1))
a('s_mov_b32 %s, 0' % s(sHi))
a('s_mov_b32 %s, -1' % s(sHi + 1))
a('s_mul_i32 %s, %s, 43' % (s(sC0), s(sGam)))
a('s_add_u32 %s, %s, 43' % (s(sCnt), s(sC0)))
a('s_lshr_b32 %s, %s, 3' % (s(sC0), s(sC0)))
a('s_lshr_b32 %s, %s, 3' % (s(sCnt), s(sCnt)))
a('s_sub_u32 %s, %s, %s' % (s(sCnt), s(sCnt), s(sC0)))
a('s_lshl_b32 %s, %s, 3' % (s(sCnt), s(sCnt)))
a('v_mov_b32 %s, 0' % v(vZero))
a('v_lshrrev_b32 %s, 3, %s' % (v(u8), v(vL)))
a('v_and_b32 %s, 7, %s' % (v(pos8), v(vL)))
a('s_add_u32 s55, s49, s48')
a('v_and_b32 %s, 31, %s' % (v(t0), v(vL)))
a('v_lshl_add_u32 %s, %s, 2, s55' % (v(vPubL), v(t0)))
a('v_lshrrev_b32 %s, 5, %s' % (v(t3), v(vL)))
a('v_lshl_add_u32 %s, %s, 10, %s' % (v(vPubL), v(t3), v(vPubL)))
a('s_lshl_b32 s55, %s, 6' % s(sW))
a('v_lshl_add_u32 %s, %s, 1, s55' % (v(vPw), v(t0)))
a('v_lshl_add_u32 %s, %s, 2, %s' % (v(t1), v(pos8), v(u16)))
a('v_lshl_add_u32 %s, %s, 1, s55' % (v(vQw), v(t1)))
a('s_lshl_b32 s55, %s, 6' % s(sGam))
a('s_add_u32 s55, s55, s49')
if PAD:
    a('s_lshl_b32 s55, s55, 1')
a('v_lshl_add_u32 %s, %s, 2, s55' % (v(vPubG), v(pos16)))
if PAD:
    a('v_lshl_add_u32 %s, %s, 6, %s' % (v(vPubG), v(t3), v(vPubG)))
a('v_and_b32 %s, 1, %s' % (v(t2), v(u16)))
a('v_mul_u32_u24 %s, 0x%x, %s' % (v(t2), G_X, v(t2)))
a('v_xor_b32 %s, %s, %s' % (v(vPubG), v(vPubG), v(t2)))
a('v_lshl_add_u32 %s, %s, %d, s55' % (v(vPre), v(pos8), 3 + PAD))
a('v_xor_b32 %s, %s, %s' % (v(vPre), v(vPre), v(t2)))
a('v_and_b32 %s, 1, %s' % (v(t2), v(u8)))
a('v_lshl_add_u32 %s, %s, %d, %s' % (v(vPre), v(t2), 11 + PAD, v(vPre)))
a('v_lshl_add_u32 %s, %s, %d, %s' % (v(vPre), v(t3), 18 + PAD, v(vPre)))
a('s_lshl_b32 s55, %s, 2' % s(sJ))
a('s_add_u32 s55, s55, %s' % s(sW))
a('s_lshl_b32 s55, s55, 4')
a('s_add_u32 s55, s55, %d' % STATS)
a('v_mov_b32 %s, s55' % v(vStP))
a('v_lshl_add_u32 %s, %s, 3, s55' % (v(vStP2), v(t3)))
a('v_lshlrev_b32 %s, 4, %s' % (v(t1), v(l3)))
a('v_lshl_add_u32 %s, %s, 6, %s' % (v(t1), v(u8), v(t1)))
a('v_add_u32 %s, %d, %s' % (v(vStC), STATS, v(t1)))
a('v_mov_b32 %s, 0xff' % v(t2))
a('v_cmp_eq_u32 vcc, 0, %s' % v(l3))
a('v_lshlrev_b32 %s, 4, %s' % (v(vOpR), v(u16)))
a('v_and_b32 %s, 8, %s' % (v(t1), v(vL)))
a('v_cndmask_b32 %s, 0, %s, vcc' % (v(vTagM), v(t2)))
a('v_lshl_add_u32 %s, %s, 4, %s' % (v(vXopR), v(t1), v(vOpR)))
a('v_and_b32 %s, 4, %s' % (v(t1), v(vL)))
a('v_cmp_eq_u32 vcc, 0, %s' % v(t1))
a('v_add_u32 %s, %d, %s' % (v(t1), HB, v(vXw)))
a('v_mov_b32 %s, %d' % (v(t2), DUMMY))
a('v_cndmask_b32 %s, %s, %s, vcc' % (v(vHw), v(t2), v(t1)))
a('v_lshrrev_b32 %s, 1, %s' % (v(t1), v(vXw)))
a('v_cmp_gt_u32 vcc, %s, %s' % (s(sCnt), v(t1)))
a('s_lshl_b32 s55, %s, 2' % s(sW))
a('v_mov_b32 %s, s55' % v(vMw))
a('v_lshlrev_b32 %s, 2, %s' % (v(vMr), v(l3)))
a('v_cndmask_b32 %s, 0, -1, vcc' % v(vHmask))
a('v_lshlrev_b32 %s, 2, %s' % (v(t0), v(t0)))
a('v_mov_b32 %s, 0x3f803f80' % v(t1))
a('ds_write_b32 %s, %s offset:%d' % (v(t0), v(t1), ONES))
a('v_lshlrev_b32 %s, 2, %s' % (v(t0), v(pos8)))
a('ds_write_b32 %s, %s offset:%d' % (v(t0), v(vZero), HB + 96))
if PAD:
    a('v_lshrrev_b32 %s, 2, %s' % (v(t1), v(vL)))
    a('v_lshlrev_b32 %s, 4, %s' % (v(t2), v(l3)))
    a('v_lshl_add_u32 %s, %s, 7, %s' % (v(t1), v(t1), v(t2)))
    a('s_lshl_b32 s59, s49, 1')
    a('v_add_u32 %s, s59, %s' % (v(vConsG), v(t1)))
else:
    a('v_mov_b32 %s, %s' % (v(vConsG), v(vCons)))
a('v_mov_b32 %s, %s' % (v(vConsG0), v(vConsG)))
a('v_mov_b32 %s, %s' % (v(vSt + 3), s(sXcc)))
r_ = T + 16
a('v_lshrrev_b32 %s, 2, %s' % (v(r_), v(pos16)))
a('v_and_b32 %s, 1, %s' % (v(t0), v(u16)))
a('v_lshl_add_u32 %s, %s, 2, %s' % (v(t1), v(t0), v(r_)))
a('v_lshlrev_b32 %s, 1, %s' % (v(t1), v(t1)))
a('v_xor_b32 %s, s55, %s' % (v(t1), v(t1)))
a('v_lshlrev_b32 %s, 4, %s' % (v(t1), v(t1)))
a('v_lshl_add_u32 %s, %s, 3, %s' % (v(t1), v(l3), v(t1)))
a('v_lshl_add_u32 %s, %s, 3, %s' % (v(t2), v(u16), v(r_)))
a('v_lshl_add_u32 %s, %s, 8, %s' % (v(trq), v(t2), v(t1)))
a('v_xor_b32 %s, 32, %s' % (v(trq + 1), v(trq)))
a('v_lshrrev_b32 %s, 1, %s' % (v(t1), v(r_)))
a('v_lshl_add_u32 %s, %s, 1, %s' % (v(t1), v(t0), v(t1)))
a('v_xor_b32 %s, %s, %s' % (v(t1), s(sW), v(t1)))
a('v_lshlrev_b32 %s, 5, %s' % (v(t1), v(t1)))
a('v_lshl_add_u32 %s, %s, 3, %s' % (v(t1), v(l3), v(t1)))
a('v_lshl_add_u32 %s, %s, 7, %s' % (v(vTr), v(t2), v(t1)))
a('v_add_u32 %s, %d, %s' % (v(vTr), WO, v(vTr)))
a('v_and_b32 %s, 2, %s' % (v(t0), v(u8)))
a('v_xor_b32 %s, %s, %s' % (v(t0), v(t0), v(pos8)))
a('v_lshlrev_b32 %s, 4, %s' % (v(t1), v(t0)))
a('v_lshl_add_u32 %s, %s, 10, %s' % (v(wo0), v(u8), v(t1)))
a('v_xor_b32 %s, 64, %s' % (v(wo1), v(wo0)))
a('v_add_u32 %s, 7168, %s' % (v(wo1), v(wo1)))
a('v_mul_u32_u24 %s, 2752, %s' % (v(t2), v(u8)))
a('v_min_u32 %s, 5, %s' % (v(t1), v(t0)))
a('v_lshl_add_u32 %s, %s, 4, %s' % (v(f0), v(t1), v(t2)))
a('v_xor_b32 %s, 4, %s' % (v(t0), v(t0)))
a('v_min_u32 %s, 5, %s' % (v(t1), v(t0)))
a('v_lshl_add_u32 %s, %s, 4, %s' % (v(f1), v(t1), v(t2)))
a('v_add_u32 %s, %d, %s' % (v(f1), 8 * 2752 - 1024, v(f1)))
a('s_lshl_b32 s55, %s, 17' % s(sGam))
a('s_lshl_b32 s59, %s, 15' % s(sW))
a('s_add_u32 s55, s55, s59')
a('s_add_u32 s55, s55, s48')
a('s_add_u32 s12, s12, s55')
a('s_addc_u32 s13, s13, 0')
a('s_lshl_b32 s55, %s, 2' % s(sJ))
a('s_add_u32 s55, s55, %s' % s(sW))
a('s_mul_i32 s55, s55, %d' % (16 * 2752))
a('s_lshl_b32 s59, %s, 4' % s(sC0))
a('s_add_u32 s55, s55, s59')
a('s_add_u32 s16, s16, s55')
a('s_addc_u32 s17, s17, 0')
a('s_add_u32 s18, s18, s55')
a('s_addc_u32 s19, s19, 0')
a('s_lshl_b32 s55, %s, 13' % s(sC0))
a('s_min_u32 s59, %s, 2' % s(sW))
a('s_lshl_b32 s59, s59, 14')
a('s_add_u32 s55, s55, s59')
a('s_add_u32 s55, s55, s48')
a('s_add_u32 s20, s20, s55')
a('s_addc_u32 s21, s21, 0')
a('s_add_u32 s22, s22, s48')
a('s_addc_u32 s23, s23, 0')
if OPT['ksplit']:
    k_second()
a('s_add_u32 s6, s8, 4096')
a('s_addc_u32 s7, s9, 0')
a('s_waitcnt lgkmcnt(0)')
for k in range(10):
    a('s_add_u32 %s, %s, %d' % (s(sTag + k), s(sE), k + 1))


def issue_v(lo, hi):
    for i in range(lo, hi):
        if i == lo or i == 4:
            a('s_add_u32 m0, s58, %d' % (VI + 4096 * (i >> 2)))
            a('s_nop 0')
        a('global_load_lds_dwordx4 %s, %s offset:%d%s' % (v(vVo + ((i >> 1) & 1)), 's[6:7]' if i >= 4 else 's[8:9]', 1024 * (i & 3), NT))


def issue_wo():
    a('s_add_u32 m0, s49, %d' % WO)
    a('v_add_u32 %s, %d, %s' % (v(T + 20), 2 * 7168, v(wo0)))
    a('global_load_lds_dwordx4 %s, s[12:13] offset:0%s' % (v(wo0), NT))
    a('global_load_lds_dwordx4 %s, s[12:13] offset:1024%s' % (v(wo1), NT))
    a('global_load_lds_dwordx4 %s, s[12:13] offset:2048%s' % (v(T + 20), NT))
    a('v_add_u32 %s, %d, %s' % (v(T + 20), 2 * 7168, v(wo1)))
    a('global_load_lds_dwordx4 %s, s[12:13] offset:3072%s' % (v(T + 20), NT))


def issue_w13(lo, hi):
    for i in range(lo, hi):
        if i == lo or i == 2:
            a('s_lshl_b32 s59, %s, 11' % s(sW))
            a('s_add_u32 m0, s59, %d' % (W1 if i < 2 else W3))
            a('s_nop 0')
        a('global_load_lds_dwordx4 %s, s[%d:%d] offset:%d%s' % (v(f0 + (i & 1)), 16 + (i & 2), 17 + (i & 2), 1024 * (i & 1), NT))


def issue_w2():
    a('s_min_u32 s59, %s, 2' % s(sW))
    a('s_lshl_b32 s59, s59, 11')
    a('s_add_u32 m0, s59, %d' % W2)
    a('s_nop 0')
    a('global_load_lds_dwordx4 %s, s[20:21] offset:0%s' % (v(wo0), NT))
    a('global_load_lds_dwordx4 %s, s[20:21] offset:1024%s' % (v(wo1), NT))


r = vP
FE, KW, WOL = OPT['fe'], OPT['kw'], OPT['wol']
NPRE = 1 + bool(OPT['probe'])
NVA = OPT['nva']
NVB = 8 - NVA
NLATE = 0 if WOL else 4 + FE + 2 * OPT['w2e']


WOETC = []


def front():
    a('; ---- layer 0: x slice, query projection partials')
    set_tags(0)
    a('v_add_u32 %s, 0x%x, %s' % (v(T + 12), WS_L2D, v(vStP2)))
    a('v_add_u32 %s, 0x%x, %s' % (v(T + 13), WS_L2D, v(vPubL)))
    a('v_add_u32 %s, 0x%x, %s' % (v(T + 14), ST0, v(vStP2)))
    stamp('consts')
    a('s_waitcnt vmcnt(9)')
    stamp('wq landed')
    a('ds_write_b16 %s, %s offset:%d' % (v(vXw), v(vX), XB))
    issue_v(0, OPT['vq'])
    a('v_lshlrev_b32 %s, 16, %s' % (v(vSt4), v(vX)))
    a('v_lshlrev_b32 %s, 16, %s' % (v(vX), v(vX)))
    FAST[0] = True
    ln_stats(0, T + 14)
    a('s_waitcnt lgkmcnt(0)')

    proj(vWQ, 0, 0, wsrc=[(trq, WQ, 8192, 1024), (trq + 1, WQ, 8192, 1024)], first=True)
    FAST[0] = False
    stamp('L0 Q pub')
    if OPT.get('te'):
        h = OPT.get('th', 4)
        issue_v(OPT['vq'], h)
        sk = newlabel('noth')
        a('s_cmp_ge_u32 %s, 4' % s(sXcc))
        a('s_cbranch_scc1 %s' % sk)
        a('s_waitcnt vmcnt(%d)' % max(8 - OPT['te'] + (PRO >= 1) + 2 + h, 0))
        a.label(sk)
        issue_v(h, NVA)
    else:
        issue_v(OPT['vq'], NVA)
    lstore('global_store_dword', v(T + 13), v(T), BUF_A)
    a('s_mov_b64 exec, %s' % s(sM1, 2))
    lstore('global_store_dwordx2', v(T + 12), v(vSt4, 2), 0)
    a('s_mov_b64 exec, -1')
    a('v_mov_b32 %s, %s' % (v(T + 16), s(sE)))
    a('v_mov_b32 %s, %s' % (v(T + 17), s(sE)))
    if PAD:
        a('v_mov_b32 %s, %s' % (v(T + 18), s(sE)))
        a('v_mov_b32 %s, %s' % (v(T + 19), s(sE)))
    a('global_store_dwordx%d %s, %s, %s offset:%d sc1' % (2 << PAD, v(vPre), v(T + 16, 2 << PAD), s(sGb0, 2), -GOFF))
    if OPT['probe']:
        a('v_and_b32 %s, 31, %s' % (v(T + 18), v(vL)))
        a('v_lshl_add_u32 %s, %s, 2, %s' % (v(T + 18), v(T + 18), s(sPr)))
        a('v_lshrrev_b32 %s, 5, %s' % (v(T + 19), v(vL)))
        a('v_lshlrev_b32 %s, 13, %s' % (v(T + 19), v(T + 19)))
        a('v_xor_b32 %s, %s, %s' % (v(T + 18), v(T + 19), v(T + 18)))
        a('global_store_dword %s, %s, s[26:27] sc1' % (v(T + 18), v(T + 16)))
    a('; ---- layer 0: gather q')
    a('v_xor_b32 %s, %s, %s' % (v(t0), v(u16), v(pos16)))
    a('v_lshlrev_b32 %s, 4, %s' % (v(t0), v(t0)))
    a('v_lshl_add_u32 %s, %s, 8, %s' % (v(t0), v(pos16), v(t0)))
    a('s_add_u32 s55, s58, %d' % KI)
    a('v_add_u32 %s, s55, %s' % (v(t0), v(t0)))
    for kk in range(1, 4):
        a('v_xor_b32 %s, %d, %s' % (v(t0 + kk), kk << 6, v(t0)))
    alt, both, alts, boths = T + 13, T + 14, T + 15, T + 21
    a('v_mov_b32 %s, %s' % (v(alt), v(vCons)))
    a('v_lshlrev_b32 %s, 1, %s' % (v(both), v(vCons)))
    a('v_add_u32 %s, 0x%x, %s' % (v(both), WS_L2D, v(both)))
    a('v_add_u32 %s, 0x%x, %s' % (v(alts), ST0, v(vStC)))
    a('v_lshlrev_b32 %s, 1, %s' % (v(boths), v(vStC)))
    a('v_add_u32 %s, 0x%x, %s' % (v(boths), WS_L2D + ST0, v(boths)))
    page_break(True)
    behind_k = 2 + NVA + 2 + NPRE + (PRO >= 1)
    a('s_waitcnt vmcnt(%d)' % (8 - KW + behind_k))
    stamp('K part')
    loads = [(vSs[0], alts, sLb, 0), (r, alt, sLb, BUF_A), (r + 4, alt, sLb, BUF_X)]
    for x in loads:
        gload(*x)
    issue_v(NVA, 8)

    def wo_etc():
        issue_wo()
        if OPT['w2e']:
            issue_w2()
        issue_w13(0, FE)
    if not WOL:
        wo_etc()
    a('s_waitcnt vmcnt(%d)' % (behind_k + 3 + NVB + NLATE))
    stamp('K landed')
    for g in range(2):
        for kk in range(4):
            a('ds_read_b128 %s, %s offset:%d' % (v(vK + 16 * g + 4 * kk, 4), v(t0 + kk), 4096 * g))
    a('s_branch L_e1ent')
    a.label('L_e1top')
    tick()
    a('v_sub_u32 %s, %s, %s' % (v(alt), v(both), v(alt)))
    a('v_sub_u32 %s, %s, %s' % (v(alts), v(boths), v(alts)))
    for x in loads:
        gload(*x)
    if NLATE + NVB:
        a('s_waitcnt vmcnt(0)')
    a.label('L_e1ent')
    a('s_waitcnt vmcnt(%d)' % (NLATE + NVB))
    a('v_bitop3_b32 %s, %s, %s, %s bitop3:0x7e' % (v(T + 23), v(r), v(r + 4), s(sTag)))
    a('v_cmp_ne_u32 %s, %s, %s' % (s(sT1, 2), s(sTag), v(vSs[0] + 1)))
    a('v_cmp_ne_u32_sdwa vcc, %s, %s src0_sel:BYTE_0 src1_sel:DWORD' % (v(T + 23), v(vZero)))
    a('s_or_b64 vcc, vcc, %s' % s(sT1, 2))
    a('s_cbranch_vccnz L_e1top')
    stamp('L0 E1 ok')
    if OPT['fl']:
        flag_store(sE)
    if WOL and OPT['wopos'] == 0:
        wo_etc()
    WOETC.append(wo_etc)
    a('v_cmp_ne_u32 vcc, %s, %s' % (s(sXcc), v(vSs[0] + 3)))
    c, x, y = vC, vSs[0], r + 4
    ln_spec(x)
    mask_tag(y)
    a('v_mov_b32 %s, %s' % (v(c + 1), v(c)))
    a('v_permlane32_swap_b32 %s, %s' % (v(y + 1), v(y + 3)))
    mask_tag(r)
    a('v_permlane16_swap_b32 %s, %s' % (v(c), v(c + 1)))
    a('v_add_f32 %s, %s, %s' % (v(c), v(c), v(c + 1)))
    a('v_add_f32 %s, %s, %s' % (v(y + 1), v(y + 1), v(y + 3)))
    a('v_permlane32_swap_b32 %s, %s' % (v(y), v(y + 2)))
    dpp('v_add_f32', c, c, c, 'row_ror:8')
    a('v_add_f32 %s, %s, %s' % (v(y), v(y), v(y + 2)))
    a('v_permlane32_swap_b32 %s, %s' % (v(r + 1), v(r + 3)))
    dpp('v_add_f32', c, c, c, X1)
    a('v_add_f32 %s, %s, %s' % (v(r + 1), v(r + 1), v(r + 3)))
    a('v_permlane16_swap_b32 %s, %s' % (v(y), v(y + 1)))
    dpp('v_add_f32', c, c, c, X2)
    a('v_add_f32 %s, %s, %s' % (v(y), v(y), v(y + 1)))
    a('v_mul_f32 %s, %s, %s' % (v(c), s(sInv512), v(c)))
    a('v_mov_b32 %s, %s' % (v(c + 1), v(c)))
    a('v_permlane32_swap_b32 %s, %s' % (v(r), v(r + 2)))
    dpp('v_add_f32', vCq, y, y, 'row_ror:8')
    a('v_permlane32_swap_b32 %s, %s' % (v(c), v(c + 1)))
    a('v_add_f32 %s, %s, %s' % (v(r), v(r), v(r + 2)))
    bf16r(vMean, c)
    if OPT['fast']:
        a('s_cbranch_vccnz L_slowtail')


def CLEAN():
    return OPT['clean'] if FAST[0] else 0


def tail():
    for layer in range(2):
        pre = 'L%d' % layer
        k1, k2, k4 = 3 * layer, 3 * layer + 1, 3 * layer + 2

        def spec(x):
            mask_tag(x)
            red_a(x, r)
        if layer == 1:
            a('; ---- layer 1: x slice, query projection partials')
            set_tags(k1)
            if OPT['pages'] == 1:
                page_break()
            if OPT['probe'] == 3:
                race_pick()
            elif OPT['probe'] and OPT['vlate']:
                count_votes()
            if CLEAN():
                clean_prep()
            g_pace(1)
            x_gather(1, G_D)
            stamp(pre + ' E5 ok')
            x_to_lds(k1)
            a('s_waitcnt lgkmcnt(0)')
            proj(vWQ, k1, layer)
            stamp(pre + ' Q pub')
            a('; ---- layer 1: gather q')
            l_gather(k1, spec, ln_spec, [ln_mean])
            stamp(pre + ' E1 ok')
        red_b(r, r)
        a('v_fma_f32 %s, -%s, %s, %s' % (v(r), v(vMean), v(vCq), v(r)))
        a('v_cvt_pk_bf16_f32 %s, %s, %s' % (v(r), v(r), v(r)))
        a('ds_write_b16 %s, %s offset:%d' % (v(vQw), v(r), QB))
        if layer == 1 and CLEAN() & 1 and not OPT['cend'] & 1:
            clean_x()
        ln_rstd_a()
        if layer == 0 and WOL and OPT['wopos'] == 1:
            WOETC[0]()
        a('s_waitcnt lgkmcnt(0)')
        stamp('z%d qw' % layer)
        a('s_barrier')
        stamp('z%d qb' % layer)
        a('; ---- layer %d: attention over this member\'s 128 keys' % layer)
        for kk in range(4):
            a('ds_read_b128 %s, %s offset:%d' % (v(vA + 4 * kk, 4), v(vOpR), QB + 64 * kk))
        ln_rstd_b(True)
        set_tags(k2)
        for kk in range(4):
            lgkm(3 - kk)
            for g in range(2):
                mfma(vD + 4 * g, vA + 4 * kk, vK + 16 * g + 4 * kk, vD + 4 * g if kk else None)
        stamp('z%d qk' % layer)
        if layer == 0:
            if WOL and OPT['wopos'] == 2:
                WOETC[0]()
            if NVB:
                a('s_waitcnt vmcnt(%d)' % (4 + FE + 2 * OPT['w2e']))
                a('s_barrier')
            tr_reads(vV, trq, VI, 4, 8192, 1024)
        sg = vSt
        mx, e0 = T, T + 1
        a('v_max_f32 %s, %s, %s' % (v(mx), v(vD), v(vD + 4)))
        a('v_cndmask_b32 %s, %s, %s, %s' % (v(e0), v(vD), v(vD + 4), s(sM0, 2)))
        for ro in (8, 4, 2, 1):
            dpp('v_max_f32', mx, mx, mx, 'row_ror:%d' % ro)
        a('v_mul_f32 %s, %s, %s' % (v(sg), v(vCs), v(mx)))
        a('v_fma_f32 %s, %s, %s, -%s' % (v(e0), v(e0), v(vCs), v(sg)))
        a('v_exp_f32 %s, %s' % (v(sg + 1), v(e0)))
        stamp('z%d ex' % layer)
        a('ds_write_b32 %s, %s offset:%d' % (v(vMw), v(sg), MB))
        a('v_cvt_pk_bf16_f32 %s, %s, %s' % (v(e0), v(sg + 1), v(sg + 1)))
        a('ds_write_b16 %s, %s offset:%d' % (v(vPw), v(e0), PB))
        if layer == 0:
            tr_reads(vV + 16, trq + 1, VI, 4, 8192, 1024)
        for ro in (8, 4, 2):
            dpp('v_add_f32', sg + 1, sg + 1, sg + 1, 'row_ror:%d' % ro)
        a('s_waitcnt lgkmcnt(0)')
        stamp('z%d pw' % layer)
        a('s_barrier')
        stamp('z%d pb' % layer)
        mm = T + 4
        a('ds_read_b32 %s, %s offset:%d' % (v(mm), v(vMr), MB))
        for kk in range(4):
            a('ds_read_b128 %s, %s offset:%d' % (v(vA + 4 * kk, 4), v(vOpR), PB + 64 * kk))
        dpp('v_add_f32', sg + 1, sg + 1, sg + 1, 'row_ror:1')
        dpp('v_add_f32', sg + 1, sg + 1, sg + 1, 'row_bcast:15', 0xa)
        a('s_mov_b64 exec, 0x10000')
        lstore('global_store_dwordx4', v(vStP), v(sg, 4), 512 * (k2 & 1))
        a('s_mov_b64 exec, -1')

        def sel(kk):
            a('v_cndmask_b32 %s, %s, %s, %s' % (v(T + 8 + kk), v(vD + 8 * kk), v(vD + 8 * kk + 4), s(sM0, 2)))

        def bc(kk):
            a('v_mov_b32_dpp %s, %s quad_perm:[%d,%d,%d,%d] row_mask:0xf bank_mask:0xf' % (v(T + 16 + kk), v(mm), kk, kk, kk, kk))

        def acc(kk):
            a('%s %s, %s, %s' % ('v_fmac_f32' if kk else 'v_mul_f32', v(T), v(T + 16 + kk), v(T + 8 + kk)))
        lgkm(3)
        stamp('z%d pr' % layer)
        mfma(vD, vA, vV)
        dpp('v_max_f32', mx, mm, mm, X1)
        mfma(vD + 4, vA, vV + 16)
        lgkm(2)
        mfma(vD + 8, vA + 4, vV + 4)
        dpp('v_max_f32', mx, mx, mx, X2)
        mfma(vD + 12, vA + 4, vV + 20)
        a('v_sub_f32 %s, %s, %s' % (v(mm), v(mm), v(mx)))
        lgkm(1)
        mfma(vD + 16, vA + 8, vV + 8)
        a('v_exp_f32 %s, %s' % (v(mm), v(mm)))
        mfma(vD + 20, vA + 8, vV + 24)
        lgkm(0)
        bc(0)
        mfma(vD + 24, vA + 12, vV + 12)
        bc(1)
        bc(2)
        mfma(vD + 28, vA + 12, vV + 28)
        stamp('z%d pv' % layer)
        stats_load(k2)
        sel(0)
        sel(1)
        acc(0)
        acc(1)
        sel(2)
        acc(2)
        bc(3)
        a('s_mov_b32 exec_hi, 0')
        sel(3)
        acc(3)
        a('v_bfi_b32 %s, %s, %s, %s' % (v(T), v(vTagM), s(sTag + k2), v(T)))
        lstore('global_store_dword', v(vPubL), v(T), BUF_A if k2 % 2 == 0 else BUF_B)
        a('s_mov_b32 exec_hi, -1')
        stamp(pre + ' S pub')
        if layer == 0 and OPT['fl'] and OPT['flp'] == 1:
            a('s_waitcnt vmcnt(0)')
            flag_store(sTag + 6)
            stats_load(k2)
            lstore('global_store_dword', v(vStP), v(vSt), 512 * (k2 & 1))
        a('; ---- layer %d: combine the 8 key blocks, output projection partials' % layer)
        mj, mg, mo, lo = T, T + 1, vC, vC + 1

        def sm_spec(x):
            dpp('v_max_f32', mj, x, x, X1)
            a('v_mov_b32 %s, %s' % (v(mo), v(x)))
            a('v_mov_b32 %s, %s' % (v(lo), v(x + 1)))

        def sm0():
            allred('v_max_f32', mj, T + 2, [1])
            dpp('v_max_f32', mg, mj, mj, 'row_ror:8')
            allred('v_max_f32', mg, T + 2, [4, 5])

        def sm1():
            a('v_sub_f32 %s, %s, %s' % (v(mo), v(mo), v(mg)))
            a('v_sub_f32 %s, %s, %s' % (v(mj), v(mj), v(mg)))
            a('v_exp_f32 %s, %s' % (v(mo), v(mo)))
            a('v_exp_f32 %s, %s' % (v(mj), v(mj)))
            a('v_mul_f32 %s, %s, %s' % (v(mo), v(mo), v(lo)))
            allred('v_add_f32', mo, T + 2, [0, 1, 3, 4, 5])
            a('v_rcp_f32 %s, %s' % (v(mo), v(mo)))
            a('v_mul_f32 %s, %s, %s' % (v(vF), v(mj), v(mo)))

        def spec2(x):
            mask_tag(x)
            a('v_pk_mul_f32 %s, %s, %s op_sel_hi:[1,0]' % (v(x + 2, 2), v(x + 2, 2), v(vF, 2)))
            a('v_pk_mul_f32 %s, %s, %s op_sel_hi:[1,0]' % (v(x, 2), v(x, 2), v(vF, 2)))
            red_a(x, r)
        l_gather(k2, spec2, sm_spec, [sm0, sm1], hook=(lambda: flag_store(sTag + 6)) if layer == 0 and OPT['fl'] and OPT['flp'] == 0 else None)
        stamp(pre + ' E2 ok')
        red_b(r, r)
        a('v_cvt_pk_bf16_f32 %s, %s, %s' % (v(r), v(r), v(r)))
        a('ds_write_b16 %s, %s offset:%d' % (v(vQw), v(r), OB))

        def ffn_rest():
            issue_w13(FE, 4)
            if not OPT['w2e']:
                issue_w2()
        if layer == 0 and OPT['ff'] in (2, 3):
            ffn_rest()
        if layer == 0 and OPT['ff'] == 6:
            issue_w13(FE, 4)
        if layer == 0 and OPT['ff'] == 7:
            issue_w13(FE, 2)
        a('s_waitcnt lgkmcnt(0)')
        a('s_barrier')
        if layer == 0 and OPT['ff'] == 5:
            gemv_publish_g(4, vWO, OB, 0, G_C, tr=True, mid=lambda: issue_w13(FE, 2), post=lambda: issue_w13(2, 4))
            issue_w2()
        elif layer == 0 and OPT['probe'] == 2:
            gemv_publish_g(4, vWO, OB, 0, G_C, tr=True, mid=race_prep, post=race_start)
        else:
            gemv_publish_g(4, vWO, OB, 2 * layer, G_C, tr=layer == 0)
        stamp(pre + ' O pub')
        a('; ---- layer %d: x slice, gate/up partials' % layer)
        set_tags(k4)
        if layer == 0 and OPT['ff'] == 1:
            nrest = 4 - FE + (0 if OPT['w2e'] else 2)
            if OPT['fl']:
                a('v_lshlrev_b32 %s, 7, %s' % (v(T + 5), v(vL)))
                a('v_add_u32 %s, %d, %s' % (v(T + 5), WS_F, v(T + 5)))
                flag_load()
            ffn_rest()
            if OPT['fl']:
                flag_wait(nrest)
            else:
                a('s_waitcnt vmcnt(%d)' % nrest)
            stamp('G0 ack')
            x_gather(0, G_C, work=probe_near if OPT['probe'] else None)
        else:
            flush_deferred()
            if layer == 0 and OPT['ff'] == 4:
                ffn_rest()
            if layer == 0 and OPT['ff'] == 7:
                issue_w13(2, 4)
            if layer == 0 and OPT['ff'] in (6, 7):
                issue_w2()
            if OPT['pages'] == 2:
                page_break()
            if layer == 0 and OPT['opre'] and OPT['clean'] & 8:
                sk = newlabel('noout')
                a('s_cmp_lg_u32 %s, 0' % s(sGam))
                a('s_cbranch_scc1 %s' % sk)
                a('s_mov_b32 exec_lo, 0x000f000f')
                a('s_mov_b32 exec_hi, 0x000f000f')
                a('global_store_short %s, %s, s[22:23] sc1' % (v(vXw), v(vZero)))
                a('s_mov_b64 exec, -1')
                a.label(sk)
            if layer == 0 and OPT['probe'] == 2:
                assert OPT['ff'] == 4
                race_finish(1 + 4 - FE + 2)
                if not OPT['vlate']:
                    count_votes()
            if layer == 0 and OPT['probe'] == 1:
                probe_near()
                if not OPT['vlate']:
                    count_votes()
            if layer == 0 and OPT['fl']:
                a('v_lshlrev_b32 %s, 7, %s' % (v(T + 5), v(vL)))
                a('v_add_u32 %s, %d, %s' % (v(T + 5), WS_F, v(T + 5)))
                flag_load()
                flag_wait(0)
            if layer or OPT['ff'] != 3:
                g_pace(2 * layer)
            else:
                for i in range(OPT.get('xs', 0)):
                    a('s_nop 15')
                stamp('G0 ack')
            x_gather(2 * layer, G_C)
        stamp(pre + ' E3 ok')
        x_to_lds(k4)
        a('s_cmp_eq_u32 %s, 3' % s(sW))
        a('s_waitcnt lgkmcnt(0)')
        idle = newlabel('idle')

        proj(vW13, k4, layer, wsrc=[(vTr, W1 - WO, 4096, 512), (vTr, W3 - WO, 4096, 512)] if layer == 0 else None, skip=idle)
        stamp(pre + ' G pub')
        if layer == 1 and CLEAN():
            a('v_mov_b32 %s, %s' % (v(vKeep), v(T)))
        a('; ---- layer %d: gather gate/up, activation' % layer)

        def w2_regs():
            a('v_and_b32 %s, 32, %s' % (v(T + 1), v(vL)))
            a('v_lshlrev_b32 %s, 6, %s' % (v(T + 1), v(T + 1)))
            a('v_sub_u32 %s, %s, %s' % (v(T + 1), v(vTr), v(T + 1)))
            tr_reads(vW2, vTr, W2 - WO, 1, 4096, 512)
            tr_reads(vW2 + 4, T + 1, W2 - WO + 4096, 1, 4096, 512)

        def ln_all():
            w2_regs()
            ln_mean()
            ln_rstd_a()
            ln_rstd_b(False)
        if layer == 0:
            loads = [(r, vCons, sLb, BUF_A), (r + 4, vCons, sLb, BUF_X)]

            def data():
                ln_spec(vSs[0])
                for x in loads:
                    gload(*x)

            def spec4():
                mask_tag(r)
                mask_tag(r + 4)
                red_a(r, r)
            flush_deferred()
            poll([(vSs[0], vStC, sLb, 0)], lambda: chk_stats(vSs[0], k4), data, cnt=1, issued=True)
            poll(loads, lambda: chk_byte([r, r + 4], sTag + k4), spec4, work=ln_all, issued=True)
            red_a(r + 4, r + 4)
            red_b(r + 4, vCg)
        else:
            l_gather(k4, spec, ln_spec, [ln_mean, ln_rstd_a, lambda: ln_rstd_b(False)])
        stamp(pre + ' E4 ok')
        red_b(r, r)
        a('v_fma_f32 %s, -%s, %s, %s' % (v(r), v(vMean), v(vCg), v(r)))
        a('v_mul_f32 %s, %s, %s' % (v(r), v(r), v(vRs)))
        bf16r(r, r)
        a('v_mul_f32 %s, %s, %s' % (v(r + 1), s(sNl2e), v(r)))
        a('v_exp_f32 %s, %s' % (v(r + 1), v(r + 1)))
        a('v_and_b32_dpp %s, %s, %s row_shl:4 row_mask:0xf bank_mask:0xf' % (v(r + 2), v(r), v(vHmask)))
        a('v_add_f32 %s, 1.0, %s' % (v(r + 1), v(r + 1)))
        a('v_rcp_f32 %s, %s' % (v(r + 1), v(r + 1)))
        a('v_mul_f32 %s, %s, %s' % (v(r), v(r), v(r + 1)))
        bf16r(r, r)
        a('v_mul_f32 %s, %s, %s' % (v(r), v(r), v(r + 2)))
        a('v_cvt_pk_bf16_f32 %s, %s, %s' % (v(r), v(r), v(r)))
        a('ds_write_b16 %s, %s' % (v(vHw), v(r)))
        if layer == 0:
            join = newlabel('join')

            def idle_path(idle=idle, join=join, w2_regs=w2_regs):
                a.label(idle)
                w2_regs()
                a('s_branch %s' % join)
            deferred.append(idle_path)
            a.label(join)
        else:
            join = newlabel('join')

            def idle_path1(idle=idle, join=join):
                a.label(idle)
                a('v_mov_b32 %s, %s' % (v(vKeep), s(sTag + 5)))
                a('s_cmp_lg_u32 s2, 255')
                a('s_cbranch_scc1 %s' % join)
                a('s_add_u32 s55, %s, 16' % s(sE))
                a('v_mov_b32 %s, s55' % v(T + 2))
                a('s_mov_b64 exec, 1')
                a('global_store_dword %s, %s, s[26:27] sc1' % (v(vZero), v(T + 2)))
                a('s_mov_b64 exec, -1')
                a('s_branch %s' % join)
            deferred.append(idle_path1)
            a.label(join)
        a('s_waitcnt lgkmcnt(0)')
        a('s_barrier')
        if layer == 0 and OPT['probe'] == 3:
            gemv_publish_g(2, vW2, HB, 1, G_D, mid=race_prep, post=race_start)
        else:
            gemv_publish_g(2, vW2, HB, 2 * layer + 1, G_D, mid=clean_a if layer == 1 and CLEAN() & 2 and not OPT['cend'] & 2 else None)
        stamp(pre + ' D pub')

    a('; ---- final sum (group 0 only)')
    if OPT.get('opack'):
        a('v_mov_b32 %s, 0xffff' % v(T + 11))
        a('v_and_b32 %s, 0x7c, %s' % (v(T + 12), v(vXw)))
    if CLEAN() & 4:
        fin = newlabel('last')
        clean_b_prep()
        a('s_cmp_eq_u32 %s, 0' % s(sGam))
        a('s_cbranch_scc1 %s' % fin)

        def clean_all():
            clean_b()
            if OPT['cend'] & 2:
                clean_a()
            if OPT['cend'] & 1:
                clean_x()
        a('s_waitcnt vmcnt(0)')
        clean_all()
        a('s_branch L_fin')
        flush_deferred(False)
        a.label(fin)
        g_pace(3)
        x_gather(3, G_D, work=clean_all, cnt=1 + bin(OPT['cend'] & 3).count('1'))
    else:
        a('s_cmp_lg_u32 %s, 0' % s(sGam))
        a('s_cbranch_scc1 L_fin')
        g_pace(3)
        x_gather(3, G_D)
    sc = ' sc1' if OPT['clean'] & 8 else ''
    if OPT.get('opack'):
        a('v_mov_b32 %s, %s' % (v(T + 1), v(T)))
        a('v_permlane16_swap_b32 %s, %s' % (v(T), v(T + 1)))
        a('v_bfi_b32 %s, %s, %s, %s' % (v(T), v(T + 11), v(T), v(T + 1)))
        if OPT['opack'] == 2:
            a('v_mov_b32 %s, %s' % (v(T + 1), v(T)))
            a('v_permlane32_swap_b32 %s, %s' % (v(T), v(T + 1)))
            a('s_mov_b64 exec, 15')
            a('global_store_dwordx2 %s, %s, s[22:23]%s' % (v(T + 12), v(T, 2), sc))
        else:
            a('s_mov_b32 exec_lo, 15')
            a('s_mov_b32 exec_hi, 15')
            a('global_store_dword %s, %s, s[22:23]%s' % (v(T + 12), v(T), sc))
    else:
        a('s_mov_b32 exec_lo, 0x000f000f')
        a('s_mov_b32 exec_hi, 0x000f000f')
        a('global_store_short %s, %s, s[22:23]%s' % (v(vXw), v(T), sc))


front()
FAST[0] = bool(OPT['fast'])
tail()
a.label('L_fin')
if OPT.get('dirty'):
    a('s_mov_b64 exec, -1')
    a('s_lshl_b32 s55, s2, 2')
    a('s_add_u32 s55, s55, %s' % s(sW))
    a('s_lshl_b32 s55, s55, 15')
    a('s_add_u32 s55, s55, 0x400000')
    a('v_lshl_add_u32 %s, %s, 4, s55' % (v(T + 1), v(vL)))
    for i in range(OPT['dirty']):
        a('global_store_dwordx4 %s, %s, s[26:27]' % (v(T + 1), v(vD, 4)))
        a('v_add_u32 %s, 1024, %s' % (v(T + 1), v(T + 1)))
if OPT.get('wb'):
    a('buffer_wbl2 sc1')
if OPT.get('delay'):
    if 'only' in OPT:
        a('s_cmp_lg_u32 s2, %d' % OPT['only'])
        a('s_cbranch_scc1 L_end')
    a.label('L_dly')
    a('s_memrealtime s[6:7]')
    a('s_waitcnt lgkmcnt(0)')
    a('s_sub_u32 s8, s6, s100')
    a('s_cmp_lt_u32 s8, %d' % OPT.get('until', 3000))
    a('s_cbranch_scc1 L_dly')
if DIAG:
    a('s_mov_b64 exec, -1')
    a('s_memrealtime s[4:5]')
    a('s_waitcnt lgkmcnt(0)')
    a('v_mov_b32 %s, 0' % v(T))
    for i in range(len(stamps)):
        a('v_writelane_b32 %s, %s, %d' % (v(T), s(stamp_regs[i]), i))
    a('v_writelane_b32 %s, s4, %d' % (v(T), len(stamps)))
    a('v_xor_b32 %s, %s, %s' % (v(T + 2), v(vConsG), v(vConsG0)))
    a('v_readfirstlane_b32 s6, %s' % v(T + 2))
    a('v_writelane_b32 %s, s6, 62' % v(T))
    a('v_writelane_b32 %s, s12, 61' % v(T))
    a('v_writelane_b32 %s, s13, 60' % v(T))
    a('v_writelane_b32 %s, %s, 63' % (v(T), s(sXcc)))
    a('s_lshl_b32 s55, s2, 2')
    a('s_add_u32 s55, s55, %s' % s(sW))
    a('s_lshl_b32 s55, s55, 8')
    a('s_add_u32 s55, s55, %d' % WS_DIAG)
    a('v_lshl_add_u32 %s, %s, 2, s55' % (v(T + 1), v(vL)))
    a('global_store_dword %s, %s, s[26:27]' % (v(T + 1), v(T)))
a.label('L_end')
a('s_endpgm')
flush_deferred(False)
a.label('L_fastend')
if OPT['fast']:
    a('; ==== the same phases with write-through stores: taken when the group is spread over several XCDs')
    a.label('L_slowtail')
    FAST[0] = False
    a.hist = []
    a('s_nop 1')
    tail()
    a('s_branch L_fin')
    flush_deferred(False)
    a('s_endpgm')
a.raw('''.section .rodata,"a"
.p2align 6
.amdhsa_kernel %s_kernel
  .amdhsa_next_free_vgpr %d
  .amdhsa_next_free_sgpr 102
  .amdhsa_accum_offset %d
  .amdhsa_group_segment_fixed_size 0
  .amdhsa_kernarg_size 96
  .amdhsa_user_sgpr_count 2
  .amdhsa_user_sgpr_kernarg_segment_ptr 1
  .amdhsa_system_sgpr_workgroup_id_x 1
  .amdhsa_float_denorm_mode_32 3
.end_amdhsa_kernel''' % (NAME, NVGPR, NVGPR))
sys.stdout.write(a.text())
if DIAG:
    sys.stderr.write('STAMPS ' + '|'.join(stamps + ['end']) + '\n')
sys.stderr.write('nops inserted: %d\n' % a.nops)
```

```python
import sys, math, struct
from asm import Asm

NAME = 'interleave_layers__sliding_block_cached__glu_gated_swiglu__decode'
OPT = dict(diag=0, fast=1, nt=1, kw=5, fe=0, wol=1, probe=3, vw=1, thr=90, pages=2, cnt=0, early=2, d0=0, refresh=0, spipe=1, late_rs=1, na=0, nsl=0, w2e=0, ff=7, vlate=1, fl=0, flp=0, pad=0, nva=8, ksplit=0, wopos=0, ool=0, stg=1, vq=0, clean=0, cend=1, opre=1)
for a_ in sys.argv[1:]:
    k_, v_ = a_.split('=')
    OPT[k_] = int(v_)
DIAG = OPT['diag']
NT = {0: '', 1: ' nt', 2: ' sc1 nt', 3: ' sc0 sc1 nt', 4: ' sc0 nt', 5: ' sc1', 6: ' sc0 sc1'}[OPT['nt']]
STAGE = not DIAG or DIAG == 6

XB, ONES, QB, OB, HB, MB, DUMMY, PB = 0, 128, 256, 512, 768, 896, 960, 1024
WQ, VI, WO = 4096, 20480, 53248
W1, W3, W2 = WO + 16384, WO + 24576, WO + 32768
KI = WO + 38912
LDS_BYTES = KI + 32768
WS_F = 0x10000
WS_L, WS_P, WS_G, WS_DIAG = 0x40000, 0xc0000, 0x100000, 0x200000
WS_L2D = 0x140000 + 0x100000 * OPT['pad']
BUF_A, BUF_X, BUF_B, STATS, VOTES = 0, 1024, 2048, 3072, 7168
ST0 = 8192
PAD = OPT['pad']
GOFF = 4096 * PAD
G_C, G_D, G_H = -GOFF, (2048 << PAD) - GOFF, 1024 << PAD
G_X = (0x20000 << PAD) | 0x2000
WSH = 1 - PAD

vL, vCons, vPubL, vPw, vPubG, vStP, vStC, vTagM, vStP2 = range(1, 10)
vXw, vQw, vHw, vOpR, vXopR, vConsG, vConsG0, vCs, vZero, vMw = range(10, 20)
trq, vTr, vHmask, vX, vCq, vCg, vMean, vRs = 20, 22, 23, 24, 25, 26, 27, 28
vMr, vF = 29, 30
vWQ, vK, vV, vWO, vW13, vW2 = 32, 48, 80, 112, 128, 144
wo0, wo1, f0, f1, vPre, vVo = 144, 145, 146, 147, 148, 149
T = 152
vC = T + 12
vA = 176
vD = 192
vP = 224
vSt, vSt4, vKeep = 232, 236, 238
vCl = 20
vDs, vSs = [240, 244], [248, 252]
NVGPR = 256
sW, sJ, sGam, sPr, sE, sC0, sCnt, sXcc, sTo = 28, 29, 30, 31, 32, 33, 34, 35, 36
sLb, sGb0, sGb1 = 38, 40, 14
sPc, sT1 = 42, 44
sCs, sMaskHi, sInv512, sEps, sNl2e = 50, 51, 52, 53, 54
sM0, sM1, sHi, sCl = 56, 42, 46, 44
sTag = 60

a = Asm()
stamp_regs = list(range(70, 102, 2))
stamps = []
nstamp = [0]
lbl = [0]
FAST = [False]


def v(n, cnt=1):
    return 'v%d' % n if cnt == 1 else 'v[%d:%d]' % (n, n + cnt - 1)


def s(n, cnt=1):
    return 's%d' % n if cnt == 1 else 's[%d:%d]' % (n, n + cnt - 1)


def stamp(name):
    nstamp[0] += 1
    if OPT.get('delay') == 3 and OPT.get('at', 1) == nstamp[0]:
        a('s_memrealtime s[100:101]')
        sys.stderr.write('delay anchored at ' + name + '\n')
    keep = {0: False, 1: name[:2] not in ('L1', 'x ') and name[0] not in 'Gz', 2: name[:2] == 'L1', 5: name[0] == 'G' or name[3:] in ('O pub', 'D pub', 'E3 ok', 'E5 ok') or name in ('L0 E1 ok', 'L0 S pub', 'L0 E2 ok'),
            6: False, 7: name[:2] in ('L1', 'x '), 8: name[:2] == 'z1' or name in ('L1 E1 ok', 'L1 S pub', 'L1 E2 ok', 'L1 O pub', 'L1 E5 ok', 'L1 Q pub')}[DIAG]
    if not (keep or DIAG and name == 'start'):
        return
    if name not in stamps:
        if len(stamps) >= len(stamp_regs):
            return
        stamps.append(name)
    r = stamp_regs[stamps.index(name)]
    if OPT['cnt'] and name != 'start':
        a('s_sub_u32 %s, 0x40000, %s' % (s(r), s(sTo)))
    else:
        a('%s %s' % ('s_memtime' if DIAG in (7, 8) and name != 'x rt0' else 's_memrealtime', s(r, 2)))


def f32(x):
    return '0x%08x' % struct.unpack('<I', struct.pack('<f', x))[0]


def newlabel(p):
    lbl[0] += 1
    return 'L_%s_%d' % (p, lbl[0])


def lgkm(n):
    a('s_waitcnt lgkmcnt(%d)' % (n if STAGE else 0))


def mfma(d, x, y, c=None):
    a('v_mfma_f32_16x16x32_bf16 %s, %s, %s, %s' % (v(d, 4), v(x, 4), v(y, 4), '0' if c is None else v(c, 4)))


def dpp(op, d, x, y, ctl, rm=0xf):
    a('%s_dpp %s, %s, %s %s row_mask:0x%x bank_mask:0xf' % (op, v(d), v(x), v(y), ctl, rm))


X1, X2 = 'quad_perm:[1,0,3,2]', 'quad_perm:[2,3,0,1]'


def lstore(op, addr, data, off):
    a('%s %s, %s, %s offset:%d%s' % (op, addr, data, s(sLb, 2), off, '' if FAST[0] and not OPT.get('allsc') else ' sc1'))


def gload(d, vo, b, im):
    a('global_load_dwordx4 %s, %s, %s offset:%d sc1' % (v(d, 4), v(vo), s(b, 2), im))


def tick():
    a('s_sub_u32 %s, %s, 1' % (s(sTo), s(sTo)))
    a('s_cbranch_scc1 L_end')


deferred = []


def flush_deferred(jump=True):
    if not deferred:
        return
    l = newlabel('skip')
    if jump:
        a('s_branch %s' % l)
    hist = a.hist
    while deferred:
        a.hist = []
        deferred.pop(0)()
    a.hist = hist
    a.label(l)


def poll(loads, check, spec, work=None, cnt=0, issued=False, backoff=0):
    top, ent = newlabel('poll'), newlabel('pent')
    if not issued:
        for x in loads:
            gload(*x)
    if work:
        work()

    def retry():
        a.label(top)
        tick()
        if backoff:
            a('s_sleep %d' % backoff)
        for x in loads:
            gload(*x)
        if cnt:
            a('s_waitcnt vmcnt(0)')
        if OPT['ool']:
            a('s_branch %s' % ent)
    if OPT['ool']:
        deferred.append(retry)
    else:
        a('s_branch %s' % ent)
        retry()
    a.label(ent)
    a('s_waitcnt vmcnt(%d)' % cnt)
    check()
    if spec:
        spec()
    a('s_cbranch_vccnz %s' % top)


def ring2(sets, issue, check, spec, cnt1, cnt0, first):
    top, ent, done = newlabel('ring'), newlabel('rent'), newlabel('rdone')

    def retry():
        a.label(top)
        tick()
        issue(sets[0])
        a('s_waitcnt vmcnt(%d)' % cnt1)
        check(sets[1])
        spec(sets[1])
        a('s_cbranch_vccz %s' % done)
        issue(sets[1])
        if first != cnt0:
            a('s_waitcnt vmcnt(%d)' % cnt0)
        if OPT['ool']:
            a('s_branch %s' % ent)
    if OPT['ool']:
        deferred.append(retry)
    else:
        a('s_branch %s' % ent)
        retry()
    a.label(ent)
    a('s_waitcnt vmcnt(%d)' % first)
    check(sets[0])
    spec(sets[0])
    a('s_cbranch_vccnz %s' % top)
    a.label(done)


def chk_byte(regs, tag):
    if len(regs) == 1:
        a('v_cmp_ne_u32_sdwa vcc, %s, %s src0_sel:BYTE_0 src1_sel:BYTE_0' % (v(regs[0]), s(tag)))
    else:
        a('v_bitop3_b32 %s, %s, %s, %s bitop3:0x7e' % (v(T + 23), v(regs[0]), v(regs[1]), s(tag)))
        a('v_cmp_ne_u32_sdwa vcc, %s, %s src0_sel:BYTE_0 src1_sel:DWORD' % (v(T + 23), v(vZero)))


def chk_stats(x, k):
    a('v_cmp_ne_u32 vcc, %s, %s' % (s(sTag + k), v(x + (2 if k % 3 == 1 else 1))))


def red_a(x, c):
    a('v_permlane32_swap_b32 %s, %s' % (v(x + 1), v(x + 3)))
    a('v_add_f32 %s, %s, %s' % (v(c + 1), v(x + 1), v(x + 3)))
    a('v_permlane32_swap_b32 %s, %s' % (v(x), v(x + 2)))
    a('v_add_f32 %s, %s, %s' % (v(c), v(x), v(x + 2)))


def red_b(c, out):
    a('v_permlane16_swap_b32 %s, %s' % (v(c), v(c + 1)))
    a('v_add_f32 %s, %s, %s' % (v(c), v(c), v(c + 1)))
    dpp('v_add_f32', out, c, c, 'row_ror:8')


def mask_tag(x):
    a('v_and_b32 %s, %s, %s' % (v(x), s(sMaskHi), v(x)))


def bf16r(dst, src):
    a('v_cvt_pk_bf16_f32 %s, %s, %s' % (v(dst), v(src), v(src)))
    a('v_and_b32 %s, 0xffff0000, %s' % (v(dst), v(dst)))


def allred(op, x, t, bits):
    for b in bits:
        if b < 4:
            dpp(op, x, x, x, {0: X1, 1: X2, 3: 'row_ror:8'}[b])
        else:
            a('v_mov_b32 %s, %s' % (v(t), v(x)))
            a('v_permlane%d_swap_b32 %s, %s' % (16 if b == 4 else 32, v(x), v(t)))
            a('%s %s, %s, %s' % (op, v(x), v(x), v(t)))


def set_tags(k):
    a('v_mov_b32 %s, %s' % (v(vSt + 2), s(sTag + k)))
    if k % 3 != 1:
        a('v_cndmask_b32 %s, %s, %s, %s' % (v(vSt4 + 1), v(vSt + 2), v(vSt + 3), s(sHi, 2)))


def ln_stats(k, addr=None):
    g = vSt4
    a('v_mul_f32 %s, %s, %s' % (v(T + 7), v(vX), v(vX)))
    a('v_permlane32_swap_b32 %s, %s' % (v(g), v(T + 7)))
    a('v_add_f32 %s, %s, %s' % (v(g), v(g), v(T + 7)))
    allred('v_add_f32', g, None, [0, 1])
    dpp('v_add_f32', g, g, g, 'row_bcast:15', 0xa)
    a('s_mov_b64 exec, %s' % s(sM1, 2))
    lstore('global_store_dwordx2', v(addr or vStP2), v(g, 2), 512 * (k & 1))
    a('s_mov_b64 exec, -1')


def ln_spec(x):
    a('v_permlane32_swap_b32 %s, %s' % (v(x), v(x + 2)))
    a('v_add_f32 %s, %s, %s' % (v(vC), v(x), v(x + 2)))


def ln_mean():
    c = vC
    allred('v_add_f32', c, c + 1, [4, 3, 0, 1])
    a('v_mul_f32 %s, %s, %s' % (v(c), s(sInv512), v(c)))
    a('v_mov_b32 %s, %s' % (v(c + 1), v(c)))
    a('v_permlane32_swap_b32 %s, %s' % (v(c), v(c + 1)))
    bf16r(vMean, c)


def ln_rstd_a():
    c = vC
    a('v_fma_f32 %s, -%s, %s, %s' % (v(c + 1), v(c), v(c), v(c + 1)))
    a('v_max_f32 %s, 0, %s' % (v(c + 1), v(c + 1)))
    bf16r(c + 1, c + 1)
    a('v_add_f32 %s, %s, %s' % (v(c + 1), s(sEps), v(c + 1)))
    bf16r(c + 1, c + 1)
    a('v_sqrt_f32 %s, %s' % (v(c + 1), v(c + 1)))


def ln_rstd_b(scale):
    c = vC
    bf16r(c + 1, c + 1)
    a('v_rcp_f32 %s, %s' % (v(vRs), v(c + 1)))
    if scale:
        a('v_mul_f32 %s, %s, %s' % (v(vCs), s(sCs), v(vRs)))


def stats_load(k, x=vSs[0]):
    gload(x, vStC, sLb, 512 * (k & 1))


def l_gather(k, spec, st_spec, chain, hook=None):
    buf = BUF_A if k % 2 == 0 else BUF_B

    def d_issue(x):
        gload(x, vCons, sLb, buf)
    rf = OPT['refresh'] and OPT['d0']

    def s_issue(x):
        stats_load(k, x)
        if rf:
            d_issue(vDs[0])
    if OPT['d0']:
        d_issue(vDs[0])
    if OPT['spipe']:
        stats_load(k, vSs[1])
        flush_deferred()
        ring2(vSs, s_issue, lambda x: chk_stats(x, k), st_spec, 2 if rf else 1, 3 if rf else 1, 2 + OPT['d0'])
    else:
        flush_deferred()
        poll([(vSs[0], vStC, sLb, 512 * (k & 1))], lambda: chk_stats(vSs[0], k), lambda: st_spec(vSs[0]), cnt=1 + OPT['d0'], issued=True)
    if k >= 3:
        stamp('x st%d' % k)
    if not OPT['d0']:
        d_issue(vDs[0])
        chain[0]()
        d_issue(vDs[1])
    else:
        d_issue(vDs[1])
        chain[0]()
    if hook:
        hook()
    for c in chain[1:]:
        c()
    ring2(vDs, d_issue, lambda x: chk_byte([x], sTag + k), spec, 1, 1, 1)


def x_gather(gi, imm, work=None, cnt=0):
    r = vP
    base = sGb0 if gi < 2 else sGb1

    def spec():
        a('v_pk_add_f32 %s, %s, %s' % (v(r + 2, 2), v(r + 2, 2), v(r + 6, 2)))
        a('v_add_f32 %s, %s, %s' % (v(r + 1), v(r + 1), v(r + 5)))
        mask_tag(r)
        mask_tag(r + 4)
        a('v_add_f32 %s, %s, %s' % (v(r), v(r), v(r + 4)))
        red_a(r, r)
    poll([(r, vConsG, base, imm), (r + 4, vConsG, base, imm + G_H)], lambda: chk_byte([r, r + 4], sTag + 6 + gi), spec, work=work, cnt=cnt, backoff=OPT.get('g%ds' % gi, 0))
    red_b(r, r)
    dpp('v_add_f32', r, r, r, 'row_ror:4')
    bf16r(r, r)
    a('v_add_f32 %s, %s, %s' % (v(r), v(r), v(vX)))
    a('v_cvt_pk_bf16_f32 %s, %s, %s' % (v(T), v(r), v(r)))


def x_to_lds(k):
    a('ds_write_b16 %s, %s offset:%d' % (v(vXw), v(T), XB))
    a('v_and_b32 %s, 0xffff0000, %s' % (v(vX), v(T)))
    a('v_and_b32 %s, 0xffff0000, %s' % (v(vSt4), v(T)))
    ln_stats(k)


def tr_pair(dst, addr, off, gstride):
    for g in range(2):
        a('ds_read_b64_tr_b16 %s, %s offset:%d' % (v(dst + 2 * g, 2), v(addr), off + g * gstride))


def proj(wreg, k, layer, wsrc=None, first=False, skip=None):
    rd = vXopR if layer == 0 else vOpR
    a('s_barrier')
    for kk in range(2):
        a('ds_read_b128 %s, %s offset:%d' % (v(vA + 4 * kk, 4), v(rd), XB + 64 * kk))
        if wsrc:
            for cg in range(2):
                ad, off, ks, gs = wsrc[cg]
                tr_pair(wreg + 8 * cg + 4 * kk, ad, off + kk * ks, gs)
    if skip:
        a('s_cbranch_scc1 %s' % skip)
    if not first and OPT['early'] == 1:
        stats_load(k)
    lgkm(7 if wsrc else 1)
    mfma(vD, vA, wreg)
    if wsrc:
        lgkm(5)
    mfma(vD + 4, vA, wreg + 8)
    if not first and OPT['early'] == 2:
        stats_load(k)
    lgkm(2 if wsrc else 0)
    mfma(vD, vA + 4, wreg + 4, vD)
    if wsrc:
        lgkm(0)
    mfma(vD + 4, vA + 4, wreg + 12, vD + 4)
    if not first and OPT['early'] == 0:
        stats_load(k)
    if layer == 1:
        a('s_mov_b32 exec_hi, 0')
    a('v_cndmask_b32 %s, %s, %s, %s' % (v(T), v(vD), v(vD + 4), s(sM0, 2)))
    a('v_bfi_b32 %s, %s, %s, %s' % (v(T), v(vTagM), s(sTag + k), v(T)))
    lstore('global_store_dword', v(vPubL), v(T), BUF_A if k % 2 == 0 else BUF_B)
    if layer == 1:
        a('s_mov_b32 exec_hi, -1')


def tr_reads(dst, addr, base, nk, kstride, gstride):
    for kk in range(nk):
        for g in range(2):
            a('ds_read_b64_tr_b16 %s, %s offset:%d' % (v(dst + 4 * kk + 2 * g, 2), v(addr), base + kk * kstride + g * gstride))


def gemv_publish_g(nk, wreg, src, gi, imm, tr=False, mid=None, post=None):
    for kk in range(nk):
        a('ds_read_b128 %s, %s offset:%d' % (v(vA + 4 * kk, 4), v(vOpR), src + 64 * kk))
        if tr:
            tr_pair(wreg + 4 * kk, vTr, 4096 * kk, 512)
    if mid:
        mid()
    for kk in range(nk):
        lgkm((nk - 1 - kk) * (3 if tr else 1))
        mfma(vD, vA + 4 * kk, wreg + 4 * kk, vD if kk else None)
    if post:
        post()
    if not PAD:
        a('s_mov_b32 exec_hi, 0')
    a('v_bfi_b32 %s, %s, %s, %s' % (v(T), v(vTagM), s(sTag + 6 + gi), v(vD)))
    st = 'global_store_dword %s, %s, %s offset:%d sc1' % (v(vPubG), v(T), s(sGb0 if gi < 2 else sGb1, 2), imm)
    if OPT['na'] and gi:
        a('s_mov_b32 exec_lo, s37')
        a(st)
        a('s_not_b32 exec_lo, s37')
        a(st)
        a('s_mov_b64 exec, -1')
    else:
        a(st)
        if not PAD:
            a('s_mov_b32 exec_hi, -1')


def g_pace(gi):
    flush_deferred()
    if OPT['na'] and gi:
        a('s_waitcnt vmcnt(1)')
        for i in range(OPT['nsl']):
            a('s_nop 7')
    else:
        a('s_waitcnt vmcnt(0)')
    if OPT.get('g%dd' % gi):
        a('s_sleep %d' % OPT['g%dd' % gi])
    stamp('G%d ack' % gi)


def probe_near():
    a('s_not_b32 s4, %s' % s(sE))
    a('s_xor_b32 s55, %s, 8192' % s(sPr))
    a('s_waitcnt lgkmcnt(0)')
    a('s_load_dword s4, s[26:27], %s' % s(sPr))
    a('s_load_dword s5, s[26:27], s55')
    a('s_lshl_b32 s59, %s, 2' % s(sJ))
    a('s_add_u32 s59, s59, %s' % s(sW))
    a('s_lshl_b32 s59, s59, 3')
    a('s_add_u32 s59, s59, %d' % VOTES)
    a('v_mov_b32 %s, s59' % v(T + 1))
    a('v_mov_b32 %s, %s' % (v(T + 3), s(sTag + 2)))
    a('s_waitcnt lgkmcnt(1)')
    a('s_memtime s[8:9]')
    a('s_cmp_eq_u32 s4, %s' % s(sE))
    a('s_cselect_b32 s6, %d, -1' % OPT['thr'])
    a('s_waitcnt lgkmcnt(0)')
    a('s_memtime s[10:11]')
    a('s_waitcnt lgkmcnt(0)')
    a('s_sub_u32 s7, s10, s8')
    a('s_cmp_gt_u32 s7, s6')
    a('s_cselect_b32 s6, 1, 0')
    if DIAG:
        a('s_mov_b32 s12, s7')
    a('v_mov_b32 %s, s6' % v(T + 2))
    a('s_mov_b64 exec, 1')
    lstore('global_store_dwordx2', v(T + 1), v(T + 2, 2), 0)
    a('s_mov_b64 exec, -1')


def race_prep():
    a('s_not_b32 s4, %s' % s(sE))
    a('s_xor_b32 s5, %s, 8192' % s(sPr))
    a('v_mov_b32 %s, %s' % (v(T + 4), s(sPr)))


def race_start():
    a('global_load_dword %s, %s, s[26:27] sc1' % (v(T + 5), v(T + 4)))
    a('s_load_dword s4, s[26:27], s5')


def race_finish(behind):
    a('s_lshl_b32 s59, %s, 2' % s(sJ))
    a('s_add_u32 s59, s59, %s' % s(sW))
    a('s_lshl_b32 s59, s59, 3')
    a('s_add_u32 s59, s59, %d' % VOTES)
    a('v_mov_b32 %s, s59' % v(T + 1))
    a('v_mov_b32 %s, %s' % (v(T + 3), s(sTag + 2)))
    a('s_waitcnt vmcnt(%d)' % behind)
    a('s_cmp_eq_u32 s4, %s' % s(sE))
    a('s_cselect_b32 s6, 1, 0')
    if DIAG:
        a('s_mov_b32 s12, s6')
    a('v_mov_b32 %s, s6' % v(T + 2))
    a('s_mov_b64 exec, 1')
    lstore('global_store_dwordx2', v(T + 1), v(T + 2, 2), 0)
    a('s_mov_b64 exec, -1')
    a('s_waitcnt lgkmcnt(0)')


def race_pick():
    a('s_lshr_b32 s55, %s, 1' % s(sW))
    a('s_xor_b32 s59, s55, 1')
    a('s_mul_i32 s55, s55, 0x%x' % G_X)
    a('s_mul_i32 s59, s59, 0x%x' % G_X)
    a('s_waitcnt vmcnt(1)')
    a('s_cmp_eq_u32 s4, %s' % s(sE))
    a('s_cselect_b32 s55, s59, s55')
    a('v_xor_b32 %s, s55, %s' % (v(vConsG), v(vConsG0)))


def count_votes():
    a('v_and_b32 %s, 31, %s' % (v(T + 4), v(vL)))
    a('v_lshlrev_b32 %s, 3, %s' % (v(T + 4), v(T + 4)))
    a('v_add_u32 %s, %d, %s' % (v(T + 4), VOTES, v(T + 4)))
    if OPT['vw'] and not OPT['vlate']:
        a('s_waitcnt vmcnt(0)')
    a('global_load_dwordx2 %s, %s, %s sc1' % (v(T + 2, 2), v(T + 4), s(sLb, 2)))
    a('s_lshr_b32 s55, %s, 1' % s(sW) if WSH else 's_and_b32 s55, %s, 1' % s(sW))
    a('s_xor_b32 s59, s55, 1')
    a('s_waitcnt vmcnt(0)')
    if OPT['probe'] == 2:
        a('v_cmp_eq_u32 vcc, %s, %s' % (s(sTag + 2), v(T + 3)))
        a('v_cmp_eq_u32 s[6:7], 0, %s' % v(T + 2))
        a('s_and_b32 s4, vcc_lo, s6')
        a('s_andn2_b32 s5, vcc_lo, s6')
    else:
        a('v_xor_b32 %s, %s, %s' % (v(T + 3), s(sTag + 2), v(T + 3)))
        a('v_xor_b32 %s, 1, %s' % (v(T + 2), v(T + 2)))
        a('v_or_b32 %s, %s, %s' % (v(T + 2), v(T + 2), v(T + 3)))
        a('v_cmp_eq_u32 vcc, 0, %s' % v(T + 2))
        a('s_and_b32 s4, vcc_lo, 0x%x' % (0x33333333 if WSH else 0x55555555))
        a('s_and_b32 s5, vcc_lo, 0x%x' % (0xcccccccc if WSH else 0xaaaaaaaa))
    a('s_bcnt1_i32_b32 s4, s4')
    a('s_bcnt1_i32_b32 s5, s5')
    if DIAG:
        a('s_lshl_b32 s13, s4, 8')
        a('s_add_u32 s13, s13, s5')
    a('s_cmp_ge_u32 s4, s5')
    a('s_cselect_b32 s55, s55, s59')
    if OPT['na']:
        a('s_cmp_eq_u32 s55, 0')
        a('s_cselect_b32 s37, 0xffff, %s' % s(sM0))
    a('s_mul_i32 s55, s55, 0x%x' % G_X)
    a('v_xor_b32 %s, s55, %s' % (v(vConsG), v(vConsG0)))


def flag_store(val):
    sk = newlabel('nofl')
    a('s_or_b32 s55, %s, %s' % (s(sJ), s(sW)))
    a('s_cbranch_scc1 %s' % sk)
    a('s_lshl_b32 s55, %s, 7' % s(sGam))
    a('s_add_u32 s55, s55, %d' % WS_F)
    a('v_lshl_add_u32 %s, %s, 2, s55' % (v(T + 21), v(vL)))
    a('v_mov_b32 %s, %s' % (v(T + 20), s(val)))
    a('s_mov_b32 exec_hi, 0')
    a('global_store_dword %s, %s, s[26:27] sc1' % (v(T + 21), v(T + 20)))
    a('s_mov_b32 exec_hi, -1')
    a.label(sk)


def flag_load():
    a('s_mov_b32 exec_hi, 0')
    a('global_load_dword %s, %s, s[26:27] sc1' % (v(T + 6), v(T + 5)))
    a('s_mov_b32 exec_hi, -1')


def flag_wait(cnt):
    top, ent = newlabel('fl'), newlabel('fle')
    a('s_branch %s' % ent)
    a.label(top)
    tick()
    flag_load()
    a('s_waitcnt vmcnt(0)')
    a.label(ent)
    a('s_waitcnt vmcnt(%d)' % cnt)
    a('v_cmp_ne_u32 vcc, %s, %s' % (s(sTag + 6), v(T + 6)))
    a('s_cmp_lg_u32 vcc_lo, 0')
    a('s_cbranch_scc1 %s' % top)


def clean_prep():
    a('v_and_b32 %s, 31, %s' % (v(T + 9), v(vL)))
    a('s_and_b32 s59, %s, 3' % s(sJ))
    a('s_lshl_b32 s59, s59, 7')
    a('s_add_u32 s59, s59, %d' % STATS)
    a('v_lshl_add_u32 %s, %s, 2, s59' % (v(T + 9), v(T + 9)))
    a('v_cndmask_b32 %s, %s, %s, %s' % (v(vCl), v(vPubL), v(T + 9), s(sHi, 2)))
    a('s_add_u32 s55, s59, %d' % (VOTES - STATS))
    a('s_add_u32 s59, s59, %d' % ST0)
    a('s_cmp_lt_u32 %s, 4' % s(sJ))
    a('s_cselect_b32 s59, s59, s55')
    a('v_and_b32 %s, 31, %s' % (v(T + 9), v(vL)))
    a('v_lshl_add_u32 %s, %s, 2, s59' % (v(T + 9), v(T + 9)))
    a('v_add_u32 %s, %d, %s' % (v(T + 10), BUF_X, v(vPubL)))
    a('v_cndmask_b32 %s, %s, %s, %s' % (v(vCl + 1), v(T + 10), v(T + 9), s(sHi, 2)))
    a('v_mov_b32 %s, %s' % (v(vCl + 2), s(sTag + 3)))
    a('s_cmp_lt_u32 %s, 6' % s(sJ))
    a('s_cselect_b32 %s, -1, 0' % s(sCl + 1))
    a('s_cmp_lt_u32 %s, 4' % s(sJ))
    a('s_cselect_b32 %s, -1, 0' % s(sCl))
    a('s_cmp_eq_u32 %s, 0' % s(sW))
    a('s_cselect_b32 %s, %s, 0' % (s(sCl), s(sCl)))
    a('s_cselect_b32 %s, %s, 0' % (s(sCl + 1), s(sCl + 1)))


def clean_x():
    a('s_mov_b32 exec_hi, %s' % s(sCl + 1))
    a('global_store_dword %s, %s, %s sc1' % (v(vCl + 1), v(vCl + 2), s(sLb, 2)))
    a('s_mov_b32 exec_hi, -1')


def clean_a():
    a('s_mov_b32 exec_hi, %s' % s(sCl))
    a('global_store_dword %s, %s, %s sc1' % (v(vCl), v(vCl + 2), s(sLb, 2)))
    a('s_mov_b32 exec_hi, -1')


def clean_b_prep():
    a('v_add_u32 %s, %d, %s' % (v(T + 9), 512, v(vCl)))
    a('v_add_u32 %s, %d, %s' % (v(T + 8), BUF_B, v(vCl)))
    a('v_cndmask_b32 %s, %s, %s, %s' % (v(T + 8), v(T + 8), v(T + 9), s(sHi, 2)))
    a('s_mov_b32 exec_lo, 0')
    a('s_mov_b32 exec_hi, %s' % s(sCl))
    sk = newlabel('nold')
    a('s_cbranch_execz %s' % sk)
    a('global_load_dword %s, %s, %s sc1' % (v(vKeep), v(T + 8), s(sLb, 2)))
    a.label(sk)
    a('s_mov_b64 exec, -1')


def clean_b():
    a('s_mov_b32 exec_hi, %s' % s(sCl))
    a('global_store_dword %s, %s, %s sc1' % (v(T + 8), v(vKeep), s(sLb, 2)))
    a('s_mov_b32 exec_hi, -1')


npage = [0]


def page_break(force=False):
    if OPT['pages'] and (FAST[0] or force):
        l = newlabel('page')
        a('s_branch %s' % l)
        flush_deferred(False)
        a.raw('.p2align 12')
        if OPT.get('tramp') and not force:
            npage[0] += 1
            a.label('L_stub_%d' % npage[0])
            a.raw('    s_branch %s' % ('L_stub_2' if npage[0] == 1 and OPT['pages'] == 2 else 'L_stub_back'))
        a.label(l)
        if OPT.get('tramp') and force:
            a('s_branch L_stub_1')
            a.label('L_stub_back')


a.raw('''; One persistent launch, 256 workgroups = 32 groups (attention head / slice of the ffn columns) x 8 members.
; Weights and the K/V window are read once and stay in registers for both layers; workgroups hand over partial sums
; through d_ws in 64-byte tagged sectors (tag = epoch word found in d_ws + index of the hand-off).
; @launch grid=(256,1,1) block=(256,1,1) lds=%d
.amdgcn_target "amdgcn-amd-amdhsa--gfx950"
.text
.p2align 12
.globl %s_kernel
.p2align 8
.type %s_kernel,@function
%s_kernel:''' % (LDS_BYTES, NAME, NAME, NAME))
a('s_cmp_ge_u32 s2, 256')
a('s_cbranch_scc1 L_end')
a('s_load_dwordx16 s[4:19], s[0:1], 0')
a('s_load_dwordx8 s[20:27], s[0:1], 64')
stamp('start')
stamp('x rt0')
a('s_getpc_b64 %s' % s(sPc, 2))
a.label('L_pc')
a('v_lshlrev_b32 %s, 6, v0' % v(T))
a('v_min_u32 %s, L_fastend-L_pc-64, %s' % (v(T), v(T)))
a('global_load_dword %s, %s, %s' % (v(T + 22), v(T), s(sPc, 2)))
a('v_lshrrev_b32 %s, 6, v0' % v(T))
a('v_and_b32 %s, 63, v0' % v(vL))
a('v_readfirstlane_b32 %s, %s' % (s(sW), v(T)))
a('s_lshr_b32 s3, s2, 3')
a('s_and_b32 %s, s3, 7' % s(sJ))
a('s_lshr_b32 s3, s3, 3')
a('s_and_b32 s31, s2, 7')
a('s_lshl_b32 %s, s31, 2' % s(sGam))
a('s_add_u32 %s, %s, s3' % (s(sGam), s(sGam)))
u16, pos16, u8, pos8, l3, col16 = T + 1, T + 2, T + 3, T + 4, T + 5, T + 6
t0, t1, t2, t3 = T + 8, T + 9, T + 10, T + 11
k0 = T + 12


def pro_wq():
    a('v_lshrrev_b32 %s, 4, %s' % (v(u16), v(vL)))
    a('v_and_b32 %s, 15, %s' % (v(pos16), v(vL)))
    a('v_lshlrev_b32 %s, 1, %s' % (v(t2), v(u16)))
    a('v_xor_b32 %s, %s, %s' % (v(t2), v(t2), v(pos16)))
    a('v_lshlrev_b32 %s, 4, %s' % (v(t2), v(t2)))
    a('v_lshl_add_u32 %s, %s, 13, %s' % (v(t0), v(u16), v(t2)))
    a('v_xor_b32 %s, 0x80, %s' % (v(t1), v(t0)))
    a('v_add_u32 %s, %d, %s' % (v(t1), 2 * 31744, v(t1)))
    a('s_lshl_b32 s49, %s, 12' % s(sW))
    a('s_lshl_b32 s55, %s, 19' % s(sJ))
    a('s_lshl_b32 s56, %s, 17' % s(sW))
    a('s_add_u32 s55, s55, s56')
    a('s_lshl_b32 s56, %s, 8' % s(sGam))
    a('s_add_u32 s55, s55, s56')
    a('s_add_u32 m0, s49, %d' % WQ)


def pro_rest():
    a('v_and_b32 %s, 3, %s' % (v(l3), v(vL)))
    a('v_lshl_add_u32 %s, %s, 2, %s' % (v(col16), v(l3), v(u16)))
    a('s_lshl_b32 s48, %s, 5' % s(sW))
    a('v_lshl_add_u32 %s, %s, 1, s48' % (v(vXw), v(col16)))
    a('v_lshl_add_u32 %s, %s, 8, %s' % (v(vVo), v(u16), v(t2)))
    a('v_xor_b32 %s, 0x80, %s' % (v(vVo + 1), v(vVo)))
    a('v_xor_b32 %s, %s, %s' % (v(k0), v(u16), v(pos16)))
    a('v_lshlrev_b32 %s, 4, %s' % (v(k0), v(k0)))
    a('v_lshl_add_u32 %s, %s, 8, %s' % (v(k0), v(u16), v(k0)))
    for i in range(1, 4):
        a('v_xor_b32 %s, %d, %s' % (v(k0 + i), i << 6, v(k0)))
    a('s_lshl_b32 s48, %s, 7' % s(sJ))
    a('s_lshl_b32 s56, %s, 20' % s(sGam))
    a('s_lshl_b32 s58, %s, 15' % s(sJ))
    a('s_add_u32 s56, s56, s58')
    a('s_lshl_b32 s58, %s, 13' % s(sW))
    a('s_add_u32 s56, s56, s58')
    a('s_add_u32 s56, s56, %d' % (3072 * 256))


def pro_touch():
    a('v_lshl_add_u32 %s, %s, 4, s49' % (v(vCons), v(vL)))
    a('s_lshl_b32 s57, %s, 14' % s(sGam))
    a('s_add_u32 s57, s57, %d' % WS_L)
    a('s_add_u32 s3, s48, s57')
    a('s_add_u32 s59, s3, s49')
    a('v_lshl_add_u32 %s, %s, 10, s59' % (v(t3), v(vL)))
    a('v_cmp_lt_u32 vcc, 2, %s' % v(vL))
    a('s_add_u32 s3, s3, %d' % STATS)
    a('v_mov_b32 %s, s3' % v(T + 17))
    a('v_cndmask_b32 %s, %s, %s, vcc' % (v(t3), v(t3), v(T + 17)))
    if OPT['probe'] in (1, 2):
        a('s_add_u32 s3, s57, %d' % VOTES)
        a('v_writelane_b32 %s, s3, 3' % v(t3))
        a('s_add_u32 s3, s3, 128')
        a('v_writelane_b32 %s, s3, 4' % v(t3))
    a('s_and_b32 s3, s48, 0x180')
    a('s_add_u32 s3, s3, s57')
    a('s_add_u32 s3, s3, %d' % (STATS + ST0))
    a('v_writelane_b32 %s, s3, 5' % v(t3))


PRO = OPT.get('pro', 2)
pro_wq()
if PRO < 2:
    pro_rest()
if PRO < 1:
    pro_touch()
stamp('pre ka')
a('s_waitcnt lgkmcnt(0)')
stamp('ka')
a('s_add_u32 s10, s10, s55')
a('s_addc_u32 s11, s11, 0')
a('global_load_lds_dwordx4 %s, s[10:11] offset:0%s' % (v(t0), NT))
a('v_add_u32 %s, 31744, %s' % (v(t0), v(t0)))
a('s_load_dword %s, s[26:27], 0' % s(sE))
a('global_load_lds_dwordx4 %s, s[10:11] offset:1024%s' % (v(t0), NT))
a('global_load_lds_dwordx4 %s, s[10:11] offset:2048%s' % (v(t1), NT))
a('v_add_u32 %s, 31744, %s' % (v(t1), v(t1)))
a('global_load_lds_dwordx4 %s, s[10:11] offset:3072%s' % (v(t1), NT))
if PRO >= 2:
    pro_rest()
a('s_add_u32 s4, s4, s48')
a('s_addc_u32 s5, s5, 0')
a('global_load_ushort %s, %s, s[4:5]' % (v(vX), v(vXw)))
a('s_add_u32 s6, s6, s56')
a('s_addc_u32 s7, s7, 0')
if PRO < 1:
    a('global_load_dword %s, %s, s[26:27]' % (v(T + 22), v(t3)))
a('s_add_u32 m0, s58, %d' % KI)
stamp('wq iss')
a('s_barrier')
for i in range(4):
    a('global_load_lds_dwordx4 %s, s[6:7] offset:%d%s' % (v(k0 + i), 1024 * i, NT))


def k_second():
    a('s_add_u32 m0, s58, %d' % (KI + 4096))
    a('s_add_u32 s6, s6, 4096')
    a('s_addc_u32 s7, s7, 0')
    for i in range(4):
        a('global_load_lds_dwordx4 %s, s[6:7] offset:%d%s' % (v(k0 + i), 1024 * i, NT))


if not OPT['ksplit']:
    k_second()
if PRO >= 1:
    pro_touch()
    a('global_load_dword %s, %s, s[26:27]' % (v(T + 22), v(t3)))
stamp('issued')
a('s_add_u32 s8, s8, s56')
a('s_addc_u32 s9, s9, 0')
a('s_add_u32 %s, s26, s57' % s(sLb))
a('s_addc_u32 %s, s27, 0' % s(sLb + 1))
a('s_lshl_b32 s55, %s, %d' % (s(sJ), 14 + PAD))
a('s_add_u32 s55, s55, %d' % (WS_G + GOFF))
a('s_add_u32 %s, s26, s55' % s(sGb0))
a('s_addc_u32 %s, s27, 0' % s(sGb0 + 1))
a('s_add_u32 %s, %s, 0x%x' % (s(sGb1), s(sGb0), 0x40000 << PAD))
a('s_addc_u32 %s, %s, 0' % (s(sGb1 + 1), s(sGb0 + 1)))
a('s_getreg_b32 %s, hwreg(HW_REG_XCC_ID, 0, 4)' % s(sXcc))
a('s_lshl_b32 %s, s2, 2' % s(sPr))
a('s_add_u32 %s, %s, %s' % (s(sPr), s(sPr), s(sW)))
a('s_and_b32 s55, %s, 63' % s(sPr))
a('s_lshl_b32 s55, s55, 7')
a('s_lshr_b32 %s, %s, 6' % (s(sPr), s(sPr)))
a('s_lshl_b32 %s, %s, 14' % (s(sPr), s(sPr)))
a('s_add_u32 %s, %s, s55' % (s(sPr), s(sPr)))
a('s_add_u32 %s, %s, %d' % (s(sPr), s(sPr), WS_P))
if OPT['probe'] == 1:
    a('s_lshl_b32 s55, s49, %d' % PAD)
    a('s_and_b32 s55, s55, 8192')
    a('s_add_u32 %s, %s, s55' % (s(sPr), s(sPr)))
a('s_mov_b32 %s, 0x40000' % s(sTo))
a('s_mov_b32 %s, %s' % (s(sCs), f32(math.log2(math.e) / math.sqrt(128.0))))
a('s_mov_b32 %s, 0xffffff00' % s(sMaskHi))
a('s_mov_b32 %s, %s' % (s(sInv512), f32(1.0 / 512)))
a('s_mov_b32 %s, %s' % (s(sEps), f32(1e-5)))
a('s_mov_b32 %s, %s' % (s(sNl2e), f32(-math.log2(math.e))))
a('s_mov_b32 %s, 0xffff0000' % s(sM0))
a('s_mov_b32 %s, 0xffff0000' % s(sM0 + 1))
a('s_mov_b32 %s, 0x10000' % s(sM1))
a('s_mov_b32 %s, 0x10000' % s(sM1 + 1))
a('s_mov_b32 %s, 0' % s(sHi))
a('s_mov_b32 %s, -1' % s(sHi + 1))
a('s_mul_i32 %s, %s, 43' % (s(sC0), s(sGam)))
a('s_add_u32 %s, %s, 43' % (s(sCnt), s(sC0)))
a('s_lshr_b32 %s, %s, 3' % (s(sC0), s(sC0)))
a('s_lshr_b32 %s, %s, 3' % (s(sCnt), s(sCnt)))
a('s_sub_u32 %s, %s, %s' % (s(sCnt), s(sCnt), s(sC0)))
a('s_lshl_b32 %s, %s, 3' % (s(sCnt), s(sCnt)))
a('v_mov_b32 %s, 0' % v(vZero))
a('v_lshrrev_b32 %s, 3, %s' % (v(u8), v(vL)))
a('v_and_b32 %s, 7, %s' % (v(pos8), v(vL)))
a('s_add_u32 s55, s49, s48')
a('v_and_b32 %s, 31, %s' % (v(t0), v(vL)))
a('v_lshl_add_u32 %s, %s, 2, s55' % (v(vPubL), v(t0)))
a('v_lshrrev_b32 %s, 5, %s' % (v(t3), v(vL)))
a('v_lshl_add_u32 %s, %s, 10, %s' % (v(vPubL), v(t3), v(vPubL)))
a('s_lshl_b32 s55, %s, 6' % s(sW))
a('v_lshl_add_u32 %s, %s, 1, s55' % (v(vPw), v(t0)))
a('v_lshl_add_u32 %s, %s, 2, %s' % (v(t1), v(pos8), v(u16)))
a('v_lshl_add_u32 %s, %s, 1, s55' % (v(vQw), v(t1)))
a('s_lshl_b32 s55, %s, 6' % s(sGam))
a('s_add_u32 s55, s55, s49')
if PAD:
    a('s_lshl_b32 s55, s55, 1')
a('v_lshl_add_u32 %s, %s, 2, s55' % (v(vPubG), v(pos16)))
if PAD:
    a('v_lshl_add_u32 %s, %s, 6, %s' % (v(vPubG), v(t3), v(vPubG)))
a('v_and_b32 %s, 1, %s' % (v(t2), v(u16)))
a('v_mul_u32_u24 %s, 0x%x, %s' % (v(t2), G_X, v(t2)))
a('v_xor_b32 %s, %s, %s' % (v(vPubG), v(vPubG), v(t2)))
a('v_lshl_add_u32 %s, %s, %d, s55' % (v(vPre), v(pos8), 3 + PAD))
a('v_xor_b32 %s, %s, %s' % (v(vPre), v(vPre), v(t2)))
a('v_and_b32 %s, 1, %s' % (v(t2), v(u8)))
a('v_lshl_add_u32 %s, %s, %d, %s' % (v(vPre), v(t2), 11 + PAD, v(vPre)))
a('v_lshl_add_u32 %s, %s, %d, %s' % (v(vPre), v(t3), 18 + PAD, v(vPre)))
a('s_lshl_b32 s55, %s, 2' % s(sJ))
a('s_add_u32 s55, s55, %s' % s(sW))
a('s_lshl_b32 s55, s55, 4')
a('s_add_u32 s55, s55, %d' % STATS)
a('v_mov_b32 %s, s55' % v(vStP))
a('v_lshl_add_u32 %s, %s, 3, s55' % (v(vStP2), v(t3)))
a('v_lshlrev_b32 %s, 4, %s' % (v(t1), v(l3)))
a('v_lshl_add_u32 %s, %s, 6, %s' % (v(t1), v(u8), v(t1)))
a('v_add_u32 %s, %d, %s' % (v(vStC), STATS, v(t1)))
a('v_mov_b32 %s, 0xff' % v(t2))
a('v_cmp_eq_u32 vcc, 0, %s' % v(l3))
a('v_lshlrev_b32 %s, 4, %s' % (v(vOpR), v(u16)))
a('v_and_b32 %s, 8, %s' % (v(t1), v(vL)))
a('v_cndmask_b32 %s, 0, %s, vcc' % (v(vTagM), v(t2)))
a('v_lshl_add_u32 %s, %s, 4, %s' % (v(vXopR), v(t1), v(vOpR)))
a('v_and_b32 %s, 4, %s' % (v(t1), v(vL)))
a('v_cmp_eq_u32 vcc, 0, %s' % v(t1))
a('v_add_u32 %s, %d, %s' % (v(t1), HB, v(vXw)))
a('v_mov_b32 %s, %d' % (v(t2), DUMMY))
a('v_cndmask_b32 %s, %s, %s, vcc' % (v(vHw), v(t2), v(t1)))
a('v_lshrrev_b32 %s, 1, %s' % (v(t1), v(vXw)))
a('v_cmp_gt_u32 vcc, %s, %s' % (s(sCnt), v(t1)))
a('s_lshl_b32 s55, %s, 2' % s(sW))
a('v_mov_b32 %s, s55' % v(vMw))
a('v_lshlrev_b32 %s, 2, %s' % (v(vMr), v(l3)))
a('v_cndmask_b32 %s, 0, -1, vcc' % v(vHmask))
a('v_lshlrev_b32 %s, 2, %s' % (v(t0), v(t0)))
a('v_mov_b32 %s, 0x3f803f80' % v(t1))
a('ds_write_b32 %s, %s offset:%d' % (v(t0), v(t1), ONES))
a('v_lshlrev_b32 %s, 2, %s' % (v(t0), v(pos8)))
a('ds_write_b32 %s, %s offset:%d' % (v(t0), v(vZero), HB + 96))
if PAD:
    a('v_lshrrev_b32 %s, 2, %s' % (v(t1), v(vL)))
    a('v_lshlrev_b32 %s, 4, %s' % (v(t2), v(l3)))
    a('v_lshl_add_u32 %s, %s, 7, %s' % (v(t1), v(t1), v(t2)))
    a('s_lshl_b32 s59, s49, 1')
    a('v_add_u32 %s, s59, %s' % (v(vConsG), v(t1)))
else:
    a('v_mov_b32 %s, %s' % (v(vConsG), v(vCons)))
a('v_mov_b32 %s, %s' % (v(vConsG0), v(vConsG)))
a('v_mov_b32 %s, %s' % (v(vSt + 3), s(sXcc)))
r_ = T + 16
a('v_lshrrev_b32 %s, 2, %s' % (v(r_), v(pos16)))
a('v_and_b32 %s, 1, %s' % (v(t0), v(u16)))
a('v_lshl_add_u32 %s, %s, 2, %s' % (v(t1), v(t0), v(r_)))
a('v_lshlrev_b32 %s, 1, %s' % (v(t1), v(t1)))
a('v_xor_b32 %s, s55, %s' % (v(t1), v(t1)))
a('v_lshlrev_b32 %s, 4, %s' % (v(t1), v(t1)))
a('v_lshl_add_u32 %s, %s, 3, %s' % (v(t1), v(l3), v(t1)))
a('v_lshl_add_u32 %s, %s, 3, %s' % (v(t2), v(u16), v(r_)))
a('v_lshl_add_u32 %s, %s, 8, %s' % (v(trq), v(t2), v(t1)))
a('v_xor_b32 %s, 32, %s' % (v(trq + 1), v(trq)))
a('v_lshrrev_b32 %s, 1, %s' % (v(t1), v(r_)))
a('v_lshl_add_u32 %s, %s, 1, %s' % (v(t1), v(t0), v(t1)))
a('v_xor_b32 %s, %s, %s' % (v(t1), s(sW), v(t1)))
a('v_lshlrev_b32 %s, 5, %s' % (v(t1), v(t1)))
a('v_lshl_add_u32 %s, %s, 3, %s' % (v(t1), v(l3), v(t1)))
a('v_lshl_add_u32 %s, %s, 7, %s' % (v(vTr), v(t2), v(t1)))
a('v_add_u32 %s, %d, %s' % (v(vTr), WO, v(vTr)))
a('v_and_b32 %s, 2, %s' % (v(t0), v(u8)))
a('v_xor_b32 %s, %s, %s' % (v(t0), v(t0), v(pos8)))
a('v_lshlrev_b32 %s, 4, %s' % (v(t1), v(t0)))
a('v_lshl_add_u32 %s, %s, 10, %s' % (v(wo0), v(u8), v(t1)))
a('v_xor_b32 %s, 64, %s' % (v(wo1), v(wo0)))
a('v_add_u32 %s, 7168, %s' % (v(wo1), v(wo1)))
a('v_mul_u32_u24 %s, 2752, %s' % (v(t2), v(u8)))
a('v_min_u32 %s, 5, %s' % (v(t1), v(t0)))
a('v_lshl_add_u32 %s, %s, 4, %s' % (v(f0), v(t1), v(t2)))
a('v_xor_b32 %s, 4, %s' % (v(t0), v(t0)))
a('v_min_u32 %s, 5, %s' % (v(t1), v(t0)))
a('v_lshl_add_u32 %s, %s, 4, %s' % (v(f1), v(t1), v(t2)))
a('v_add_u32 %s, %d, %s' % (v(f1), 8 * 2752 - 1024, v(f1)))
a('s_lshl_b32 s55, %s, 17' % s(sGam))
a('s_lshl_b32 s59, %s, 15' % s(sW))
a('s_add_u32 s55, s55, s59')
a('s_add_u32 s55, s55, s48')
a('s_add_u32 s12, s12, s55')
a('s_addc_u32 s13, s13, 0')
a('s_lshl_b32 s55, %s, 2' % s(sJ))
a('s_add_u32 s55, s55, %s' % s(sW))
a('s_mul_i32 s55, s55, %d' % (16 * 2752))
a('s_lshl_b32 s59, %s, 4' % s(sC0))
a('s_add_u32 s55, s55, s59')
a('s_add_u32 s16, s16, s55')
a('s_addc_u32 s17, s17, 0')
a('s_add_u32 s18, s18, s55')
a('s_addc_u32 s19, s19, 0')
a('s_lshl_b32 s55, %s, 13' % s(sC0))
a('s_min_u32 s59, %s, 2' % s(sW))
a('s_lshl_b32 s59, s59, 14')
a('s_add_u32 s55, s55, s59')
a('s_add_u32 s55, s55, s48')
a('s_add_u32 s20, s20, s55')
a('s_addc_u32 s21, s21, 0')
a('s_add_u32 s22, s22, s48')
a('s_addc_u32 s23, s23, 0')
if OPT['ksplit']:
    k_second()
a('s_add_u32 s6, s8, 4096')
a('s_addc_u32 s7, s9, 0')
a('s_waitcnt lgkmcnt(0)')
for k in range(10):
    a('s_add_u32 %s, %s, %d' % (s(sTag + k), s(sE), k + 1))


def issue_v(lo, hi):
    for i in range(lo, hi):
        if i == lo or i == 4:
            a('s_add_u32 m0, s58, %d' % (VI + 4096 * (i >> 2)))
            a('s_nop 0')
        a('global_load_lds_dwordx4 %s, %s offset:%d%s' % (v(vVo + ((i >> 1) & 1)), 's[6:7]' if i >= 4 else 's[8:9]', 1024 * (i & 3), NT))


def issue_wo():
    a('s_add_u32 m0, s49, %d' % WO)
    a('v_add_u32 %s, %d, %s' % (v(T + 20), 2 * 7168, v(wo0)))
    a('global_load_lds_dwordx4 %s, s[12:13] offset:0%s' % (v(wo0), NT))
    a('global_load_lds_dwordx4 %s, s[12:13] offset:1024%s' % (v(wo1), NT))
    a('global_load_lds_dwordx4 %s, s[12:13] offset:2048%s' % (v(T + 20), NT))
    a('v_add_u32 %s, %d, %s' % (v(T + 20), 2 * 7168, v(wo1)))
    a('global_load_lds_dwordx4 %s, s[12:13] offset:3072%s' % (v(T + 20), NT))


def issue_w13(lo, hi):
    for i in range(lo, hi):
        if i == lo or i == 2:
            a('s_lshl_b32 s59, %s, 11' % s(sW))
            a('s_add_u32 m0, s59, %d' % (W1 if i < 2 else W3))
            a('s_nop 0')
        a('global_load_lds_dwordx4 %s, s[%d:%d] offset:%d%s' % (v(f0 + (i & 1)), 16 + (i & 2), 17 + (i & 2), 1024 * (i & 1), NT))


def issue_w2():
    a('s_min_u32 s59, %s, 2' % s(sW))
    a('s_lshl_b32 s59, s59, 11')
    a('s_add_u32 m0, s59, %d' % W2)
    a('s_nop 0')
    a('global_load_lds_dwordx4 %s, s[20:21] offset:0%s' % (v(wo0), NT))
    a('global_load_lds_dwordx4 %s, s[20:21] offset:1024%s' % (v(wo1), NT))


r = vP
FE, KW, WOL = OPT['fe'], OPT['kw'], OPT['wol']
NPRE = 1 + bool(OPT['probe'])
NVA = OPT['nva']
NVB = 8 - NVA
NLATE = 0 if WOL else 4 + FE + 2 * OPT['w2e']


WOETC = []


def front():
    a('; ---- layer 0: x slice, query projection partials')
    set_tags(0)
    a('v_add_u32 %s, 0x%x, %s' % (v(T + 12), WS_L2D, v(vStP2)))
    a('v_add_u32 %s, 0x%x, %s' % (v(T + 13), WS_L2D, v(vPubL)))
    a('v_add_u32 %s, 0x%x, %s' % (v(T + 14), ST0, v(vStP2)))
    stamp('consts')
    a('s_waitcnt vmcnt(9)')
    stamp('wq landed')
    a('ds_write_b16 %s, %s offset:%d' % (v(vXw), v(vX), XB))
    issue_v(0, OPT['vq'])
    a('v_lshlrev_b32 %s, 16, %s' % (v(vSt4), v(vX)))
    a('v_lshlrev_b32 %s, 16, %s' % (v(vX), v(vX)))
    FAST[0] = True
    ln_stats(0, T + 14)
    a('s_waitcnt lgkmcnt(0)')

    proj(vWQ, 0, 0, wsrc=[(trq, WQ, 8192, 1024), (trq + 1, WQ, 8192, 1024)], first=True)
    FAST[0] = False
    stamp('L0 Q pub')
    if OPT.get('te'):
        h = OPT.get('th', 4)
        issue_v(OPT['vq'], h)
        sk = newlabel('noth')
        a('s_cmp_ge_u32 %s, 4' % s(sXcc))
        a('s_cbranch_scc1 %s' % sk)
        a('s_waitcnt vmcnt(%d)' % max(8 - OPT['te'] + (PRO >= 1) + 2 + h, 0))
        a.label(sk)
        issue_v(h, NVA)
    else:
        issue_v(OPT['vq'], NVA)
    lstore('global_store_dword', v(T + 13), v(T), BUF_A)
    a('s_mov_b64 exec, %s' % s(sM1, 2))
    lstore('global_store_dwordx2', v(T + 12), v(vSt4, 2), 0)
    a('s_mov_b64 exec, -1')
    a('v_mov_b32 %s, %s' % (v(T + 16), s(sE)))
    a('v_mov_b32 %s, %s' % (v(T + 17), s(sE)))
    if PAD:
        a('v_mov_b32 %s, %s' % (v(T + 18), s(sE)))
        a('v_mov_b32 %s, %s' % (v(T + 19), s(sE)))
    a('global_store_dwordx%d %s, %s, %s offset:%d sc1' % (2 << PAD, v(vPre), v(T + 16, 2 << PAD), s(sGb0, 2), -GOFF))
    if OPT['probe']:
        a('v_and_b32 %s, 31, %s' % (v(T + 18), v(vL)))
        a('v_lshl_add_u32 %s, %s, 2, %s' % (v(T + 18), v(T + 18), s(sPr)))
        a('v_lshrrev_b32 %s, 5, %s' % (v(T + 19), v(vL)))
        a('v_lshlrev_b32 %s, 13, %s' % (v(T + 19), v(T + 19)))
        a('v_xor_b32 %s, %s, %s' % (v(T + 18), v(T + 19), v(T + 18)))
        a('global_store_dword %s, %s, s[26:27] sc1' % (v(T + 18), v(T + 16)))
    a('; ---- layer 0: gather q')
    if OPT.get('cp2'):
        a('s_getpc_b64 s[4:5]')
        a.label('L_pc2')
        a('v_lshlrev_b32 %s, 6, v0' % v(T + 19))
        a('v_min_u32 %s, L_fastend-L_pc2-64, %s' % (v(T + 19), v(T + 19)))
        a('global_load_dword %s, %s, s[4:5]' % (v(T + 22), v(T + 19)))
    a('v_xor_b32 %s, %s, %s' % (v(t0), v(u16), v(pos16)))
    a('v_lshlrev_b32 %s, 4, %s' % (v(t0), v(t0)))
    a('v_lshl_add_u32 %s, %s, 8, %s' % (v(t0), v(pos16), v(t0)))
    a('s_add_u32 s55, s58, %d' % KI)
    a('v_add_u32 %s, s55, %s' % (v(t0), v(t0)))
    for kk in range(1, 4):
        a('v_xor_b32 %s, %d, %s' % (v(t0 + kk), kk << 6, v(t0)))
    alt, both, alts, boths = T + 13, T + 14, T + 15, T + 21
    a('v_mov_b32 %s, %s' % (v(alt), v(vCons)))
    a('v_lshlrev_b32 %s, 1, %s' % (v(both), v(vCons)))
    a('v_add_u32 %s, 0x%x, %s' % (v(both), WS_L2D, v(both)))
    a('v_add_u32 %s, 0x%x, %s' % (v(alts), ST0, v(vStC)))
    a('v_lshlrev_b32 %s, 1, %s' % (v(boths), v(vStC)))
    a('v_add_u32 %s, 0x%x, %s' % (v(boths), WS_L2D + ST0, v(boths)))
    page_break(True)
    behind_k = 2 + NVA + 2 + NPRE + (PRO >= 1) + OPT.get('cp2', 0)
    a('s_waitcnt vmcnt(%d)' % (8 - KW + behind_k))
    stamp('K part')
    loads = [(vSs[0], alts, sLb, 0), (r, alt, sLb, BUF_A), (r + 4, alt, sLb, BUF_X)]
    for x in loads:
        gload(*x)
    issue_v(NVA, 8)

    def wo_etc():
        issue_wo()
        if OPT['w2e']:
            issue_w2()
        issue_w13(0, FE)
    if not WOL:
        wo_etc()
    a('s_waitcnt vmcnt(%d)' % (behind_k + 3 + NVB + NLATE))
    stamp('K landed')
    for g in range(2):
        for kk in range(4):
            a('ds_read_b128 %s, %s offset:%d' % (v(vK + 16 * g + 4 * kk, 4), v(t0 + kk), 4096 * g))
    a('s_branch L_e1ent')
    a.label('L_e1top')
    tick()
    a('v_sub_u32 %s, %s, %s' % (v(alt), v(both), v(alt)))
    a('v_sub_u32 %s, %s, %s' % (v(alts), v(boths), v(alts)))
    for x in loads:
        gload(*x)
    if NLATE + NVB:
        a('s_waitcnt vmcnt(0)')
    a.label('L_e1ent')
    a('s_waitcnt vmcnt(%d)' % (NLATE + NVB))
    a('v_bitop3_b32 %s, %s, %s, %s bitop3:0x7e' % (v(T + 23), v(r), v(r + 4), s(sTag)))
    a('v_cmp_ne_u32 %s, %s, %s' % (s(sT1, 2), s(sTag), v(vSs[0] + 1)))
    a('v_cmp_ne_u32_sdwa vcc, %s, %s src0_sel:BYTE_0 src1_sel:DWORD' % (v(T + 23), v(vZero)))
    a('s_or_b64 vcc, vcc, %s' % s(sT1, 2))
    a('s_cbranch_vccnz L_e1top')
    stamp('L0 E1 ok')
    if OPT['fl']:
        flag_store(sE)
    if WOL and OPT['wopos'] == 0:
        wo_etc()
    WOETC.append(wo_etc)
    a('v_cmp_ne_u32 vcc, %s, %s' % (s(sXcc), v(vSs[0] + 3)))
    c, x, y = vC, vSs[0], r + 4
    ln_spec(x)
    mask_tag(y)
    a('v_mov_b32 %s, %s' % (v(c + 1), v(c)))
    a('v_permlane32_swap_b32 %s, %s' % (v(y + 1), v(y + 3)))
    mask_tag(r)
    a('v_permlane16_swap_b32 %s, %s' % (v(c), v(c + 1)))
    a('v_add_f32 %s, %s, %s' % (v(c), v(c), v(c + 1)))
    a('v_add_f32 %s, %s, %s' % (v(y + 1), v(y + 1), v(y + 3)))
    a('v_permlane32_swap_b32 %s, %s' % (v(y), v(y + 2)))
    dpp('v_add_f32', c, c, c, 'row_ror:8')
    a('v_add_f32 %s, %s, %s' % (v(y), v(y), v(y + 2)))
    a('v_permlane32_swap_b32 %s, %s' % (v(r + 1), v(r + 3)))
    dpp('v_add_f32', c, c, c, X1)
    a('v_add_f32 %s, %s, %s' % (v(r + 1), v(r + 1), v(r + 3)))
    a('v_permlane16_swap_b32 %s, %s' % (v(y), v(y + 1)))
    dpp('v_add_f32', c, c, c, X2)
    a('v_add_f32 %s, %s, %s' % (v(y), v(y), v(y + 1)))
    a('v_mul_f32 %s, %s, %s' % (v(c), s(sInv512), v(c)))
    a('v_mov_b32 %s, %s' % (v(c + 1), v(c)))
    a('v_permlane32_swap_b32 %s, %s' % (v(r), v(r + 2)))
    dpp('v_add_f32', vCq, y, y, 'row_ror:8')
    a('v_permlane32_swap_b32 %s, %s' % (v(c), v(c + 1)))
    a('v_add_f32 %s, %s, %s' % (v(r), v(r), v(r + 2)))
    bf16r(vMean, c)
    if OPT['fast']:
        a('s_cbranch_vccnz L_slowtail')


def CLEAN():
    return OPT['clean'] if FAST[0] else 0


def tail():
    for layer in range(2):
        pre = 'L%d' % layer
        k1, k2, k4 = 3 * layer, 3 * layer + 1, 3 * layer + 2

        def spec(x):
            mask_tag(x)
            red_a(x, r)
        if layer == 1:
            a('; ---- layer 1: x slice, query projection partials')
            set_tags(k1)
            if OPT['pages'] == 1:
                page_break()
            if OPT['probe'] == 3:
                race_pick()
            elif OPT['probe'] and OPT['vlate']:
                count_votes()
            if CLEAN():
                clean_prep()
            g_pace(1)
            x_gather(1, G_D)
            stamp(pre + ' E5 ok')
            x_to_lds(k1)
            a('s_waitcnt lgkmcnt(0)')
            proj(vWQ, k1, layer)
            stamp(pre + ' Q pub')
            a('; ---- layer 1: gather q')
            l_gather(k1, spec, ln_spec, [ln_mean])
            stamp(pre + ' E1 ok')
        red_b(r, r)
        a('v_fma_f32 %s, -%s, %s, %s' % (v(r), v(vMean), v(vCq), v(r)))
        a('v_cvt_pk_bf16_f32 %s, %s, %s' % (v(r), v(r), v(r)))
        a('ds_write_b16 %s, %s offset:%d' % (v(vQw), v(r), QB))
        if layer == 1 and CLEAN() & 1 and not OPT['cend'] & 1:
            clean_x()
        ln_rstd_a()
        if layer == 0 and WOL and OPT['wopos'] == 1:
            WOETC[0]()
        a('s_waitcnt lgkmcnt(0)')
        stamp('z%d qw' % layer)
        a('s_barrier')
        stamp('z%d qb' % layer)
        a('; ---- layer %d: attention over this member\'s 128 keys' % layer)
        for kk in range(4):
            a('ds_read_b128 %s, %s offset:%d' % (v(vA + 4 * kk, 4), v(vOpR), QB + 64 * kk))
        ln_rstd_b(True)
        set_tags(k2)
        for kk in range(4):
            lgkm(3 - kk)
            for g in range(2):
                mfma(vD + 4 * g, vA + 4 * kk, vK + 16 * g + 4 * kk, vD + 4 * g if kk else None)
        stamp('z%d qk' % layer)
        if layer == 0:
            if WOL and OPT['wopos'] == 2:
                WOETC[0]()
            if NVB:
                a('s_waitcnt vmcnt(%d)' % (4 + FE + 2 * OPT['w2e']))
                a('s_barrier')
            tr_reads(vV, trq, VI, 4, 8192, 1024)
        sg = vSt
        mx, e0 = T, T + 1
        a('v_max_f32 %s, %s, %s' % (v(mx), v(vD), v(vD + 4)))
        a('v_cndmask_b32 %s, %s, %s, %s' % (v(e0), v(vD), v(vD + 4), s(sM0, 2)))
        for ro in (8, 4, 2, 1):
            dpp('v_max_f32', mx, mx, mx, 'row_ror:%d' % ro)
        a('v_mul_f32 %s, %s, %s' % (v(sg), v(vCs), v(mx)))
        a('v_fma_f32 %s, %s, %s, -%s' % (v(e0), v(e0), v(vCs), v(sg)))
        a('v_exp_f32 %s, %s' % (v(sg + 1), v(e0)))
        stamp('z%d ex' % layer)
        a('ds_write_b32 %s, %s offset:%d' % (v(vMw), v(sg), MB))
        a('v_cvt_pk_bf16_f32 %s, %s, %s' % (v(e0), v(sg + 1), v(sg + 1)))
        a('ds_write_b16 %s, %s offset:%d' % (v(vPw), v(e0), PB))
        if layer == 0:
            tr_reads(vV + 16, trq + 1, VI, 4, 8192, 1024)
        for ro in (8, 4, 2):
            dpp('v_add_f32', sg + 1, sg + 1, sg + 1, 'row_ror:%d' % ro)
        a('s_waitcnt lgkmcnt(0)')
        stamp('z%d pw' % layer)
        a('s_barrier')
        stamp('z%d pb' % layer)
        mm = T + 4
        a('ds_read_b32 %s, %s offset:%d' % (v(mm), v(vMr), MB))
        for kk in range(4):
            a('ds_read_b128 %s, %s offset:%d' % (v(vA + 4 * kk, 4), v(vOpR), PB + 64 * kk))
        dpp('v_add_f32', sg + 1, sg + 1, sg + 1, 'row_ror:1')
        dpp('v_add_f32', sg + 1, sg + 1, sg + 1, 'row_bcast:15', 0xa)
        a('s_mov_b64 exec, 0x10000')
        lstore('global_store_dwordx4', v(vStP), v(sg, 4), 512 * (k2 & 1))
        a('s_mov_b64 exec, -1')

        def sel(kk):
            a('v_cndmask_b32 %s, %s, %s, %s' % (v(T + 8 + kk), v(vD + 8 * kk), v(vD + 8 * kk + 4), s(sM0, 2)))

        def bc(kk):
            a('v_mov_b32_dpp %s, %s quad_perm:[%d,%d,%d,%d] row_mask:0xf bank_mask:0xf' % (v(T + 16 + kk), v(mm), kk, kk, kk, kk))

        def acc(kk):
            a('%s %s, %s, %s' % ('v_fmac_f32' if kk else 'v_mul_f32', v(T), v(T + 16 + kk), v(T + 8 + kk)))
        lgkm(3)
        stamp('z%d pr' % layer)
        mfma(vD, vA, vV)
        dpp('v_max_f32', mx, mm, mm, X1)
        mfma(vD + 4, vA, vV + 16)
        lgkm(2)
        mfma(vD + 8, vA + 4, vV + 4)
        dpp('v_max_f32', mx, mx, mx, X2)
        mfma(vD + 12, vA + 4, vV + 20)
        a('v_sub_f32 %s, %s, %s' % (v(mm), v(mm), v(mx)))
        lgkm(1)
        mfma(vD + 16, vA + 8, vV + 8)
        a('v_exp_f32 %s, %s' % (v(mm), v(mm)))
        mfma(vD + 20, vA + 8, vV + 24)
        lgkm(0)
        bc(0)
        mfma(vD + 24, vA + 12, vV + 12)
        bc(1)
        bc(2)
        mfma(vD + 28, vA + 12, vV + 28)
        stamp('z%d pv' % layer)
        stats_load(k2)
        sel(0)
        sel(1)
        acc(0)
        acc(1)
        sel(2)
        acc(2)
        bc(3)
        a('s_mov_b32 exec_hi, 0')
        sel(3)
        acc(3)
        a('v_bfi_b32 %s, %s, %s, %s' % (v(T), v(vTagM), s(sTag + k2), v(T)))
        lstore('global_store_dword', v(vPubL), v(T), BUF_A if k2 % 2 == 0 else BUF_B)
        a('s_mov_b32 exec_hi, -1')
        stamp(pre + ' S pub')
        if layer == 0 and OPT['fl'] and OPT['flp'] == 1:
            a('s_waitcnt vmcnt(0)')
            flag_store(sTag + 6)
            stats_load(k2)
            lstore('global_store_dword', v(vStP), v(vSt), 512 * (k2 & 1))
        a('; ---- layer %d: combine the 8 key blocks, output projection partials' % layer)
        mj, mg, mo, lo = T, T + 1, vC, vC + 1

        def sm_spec(x):
            dpp('v_max_f32', mj, x, x, X1)
            a('v_mov_b32 %s, %s' % (v(mo), v(x)))
            a('v_mov_b32 %s, %s' % (v(lo), v(x + 1)))

        def sm0():
            allred('v_max_f32', mj, T + 2, [1])
            dpp('v_max_f32', mg, mj, mj, 'row_ror:8')
            allred('v_max_f32', mg, T + 2, [4, 5])

        def sm1():
            a('v_sub_f32 %s, %s, %s' % (v(mo), v(mo), v(mg)))
            a('v_sub_f32 %s, %s, %s' % (v(mj), v(mj), v(mg)))
            a('v_exp_f32 %s, %s' % (v(mo), v(mo)))
            a('v_exp_f32 %s, %s' % (v(mj), v(mj)))
            a('v_mul_f32 %s, %s, %s' % (v(mo), v(mo), v(lo)))
            allred('v_add_f32', mo, T + 2, [0, 1, 3, 4, 5])
            a('v_rcp_f32 %s, %s' % (v(mo), v(mo)))
            a('v_mul_f32 %s, %s, %s' % (v(vF), v(mj), v(mo)))

        def spec2(x):
            mask_tag(x)
            a('v_pk_mul_f32 %s, %s, %s op_sel_hi:[1,0]' % (v(x + 2, 2), v(x + 2, 2), v(vF, 2)))
            a('v_pk_mul_f32 %s, %s, %s op_sel_hi:[1,0]' % (v(x, 2), v(x, 2), v(vF, 2)))
            red_a(x, r)
        l_gather(k2, spec2, sm_spec, [sm0, sm1], hook=(lambda: flag_store(sTag + 6)) if layer == 0 and OPT['fl'] and OPT['flp'] == 0 else None)
        stamp(pre + ' E2 ok')
        red_b(r, r)
        a('v_cvt_pk_bf16_f32 %s, %s, %s' % (v(r), v(r), v(r)))
        a('ds_write_b16 %s, %s offset:%d' % (v(vQw), v(r), OB))

        def ffn_rest():
            issue_w13(FE, 4)
            if not OPT['w2e']:
                issue_w2()
        if layer == 0 and OPT['ff'] in (2, 3):
            ffn_rest()
        if layer == 0 and OPT['ff'] == 6:
            issue_w13(FE, 4)
        if layer == 0 and OPT['ff'] == 7:
            issue_w13(FE, 2)
        a('s_waitcnt lgkmcnt(0)')
        a('s_barrier')
        if layer == 0 and OPT['ff'] == 5:
            gemv_publish_g(4, vWO, OB, 0, G_C, tr=True, mid=lambda: issue_w13(FE, 2), post=lambda: issue_w13(2, 4))
            issue_w2()
        elif layer == 0 and OPT['probe'] == 2:
            gemv_publish_g(4, vWO, OB, 0, G_C, tr=True, mid=race_prep, post=race_start)
        else:
            gemv_publish_g(4, vWO, OB, 2 * layer, G_C, tr=layer == 0)
        stamp(pre + ' O pub')
        a('; ---- layer %d: x slice, gate/up partials' % layer)
        set_tags(k4)
        if layer == 0 and OPT['ff'] == 1:
            nrest = 4 - FE + (0 if OPT['w2e'] else 2)
            if OPT['fl']:
                a('v_lshlrev_b32 %s, 7, %s' % (v(T + 5), v(vL)))
                a('v_add_u32 %s, %d, %s' % (v(T + 5), WS_F, v(T + 5)))
                flag_load()
            ffn_rest()
            if OPT['fl']:
                flag_wait(nrest)
            else:
                a('s_waitcnt vmcnt(%d)' % nrest)
            stamp('G0 ack')
            x_gather(0, G_C, work=probe_near if OPT['probe'] else None)
        else:
            flush_deferred()
            if layer == 0 and OPT['ff'] == 4:
                ffn_rest()
            if layer == 0 and OPT['ff'] == 7:
                issue_w13(2, 4)
            if layer == 0 and OPT['ff'] in (6, 7):
                issue_w2()
            if OPT['pages'] == 2:
                page_break()
            if layer == 0 and OPT['opre'] and OPT['clean'] & 8:
                sk = newlabel('noout')
                a('s_cmp_lg_u32 %s, 0' % s(sGam))
                a('s_cbranch_scc1 %s' % sk)
                a('s_mov_b32 exec_lo, 0x000f000f')
                a('s_mov_b32 exec_hi, 0x000f000f')
                a('global_store_short %s, %s, s[22:23] sc1' % (v(vXw), v(vZero)))
                a('s_mov_b64 exec, -1')
                a.label(sk)
            if layer == 0 and OPT['probe'] == 2:
                assert OPT['ff'] == 4
                race_finish(1 + 4 - FE + 2)
                if not OPT['vlate']:
                    count_votes()
            if layer == 0 and OPT['probe'] == 1:
                probe_near()
                if not OPT['vlate']:
                    count_votes()
            if layer == 0 and OPT['fl']:
                a('v_lshlrev_b32 %s, 7, %s' % (v(T + 5), v(vL)))
                a('v_add_u32 %s, %d, %s' % (v(T + 5), WS_F, v(T + 5)))
                flag_load()
                flag_wait(0)
            if layer or OPT['ff'] != 3:
                g_pace(2 * layer)
            else:
                for i in range(OPT.get('xs', 0)):
                    a('s_nop 15')
                stamp('G0 ack')
            x_gather(2 * layer, G_C)
        stamp(pre + ' E3 ok')
        x_to_lds(k4)
        a('s_cmp_eq_u32 %s, 3' % s(sW))
        a('s_waitcnt lgkmcnt(0)')
        idle = newlabel('idle')

        proj(vW13, k4, layer, wsrc=[(vTr, W1 - WO, 4096, 512), (vTr, W3 - WO, 4096, 512)] if layer == 0 else None, skip=idle)
        stamp(pre + ' G pub')
        if layer == 1 and CLEAN():
            a('v_mov_b32 %s, %s' % (v(vKeep), v(T)))
        a('; ---- layer %d: gather gate/up, activation' % layer)

        def w2_regs():
            a('v_and_b32 %s, 32, %s' % (v(T + 1), v(vL)))
            a('v_lshlrev_b32 %s, 6, %s' % (v(T + 1), v(T + 1)))
            a('v_sub_u32 %s, %s, %s' % (v(T + 1), v(vTr), v(T + 1)))
            tr_reads(vW2, vTr, W2 - WO, 1, 4096, 512)
            tr_reads(vW2 + 4, T + 1, W2 - WO + 4096, 1, 4096, 512)

        def ln_all():
            w2_regs()
            ln_mean()
            ln_rstd_a()
            ln_rstd_b(False)
        if layer == 0:
            loads = [(r, vCons, sLb, BUF_A), (r + 4, vCons, sLb, BUF_X)]

            def data():
                ln_spec(vSs[0])
                for x in loads:
                    gload(*x)

            def spec4():
                mask_tag(r)
                mask_tag(r + 4)
                red_a(r, r)
            flush_deferred()
            poll([(vSs[0], vStC, sLb, 0)], lambda: chk_stats(vSs[0], k4), data, cnt=1, issued=True)
            poll(loads, lambda: chk_byte([r, r + 4], sTag + k4), spec4, work=ln_all, issued=True)
            red_a(r + 4, r + 4)
            red_b(r + 4, vCg)
        else:
            l_gather(k4, spec, ln_spec, [ln_mean, ln_rstd_a, lambda: ln_rstd_b(False)])
        stamp(pre + ' E4 ok')
        red_b(r, r)
        a('v_fma_f32 %s, -%s, %s, %s' % (v(r), v(vMean), v(vCg), v(r)))
        a('v_mul_f32 %s, %s, %s' % (v(r), v(r), v(vRs)))
        bf16r(r, r)
        a('v_mul_f32 %s, %s, %s' % (v(r + 1), s(sNl2e), v(r)))
        a('v_exp_f32 %s, %s' % (v(r + 1), v(r + 1)))
        a('v_and_b32_dpp %s, %s, %s row_shl:4 row_mask:0xf bank_mask:0xf' % (v(r + 2), v(r), v(vHmask)))
        a('v_add_f32 %s, 1.0, %s' % (v(r + 1), v(r + 1)))
        a('v_rcp_f32 %s, %s' % (v(r + 1), v(r + 1)))
        a('v_mul_f32 %s, %s, %s' % (v(r), v(r), v(r + 1)))
        bf16r(r, r)
        a('v_mul_f32 %s, %s, %s' % (v(r), v(r), v(r + 2)))
        a('v_cvt_pk_bf16_f32 %s, %s, %s' % (v(r), v(r), v(r)))
        a('ds_write_b16 %s, %s' % (v(vHw), v(r)))
        if layer == 0:
            join = newlabel('join')

            def idle_path(idle=idle, join=join, w2_regs=w2_regs):
                a.label(idle)
                w2_regs()
                a('s_branch %s' % join)
            deferred.append(idle_path)
            a.label(join)
        else:
            join = newlabel('join')

            def idle_path1(idle=idle, join=join):
                a.label(idle)
                a('v_mov_b32 %s, %s' % (v(vKeep), s(sTag + 5)))
                a('s_cmp_lg_u32 s2, 255')
                a('s_cbranch_scc1 %s' % join)
                a('s_add_u32 s55, %s, 16' % s(sE))
                a('v_mov_b32 %s, s55' % v(T + 2))
                a('s_mov_b64 exec, 1')
                a('global_store_dword %s, %s, s[26:27] sc1' % (v(vZero), v(T + 2)))
                a('s_mov_b64 exec, -1')
                a('s_branch %s' % join)
            deferred.append(idle_path1)
            a.label(join)
        a('s_waitcnt lgkmcnt(0)')
        a('s_barrier')
        if layer == 0 and OPT['probe'] == 3:
            gemv_publish_g(2, vW2, HB, 1, G_D, mid=race_prep, post=race_start)
        else:
            gemv_publish_g(2, vW2, HB, 2 * layer + 1, G_D, mid=clean_a if layer == 1 and CLEAN() & 2 and not OPT['cend'] & 2 else None)
        stamp(pre + ' D pub')

    a('; ---- final sum (group 0 only)')
    if OPT.get('opack'):
        a('v_mov_b32 %s, 0xffff' % v(T + 11))
        a('v_and_b32 %s, 0x7c, %s' % (v(T + 12), v(vXw)))
    if CLEAN() & 4:
        fin = newlabel('last')
        clean_b_prep()
        a('s_cmp_eq_u32 %s, 0' % s(sGam))
        a('s_cbranch_scc1 %s' % fin)

        def clean_all():
            clean_b()
            if OPT['cend'] & 2:
                clean_a()
            if OPT['cend'] & 1:
                clean_x()
        a('s_waitcnt vmcnt(0)')
        clean_all()
        a('s_branch L_fin')
        flush_deferred(False)
        a.label(fin)
        g_pace(3)
        x_gather(3, G_D, work=clean_all, cnt=1 + bin(OPT['cend'] & 3).count('1'))
    else:
        a('s_cmp_lg_u32 %s, 0' % s(sGam))
        a('s_cbranch_scc1 L_fin')
        g_pace(3)
        x_gather(3, G_D)
    sc = ' sc1' if OPT['clean'] & 8 else ''
    if OPT.get('opack'):
        a('v_mov_b32 %s, %s' % (v(T + 1), v(T)))
        a('v_permlane16_swap_b32 %s, %s' % (v(T), v(T + 1)))
        a('v_bfi_b32 %s, %s, %s, %s' % (v(T), v(T + 11), v(T), v(T + 1)))
        if OPT['opack'] == 2:
            a('v_mov_b32 %s, %s' % (v(T + 1), v(T)))
            a('v_permlane32_swap_b32 %s, %s' % (v(T), v(T + 1)))
            a('s_mov_b64 exec, 15')
            a('global_store_dwordx2 %s, %s, s[22:23]%s' % (v(T + 12), v(T, 2), sc))
        else:
            a('s_mov_b32 exec_lo, 15')
            a('s_mov_b32 exec_hi, 15')
            a('global_store_dword %s, %s, s[22:23]%s' % (v(T + 12), v(T), sc))
    else:
        a('s_mov_b32 exec_lo, 0x000f000f')
        a('s_mov_b32 exec_hi, 0x000f000f')
        a('global_store_short %s, %s, s[22:23]%s' % (v(vXw), v(T), sc))


front()
FAST[0] = bool(OPT['fast'])
tail()
a.label('L_fin')
if OPT.get('dirty'):
    a('s_mov_b64 exec, -1')
    a('s_lshl_b32 s55, s2, 2')
    a('s_add_u32 s55, s55, %s' % s(sW))
    a('s_lshl_b32 s55, s55, 15')
    a('s_add_u32 s55, s55, 0x400000')
    a('v_lshl_add_u32 %s, %s, 4, s55' % (v(T + 1), v(vL)))
    for i in range(OPT['dirty']):
        a('global_store_dwordx4 %s, %s, s[26:27]' % (v(T + 1), v(vD, 4)))
        a('v_add_u32 %s, 1024, %s' % (v(T + 1), v(T + 1)))
if OPT.get('wb'):
    a('buffer_wbl2 sc1')
if OPT.get('delay'):
    if 'only' in OPT:
        a('s_cmp_lg_u32 s2, %d' % OPT['only'])
        a('s_cbranch_scc1 L_end')
    a.label('L_dly')
    a('s_memrealtime s[6:7]')
    a('s_waitcnt lgkmcnt(0)')
    a('s_sub_u32 s8, s6, s100')
    a('s_cmp_lt_u32 s8, %d' % OPT.get('until', 3000))
    a('s_cbranch_scc1 L_dly')
if DIAG:
    a('s_mov_b64 exec, -1')
    a('s_memrealtime s[4:5]')
    a('s_waitcnt lgkmcnt(0)')
    a('v_mov_b32 %s, 0' % v(T))
    for i in range(len(stamps)):
        a('v_writelane_b32 %s, %s, %d' % (v(T), s(stamp_regs[i]), i))
    a('v_writelane_b32 %s, s4, %d' % (v(T), len(stamps)))
    a('v_xor_b32 %s, %s, %s' % (v(T + 2), v(vConsG), v(vConsG0)))
    a('v_readfirstlane_b32 s6, %s' % v(T + 2))
    a('v_writelane_b32 %s, s6, 62' % v(T))
    a('v_writelane_b32 %s, s12, 61' % v(T))
    a('v_writelane_b32 %s, s13, 60' % v(T))
    a('v_writelane_b32 %s, %s, 63' % (v(T), s(sXcc)))
    a('s_lshl_b32 s55, s2, 2')
    a('s_add_u32 s55, s55, %s' % s(sW))
    a('s_lshl_b32 s55, s55, 8')
    a('s_add_u32 s55, s55, %d' % WS_DIAG)
    a('v_lshl_add_u32 %s, %s, 2, s55' % (v(T + 1), v(vL)))
    a('global_store_dword %s, %s, s[26:27]' % (v(T + 1), v(T)))
a.label('L_end')
a('s_endpgm')
flush_deferred(False)
a.label('L_fastend')
if OPT['fast']:
    a('; ==== the same phases with write-through stores: taken when the group is spread over several XCDs')
    a.label('L_slowtail')
    FAST[0] = False
    a.hist = []
    a('s_nop 1')
    tail()
    a('s_branch L_fin')
    flush_deferred(False)
    a('s_endpgm')
a.raw('''.section .rodata,"a"
.p2align 6
.amdhsa_kernel %s_kernel
  .amdhsa_next_free_vgpr %d
  .amdhsa_next_free_sgpr 102
  .amdhsa_accum_offset %d
  .amdhsa_group_segment_fixed_size 0
  .amdhsa_kernarg_size 96
  .amdhsa_user_sgpr_count 2
  .amdhsa_user_sgpr_kernarg_segment_ptr 1
  .amdhsa_system_sgpr_workgroup_id_x 1
  .amdhsa_float_denorm_mode_32 3
.end_amdhsa_kernel''' % (NAME, NVGPR, NVGPR))
sys.stdout.write(a.text())
if DIAG:
    sys.stderr.write('STAMPS ' + '|'.join(stamps + ['end']) + '\n')
sys.stderr.write('nops inserted: %d\n' % a.nops)
```

```python
import sys, math, struct
from asm import Asm

NAME = 'interleave_layers__sliding_block_cached__glu_gated_swiglu__decode'
OPT = dict(diag=0, fast=1, nt=1, kw=5, fe=0, wol=1, probe=3, vw=1, thr=90, pages=2, cnt=0, early=2, d0=0, refresh=0, spipe=1, late_rs=1, na=0, nsl=0, w2e=0, ff=7, vlate=1, fl=0, flp=0, pad=0, nva=8, ksplit=0, wopos=0, ool=0, stg=1, vq=0, clean=0, cend=1, opre=1)
for a_ in sys.argv[1:]:
    k_, v_ = a_.split('=')
    OPT[k_] = int(v_)
DIAG = OPT['diag']
NT = {0: '', 1: ' nt', 2: ' sc1 nt', 3: ' sc0 sc1 nt', 4: ' sc0 nt', 5: ' sc1', 6: ' sc0 sc1'}[OPT['nt']]
STAGE = not DIAG or DIAG == 6

XB, ONES, QB, OB, HB, MB, DUMMY, PB = 0, 128, 256, 512, 768, 896, 960, 1024
WQ, VI, WO = 4096, 20480, 53248
W1, W3, W2 = WO + 16384, WO + 24576, WO + 32768
KI = WO + 38912
LDS_BYTES = KI + 32768
WS_F = 0x10000
WS_L, WS_P, WS_G, WS_DIAG = 0x40000, 0xc0000, 0x100000, 0x200000
WS_L2D = 0x140000 + 0x100000 * OPT['pad']
BUF_A, BUF_X, BUF_B, STATS, VOTES = 0, 1024, 2048, 3072, 7168
ST0 = 8192
PAD = OPT['pad']
GOFF = 4096 * PAD
G_C, G_D, G_H = -GOFF, (2048 << PAD) - GOFF, 1024 << PAD
G_X = (0x20000 << PAD) | 0x2000
WSH = 1 - PAD

vL, vCons, vPubL, vPw, vPubG, vStP, vStC, vTagM, vStP2 = range(1, 10)
vXw, vQw, vHw, vOpR, vXopR, vConsG, vConsG0, vCs, vZero, vMw = range(10, 20)
trq, vTr, vHmask, vX, vCq, vCg, vMean, vRs = 20, 22, 23, 24, 25, 26, 27, 28
vMr, vF = 29, 30
vWQ, vK, vV, vWO, vW13, vW2 = 32, 48, 80, 112, 128, 144
wo0, wo1, f0, f1, vPre, vVo = 144, 145, 146, 147, 148, 149
T = 152
vC = T + 12
vA = 176
vD = 192
vP = 224
vSt, vSt4, vKeep = 232, 236, 238
vCl = 20
vDs, vSs = [240, 244], [248, 252]
NVGPR = 256
sW, sJ, sGam, sPr, sE, sC0, sCnt, sXcc, sTo = 28, 29, 30, 31, 32, 33, 34, 35, 36
sLb, sGb0, sGb1 = 38, 40, 14
sPc, sT1 = 42, 44
sCs, sMaskHi, sInv512, sEps, sNl2e = 50, 51, 52, 53, 54
sM0, sM1, sHi, sCl = 56, 42, 46, 44
sTag = 60

a = Asm()
stamp_regs = list(range(70, 102, 2))
stamps = []
nstamp = [0]
lbl = [0]
FAST = [False]


def v(n, cnt=1):
    return 'v%d' % n if cnt == 1 else 'v[%d:%d]' % (n, n + cnt - 1)


def s(n, cnt=1):
    return 's%d' % n if cnt == 1 else 's[%d:%d]' % (n, n + cnt - 1)


def stamp(name):
    nstamp[0] += 1
    if OPT.get('delay') == 3 and OPT.get('at', 1) == nstamp[0]:
        a('s_memrealtime s[100:101]')
        sys.stderr.write('delay anchored at ' + name + '\n')
    keep = {0: False, 1: name[:2] not in ('L1', 'x ') and name[0] not in 'Gz', 2: name[:2] == 'L1', 5: name[0] == 'G' or name[3:] in ('O pub', 'D pub', 'E3 ok', 'E5 ok') or name in ('L0 E1 ok', 'L0 S pub', 'L0 E2 ok'),
            6: False, 7: name[:2] in ('L1', 'x '), 8: name[:2] == 'z1' or name in ('L1 E1 ok', 'L1 S pub', 'L1 E2 ok', 'L1 O pub', 'L1 E5 ok', 'L1 Q pub')}[DIAG]
    if not (keep or DIAG and name == 'start'):
        return
    if name not in stamps:
        if len(stamps) >= len(stamp_regs):
            return
        stamps.append(name)
    r = stamp_regs[stamps.index(name)]
    if OPT['cnt'] and name != 'start':
        a('s_sub_u32 %s, 0x40000, %s' % (s(r), s(sTo)))
    else:
        a('%s %s' % ('s_memtime' if DIAG in (7, 8) and name != 'x rt0' else 's_memrealtime', s(r, 2)))


def f32(x):
    return '0x%08x' % struct.unpack('<I', struct.pack('<f', x))[0]


def newlabel(p):
    lbl[0] += 1
    return 'L_%s_%d' % (p, lbl[0])


def lgkm(n):
    a('s_waitcnt lgkmcnt(%d)' % (n if STAGE else 0))


def mfma(d, x, y, c=None):
    a('v_mfma_f32_16x16x32_bf16 %s, %s, %s, %s' % (v(d, 4), v(x, 4), v(y, 4), '0' if c is None else v(c, 4)))


def dpp(op, d, x, y, ctl, rm=0xf):
    a('%s_dpp %s, %s, %s %s row_mask:0x%x bank_mask:0xf' % (op, v(d), v(x), v(y), ctl, rm))


X1, X2 = 'quad_perm:[1,0,3,2]', 'quad_perm:[2,3,0,1]'


def lstore(op, addr, data, off):
    a('%s %s, %s, %s offset:%d%s' % (op, addr, data, s(sLb, 2), off, '' if FAST[0] and not OPT.get('allsc') else ' sc1'))


def gload(d, vo, b, im):
    a('global_load_dwordx4 %s, %s, %s offset:%d sc1' % (v(d, 4), v(vo), s(b, 2), im))


def tick():
    a('s_sub_u32 %s, %s, 1' % (s(sTo), s(sTo)))
    a('s_cbranch_scc1 L_end')


deferred = []


def flush_deferred(jump=True):
    if not deferred:
        return
    l = newlabel('skip')
    if jump:
        a('s_branch %s' % l)
    hist = a.hist
    while deferred:
        a.hist = []
        deferred.pop(0)()
    a.hist = hist
    a.label(l)


def poll(loads, check, spec, work=None, cnt=0, issued=False, backoff=0):
    top, ent = newlabel('poll'), newlabel('pent')
    if not issued:
        for x in loads:
            gload(*x)
    if work:
        work()

    def retry():
        a.label(top)
        tick()
        if backoff:
            a('s_sleep %d' % backoff)
        for x in loads:
            gload(*x)
        if cnt:
            a('s_waitcnt vmcnt(0)')
        if OPT['ool']:
            a('s_branch %s' % ent)
    if OPT['ool']:
        deferred.append(retry)
    else:
        a('s_branch %s' % ent)
        retry()
    a.label(ent)
    a('s_waitcnt vmcnt(%d)' % cnt)
    check()
    if spec:
        spec()
    a('s_cbranch_vccnz %s' % top)


def ring2(sets, issue, check, spec, cnt1, cnt0, first):
    top, ent, done = newlabel('ring'), newlabel('rent'), newlabel('rdone')

    def retry():
        a.label(top)
        tick()
        issue(sets[0])
        a('s_waitcnt vmcnt(%d)' % cnt1)
        check(sets[1])
        spec(sets[1])
        a('s_cbranch_vccz %s' % done)
        issue(sets[1])
        if first != cnt0:
            a('s_waitcnt vmcnt(%d)' % cnt0)
        if OPT['ool']:
            a('s_branch %s' % ent)
    if OPT['ool']:
        deferred.append(retry)
    else:
        a('s_branch %s' % ent)
        retry()
    a.label(ent)
    a('s_waitcnt vmcnt(%d)' % first)
    check(sets[0])
    spec(sets[0])
    a('s_cbranch_vccnz %s' % top)
    a.label(done)


def chk_byte(regs, tag):
    if len(regs) == 1:
        a('v_cmp_ne_u32_sdwa vcc, %s, %s src0_sel:BYTE_0 src1_sel:BYTE_0' % (v(regs[0]), s(tag)))
    else:
        a('v_bitop3_b32 %s, %s, %s, %s bitop3:0x7e' % (v(T + 23), v(regs[0]), v(regs[1]), s(tag)))
        a('v_cmp_ne_u32_sdwa vcc, %s, %s src0_sel:BYTE_0 src1_sel:DWORD' % (v(T + 23), v(vZero)))


def chk_stats(x, k):
    a('v_cmp_ne_u32 vcc, %s, %s' % (s(sTag + k), v(x + (2 if k % 3 == 1 else 1))))


def red_a(x, c):
    a('v_permlane32_swap_b32 %s, %s' % (v(x + 1), v(x + 3)))
    a('v_add_f32 %s, %s, %s' % (v(c + 1), v(x + 1), v(x + 3)))
    a('v_permlane32_swap_b32 %s, %s' % (v(x), v(x + 2)))
    a('v_add_f32 %s, %s, %s' % (v(c), v(x), v(x + 2)))


def red_b(c, out):
    a('v_permlane16_swap_b32 %s, %s' % (v(c), v(c + 1)))
    a('v_add_f32 %s, %s, %s' % (v(c), v(c), v(c + 1)))
    dpp('v_add_f32', out, c, c, 'row_ror:8')


def mask_tag(x):
    a('v_and_b32 %s, %s, %s' % (v(x), s(sMaskHi), v(x)))


def bf16r(dst, src):
    a('v_cvt_pk_bf16_f32 %s, %s, %s' % (v(dst), v(src), v(src)))
    a('v_and_b32 %s, 0xffff0000, %s' % (v(dst), v(dst)))


def allred(op, x, t, bits):
    for b in bits:
        if b < 4:
            dpp(op, x, x, x, {0: X1, 1: X2, 3: 'row_ror:8'}[b])
        else:
            a('v_mov_b32 %s, %s' % (v(t), v(x)))
            a('v_permlane%d_swap_b32 %s, %s' % (16 if b == 4 else 32, v(x), v(t)))
            a('%s %s, %s, %s' % (op, v(x), v(x), v(t)))


def set_tags(k):
    a('v_mov_b32 %s, %s' % (v(vSt + 2), s(sTag + k)))
    if k % 3 != 1:
        a('v_cndmask_b32 %s, %s, %s, %s' % (v(vSt4 + 1), v(vSt + 2), v(vSt + 3), s(sHi, 2)))


def ln_stats(k, addr=None):
    g = vSt4
    a('v_mul_f32 %s, %s, %s' % (v(T + 7), v(vX), v(vX)))
    a('v_permlane32_swap_b32 %s, %s' % (v(g), v(T + 7)))
    a('v_add_f32 %s, %s, %s' % (v(g), v(g), v(T + 7)))
    allred('v_add_f32', g, None, [0, 1])
    dpp('v_add_f32', g, g, g, 'row_bcast:15', 0xa)
    a('s_mov_b64 exec, %s' % s(sM1, 2))
    lstore('global_store_dwordx2', v(addr or vStP2), v(g, 2), 512 * (k & 1))
    a('s_mov_b64 exec, -1')


def ln_spec(x):
    a('v_permlane32_swap_b32 %s, %s' % (v(x), v(x + 2)))
    a('v_add_f32 %s, %s, %s' % (v(vC), v(x), v(x + 2)))


def ln_mean():
    c = vC
    allred('v_add_f32', c, c + 1, [4, 3, 0, 1])
    a('v_mul_f32 %s, %s, %s' % (v(c), s(sInv512), v(c)))
    a('v_mov_b32 %s, %s' % (v(c + 1), v(c)))
    a('v_permlane32_swap_b32 %s, %s' % (v(c), v(c + 1)))
    bf16r(vMean, c)


def ln_rstd_a():
    c = vC
    a('v_fma_f32 %s, -%s, %s, %s' % (v(c + 1), v(c), v(c), v(c + 1)))
    a('v_max_f32 %s, 0, %s' % (v(c + 1), v(c + 1)))
    bf16r(c + 1, c + 1)
    a('v_add_f32 %s, %s, %s' % (v(c + 1), s(sEps), v(c + 1)))
    bf16r(c + 1, c + 1)
    a('v_sqrt_f32 %s, %s' % (v(c + 1), v(c + 1)))


def ln_rstd_b(scale):
    c = vC
    bf16r(c + 1, c + 1)
    a('v_rcp_f32 %s, %s' % (v(vRs), v(c + 1)))
    if scale:
        a('v_mul_f32 %s, %s, %s' % (v(vCs), s(sCs), v(vRs)))


def stats_load(k, x=vSs[0]):
    gload(x, vStC, sLb, 512 * (k & 1))


def l_gather(k, spec, st_spec, chain, hook=None):
    buf = BUF_A if k % 2 == 0 else BUF_B

    def d_issue(x):
        gload(x, vCons, sLb, buf)
    rf = OPT['refresh'] and OPT['d0']

    def s_issue(x):
        stats_load(k, x)
        if rf:
            d_issue(vDs[0])
    if OPT['d0']:
        d_issue(vDs[0])
    if OPT['spipe']:
        stats_load(k, vSs[1])
        flush_deferred()
        ring2(vSs, s_issue, lambda x: chk_stats(x, k), st_spec, 2 if rf else 1, 3 if rf else 1, 2 + OPT['d0'])
    else:
        flush_deferred()
        poll([(vSs[0], vStC, sLb, 512 * (k & 1))], lambda: chk_stats(vSs[0], k), lambda: st_spec(vSs[0]), cnt=1 + OPT['d0'], issued=True)
    if k >= 3:
        stamp('x st%d' % k)
    if not OPT['d0']:
        d_issue(vDs[0])
        chain[0]()
        d_issue(vDs[1])
    else:
        d_issue(vDs[1])
        chain[0]()
    if hook:
        hook()
    for c in chain[1:]:
        c()
    ring2(vDs, d_issue, lambda x: chk_byte([x], sTag + k), spec, 1, 1, 1)


def x_gather(gi, imm, work=None, cnt=0):
    r = vP
    base = sGb0 if gi < 2 else sGb1

    def spec():
        a('v_pk_add_f32 %s, %s, %s' % (v(r + 2, 2), v(r + 2, 2), v(r + 6, 2)))
        a('v_add_f32 %s, %s, %s' % (v(r + 1), v(r + 1), v(r + 5)))
        mask_tag(r)
        mask_tag(r + 4)
        a('v_add_f32 %s, %s, %s' % (v(r), v(r), v(r + 4)))
        red_a(r, r)
    poll([(r, vConsG, base, imm), (r + 4, vConsG, base, imm + G_H)], lambda: chk_byte([r, r + 4], sTag + 6 + gi), spec, work=work, cnt=cnt, backoff=OPT.get('g%ds' % gi, 0))
    red_b(r, r)
    dpp('v_add_f32', r, r, r, 'row_ror:4')
    bf16r(r, r)
    a('v_add_f32 %s, %s, %s' % (v(r), v(r), v(vX)))
    a('v_cvt_pk_bf16_f32 %s, %s, %s' % (v(T), v(r), v(r)))


def x_to_lds(k):
    a('ds_write_b16 %s, %s offset:%d' % (v(vXw), v(T), XB))
    a('v_and_b32 %s, 0xffff0000, %s' % (v(vX), v(T)))
    a('v_and_b32 %s, 0xffff0000, %s' % (v(vSt4), v(T)))
    ln_stats(k)


def tr_pair(dst, addr, off, gstride):
    for g in range(2):
        a('ds_read_b64_tr_b16 %s, %s offset:%d' % (v(dst + 2 * g, 2), v(addr), off + g * gstride))


def proj(wreg, k, layer, wsrc=None, first=False, skip=None):
    rd = vXopR if layer == 0 else vOpR
    a('s_barrier')
    for kk in range(2):
        a('ds_read_b128 %s, %s offset:%d' % (v(vA + 4 * kk, 4), v(rd), XB + 64 * kk))
        if wsrc:
            for cg in range(2):
                ad, off, ks, gs = wsrc[cg]
                tr_pair(wreg + 8 * cg + 4 * kk, ad, off + kk * ks, gs)
    if skip:
        a('s_cbranch_scc1 %s' % skip)
    if not first and OPT['early'] == 1:
        stats_load(k)
    lgkm(7 if wsrc else 1)
    mfma(vD, vA, wreg)
    if wsrc:
        lgkm(5)
    mfma(vD + 4, vA, wreg + 8)
    if not first and OPT['early'] == 2:
        stats_load(k)
    lgkm(2 if wsrc else 0)
    mfma(vD, vA + 4, wreg + 4, vD)
    if wsrc:
        lgkm(0)
    mfma(vD + 4, vA + 4, wreg + 12, vD + 4)
    if not first and OPT['early'] == 0:
        stats_load(k)
    if layer == 1:
        a('s_mov_b32 exec_hi, 0')
    a('v_cndmask_b32 %s, %s, %s, %s' % (v(T), v(vD), v(vD + 4), s(sM0, 2)))
    a('v_bfi_b32 %s, %s, %s, %s' % (v(T), v(vTagM), s(sTag + k), v(T)))
    lstore('global_store_dword', v(vPubL), v(T), BUF_A if k % 2 == 0 else BUF_B)
    if layer == 1:
        a('s_mov_b32 exec_hi, -1')


def tr_reads(dst, addr, base, nk, kstride, gstride):
    for kk in range(nk):
        for g in range(2):
            a('ds_read_b64_tr_b16 %s, %s offset:%d' % (v(dst + 4 * kk + 2 * g, 2), v(addr), base + kk * kstride + g * gstride))


def gemv_publish_g(nk, wreg, src, gi, imm, tr=False, mid=None, post=None):
    for kk in range(nk):
        a('ds_read_b128 %s, %s offset:%d' % (v(vA + 4 * kk, 4), v(vOpR), src + 64 * kk))
        if tr:
            tr_pair(wreg + 4 * kk, vTr, 4096 * kk, 512)
    if mid:
        mid()
    for kk in range(nk):
        lgkm((nk - 1 - kk) * (3 if tr else 1))
        mfma(vD, vA + 4 * kk, wreg + 4 * kk, vD if kk else None)
    if post:
        post()
    if not PAD:
        a('s_mov_b32 exec_hi, 0')
    a('v_bfi_b32 %s, %s, %s, %s' % (v(T), v(vTagM), s(sTag + 6 + gi), v(vD)))
    st = 'global_store_dword %s, %s, %s offset:%d sc1' % (v(vPubG), v(T), s(sGb0 if gi < 2 else sGb1, 2), imm)
    if OPT['na'] and gi:
        a('s_mov_b32 exec_lo, s37')
        a(st)
        a('s_not_b32 exec_lo, s37')
        a(st)
        a('s_mov_b64 exec, -1')
    else:
        a(st)
        if not PAD:
            a('s_mov_b32 exec_hi, -1')


def g_pace(gi):
    flush_deferred()
    if OPT['na'] and gi:
        a('s_waitcnt vmcnt(1)')
        for i in range(OPT['nsl']):
            a('s_nop 7')
    else:
        a('s_waitcnt vmcnt(0)')
    if OPT.get('g%dd' % gi):
        a('s_sleep %d' % OPT['g%dd' % gi])
    stamp('G%d ack' % gi)


def probe_near():
    a('s_not_b32 s4, %s' % s(sE))
    a('s_xor_b32 s55, %s, 8192' % s(sPr))
    a('s_waitcnt lgkmcnt(0)')
    a('s_load_dword s4, s[26:27], %s' % s(sPr))
    a('s_load_dword s5, s[26:27], s55')
    a('s_lshl_b32 s59, %s, 2' % s(sJ))
    a('s_add_u32 s59, s59, %s' % s(sW))
    a('s_lshl_b32 s59, s59, 3')
    a('s_add_u32 s59, s59, %d' % VOTES)
    a('v_mov_b32 %s, s59' % v(T + 1))
    a('v_mov_b32 %s, %s' % (v(T + 3), s(sTag + 2)))
    a('s_waitcnt lgkmcnt(1)')
    a('s_memtime s[8:9]')
    a('s_cmp_eq_u32 s4, %s' % s(sE))
    a('s_cselect_b32 s6, %d, -1' % OPT['thr'])
    a('s_waitcnt lgkmcnt(0)')
    a('s_memtime s[10:11]')
    a('s_waitcnt lgkmcnt(0)')
    a('s_sub_u32 s7, s10, s8')
    a('s_cmp_gt_u32 s7, s6')
    a('s_cselect_b32 s6, 1, 0')
    if DIAG:
        a('s_mov_b32 s12, s7')
    a('v_mov_b32 %s, s6' % v(T + 2))
    a('s_mov_b64 exec, 1')
    lstore('global_store_dwordx2', v(T + 1), v(T + 2, 2), 0)
    a('s_mov_b64 exec, -1')


def race_prep():
    a('s_not_b32 s4, %s' % s(sE))
    a('s_xor_b32 s5, %s, 8192' % s(sPr))
    a('v_mov_b32 %s, %s' % (v(T + 4), s(sPr)))


def race_start():
    a('global_load_dword %s, %s, s[26:27] sc1' % (v(T + 5), v(T + 4)))
    a('s_load_dword s4, s[26:27], s5')


def race_finish(behind):
    a('s_lshl_b32 s59, %s, 2' % s(sJ))
    a('s_add_u32 s59, s59, %s' % s(sW))
    a('s_lshl_b32 s59, s59, 3')
    a('s_add_u32 s59, s59, %d' % VOTES)
    a('v_mov_b32 %s, s59' % v(T + 1))
    a('v_mov_b32 %s, %s' % (v(T + 3), s(sTag + 2)))
    a('s_waitcnt vmcnt(%d)' % behind)
    a('s_cmp_eq_u32 s4, %s' % s(sE))
    a('s_cselect_b32 s6, 1, 0')
    if DIAG:
        a('s_mov_b32 s12, s6')
    a('v_mov_b32 %s, s6' % v(T + 2))
    a('s_mov_b64 exec, 1')
    lstore('global_store_dwordx2', v(T + 1), v(T + 2, 2), 0)
    a('s_mov_b64 exec, -1')
    a('s_waitcnt lgkmcnt(0)')


def race_pick():
    a('s_lshr_b32 s55, %s, 1' % s(sW))
    a('s_xor_b32 s59, s55, 1')
    a('s_mul_i32 s55, s55, 0x%x' % G_X)
    a('s_mul_i32 s59, s59, 0x%x' % G_X)
    a('s_waitcnt vmcnt(1)')
    a('s_cmp_eq_u32 s4, %s' % s(sE))
    a('s_cselect_b32 s55, s59, s55')
    a('v_xor_b32 %s, s55, %s' % (v(vConsG), v(vConsG0)))


def count_votes():
    a('v_and_b32 %s, 31, %s' % (v(T + 4), v(vL)))
    a('v_lshlrev_b32 %s, 3, %s' % (v(T + 4), v(T + 4)))
    a('v_add_u32 %s, %d, %s' % (v(T + 4), VOTES, v(T + 4)))
    if OPT['vw'] and not OPT['vlate']:
        a('s_waitcnt vmcnt(0)')
    a('global_load_dwordx2 %s, %s, %s sc1' % (v(T + 2, 2), v(T + 4), s(sLb, 2)))
    a('s_lshr_b32 s55, %s, 1' % s(sW) if WSH else 's_and_b32 s55, %s, 1' % s(sW))
    a('s_xor_b32 s59, s55, 1')
    a('s_waitcnt vmcnt(0)')
    if OPT['probe'] == 2:
        a('v_cmp_eq_u32 vcc, %s, %s' % (s(sTag + 2), v(T + 3)))
        a('v_cmp_eq_u32 s[6:7], 0, %s' % v(T + 2))
        a('s_and_b32 s4, vcc_lo, s6')
        a('s_andn2_b32 s5, vcc_lo, s6')
    else:
        a('v_xor_b32 %s, %s, %s' % (v(T + 3), s(sTag + 2), v(T + 3)))
        a('v_xor_b32 %s, 1, %s' % (v(T + 2), v(T + 2)))
        a('v_or_b32 %s, %s, %s' % (v(T + 2), v(T + 2), v(T + 3)))
        a('v_cmp_eq_u32 vcc, 0, %s' % v(T + 2))
        a('s_and_b32 s4, vcc_lo, 0x%x' % (0x33333333 if WSH else 0x55555555))
        a('s_and_b32 s5, vcc_lo, 0x%x' % (0xcccccccc if WSH else 0xaaaaaaaa))
    a('s_bcnt1_i32_b32 s4, s4')
    a('s_bcnt1_i32_b32 s5, s5')
    if DIAG:
        a('s_lshl_b32 s13, s4, 8')
        a('s_add_u32 s13, s13, s5')
    a('s_cmp_ge_u32 s4, s5')
    a('s_cselect_b32 s55, s55, s59')
    if OPT['na']:
        a('s_cmp_eq_u32 s55, 0')
        a('s_cselect_b32 s37, 0xffff, %s' % s(sM0))
    a('s_mul_i32 s55, s55, 0x%x' % G_X)
    a('v_xor_b32 %s, s55, %s' % (v(vConsG), v(vConsG0)))


def flag_store(val):
    sk = newlabel('nofl')
    a('s_or_b32 s55, %s, %s' % (s(sJ), s(sW)))
    a('s_cbranch_scc1 %s' % sk)
    a('s_lshl_b32 s55, %s, 7' % s(sGam))
    a('s_add_u32 s55, s55, %d' % WS_F)
    a('v_lshl_add_u32 %s, %s, 2, s55' % (v(T + 21), v(vL)))
    a('v_mov_b32 %s, %s' % (v(T + 20), s(val)))
    a('s_mov_b32 exec_hi, 0')
    a('global_store_dword %s, %s, s[26:27] sc1' % (v(T + 21), v(T + 20)))
    a('s_mov_b32 exec_hi, -1')
    a.label(sk)


def flag_load():
    a('s_mov_b32 exec_hi, 0')
    a('global_load_dword %s, %s, s[26:27] sc1' % (v(T + 6), v(T + 5)))
    a('s_mov_b32 exec_hi, -1')


def flag_wait(cnt):
    top, ent = newlabel('fl'), newlabel('fle')
    a('s_branch %s' % ent)
    a.label(top)
    tick()
    flag_load()
    a('s_waitcnt vmcnt(0)')
    a.label(ent)
    a('s_waitcnt vmcnt(%d)' % cnt)
    a('v_cmp_ne_u32 vcc, %s, %s' % (s(sTag + 6), v(T + 6)))
    a('s_cmp_lg_u32 vcc_lo, 0')
    a('s_cbranch_scc1 %s' % top)


def clean_prep():
    a('v_and_b32 %s, 31, %s' % (v(T + 9), v(vL)))
    a('s_and_b32 s59, %s, 3' % s(sJ))
    a('s_lshl_b32 s59, s59, 7')
    a('s_add_u32 s59, s59, %d' % STATS)
    a('v_lshl_add_u32 %s, %s, 2, s59' % (v(T + 9), v(T + 9)))
    a('v_cndmask_b32 %s, %s, %s, %s' % (v(vCl), v(vPubL), v(T + 9), s(sHi, 2)))
    a('s_add_u32 s55, s59, %d' % (VOTES - STATS))
    a('s_add_u32 s59, s59, %d' % ST0)
    a('s_cmp_lt_u32 %s, 4' % s(sJ))
    a('s_cselect_b32 s59, s59, s55')
    a('v_and_b32 %s, 31, %s' % (v(T + 9), v(vL)))
    a('v_lshl_add_u32 %s, %s, 2, s59' % (v(T + 9), v(T + 9)))
    a('v_add_u32 %s, %d, %s' % (v(T + 10), BUF_X, v(vPubL)))
    a('v_cndmask_b32 %s, %s, %s, %s' % (v(vCl + 1), v(T + 10), v(T + 9), s(sHi, 2)))
    a('v_mov_b32 %s, %s' % (v(vCl + 2), s(sTag + 3)))
    a('s_cmp_lt_u32 %s, %d' % (s(sJ), 6 if OPT['probe'] in (1, 2) else 4))
    a('s_cselect_b32 %s, -1, 0' % s(sCl + 1))
    a('s_cmp_lt_u32 %s, 4' % s(sJ))
    a('s_cselect_b32 %s, -1, 0' % s(sCl))
    a('s_cmp_eq_u32 %s, 0' % s(sW))
    a('s_cselect_b32 %s, %s, 0' % (s(sCl), s(sCl)))
    a('s_cselect_b32 %s, %s, 0' % (s(sCl + 1), s(sCl + 1)))


def clean_x():
    a('s_mov_b32 exec_hi, %s' % s(sCl + 1))
    a('global_store_dword %s, %s, %s sc1' % (v(vCl + 1), v(vCl + 2), s(sLb, 2)))
    a('s_mov_b32 exec_hi, -1')


def clean_a():
    a('s_mov_b32 exec_hi, %s' % s(sCl))
    a('global_store_dword %s, %s, %s sc1' % (v(vCl), v(vCl + 2), s(sLb, 2)))
    a('s_mov_b32 exec_hi, -1')


def clean_b_prep():
    a('v_add_u32 %s, %d, %s' % (v(T + 9), 512, v(vCl)))
    a('v_add_u32 %s, %d, %s' % (v(T + 8), BUF_B, v(vCl)))
    a('v_cndmask_b32 %s, %s, %s, %s' % (v(T + 8), v(T + 8), v(T + 9), s(sHi, 2)))
    a('s_mov_b32 exec_lo, 0')
    a('s_mov_b32 exec_hi, %s' % s(sCl))
    sk = newlabel('nold')
    a('s_cbranch_execz %s' % sk)
    a('global_load_dword %s, %s, %s sc1' % (v(vKeep), v(T + 8), s(sLb, 2)))
    a.label(sk)
    a('s_mov_b64 exec, -1')


def clean_b():
    a('s_mov_b32 exec_hi, %s' % s(sCl))
    a('global_store_dword %s, %s, %s sc1' % (v(T + 8), v(vKeep), s(sLb, 2)))
    a('s_mov_b32 exec_hi, -1')


npage = [0]


def page_break(force=False):
    if OPT['pages'] and (FAST[0] or force):
        l = newlabel('page')
        a('s_branch %s' % l)
        flush_deferred(False)
        a.raw('.p2align 12')
        if OPT.get('tramp') and not force:
            npage[0] += 1
            a.label('L_stub_%d' % npage[0])
            a.raw('    s_branch %s' % ('L_stub_2' if npage[0] == 1 and OPT['pages'] == 2 else 'L_stub_back'))
        a.label(l)
        if OPT.get('tramp') and force:
            a('s_branch L_stub_1')
            a.label('L_stub_back')


a.raw('''; One persistent launch, 256 workgroups = 32 groups (attention head / slice of the ffn columns) x 8 members.
; Weights and the K/V window are read once and stay in registers for both layers; workgroups hand over partial sums
; through d_ws in 64-byte tagged sectors (tag = epoch word found in d_ws + index of the hand-off).
; @launch grid=(256,1,1) block=(256,1,1) lds=%d
.amdgcn_target "amdgcn-amd-amdhsa--gfx950"
.text
.p2align 12
.globl %s_kernel
.p2align 8
.type %s_kernel,@function
%s_kernel:''' % (LDS_BYTES, NAME, NAME, NAME))
a('s_cmp_ge_u32 s2, 256')
a('s_cbranch_scc1 L_end')
a('s_load_dwordx16 s[4:19], s[0:1], 0')
a('s_load_dwordx8 s[20:27], s[0:1], 64')
stamp('start')
stamp('x rt0')
a('s_getpc_b64 %s' % s(sPc, 2))
a.label('L_pc')
a('v_lshlrev_b32 %s, 6, v0' % v(T))
a('v_min_u32 %s, L_fastend-L_pc-64, %s' % (v(T), v(T)))
a('global_load_dword %s, %s, %s' % (v(T + 22), v(T), s(sPc, 2)))
a('v_lshrrev_b32 %s, 6, v0' % v(T))
a('v_and_b32 %s, 63, v0' % v(vL))
a('v_readfirstlane_b32 %s, %s' % (s(sW), v(T)))
a('s_lshr_b32 s3, s2, 3')
a('s_and_b32 %s, s3, 7' % s(sJ))
a('s_lshr_b32 s3, s3, 3')
a('s_and_b32 s31, s2, 7')
a('s_lshl_b32 %s, s31, 2' % s(sGam))
a('s_add_u32 %s, %s, s3' % (s(sGam), s(sGam)))
u16, pos16, u8, pos8, l3, col16 = T + 1, T + 2, T + 3, T + 4, T + 5, T + 6
t0, t1, t2, t3 = T + 8, T + 9, T + 10, T + 11
k0 = T + 12


def pro_wq():
    a('v_lshrrev_b32 %s, 4, %s' % (v(u16), v(vL)))
    a('v_and_b32 %s, 15, %s' % (v(pos16), v(vL)))
    a('v_lshlrev_b32 %s, 1, %s' % (v(t2), v(u16)))
    a('v_xor_b32 %s, %s, %s' % (v(t2), v(t2), v(pos16)))
    a('v_lshlrev_b32 %s, 4, %s' % (v(t2), v(t2)))
    a('v_lshl_add_u32 %s, %s, 13, %s' % (v(t0), v(u16), v(t2)))
    a('v_xor_b32 %s, 0x80, %s' % (v(t1), v(t0)))
    a('v_add_u32 %s, %d, %s' % (v(t1), 2 * 31744, v(t1)))
    a('s_lshl_b32 s49, %s, 12' % s(sW))
    a('s_lshl_b32 s55, %s, 19' % s(sJ))
    a('s_lshl_b32 s56, %s, 17' % s(sW))
    a('s_add_u32 s55, s55, s56')
    a('s_lshl_b32 s56, %s, 8' % s(sGam))
    a('s_add_u32 s55, s55, s56')
    a('s_add_u32 m0, s49, %d' % WQ)


def pro_rest():
    a('v_and_b32 %s, 3, %s' % (v(l3), v(vL)))
    a('v_lshl_add_u32 %s, %s, 2, %s' % (v(col16), v(l3), v(u16)))
    a('s_lshl_b32 s48, %s, 5' % s(sW))
    a('v_lshl_add_u32 %s, %s, 1, s48' % (v(vXw), v(col16)))
    a('v_lshl_add_u32 %s, %s, 8, %s' % (v(vVo), v(u16), v(t2)))
    a('v_xor_b32 %s, 0x80, %s' % (v(vVo + 1), v(vVo)))
    a('v_xor_b32 %s, %s, %s' % (v(k0), v(u16), v(pos16)))
    a('v_lshlrev_b32 %s, 4, %s' % (v(k0), v(k0)))
    a('v_lshl_add_u32 %s, %s, 8, %s' % (v(k0), v(u16), v(k0)))
    for i in range(1, 4):
        a('v_xor_b32 %s, %d, %s' % (v(k0 + i), i << 6, v(k0)))
    a('s_lshl_b32 s48, %s, 7' % s(sJ))
    a('s_lshl_b32 s56, %s, 20' % s(sGam))
    a('s_lshl_b32 s58, %s, 15' % s(sJ))
    a('s_add_u32 s56, s56, s58')
    a('s_lshl_b32 s58, %s, 13' % s(sW))
    a('s_add_u32 s56, s56, s58')
    a('s_add_u32 s56, s56, %d' % (3072 * 256))


def pro_touch():
    a('v_lshl_add_u32 %s, %s, 4, s49' % (v(vCons), v(vL)))
    a('s_lshl_b32 s57, %s, 14' % s(sGam))
    a('s_add_u32 s57, s57, %d' % WS_L)
    a('s_add_u32 s3, s48, s57')
    a('s_add_u32 s59, s3, s49')
    a('v_lshl_add_u32 %s, %s, 10, s59' % (v(t3), v(vL)))
    a('v_cmp_lt_u32 vcc, 2, %s' % v(vL))
    a('s_add_u32 s3, s3, %d' % STATS)
    a('v_mov_b32 %s, s3' % v(T + 17))
    a('v_cndmask_b32 %s, %s, %s, vcc' % (v(t3), v(t3), v(T + 17)))
    if OPT['probe'] in (1, 2):
        a('s_add_u32 s3, s57, %d' % VOTES)
        a('v_writelane_b32 %s, s3, 3' % v(t3))
        a('s_add_u32 s3, s3, 128')
        a('v_writelane_b32 %s, s3, 4' % v(t3))
    a('s_and_b32 s3, s48, 0x180')
    a('s_add_u32 s3, s3, s57')
    a('s_add_u32 s3, s3, %d' % (STATS + ST0))
    a('v_writelane_b32 %s, s3, 5' % v(t3))


PRO = OPT.get('pro', 2)
pro_wq()
if PRO < 2:
    pro_rest()
if PRO < 1:
    pro_touch()
stamp('pre ka')
a('s_waitcnt lgkmcnt(0)')
stamp('ka')
a('s_add_u32 s10, s10, s55')
a('s_addc_u32 s11, s11, 0')
a('global_load_lds_dwordx4 %s, s[10:11] offset:0%s' % (v(t0), NT))
a('v_add_u32 %s, 31744, %s' % (v(t0), v(t0)))
a('s_load_dword %s, s[26:27], 0' % s(sE))
a('global_load_lds_dwordx4 %s, s[10:11] offset:1024%s' % (v(t0), NT))
a('global_load_lds_dwordx4 %s, s[10:11] offset:2048%s' % (v(t1), NT))
a('v_add_u32 %s, 31744, %s' % (v(t1), v(t1)))
a('global_load_lds_dwordx4 %s, s[10:11] offset:3072%s' % (v(t1), NT))
if PRO >= 2:
    pro_rest()
a('s_add_u32 s4, s4, s48')
a('s_addc_u32 s5, s5, 0')
a('global_load_ushort %s, %s, s[4:5]' % (v(vX), v(vXw)))
a('s_add_u32 s6, s6, s56')
a('s_addc_u32 s7, s7, 0')
if PRO < 1:
    a('global_load_dword %s, %s, s[26:27]' % (v(T + 22), v(t3)))
a('s_add_u32 m0, s58, %d' % KI)
stamp('wq iss')
a('s_barrier')
for i in range(4):
    a('global_load_lds_dwordx4 %s, s[6:7] offset:%d%s' % (v(k0 + i), 1024 * i, NT))


def k_second():
    a('s_add_u32 m0, s58, %d' % (KI + 4096))
    a('s_add_u32 s6, s6, 4096')
    a('s_addc_u32 s7, s7, 0')
    for i in range(4):
        a('global_load_lds_dwordx4 %s, s[6:7] offset:%d%s' % (v(k0 + i), 1024 * i, NT))


if not OPT['ksplit']:
    k_second()
if PRO >= 1:
    pro_touch()
    a('global_load_dword %s, %s, s[26:27]' % (v(T + 22), v(t3)))
stamp('issued')
a('s_add_u32 s8, s8, s56')
a('s_addc_u32 s9, s9, 0')
a('s_add_u32 %s, s26, s57' % s(sLb))
a('s_addc_u32 %s, s27, 0' % s(sLb + 1))
a('s_lshl_b32 s55, %s, %d' % (s(sJ), 14 + PAD))
a('s_add_u32 s55, s55, %d' % (WS_G + GOFF))
a('s_add_u32 %s, s26, s55' % s(sGb0))
a('s_addc_u32 %s, s27, 0' % s(sGb0 + 1))
a('s_add_u32 %s, %s, 0x%x' % (s(sGb1), s(sGb0), 0x40000 << PAD))
a('s_addc_u32 %s, %s, 0' % (s(sGb1 + 1), s(sGb0 + 1)))
a('s_getreg_b32 %s, hwreg(HW_REG_XCC_ID, 0, 4)' % s(sXcc))
a('s_lshl_b32 %s, s2, 2' % s(sPr))
a('s_add_u32 %s, %s, %s' % (s(sPr), s(sPr), s(sW)))
a('s_and_b32 s55, %s, 63' % s(sPr))
a('s_lshl_b32 s55, s55, 7')
a('s_lshr_b32 %s, %s, 6' % (s(sPr), s(sPr)))
a('s_lshl_b32 %s, %s, 14' % (s(sPr), s(sPr)))
a('s_add_u32 %s, %s, s55' % (s(sPr), s(sPr)))
a('s_add_u32 %s, %s, %d' % (s(sPr), s(sPr), WS_P))
if OPT['probe'] == 1:
    a('s_lshl_b32 s55, s49, %d' % PAD)
    a('s_and_b32 s55, s55, 8192')
    a('s_add_u32 %s, %s, s55' % (s(sPr), s(sPr)))
a('s_mov_b32 %s, 0x40000' % s(sTo))
a('s_mov_b32 %s, %s' % (s(sCs), f32(math.log2(math.e) / math.sqrt(128.0))))
a('s_mov_b32 %s, 0xffffff00' % s(sMaskHi))
a('s_mov_b32 %s, %s' % (s(sInv512), f32(1.0 / 512)))
a('s_mov_b32 %s, %s' % (s(sEps), f32(1e-5)))
a('s_mov_b32 %s, %s' % (s(sNl2e), f32(-math.log2(math.e))))
a('s_mov_b32 %s, 0xffff0000' % s(sM0))
a('s_mov_b32 %s, 0xffff0000' % s(sM0 + 1))
a('s_mov_b32 %s, 0x10000' % s(sM1))
a('s_mov_b32 %s, 0x10000' % s(sM1 + 1))
a('s_mov_b32 %s, 0' % s(sHi))
a('s_mov_b32 %s, -1' % s(sHi + 1))
a('s_mul_i32 %s, %s, 43' % (s(sC0), s(sGam)))
a('s_add_u32 %s, %s, 43' % (s(sCnt), s(sC0)))
a('s_lshr_b32 %s, %s, 3' % (s(sC0), s(sC0)))
a('s_lshr_b32 %s, %s, 3' % (s(sCnt), s(sCnt)))
a('s_sub_u32 %s, %s, %s' % (s(sCnt), s(sCnt), s(sC0)))
a('s_lshl_b32 %s, %s, 3' % (s(sCnt), s(sCnt)))
a('v_mov_b32 %s, 0' % v(vZero))
a('v_lshrrev_b32 %s, 3, %s' % (v(u8), v(vL)))
a('v_and_b32 %s, 7, %s' % (v(pos8), v(vL)))
a('s_add_u32 s55, s49, s48')
a('v_and_b32 %s, 31, %s' % (v(t0), v(vL)))
a('v_lshl_add_u32 %s, %s, 2, s55' % (v(vPubL), v(t0)))
a('v_lshrrev_b32 %s, 5, %s' % (v(t3), v(vL)))
a('v_lshl_add_u32 %s, %s, 10, %s' % (v(vPubL), v(t3), v(vPubL)))
a('s_lshl_b32 s55, %s, 6' % s(sW))
a('v_lshl_add_u32 %s, %s, 1, s55' % (v(vPw), v(t0)))
a('v_lshl_add_u32 %s, %s, 2, %s' % (v(t1), v(pos8), v(u16)))
a('v_lshl_add_u32 %s, %s, 1, s55' % (v(vQw), v(t1)))
a('s_lshl_b32 s55, %s, 6' % s(sGam))
a('s_add_u32 s55, s55, s49')
if PAD:
    a('s_lshl_b32 s55, s55, 1')
a('v_lshl_add_u32 %s, %s, 2, s55' % (v(vPubG), v(pos16)))
if PAD:
    a('v_lshl_add_u32 %s, %s, 6, %s' % (v(vPubG), v(t3), v(vPubG)))
a('v_and_b32 %s, 1, %s' % (v(t2), v(u16)))
a('v_mul_u32_u24 %s, 0x%x, %s' % (v(t2), G_X, v(t2)))
a('v_xor_b32 %s, %s, %s' % (v(vPubG), v(vPubG), v(t2)))
a('v_lshl_add_u32 %s, %s, %d, s55' % (v(vPre), v(pos8), 3 + PAD))
a('v_xor_b32 %s, %s, %s' % (v(vPre), v(vPre), v(t2)))
a('v_and_b32 %s, 1, %s' % (v(t2), v(u8)))
a('v_lshl_add_u32 %s, %s, %d, %s' % (v(vPre), v(t2), 11 + PAD, v(vPre)))
a('v_lshl_add_u32 %s, %s, %d, %s' % (v(vPre), v(t3), 18 + PAD, v(vPre)))
a('s_lshl_b32 s55, %s, 2' % s(sJ))
a('s_add_u32 s55, s55, %s' % s(sW))
a('s_lshl_b32 s55, s55, 4')
a('s_add_u32 s55, s55, %d' % STATS)
a('v_mov_b32 %s, s55' % v(vStP))
a('v_lshl_add_u32 %s, %s, 3, s55' % (v(vStP2), v(t3)))
a('v_lshlrev_b32 %s, 4, %s' % (v(t1), v(l3)))
a('v_lshl_add_u32 %s, %s, 6, %s' % (v(t1), v(u8), v(t1)))
a('v_add_u32 %s, %d, %s' % (v(vStC), STATS, v(t1)))
a('v_mov_b32 %s, 0xff' % v(t2))
a('v_cmp_eq_u32 vcc, 0, %s' % v(l3))
a('v_lshlrev_b32 %s, 4, %s' % (v(vOpR), v(u16)))
a('v_and_b32 %s, 8, %s' % (v(t1), v(vL)))
a('v_cndmask_b32 %s, 0, %s, vcc' % (v(vTagM), v(t2)))
a('v_lshl_add_u32 %s, %s, 4, %s' % (v(vXopR), v(t1), v(vOpR)))
a('v_and_b32 %s, 4, %s' % (v(t1), v(vL)))
a('v_cmp_eq_u32 vcc, 0, %s' % v(t1))
a('v_add_u32 %s, %d, %s' % (v(t1), HB, v(vXw)))
a('v_mov_b32 %s, %d' % (v(t2), DUMMY))
a('v_cndmask_b32 %s, %s, %s, vcc' % (v(vHw), v(t2), v(t1)))
a('v_lshrrev_b32 %s, 1, %s' % (v(t1), v(vXw)))
a('v_cmp_gt_u32 vcc, %s, %s' % (s(sCnt), v(t1)))
a('s_lshl_b32 s55, %s, 2' % s(sW))
a('v_mov_b32 %s, s55' % v(vMw))
a('v_lshlrev_b32 %s, 2, %s' % (v(vMr), v(l3)))
a('v_cndmask_b32 %s, 0, -1, vcc' % v(vHmask))
a('v_lshlrev_b32 %s, 2, %s' % (v(t0), v(t0)))
a('v_mov_b32 %s, 0x3f803f80' % v(t1))
a('ds_write_b32 %s, %s offset:%d' % (v(t0), v(t1), ONES))
a('v_lshlrev_b32 %s, 2, %s' % (v(t0), v(pos8)))
a('ds_write_b32 %s, %s offset:%d' % (v(t0), v(vZero), HB + 96))
if PAD:
    a('v_lshrrev_b32 %s, 2, %s' % (v(t1), v(vL)))
    a('v_lshlrev_b32 %s, 4, %s' % (v(t2), v(l3)))
    a('v_lshl_add_u32 %s, %s, 7, %s' % (v(t1), v(t1), v(t2)))
    a('s_lshl_b32 s59, s49, 1')
    a('v_add_u32 %s, s59, %s' % (v(vConsG), v(t1)))
else:
    a('v_mov_b32 %s, %s' % (v(vConsG), v(vCons)))
a('v_mov_b32 %s, %s' % (v(vConsG0), v(vConsG)))
a('v_mov_b32 %s, %s' % (v(vSt + 3), s(sXcc)))
r_ = T + 16
a('v_lshrrev_b32 %s, 2, %s' % (v(r_), v(pos16)))
a('v_and_b32 %s, 1, %s' % (v(t0), v(u16)))
a('v_lshl_add_u32 %s, %s, 2, %s' % (v(t1), v(t0), v(r_)))
a('v_lshlrev_b32 %s, 1, %s' % (v(t1), v(t1)))
a('v_xor_b32 %s, s55, %s' % (v(t1), v(t1)))
a('v_lshlrev_b32 %s, 4, %s' % (v(t1), v(t1)))
a('v_lshl_add_u32 %s, %s, 3, %s' % (v(t1), v(l3), v(t1)))
a('v_lshl_add_u32 %s, %s, 3, %s' % (v(t2), v(u16), v(r_)))
a('v_lshl_add_u32 %s, %s, 8, %s' % (v(trq), v(t2), v(t1)))
a('v_xor_b32 %s, 32, %s' % (v(trq + 1), v(trq)))
a('v_lshrrev_b32 %s, 1, %s' % (v(t1), v(r_)))
a('v_lshl_add_u32 %s, %s, 1, %s' % (v(t1), v(t0), v(t1)))
a('v_xor_b32 %s, %s, %s' % (v(t1), s(sW), v(t1)))
a('v_lshlrev_b32 %s, 5, %s' % (v(t1), v(t1)))
a('v_lshl_add_u32 %s, %s, 3, %s' % (v(t1), v(l3), v(t1)))
a('v_lshl_add_u32 %s, %s, 7, %s' % (v(vTr), v(t2), v(t1)))
a('v_add_u32 %s, %d, %s' % (v(vTr), WO, v(vTr)))
a('v_and_b32 %s, 2, %s' % (v(t0), v(u8)))
a('v_xor_b32 %s, %s, %s' % (v(t0), v(t0), v(pos8)))
a('v_lshlrev_b32 %s, 4, %s' % (v(t1), v(t0)))
a('v_lshl_add_u32 %s, %s, 10, %s' % (v(wo0), v(u8), v(t1)))
a('v_xor_b32 %s, 64, %s' % (v(wo1), v(wo0)))
a('v_add_u32 %s, 7168, %s' % (v(wo1), v(wo1)))
a('v_mul_u32_u24 %s, 2752, %s' % (v(t2), v(u8)))
a('v_min_u32 %s, 5, %s' % (v(t1), v(t0)))
a('v_lshl_add_u32 %s, %s, 4, %s' % (v(f0), v(t1), v(t2)))
a('v_xor_b32 %s, 4, %s' % (v(t0), v(t0)))
a('v_min_u32 %s, 5, %s' % (v(t1), v(t0)))
a('v_lshl_add_u32 %s, %s, 4, %s' % (v(f1), v(t1), v(t2)))
a('v_add_u32 %s, %d, %s' % (v(f1), 8 * 2752 - 1024, v(f1)))
a('s_lshl_b32 s55, %s, 17' % s(sGam))
a('s_lshl_b32 s59, %s, 15' % s(sW))
a('s_add_u32 s55, s55, s59')
a('s_add_u32 s55, s55, s48')
a('s_add_u32 s12, s12, s55')
a('s_addc_u32 s13, s13, 0')
a('s_lshl_b32 s55, %s, 2' % s(sJ))
a('s_add_u32 s55, s55, %s' % s(sW))
a('s_mul_i32 s55, s55, %d' % (16 * 2752))
a('s_lshl_b32 s59, %s, 4' % s(sC0))
a('s_add_u32 s55, s55, s59')
a('s_add_u32 s16, s16, s55')
a('s_addc_u32 s17, s17, 0')
a('s_add_u32 s18, s18, s55')
a('s_addc_u32 s19, s19, 0')
a('s_lshl_b32 s55, %s, 13' % s(sC0))
a('s_min_u32 s59, %s, 2' % s(sW))
a('s_lshl_b32 s59, s59, 14')
a('s_add_u32 s55, s55, s59')
a('s_add_u32 s55, s55, s48')
a('s_add_u32 s20, s20, s55')
a('s_addc_u32 s21, s21, 0')
a('s_add_u32 s22, s22, s48')
a('s_addc_u32 s23, s23, 0')
if OPT['ksplit']:
    k_second()
a('s_add_u32 s6, s8, 4096')
a('s_addc_u32 s7, s9, 0')
a('s_waitcnt lgkmcnt(0)')
for k in range(10):
    a('s_add_u32 %s, %s, %d' % (s(sTag + k), s(sE), k + 1))


def issue_v(lo, hi):
    for i in range(lo, hi):
        if i == lo or i == 4:
            a('s_add_u32 m0, s58, %d' % (VI + 4096 * (i >> 2)))
            a('s_nop 0')
        a('global_load_lds_dwordx4 %s, %s offset:%d%s' % (v(vVo + ((i >> 1) & 1)), 's[6:7]' if i >= 4 else 's[8:9]', 1024 * (i & 3), NT))


def issue_wo():
    a('s_add_u32 m0, s49, %d' % WO)
    a('v_add_u32 %s, %d, %s' % (v(T + 20), 2 * 7168, v(wo0)))
    a('global_load_lds_dwordx4 %s, s[12:13] offset:0%s' % (v(wo0), NT))
    a('global_load_lds_dwordx4 %s, s[12:13] offset:1024%s' % (v(wo1), NT))
    a('global_load_lds_dwordx4 %s, s[12:13] offset:2048%s' % (v(T + 20), NT))
    a('v_add_u32 %s, %d, %s' % (v(T + 20), 2 * 7168, v(wo1)))
    a('global_load_lds_dwordx4 %s, s[12:13] offset:3072%s' % (v(T + 20), NT))


def issue_w13(lo, hi):
    for i in range(lo, hi):
        if i == lo or i == 2:
            a('s_lshl_b32 s59, %s, 11' % s(sW))
            a('s_add_u32 m0, s59, %d' % (W1 if i < 2 else W3))
            a('s_nop 0')
        a('global_load_lds_dwordx4 %s, s[%d:%d] offset:%d%s' % (v(f0 + (i & 1)), 16 + (i & 2), 17 + (i & 2), 1024 * (i & 1), NT))


def issue_w2():
    a('s_min_u32 s59, %s, 2' % s(sW))
    a('s_lshl_b32 s59, s59, 11')
    a('s_add_u32 m0, s59, %d' % W2)
    a('s_nop 0')
    a('global_load_lds_dwordx4 %s, s[20:21] offset:0%s' % (v(wo0), NT))
    a('global_load_lds_dwordx4 %s, s[20:21] offset:1024%s' % (v(wo1), NT))


r = vP
FE, KW, WOL = OPT['fe'], OPT['kw'], OPT['wol']
NPRE = 1 + bool(OPT['probe'])
NVA = OPT['nva']
NVB = 8 - NVA
NLATE = 0 if WOL else 4 + FE + 2 * OPT['w2e']


WOETC = []


def front():
    a('; ---- layer 0: x slice, query projection partials')
    set_tags(0)
    a('v_add_u32 %s, 0x%x, %s' % (v(T + 12), WS_L2D, v(vStP2)))
    a('v_add_u32 %s, 0x%x, %s' % (v(T + 13), WS_L2D, v(vPubL)))
    a('v_add_u32 %s, 0x%x, %s' % (v(T + 14), ST0, v(vStP2)))
    stamp('consts')
    a('s_waitcnt vmcnt(9)')
    stamp('wq landed')
    a('ds_write_b16 %s, %s offset:%d' % (v(vXw), v(vX), XB))
    issue_v(0, OPT['vq'])
    a('v_lshlrev_b32 %s, 16, %s' % (v(vSt4), v(vX)))
    a('v_lshlrev_b32 %s, 16, %s' % (v(vX), v(vX)))
    FAST[0] = True
    ln_stats(0, T + 14)
    a('s_waitcnt lgkmcnt(0)')

    proj(vWQ, 0, 0, wsrc=[(trq, WQ, 8192, 1024), (trq + 1, WQ, 8192, 1024)], first=True)
    FAST[0] = False
    stamp('L0 Q pub')
    if OPT.get('te'):
        h = OPT.get('th', 4)
        issue_v(OPT['vq'], h)
        sk = newlabel('noth')
        a('s_cmp_ge_u32 %s, 4' % s(sXcc))
        a('s_cbranch_scc1 %s' % sk)
        a('s_waitcnt vmcnt(%d)' % max(8 - OPT['te'] + (PRO >= 1) + 2 + h, 0))
        a.label(sk)
        issue_v(h, NVA)
    else:
        issue_v(OPT['vq'], NVA)
    lstore('global_store_dword', v(T + 13), v(T), BUF_A)
    a('s_mov_b64 exec, %s' % s(sM1, 2))
    lstore('global_store_dwordx2', v(T + 12), v(vSt4, 2), 0)
    a('s_mov_b64 exec, -1')
    a('v_mov_b32 %s, %s' % (v(T + 16), s(sE)))
    a('v_mov_b32 %s, %s' % (v(T + 17), s(sE)))
    if PAD:
        a('v_mov_b32 %s, %s' % (v(T + 18), s(sE)))
        a('v_mov_b32 %s, %s' % (v(T + 19), s(sE)))
    a('global_store_dwordx%d %s, %s, %s offset:%d sc1' % (2 << PAD, v(vPre), v(T + 16, 2 << PAD), s(sGb0, 2), -GOFF))
    if OPT['probe']:
        a('v_and_b32 %s, 31, %s' % (v(T + 18), v(vL)))
        a('v_lshl_add_u32 %s, %s, 2, %s' % (v(T + 18), v(T + 18), s(sPr)))
        a('v_lshrrev_b32 %s, 5, %s' % (v(T + 19), v(vL)))
        a('v_lshlrev_b32 %s, 13, %s' % (v(T + 19), v(T + 19)))
        a('v_xor_b32 %s, %s, %s' % (v(T + 18), v(T + 19), v(T + 18)))
        a('global_store_dword %s, %s, s[26:27] sc1' % (v(T + 18), v(T + 16)))
    a('; ---- layer 0: gather q')
    if OPT.get('cp2'):
        a('s_getpc_b64 s[4:5]')
        a.label('L_pc2')
        a('v_lshlrev_b32 %s, 6, v0' % v(T + 19))
        a('v_min_u32 %s, L_fastend-L_pc2-64, %s' % (v(T + 19), v(T + 19)))
        a('global_load_dword %s, %s, s[4:5]' % (v(T + 22), v(T + 19)))
    a('v_xor_b32 %s, %s, %s' % (v(t0), v(u16), v(pos16)))
    a('v_lshlrev_b32 %s, 4, %s' % (v(t0), v(t0)))
    a('v_lshl_add_u32 %s, %s, 8, %s' % (v(t0), v(pos16), v(t0)))
    a('s_add_u32 s55, s58, %d' % KI)
    a('v_add_u32 %s, s55, %s' % (v(t0), v(t0)))
    for kk in range(1, 4):
        a('v_xor_b32 %s, %d, %s' % (v(t0 + kk), kk << 6, v(t0)))
    alt, both, alts, boths = T + 13, T + 14, T + 15, T + 21
    a('v_mov_b32 %s, %s' % (v(alt), v(vCons)))
    a('v_lshlrev_b32 %s, 1, %s' % (v(both), v(vCons)))
    a('v_add_u32 %s, 0x%x, %s' % (v(both), WS_L2D, v(both)))
    a('v_add_u32 %s, 0x%x, %s' % (v(alts), ST0, v(vStC)))
    a('v_lshlrev_b32 %s, 1, %s' % (v(boths), v(vStC)))
    a('v_add_u32 %s, 0x%x, %s' % (v(boths), WS_L2D + ST0, v(boths)))
    page_break(True)
    behind_k = 2 + NVA + 2 + NPRE + (PRO >= 1) + OPT.get('cp2', 0)
    a('s_waitcnt vmcnt(%d)' % (8 - KW + behind_k))
    stamp('K part')
    loads = [(vSs[0], alts, sLb, 0), (r, alt, sLb, BUF_A), (r + 4, alt, sLb, BUF_X)]
    for x in loads:
        gload(*x)
    issue_v(NVA, 8)

    def wo_etc():
        issue_wo()
        if OPT['w2e']:
            issue_w2()
        issue_w13(0, FE)
    if not WOL:
        wo_etc()
    a('s_waitcnt vmcnt(%d)' % (behind_k + 3 + NVB + NLATE))
    stamp('K landed')
    for g in range(2):
        for kk in range(4):
            a('ds_read_b128 %s, %s offset:%d' % (v(vK + 16 * g + 4 * kk, 4), v(t0 + kk), 4096 * g))
    a('s_branch L_e1ent')
    a.label('L_e1top')
    tick()
    a('v_sub_u32 %s, %s, %s' % (v(alt), v(both), v(alt)))
    a('v_sub_u32 %s, %s, %s' % (v(alts), v(boths), v(alts)))
    for x in loads:
        gload(*x)
    if NLATE + NVB:
        a('s_waitcnt vmcnt(0)')
    a.label('L_e1ent')
    a('s_waitcnt vmcnt(%d)' % (NLATE + NVB))
    a('v_bitop3_b32 %s, %s, %s, %s bitop3:0x7e' % (v(T + 23), v(r), v(r + 4), s(sTag)))
    a('v_cmp_ne_u32 %s, %s, %s' % (s(sT1, 2), s(sTag), v(vSs[0] + 1)))
    a('v_cmp_ne_u32_sdwa vcc, %s, %s src0_sel:BYTE_0 src1_sel:DWORD' % (v(T + 23), v(vZero)))
    a('s_or_b64 vcc, vcc, %s' % s(sT1, 2))
    a('s_cbranch_vccnz L_e1top')
    stamp('L0 E1 ok')
    if OPT['fl']:
        flag_store(sE)
    if WOL and OPT['wopos'] == 0:
        wo_etc()
    WOETC.append(wo_etc)
    a('v_cmp_ne_u32 vcc, %s, %s' % (s(sXcc), v(vSs[0] + 3)))
    c, x, y = vC, vSs[0], r + 4
    ln_spec(x)
    mask_tag(y)
    a('v_mov_b32 %s, %s' % (v(c + 1), v(c)))
    a('v_permlane32_swap_b32 %s, %s' % (v(y + 1), v(y + 3)))
    mask_tag(r)
    a('v_permlane16_swap_b32 %s, %s' % (v(c), v(c + 1)))
    a('v_add_f32 %s, %s, %s' % (v(c), v(c), v(c + 1)))
    a('v_add_f32 %s, %s, %s' % (v(y + 1), v(y + 1), v(y + 3)))
    a('v_permlane32_swap_b32 %s, %s' % (v(y), v(y + 2)))
    dpp('v_add_f32', c, c, c, 'row_ror:8')
    a('v_add_f32 %s, %s, %s' % (v(y), v(y), v(y + 2)))
    a('v_permlane32_swap_b32 %s, %s' % (v(r + 1), v(r + 3)))
    dpp('v_add_f32', c, c, c, X1)
    a('v_add_f32 %s, %s, %s' % (v(r + 1), v(r + 1), v(r + 3)))
    a('v_permlane16_swap_b32 %s, %s' % (v(y), v(y + 1)))
    dpp('v_add_f32', c, c, c, X2)
    a('v_add_f32 %s, %s, %s' % (v(y), v(y), v(y + 1)))
    a('v_mul_f32 %s, %s, %s' % (v(c), s(sInv512), v(c)))
    a('v_mov_b32 %s, %s' % (v(c + 1), v(c)))
    a('v_permlane32_swap_b32 %s, %s' % (v(r), v(r + 2)))
    dpp('v_add_f32', vCq, y, y, 'row_ror:8')
    a('v_permlane32_swap_b32 %s, %s' % (v(c), v(c + 1)))
    a('v_add_f32 %s, %s, %s' % (v(r), v(r), v(r + 2)))
    bf16r(vMean, c)
    if OPT['fast']:
        a('s_cbranch_vccnz L_slowtail')


def CLEAN():
    return OPT['clean'] if FAST[0] else 0


def tail():
    for layer in range(2):
        pre = 'L%d' % layer
        k1, k2, k4 = 3 * layer, 3 * layer + 1, 3 * layer + 2

        def spec(x):
            mask_tag(x)
            red_a(x, r)
        if layer == 1:
            a('; ---- layer 1: x slice, query projection partials')
            set_tags(k1)
            if OPT['pages'] == 1:
                page_break()
            if OPT['probe'] == 3:
                race_pick()
            elif OPT['probe'] and OPT['vlate']:
                count_votes()
            if CLEAN():
                clean_prep()
            g_pace(1)
            x_gather(1, G_D)
            stamp(pre + ' E5 ok')
            x_to_lds(k1)
            a('s_waitcnt lgkmcnt(0)')
            proj(vWQ, k1, layer)
            stamp(pre + ' Q pub')
            a('; ---- layer 1: gather q')
            l_gather(k1, spec, ln_spec, [ln_mean])
            stamp(pre + ' E1 ok')
        red_b(r, r)
        a('v_fma_f32 %s, -%s, %s, %s' % (v(r), v(vMean), v(vCq), v(r)))
        a('v_cvt_pk_bf16_f32 %s, %s, %s' % (v(r), v(r), v(r)))
        a('ds_write_b16 %s, %s offset:%d' % (v(vQw), v(r), QB))
        if layer == 1 and CLEAN() & 1 and not OPT['cend'] & 1:
            clean_x()
        ln_rstd_a()
        if layer == 0 and WOL and OPT['wopos'] == 1:
            WOETC[0]()
        a('s_waitcnt lgkmcnt(0)')
        stamp('z%d qw' % layer)
        a('s_barrier')
        stamp('z%d qb' % layer)
        a('; ---- layer %d: attention over this member\'s 128 keys' % layer)
        for kk in range(4):
            a('ds_read_b128 %s, %s offset:%d' % (v(vA + 4 * kk, 4), v(vOpR), QB + 64 * kk))
        ln_rstd_b(True)
        set_tags(k2)
        for kk in range(4):
            lgkm(3 - kk)
            for g in range(2):
                mfma(vD + 4 * g, vA + 4 * kk, vK + 16 * g + 4 * kk, vD + 4 * g if kk else None)
        stamp('z%d qk' % layer)
        if layer == 0:
            if WOL and OPT['wopos'] == 2:
                WOETC[0]()
            if NVB:
                a('s_waitcnt vmcnt(%d)' % (4 + FE + 2 * OPT['w2e']))
                a('s_barrier')
            tr_reads(vV, trq, VI, 4, 8192, 1024)
        sg = vSt
        mx, e0 = T, T + 1
        a('v_max_f32 %s, %s, %s' % (v(mx), v(vD), v(vD + 4)))
        a('v_cndmask_b32 %s, %s, %s, %s' % (v(e0), v(vD), v(vD + 4), s(sM0, 2)))
        for ro in (8, 4, 2, 1):
            dpp('v_max_f32', mx, mx, mx, 'row_ror:%d' % ro)
        a('v_mul_f32 %s, %s, %s' % (v(sg), v(vCs), v(mx)))
        a('v_fma_f32 %s, %s, %s, -%s' % (v(e0), v(e0), v(vCs), v(sg)))
        a('v_exp_f32 %s, %s' % (v(sg + 1), v(e0)))
        stamp('z%d ex' % layer)
        a('ds_write_b32 %s, %s offset:%d' % (v(vMw), v(sg), MB))
        a('v_cvt_pk_bf16_f32 %s, %s, %s' % (v(e0), v(sg + 1), v(sg + 1)))
        a('ds_write_b16 %s, %s offset:%d' % (v(vPw), v(e0), PB))
        if layer == 0:
            tr_reads(vV + 16, trq + 1, VI, 4, 8192, 1024)
        for ro in (8, 4, 2):
            dpp('v_add_f32', sg + 1, sg + 1, sg + 1, 'row_ror:%d' % ro)
        a('s_waitcnt lgkmcnt(0)')
        stamp('z%d pw' % layer)
        a('s_barrier')
        stamp('z%d pb' % layer)
        mm = T + 4
        a('ds_read_b32 %s, %s offset:%d' % (v(mm), v(vMr), MB))
        for kk in range(4):
            a('ds_read_b128 %s, %s offset:%d' % (v(vA + 4 * kk, 4), v(vOpR), PB + 64 * kk))
        dpp('v_add_f32', sg + 1, sg + 1, sg + 1, 'row_ror:1')
        dpp('v_add_f32', sg + 1, sg + 1, sg + 1, 'row_bcast:15', 0xa)
        a('s_mov_b64 exec, 0x10000')
        lstore('global_store_dwordx4', v(vStP), v(sg, 4), 512 * (k2 & 1))
        a('s_mov_b64 exec, -1')

        def sel(kk):
            a('v_cndmask_b32 %s, %s, %s, %s' % (v(T + 8 + kk), v(vD + 8 * kk), v(vD + 8 * kk + 4), s(sM0, 2)))

        def bc(kk):
            a('v_mov_b32_dpp %s, %s quad_perm:[%d,%d,%d,%d] row_mask:0xf bank_mask:0xf' % (v(T + 16 + kk), v(mm), kk, kk, kk, kk))

        def acc(kk):
            a('%s %s, %s, %s' % ('v_fmac_f32' if kk else 'v_mul_f32', v(T), v(T + 16 + kk), v(T + 8 + kk)))
        lgkm(3)
        stamp('z%d pr' % layer)
        mfma(vD, vA, vV)
        dpp('v_max_f32', mx, mm, mm, X1)
        mfma(vD + 4, vA, vV + 16)
        lgkm(2)
        mfma(vD + 8, vA + 4, vV + 4)
        dpp('v_max_f32', mx, mx, mx, X2)
        mfma(vD + 12, vA + 4, vV + 20)
        a('v_sub_f32 %s, %s, %s' % (v(mm), v(mm), v(mx)))
        lgkm(1)
        mfma(vD + 16, vA + 8, vV + 8)
        a('v_exp_f32 %s, %s' % (v(mm), v(mm)))
        mfma(vD + 20, vA + 8, vV + 24)
        lgkm(0)
        bc(0)
        mfma(vD + 24, vA + 12, vV + 12)
        bc(1)
        bc(2)
        mfma(vD + 28, vA + 12, vV + 28)
        stamp('z%d pv' % layer)
        stats_load(k2)
        sel(0)
        sel(1)
        acc(0)
        acc(1)
        sel(2)
        acc(2)
        bc(3)
        a('s_mov_b32 exec_hi, 0')
        sel(3)
        acc(3)
        a('v_bfi_b32 %s, %s, %s, %s' % (v(T), v(vTagM), s(sTag + k2), v(T)))
        lstore('global_store_dword', v(vPubL), v(T), BUF_A if k2 % 2 == 0 else BUF_B)
        a('s_mov_b32 exec_hi, -1')
        stamp(pre + ' S pub')
        if layer == 0 and OPT['fl'] and OPT['flp'] == 1:
            a('s_waitcnt vmcnt(0)')
            flag_store(sTag + 6)
            stats_load(k2)
            lstore('global_store_dword', v(vStP), v(vSt), 512 * (k2 & 1))
        a('; ---- layer %d: combine the 8 key blocks, output projection partials' % layer)
        mj, mg, mo, lo = T, T + 1, vC, vC + 1

        def sm_spec(x):
            dpp('v_max_f32', mj, x, x, X1)
            a('v_mov_b32 %s, %s' % (v(mo), v(x)))
            a('v_mov_b32 %s, %s' % (v(lo), v(x + 1)))

        def sm0():
            allred('v_max_f32', mj, T + 2, [1])
            dpp('v_max_f32', mg, mj, mj, 'row_ror:8')
            allred('v_max_f32', mg, T + 2, [4, 5])

        def sm1():
            a('v_sub_f32 %s, %s, %s' % (v(mo), v(mo), v(mg)))
            a('v_sub_f32 %s, %s, %s' % (v(mj), v(mj), v(mg)))
            a('v_exp_f32 %s, %s' % (v(mo), v(mo)))
            a('v_exp_f32 %s, %s' % (v(mj), v(mj)))
            a('v_mul_f32 %s, %s, %s' % (v(mo), v(mo), v(lo)))
            allred('v_add_f32', mo, T + 2, [0, 1, 3, 4, 5])
            a('v_rcp_f32 %s, %s' % (v(mo), v(mo)))
            a('v_mul_f32 %s, %s, %s' % (v(vF), v(mj), v(mo)))

        def spec2(x):
            mask_tag(x)
            a('v_pk_mul_f32 %s, %s, %s op_sel_hi:[1,0]' % (v(x + 2, 2), v(x + 2, 2), v(vF, 2)))
            a('v_pk_mul_f32 %s, %s, %s op_sel_hi:[1,0]' % (v(x, 2), v(x, 2), v(vF, 2)))
            red_a(x, r)
        l_gather(k2, spec2, sm_spec, [sm0, sm1], hook=(lambda: flag_store(sTag + 6)) if layer == 0 and OPT['fl'] and OPT['flp'] == 0 else None)
        stamp(pre + ' E2 ok')
        red_b(r, r)
        a('v_cvt_pk_bf16_f32 %s, %s, %s' % (v(r), v(r), v(r)))
        a('ds_write_b16 %s, %s offset:%d' % (v(vQw), v(r), OB))

        def ffn_rest():
            issue_w13(FE, 4)
            if not OPT['w2e']:
                issue_w2()
        if layer == 0 and OPT['ff'] in (2, 3):
            ffn_rest()
        if layer == 0 and OPT['ff'] == 6:
            issue_w13(FE, 4)
        if layer == 0 and OPT['ff'] == 7:
            issue_w13(FE, 2)
        a('s_waitcnt lgkmcnt(0)')
        a('s_barrier')
        if layer == 0 and OPT['ff'] == 5:
            gemv_publish_g(4, vWO, OB, 0, G_C, tr=True, mid=lambda: issue_w13(FE, 2), post=lambda: issue_w13(2, 4))
            issue_w2()
        elif layer == 0 and OPT['probe'] == 2:
            gemv_publish_g(4, vWO, OB, 0, G_C, tr=True, mid=race_prep, post=race_start)
        else:
            gemv_publish_g(4, vWO, OB, 2 * layer, G_C, tr=layer == 0)
        stamp(pre + ' O pub')
        a('; ---- layer %d: x slice, gate/up partials' % layer)
        set_tags(k4)
        if layer == 0 and OPT['ff'] == 1:
            nrest = 4 - FE + (0 if OPT['w2e'] else 2)
            if OPT['fl']:
                a('v_lshlrev_b32 %s, 7, %s' % (v(T + 5), v(vL)))
                a('v_add_u32 %s, %d, %s' % (v(T + 5), WS_F, v(T + 5)))
                flag_load()
            ffn_rest()
            if OPT['fl']:
                flag_wait(nrest)
            else:
                a('s_waitcnt vmcnt(%d)' % nrest)
            stamp('G0 ack')
            x_gather(0, G_C, work=probe_near if OPT['probe'] else None)
        else:
            flush_deferred()
            if layer == 0 and OPT['ff'] == 4:
                ffn_rest()
            if layer == 0 and OPT['ff'] == 7:
                issue_w13(2, 4)
            if layer == 0 and OPT['ff'] in (6, 7):
                issue_w2()
            if OPT['pages'] == 2:
                page_break()
            if layer == 0 and OPT['opre'] and OPT['clean'] & 8:
                sk = newlabel('noout')
                a('s_cmp_lg_u32 %s, 0' % s(sGam))
                a('s_cbranch_scc1 %s' % sk)
                a('s_mov_b32 exec_lo, 0x000f000f')
                a('s_mov_b32 exec_hi, 0x000f000f')
                a('global_store_short %s, %s, s[22:23] sc1' % (v(vXw), v(vZero)))
                a('s_mov_b64 exec, -1')
                a.label(sk)
            if layer == 0 and OPT['probe'] == 2:
                assert OPT['ff'] == 4
                race_finish(1 + 4 - FE + 2)
                if not OPT['vlate']:
                    count_votes()
            if layer == 0 and OPT['probe'] == 1:
                probe_near()
                if not OPT['vlate']:
                    count_votes()
            if layer == 0 and OPT['fl']:
                a('v_lshlrev_b32 %s, 7, %s' % (v(T + 5), v(vL)))
                a('v_add_u32 %s, %d, %s' % (v(T + 5), WS_F, v(T + 5)))
                flag_load()
                flag_wait(0)
            if layer or OPT['ff'] != 3:
                g_pace(2 * layer)
            else:
                for i in range(OPT.get('xs', 0)):
                    a('s_nop 15')
                stamp('G0 ack')
            x_gather(2 * layer, G_C)
        stamp(pre + ' E3 ok')
        x_to_lds(k4)
        a('s_cmp_eq_u32 %s, 3' % s(sW))
        a('s_waitcnt lgkmcnt(0)')
        idle = newlabel('idle')

        proj(vW13, k4, layer, wsrc=[(vTr, W1 - WO, 4096, 512), (vTr, W3 - WO, 4096, 512)] if layer == 0 else None, skip=idle)
        stamp(pre + ' G pub')
        if layer == 1 and CLEAN():
            a('v_mov_b32 %s, %s' % (v(vKeep), v(T)))
        a('; ---- layer %d: gather gate/up, activation' % layer)

        def w2_regs():
            a('v_and_b32 %s, 32, %s' % (v(T + 1), v(vL)))
            a('v_lshlrev_b32 %s, 6, %s' % (v(T + 1), v(T + 1)))
            a('v_sub_u32 %s, %s, %s' % (v(T + 1), v(vTr), v(T + 1)))
            tr_reads(vW2, vTr, W2 - WO, 1, 4096, 512)
            tr_reads(vW2 + 4, T + 1, W2 - WO + 4096, 1, 4096, 512)

        def ln_all():
            w2_regs()
            ln_mean()
            ln_rstd_a()
            ln_rstd_b(False)
        if layer == 0:
            loads = [(r, vCons, sLb, BUF_A), (r + 4, vCons, sLb, BUF_X)]

            def data():
                ln_spec(vSs[0])
                for x in loads:
                    gload(*x)

            def spec4():
                mask_tag(r)
                mask_tag(r + 4)
                red_a(r, r)
            flush_deferred()
            poll([(vSs[0], vStC, sLb, 0)], lambda: chk_stats(vSs[0], k4), data, cnt=1, issued=True)
            poll(loads, lambda: chk_byte([r, r + 4], sTag + k4), spec4, work=ln_all, issued=True)
            red_a(r + 4, r + 4)
            red_b(r + 4, vCg)
        else:
            l_gather(k4, spec, ln_spec, [ln_mean, ln_rstd_a, lambda: ln_rstd_b(False)])
        stamp(pre + ' E4 ok')
        red_b(r, r)
        a('v_fma_f32 %s, -%s, %s, %s' % (v(r), v(vMean), v(vCg), v(r)))
        a('v_mul_f32 %s, %s, %s' % (v(r), v(r), v(vRs)))
        bf16r(r, r)
        a('v_mul_f32 %s, %s, %s' % (v(r + 1), s(sNl2e), v(r)))
        a('v_exp_f32 %s, %s' % (v(r + 1), v(r + 1)))
        a('v_and_b32_dpp %s, %s, %s row_shl:4 row_mask:0xf bank_mask:0xf' % (v(r + 2), v(r), v(vHmask)))
        a('v_add_f32 %s, 1.0, %s' % (v(r + 1), v(r + 1)))
        a('v_rcp_f32 %s, %s' % (v(r + 1), v(r + 1)))
        a('v_mul_f32 %s, %s, %s' % (v(r), v(r), v(r + 1)))
        bf16r(r, r)
        a('v_mul_f32 %s, %s, %s' % (v(r), v(r), v(r + 2)))
        a('v_cvt_pk_bf16_f32 %s, %s, %s' % (v(r), v(r), v(r)))
        a('ds_write_b16 %s, %s' % (v(vHw), v(r)))
        if layer == 0:
            join = newlabel('join')

            def idle_path(idle=idle, join=join, w2_regs=w2_regs):
                a.label(idle)
                w2_regs()
                a('s_branch %s' % join)
            deferred.append(idle_path)
            a.label(join)
        else:
            join = newlabel('join')

            def idle_path1(idle=idle, join=join):
                a.label(idle)
                a('v_mov_b32 %s, %s' % (v(vKeep), s(sTag + 5)))
                a('s_cmp_lg_u32 s2, 255')
                a('s_cbranch_scc1 %s' % join)
                a('s_add_u32 s55, %s, 16' % s(sE))
                a('v_mov_b32 %s, s55' % v(T + 2))
                a('s_mov_b64 exec, 1')
                a('global_store_dword %s, %s, s[26:27] sc1' % (v(vZero), v(T + 2)))
                a('s_mov_b64 exec, -1')
                a('s_branch %s' % join)
            deferred.append(idle_path1)
            a.label(join)
        a('s_waitcnt lgkmcnt(0)')
        a('s_barrier')
        if layer == 0 and OPT['probe'] == 3:
            gemv_publish_g(2, vW2, HB, 1, G_D, mid=race_prep, post=race_start)
        else:
            gemv_publish_g(2, vW2, HB, 2 * layer + 1, G_D, mid=clean_a if layer == 1 and CLEAN() & 2 and not OPT['cend'] & 2 else None)
        stamp(pre + ' D pub')

    a('; ---- final sum (group 0 only)')
    if OPT.get('opack'):
        a('v_mov_b32 %s, 0xffff' % v(T + 11))
        a('v_and_b32 %s, 0x7c, %s' % (v(T + 12), v(vXw)))
    if CLEAN() & 4:
        fin = newlabel('last')
        if OPT.get('cx0', 1):
            a('s_cmp_ge_u32 %s, 4' % s(sGam))
            a('s_cbranch_scc1 L_fin')
        clean_b_prep()
        a('s_cmp_eq_u32 %s, 0' % s(sGam))
        a('s_cbranch_scc1 %s' % fin)

        def clean_all():
            clean_b()
            if OPT['cend'] & 2:
                clean_a()
            if OPT['cend'] & 1:
                clean_x()
        a('s_waitcnt vmcnt(%d)' % 0)
        clean_all()
        a('s_branch L_fin')
        flush_deferred(False)
        a.label(fin)
        g_pace(3)
        x_gather(3, G_D, work=clean_all, cnt=1 + bin(OPT['cend'] & 3).count('1'))
    else:
        if OPT.get('wb1') and FAST[0]:
            sk = newlabel('nowb')
            a('s_lshl_b32 s55, s2, 2')
            a('s_add_u32 s55, s55, %s' % s(sW))
            a('s_cmp_lg_u32 s55, %d' % (64 * 4))
            a('s_cbranch_scc1 %s' % sk)
            if OPT['wb1'] == 2:
                a('s_waitcnt vmcnt(0)')
            a('buffer_wbl2 sc1')
            a.label(sk)
        a('s_cmp_lg_u32 %s, 0' % s(sGam))
        a('s_cbranch_scc1 L_fin')
        g_pace(3)
        x_gather(3, G_D)
    sc = ' sc1' if OPT['clean'] & 8 else ''
    if OPT.get('opack'):
        a('v_mov_b32 %s, %s' % (v(T + 1), v(T)))
        a('v_permlane16_swap_b32 %s, %s' % (v(T), v(T + 1)))
        a('v_bfi_b32 %s, %s, %s, %s' % (v(T), v(T + 11), v(T), v(T + 1)))
        if OPT['opack'] == 2:
            a('v_mov_b32 %s, %s' % (v(T + 1), v(T)))
            a('v_permlane32_swap_b32 %s, %s' % (v(T), v(T + 1)))
            a('s_mov_b64 exec, 15')
            a('global_store_dwordx2 %s, %s, s[22:23]%s' % (v(T + 12), v(T, 2), sc))
        else:
            a('s_mov_b32 exec_lo, 15')
            a('s_mov_b32 exec_hi, 15')
            a('global_store_dword %s, %s, s[22:23]%s' % (v(T + 12), v(T), sc))
    else:
        a('s_mov_b32 exec_lo, 0x000f000f')
        a('s_mov_b32 exec_hi, 0x000f000f')
        a('global_store_short %s, %s, s[22:23]%s' % (v(vXw), v(T), sc))


front()
FAST[0] = bool(OPT['fast'])
tail()
a.label('L_fin')
if OPT.get('dirty'):
    if 'dx' in OPT:
        a('s_and_b32 s55, s2, 7')
        a('s_cmp_eq_u32 s55, 0')
        a('s_cbranch_scc%d L_nodirty' % OPT['dx'])
    a('s_mov_b64 exec, -1')
    a('s_lshl_b32 s55, s2, 2')
    a('s_add_u32 s55, s55, %s' % s(sW))
    a('s_lshl_b32 s55, s55, 15')
    a('s_add_u32 s55, s55, 0x400000')
    a('v_lshl_add_u32 %s, %s, 4, s55' % (v(T + 1), v(vL)))
    for i in range(OPT['dirty']):
        a('global_store_dwordx4 %s, %s, s[26:27]' % (v(T + 1), v(vD, 4)))
        a('v_add_u32 %s, 1024, %s' % (v(T + 1), v(T + 1)))
a.label('L_nodirty')
if OPT.get('dbgpol'):
    a('s_mov_b64 exec, -1')
    a('v_xor_b32 %s, %s, %s' % (v(T + 2), v(vConsG), v(vConsG0)))
    a('v_readfirstlane_b32 s6, %s' % v(T + 2))
    a('s_cmp_lg_u32 s6, 0')
    a('s_cselect_b32 s6, 1, 0')
    a('s_lshr_b32 s7, %s, 2' % s(sXcc))
    a('s_xor_b32 s6, s6, s7')
    a('s_lshr_b32 s7, %s, 1' % s(sW))
    a('s_xor_b32 s6, s6, s7')
    a('s_lshl_b32 s6, s6, 4')
    a('s_lshl_b32 s6, 1, s6')
    a('v_mov_b32 %s, s6' % v(T + 2))
    a('s_and_b32 s7, %s, 7' % s(sXcc))
    a('s_lshl_b32 s7, s7, 2')
    a('v_mov_b32 %s, s7' % v(T + 3))
    a('s_mov_b64 exec, 1')
    a('global_atomic_add %s, %s, s[24:25]' % (v(T + 3), v(T + 2)))
if OPT.get('wb'):
    a('buffer_wbl2 sc1')
if OPT.get('delay'):
    if 'only' in OPT:
        a('s_cmp_lg_u32 s2, %d' % OPT['only'])
        a('s_cbranch_scc1 L_end')
    a.label('L_dly')
    a('s_memrealtime s[6:7]')
    a('s_waitcnt lgkmcnt(0)')
    a('s_sub_u32 s8, s6, s100')
    a('s_cmp_lt_u32 s8, %d' % OPT.get('until', 3000))
    a('s_cbranch_scc1 L_dly')
if DIAG:
    a('s_mov_b64 exec, -1')
    a('s_memrealtime s[4:5]')
    a('s_waitcnt lgkmcnt(0)')
    a('v_mov_b32 %s, 0' % v(T))
    for i in range(len(stamps)):
        a('v_writelane_b32 %s, %s, %d' % (v(T), s(stamp_regs[i]), i))
    a('v_writelane_b32 %s, s4, %d' % (v(T), len(stamps)))
    a('v_xor_b32 %s, %s, %s' % (v(T + 2), v(vConsG), v(vConsG0)))
    a('v_readfirstlane_b32 s6, %s' % v(T + 2))
    a('v_writelane_b32 %s, s6, 62' % v(T))
    a('v_writelane_b32 %s, s12, 61' % v(T))
    a('v_writelane_b32 %s, s13, 60' % v(T))
    a('v_writelane_b32 %s, %s, 63' % (v(T), s(sXcc)))
    a('s_lshl_b32 s55, s2, 2')
    a('s_add_u32 s55, s55, %s' % s(sW))
    a('s_lshl_b32 s55, s55, 8')
    a('s_add_u32 s55, s55, %d' % WS_DIAG)
    a('v_lshl_add_u32 %s, %s, 2, s55' % (v(T + 1), v(vL)))
    a('global_store_dword %s, %s, s[26:27]' % (v(T + 1), v(T)))
a.label('L_end')
a('s_endpgm')
flush_deferred(False)
a.label('L_fastend')
if OPT['fast']:
    a('; ==== the same phases with write-through stores: taken when the group is spread over several XCDs')
    a.label('L_slowtail')
    FAST[0] = False
    a.hist = []
    a('s_nop 1')
    tail()
    a('s_branch L_fin')
    flush_deferred(False)
    a('s_endpgm')
a.raw('''.section .rodata,"a"
.p2align 6
.amdhsa_kernel %s_kernel
  .amdhsa_next_free_vgpr %d
  .amdhsa_next_free_sgpr 102
  .amdhsa_accum_offset %d
  .amdhsa_group_segment_fixed_size 0
  .amdhsa_kernarg_size 96
  .amdhsa_user_sgpr_count 2
  .amdhsa_user_sgpr_kernarg_segment_ptr 1
  .amdhsa_system_sgpr_workgroup_id_x 1
  .amdhsa_float_denorm_mode_32 3
.end_amdhsa_kernel''' % (NAME, NVGPR, NVGPR))
sys.stdout.write(a.text())
if DIAG:
    sys.stderr.write('STAMPS ' + '|'.join(stamps + ['end']) + '\n')
sys.stderr.write('nops inserted: %d\n' % a.nops)
```

```python
import sys, math, struct
from asm import Asm

NAME = 'interleave_layers__sliding_block_cached__glu_gated_swiglu__decode'
OPT = dict(diag=0, fast=1, nt=1, kw=5, fe=0, wol=1, probe=3, vw=1, thr=90, pages=2, cnt=0, early=2, d0=0, refresh=0, spipe=1, late_rs=1, na=0, nsl=0, w2e=0, ff=7, vlate=1, fl=0, flp=0, pad=0, nva=8, ksplit=0, wopos=0, ool=0, stg=1, vq=0, clean=0, cend=1, opre=1)
for a_ in sys.argv[1:]:
    k_, v_ = a_.split('=')
    OPT[k_] = int(v_)
DIAG = OPT['diag']
NT = {0: '', 1: ' nt', 2: ' sc1 nt', 3: ' sc0 sc1 nt', 4: ' sc0 nt', 5: ' sc1', 6: ' sc0 sc1'}[OPT['nt']]
STAGE = not DIAG or DIAG == 6

XB, ONES, QB, OB, HB, MB, DUMMY, PB = 0, 128, 256, 512, 768, 896, 960, 1024
WQ, VI, WO = 4096, 20480, 53248
W1, W3, W2 = WO + 16384, WO + 24576, WO + 32768
KI = WO + 38912
LDS_BYTES = KI + 32768
WS_F = 0x10000
WS_L, WS_P, WS_G, WS_DIAG = 0x40000, 0xc0000, 0x100000, 0x200000
WS_L2D = 0x140000 + 0x100000 * OPT['pad']
BUF_A, BUF_X, BUF_B, STATS, VOTES = 0, 1024, 2048, 3072, 7168
ST0 = 8192
PAD = OPT['pad']
GOFF = 4096 * PAD
G_C, G_D, G_H = -GOFF, (2048 << PAD) - GOFF, 1024 << PAD
G_X = (0x20000 << PAD) | 0x2000
WSH = 1 - PAD

vL, vCons, vPubL, vPw, vPubG, vStP, vStC, vTagM, vStP2 = range(1, 10)
vXw, vQw, vHw, vOpR, vXopR, vConsG, vConsG0, vCs, vZero, vMw = range(10, 20)
trq, vTr, vHmask, vX, vCq, vCg, vMean, vRs = 20, 22, 23, 24, 25, 26, 27, 28
vMr, vF = 29, 30
vWQ, vK, vV, vWO, vW13, vW2 = 32, 48, 80, 112, 128, 144
wo0, wo1, f0, f1, vPre, vVo = 144, 145, 146, 147, 148, 149
T = 152
vC = T + 12
vA = 176
vD = 192
vP = 224
vSt, vSt4, vKeep = 232, 236, 238
vCl = 20
vDs, vSs = [240, 244], [248, 252]
NVGPR = 256
sW, sJ, sGam, sPr, sE, sC0, sCnt, sXcc, sTo = 28, 29, 30, 31, 32, 33, 34, 35, 36
sLb, sGb0, sGb1 = 38, 40, 14
sPc, sT1 = 42, 44
sCs, sMaskHi, sInv512, sEps, sNl2e = 50, 51, 52, 53, 54
sM0, sM1, sHi, sCl = 56, 42, 46, 44
sTag = 60

a = Asm()
stamp_regs = list(range(70, 102, 2))
stamps = []
nstamp = [0]
lbl = [0]
FAST = [False]


def v(n, cnt=1):
    return 'v%d' % n if cnt == 1 else 'v[%d:%d]' % (n, n + cnt - 1)


def s(n, cnt=1):
    return 's%d' % n if cnt == 1 else 's[%d:%d]' % (n, n + cnt - 1)


def stamp(name):
    nstamp[0] += 1
    if OPT.get('delay') == 3 and OPT.get('at', 1) == nstamp[0]:
        a('s_memrealtime s[100:101]')
        sys.stderr.write('delay anchored at ' + name + '\n')
    keep = {0: False, 1: name[:2] not in ('L1', 'x ') and name[0] not in 'Gz', 2: name[:2] == 'L1', 5: name[0] == 'G' or name[3:] in ('O pub', 'D pub', 'E3 ok', 'E5 ok') or name in ('L0 E1 ok', 'L0 S pub', 'L0 E2 ok'),
            6: False, 7: name[:2] in ('L1', 'x '), 8: name[:2] == 'z1' or name in ('L1 E1 ok', 'L1 S pub', 'L1 E2 ok', 'L1 O pub', 'L1 E5 ok', 'L1 Q pub')}[DIAG]
    if not (keep or DIAG and name == 'start'):
        return
    if name not in stamps:
        if len(stamps) >= len(stamp_regs):
            return
        stamps.append(name)
    r = stamp_regs[stamps.index(name)]
    if OPT['cnt'] and name != 'start':
        a('s_sub_u32 %s, 0x40000, %s' % (s(r), s(sTo)))
    else:
        a('%s %s' % ('s_memtime' if DIAG in (7, 8) and name != 'x rt0' else 's_memrealtime', s(r, 2)))


def f32(x):
    return '0x%08x' % struct.unpack('<I', struct.pack('<f', x))[0]


def newlabel(p):
    lbl[0] += 1
    return 'L_%s_%d' % (p, lbl[0])


def lgkm(n):
    a('s_waitcnt lgkmcnt(%d)' % (n if STAGE else 0))


def mfma(d, x, y, c=None):
    a('v_mfma_f32_16x16x32_bf16 %s, %s, %s, %s' % (v(d, 4), v(x, 4), v(y, 4), '0' if c is None else v(c, 4)))


def dpp(op, d, x, y, ctl, rm=0xf):
    a('%s_dpp %s, %s, %s %s row_mask:0x%x bank_mask:0xf' % (op, v(d), v(x), v(y), ctl, rm))


X1, X2 = 'quad_perm:[1,0,3,2]', 'quad_perm:[2,3,0,1]'


def lstore(op, addr, data, off):
    a('%s %s, %s, %s offset:%d%s' % (op, addr, data, s(sLb, 2), off, '' if FAST[0] and not OPT.get('allsc') else ' sc1'))


def gload(d, vo, b, im):
    a('global_load_dwordx4 %s, %s, %s offset:%d sc1' % (v(d, 4), v(vo), s(b, 2), im))


def tick():
    a('s_sub_u32 %s, %s, 1' % (s(sTo), s(sTo)))
    a('s_cbranch_scc1 L_end')


deferred = []


def flush_deferred(jump=True):
    if not deferred:
        return
    l = newlabel('skip')
    if jump:
        a('s_branch %s' % l)
    hist = a.hist
    while deferred:
        a.hist = []
        deferred.pop(0)()
    a.hist = hist
    a.label(l)


def poll(loads, check, spec, work=None, cnt=0, issued=False, backoff=0, onretry=None):
    top, ent = newlabel('poll'), newlabel('pent')
    if not issued:
        for x in loads:
            gload(*x)
    if work:
        work()

    def retry():
        a.label(top)
        tick()
        if backoff:
            a('s_sleep %d' % backoff)
        if onretry:
            onretry()
        for x in loads:
            gload(*x)
        if cnt:
            a('s_waitcnt vmcnt(0)')
        if OPT['ool']:
            a('s_branch %s' % ent)
    if OPT['ool']:
        deferred.append(retry)
    else:
        a('s_branch %s' % ent)
        retry()
    a.label(ent)
    a('s_waitcnt vmcnt(%d)' % cnt)
    check()
    if spec:
        spec()
    a('s_cbranch_vccnz %s' % top)


def ring2(sets, issue, check, spec, cnt1, cnt0, first):
    top, ent, done = newlabel('ring'), newlabel('rent'), newlabel('rdone')

    def retry():
        a.label(top)
        tick()
        issue(sets[0])
        a('s_waitcnt vmcnt(%d)' % cnt1)
        check(sets[1])
        spec(sets[1])
        a('s_cbranch_vccz %s' % done)
        issue(sets[1])
        if first != cnt0:
            a('s_waitcnt vmcnt(%d)' % cnt0)
        if OPT['ool']:
            a('s_branch %s' % ent)
    if OPT['ool']:
        deferred.append(retry)
    else:
        a('s_branch %s' % ent)
        retry()
    a.label(ent)
    a('s_waitcnt vmcnt(%d)' % first)
    check(sets[0])
    spec(sets[0])
    a('s_cbranch_vccnz %s' % top)
    a.label(done)


def chk_byte(regs, tag):
    if len(regs) == 1:
        a('v_cmp_ne_u32_sdwa vcc, %s, %s src0_sel:BYTE_0 src1_sel:BYTE_0' % (v(regs[0]), s(tag)))
    else:
        a('v_bitop3_b32 %s, %s, %s, %s bitop3:0x7e' % (v(T + 23), v(regs[0]), v(regs[1]), s(tag)))
        a('v_cmp_ne_u32_sdwa vcc, %s, %s src0_sel:BYTE_0 src1_sel:DWORD' % (v(T + 23), v(vZero)))


def chk_stats(x, k):
    a('v_cmp_ne_u32 vcc, %s, %s' % (s(sTag + k), v(x + (2 if k % 3 == 1 else 1))))


def red_a(x, c):
    a('v_permlane32_swap_b32 %s, %s' % (v(x + 1), v(x + 3)))
    a('v_add_f32 %s, %s, %s' % (v(c + 1), v(x + 1), v(x + 3)))
    a('v_permlane32_swap_b32 %s, %s' % (v(x), v(x + 2)))
    a('v_add_f32 %s, %s, %s' % (v(c), v(x), v(x + 2)))


def red_b(c, out):
    a('v_permlane16_swap_b32 %s, %s' % (v(c), v(c + 1)))
    a('v_add_f32 %s, %s, %s' % (v(c), v(c), v(c + 1)))
    dpp('v_add_f32', out, c, c, 'row_ror:8')


def mask_tag(x):
    a('v_and_b32 %s, %s, %s' % (v(x), s(sMaskHi), v(x)))


def bf16r(dst, src):
    a('v_cvt_pk_bf16_f32 %s, %s, %s' % (v(dst), v(src), v(src)))
    a('v_and_b32 %s, 0xffff0000, %s' % (v(dst), v(dst)))


def allred(op, x, t, bits):
    for b in bits:
        if b < 4:
            dpp(op, x, x, x, {0: X1, 1: X2, 3: 'row_ror:8'}[b])
        else:
            a('v_mov_b32 %s, %s' % (v(t), v(x)))
            a('v_permlane%d_swap_b32 %s, %s' % (16 if b == 4 else 32, v(x), v(t)))
            a('%s %s, %s, %s' % (op, v(x), v(x), v(t)))


def set_tags(k):
    a('v_mov_b32 %s, %s' % (v(vSt + 2), s(sTag + k)))
    if k % 3 != 1:
        a('v_cndmask_b32 %s, %s, %s, %s' % (v(vSt4 + 1), v(vSt + 2), v(vSt + 3), s(sHi, 2)))


def ln_stats(k, addr=None):
    g = vSt4
    a('v_mul_f32 %s, %s, %s' % (v(T + 7), v(vX), v(vX)))
    a('v_permlane32_swap_b32 %s, %s' % (v(g), v(T + 7)))
    a('v_add_f32 %s, %s, %s' % (v(g), v(g), v(T + 7)))
    allred('v_add_f32', g, None, [0, 1])
    dpp('v_add_f32', g, g, g, 'row_bcast:15', 0xa)
    a('s_mov_b64 exec, %s' % s(sM1, 2))
    lstore('global_store_dwordx2', v(addr or vStP2), v(g, 2), 512 * (k & 1))
    a('s_mov_b64 exec, -1')


def ln_spec(x):
    a('v_permlane32_swap_b32 %s, %s' % (v(x), v(x + 2)))
    a('v_add_f32 %s, %s, %s' % (v(vC), v(x), v(x + 2)))


def ln_mean():
    c = vC
    allred('v_add_f32', c, c + 1, [4, 3, 0, 1])
    a('v_mul_f32 %s, %s, %s' % (v(c), s(sInv512), v(c)))
    a('v_mov_b32 %s, %s' % (v(c + 1), v(c)))
    a('v_permlane32_swap_b32 %s, %s' % (v(c), v(c + 1)))
    bf16r(vMean, c)


def ln_rstd_a():
    c = vC
    a('v_fma_f32 %s, -%s, %s, %s' % (v(c + 1), v(c), v(c), v(c + 1)))
    a('v_max_f32 %s, 0, %s' % (v(c + 1), v(c + 1)))
    bf16r(c + 1, c + 1)
    a('v_add_f32 %s, %s, %s' % (v(c + 1), s(sEps), v(c + 1)))
    bf16r(c + 1, c + 1)
    a('v_sqrt_f32 %s, %s' % (v(c + 1), v(c + 1)))


def ln_rstd_b(scale):
    c = vC
    bf16r(c + 1, c + 1)
    a('v_rcp_f32 %s, %s' % (v(vRs), v(c + 1)))
    if scale:
        a('v_mul_f32 %s, %s, %s' % (v(vCs), s(sCs), v(vRs)))


def stats_load(k, x=vSs[0]):
    gload(x, vStC, sLb, 512 * (k & 1))


def l_gather(k, spec, st_spec, chain, hook=None):
    buf = BUF_A if k % 2 == 0 else BUF_B

    def d_issue(x):
        gload(x, vCons, sLb, buf)
    rf = OPT['refresh'] and OPT['d0']

    def s_issue(x):
        stats_load(k, x)
        if rf:
            d_issue(vDs[0])
    if OPT['d0']:
        d_issue(vDs[0])
    if OPT['spipe']:
        stats_load(k, vSs[1])
        flush_deferred()
        ring2(vSs, s_issue, lambda x: chk_stats(x, k), st_spec, 2 if rf else 1, 3 if rf else 1, 2 + OPT['d0'])
    else:
        flush_deferred()
        poll([(vSs[0], vStC, sLb, 512 * (k & 1))], lambda: chk_stats(vSs[0], k), lambda: st_spec(vSs[0]), cnt=1 + OPT['d0'], issued=True)
    if k >= 3:
        stamp('x st%d' % k)
    if not OPT['d0']:
        d_issue(vDs[0])
        chain[0]()
        d_issue(vDs[1])
    else:
        d_issue(vDs[1])
        chain[0]()
    if hook:
        hook()
    for c in chain[1:]:
        c()
    ring2(vDs, d_issue, lambda x: chk_byte([x], sTag + k), spec, 1, 1, 1)


def x_gather(gi, imm, work=None, cnt=0):
    r = vP
    base = sGb0 if gi < 2 else sGb1

    def spec():
        a('v_pk_add_f32 %s, %s, %s' % (v(r + 2, 2), v(r + 2, 2), v(r + 6, 2)))
        a('v_add_f32 %s, %s, %s' % (v(r + 1), v(r + 1), v(r + 5)))
        mask_tag(r)
        mask_tag(r + 4)
        a('v_add_f32 %s, %s, %s' % (v(r), v(r), v(r + 4)))
        red_a(r, r)
    ad, onretry = vConsG, None
    if OPT.get('alt', 0) >> gi & 1:
        ad = T + 21
        a('v_mov_b32 %s, %s' % (v(ad), v(vConsG)))

        def onretry():
            a('v_xor_b32 %s, 0x%x, %s' % (v(ad), G_X, v(ad)))
    poll([(r, ad, base, imm), (r + 4, ad, base, imm + G_H)], lambda: chk_byte([r, r + 4], sTag + 6 + gi), spec, work=work, cnt=cnt,
         backoff=OPT.get('g%ds' % gi, 0), onretry=onretry)
    red_b(r, r)
    dpp('v_add_f32', r, r, r, 'row_ror:4')
    bf16r(r, r)
    a('v_add_f32 %s, %s, %s' % (v(r), v(r), v(vX)))
    a('v_cvt_pk_bf16_f32 %s, %s, %s' % (v(T), v(r), v(r)))


def x_to_lds(k):
    a('ds_write_b16 %s, %s offset:%d' % (v(vXw), v(T), XB))
    a('v_and_b32 %s, 0xffff0000, %s' % (v(vX), v(T)))
    a('v_and_b32 %s, 0xffff0000, %s' % (v(vSt4), v(T)))
    ln_stats(k)


def tr_pair(dst, addr, off, gstride):
    for g in range(2):
        a('ds_read_b64_tr_b16 %s, %s offset:%d' % (v(dst + 2 * g, 2), v(addr), off + g * gstride))


def proj(wreg, k, layer, wsrc=None, first=False, skip=None):
    rd = vXopR if layer == 0 else vOpR
    a('s_barrier')
    for kk in range(2):
        a('ds_read_b128 %s, %s offset:%d' % (v(vA + 4 * kk, 4), v(rd), XB + 64 * kk))
        if wsrc:
            for cg in range(2):
                ad, off, ks, gs = wsrc[cg]
                tr_pair(wreg + 8 * cg + 4 * kk, ad, off + kk * ks, gs)
    if skip:
        a('s_cbranch_scc1 %s' % skip)
    if not first and OPT['early'] == 1:
        stats_load(k)
    lgkm(7 if wsrc else 1)
    mfma(vD, vA, wreg)
    if wsrc:
        lgkm(5)
    mfma(vD + 4, vA, wreg + 8)
    if not first and OPT['early'] == 2:
        stats_load(k)
    lgkm(2 if wsrc else 0)
    mfma(vD, vA + 4, wreg + 4, vD)
    if wsrc:
        lgkm(0)
    mfma(vD + 4, vA + 4, wreg + 12, vD + 4)
    if not first and OPT['early'] == 0:
        stats_load(k)
    if layer == 1:
        a('s_mov_b32 exec_hi, 0')
    a('v_cndmask_b32 %s, %s, %s, %s' % (v(T), v(vD), v(vD + 4), s(sM0, 2)))
    a('v_bfi_b32 %s, %s, %s, %s' % (v(T), v(vTagM), s(sTag + k), v(T)))
    lstore('global_store_dword', v(vPubL), v(T), BUF_A if k % 2 == 0 else BUF_B)
    if layer == 1:
        a('s_mov_b32 exec_hi, -1')


def tr_reads(dst, addr, base, nk, kstride, gstride):
    for kk in range(nk):
        for g in range(2):
            a('ds_read_b64_tr_b16 %s, %s offset:%d' % (v(dst + 4 * kk + 2 * g, 2), v(addr), base + kk * kstride + g * gstride))


def gemv_publish_g(nk, wreg, src, gi, imm, tr=False, mid=None, post=None):
    for kk in range(nk):
        a('ds_read_b128 %s, %s offset:%d' % (v(vA + 4 * kk, 4), v(vOpR), src + 64 * kk))
        if tr:
            tr_pair(wreg + 4 * kk, vTr, 4096 * kk, 512)
    if mid:
        mid()
    for kk in range(nk):
        lgkm((nk - 1 - kk) * (3 if tr else 1))
        mfma(vD, vA + 4 * kk, wreg + 4 * kk, vD if kk else None)
    if post:
        post()
    if not PAD:
        a('s_mov_b32 exec_hi, 0')
    a('v_bfi_b32 %s, %s, %s, %s' % (v(T), v(vTagM), s(sTag + 6 + gi), v(vD)))
    st = 'global_store_dword %s, %s, %s offset:%d sc1' % (v(vPubG), v(T), s(sGb0 if gi < 2 else sGb1, 2), imm)
    if OPT['na'] and gi:
        a('s_mov_b32 exec_lo, s37')
        a(st)
        a('s_not_b32 exec_lo, s37')
        a(st)
        a('s_mov_b64 exec, -1')
    else:
        a(st)
        if not PAD:
            a('s_mov_b32 exec_hi, -1')


def g_pace(gi):
    flush_deferred()
    if OPT['na'] and gi:
        a('s_waitcnt vmcnt(1)')
        for i in range(OPT['nsl']):
            a('s_nop 7')
    else:
        a('s_waitcnt vmcnt(0)')
    if OPT.get('g%dd' % gi):
        a('s_sleep %d' % OPT['g%dd' % gi])
    stamp('G%d ack' % gi)


def probe_near():
    a('s_not_b32 s4, %s' % s(sE))
    a('s_xor_b32 s55, %s, 8192' % s(sPr))
    a('s_waitcnt lgkmcnt(0)')
    a('s_load_dword s4, s[26:27], %s' % s(sPr))
    a('s_load_dword s5, s[26:27], s55')
    a('s_lshl_b32 s59, %s, 2' % s(sJ))
    a('s_add_u32 s59, s59, %s' % s(sW))
    a('s_lshl_b32 s59, s59, 3')
    a('s_add_u32 s59, s59, %d' % VOTES)
    a('v_mov_b32 %s, s59' % v(T + 1))
    a('v_mov_b32 %s, %s' % (v(T + 3), s(sTag + 2)))
    a('s_waitcnt lgkmcnt(1)')
    a('s_memtime s[8:9]')
    a('s_cmp_eq_u32 s4, %s' % s(sE))
    a('s_cselect_b32 s6, %d, -1' % OPT['thr'])
    a('s_waitcnt lgkmcnt(0)')
    a('s_memtime s[10:11]')
    a('s_waitcnt lgkmcnt(0)')
    a('s_sub_u32 s7, s10, s8')
    a('s_cmp_gt_u32 s7, s6')
    a('s_cselect_b32 s6, 1, 0')
    if DIAG:
        a('s_mov_b32 s12, s7')
    a('v_mov_b32 %s, s6' % v(T + 2))
    a('s_mov_b64 exec, 1')
    lstore('global_store_dwordx2', v(T + 1), v(T + 2, 2), 0)
    a('s_mov_b64 exec, -1')


def race_prep():
    a('s_not_b32 s4, %s' % s(sE))
    a('s_xor_b32 s5, %s, 8192' % s(sPr))
    a('v_mov_b32 %s, %s' % (v(T + 4), s(sPr)))


def race_start():
    a('global_load_dword %s, %s, s[26:27] sc1' % (v(T + 5), v(T + 4)))
    a('s_load_dword s4, s[26:27], s5')


def race_finish(behind):
    a('s_lshl_b32 s59, %s, 2' % s(sJ))
    a('s_add_u32 s59, s59, %s' % s(sW))
    a('s_lshl_b32 s59, s59, 3')
    a('s_add_u32 s59, s59, %d' % VOTES)
    a('v_mov_b32 %s, s59' % v(T + 1))
    a('v_mov_b32 %s, %s' % (v(T + 3), s(sTag + 2)))
    a('s_waitcnt vmcnt(%d)' % behind)
    a('s_cmp_eq_u32 s4, %s' % s(sE))
    a('s_cselect_b32 s6, 1, 0')
    if DIAG:
        a('s_mov_b32 s12, s6')
    a('v_mov_b32 %s, s6' % v(T + 2))
    a('s_mov_b64 exec, 1')
    lstore('global_store_dwordx2', v(T + 1), v(T + 2, 2), 0)
    a('s_mov_b64 exec, -1')
    a('s_waitcnt lgkmcnt(0)')


def race_pick():
    a('s_lshr_b32 s55, %s, 1' % s(sW))
    a('s_xor_b32 s59, s55, 1')
    a('s_mul_i32 s55, s55, 0x%x' % G_X)
    a('s_mul_i32 s59, s59, 0x%x' % G_X)
    a('s_waitcnt vmcnt(1)')
    a('s_cmp_eq_u32 s4, %s' % s(sE))
    a('s_cselect_b32 s55, s59, s55')
    a('v_xor_b32 %s, s55, %s' % (v(vConsG), v(vConsG0)))


def count_votes():
    a('v_and_b32 %s, 31, %s' % (v(T + 4), v(vL)))
    a('v_lshlrev_b32 %s, 3, %s' % (v(T + 4), v(T + 4)))
    a('v_add_u32 %s, %d, %s' % (v(T + 4), VOTES, v(T + 4)))
    if OPT['vw'] and not OPT['vlate']:
        a('s_waitcnt vmcnt(0)')
    a('global_load_dwordx2 %s, %s, %s sc1' % (v(T + 2, 2), v(T + 4), s(sLb, 2)))
    a('s_lshr_b32 s55, %s, 1' % s(sW) if WSH else 's_and_b32 s55, %s, 1' % s(sW))
    a('s_xor_b32 s59, s55, 1')
    a('s_waitcnt vmcnt(0)')
    if OPT['probe'] == 2:
        a('v_cmp_eq_u32 vcc, %s, %s' % (s(sTag + 2), v(T + 3)))
        a('v_cmp_eq_u32 s[6:7], 0, %s' % v(T + 2))
        a('s_and_b32 s4, vcc_lo, s6')
        a('s_andn2_b32 s5, vcc_lo, s6')
    else:
        a('v_xor_b32 %s, %s, %s' % (v(T + 3), s(sTag + 2), v(T + 3)))
        a('v_xor_b32 %s, 1, %s' % (v(T + 2), v(T + 2)))
        a('v_or_b32 %s, %s, %s' % (v(T + 2), v(T + 2), v(T + 3)))
        a('v_cmp_eq_u32 vcc, 0, %s' % v(T + 2))
        a('s_and_b32 s4, vcc_lo, 0x%x' % (0x33333333 if WSH else 0x55555555))
        a('s_and_b32 s5, vcc_lo, 0x%x' % (0xcccccccc if WSH else 0xaaaaaaaa))
    a('s_bcnt1_i32_b32 s4, s4')
    a('s_bcnt1_i32_b32 s5, s5')
    if DIAG:
        a('s_lshl_b32 s13, s4, 8')
        a('s_add_u32 s13, s13, s5')
    a('s_cmp_ge_u32 s4, s5')
    a('s_cselect_b32 s55, s55, s59')
    if OPT['na']:
        a('s_cmp_eq_u32 s55, 0')
        a('s_cselect_b32 s37, 0xffff, %s' % s(sM0))
    a('s_mul_i32 s55, s55, 0x%x' % G_X)
    a('v_xor_b32 %s, s55, %s' % (v(vConsG), v(vConsG0)))


def flag_store(val):
    sk = newlabel('nofl')
    a('s_or_b32 s55, %s, %s' % (s(sJ), s(sW)))
    a('s_cbranch_scc1 %s' % sk)
    a('s_lshl_b32 s55, %s, 7' % s(sGam))
    a('s_add_u32 s55, s55, %d' % WS_F)
    a('v_lshl_add_u32 %s, %s, 2, s55' % (v(T + 21), v(vL)))
    a('v_mov_b32 %s, %s' % (v(T + 20), s(val)))
    a('s_mov_b32 exec_hi, 0')
    a('global_store_dword %s, %s, s[26:27] sc1' % (v(T + 21), v(T + 20)))
    a('s_mov_b32 exec_hi, -1')
    a.label(sk)


def flag_load():
    a('s_mov_b32 exec_hi, 0')
    a('global_load_dword %s, %s, s[26:27] sc1' % (v(T + 6), v(T + 5)))
    a('s_mov_b32 exec_hi, -1')


def flag_wait(cnt):
    top, ent = newlabel('fl'), newlabel('fle')
    a('s_branch %s' % ent)
    a.label(top)
    tick()
    flag_load()
    a('s_waitcnt vmcnt(0)')
    a.label(ent)
    a('s_waitcnt vmcnt(%d)' % cnt)
    a('v_cmp_ne_u32 vcc, %s, %s' % (s(sTag + 6), v(T + 6)))
    a('s_cmp_lg_u32 vcc_lo, 0')
    a('s_cbranch_scc1 %s' % top)


def clean_prep():
    a('v_and_b32 %s, 31, %s' % (v(T + 9), v(vL)))
    a('s_and_b32 s59, %s, 3' % s(sJ))
    a('s_lshl_b32 s59, s59, 7')
    a('s_add_u32 s59, s59, %d' % STATS)
    a('v_lshl_add_u32 %s, %s, 2, s59' % (v(T + 9), v(T + 9)))
    a('v_cndmask_b32 %s, %s, %s, %s' % (v(vCl), v(vPubL), v(T + 9), s(sHi, 2)))
    a('s_add_u32 s55, s59, %d' % (VOTES - STATS))
    a('s_add_u32 s59, s59, %d' % ST0)
    a('s_cmp_lt_u32 %s, 4' % s(sJ))
    a('s_cselect_b32 s59, s59, s55')
    a('v_and_b32 %s, 31, %s' % (v(T + 9), v(vL)))
    a('v_lshl_add_u32 %s, %s, 2, s59' % (v(T + 9), v(T + 9)))
    a('v_add_u32 %s, %d, %s' % (v(T + 10), BUF_X, v(vPubL)))
    a('v_cndmask_b32 %s, %s, %s, %s' % (v(vCl + 1), v(T + 10), v(T + 9), s(sHi, 2)))
    a('v_mov_b32 %s, %s' % (v(vCl + 2), s(sTag + 3)))
    a('s_cmp_lt_u32 %s, %d' % (s(sJ), 6 if OPT['probe'] in (1, 2) else 4))
    a('s_cselect_b32 %s, -1, 0' % s(sCl + 1))
    a('s_cmp_lt_u32 %s, 4' % s(sJ))
    a('s_cselect_b32 %s, -1, 0' % s(sCl))
    a('s_cmp_eq_u32 %s, 0' % s(sW))
    a('s_cselect_b32 %s, %s, 0' % (s(sCl), s(sCl)))
    a('s_cselect_b32 %s, %s, 0' % (s(sCl + 1), s(sCl + 1)))


def clean_x():
    a('s_mov_b32 exec_hi, %s' % s(sCl + 1))
    a('global_store_dword %s, %s, %s sc1' % (v(vCl + 1), v(vCl + 2), s(sLb, 2)))
    a('s_mov_b32 exec_hi, -1')


def clean_a():
    a('s_mov_b32 exec_hi, %s' % s(sCl))
    a('global_store_dword %s, %s, %s sc1' % (v(vCl), v(vCl + 2), s(sLb, 2)))
    a('s_mov_b32 exec_hi, -1')


def clean_b_prep():
    a('v_add_u32 %s, %d, %s' % (v(T + 9), 512, v(vCl)))
    a('v_add_u32 %s, %d, %s' % (v(T + 8), BUF_B, v(vCl)))
    a('v_cndmask_b32 %s, %s, %s, %s' % (v(T + 8), v(T + 8), v(T + 9), s(sHi, 2)))
    a('s_mov_b32 exec_lo, 0')
    a('s_mov_b32 exec_hi, %s' % s(sCl))
    sk = newlabel('nold')
    a('s_cbranch_execz %s' % sk)
    a('global_load_dword %s, %s, %s sc1' % (v(vKeep), v(T + 8), s(sLb, 2)))
    a.label(sk)
    a('s_mov_b64 exec, -1')


def clean_b():
    a('s_mov_b32 exec_hi, %s' % s(sCl))
    a('global_store_dword %s, %s, %s sc1' % (v(T + 8), v(vKeep), s(sLb, 2)))
    a('s_mov_b32 exec_hi, -1')


npage = [0]


def only_if(late, fn):
    sk = newlabel('xs')
    a('s_cmp_ge_u32 %s, 4' % s(sXcc))
    a('s_cbranch_scc%d %s' % (0 if late else 1, sk))
    fn()
    a.label(sk)


def page_break(force=False):
    if OPT['pages'] and (FAST[0] or force):
        l = newlabel('page')
        a('s_branch %s' % l)
        flush_deferred(False)
        a.raw('.p2align 12')
        if OPT.get('tramp') and not force:
            npage[0] += 1
            a.label('L_stub_%d' % npage[0])
            a.raw('    s_branch %s' % ('L_stub_2' if npage[0] == 1 and OPT['pages'] == 2 else 'L_stub_back'))
        a.label(l)
        if OPT.get('tramp') and force:
            a('s_branch L_stub_1')
            a.label('L_stub_back')


a.raw('''; kernarg: x, K, V, wq, wo, (B_x unused), w1, w3, w2, out, debug, ws  (8 bytes each)
;
; One persistent launch, 256 workgroups = 32 groups (attention head / 40-48 ffn columns) x 8 members (128 keys / 64 rows of x).
; Weights and the K/V window are read once (LDS-DMA, then transposing LDS reads) and stay in registers for both layers.
; Per layer: q partials -> [group] -> scores, softmax, PV -> [group] -> wo partials -> [32 groups] -> gate/up partials
;            -> [group] -> w2 partials -> [32 groups].   LayerNorm is applied after the projection:
;            rstd * (x.W - mean * colsum(W)), the statistics travel with the group hand-offs.
; Hand-offs go through d_ws in 64-byte sectors whose 16-byte granules carry a tag byte (tag = epoch word found in d_ws + constant + index
; of the hand-off; the epoch is advanced once per launch). Loads of handed-off data always bypass L1. Group hand-offs use plain
; stores only after the members have compared their XCC ids; otherwise the copy of the code at L_slowtail writes through.
; The all-to-all hand-offs are written twice, once into each half of memory; a wave reads the copy that is near to it.
; @launch grid=(256,1,1) block=(256,1,1) lds=%d
.amdgcn_target "amdgcn-amd-amdhsa--gfx950"
.text
.p2align 12
.globl %s_kernel
.p2align 8
.type %s_kernel,@function
%s_kernel:''' % (LDS_BYTES, NAME, NAME, NAME))
a('s_cmp_ge_u32 s2, 256')
a('s_cbranch_scc1 L_end')
a('s_load_dwordx16 s[4:19], s[0:1], 0')
a('s_load_dwordx8 s[20:27], s[0:1], 64')
stamp('start')
stamp('x rt0')
a('s_getpc_b64 %s' % s(sPc, 2))
a.label('L_pc')
a('v_lshlrev_b32 %s, 6, v0' % v(T))
a('v_min_u32 %s, L_fastend-L_pc-64, %s' % (v(T), v(T)))
a('global_load_dword %s, %s, %s' % (v(T + 22), v(T), s(sPc, 2)))
a('v_lshrrev_b32 %s, 6, v0' % v(T))
a('v_and_b32 %s, 63, v0' % v(vL))
a('v_readfirstlane_b32 %s, %s' % (s(sW), v(T)))
a('s_lshr_b32 s3, s2, 3')
a('s_and_b32 %s, s3, 7' % s(sJ))
a('s_lshr_b32 s3, s3, 3')
a('s_and_b32 s31, s2, 7')
a('s_lshl_b32 %s, s31, 2' % s(sGam))
a('s_add_u32 %s, %s, s3' % (s(sGam), s(sGam)))
u16, pos16, u8, pos8, l3, col16 = T + 1, T + 2, T + 3, T + 4, T + 5, T + 6
t0, t1, t2, t3 = T + 8, T + 9, T + 10, T + 11
k0 = T + 12


def pro_wq():
    a('v_lshrrev_b32 %s, 4, %s' % (v(u16), v(vL)))
    a('v_and_b32 %s, 15, %s' % (v(pos16), v(vL)))
    a('v_lshlrev_b32 %s, 1, %s' % (v(t2), v(u16)))
    a('v_xor_b32 %s, %s, %s' % (v(t2), v(t2), v(pos16)))
    a('v_lshlrev_b32 %s, 4, %s' % (v(t2), v(t2)))
    a('v_lshl_add_u32 %s, %s, 13, %s' % (v(t0), v(u16), v(t2)))
    a('v_xor_b32 %s, 0x80, %s' % (v(t1), v(t0)))
    a('v_add_u32 %s, %d, %s' % (v(t1), 2 * 31744, v(t1)))
    a('s_lshl_b32 s49, %s, 12' % s(sW))
    a('s_lshl_b32 s55, %s, 19' % s(sJ))
    a('s_lshl_b32 s56, %s, 17' % s(sW))
    a('s_add_u32 s55, s55, s56')
    a('s_lshl_b32 s56, %s, 8' % s(sGam))
    a('s_add_u32 s55, s55, s56')
    a('s_add_u32 m0, s49, %d' % WQ)


def pro_rest():
    a('v_and_b32 %s, 3, %s' % (v(l3), v(vL)))
    a('v_lshl_add_u32 %s, %s, 2, %s' % (v(col16), v(l3), v(u16)))
    a('s_lshl_b32 s48, %s, 5' % s(sW))
    a('v_lshl_add_u32 %s, %s, 1, s48' % (v(vXw), v(col16)))
    a('v_lshl_add_u32 %s, %s, 8, %s' % (v(vVo), v(u16), v(t2)))
    a('v_xor_b32 %s, 0x80, %s' % (v(vVo + 1), v(vVo)))
    a('v_xor_b32 %s, %s, %s' % (v(k0), v(u16), v(pos16)))
    a('v_lshlrev_b32 %s, 4, %s' % (v(k0), v(k0)))
    a('v_lshl_add_u32 %s, %s, 8, %s' % (v(k0), v(u16), v(k0)))
    for i in range(1, 4):
        a('v_xor_b32 %s, %d, %s' % (v(k0 + i), i << 6, v(k0)))
    a('s_lshl_b32 s48, %s, 7' % s(sJ))
    a('s_lshl_b32 s56, %s, 20' % s(sGam))
    a('s_lshl_b32 s58, %s, 15' % s(sJ))
    a('s_add_u32 s56, s56, s58')
    a('s_lshl_b32 s58, %s, 13' % s(sW))
    a('s_add_u32 s56, s56, s58')
    a('s_add_u32 s56, s56, %d' % (3072 * 256))


def pro_touch():
    a('v_lshl_add_u32 %s, %s, 4, s49' % (v(vCons), v(vL)))
    a('s_lshl_b32 s57, %s, 14' % s(sGam))
    a('s_add_u32 s57, s57, %d' % WS_L)
    a('s_add_u32 s3, s48, s57')
    a('s_add_u32 s59, s3, s49')
    a('v_lshl_add_u32 %s, %s, 10, s59' % (v(t3), v(vL)))
    a('v_cmp_lt_u32 vcc, 2, %s' % v(vL))
    a('s_add_u32 s3, s3, %d' % STATS)
    a('v_mov_b32 %s, s3' % v(T + 17))
    a('v_cndmask_b32 %s, %s, %s, vcc' % (v(t3), v(t3), v(T + 17)))
    if OPT['probe'] in (1, 2):
        a('s_add_u32 s3, s57, %d' % VOTES)
        a('v_writelane_b32 %s, s3, 3' % v(t3))
        a('s_add_u32 s3, s3, 128')
        a('v_writelane_b32 %s, s3, 4' % v(t3))
    a('s_and_b32 s3, s48, 0x180')
    a('s_add_u32 s3, s3, s57')
    a('s_add_u32 s3, s3, %d' % (STATS + ST0))
    a('v_writelane_b32 %s, s3, 5' % v(t3))


PRO = OPT.get('pro', 2)
pro_wq()
if PRO < 2:
    pro_rest()
if PRO < 1:
    pro_touch()
stamp('pre ka')
a('s_waitcnt lgkmcnt(0)')
stamp('ka')
a('s_add_u32 s10, s10, s55')
a('s_addc_u32 s11, s11, 0')
a('global_load_lds_dwordx4 %s, s[10:11] offset:0%s' % (v(t0), NT))
a('v_add_u32 %s, 31744, %s' % (v(t0), v(t0)))
a('s_load_dword %s, s[26:27], 0' % s(sE))
a('global_load_lds_dwordx4 %s, s[10:11] offset:1024%s' % (v(t0), NT))
a('global_load_lds_dwordx4 %s, s[10:11] offset:2048%s' % (v(t1), NT))
a('v_add_u32 %s, 31744, %s' % (v(t1), v(t1)))
a('global_load_lds_dwordx4 %s, s[10:11] offset:3072%s' % (v(t1), NT))
if PRO >= 2:
    pro_rest()
a('s_add_u32 s4, s4, s48')
a('s_addc_u32 s5, s5, 0')
a('global_load_ushort %s, %s, s[4:5]' % (v(vX), v(vXw)))
a('s_add_u32 s6, s6, s56')
a('s_addc_u32 s7, s7, 0')
if PRO < 1:
    a('global_load_dword %s, %s, s[26:27]' % (v(T + 22), v(t3)))
a('s_add_u32 m0, s58, %d' % KI)
stamp('wq iss')
if OPT.get('bar0', 1):
    a('s_barrier')
for i in range(4):
    a('global_load_lds_dwordx4 %s, s[6:7] offset:%d%s' % (v(k0 + i), 1024 * i, NT))


def k_second():
    a('s_add_u32 m0, s58, %d' % (KI + 4096))
    a('s_add_u32 s6, s6, 4096')
    a('s_addc_u32 s7, s7, 0')
    for i in range(4):
        a('global_load_lds_dwordx4 %s, s[6:7] offset:%d%s' % (v(k0 + i), 1024 * i, NT))


if not OPT['ksplit']:
    k_second()
if PRO >= 1:
    pro_touch()
    a('global_load_dword %s, %s, s[26:27]' % (v(T + 22), v(t3)))
stamp('issued')
a('s_add_u32 s8, s8, s56')
a('s_addc_u32 s9, s9, 0')
a('s_add_u32 %s, s26, s57' % s(sLb))
a('s_addc_u32 %s, s27, 0' % s(sLb + 1))
a('s_lshl_b32 s55, %s, %d' % (s(sJ), 14 + PAD))
a('s_add_u32 s55, s55, %d' % (WS_G + GOFF))
a('s_add_u32 %s, s26, s55' % s(sGb0))
a('s_addc_u32 %s, s27, 0' % s(sGb0 + 1))
a('s_add_u32 %s, %s, 0x%x' % (s(sGb1), s(sGb0), 0x40000 << PAD))
a('s_addc_u32 %s, %s, 0' % (s(sGb1 + 1), s(sGb0 + 1)))
a('s_getreg_b32 %s, hwreg(HW_REG_XCC_ID, 0, 4)' % s(sXcc))
a('s_lshl_b32 %s, s2, 2' % s(sPr))
a('s_add_u32 %s, %s, %s' % (s(sPr), s(sPr), s(sW)))
a('s_and_b32 s55, %s, 63' % s(sPr))
a('s_lshl_b32 s55, s55, 7')
a('s_lshr_b32 %s, %s, 6' % (s(sPr), s(sPr)))
a('s_lshl_b32 %s, %s, 14' % (s(sPr), s(sPr)))
a('s_add_u32 %s, %s, s55' % (s(sPr), s(sPr)))
a('s_add_u32 %s, %s, %d' % (s(sPr), s(sPr), WS_P))
if OPT['probe'] == 1:
    a('s_lshl_b32 s55, s49, %d' % PAD)
    a('s_and_b32 s55, s55, 8192')
    a('s_add_u32 %s, %s, s55' % (s(sPr), s(sPr)))
a('s_mov_b32 %s, 0x40000' % s(sTo))
a('s_mov_b32 %s, %s' % (s(sCs), f32(math.log2(math.e) / math.sqrt(128.0))))
a('s_mov_b32 %s, 0xffffff00' % s(sMaskHi))
a('s_mov_b32 %s, %s' % (s(sInv512), f32(1.0 / 512)))
a('s_mov_b32 %s, %s' % (s(sEps), f32(1e-5)))
a('s_mov_b32 %s, %s' % (s(sNl2e), f32(-math.log2(math.e))))
a('s_mov_b32 %s, 0xffff0000' % s(sM0))
a('s_mov_b32 %s, 0xffff0000' % s(sM0 + 1))
a('s_mov_b32 %s, 0x10000' % s(sM1))
a('s_mov_b32 %s, 0x10000' % s(sM1 + 1))
a('s_mov_b32 %s, 0' % s(sHi))
a('s_mov_b32 %s, -1' % s(sHi + 1))
a('s_mul_i32 %s, %s, 43' % (s(sC0), s(sGam)))
a('s_add_u32 %s, %s, 43' % (s(sCnt), s(sC0)))
a('s_lshr_b32 %s, %s, 3' % (s(sC0), s(sC0)))
a('s_lshr_b32 %s, %s, 3' % (s(sCnt), s(sCnt)))
a('s_sub_u32 %s, %s, %s' % (s(sCnt), s(sCnt), s(sC0)))
a('s_lshl_b32 %s, %s, 3' % (s(sCnt), s(sCnt)))
a('v_mov_b32 %s, 0' % v(vZero))
a('v_lshrrev_b32 %s, 3, %s' % (v(u8), v(vL)))
a('v_and_b32 %s, 7, %s' % (v(pos8), v(vL)))
a('s_add_u32 s55, s49, s48')
a('v_and_b32 %s, 31, %s' % (v(t0), v(vL)))
a('v_lshl_add_u32 %s, %s, 2, s55' % (v(vPubL), v(t0)))
a('v_lshrrev_b32 %s, 5, %s' % (v(t3), v(vL)))
a('v_lshl_add_u32 %s, %s, 10, %s' % (v(vPubL), v(t3), v(vPubL)))
a('s_lshl_b32 s55, %s, 6' % s(sW))
a('v_lshl_add_u32 %s, %s, 1, s55' % (v(vPw), v(t0)))
a('v_lshl_add_u32 %s, %s, 2, %s' % (v(t1), v(pos8), v(u16)))
a('v_lshl_add_u32 %s, %s, 1, s55' % (v(vQw), v(t1)))
a('s_lshl_b32 s55, %s, 6' % s(sGam))
a('s_add_u32 s55, s55, s49')
if PAD:
    a('s_lshl_b32 s55, s55, 1')
a('v_lshl_add_u32 %s, %s, 2, s55' % (v(vPubG), v(pos16)))
if PAD:
    a('v_lshl_add_u32 %s, %s, 6, %s' % (v(vPubG), v(t3), v(vPubG)))
a('v_and_b32 %s, 1, %s' % (v(t2), v(u16)))
a('v_mul_u32_u24 %s, 0x%x, %s' % (v(t2), G_X, v(t2)))
a('v_xor_b32 %s, %s, %s' % (v(vPubG), v(vPubG), v(t2)))
a('v_lshl_add_u32 %s, %s, %d, s55' % (v(vPre), v(pos8), 3 + PAD))
a('v_xor_b32 %s, %s, %s' % (v(vPre), v(vPre), v(t2)))
a('v_and_b32 %s, 1, %s' % (v(t2), v(u8)))
a('v_lshl_add_u32 %s, %s, %d, %s' % (v(vPre), v(t2), 11 + PAD, v(vPre)))
a('v_lshl_add_u32 %s, %s, %d, %s' % (v(vPre), v(t3), 18 + PAD, v(vPre)))
a('s_lshl_b32 s55, %s, 2' % s(sJ))
a('s_add_u32 s55, s55, %s' % s(sW))
a('s_lshl_b32 s55, s55, 4')
a('s_add_u32 s55, s55, %d' % STATS)
a('v_mov_b32 %s, s55' % v(vStP))
a('v_lshl_add_u32 %s, %s, 3, s55' % (v(vStP2), v(t3)))
a('v_lshlrev_b32 %s, 4, %s' % (v(t1), v(l3)))
a('v_lshl_add_u32 %s, %s, 6, %s' % (v(t1), v(u8), v(t1)))
a('v_add_u32 %s, %d, %s' % (v(vStC), STATS, v(t1)))
a('v_mov_b32 %s, 0xff' % v(t2))
a('v_cmp_eq_u32 vcc, 0, %s' % v(l3))
a('v_lshlrev_b32 %s, 4, %s' % (v(vOpR), v(u16)))
a('v_and_b32 %s, 8, %s' % (v(t1), v(vL)))
a('v_cndmask_b32 %s, 0, %s, vcc' % (v(vTagM), v(t2)))
a('v_lshl_add_u32 %s, %s, 4, %s' % (v(vXopR), v(t1), v(vOpR)))
a('v_and_b32 %s, 4, %s' % (v(t1), v(vL)))
a('v_cmp_eq_u32 vcc, 0, %s' % v(t1))
a('v_add_u32 %s, %d, %s' % (v(t1), HB, v(vXw)))
a('v_mov_b32 %s, %d' % (v(t2), DUMMY))
a('v_cndmask_b32 %s, %s, %s, vcc' % (v(vHw), v(t2), v(t1)))
a('v_lshrrev_b32 %s, 1, %s' % (v(t1), v(vXw)))
a('v_cmp_gt_u32 vcc, %s, %s' % (s(sCnt), v(t1)))
a('s_lshl_b32 s55, %s, 2' % s(sW))
a('v_mov_b32 %s, s55' % v(vMw))
a('v_lshlrev_b32 %s, 2, %s' % (v(vMr), v(l3)))
a('v_cndmask_b32 %s, 0, -1, vcc' % v(vHmask))
a('v_lshlrev_b32 %s, 2, %s' % (v(t0), v(t0)))
a('v_mov_b32 %s, 0x3f803f80' % v(t1))
a('ds_write_b32 %s, %s offset:%d' % (v(t0), v(t1), ONES))
a('v_lshlrev_b32 %s, 2, %s' % (v(t0), v(pos8)))
a('ds_write_b32 %s, %s offset:%d' % (v(t0), v(vZero), HB + 96))
if PAD:
    a('v_lshrrev_b32 %s, 2, %s' % (v(t1), v(vL)))
    a('v_lshlrev_b32 %s, 4, %s' % (v(t2), v(l3)))
    a('v_lshl_add_u32 %s, %s, 7, %s' % (v(t1), v(t1), v(t2)))
    a('s_lshl_b32 s59, s49, 1')
    a('v_add_u32 %s, s59, %s' % (v(vConsG), v(t1)))
else:
    a('v_mov_b32 %s, %s' % (v(vConsG), v(vCons)))
a('v_mov_b32 %s, %s' % (v(vConsG0), v(vConsG)))
a('v_mov_b32 %s, %s' % (v(vSt + 3), s(sXcc)))
r_ = T + 16
a('v_lshrrev_b32 %s, 2, %s' % (v(r_), v(pos16)))
a('v_and_b32 %s, 1, %s' % (v(t0), v(u16)))
a('v_lshl_add_u32 %s, %s, 2, %s' % (v(t1), v(t0), v(r_)))
a('v_lshlrev_b32 %s, 1, %s' % (v(t1), v(t1)))
a('v_xor_b32 %s, s55, %s' % (v(t1), v(t1)))
a('v_lshlrev_b32 %s, 4, %s' % (v(t1), v(t1)))
a('v_lshl_add_u32 %s, %s, 3, %s' % (v(t1), v(l3), v(t1)))
a('v_lshl_add_u32 %s, %s, 3, %s' % (v(t2), v(u16), v(r_)))
a('v_lshl_add_u32 %s, %s, 8, %s' % (v(trq), v(t2), v(t1)))
a('v_xor_b32 %s, 32, %s' % (v(trq + 1), v(trq)))
a('v_lshrrev_b32 %s, 1, %s' % (v(t1), v(r_)))
a('v_lshl_add_u32 %s, %s, 1, %s' % (v(t1), v(t0), v(t1)))
a('v_xor_b32 %s, %s, %s' % (v(t1), s(sW), v(t1)))
a('v_lshlrev_b32 %s, 5, %s' % (v(t1), v(t1)))
a('v_lshl_add_u32 %s, %s, 3, %s' % (v(t1), v(l3), v(t1)))
a('v_lshl_add_u32 %s, %s, 7, %s' % (v(vTr), v(t2), v(t1)))
a('v_add_u32 %s, %d, %s' % (v(vTr), WO, v(vTr)))
a('v_and_b32 %s, 2, %s' % (v(t0), v(u8)))
a('v_xor_b32 %s, %s, %s' % (v(t0), v(t0), v(pos8)))
a('v_lshlrev_b32 %s, 4, %s' % (v(t1), v(t0)))
a('v_lshl_add_u32 %s, %s, 10, %s' % (v(wo0), v(u8), v(t1)))
a('v_xor_b32 %s, 64, %s' % (v(wo1), v(wo0)))
a('v_add_u32 %s, 7168, %s' % (v(wo1), v(wo1)))
a('v_mul_u32_u24 %s, 2752, %s' % (v(t2), v(u8)))
a('v_min_u32 %s, 5, %s' % (v(t1), v(t0)))
a('v_lshl_add_u32 %s, %s, 4, %s' % (v(f0), v(t1), v(t2)))
a('v_xor_b32 %s, 4, %s' % (v(t0), v(t0)))
a('v_min_u32 %s, 5, %s' % (v(t1), v(t0)))
a('v_lshl_add_u32 %s, %s, 4, %s' % (v(f1), v(t1), v(t2)))
a('v_add_u32 %s, %d, %s' % (v(f1), 8 * 2752 - 1024, v(f1)))
a('s_lshl_b32 s55, %s, 17' % s(sGam))
a('s_lshl_b32 s59, %s, 15' % s(sW))
a('s_add_u32 s55, s55, s59')
a('s_add_u32 s55, s55, s48')
a('s_add_u32 s12, s12, s55')
a('s_addc_u32 s13, s13, 0')
a('s_lshl_b32 s55, %s, 2' % s(sJ))
a('s_add_u32 s55, s55, %s' % s(sW))
a('s_mul_i32 s55, s55, %d' % (16 * 2752))
a('s_lshl_b32 s59, %s, 4' % s(sC0))
a('s_add_u32 s55, s55, s59')
a('s_add_u32 s16, s16, s55')
a('s_addc_u32 s17, s17, 0')
a('s_add_u32 s18, s18, s55')
a('s_addc_u32 s19, s19, 0')
a('s_lshl_b32 s55, %s, 13' % s(sC0))
a('s_min_u32 s59, %s, 2' % s(sW))
a('s_lshl_b32 s59, s59, 14')
a('s_add_u32 s55, s55, s59')
a('s_add_u32 s55, s55, s48')
a('s_add_u32 s20, s20, s55')
a('s_addc_u32 s21, s21, 0')
a('s_add_u32 s22, s22, s48')
a('s_addc_u32 s23, s23, 0')
if OPT['ksplit']:
    k_second()
a('s_add_u32 s6, s8, 4096')
a('s_addc_u32 s7, s9, 0')
a('s_waitcnt lgkmcnt(0)')
for k in range(10):
    a('s_add_u32 %s, %s, 0x%x' % (s(sTag + k), s(sE), 0x5a3c7181 + k))


def issue_v(lo, hi):
    for i in range(lo, hi):
        if i == lo or i == 4:
            a('s_add_u32 m0, s58, %d' % (VI + 4096 * (i >> 2)))
            a('s_nop 0')
        a('global_load_lds_dwordx4 %s, %s offset:%d%s' % (v(vVo + ((i >> 1) & 1)), 's[6:7]' if i >= 4 else 's[8:9]', 1024 * (i & 3), NT))


def issue_wo():
    a('s_add_u32 m0, s49, %d' % WO)
    a('v_add_u32 %s, %d, %s' % (v(T + 20), 2 * 7168, v(wo0)))
    a('global_load_lds_dwordx4 %s, s[12:13] offset:0%s' % (v(wo0), NT))
    a('global_load_lds_dwordx4 %s, s[12:13] offset:1024%s' % (v(wo1), NT))
    a('global_load_lds_dwordx4 %s, s[12:13] offset:2048%s' % (v(T + 20), NT))
    a('v_add_u32 %s, %d, %s' % (v(T + 20), 2 * 7168, v(wo1)))
    a('global_load_lds_dwordx4 %s, s[12:13] offset:3072%s' % (v(T + 20), NT))


def issue_w13(lo, hi):
    for i in range(lo, hi):
        if i == lo or i == 2:
            a('s_lshl_b32 s59, %s, 11' % s(sW))
            a('s_add_u32 m0, s59, %d' % (W1 if i < 2 else W3))
            a('s_nop 0')
        a('global_load_lds_dwordx4 %s, s[%d:%d] offset:%d%s' % (v(f0 + (i & 1)), 16 + (i & 2), 17 + (i & 2), 1024 * (i & 1), NT))


def issue_w2():
    a('s_min_u32 s59, %s, 2' % s(sW))
    a('s_lshl_b32 s59, s59, 11')
    a('s_add_u32 m0, s59, %d' % W2)
    a('s_nop 0')
    a('global_load_lds_dwordx4 %s, s[20:21] offset:0%s' % (v(wo0), NT))
    a('global_load_lds_dwordx4 %s, s[20:21] offset:1024%s' % (v(wo1), NT))


r = vP
FE, KW, WOL = OPT['fe'], OPT['kw'], OPT['wol']
NPRE = 1 + bool(OPT['probe'])
NVA = OPT['nva']
NVB = 8 - NVA
NLATE = 0 if WOL else 4 + FE + 2 * OPT['w2e']


WOETC = []


def front():
    a('; ---- layer 0: x slice, query projection partials')
    set_tags(0)
    a('v_add_u32 %s, 0x%x, %s' % (v(T + 12), WS_L2D, v(vStP2)))
    a('v_add_u32 %s, 0x%x, %s' % (v(T + 13), WS_L2D, v(vPubL)))
    a('v_add_u32 %s, 0x%x, %s' % (v(T + 14), ST0, v(vStP2)))
    stamp('consts')
    a('s_waitcnt vmcnt(9)')
    stamp('wq landed')
    a('ds_write_b16 %s, %s offset:%d' % (v(vXw), v(vX), XB))
    issue_v(0, OPT['vq'])
    a('v_lshlrev_b32 %s, 16, %s' % (v(vSt4), v(vX)))
    a('v_lshlrev_b32 %s, 16, %s' % (v(vX), v(vX)))
    FAST[0] = True
    ln_stats(0, T + 14)
    a('s_waitcnt lgkmcnt(0)')

    proj(vWQ, 0, 0, wsrc=[(trq, WQ, 8192, 1024), (trq + 1, WQ, 8192, 1024)], first=True)
    FAST[0] = False
    stamp('L0 Q pub')
    if OPT.get('te'):
        h = OPT.get('th', 4)
        issue_v(OPT['vq'], h)
        sk = newlabel('noth')
        a('s_cmp_ge_u32 %s, 4' % s(sXcc))
        a('s_cbranch_scc1 %s' % sk)
        a('s_waitcnt vmcnt(%d)' % max(8 - OPT['te'] + (PRO >= 1) + 2 + h, 0))
        a.label(sk)
        issue_v(h, NVA)
    else:
        issue_v(OPT['vq'], NVA)
    lstore('global_store_dword', v(T + 13), v(T), BUF_A)
    a('s_mov_b64 exec, %s' % s(sM1, 2))
    lstore('global_store_dwordx2', v(T + 12), v(vSt4, 2), 0)
    a('s_mov_b64 exec, -1')
    a('v_mov_b32 %s, %s' % (v(T + 16), s(sE)))
    a('v_mov_b32 %s, %s' % (v(T + 17), s(sE)))
    if PAD:
        a('v_mov_b32 %s, %s' % (v(T + 18), s(sE)))
        a('v_mov_b32 %s, %s' % (v(T + 19), s(sE)))
    a('global_store_dwordx%d %s, %s, %s offset:%d sc1' % (2 << PAD, v(vPre), v(T + 16, 2 << PAD), s(sGb0, 2), -GOFF))
    if OPT['probe']:
        a('v_and_b32 %s, 31, %s' % (v(T + 18), v(vL)))
        a('v_lshl_add_u32 %s, %s, 2, %s' % (v(T + 18), v(T + 18), s(sPr)))
        a('v_lshrrev_b32 %s, 5, %s' % (v(T + 19), v(vL)))
        a('v_lshlrev_b32 %s, 13, %s' % (v(T + 19), v(T + 19)))
        a('v_xor_b32 %s, %s, %s' % (v(T + 18), v(T + 19), v(T + 18)))
        a('global_store_dword %s, %s, s[26:27] sc1' % (v(T + 18), v(T + 16)))
    a('; ---- layer 0: gather q')
    if OPT.get('cp2'):
        a('s_getpc_b64 s[4:5]')
        a.label('L_pc2')
        a('v_lshlrev_b32 %s, 6, v0' % v(T + 19))
        a('v_min_u32 %s, L_fastend-L_pc2-64, %s' % (v(T + 19), v(T + 19)))
        a('global_load_dword %s, %s, s[4:5]' % (v(T + 22), v(T + 19)))
    a('v_xor_b32 %s, %s, %s' % (v(t0), v(u16), v(pos16)))
    a('v_lshlrev_b32 %s, 4, %s' % (v(t0), v(t0)))
    a('v_lshl_add_u32 %s, %s, 8, %s' % (v(t0), v(pos16), v(t0)))
    a('s_add_u32 s55, s58, %d' % KI)
    a('v_add_u32 %s, s55, %s' % (v(t0), v(t0)))
    for kk in range(1, 4):
        a('v_xor_b32 %s, %d, %s' % (v(t0 + kk), kk << 6, v(t0)))
    alt, both, alts, boths = T + 13, T + 14, T + 15, T + 21
    a('v_mov_b32 %s, %s' % (v(alt), v(vCons)))
    a('v_lshlrev_b32 %s, 1, %s' % (v(both), v(vCons)))
    a('v_add_u32 %s, 0x%x, %s' % (v(both), WS_L2D, v(both)))
    a('v_add_u32 %s, 0x%x, %s' % (v(alts), ST0, v(vStC)))
    a('v_lshlrev_b32 %s, 1, %s' % (v(boths), v(vStC)))
    a('v_add_u32 %s, 0x%x, %s' % (v(boths), WS_L2D + ST0, v(boths)))
    page_break(True)
    behind_k = 2 + NVA + 2 + NPRE + (PRO >= 1) + OPT.get('cp2', 0)
    a('s_waitcnt vmcnt(%d)' % (8 - KW + behind_k))
    stamp('K part')
    loads = [(vSs[0], alts, sLb, 0), (r, alt, sLb, BUF_A), (r + 4, alt, sLb, BUF_X)]
    for x in loads:
        gload(*x)
    issue_v(NVA, 8)

    def wo_etc():
        issue_wo()
        if OPT['w2e']:
            issue_w2()
        issue_w13(0, FE)
    if not WOL:
        wo_etc()
    a('s_waitcnt vmcnt(%d)' % (behind_k + 3 + NVB + NLATE))
    stamp('K landed')
    for g in range(2):
        for kk in range(4):
            a('ds_read_b128 %s, %s offset:%d' % (v(vK + 16 * g + 4 * kk, 4), v(t0 + kk), 4096 * g))
    a('s_branch L_e1ent')
    a.label('L_e1top')
    tick()
    a('v_sub_u32 %s, %s, %s' % (v(alt), v(both), v(alt)))
    a('v_sub_u32 %s, %s, %s' % (v(alts), v(boths), v(alts)))
    for x in loads:
        gload(*x)
    if NLATE + NVB:
        a('s_waitcnt vmcnt(0)')
    a.label('L_e1ent')
    a('s_waitcnt vmcnt(%d)' % (NLATE + NVB))
    a('v_bitop3_b32 %s, %s, %s, %s bitop3:0x7e' % (v(T + 23), v(r), v(r + 4), s(sTag)))
    a('v_cmp_ne_u32 %s, %s, %s' % (s(sT1, 2), s(sTag), v(vSs[0] + 1)))
    a('v_cmp_ne_u32_sdwa vcc, %s, %s src0_sel:BYTE_0 src1_sel:DWORD' % (v(T + 23), v(vZero)))
    a('s_or_b64 vcc, vcc, %s' % s(sT1, 2))
    a('s_cbranch_vccnz L_e1top')
    stamp('L0 E1 ok')
    if OPT['fl']:
        flag_store(sE)
    if OPT.get('xw', 0) & 1:
        only_if(True, wo_etc)
    elif WOL and OPT['wopos'] == 0:
        wo_etc()
    WOETC.append(wo_etc)
    a('v_cmp_ne_u32 vcc, %s, %s' % (s(sXcc), v(vSs[0] + 3)))
    c, x, y = vC, vSs[0], r + 4
    ln_spec(x)
    mask_tag(y)
    a('v_mov_b32 %s, %s' % (v(c + 1), v(c)))
    a('v_permlane32_swap_b32 %s, %s' % (v(y + 1), v(y + 3)))
    mask_tag(r)
    a('v_permlane16_swap_b32 %s, %s' % (v(c), v(c + 1)))
    a('v_add_f32 %s, %s, %s' % (v(c), v(c), v(c + 1)))
    a('v_add_f32 %s, %s, %s' % (v(y + 1), v(y + 1), v(y + 3)))
    a('v_permlane32_swap_b32 %s, %s' % (v(y), v(y + 2)))
    dpp('v_add_f32', c, c, c, 'row_ror:8')
    a('v_add_f32 %s, %s, %s' % (v(y), v(y), v(y + 2)))
    a('v_permlane32_swap_b32 %s, %s' % (v(r + 1), v(r + 3)))
    dpp('v_add_f32', c, c, c, X1)
    a('v_add_f32 %s, %s, %s' % (v(r + 1), v(r + 1), v(r + 3)))
    a('v_permlane16_swap_b32 %s, %s' % (v(y), v(y + 1)))
    dpp('v_add_f32', c, c, c, X2)
    a('v_add_f32 %s, %s, %s' % (v(y), v(y), v(y + 1)))
    a('v_mul_f32 %s, %s, %s' % (v(c), s(sInv512), v(c)))
    a('v_mov_b32 %s, %s' % (v(c + 1), v(c)))
    a('v_permlane32_swap_b32 %s, %s' % (v(r), v(r + 2)))
    dpp('v_add_f32', vCq, y, y, 'row_ror:8')
    a('v_permlane32_swap_b32 %s, %s' % (v(c), v(c + 1)))
    a('v_add_f32 %s, %s, %s' % (v(r), v(r), v(r + 2)))
    bf16r(vMean, c)
    if OPT['fast']:
        a('s_cbranch_vccnz L_slowtail')


def CLEAN():
    return OPT['clean'] if FAST[0] else 0


def tail():
    for layer in range(2):
        pre = 'L%d' % layer
        k1, k2, k4 = 3 * layer, 3 * layer + 1, 3 * layer + 2

        def spec(x):
            mask_tag(x)
            red_a(x, r)
        if layer == 1:
            a('; ---- layer 1: x slice, query projection partials')
            set_tags(k1)
            if OPT['pages'] == 1:
                page_break()
            if OPT['probe'] == 3:
                race_pick()
            elif OPT['probe'] and OPT['vlate']:
                count_votes()
            if CLEAN():
                clean_prep()
            g_pace(1)
            x_gather(1, G_D)
            stamp(pre + ' E5 ok')
            x_to_lds(k1)
            a('s_waitcnt lgkmcnt(0)')
            proj(vWQ, k1, layer)
            stamp(pre + ' Q pub')
            a('; ---- layer 1: gather q')
            l_gather(k1, spec, ln_spec, [ln_mean])
            stamp(pre + ' E1 ok')
        red_b(r, r)
        a('v_fma_f32 %s, -%s, %s, %s' % (v(r), v(vMean), v(vCq), v(r)))
        a('v_cvt_pk_bf16_f32 %s, %s, %s' % (v(r), v(r), v(r)))
        a('ds_write_b16 %s, %s offset:%d' % (v(vQw), v(r), QB))
        if layer == 1 and CLEAN() & 1 and not OPT['cend'] & 1:
            clean_x()
        ln_rstd_a()
        if layer == 0 and WOL and OPT['wopos'] == 1:
            WOETC[0]()
        a('s_waitcnt lgkmcnt(0)')
        stamp('z%d qw' % layer)
        a('s_barrier')
        stamp('z%d qb' % layer)
        a('; ---- layer %d: attention over this member\'s 128 keys' % layer)
        for kk in range(4):
            a('ds_read_b128 %s, %s offset:%d' % (v(vA + 4 * kk, 4), v(vOpR), QB + 64 * kk))
        ln_rstd_b(True)
        set_tags(k2)
        for kk in range(4):
            lgkm(3 - kk)
            for g in range(2):
                mfma(vD + 4 * g, vA + 4 * kk, vK + 16 * g + 4 * kk, vD + 4 * g if kk else None)
        stamp('z%d qk' % layer)
        if layer == 0:
            if OPT.get('xw', 0) & 1:
                only_if(False, WOETC[0])
            elif WOL and OPT['wopos'] == 2:
                WOETC[0]()
            if NVB:
                a('s_waitcnt vmcnt(%d)' % (4 + FE + 2 * OPT['w2e']))
                a('s_barrier')
            tr_reads(vV, trq, VI, 4, 8192, 1024)
        sg = vSt
        mx, e0 = T, T + 1
        a('v_max_f32 %s, %s, %s' % (v(mx), v(vD), v(vD + 4)))
        a('v_cndmask_b32 %s, %s, %s, %s' % (v(e0), v(vD), v(vD + 4), s(sM0, 2)))
        for ro in (8, 4, 2, 1):
            dpp('v_max_f32', mx, mx, mx, 'row_ror:%d' % ro)
        a('v_mul_f32 %s, %s, %s' % (v(sg), v(vCs), v(mx)))
        a('v_fma_f32 %s, %s, %s, -%s' % (v(e0), v(e0), v(vCs), v(sg)))
        a('v_exp_f32 %s, %s' % (v(sg + 1), v(e0)))
        stamp('z%d ex' % layer)
        a('ds_write_b32 %s, %s offset:%d' % (v(vMw), v(sg), MB))
        a('v_cvt_pk_bf16_f32 %s, %s, %s' % (v(e0), v(sg + 1), v(sg + 1)))
        a('ds_write_b16 %s, %s offset:%d' % (v(vPw), v(e0), PB))
        if layer == 0:
            tr_reads(vV + 16, trq + 1, VI, 4, 8192, 1024)
        for ro in (8, 4, 2):
            dpp('v_add_f32', sg + 1, sg + 1, sg + 1, 'row_ror:%d' % ro)
        a('s_waitcnt lgkmcnt(0)')
        stamp('z%d pw' % layer)
        a('s_barrier')
        stamp('z%d pb' % layer)
        mm = T + 4
        a('ds_read_b32 %s, %s offset:%d' % (v(mm), v(vMr), MB))
        for kk in range(4):
            a('ds_read_b128 %s, %s offset:%d' % (v(vA + 4 * kk, 4), v(vOpR), PB + 64 * kk))
        dpp('v_add_f32', sg + 1, sg + 1, sg + 1, 'row_ror:1')
        dpp('v_add_f32', sg + 1, sg + 1, sg + 1, 'row_bcast:15', 0xa)
        a('s_mov_b64 exec, 0x10000')
        lstore('global_store_dwordx4', v(vStP), v(sg, 4), 512 * (k2 & 1))
        a('s_mov_b64 exec, -1')

        def sel(kk):
            a('v_cndmask_b32 %s, %s, %s, %s' % (v(T + 8 + kk), v(vD + 8 * kk), v(vD + 8 * kk + 4), s(sM0, 2)))

        def bc(kk):
            a('v_mov_b32_dpp %s, %s quad_perm:[%d,%d,%d,%d] row_mask:0xf bank_mask:0xf' % (v(T + 16 + kk), v(mm), kk, kk, kk, kk))

        def acc(kk):
            a('%s %s, %s, %s' % ('v_fmac_f32' if kk else 'v_mul_f32', v(T), v(T + 16 + kk), v(T + 8 + kk)))
        lgkm(3)
        stamp('z%d pr' % layer)
        mfma(vD, vA, vV)
        dpp('v_max_f32', mx, mm, mm, X1)
        mfma(vD + 4, vA, vV + 16)
        lgkm(2)
        mfma(vD + 8, vA + 4, vV + 4)
        dpp('v_max_f32', mx, mx, mx, X2)
        mfma(vD + 12, vA + 4, vV + 20)
        a('v_sub_f32 %s, %s, %s' % (v(mm), v(mm), v(mx)))
        lgkm(1)
        mfma(vD + 16, vA + 8, vV + 8)
        a('v_exp_f32 %s, %s' % (v(mm), v(mm)))
        mfma(vD + 20, vA + 8, vV + 24)
        lgkm(0)
        bc(0)
        mfma(vD + 24, vA + 12, vV + 12)
        bc(1)
        bc(2)
        mfma(vD + 28, vA + 12, vV + 28)
        stamp('z%d pv' % layer)
        stats_load(k2)
        sel(0)
        sel(1)
        acc(0)
        acc(1)
        sel(2)
        acc(2)
        bc(3)
        a('s_mov_b32 exec_hi, 0')
        sel(3)
        acc(3)
        a('v_bfi_b32 %s, %s, %s, %s' % (v(T), v(vTagM), s(sTag + k2), v(T)))
        lstore('global_store_dword', v(vPubL), v(T), BUF_A if k2 % 2 == 0 else BUF_B)
        a('s_mov_b32 exec_hi, -1')
        stamp(pre + ' S pub')
        if layer == 0 and OPT['fl'] and OPT['flp'] == 1:
            a('s_waitcnt vmcnt(0)')
            flag_store(sTag + 6)
            stats_load(k2)
            lstore('global_store_dword', v(vStP), v(vSt), 512 * (k2 & 1))
        a('; ---- layer %d: combine the 8 key blocks, output projection partials' % layer)
        mj, mg, mo, lo = T, T + 1, vC, vC + 1

        def sm_spec(x):
            dpp('v_max_f32', mj, x, x, X1)
            a('v_mov_b32 %s, %s' % (v(mo), v(x)))
            a('v_mov_b32 %s, %s' % (v(lo), v(x + 1)))

        def sm0():
            allred('v_max_f32', mj, T + 2, [1])
            dpp('v_max_f32', mg, mj, mj, 'row_ror:8')
            allred('v_max_f32', mg, T + 2, [4, 5])

        def sm1():
            a('v_sub_f32 %s, %s, %s' % (v(mo), v(mo), v(mg)))
            a('v_sub_f32 %s, %s, %s' % (v(mj), v(mj), v(mg)))
            a('v_exp_f32 %s, %s' % (v(mo), v(mo)))
            a('v_exp_f32 %s, %s' % (v(mj), v(mj)))
            a('v_mul_f32 %s, %s, %s' % (v(mo), v(mo), v(lo)))
            allred('v_add_f32', mo, T + 2, [0, 1, 3, 4, 5])
            a('v_rcp_f32 %s, %s' % (v(mo), v(mo)))
            a('v_mul_f32 %s, %s, %s' % (v(vF), v(mj), v(mo)))

        def spec2(x):
            mask_tag(x)
            a('v_pk_mul_f32 %s, %s, %s op_sel_hi:[1,0]' % (v(x + 2, 2), v(x + 2, 2), v(vF, 2)))
            a('v_pk_mul_f32 %s, %s, %s op_sel_hi:[1,0]' % (v(x, 2), v(x, 2), v(vF, 2)))
            red_a(x, r)
        l_gather(k2, spec2, sm_spec, [sm0, sm1], hook=(lambda: flag_store(sTag + 6)) if layer == 0 and OPT['fl'] and OPT['flp'] == 0 else None)
        stamp(pre + ' E2 ok')
        red_b(r, r)
        a('v_cvt_pk_bf16_f32 %s, %s, %s' % (v(r), v(r), v(r)))
        a('ds_write_b16 %s, %s offset:%d' % (v(vQw), v(r), OB))

        def ffn_rest():
            issue_w13(FE, 4)
            if not OPT['w2e']:
                issue_w2()
        if layer == 0 and OPT['ff'] in (2, 3):
            ffn_rest()
        if layer == 0 and OPT['ff'] == 6:
            issue_w13(FE, 4)
        if layer == 0 and OPT['ff'] == 7:
            if OPT.get('xw', 0) & 2:
                only_if(True, lambda: issue_w13(FE, 2))
            else:
                issue_w13(FE, 2)
        a('s_waitcnt lgkmcnt(0)')
        a('s_barrier')
        if layer == 0 and OPT['ff'] == 5:
            gemv_publish_g(4, vWO, OB, 0, G_C, tr=True, mid=lambda: issue_w13(FE, 2), post=lambda: issue_w13(2, 4))
            issue_w2()
        elif layer == 0 and OPT['probe'] == 2:
            gemv_publish_g(4, vWO, OB, 0, G_C, tr=True, mid=race_prep, post=race_start)
        else:
            gemv_publish_g(4, vWO, OB, 2 * layer, G_C, tr=layer == 0)
        stamp(pre + ' O pub')
        a('; ---- layer %d: x slice, gate/up partials' % layer)
        set_tags(k4)
        if layer == 0 and OPT['ff'] == 1:
            nrest = 4 - FE + (0 if OPT['w2e'] else 2)
            if OPT['fl']:
                a('v_lshlrev_b32 %s, 7, %s' % (v(T + 5), v(vL)))
                a('v_add_u32 %s, %d, %s' % (v(T + 5), WS_F, v(T + 5)))
                flag_load()
            ffn_rest()
            if OPT['fl']:
                flag_wait(nrest)
            else:
                a('s_waitcnt vmcnt(%d)' % nrest)
            stamp('G0 ack')
            x_gather(0, G_C, work=probe_near if OPT['probe'] else None)
        else:
            flush_deferred()
            if layer == 0 and OPT['ff'] == 4:
                ffn_rest()
            if layer == 0 and OPT['ff'] == 7:
                if OPT.get('xw', 0) & 2:
                    only_if(False, lambda: issue_w13(FE, 2))
                if OPT.get('xw', 0) & 4:
                    only_if(False, lambda: a('s_waitcnt vmcnt(0)'))
                issue_w13(2, 4)
            if layer == 0 and OPT['ff'] in (6, 7):
                issue_w2()
            if OPT['pages'] == 2:
                page_break()
            if layer == 0 and OPT.get('otouch'):
                sk = newlabel('noout')
                a('s_cmp_lg_u32 %s, 0' % s(sGam))
                a('s_cbranch_scc1 %s' % sk)
                a('global_load_ushort %s, %s, s[22:23]' % (v(T + 22), v(vXw)))
                a.label(sk)
            if layer == 0 and OPT['opre'] and OPT['clean'] & 8:
                sk = newlabel('noout')
                a('s_cmp_lg_u32 %s, 0' % s(sGam))
                a('s_cbranch_scc1 %s' % sk)
                a('s_mov_b32 exec_lo, 0x000f000f')
                a('s_mov_b32 exec_hi, 0x000f000f')
                a('global_store_short %s, %s, s[22:23] sc1' % (v(vXw), v(vZero)))
                a('s_mov_b64 exec, -1')
                a.label(sk)
            if layer == 0 and OPT['probe'] == 2:
                assert OPT['ff'] == 4
                race_finish(1 + 4 - FE + 2)
                if not OPT['vlate']:
                    count_votes()
            if layer == 0 and OPT['probe'] == 1:
                probe_near()
                if not OPT['vlate']:
                    count_votes()
            if layer == 0 and OPT['fl']:
                a('v_lshlrev_b32 %s, 7, %s' % (v(T + 5), v(vL)))
                a('v_add_u32 %s, %d, %s' % (v(T + 5), WS_F, v(T + 5)))
                flag_load()
                flag_wait(0)
            if layer == 0 and OPT.get('g0w'):
                flush_deferred()
                a('s_waitcnt vmcnt(%d)' % OPT['g0w'])
            elif layer or OPT['ff'] != 3:
                g_pace(2 * layer)
            else:
                for i in range(OPT.get('xs', 0)):
                    a('s_nop 15')
                stamp('G0 ack')
            x_gather(2 * layer, G_C)
        stamp(pre + ' E3 ok')
        x_to_lds(k4)
        a('s_cmp_eq_u32 %s, 3' % s(sW))
        a('s_waitcnt lgkmcnt(0)')
        idle = newlabel('idle')

        proj(vW13, k4, layer, wsrc=[(vTr, W1 - WO, 4096, 512), (vTr, W3 - WO, 4096, 512)] if layer == 0 else None, skip=idle)
        stamp(pre + ' G pub')
        if layer == 1 and CLEAN():
            a('v_mov_b32 %s, %s' % (v(vKeep), v(T)))
        a('; ---- layer %d: gather gate/up, activation' % layer)

        def w2_regs():
            a('v_and_b32 %s, 32, %s' % (v(T + 1), v(vL)))
            a('v_lshlrev_b32 %s, 6, %s' % (v(T + 1), v(T + 1)))
            a('v_sub_u32 %s, %s, %s' % (v(T + 1), v(vTr), v(T + 1)))
            tr_reads(vW2, vTr, W2 - WO, 1, 4096, 512)
            tr_reads(vW2 + 4, T + 1, W2 - WO + 4096, 1, 4096, 512)

        def ln_all():
            w2_regs()
            ln_mean()
            ln_rstd_a()
            ln_rstd_b(False)
        if layer == 0:
            loads = [(r, vCons, sLb, BUF_A), (r + 4, vCons, sLb, BUF_X)]

            def data():
                ln_spec(vSs[0])
                for x in loads:
                    gload(*x)

            def spec4():
                mask_tag(r)
                mask_tag(r + 4)
                red_a(r, r)
            flush_deferred()
            poll([(vSs[0], vStC, sLb, 0)], lambda: chk_stats(vSs[0], k4), data, cnt=1, issued=True)
            poll(loads, lambda: chk_byte([r, r + 4], sTag + k4), spec4, work=ln_all, issued=True)
            red_a(r + 4, r + 4)
            red_b(r + 4, vCg)
        else:
            l_gather(k4, spec, ln_spec, [ln_mean, ln_rstd_a, lambda: ln_rstd_b(False)])
        stamp(pre + ' E4 ok')
        red_b(r, r)
        a('v_fma_f32 %s, -%s, %s, %s' % (v(r), v(vMean), v(vCg), v(r)))
        a('v_mul_f32 %s, %s, %s' % (v(r), v(r), v(vRs)))
        bf16r(r, r)
        a('v_mul_f32 %s, %s, %s' % (v(r + 1), s(sNl2e), v(r)))
        a('v_exp_f32 %s, %s' % (v(r + 1), v(r + 1)))
        a('v_and_b32_dpp %s, %s, %s row_shl:4 row_mask:0xf bank_mask:0xf' % (v(r + 2), v(r), v(vHmask)))
        a('v_add_f32 %s, 1.0, %s' % (v(r + 1), v(r + 1)))
        a('v_rcp_f32 %s, %s' % (v(r + 1), v(r + 1)))
        a('v_mul_f32 %s, %s, %s' % (v(r), v(r), v(r + 1)))
        bf16r(r, r)
        a('v_mul_f32 %s, %s, %s' % (v(r), v(r), v(r + 2)))
        a('v_cvt_pk_bf16_f32 %s, %s, %s' % (v(r), v(r), v(r)))
        a('ds_write_b16 %s, %s' % (v(vHw), v(r)))
        if layer == 0:
            join = newlabel('join')

            def idle_path(idle=idle, join=join, w2_regs=w2_regs):
                a.label(idle)
                w2_regs()
                a('s_branch %s' % join)
            deferred.append(idle_path)
            a.label(join)
        else:
            join = newlabel('join')

            def idle_path1(idle=idle, join=join):
                a.label(idle)
                a('v_mov_b32 %s, %s' % (v(vKeep), s(sTag + 5)))
                a('s_cmp_lg_u32 s2, 255')
                a('s_cbranch_scc1 %s' % join)
                a('s_add_u32 s55, %s, 16' % s(sE))
                a('v_mov_b32 %s, s55' % v(T + 2))
                a('s_mov_b64 exec, 1')
                a('global_store_dword %s, %s, s[26:27] sc1' % (v(vZero), v(T + 2)))
                a('s_mov_b64 exec, -1')
                a('s_branch %s' % join)
            deferred.append(idle_path1)
            a.label(join)
        a('s_waitcnt lgkmcnt(0)')
        a('s_barrier')
        if layer == 0 and OPT['probe'] == 3:
            gemv_publish_g(2, vW2, HB, 1, G_D, mid=race_prep, post=race_start)
        else:
            gemv_publish_g(2, vW2, HB, 2 * layer + 1, G_D, mid=clean_a if layer == 1 and CLEAN() & 2 and not OPT['cend'] & 2 else None)
        stamp(pre + ' D pub')

    a('; ---- final sum (group 0 only)')
    if OPT.get('opack'):
        a('v_mov_b32 %s, 0xffff' % v(T + 11))
        a('v_and_b32 %s, 0x7c, %s' % (v(T + 12), v(vXw)))
    if CLEAN() & 4:
        fin = newlabel('last')
        if OPT.get('cx0', 1):
            a('s_cmp_ge_u32 %s, 4' % s(sGam))
            a('s_cbranch_scc1 L_fin')
        clean_b_prep()
        a('s_cmp_eq_u32 %s, 0' % s(sGam))
        a('s_cbranch_scc1 %s' % fin)

        def clean_all():
            clean_b()
            if OPT['cend'] & 2:
                clean_a()
            if OPT['cend'] & 1:
                clean_x()
        a('s_waitcnt vmcnt(%d)' % 0)
        clean_all()
        a('s_branch L_fin')
        flush_deferred(False)
        a.label(fin)
        g_pace(3)
        x_gather(3, G_D, work=clean_all, cnt=1 + bin(OPT['cend'] & 3).count('1'))
    else:
        if OPT.get('wb1') and FAST[0]:
            sk = newlabel('nowb')
            a('s_lshl_b32 s55, s2, 2')
            a('s_add_u32 s55, s55, %s' % s(sW))
            a('s_cmp_lg_u32 s55, %d' % (64 * 4))
            a('s_cbranch_scc1 %s' % sk)
            if OPT['wb1'] == 2:
                a('s_waitcnt vmcnt(0)')
            a('buffer_wbl2 sc1')
            a.label(sk)
        a('s_cmp_lg_u32 %s, 0' % s(sGam))
        a('s_cbranch_scc1 L_fin')
        g_pace(3)
        x_gather(3, G_D)
    sc = ' sc1' if OPT['clean'] & 8 else ''
    if OPT.get('opack'):
        a('v_mov_b32 %s, %s' % (v(T + 1), v(T)))
        a('v_permlane16_swap_b32 %s, %s' % (v(T), v(T + 1)))
        a('v_bfi_b32 %s, %s, %s, %s' % (v(T), v(T + 11), v(T), v(T + 1)))
        if OPT['opack'] == 2:
            a('v_mov_b32 %s, %s' % (v(T + 1), v(T)))
            a('v_permlane32_swap_b32 %s, %s' % (v(T), v(T + 1)))
            a('s_mov_b64 exec, 15')
            a('global_store_dwordx2 %s, %s, s[22:23]%s' % (v(T + 12), v(T, 2), sc))
        else:
            a('s_mov_b32 exec_lo, 15')
            a('s_mov_b32 exec_hi, 15')
            a('global_store_dword %s, %s, s[22:23]%s' % (v(T + 12), v(T), sc))
    else:
        a('s_mov_b32 exec_lo, 0x000f000f')
        a('s_mov_b32 exec_hi, 0x000f000f')
        a('global_store_short %s, %s, s[22:23]%s' % (v(vXw), v(T), sc))


front()
FAST[0] = bool(OPT['fast'])
tail()
a.label('L_fin')
if OPT.get('dirty'):
    if 'dx' in OPT:
        a('s_and_b32 s55, s2, 7')
        a('s_cmp_eq_u32 s55, 0')
        a('s_cbranch_scc%d L_nodirty' % OPT['dx'])
    a('s_mov_b64 exec, -1')
    a('s_lshl_b32 s55, s2, 2')
    a('s_add_u32 s55, s55, %s' % s(sW))
    a('s_lshl_b32 s55, s55, 15')
    a('s_add_u32 s55, s55, 0x400000')
    a('v_lshl_add_u32 %s, %s, 4, s55' % (v(T + 1), v(vL)))
    for i in range(OPT['dirty']):
        a('global_store_dwordx4 %s, %s, s[26:27]' % (v(T + 1), v(vD, 4)))
        a('v_add_u32 %s, 1024, %s' % (v(T + 1), v(T + 1)))
if OPT.get('dirty'):
    a.label('L_nodirty')
if OPT.get('dbgpol'):
    a('s_mov_b64 exec, -1')
    a('v_xor_b32 %s, %s, %s' % (v(T + 2), v(vConsG), v(vConsG0)))
    a('v_readfirstlane_b32 s6, %s' % v(T + 2))
    a('s_cmp_lg_u32 s6, 0')
    a('s_cselect_b32 s6, 1, 0')
    a('s_lshr_b32 s7, %s, 2' % s(sXcc))
    a('s_xor_b32 s6, s6, s7')
    a('s_lshr_b32 s7, %s, 1' % s(sW))
    a('s_xor_b32 s6, s6, s7')
    a('s_lshl_b32 s6, s6, 4')
    a('s_lshl_b32 s6, 1, s6')
    a('v_mov_b32 %s, s6' % v(T + 2))
    a('s_and_b32 s7, %s, 7' % s(sXcc))
    a('s_lshl_b32 s7, s7, 2')
    a('v_mov_b32 %s, s7' % v(T + 3))
    a('s_mov_b64 exec, 1')
    a('global_atomic_add %s, %s, s[24:25]' % (v(T + 3), v(T + 2)))
if OPT.get('wb'):
    a('buffer_wbl2 sc1')
if OPT.get('delay'):
    if 'only' in OPT:
        a('s_cmp_lg_u32 s2, %d' % OPT['only'])
        a('s_cbranch_scc1 L_end')
    a.label('L_dly')
    a('s_memrealtime s[6:7]')
    a('s_waitcnt lgkmcnt(0)')
    a('s_sub_u32 s8, s6, s100')
    a('s_cmp_lt_u32 s8, %d' % OPT.get('until', 3000))
    a('s_cbranch_scc1 L_dly')
if DIAG:
    a('s_mov_b64 exec, -1')
    a('s_memrealtime s[4:5]')
    a('s_waitcnt lgkmcnt(0)')
    a('v_mov_b32 %s, 0' % v(T))
    for i in range(len(stamps)):
        a('v_writelane_b32 %s, %s, %d' % (v(T), s(stamp_regs[i]), i))
    a('v_writelane_b32 %s, s4, %d' % (v(T), len(stamps)))
    a('v_xor_b32 %s, %s, %s' % (v(T + 2), v(vConsG), v(vConsG0)))
    a('v_readfirstlane_b32 s6, %s' % v(T + 2))
    a('v_writelane_b32 %s, s6, 62' % v(T))
    a('v_writelane_b32 %s, s12, 61' % v(T))
    a('v_writelane_b32 %s, s13, 60' % v(T))
    a('v_writelane_b32 %s, %s, 63' % (v(T), s(sXcc)))
    a('s_lshl_b32 s55, s2, 2')
    a('s_add_u32 s55, s55, %s' % s(sW))
    a('s_lshl_b32 s55, s55, 8')
    a('s_add_u32 s55, s55, %d' % WS_DIAG)
    a('v_lshl_add_u32 %s, %s, 2, s55' % (v(T + 1), v(vL)))
    a('global_store_dword %s, %s, s[26:27]' % (v(T + 1), v(T)))
a.label('L_end')
a('s_endpgm')
flush_deferred(False)
a.label('L_fastend')
if OPT['fast']:
    a('; ==== the same phases with write-through stores: taken when the group is spread over several XCDs')
    a.label('L_slowtail')
    FAST[0] = False
    a.hist = []
    a('s_nop 1')
    tail()
    a('s_branch L_fin')
    flush_deferred(False)
    a('s_endpgm')
a.raw('''.section .rodata,"a"
.p2align 6
.amdhsa_kernel %s_kernel
  .amdhsa_next_free_vgpr %d
  .amdhsa_next_free_sgpr 102
  .amdhsa_accum_offset %d
  .amdhsa_group_segment_fixed_size 0
  .amdhsa_kernarg_size 96
  .amdhsa_user_sgpr_count 2
  .amdhsa_user_sgpr_kernarg_segment_ptr 1
  .amdhsa_system_sgpr_workgroup_id_x 1
  .amdhsa_float_denorm_mode_32 3
.end_amdhsa_kernel''' % (NAME, NVGPR, NVGPR))
sys.stdout.write(a.text())
if DIAG:
    sys.stderr.write('STAMPS ' + '|'.join(stamps + ['end']) + '\n')
sys.stderr.write('nops inserted: %d\n' % a.nops)
```

```python
import sys, math, struct
from asm import Asm

NAME = 'interleave_layers__sliding_block_cached__glu_gated_swiglu__decode'
OPT = dict(diag=0, fast=1, nt=1, kw=5, fe=0, wol=1, probe=3, vw=1, thr=90, pages=2, cnt=0, early=2, d0=0, refresh=0, spipe=1, late_rs=1, na=0, nsl=0, w2e=0, ff=7, vlate=1, fl=0, flp=0, pad=0, nva=8, ksplit=0, wopos=0, ool=0, stg=1, vq=0, clean=0, cend=1, opre=1)
for a_ in sys.argv[1:]:
    k_, v_ = a_.split('=')
    OPT[k_] = int(v_)
DIAG = OPT['diag']
NT = {0: '', 1: ' nt', 2: ' sc1 nt', 3: ' sc0 sc1 nt', 4: ' sc0 nt', 5: ' sc1', 6: ' sc0 sc1'}[OPT['nt']]
STAGE = not DIAG or DIAG == 6

XB, ONES, QB, OB, HB, MB, DUMMY, PB = 0, 128, 256, 512, 768, 896, 960, 1024
WQ, VI, WO = 4096, 20480, 53248
W1, W3, W2 = WO + 16384, WO + 24576, WO + 32768
KI = WO + 38912
LDS_BYTES = KI + 32768
WS_F = 0x10000
WS_L, WS_P, WS_G, WS_DIAG = 0x40000, 0xc0000, 0x100000, 0x200000
WS_L2D = 0x140000 + 0x100000 * OPT['pad']
BUF_A, BUF_X, BUF_B, STATS, VOTES = 0, 1024, 2048, 3072, 7168
ST0 = 8192
PAD = OPT['pad']
GOFF = 4096 * PAD
G_C, G_D, G_H = -GOFF, (2048 << PAD) - GOFF, 1024 << PAD
G_X = (0x20000 << PAD) | 0x2000
WSH = 1 - PAD

vL, vCons, vPubL, vPw, vPubG, vStP, vStC, vTagM, vStP2 = range(1, 10)
vXw, vQw, vHw, vOpR, vXopR, vConsG, vConsG0, vCs, vZero, vMw = range(10, 20)
trq, vTr, vHmask, vX, vCq, vCg, vMean, vRs = 20, 22, 23, 24, 25, 26, 27, 28
vMr, vF = 29, 30
vWQ, vK, vV, vWO, vW13, vW2 = 32, 48, 80, 112, 128, 144
wo0, wo1, f0, f1, vPre, vVo = 144, 145, 146, 147, 148, 149
T = 152
vC = T + 12
vA = 176
vD = 192
vP = 224
vSt, vSt4, vKeep = 232, 236, 238
vCl = 20
vDs, vSs = [240, 244], [248, 252]
NVGPR = 256
sW, sJ, sGam, sPr, sE, sC0, sCnt, sXcc, sTo = 28, 29, 30, 31, 32, 33, 34, 35, 36
sLb, sGb0, sGb1 = 38, 40, 14
sPc, sT1 = 42, 44
sCs, sMaskHi, sInv512, sEps, sNl2e = 50, 51, 52, 53, 54
sM0, sM1, sHi, sCl = 56, 42, 46, 44
sTag = 60

a = Asm()
stamp_regs = list(range(70, 102, 2))
stamps = []
nstamp = [0]
lbl = [0]
FAST = [False]


def v(n, cnt=1):
    return 'v%d' % n if cnt == 1 else 'v[%d:%d]' % (n, n + cnt - 1)


def s(n, cnt=1):
    return 's%d' % n if cnt == 1 else 's[%d:%d]' % (n, n + cnt - 1)


def stamp(name):
    nstamp[0] += 1
    if OPT.get('delay') == 3 and OPT.get('at', 1) == nstamp[0]:
        a('s_memrealtime s[100:101]')
        sys.stderr.write('delay anchored at ' + name + '\n')
    keep = {0: False, 1: name[:2] not in ('L1', 'x ') and name[0] not in 'Gz', 2: name[:2] == 'L1', 5: name[0] == 'G' or name[3:] in ('O pub', 'D pub', 'E3 ok', 'E5 ok') or name in ('L0 E1 ok', 'L0 S pub', 'L0 E2 ok'),
            6: False, 7: name[:2] in ('L1', 'x '), 8: name[:2] == 'z1' or name in ('L1 E1 ok', 'L1 S pub', 'L1 E2 ok', 'L1 O pub', 'L1 E5 ok', 'L1 Q pub')}[DIAG]
    if not (keep or DIAG and name == 'start'):
        return
    if name not in stamps:
        if len(stamps) >= len(stamp_regs):
            return
        stamps.append(name)
    r = stamp_regs[stamps.index(name)]
    if OPT['cnt'] and name != 'start':
        a('s_sub_u32 %s, 0x40000, %s' % (s(r), s(sTo)))
    else:
        a('%s %s' % ('s_memtime' if DIAG in (7, 8) and name != 'x rt0' else 's_memrealtime', s(r, 2)))


def f32(x):
    return '0x%08x' % struct.unpack('<I', struct.pack('<f', x))[0]


def newlabel(p):
    lbl[0] += 1
    return 'L_%s_%d' % (p, lbl[0])


def lgkm(n):
    a('s_waitcnt lgkmcnt(%d)' % (n if STAGE else 0))


def mfma(d, x, y, c=None):
    a('v_mfma_f32_16x16x32_bf16 %s, %s, %s, %s' % (v(d, 4), v(x, 4), v(y, 4), '0' if c is None else v(c, 4)))


def dpp(op, d, x, y, ctl, rm=0xf):
    a('%s_dpp %s, %s, %s %s row_mask:0x%x bank_mask:0xf' % (op, v(d), v(x), v(y), ctl, rm))


X1, X2 = 'quad_perm:[1,0,3,2]', 'quad_perm:[2,3,0,1]'


def lstore(op, addr, data, off):
    a('%s %s, %s, %s offset:%d%s' % (op, addr, data, s(sLb, 2), off, '' if FAST[0] and not OPT.get('allsc') else ' sc1'))


def gload(d, vo, b, im):
    a('global_load_dwordx4 %s, %s, %s offset:%d sc1' % (v(d, 4), v(vo), s(b, 2), im))


def tick():
    a('s_sub_u32 %s, %s, 1' % (s(sTo), s(sTo)))
    a('s_cbranch_scc1 L_end')


deferred = []


def flush_deferred(jump=True):
    if not deferred:
        return
    l = newlabel('skip')
    if jump:
        a('s_branch %s' % l)
    hist = a.hist
    while deferred:
        a.hist = []
        deferred.pop(0)()
    a.hist = hist
    a.label(l)


def poll(loads, check, spec, work=None, cnt=0, issued=False, backoff=0, onretry=None):
    top, ent = newlabel('poll'), newlabel('pent')
    if not issued:
        for x in loads:
            gload(*x)
    if work:
        work()

    def retry():
        a.label(top)
        tick()
        if backoff:
            a('s_sleep %d' % backoff)
        if onretry:
            onretry()
        for x in loads:
            gload(*x)
        if cnt:
            a('s_waitcnt vmcnt(0)')
        if OPT['ool']:
            a('s_branch %s' % ent)
    if OPT['ool']:
        deferred.append(retry)
    else:
        a('s_branch %s' % ent)
        retry()
    a.label(ent)
    a('s_waitcnt vmcnt(%d)' % cnt)
    check()
    if spec:
        spec()
    a('s_cbranch_vccnz %s' % top)


def ring2(sets, issue, check, spec, cnt1, cnt0, first):
    top, ent, done = newlabel('ring'), newlabel('rent'), newlabel('rdone')

    def retry():
        a.label(top)
        tick()
        issue(sets[0])
        a('s_waitcnt vmcnt(%d)' % cnt1)
        check(sets[1])
        spec(sets[1])
        a('s_cbranch_vccz %s' % done)
        issue(sets[1])
        if first != cnt0:
            a('s_waitcnt vmcnt(%d)' % cnt0)
        if OPT['ool']:
            a('s_branch %s' % ent)
    if OPT['ool']:
        deferred.append(retry)
    else:
        a('s_branch %s' % ent)
        retry()
    a.label(ent)
    a('s_waitcnt vmcnt(%d)' % first)
    check(sets[0])
    spec(sets[0])
    a('s_cbranch_vccnz %s' % top)
    a.label(done)


def chk_byte(regs, tag):
    if len(regs) == 1:
        a('v_cmp_ne_u32_sdwa vcc, %s, %s src0_sel:BYTE_0 src1_sel:BYTE_0' % (v(regs[0]), s(tag)))
    else:
        a('v_bitop3_b32 %s, %s, %s, %s bitop3:0x7e' % (v(T + 23), v(regs[0]), v(regs[1]), s(tag)))
        a('v_cmp_ne_u32_sdwa vcc, %s, %s src0_sel:BYTE_0 src1_sel:DWORD' % (v(T + 23), v(vZero)))


def chk_stats(x, k):
    a('v_cmp_ne_u32 vcc, %s, %s' % (s(sTag + k), v(x + (2 if k % 3 == 1 else 1))))


def red_a(x, c):
    a('v_permlane32_swap_b32 %s, %s' % (v(x + 1), v(x + 3)))
    a('v_add_f32 %s, %s, %s' % (v(c + 1), v(x + 1), v(x + 3)))
    a('v_permlane32_swap_b32 %s, %s' % (v(x), v(x + 2)))
    a('v_add_f32 %s, %s, %s' % (v(c), v(x), v(x + 2)))


def red_b(c, out):
    a('v_permlane16_swap_b32 %s, %s' % (v(c), v(c + 1)))
    a('v_add_f32 %s, %s, %s' % (v(c), v(c), v(c + 1)))
    dpp('v_add_f32', out, c, c, 'row_ror:8')


def mask_tag(x):
    a('v_and_b32 %s, %s, %s' % (v(x), s(sMaskHi), v(x)))


def bf16r(dst, src):
    a('v_cvt_pk_bf16_f32 %s, %s, %s' % (v(dst), v(src), v(src)))
    a('v_and_b32 %s, 0xffff0000, %s' % (v(dst), v(dst)))


def allred(op, x, t, bits):
    for b in bits:
        if b < 4:
            dpp(op, x, x, x, {0: X1, 1: X2, 3: 'row_ror:8'}[b])
        else:
            a('v_mov_b32 %s, %s' % (v(t), v(x)))
            a('v_permlane%d_swap_b32 %s, %s' % (16 if b == 4 else 32, v(x), v(t)))
            a('%s %s, %s, %s' % (op, v(x), v(x), v(t)))


def set_tags(k):
    a('v_mov_b32 %s, %s' % (v(vSt + 2), s(sTag + k)))
    if k % 3 != 1:
        a('v_cndmask_b32 %s, %s, %s, %s' % (v(vSt4 + 1), v(vSt + 2), v(vSt + 3), s(sHi, 2)))


def ln_stats(k, addr=None):
    g = vSt4
    a('v_mul_f32 %s, %s, %s' % (v(T + 7), v(vX), v(vX)))
    a('v_permlane32_swap_b32 %s, %s' % (v(g), v(T + 7)))
    a('v_add_f32 %s, %s, %s' % (v(g), v(g), v(T + 7)))
    allred('v_add_f32', g, None, [0, 1])
    dpp('v_add_f32', g, g, g, 'row_bcast:15', 0xa)
    a('s_mov_b64 exec, %s' % s(sM1, 2))
    lstore('global_store_dwordx2', v(addr or vStP2), v(g, 2), 512 * (k & 1))
    a('s_mov_b64 exec, -1')


def ln_spec(x):
    a('v_permlane32_swap_b32 %s, %s' % (v(x), v(x + 2)))
    a('v_add_f32 %s, %s, %s' % (v(vC), v(x), v(x + 2)))


def ln_mean():
    c = vC
    allred('v_add_f32', c, c + 1, [4, 3, 0, 1])
    a('v_mul_f32 %s, %s, %s' % (v(c), s(sInv512), v(c)))
    a('v_mov_b32 %s, %s' % (v(c + 1), v(c)))
    a('v_permlane32_swap_b32 %s, %s' % (v(c), v(c + 1)))
    bf16r(vMean, c)


def ln_rstd_a():
    c = vC
    a('v_fma_f32 %s, -%s, %s, %s' % (v(c + 1), v(c), v(c), v(c + 1)))
    a('v_max_f32 %s, 0, %s' % (v(c + 1), v(c + 1)))
    bf16r(c + 1, c + 1)
    a('v_add_f32 %s, %s, %s' % (v(c + 1), s(sEps), v(c + 1)))
    bf16r(c + 1, c + 1)
    a('v_sqrt_f32 %s, %s' % (v(c + 1), v(c + 1)))


def ln_rstd_b(scale):
    c = vC
    bf16r(c + 1, c + 1)
    a('v_rcp_f32 %s, %s' % (v(vRs), v(c + 1)))
    if scale:
        a('v_mul_f32 %s, %s, %s' % (v(vCs), s(sCs), v(vRs)))


def stats_load(k, x=vSs[0]):
    gload(x, vStC, sLb, 512 * (k & 1))


def l_gather(k, spec, st_spec, chain, hook=None):
    buf = BUF_A if k % 2 == 0 else BUF_B

    def d_issue(x):
        gload(x, vCons, sLb, buf)
    rf = OPT['refresh'] and OPT['d0']

    def s_issue(x):
        stats_load(k, x)
        if rf:
            d_issue(vDs[0])
    if OPT['d0']:
        d_issue(vDs[0])
    if OPT['spipe']:
        stats_load(k, vSs[1])
        flush_deferred()
        ring2(vSs, s_issue, lambda x: chk_stats(x, k), st_spec, 2 if rf else 1, 3 if rf else 1, 2 + OPT['d0'])
    else:
        flush_deferred()
        poll([(vSs[0], vStC, sLb, 512 * (k & 1))], lambda: chk_stats(vSs[0], k), lambda: st_spec(vSs[0]), cnt=1 + OPT['d0'], issued=True)
    if k >= 3:
        stamp('x st%d' % k)
    if not OPT['d0']:
        d_issue(vDs[0])
        chain[0]()
        d_issue(vDs[1])
    else:
        d_issue(vDs[1])
        chain[0]()
    if hook:
        hook()
    for c in chain[1:]:
        c()
    ring2(vDs, d_issue, lambda x: chk_byte([x], sTag + k), spec, 1, 1, 1)


def x_gather(gi, imm, work=None, cnt=0):
    r = vP
    base = sGb0 if gi < 2 else sGb1

    def spec():
        a('v_pk_add_f32 %s, %s, %s' % (v(r + 2, 2), v(r + 2, 2), v(r + 6, 2)))
        a('v_add_f32 %s, %s, %s' % (v(r + 1), v(r + 1), v(r + 5)))
        mask_tag(r)
        mask_tag(r + 4)
        a('v_add_f32 %s, %s, %s' % (v(r), v(r), v(r + 4)))
        red_a(r, r)
    ad, onretry = vConsG, None
    if OPT.get('alt', 0) >> gi & 1:
        ad = T + 21
        a('v_mov_b32 %s, %s' % (v(ad), v(vConsG)))

        def onretry():
            a('v_xor_b32 %s, 0x%x, %s' % (v(ad), G_X, v(ad)))
    poll([(r, ad, base, imm), (r + 4, ad, base, imm + G_H)], lambda: chk_byte([r, r + 4], sTag + 6 + gi), spec, work=work, cnt=cnt,
         backoff=OPT.get('g%ds' % gi, 0), onretry=onretry)
    red_b(r, r)
    dpp('v_add_f32', r, r, r, 'row_ror:4')
    bf16r(r, r)
    a('v_add_f32 %s, %s, %s' % (v(r), v(r), v(vX)))
    a('v_cvt_pk_bf16_f32 %s, %s, %s' % (v(T), v(r), v(r)))


def x_to_lds(k):
    a('ds_write_b16 %s, %s offset:%d' % (v(vXw), v(T), XB))
    a('v_and_b32 %s, 0xffff0000, %s' % (v(vX), v(T)))
    a('v_and_b32 %s, 0xffff0000, %s' % (v(vSt4), v(T)))
    ln_stats(k)


def tr_pair(dst, addr, off, gstride):
    for g in range(2):
        a('ds_read_b64_tr_b16 %s, %s offset:%d' % (v(dst + 2 * g, 2), v(addr), off + g * gstride))


def proj(wreg, k, layer, wsrc=None, first=False, skip=None):
    rd = vXopR if layer == 0 else vOpR
    a('s_barrier')
    for kk in range(2):
        a('ds_read_b128 %s, %s offset:%d' % (v(vA + 4 * kk, 4), v(rd), XB + 64 * kk))
        if wsrc:
            for cg in range(2):
                ad, off, ks, gs = wsrc[cg]
                tr_pair(wreg + 8 * cg + 4 * kk, ad, off + kk * ks, gs)
    if skip:
        a('s_cbranch_scc1 %s' % skip)
    if not first and OPT['early'] == 1:
        stats_load(k)
    lgkm(7 if wsrc else 1)
    mfma(vD, vA, wreg)
    if wsrc:
        lgkm(5)
    mfma(vD + 4, vA, wreg + 8)
    if not first and OPT['early'] == 2:
        stats_load(k)
    lgkm(2 if wsrc else 0)
    mfma(vD, vA + 4, wreg + 4, vD)
    if wsrc:
        lgkm(0)
    mfma(vD + 4, vA + 4, wreg + 12, vD + 4)
    if not first and OPT['early'] == 0:
        stats_load(k)
    if layer == 1:
        a('s_mov_b32 exec_hi, 0')
    a('v_cndmask_b32 %s, %s, %s, %s' % (v(T), v(vD), v(vD + 4), s(sM0, 2)))
    a('v_bfi_b32 %s, %s, %s, %s' % (v(T), v(vTagM), s(sTag + k), v(T)))
    lstore('global_store_dword', v(vPubL), v(T), BUF_A if k % 2 == 0 else BUF_B)
    if layer == 1:
        a('s_mov_b32 exec_hi, -1')


def tr_reads(dst, addr, base, nk, kstride, gstride):
    for kk in range(nk):
        for g in range(2):
            a('ds_read_b64_tr_b16 %s, %s offset:%d' % (v(dst + 4 * kk + 2 * g, 2), v(addr), base + kk * kstride + g * gstride))


def gemv_publish_g(nk, wreg, src, gi, imm, tr=False, mid=None, post=None):
    for kk in range(nk):
        a('ds_read_b128 %s, %s offset:%d' % (v(vA + 4 * kk, 4), v(vOpR), src + 64 * kk))
        if tr:
            tr_pair(wreg + 4 * kk, vTr, 4096 * kk, 512)
    if mid:
        mid()
    for kk in range(nk):
        lgkm((nk - 1 - kk) * (3 if tr else 1))
        mfma(vD, vA + 4 * kk, wreg + 4 * kk, vD if kk else None)
    if post:
        post()
    if not PAD:
        a('s_mov_b32 exec_hi, 0')
    a('v_bfi_b32 %s, %s, %s, %s' % (v(T), v(vTagM), s(sTag + 6 + gi), v(vD)))
    st = 'global_store_dword %s, %s, %s offset:%d sc1' % (v(vPubG), v(T), s(sGb0 if gi < 2 else sGb1, 2), imm)
    if OPT['na'] and gi:
        a('s_mov_b32 exec_lo, s37')
        a(st)
        a('s_not_b32 exec_lo, s37')
        a(st)
        a('s_mov_b64 exec, -1')
    else:
        a(st)
        if not PAD:
            a('s_mov_b32 exec_hi, -1')


def g_pace(gi):
    flush_deferred()
    if OPT['na'] and gi:
        a('s_waitcnt vmcnt(1)')
        for i in range(OPT['nsl']):
            a('s_nop 7')
    else:
        a('s_waitcnt vmcnt(0)')
    if OPT.get('g%dd' % gi):
        a('s_sleep %d' % OPT['g%dd' % gi])
    stamp('G%d ack' % gi)


def probe_near():
    a('s_not_b32 s4, %s' % s(sE))
    a('s_xor_b32 s55, %s, 8192' % s(sPr))
    a('s_waitcnt lgkmcnt(0)')
    a('s_load_dword s4, s[26:27], %s' % s(sPr))
    a('s_load_dword s5, s[26:27], s55')
    a('s_lshl_b32 s59, %s, 2' % s(sJ))
    a('s_add_u32 s59, s59, %s' % s(sW))
    a('s_lshl_b32 s59, s59, 3')
    a('s_add_u32 s59, s59, %d' % VOTES)
    a('v_mov_b32 %s, s59' % v(T + 1))
    a('v_mov_b32 %s, %s' % (v(T + 3), s(sTag + 2)))
    a('s_waitcnt lgkmcnt(1)')
    a('s_memtime s[8:9]')
    a('s_cmp_eq_u32 s4, %s' % s(sE))
    a('s_cselect_b32 s6, %d, -1' % OPT['thr'])
    a('s_waitcnt lgkmcnt(0)')
    a('s_memtime s[10:11]')
    a('s_waitcnt lgkmcnt(0)')
    a('s_sub_u32 s7, s10, s8')
    a('s_cmp_gt_u32 s7, s6')
    a('s_cselect_b32 s6, 1, 0')
    if DIAG:
        a('s_mov_b32 s12, s7')
    a('v_mov_b32 %s, s6' % v(T + 2))
    a('s_mov_b64 exec, 1')
    lstore('global_store_dwordx2', v(T + 1), v(T + 2, 2), 0)
    a('s_mov_b64 exec, -1')


def race_prep():
    a('s_not_b32 s4, %s' % s(sE))
    a('s_xor_b32 s5, %s, 8192' % s(sPr))
    a('v_mov_b32 %s, %s' % (v(T + 4), s(sPr)))


def race_start():
    a('global_load_dword %s, %s, s[26:27] sc1' % (v(T + 5), v(T + 4)))
    a('s_load_dword s4, s[26:27], s5')


def race_finish(behind):
    a('s_lshl_b32 s59, %s, 2' % s(sJ))
    a('s_add_u32 s59, s59, %s' % s(sW))
    a('s_lshl_b32 s59, s59, 3')
    a('s_add_u32 s59, s59, %d' % VOTES)
    a('v_mov_b32 %s, s59' % v(T + 1))
    a('v_mov_b32 %s, %s' % (v(T + 3), s(sTag + 2)))
    a('s_waitcnt vmcnt(%d)' % behind)
    a('s_cmp_eq_u32 s4, %s' % s(sE))
    a('s_cselect_b32 s6, 1, 0')
    if DIAG:
        a('s_mov_b32 s12, s6')
    a('v_mov_b32 %s, s6' % v(T + 2))
    a('s_mov_b64 exec, 1')
    lstore('global_store_dwordx2', v(T + 1), v(T + 2, 2), 0)
    a('s_mov_b64 exec, -1')
    a('s_waitcnt lgkmcnt(0)')


def race_pick():
    a('s_lshr_b32 s55, %s, 1' % s(sW))
    a('s_xor_b32 s59, s55, 1')
    a('s_mul_i32 s55, s55, 0x%x' % G_X)
    a('s_mul_i32 s59, s59, 0x%x' % G_X)
    a('s_waitcnt vmcnt(1)')
    a('s_cmp_eq_u32 s4, %s' % s(sE))
    a('s_cselect_b32 s55, s59, s55')
    a('v_xor_b32 %s, s55, %s' % (v(vConsG), v(vConsG0)))


def count_votes():
    a('v_and_b32 %s, 31, %s' % (v(T + 4), v(vL)))
    a('v_lshlrev_b32 %s, 3, %s' % (v(T + 4), v(T + 4)))
    a('v_add_u32 %s, %d, %s' % (v(T + 4), VOTES, v(T + 4)))
    if OPT['vw'] and not OPT['vlate']:
        a('s_waitcnt vmcnt(0)')
    a('global_load_dwordx2 %s, %s, %s sc1' % (v(T + 2, 2), v(T + 4), s(sLb, 2)))
    a('s_lshr_b32 s55, %s, 1' % s(sW) if WSH else 's_and_b32 s55, %s, 1' % s(sW))
    a('s_xor_b32 s59, s55, 1')
    a('s_waitcnt vmcnt(0)')
    if OPT['probe'] == 2:
        a('v_cmp_eq_u32 vcc, %s, %s' % (s(sTag + 2), v(T + 3)))
        a('v_cmp_eq_u32 s[6:7], 0, %s' % v(T + 2))
        a('s_and_b32 s4, vcc_lo, s6')
        a('s_andn2_b32 s5, vcc_lo, s6')
    else:
        a('v_xor_b32 %s, %s, %s' % (v(T + 3), s(sTag + 2), v(T + 3)))
        a('v_xor_b32 %s, 1, %s' % (v(T + 2), v(T + 2)))
        a('v_or_b32 %s, %s, %s' % (v(T + 2), v(T + 2), v(T + 3)))
        a('v_cmp_eq_u32 vcc, 0, %s' % v(T + 2))
        a('s_and_b32 s4, vcc_lo, 0x%x' % (0x33333333 if WSH else 0x55555555))
        a('s_and_b32 s5, vcc_lo, 0x%x' % (0xcccccccc if WSH else 0xaaaaaaaa))
    a('s_bcnt1_i32_b32 s4, s4')
    a('s_bcnt1_i32_b32 s5, s5')
    if DIAG:
        a('s_lshl_b32 s13, s4, 8')
        a('s_add_u32 s13, s13, s5')
    a('s_cmp_ge_u32 s4, s5')
    a('s_cselect_b32 s55, s55, s59')
    if OPT['na']:
        a('s_cmp_eq_u32 s55, 0')
        a('s_cselect_b32 s37, 0xffff, %s' % s(sM0))
    a('s_mul_i32 s55, s55, 0x%x' % G_X)
    a('v_xor_b32 %s, s55, %s' % (v(vConsG), v(vConsG0)))


def flag_store(val):
    sk = newlabel('nofl')
    a('s_or_b32 s55, %s, %s' % (s(sJ), s(sW)))
    a('s_cbranch_scc1 %s' % sk)
    a('s_lshl_b32 s55, %s, 7' % s(sGam))
    a('s_add_u32 s55, s55, %d' % WS_F)
    a('v_lshl_add_u32 %s, %s, 2, s55' % (v(T + 21), v(vL)))
    a('v_mov_b32 %s, %s' % (v(T + 20), s(val)))
    a('s_mov_b32 exec_hi, 0')
    a('global_store_dword %s, %s, s[26:27] sc1' % (v(T + 21), v(T + 20)))
    a('s_mov_b32 exec_hi, -1')
    a.label(sk)


def flag_load():
    a('s_mov_b32 exec_hi, 0')
    a('global_load_dword %s, %s, s[26:27] sc1' % (v(T + 6), v(T + 5)))
    a('s_mov_b32 exec_hi, -1')


def flag_wait(cnt):
    top, ent = newlabel('fl'), newlabel('fle')
    a('s_branch %s' % ent)
    a.label(top)
    tick()
    flag_load()
    a('s_waitcnt vmcnt(0)')
    a.label(ent)
    a('s_waitcnt vmcnt(%d)' % cnt)
    a('v_cmp_ne_u32 vcc, %s, %s' % (s(sTag + 6), v(T + 6)))
    a('s_cmp_lg_u32 vcc_lo, 0')
    a('s_cbranch_scc1 %s' % top)


def clean_prep():
    a('v_and_b32 %s, 31, %s' % (v(T + 9), v(vL)))
    a('s_and_b32 s59, %s, 3' % s(sJ))
    a('s_lshl_b32 s59, s59, 7')
    a('s_add_u32 s59, s59, %d' % STATS)
    a('v_lshl_add_u32 %s, %s, 2, s59' % (v(T + 9), v(T + 9)))
    a('v_cndmask_b32 %s, %s, %s, %s' % (v(vCl), v(vPubL), v(T + 9), s(sHi, 2)))
    a('s_add_u32 s55, s59, %d' % (VOTES - STATS))
    a('s_add_u32 s59, s59, %d' % ST0)
    a('s_cmp_lt_u32 %s, 4' % s(sJ))
    a('s_cselect_b32 s59, s59, s55')
    a('v_and_b32 %s, 31, %s' % (v(T + 9), v(vL)))
    a('v_lshl_add_u32 %s, %s, 2, s59' % (v(T + 9), v(T + 9)))
    a('v_add_u32 %s, %d, %s' % (v(T + 10), BUF_X, v(vPubL)))
    a('v_cndmask_b32 %s, %s, %s, %s' % (v(vCl + 1), v(T + 10), v(T + 9), s(sHi, 2)))
    a('v_mov_b32 %s, %s' % (v(vCl + 2), s(sTag + 3)))
    a('s_cmp_lt_u32 %s, %d' % (s(sJ), 6 if OPT['probe'] in (1, 2) else 4))
    a('s_cselect_b32 %s, -1, 0' % s(sCl + 1))
    a('s_cmp_lt_u32 %s, 4' % s(sJ))
    a('s_cselect_b32 %s, -1, 0' % s(sCl))
    a('s_cmp_eq_u32 %s, 0' % s(sW))
    a('s_cselect_b32 %s, %s, 0' % (s(sCl), s(sCl)))
    a('s_cselect_b32 %s, %s, 0' % (s(sCl + 1), s(sCl + 1)))


def clean_x():
    a('s_mov_b32 exec_hi, %s' % s(sCl + 1))
    a('global_store_dword %s, %s, %s sc1' % (v(vCl + 1), v(vCl + 2), s(sLb, 2)))
    a('s_mov_b32 exec_hi, -1')


def clean_a():
    a('s_mov_b32 exec_hi, %s' % s(sCl))
    a('global_store_dword %s, %s, %s sc1' % (v(vCl), v(vCl + 2), s(sLb, 2)))
    a('s_mov_b32 exec_hi, -1')


def clean_b_prep():
    a('v_add_u32 %s, %d, %s' % (v(T + 9), 512, v(vCl)))
    a('v_add_u32 %s, %d, %s' % (v(T + 8), BUF_B, v(vCl)))
    a('v_cndmask_b32 %s, %s, %s, %s' % (v(T + 8), v(T + 8), v(T + 9), s(sHi, 2)))
    a('s_mov_b32 exec_lo, 0')
    a('s_mov_b32 exec_hi, %s' % s(sCl))
    sk = newlabel('nold')
    a('s_cbranch_execz %s' % sk)
    a('global_load_dword %s, %s, %s sc1' % (v(vKeep), v(T + 8), s(sLb, 2)))
    a.label(sk)
    a('s_mov_b64 exec, -1')


def clean_b():
    a('s_mov_b32 exec_hi, %s' % s(sCl))
    a('global_store_dword %s, %s, %s sc1' % (v(T + 8), v(vKeep), s(sLb, 2)))
    a('s_mov_b32 exec_hi, -1')


npage = [0]


def only_if(late, fn):
    sk = newlabel('xs')
    a('s_cmp_ge_u32 %s, 4' % s(sXcc))
    a('s_cbranch_scc%d %s' % (0 if late else 1, sk))
    fn()
    a.label(sk)


def page_break(force=False):
    if OPT['pages'] and (FAST[0] or force):
        l = newlabel('page')
        a('s_branch %s' % l)
        flush_deferred(False)
        a.raw('.p2align 12')
        if OPT.get('tramp') and not force:
            npage[0] += 1
            a.label('L_stub_%d' % npage[0])
            a.raw('    s_branch %s' % ('L_stub_2' if npage[0] == 1 and OPT['pages'] == 2 else 'L_stub_back'))
        a.label(l)
        if OPT.get('tramp') and force:
            a('s_branch L_stub_1')
            a.label('L_stub_back')


a.raw('''; kernarg: x, K, V, wq, wo, (B_x unused), w1, w3, w2, out, debug, ws  (8 bytes each)
;
; One persistent launch, 256 workgroups = 32 groups (attention head / 40-48 ffn columns) x 8 members (128 keys / 64 rows of x).
; Weights and the K/V window are read once (LDS-DMA, then transposing LDS reads) and stay in registers for both layers.
; Per layer: q partials -> [group] -> scores, softmax, PV -> [group] -> wo partials -> [32 groups] -> gate/up partials
;            -> [group] -> w2 partials -> [32 groups].   LayerNorm is applied after the projection:
;            rstd * (x.W - mean * colsum(W)), the statistics travel with the group hand-offs.
; Hand-offs go through d_ws in 64-byte sectors whose 16-byte granules carry a tag byte (tag = epoch word found in d_ws + constant + index
; of the hand-off; the epoch is advanced once per launch). Loads of handed-off data always bypass L1. Group hand-offs use plain
; stores only after the members have compared their XCC ids; otherwise the copy of the code at L_slowtail writes through.
; The all-to-all hand-offs are written twice, once into each half of memory; a wave reads the copy that is near to it.
; @launch grid=(256,1,1) block=(256,1,1) lds=%d
.amdgcn_target "amdgcn-amd-amdhsa--gfx950"
.text
.p2align 12
.globl %s_kernel
.p2align 8
.type %s_kernel,@function
%s_kernel:''' % (LDS_BYTES, NAME, NAME, NAME))
a('s_cmp_ge_u32 s2, 256')
a('s_cbranch_scc1 L_end')
a('s_load_dwordx16 s[4:19], s[0:1], 0')
a('s_load_dwordx8 s[20:27], s[0:1], 64')
stamp('start')
stamp('x rt0')
a('s_getpc_b64 %s' % s(sPc, 2))
a.label('L_pc')
a('v_lshlrev_b32 %s, 6, v0' % v(T))
a('v_min_u32 %s, L_fastend-L_pc-64, %s' % (v(T), v(T)))
a('global_load_dword %s, %s, %s' % (v(T + 22), v(T), s(sPc, 2)))
a('v_lshrrev_b32 %s, 6, v0' % v(T))
a('v_and_b32 %s, 63, v0' % v(vL))
a('v_readfirstlane_b32 %s, %s' % (s(sW), v(T)))
a('s_lshr_b32 s3, s2, 3')
a('s_and_b32 %s, s3, 7' % s(sJ))
a('s_lshr_b32 s3, s3, 3')
a('s_and_b32 s31, s2, 7')
a('s_lshl_b32 %s, s31, 2' % s(sGam))
a('s_add_u32 %s, %s, s3' % (s(sGam), s(sGam)))
u16, pos16, u8, pos8, l3, col16 = T + 1, T + 2, T + 3, T + 4, T + 5, T + 6
t0, t1, t2, t3 = T + 8, T + 9, T + 10, T + 11
k0 = T + 12


def pro_wq():
    a('v_lshrrev_b32 %s, 4, %s' % (v(u16), v(vL)))
    a('v_and_b32 %s, 15, %s' % (v(pos16), v(vL)))
    a('v_lshlrev_b32 %s, 1, %s' % (v(t2), v(u16)))
    a('v_xor_b32 %s, %s, %s' % (v(t2), v(t2), v(pos16)))
    a('v_lshlrev_b32 %s, 4, %s' % (v(t2), v(t2)))
    a('v_lshl_add_u32 %s, %s, 13, %s' % (v(t0), v(u16), v(t2)))
    a('v_xor_b32 %s, 0x80, %s' % (v(t1), v(t0)))
    a('v_add_u32 %s, %d, %s' % (v(t1), 2 * 31744, v(t1)))
    a('s_lshl_b32 s49, %s, 12' % s(sW))
    a('s_lshl_b32 s55, %s, 19' % s(sJ))
    a('s_lshl_b32 s56, %s, 17' % s(sW))
    a('s_add_u32 s55, s55, s56')
    a('s_lshl_b32 s56, %s, 8' % s(sGam))
    a('s_add_u32 s55, s55, s56')
    a('s_add_u32 m0, s49, %d' % WQ)


def pro_rest():
    a('v_and_b32 %s, 3, %s' % (v(l3), v(vL)))
    a('v_lshl_add_u32 %s, %s, 2, %s' % (v(col16), v(l3), v(u16)))
    a('s_lshl_b32 s48, %s, 5' % s(sW))
    a('v_lshl_add_u32 %s, %s, 1, s48' % (v(vXw), v(col16)))
    a('v_lshl_add_u32 %s, %s, 8, %s' % (v(vVo), v(u16), v(t2)))
    a('v_xor_b32 %s, 0x80, %s' % (v(vVo + 1), v(vVo)))
    a('v_xor_b32 %s, %s, %s' % (v(k0), v(u16), v(pos16)))
    a('v_lshlrev_b32 %s, 4, %s' % (v(k0), v(k0)))
    a('v_lshl_add_u32 %s, %s, 8, %s' % (v(k0), v(u16), v(k0)))
    for i in range(1, 4):
        a('v_xor_b32 %s, %d, %s' % (v(k0 + i), i << 6, v(k0)))
    a('s_lshl_b32 s48, %s, 7' % s(sJ))
    a('s_lshl_b32 s56, %s, 20' % s(sGam))
    a('s_lshl_b32 s58, %s, 15' % s(sJ))
    a('s_add_u32 s56, s56, s58')
    a('s_lshl_b32 s58, %s, 13' % s(sW))
    a('s_add_u32 s56, s56, s58')
    a('s_add_u32 s56, s56, %d' % (3072 * 256))


def pro_touch():
    a('v_lshl_add_u32 %s, %s, 4, s49' % (v(vCons), v(vL)))
    a('s_lshl_b32 s57, %s, 14' % s(sGam))
    a('s_add_u32 s57, s57, %d' % WS_L)
    a('s_add_u32 s3, s48, s57')
    a('s_add_u32 s59, s3, s49')
    a('v_lshl_add_u32 %s, %s, 10, s59' % (v(t3), v(vL)))
    a('v_cmp_lt_u32 vcc, 2, %s' % v(vL))
    a('s_add_u32 s3, s3, %d' % STATS)
    a('v_mov_b32 %s, s3' % v(T + 17))
    a('v_cndmask_b32 %s, %s, %s, vcc' % (v(t3), v(t3), v(T + 17)))
    if OPT['probe'] in (1, 2):
        a('s_add_u32 s3, s57, %d' % VOTES)
        a('v_writelane_b32 %s, s3, 3' % v(t3))
        a('s_add_u32 s3, s3, 128')
        a('v_writelane_b32 %s, s3, 4' % v(t3))
    a('s_and_b32 s3, s48, 0x180')
    a('s_add_u32 s3, s3, s57')
    a('s_add_u32 s3, s3, %d' % (STATS + ST0))
    a('v_writelane_b32 %s, s3, 5' % v(t3))


PRO = OPT.get('pro', 2)
pro_wq()
if PRO < 2:
    pro_rest()
if PRO < 1:
    pro_touch()
stamp('pre ka')
a('s_waitcnt lgkmcnt(0)')
stamp('ka')
a('s_add_u32 s10, s10, s55')
a('s_addc_u32 s11, s11, 0')
a('global_load_lds_dwordx4 %s, s[10:11] offset:0%s' % (v(t0), NT))
a('v_add_u32 %s, 31744, %s' % (v(t0), v(t0)))
a('s_load_dword %s, s[26:27], 0' % s(sE))
a('global_load_lds_dwordx4 %s, s[10:11] offset:1024%s' % (v(t0), NT))
a('global_load_lds_dwordx4 %s, s[10:11] offset:2048%s' % (v(t1), NT))
a('v_add_u32 %s, 31744, %s' % (v(t1), v(t1)))
a('global_load_lds_dwordx4 %s, s[10:11] offset:3072%s' % (v(t1), NT))
if PRO >= 2:
    pro_rest()
a('s_add_u32 s4, s4, s48')
a('s_addc_u32 s5, s5, 0')
a('global_load_ushort %s, %s, s[4:5]' % (v(vX), v(vXw)))
a('s_add_u32 s6, s6, s56')
a('s_addc_u32 s7, s7, 0')
if PRO < 1:
    a('global_load_dword %s, %s, s[26:27]' % (v(T + 22), v(t3)))
a('s_add_u32 m0, s58, %d' % KI)
stamp('wq iss')
if OPT.get('bar0', 1):
    a('s_barrier')
for i in range(4):
    a('global_load_lds_dwordx4 %s, s[6:7] offset:%d%s' % (v(k0 + i), 1024 * i, NT))


def k_second():
    a('s_add_u32 m0, s58, %d' % (KI + 4096))
    a('s_add_u32 s6, s6, 4096')
    a('s_addc_u32 s7, s7, 0')
    for i in range(4):
        a('global_load_lds_dwordx4 %s, s[6:7] offset:%d%s' % (v(k0 + i), 1024 * i, NT))


if not OPT['ksplit']:
    k_second()
if PRO >= 1:
    pro_touch()
    a('global_load_dword %s, %s, s[26:27]' % (v(T + 22), v(t3)))
stamp('issued')
a('s_add_u32 s8, s8, s56')
a('s_addc_u32 s9, s9, 0')
a('s_add_u32 %s, s26, s57' % s(sLb))
a('s_addc_u32 %s, s27, 0' % s(sLb + 1))
a('s_lshl_b32 s55, %s, %d' % (s(sJ), 14 + PAD))
a('s_add_u32 s55, s55, %d' % (WS_G + GOFF))
a('s_add_u32 %s, s26, s55' % s(sGb0))
a('s_addc_u32 %s, s27, 0' % s(sGb0 + 1))
a('s_add_u32 %s, %s, 0x%x' % (s(sGb1), s(sGb0), 0x40000 << PAD))
a('s_addc_u32 %s, %s, 0' % (s(sGb1 + 1), s(sGb0 + 1)))
a('s_getreg_b32 %s, hwreg(HW_REG_XCC_ID, 0, 4)' % s(sXcc))
a('s_lshl_b32 %s, s2, 2' % s(sPr))
a('s_add_u32 %s, %s, %s' % (s(sPr), s(sPr), s(sW)))
a('s_and_b32 s55, %s, 63' % s(sPr))
a('s_lshl_b32 s55, s55, 7')
a('s_lshr_b32 %s, %s, 6' % (s(sPr), s(sPr)))
a('s_lshl_b32 %s, %s, 14' % (s(sPr), s(sPr)))
a('s_add_u32 %s, %s, s55' % (s(sPr), s(sPr)))
a('s_add_u32 %s, %s, %d' % (s(sPr), s(sPr), WS_P))
if OPT['probe'] == 1:
    a('s_lshl_b32 s55, s49, %d' % PAD)
    a('s_and_b32 s55, s55, 8192')
    a('s_add_u32 %s, %s, s55' % (s(sPr), s(sPr)))
a('s_mov_b32 %s, 0x40000' % s(sTo))
a('s_mov_b32 %s, %s' % (s(sCs), f32(math.log2(math.e) / math.sqrt(128.0))))
a('s_mov_b32 %s, 0xffffff00' % s(sMaskHi))
a('s_mov_b32 %s, %s' % (s(sInv512), f32(1.0 / 512)))
a('s_mov_b32 %s, %s' % (s(sEps), f32(1e-5)))
a('s_mov_b32 %s, %s' % (s(sNl2e), f32(-math.log2(math.e))))
a('s_mov_b32 %s, 0xffff0000' % s(sM0))
a('s_mov_b32 %s, 0xffff0000' % s(sM0 + 1))
a('s_mov_b32 %s, 0x10000' % s(sM1))
a('s_mov_b32 %s, 0x10000' % s(sM1 + 1))
a('s_mov_b32 %s, 0' % s(sHi))
a('s_mov_b32 %s, -1' % s(sHi + 1))
if OPT.get('fal', 1):
    a('s_cmp_lt_u32 %s, 12' % s(sGam))
    a('s_cselect_b32 %s, 6, 5' % s(sCnt))
    a('s_cselect_b32 s55, 0, 12')
    a('s_mul_i32 %s, %s, %s' % (s(sC0), s(sGam), s(sCnt)))
    a('s_add_u32 %s, %s, s55' % (s(sC0), s(sC0)))
    a('s_sub_u32 s37, %s, 1' % s(sCnt))
    a('s_lshl_b32 %s, %s, 3' % (s(sCnt), s(sCnt)))
else:
    a('s_mul_i32 %s, %s, 43' % (s(sC0), s(sGam)))
    a('s_add_u32 %s, %s, 43' % (s(sCnt), s(sC0)))
    a('s_lshr_b32 %s, %s, 3' % (s(sC0), s(sC0)))
    a('s_lshr_b32 %s, %s, 3' % (s(sCnt), s(sCnt)))
    a('s_sub_u32 %s, %s, %s' % (s(sCnt), s(sCnt), s(sC0)))
    a('s_lshl_b32 %s, %s, 3' % (s(sCnt), s(sCnt)))
    a('s_mov_b32 s37, 5')
a('v_mov_b32 %s, 0' % v(vZero))
a('v_lshrrev_b32 %s, 3, %s' % (v(u8), v(vL)))
a('v_and_b32 %s, 7, %s' % (v(pos8), v(vL)))
a('s_add_u32 s55, s49, s48')
a('v_and_b32 %s, 31, %s' % (v(t0), v(vL)))
a('v_lshl_add_u32 %s, %s, 2, s55' % (v(vPubL), v(t0)))
a('v_lshrrev_b32 %s, 5, %s' % (v(t3), v(vL)))
a('v_lshl_add_u32 %s, %s, 10, %s' % (v(vPubL), v(t3), v(vPubL)))
a('s_lshl_b32 s55, %s, 6' % s(sW))
a('v_lshl_add_u32 %s, %s, 1, s55' % (v(vPw), v(t0)))
a('v_lshl_add_u32 %s, %s, 2, %s' % (v(t1), v(pos8), v(u16)))
a('v_lshl_add_u32 %s, %s, 1, s55' % (v(vQw), v(t1)))
a('s_lshl_b32 s55, %s, 6' % s(sGam))
a('s_add_u32 s55, s55, s49')
if PAD:
    a('s_lshl_b32 s55, s55, 1')
a('v_lshl_add_u32 %s, %s, 2, s55' % (v(vPubG), v(pos16)))
if PAD:
    a('v_lshl_add_u32 %s, %s, 6, %s' % (v(vPubG), v(t3), v(vPubG)))
a('v_and_b32 %s, 1, %s' % (v(t2), v(u16)))
a('v_mul_u32_u24 %s, 0x%x, %s' % (v(t2), G_X, v(t2)))
a('v_xor_b32 %s, %s, %s' % (v(vPubG), v(vPubG), v(t2)))
a('v_lshl_add_u32 %s, %s, %d, s55' % (v(vPre), v(pos8), 3 + PAD))
a('v_xor_b32 %s, %s, %s' % (v(vPre), v(vPre), v(t2)))
a('v_and_b32 %s, 1, %s' % (v(t2), v(u8)))
a('v_lshl_add_u32 %s, %s, %d, %s' % (v(vPre), v(t2), 11 + PAD, v(vPre)))
a('v_lshl_add_u32 %s, %s, %d, %s' % (v(vPre), v(t3), 18 + PAD, v(vPre)))
a('s_lshl_b32 s55, %s, 2' % s(sJ))
a('s_add_u32 s55, s55, %s' % s(sW))
a('s_lshl_b32 s55, s55, 4')
a('s_add_u32 s55, s55, %d' % STATS)
a('v_mov_b32 %s, s55' % v(vStP))
a('v_lshl_add_u32 %s, %s, 3, s55' % (v(vStP2), v(t3)))
a('v_lshlrev_b32 %s, 4, %s' % (v(t1), v(l3)))
a('v_lshl_add_u32 %s, %s, 6, %s' % (v(t1), v(u8), v(t1)))
a('v_add_u32 %s, %d, %s' % (v(vStC), STATS, v(t1)))
a('v_mov_b32 %s, 0xff' % v(t2))
a('v_cmp_eq_u32 vcc, 0, %s' % v(l3))
a('v_lshlrev_b32 %s, 4, %s' % (v(vOpR), v(u16)))
a('v_and_b32 %s, 8, %s' % (v(t1), v(vL)))
a('v_cndmask_b32 %s, 0, %s, vcc' % (v(vTagM), v(t2)))
a('v_lshl_add_u32 %s, %s, 4, %s' % (v(vXopR), v(t1), v(vOpR)))
a('v_and_b32 %s, 4, %s' % (v(t1), v(vL)))
a('v_cmp_eq_u32 vcc, 0, %s' % v(t1))
a('v_add_u32 %s, %d, %s' % (v(t1), HB, v(vXw)))
a('v_mov_b32 %s, %d' % (v(t2), DUMMY))
a('v_cndmask_b32 %s, %s, %s, vcc' % (v(vHw), v(t2), v(t1)))
a('v_lshrrev_b32 %s, 1, %s' % (v(t1), v(vXw)))
a('v_cmp_gt_u32 vcc, %s, %s' % (s(sCnt), v(t1)))
a('s_lshl_b32 s55, %s, 2' % s(sW))
a('v_mov_b32 %s, s55' % v(vMw))
a('v_lshlrev_b32 %s, 2, %s' % (v(vMr), v(l3)))
a('v_cndmask_b32 %s, 0, -1, vcc' % v(vHmask))
a('v_lshlrev_b32 %s, 2, %s' % (v(t0), v(t0)))
a('v_mov_b32 %s, 0x3f803f80' % v(t1))
a('ds_write_b32 %s, %s offset:%d' % (v(t0), v(t1), ONES))
a('v_lshlrev_b32 %s, 2, %s' % (v(t0), v(pos8)))
a('ds_write_b32 %s, %s offset:%d' % (v(t0), v(vZero), HB + 96))
if PAD:
    a('v_lshrrev_b32 %s, 2, %s' % (v(t1), v(vL)))
    a('v_lshlrev_b32 %s, 4, %s' % (v(t2), v(l3)))
    a('v_lshl_add_u32 %s, %s, 7, %s' % (v(t1), v(t1), v(t2)))
    a('s_lshl_b32 s59, s49, 1')
    a('v_add_u32 %s, s59, %s' % (v(vConsG), v(t1)))
else:
    a('v_mov_b32 %s, %s' % (v(vConsG), v(vCons)))
a('v_mov_b32 %s, %s' % (v(vConsG0), v(vConsG)))
a('v_mov_b32 %s, %s' % (v(vSt + 3), s(sXcc)))
r_ = T + 16
a('v_lshrrev_b32 %s, 2, %s' % (v(r_), v(pos16)))
a('v_and_b32 %s, 1, %s' % (v(t0), v(u16)))
a('v_lshl_add_u32 %s, %s, 2, %s' % (v(t1), v(t0), v(r_)))
a('v_lshlrev_b32 %s, 1, %s' % (v(t1), v(t1)))
a('v_xor_b32 %s, s55, %s' % (v(t1), v(t1)))
a('v_lshlrev_b32 %s, 4, %s' % (v(t1), v(t1)))
a('v_lshl_add_u32 %s, %s, 3, %s' % (v(t1), v(l3), v(t1)))
a('v_lshl_add_u32 %s, %s, 3, %s' % (v(t2), v(u16), v(r_)))
a('v_lshl_add_u32 %s, %s, 8, %s' % (v(trq), v(t2), v(t1)))
a('v_xor_b32 %s, 32, %s' % (v(trq + 1), v(trq)))
a('v_lshrrev_b32 %s, 1, %s' % (v(t1), v(r_)))
a('v_lshl_add_u32 %s, %s, 1, %s' % (v(t1), v(t0), v(t1)))
a('v_xor_b32 %s, %s, %s' % (v(t1), s(sW), v(t1)))
a('v_lshlrev_b32 %s, 5, %s' % (v(t1), v(t1)))
a('v_lshl_add_u32 %s, %s, 3, %s' % (v(t1), v(l3), v(t1)))
a('v_lshl_add_u32 %s, %s, 7, %s' % (v(vTr), v(t2), v(t1)))
a('v_add_u32 %s, %d, %s' % (v(vTr), WO, v(vTr)))
a('v_and_b32 %s, 2, %s' % (v(t0), v(u8)))
a('v_xor_b32 %s, %s, %s' % (v(t0), v(t0), v(pos8)))
a('v_lshlrev_b32 %s, 4, %s' % (v(t1), v(t0)))
a('v_lshl_add_u32 %s, %s, 10, %s' % (v(wo0), v(u8), v(t1)))
a('v_xor_b32 %s, 64, %s' % (v(wo1), v(wo0)))
a('v_add_u32 %s, 7168, %s' % (v(wo1), v(wo1)))
a('v_mul_u32_u24 %s, 2752, %s' % (v(t2), v(u8)))
a('v_min_u32 %s, s37, %s' % (v(t1), v(t0)))
a('v_lshl_add_u32 %s, %s, 4, %s' % (v(f0), v(t1), v(t2)))
a('v_xor_b32 %s, 4, %s' % (v(t0), v(t0)))
a('v_min_u32 %s, s37, %s' % (v(t1), v(t0)))
a('v_lshl_add_u32 %s, %s, 4, %s' % (v(f1), v(t1), v(t2)))
a('v_add_u32 %s, %d, %s' % (v(f1), 8 * 2752 - 1024, v(f1)))
a('s_lshl_b32 s55, %s, 17' % s(sGam))
a('s_lshl_b32 s59, %s, 15' % s(sW))
a('s_add_u32 s55, s55, s59')
a('s_add_u32 s55, s55, s48')
a('s_add_u32 s12, s12, s55')
a('s_addc_u32 s13, s13, 0')
a('s_lshl_b32 s55, %s, 2' % s(sJ))
a('s_add_u32 s55, s55, %s' % s(sW))
a('s_mul_i32 s55, s55, %d' % (16 * 2752))
a('s_lshl_b32 s59, %s, 4' % s(sC0))
a('s_add_u32 s55, s55, s59')
a('s_add_u32 s16, s16, s55')
a('s_addc_u32 s17, s17, 0')
a('s_add_u32 s18, s18, s55')
a('s_addc_u32 s19, s19, 0')
a('s_lshl_b32 s55, %s, 13' % s(sC0))
a('s_min_u32 s59, %s, 2' % s(sW))
a('s_lshl_b32 s59, s59, 14')
a('s_add_u32 s55, s55, s59')
a('s_add_u32 s55, s55, s48')
a('s_add_u32 s20, s20, s55')
a('s_addc_u32 s21, s21, 0')
if OPT.get('fal', 1):
    a('s_lshl_b32 s59, %s, 4' % s(sW))
    a('s_add_u32 s59, s59, 8')
    a('s_min_u32 s59, s59, 40')
    a('s_cmp_ge_u32 s59, %s' % s(sCnt))
    a('s_cselect_b32 s59, 8192, 0')
    a('s_sub_u32 s4, s20, s59')
    a('s_subb_u32 s5, s21, 0')
a('s_add_u32 s22, s22, s48')
a('s_addc_u32 s23, s23, 0')
if OPT['ksplit']:
    k_second()
a('s_add_u32 s6, s8, 4096')
a('s_addc_u32 s7, s9, 0')
a('s_waitcnt lgkmcnt(0)')
for k in range(10):
    a('s_add_u32 %s, %s, 0x%x' % (s(sTag + k), s(sE), 0x5a3c7181 + k))


def issue_v(lo, hi):
    for i in range(lo, hi):
        if i == lo or i == 4:
            a('s_add_u32 m0, s58, %d' % (VI + 4096 * (i >> 2)))
            a('s_nop 0')
        a('global_load_lds_dwordx4 %s, %s offset:%d%s' % (v(vVo + ((i >> 1) & 1)), 's[6:7]' if i >= 4 else 's[8:9]', 1024 * (i & 3), NT))


def issue_wo(lo=0, hi=4):
    a('s_add_u32 m0, s49, %d' % WO)
    for i in range(lo, hi):
        ad = wo0 + (i & 1)
        if i >= 2:
            a('v_add_u32 %s, %d, %s' % (v(T + 20), 2 * 7168, v(ad)))
            ad = T + 20
        a('global_load_lds_dwordx4 %s, s[12:13] offset:%d%s' % (v(ad), 1024 * i, NT))


def issue_w13(lo, hi):
    for i in range(lo, hi):
        if i == lo or i == 2:
            a('s_lshl_b32 s59, %s, 11' % s(sW))
            a('s_add_u32 m0, s59, %d' % (W1 if i < 2 else W3))
            a('s_nop 0')
        a('global_load_lds_dwordx4 %s, s[%d:%d] offset:%d%s' % (v(f0 + (i & 1)), 16 + (i & 2), 17 + (i & 2), 1024 * (i & 1), NT))


def issue_w2():
    a('s_min_u32 s59, %s, 2' % s(sW))
    a('s_lshl_b32 s59, s59, 11')
    a('s_add_u32 m0, s59, %d' % W2)
    a('s_nop 0')
    a('global_load_lds_dwordx4 %s, s[20:21] offset:0%s' % (v(wo0), NT))
    a('global_load_lds_dwordx4 %s, %s offset:1024%s' % (v(wo1), 's[4:5]' if OPT.get('fal', 1) else 's[20:21]', NT))


r = vP
FE, KW, WOL = OPT['fe'], OPT['kw'], OPT['wol']
NPRE = 1 + bool(OPT['probe'])
NVA = OPT['nva']
NVB = 8 - NVA
WOH = OPT.get('woh', 0)
NLATE = WOH if WOL else 4 + FE + 2 * OPT['w2e']


WOETC = []
L0COL = []


def front():
    a('; ---- layer 0: x slice, query projection partials')
    set_tags(0)
    a('v_add_u32 %s, 0x%x, %s' % (v(T + 12), WS_L2D, v(vStP2)))
    a('v_add_u32 %s, 0x%x, %s' % (v(T + 13), WS_L2D, v(vPubL)))
    a('v_add_u32 %s, 0x%x, %s' % (v(T + 14), ST0, v(vStP2)))
    stamp('consts')
    a('s_waitcnt vmcnt(9)')
    stamp('wq landed')
    a('ds_write_b16 %s, %s offset:%d' % (v(vXw), v(vX), XB))
    issue_v(0, OPT['vq'])
    a('v_lshlrev_b32 %s, 16, %s' % (v(vSt4), v(vX)))
    a('v_lshlrev_b32 %s, 16, %s' % (v(vX), v(vX)))
    FAST[0] = True
    ln_stats(0, T + 14)
    a('s_waitcnt lgkmcnt(0)')

    proj(vWQ, 0, 0, wsrc=[(trq, WQ, 8192, 1024), (trq + 1, WQ, 8192, 1024)], first=True)
    FAST[0] = False
    stamp('L0 Q pub')
    if OPT.get('te'):
        h = OPT.get('th', 4)
        issue_v(OPT['vq'], h)
        sk = newlabel('noth')
        a('s_cmp_ge_u32 %s, 4' % s(sXcc))
        a('s_cbranch_scc1 %s' % sk)
        a('s_waitcnt vmcnt(%d)' % max(8 - OPT['te'] + (PRO >= 1) + 2 + h, 0))
        a.label(sk)
        issue_v(h, NVA)
    else:
        issue_v(OPT['vq'], NVA)
    lstore('global_store_dword', v(T + 13), v(T), BUF_A)
    a('s_mov_b64 exec, %s' % s(sM1, 2))
    lstore('global_store_dwordx2', v(T + 12), v(vSt4, 2), 0)
    a('s_mov_b64 exec, -1')
    a('v_mov_b32 %s, %s' % (v(T + 16), s(sE)))
    a('v_mov_b32 %s, %s' % (v(T + 17), s(sE)))
    if PAD:
        a('v_mov_b32 %s, %s' % (v(T + 18), s(sE)))
        a('v_mov_b32 %s, %s' % (v(T + 19), s(sE)))
    if OPT.get('gpre', 1) == 2:
        a('s_mov_b32 exec_lo, 0')
    if OPT.get('gpre', 1) == 0:
        a('s_mov_b64 exec, 1')
    a('global_store_dwordx%d %s, %s, %s offset:%d sc1' % (2 << PAD, v(vPre), v(T + 16, 2 << PAD), s(sGb0, 2), -GOFF))
    if OPT.get('gpre', 1) != 1:
        a('s_mov_b64 exec, -1')
    if OPT['probe']:
        a('v_and_b32 %s, 31, %s' % (v(T + 18), v(vL)))
        a('v_lshl_add_u32 %s, %s, 2, %s' % (v(T + 18), v(T + 18), s(sPr)))
        a('v_lshrrev_b32 %s, 5, %s' % (v(T + 19), v(vL)))
        a('v_lshlrev_b32 %s, 13, %s' % (v(T + 19), v(T + 19)))
        a('v_xor_b32 %s, %s, %s' % (v(T + 18), v(T + 19), v(T + 18)))
        a('global_store_dword %s, %s, s[26:27] sc1' % (v(T + 18), v(T + 16)))
    a('; ---- layer 0: gather q')
    if OPT.get('cp2'):
        a('s_getpc_b64 s[4:5]')
        a.label('L_pc2')
        a('v_lshlrev_b32 %s, 6, v0' % v(T + 19))
        a('v_min_u32 %s, L_fastend-L_pc2-64, %s' % (v(T + 19), v(T + 19)))
        a('global_load_dword %s, %s, s[4:5]' % (v(T + 22), v(T + 19)))
    a('v_xor_b32 %s, %s, %s' % (v(t0), v(u16), v(pos16)))
    a('v_lshlrev_b32 %s, 4, %s' % (v(t0), v(t0)))
    a('v_lshl_add_u32 %s, %s, 8, %s' % (v(t0), v(pos16), v(t0)))
    a('s_add_u32 s55, s58, %d' % KI)
    a('v_add_u32 %s, s55, %s' % (v(t0), v(t0)))
    for kk in range(1, 4):
        a('v_xor_b32 %s, %d, %s' % (v(t0 + kk), kk << 6, v(t0)))
    alt, both, alts, boths = T + 13, T + 14, T + 15, T + 21
    a('v_mov_b32 %s, %s' % (v(alt), v(vCons)))
    a('v_lshlrev_b32 %s, 1, %s' % (v(both), v(vCons)))
    a('v_add_u32 %s, 0x%x, %s' % (v(both), WS_L2D, v(both)))
    a('v_add_u32 %s, 0x%x, %s' % (v(alts), ST0, v(vStC)))
    a('v_lshlrev_b32 %s, 1, %s' % (v(boths), v(vStC)))
    a('v_add_u32 %s, 0x%x, %s' % (v(boths), WS_L2D + ST0, v(boths)))
    page_break(True)
    behind_k = 2 + NVA + 2 + NPRE + (PRO >= 1) + OPT.get('cp2', 0)
    a('s_waitcnt vmcnt(%d)' % (8 - KW + behind_k))
    stamp('K part')
    loads = [(vSs[0], alts, sLb, 0), (r, alt, sLb, BUF_A), (r + 4, alt, sLb, BUF_X)]
    for x in loads:
        gload(*x)
    issue_v(NVA, 8)

    if WOH:
        issue_wo(0, WOH)

    def wo_etc():
        issue_wo(WOH, 4)
        if OPT['w2e']:
            issue_w2()
        issue_w13(0, FE)
    if not WOL:
        wo_etc()
    XL = OPT.get('xw', 0) & 8
    if XL:
        only_if(True, wo_etc)
    a('s_waitcnt vmcnt(%d)' % (behind_k + 3 + NVB + NLATE))
    stamp('K landed')
    for g in range(2):
        for kk in range(4):
            a('ds_read_b128 %s, %s offset:%d' % (v(vK + 16 * g + 4 * kk, 4), v(t0 + kk), 4096 * g))
    a('s_branch L_e1ent')
    a.label('L_e1top')
    tick()
    a('v_sub_u32 %s, %s, %s' % (v(alt), v(both), v(alt)))
    a('v_sub_u32 %s, %s, %s' % (v(alts), v(boths), v(alts)))
    for x in loads:
        gload(*x)
    if NLATE + NVB or XL:
        a('s_waitcnt vmcnt(0)')
    a.label('L_e1ent')
    if XL:
        only_if(False, lambda: a('s_waitcnt vmcnt(%d)' % NVB))
        a('s_waitcnt vmcnt(%d)' % (NVB + 4 + FE))
    else:
        a('s_waitcnt vmcnt(%d)' % (NLATE + NVB))
    a('v_bitop3_b32 %s, %s, %s, %s bitop3:0x7e' % (v(T + 23), v(r), v(r + 4), s(sTag)))
    a('v_cmp_ne_u32 %s, %s, %s' % (s(sT1, 2), s(sTag), v(vSs[0] + 1)))
    a('v_cmp_ne_u32_sdwa vcc, %s, %s src0_sel:BYTE_0 src1_sel:DWORD' % (v(T + 23), v(vZero)))
    a('s_or_b64 vcc, vcc, %s' % s(sT1, 2))
    a('s_cbranch_vccnz L_e1top')
    stamp('L0 E1 ok')
    if OPT['fl']:
        flag_store(sE)
    if XL:
        only_if(False, wo_etc)
    elif OPT.get('xw', 0) & 1:
        only_if(True, wo_etc)
    elif WOL and OPT['wopos'] == 0:
        wo_etc()
    WOETC.append(wo_etc)
    a('v_cmp_ne_u32 vcc, %s, %s' % (s(sXcc), v(vSs[0] + 3)))
    c, x, y = vC, vSs[0], r + 4
    ln_spec(x)
    mask_tag(y)
    a('v_mov_b32 %s, %s' % (v(c + 1), v(c)))
    a('v_permlane32_swap_b32 %s, %s' % (v(y + 1), v(y + 3)))
    mask_tag(r)
    a('v_permlane16_swap_b32 %s, %s' % (v(c), v(c + 1)))
    a('v_add_f32 %s, %s, %s' % (v(c), v(c), v(c + 1)))
    a('v_add_f32 %s, %s, %s' % (v(y + 1), v(y + 1), v(y + 3)))
    a('v_permlane32_swap_b32 %s, %s' % (v(y), v(y + 2)))
    dpp('v_add_f32', c, c, c, 'row_ror:8')
    a('v_add_f32 %s, %s, %s' % (v(y), v(y), v(y + 2)))
    a('v_permlane32_swap_b32 %s, %s' % (v(r + 1), v(r + 3)))
    dpp('v_add_f32', c, c, c, X1)
    a('v_add_f32 %s, %s, %s' % (v(r + 1), v(r + 1), v(r + 3)))
    a('v_permlane16_swap_b32 %s, %s' % (v(y), v(y + 1)))
    dpp('v_add_f32', c, c, c, X2)
    a('v_add_f32 %s, %s, %s' % (v(y), v(y), v(y + 1)))
    a('v_mul_f32 %s, %s, %s' % (v(c), s(sInv512), v(c)))
    a('v_mov_b32 %s, %s' % (v(c + 1), v(c)))
    a('v_permlane32_swap_b32 %s, %s' % (v(r), v(r + 2)))
    dpp('v_add_f32', vCq, y, y, 'row_ror:8')
    a('v_permlane32_swap_b32 %s, %s' % (v(c), v(c + 1)))
    a('v_add_f32 %s, %s, %s' % (v(r), v(r), v(r + 2)))
    bf16r(vMean, c)
    if OPT['fast']:
        a('s_cbranch_vccnz L_slowtail')


def CLEAN():
    return OPT['clean'] if FAST[0] else 0


def tail():
    for layer in range(2):
        pre = 'L%d' % layer
        k1, k2, k4 = 3 * layer, 3 * layer + 1, 3 * layer + 2

        def spec(x):
            mask_tag(x)
            red_a(x, r)
        if layer == 1:
            a('; ---- layer 1: x slice, query projection partials')
            set_tags(k1)
            if OPT['pages'] == 1:
                page_break()
            if OPT['probe'] == 3:
                race_pick()
            elif OPT['probe'] and OPT['vlate']:
                count_votes()
            if CLEAN():
                clean_prep()
            g_pace(1)
            x_gather(1, G_D)
            stamp(pre + ' E5 ok')
            x_to_lds(k1)
            a('s_waitcnt lgkmcnt(0)')
            proj(vWQ, k1, layer)
            stamp(pre + ' Q pub')
            a('; ---- layer 1: gather q')
            l_gather(k1, spec, ln_spec, [ln_mean])
            stamp(pre + ' E1 ok')
        red_b(r, r)
        a('v_fma_f32 %s, -%s, %s, %s' % (v(r), v(vMean), v(vCq), v(r)))
        a('v_cvt_pk_bf16_f32 %s, %s, %s' % (v(r), v(r), v(r)))
        a('ds_write_b16 %s, %s offset:%d' % (v(vQw), v(r), QB))
        if layer == 1 and CLEAN() & 1 and not OPT['cend'] & 1:
            clean_x()
        ln_rstd_a()
        if layer == 0 and WOL and OPT['wopos'] == 1:
            WOETC[0]()
        a('s_waitcnt lgkmcnt(0)')
        stamp('z%d qw' % layer)
        a('s_barrier')
        stamp('z%d qb' % layer)
        a('; ---- layer %d: attention over this member\'s 128 keys' % layer)
        for kk in range(4):
            a('ds_read_b128 %s, %s offset:%d' % (v(vA + 4 * kk, 4), v(vOpR), QB + 64 * kk))
        ln_rstd_b(True)
        set_tags(k2)
        for kk in range(4):
            lgkm(3 - kk)
            for g in range(2):
                mfma(vD + 4 * g, vA + 4 * kk, vK + 16 * g + 4 * kk, vD + 4 * g if kk else None)
        stamp('z%d qk' % layer)
        if layer == 0:
            if OPT.get('xw', 0) & 1:
                only_if(False, WOETC[0])
            elif WOL and OPT['wopos'] == 2:
                WOETC[0]()
            if NVB:
                a('s_waitcnt vmcnt(%d)' % (4 + FE + 2 * OPT['w2e']))
                a('s_barrier')
            tr_reads(vV, trq, VI, 4, 8192, 1024)
        sg = vSt
        mx, e0 = T, T + 1
        a('v_max_f32 %s, %s, %s' % (v(mx), v(vD), v(vD + 4)))
        a('v_cndmask_b32 %s, %s, %s, %s' % (v(e0), v(vD), v(vD + 4), s(sM0, 2)))
        for ro in (8, 4, 2, 1):
            dpp('v_max_f32', mx, mx, mx, 'row_ror:%d' % ro)
        a('v_mul_f32 %s, %s, %s' % (v(sg), v(vCs), v(mx)))
        a('v_fma_f32 %s, %s, %s, -%s' % (v(e0), v(e0), v(vCs), v(sg)))
        a('v_exp_f32 %s, %s' % (v(sg + 1), v(e0)))
        stamp('z%d ex' % layer)
        a('ds_write_b32 %s, %s offset:%d' % (v(vMw), v(sg), MB))
        a('v_cvt_pk_bf16_f32 %s, %s, %s' % (v(e0), v(sg + 1), v(sg + 1)))
        a('ds_write_b16 %s, %s offset:%d' % (v(vPw), v(e0), PB))
        if layer == 0:
            tr_reads(vV + 16, trq + 1, VI, 4, 8192, 1024)
        for ro in (8, 4, 2):
            dpp('v_add_f32', sg + 1, sg + 1, sg + 1, 'row_ror:%d' % ro)
        a('s_waitcnt lgkmcnt(0)')
        stamp('z%d pw' % layer)
        a('s_barrier')
        stamp('z%d pb' % layer)
        mm = T + 4
        a('ds_read_b32 %s, %s offset:%d' % (v(mm), v(vMr), MB))
        for kk in range(4):
            a('ds_read_b128 %s, %s offset:%d' % (v(vA + 4 * kk, 4), v(vOpR), PB + 64 * kk))
        dpp('v_add_f32', sg + 1, sg + 1, sg + 1, 'row_ror:1')
        dpp('v_add_f32', sg + 1, sg + 1, sg + 1, 'row_bcast:15', 0xa)
        a('s_mov_b64 exec, 0x10000')
        lstore('global_store_dwordx4', v(vStP), v(sg, 4), 512 * (k2 & 1))
        a('s_mov_b64 exec, -1')

        def sel(kk):
            a('v_cndmask_b32 %s, %s, %s, %s' % (v(T + 8 + kk), v(vD + 8 * kk), v(vD + 8 * kk + 4), s(sM0, 2)))

        def bc(kk):
            a('v_mov_b32_dpp %s, %s quad_perm:[%d,%d,%d,%d] row_mask:0xf bank_mask:0xf' % (v(T + 16 + kk), v(mm), kk, kk, kk, kk))

        def acc(kk):
            a('%s %s, %s, %s' % ('v_fmac_f32' if kk else 'v_mul_f32', v(T), v(T + 16 + kk), v(T + 8 + kk)))
        lgkm(3)
        stamp('z%d pr' % layer)
        mfma(vD, vA, vV)
        dpp('v_max_f32', mx, mm, mm, X1)
        mfma(vD + 4, vA, vV + 16)
        lgkm(2)
        mfma(vD + 8, vA + 4, vV + 4)
        dpp('v_max_f32', mx, mx, mx, X2)
        mfma(vD + 12, vA + 4, vV + 20)
        a('v_sub_f32 %s, %s, %s' % (v(mm), v(mm), v(mx)))
        lgkm(1)
        mfma(vD + 16, vA + 8, vV + 8)
        a('v_exp_f32 %s, %s' % (v(mm), v(mm)))
        mfma(vD + 20, vA + 8, vV + 24)
        lgkm(0)
        bc(0)
        mfma(vD + 24, vA + 12, vV + 12)
        bc(1)
        bc(2)
        mfma(vD + 28, vA + 12, vV + 28)
        stamp('z%d pv' % layer)
        stats_load(k2)
        sel(0)
        sel(1)
        acc(0)
        acc(1)
        sel(2)
        acc(2)
        bc(3)
        a('s_mov_b32 exec_hi, 0')
        sel(3)
        acc(3)
        a('v_bfi_b32 %s, %s, %s, %s' % (v(T), v(vTagM), s(sTag + k2), v(T)))
        lstore('global_store_dword', v(vPubL), v(T), BUF_A if k2 % 2 == 0 else BUF_B)
        a('s_mov_b32 exec_hi, -1')
        stamp(pre + ' S pub')
        if layer == 0 and OPT['fl'] and OPT['flp'] == 1:
            a('s_waitcnt vmcnt(0)')
            flag_store(sTag + 6)
            stats_load(k2)
            lstore('global_store_dword', v(vStP), v(vSt), 512 * (k2 & 1))
        a('; ---- layer %d: combine the 8 key blocks, output projection partials' % layer)
        mj, mg, mo, lo = T, T + 1, vC, vC + 1

        def sm_spec(x):
            dpp('v_max_f32', mj, x, x, X1)
            a('v_mov_b32 %s, %s' % (v(mo), v(x)))
            a('v_mov_b32 %s, %s' % (v(lo), v(x + 1)))

        def sm0():
            allred('v_max_f32', mj, T + 2, [1])
            dpp('v_max_f32', mg, mj, mj, 'row_ror:8')
            allred('v_max_f32', mg, T + 2, [4, 5])

        def sm1():
            a('v_sub_f32 %s, %s, %s' % (v(mo), v(mo), v(mg)))
            a('v_sub_f32 %s, %s, %s' % (v(mj), v(mj), v(mg)))
            a('v_exp_f32 %s, %s' % (v(mo), v(mo)))
            a('v_exp_f32 %s, %s' % (v(mj), v(mj)))
            a('v_mul_f32 %s, %s, %s' % (v(mo), v(mo), v(lo)))
            allred('v_add_f32', mo, T + 2, [0, 1, 3, 4, 5])
            a('v_rcp_f32 %s, %s' % (v(mo), v(mo)))
            a('v_mul_f32 %s, %s, %s' % (v(vF), v(mj), v(mo)))

        def spec2(x):
            mask_tag(x)
            a('v_pk_mul_f32 %s, %s, %s op_sel_hi:[1,0]' % (v(x + 2, 2), v(x + 2, 2), v(vF, 2)))
            a('v_pk_mul_f32 %s, %s, %s op_sel_hi:[1,0]' % (v(x, 2), v(x, 2), v(vF, 2)))
            red_a(x, r)
        l_gather(k2, spec2, sm_spec, [sm0, sm1], hook=(lambda: flag_store(sTag + 6)) if layer == 0 and OPT['fl'] and OPT['flp'] == 0 else None)
        stamp(pre + ' E2 ok')
        red_b(r, r)
        a('v_cvt_pk_bf16_f32 %s, %s, %s' % (v(r), v(r), v(r)))
        a('ds_write_b16 %s, %s offset:%d' % (v(vQw), v(r), OB))

        def ffn_rest():
            issue_w13(FE, 4)
            if not OPT['w2e']:
                issue_w2()
        if layer == 0 and OPT['ff'] in (2, 3):
            ffn_rest()
        if layer == 0 and OPT['ff'] == 6:
            issue_w13(FE, 4)
        if layer == 0 and OPT['ff'] == 11:
            issue_w13(0, 1)
        if layer == 0 and OPT['ff'] == 12:
            issue_w13(0, 2)
        if layer == 0 and OPT['ff'] == 7:
            if OPT.get('xw', 0) & 2:
                only_if(True, lambda: issue_w13(FE, 2))
            else:
                issue_w13(FE, 2)
        a('s_waitcnt lgkmcnt(0)')
        a('s_barrier')
        if layer == 0 and OPT['ff'] == 5:
            gemv_publish_g(4, vWO, OB, 0, G_C, tr=True, mid=lambda: issue_w13(FE, 2), post=lambda: issue_w13(2, 4))
            issue_w2()
        elif layer == 0 and OPT['probe'] == 2:
            gemv_publish_g(4, vWO, OB, 0, G_C, tr=True, mid=race_prep, post=race_start)
        else:
            gemv_publish_g(4, vWO, OB, 2 * layer, G_C, tr=layer == 0)
        stamp(pre + ' O pub')
        a('; ---- layer %d: x slice, gate/up partials' % layer)
        set_tags(k4)
        if layer == 0 and OPT['ff'] == 1:
            nrest = 4 - FE + (0 if OPT['w2e'] else 2)
            if OPT['fl']:
                a('v_lshlrev_b32 %s, 7, %s' % (v(T + 5), v(vL)))
                a('v_add_u32 %s, %d, %s' % (v(T + 5), WS_F, v(T + 5)))
                flag_load()
            ffn_rest()
            if OPT['fl']:
                flag_wait(nrest)
            else:
                a('s_waitcnt vmcnt(%d)' % nrest)
            stamp('G0 ack')
            x_gather(0, G_C, work=probe_near if OPT['probe'] else None)
        else:
            flush_deferred()
            if layer == 0 and OPT['ff'] == 4:
                ffn_rest()
            if layer == 0 and OPT['ff'] == 10:
                a('s_waitcnt vmcnt(0)')
                ffn_rest()
            if layer == 0 and OPT['ff'] == 11:
                issue_w13(1, 4)
                issue_w2()
            if layer == 0 and OPT['ff'] == 12:
                issue_w13(2, 4)
                a('s_waitcnt vmcnt(2)')
                issue_w2()
            if layer == 0 and OPT['ff'] == 7:
                if OPT.get('xw', 0) & 2:
                    only_if(False, lambda: issue_w13(FE, 2))
                if OPT.get('xw', 0) & 4:
                    only_if(False, lambda: a('s_waitcnt vmcnt(0)'))
                issue_w13(2, 4)
            if layer == 0 and OPT['ff'] in (6, 7):
                issue_w2()
            if OPT['pages'] == 2:
                page_break()
            if layer == 0 and OPT.get('otouch'):
                sk = newlabel('noout')
                a('s_cmp_lg_u32 %s, 0' % s(sGam))
                a('s_cbranch_scc1 %s' % sk)
                a('global_load_ushort %s, %s, s[22:23]' % (v(T + 22), v(vXw)))
                a.label(sk)
            if layer == 0 and (OPT['opre'] and OPT['clean'] & 8 or OPT['opre'] == 2):
                sk = newlabel('noout')
                a('s_cmp_lg_u32 %s, 0' % s(sGam))
                a('s_cbranch_scc1 %s' % sk)
                a('s_mov_b32 exec_lo, 0x000f000f')
                a('s_mov_b32 exec_hi, 0x000f000f')
                a('global_store_short %s, %s, s[22:23] sc1' % (v(vXw), v(vZero)))
                a('s_mov_b64 exec, -1')
                a.label(sk)
            if layer == 0 and OPT['probe'] == 2:
                assert OPT['ff'] == 4
                race_finish(1 + 4 - FE + 2)
                if not OPT['vlate']:
                    count_votes()
            if layer == 0 and OPT['probe'] == 1:
                probe_near()
                if not OPT['vlate']:
                    count_votes()
            if layer == 0 and OPT['fl']:
                a('v_lshlrev_b32 %s, 7, %s' % (v(T + 5), v(vL)))
                a('v_add_u32 %s, %d, %s' % (v(T + 5), WS_F, v(T + 5)))
                flag_load()
                flag_wait(0)
            if layer == 0 and OPT.get('g0w'):
                flush_deferred()
                a('s_waitcnt vmcnt(%d)' % OPT['g0w'])
            elif layer or OPT['ff'] != 3:
                g_pace(2 * layer)
            else:
                for i in range(OPT.get('xs', 0)):
                    a('s_nop 15')
                stamp('G0 ack')
            x_gather(2 * layer, G_C)
        stamp(pre + ' E3 ok')
        x_to_lds(k4)
        a('s_cmp_eq_u32 %s, 3' % s(sW))
        a('s_waitcnt lgkmcnt(0)')
        idle = newlabel('idle')

        proj(vW13, k4, layer, wsrc=[(vTr, W1 - WO, 4096, 512), (vTr, W3 - WO, 4096, 512)] if layer == 0 else None, skip=idle)
        stamp(pre + ' G pub')
        if layer == 1 and CLEAN():
            a('v_mov_b32 %s, %s' % (v(vKeep), v(T)))
        a('; ---- layer %d: gather gate/up, activation' % layer)

        def w2_regs():
            a('v_and_b32 %s, 32, %s' % (v(T + 1), v(vL)))
            a('v_lshlrev_b32 %s, 6, %s' % (v(T + 1), v(T + 1)))
            a('v_sub_u32 %s, %s, %s' % (v(T + 1), v(vTr), v(T + 1)))
            tr_reads(vW2, vTr, W2 - WO, 1, 4096, 512)
            tr_reads(vW2 + 4, T + 1, W2 - WO + 4096, 1, 4096, 512)

        def ln_all():
            w2_regs()
            ln_mean()
            ln_rstd_a()
            ln_rstd_b(False)
        if layer == 0 and OPT.get('r4', 1):
            cs = {vDs[0]: vD + 16, vDs[1]: vD + 20}

            def issue4(x):
                gload(x, vCons, sLb, BUF_A)
                gload(cs[x], vCons, sLb, BUF_X)

            def spec4(x):
                y = cs[x]
                mask_tag(x)
                mask_tag(y)
                a('v_permlane32_swap_b32 %s, %s' % (v(x + 1), v(x + 3)))
                a('v_permlane32_swap_b32 %s, %s' % (v(y + 1), v(y + 3)))
                a('v_add_f32 %s, %s, %s' % (v(r + 1), v(x + 1), v(x + 3)))
                a('v_add_f32 %s, %s, %s' % (v(r + 5), v(y + 1), v(y + 3)))
                a('v_permlane32_swap_b32 %s, %s' % (v(x), v(x + 2)))
                a('v_permlane32_swap_b32 %s, %s' % (v(y), v(y + 2)))
                a('v_add_f32 %s, %s, %s' % (v(r + 4), v(y), v(y + 2)))
                a('v_add_f32 %s, %s, %s' % (v(r), v(x), v(x + 2)))
            stats_load(k4, vSs[1])
            flush_deferred()
            ring2(vSs, lambda x: stats_load(2, x), lambda x: chk_stats(x, 2), ln_spec, 1, 1, 2)
            issue4(vDs[0])
            ln_mean()
            issue4(vDs[1])
            ln_rstd_a()
            ln_rstd_b(False)
            w2_regs()
            ring2(vDs, issue4, lambda x: chk_byte([x, cs[x]], sTag + 2), spec4, 2, 2, 2)
            a('v_permlane16_swap_b32 %s, %s' % (v(r + 4), v(r + 5)))
            a('v_add_f32 %s, %s, %s' % (v(r + 4), v(r + 4), v(r + 5)))
            L0COL.append(1)
        elif layer == 0:
            loads = [(r, vCons, sLb, BUF_A), (r + 4, vCons, sLb, BUF_X)]

            def data():
                ln_spec(vSs[0])
                for x in loads:
                    gload(*x)

            def spec4():
                mask_tag(r)
                mask_tag(r + 4)
                red_a(r, r)
            flush_deferred()
            poll([(vSs[0], vStC, sLb, 0)], lambda: chk_stats(vSs[0], k4), data, cnt=1, issued=True)
            poll(loads, lambda: chk_byte([r, r + 4], sTag + k4), spec4, work=ln_all, issued=True)
            red_a(r + 4, r + 4)
            red_b(r + 4, vCg)
        else:
            l_gather(k4, spec, ln_spec, [ln_mean, ln_rstd_a, lambda: ln_rstd_b(False)])
        stamp(pre + ' E4 ok')
        if L0COL:
            L0COL.pop()
            a('v_permlane16_swap_b32 %s, %s' % (v(r), v(r + 1)))
            a('v_add_f32 %s, %s, %s' % (v(r), v(r), v(r + 1)))
            dpp('v_add_f32', vCg, r + 4, r + 4, 'row_ror:8')
            dpp('v_add_f32', r, r, r, 'row_ror:8')
        else:
            red_b(r, r)
        a('v_fma_f32 %s, -%s, %s, %s' % (v(r), v(vMean), v(vCg), v(r)))
        a('v_mul_f32 %s, %s, %s' % (v(r), v(r), v(vRs)))
        bf16r(r, r)
        a('v_mul_f32 %s, %s, %s' % (v(r + 1), s(sNl2e), v(r)))
        a('v_exp_f32 %s, %s' % (v(r + 1), v(r + 1)))
        a('v_and_b32_dpp %s, %s, %s row_shl:4 row_mask:0xf bank_mask:0xf' % (v(r + 2), v(r), v(vHmask)))
        a('v_add_f32 %s, 1.0, %s' % (v(r + 1), v(r + 1)))
        a('v_rcp_f32 %s, %s' % (v(r + 1), v(r + 1)))
        a('v_mul_f32 %s, %s, %s' % (v(r), v(r), v(r + 1)))
        bf16r(r, r)
        a('v_mul_f32 %s, %s, %s' % (v(r), v(r), v(r + 2)))
        a('v_cvt_pk_bf16_f32 %s, %s, %s' % (v(r), v(r), v(r)))
        a('ds_write_b16 %s, %s' % (v(vHw), v(r)))
        if layer == 0:
            join = newlabel('join')

            def idle_path(idle=idle, join=join, w2_regs=w2_regs):
                a.label(idle)
                w2_regs()
                a('s_branch %s' % join)
            deferred.append(idle_path)
            a.label(join)
        else:
            join = newlabel('join')

            def idle_path1(idle=idle, join=join):
                a.label(idle)
                a('v_mov_b32 %s, %s' % (v(vKeep), s(sTag + 5)))
                a('s_cmp_lg_u32 s2, 255')
                a('s_cbranch_scc1 %s' % join)
                a('s_add_u32 s55, %s, 16' % s(sE))
                a('v_mov_b32 %s, s55' % v(T + 2))
                a('s_mov_b64 exec, 1')
                a('global_store_dword %s, %s, s[26:27] sc1' % (v(vZero), v(T + 2)))
                a('s_mov_b64 exec, -1')
                a('s_branch %s' % join)
            deferred.append(idle_path1)
            a.label(join)
        a('s_waitcnt lgkmcnt(0)')
        a('s_barrier')
        if layer == 0 and OPT['probe'] == 3:
            gemv_publish_g(2, vW2, HB, 1, G_D, mid=race_prep, post=race_start)
        else:
            gemv_publish_g(2, vW2, HB, 2 * layer + 1, G_D, mid=clean_a if layer == 1 and CLEAN() & 2 and not OPT['cend'] & 2 else None)
        stamp(pre + ' D pub')

    a('; ---- final sum (group 0 only)')
    if OPT.get('opack'):
        a('v_mov_b32 %s, 0xffff' % v(T + 11))
        a('v_and_b32 %s, 0x7c, %s' % (v(T + 12), v(vXw)))
    if CLEAN() & 4:
        fin = newlabel('last')
        if OPT.get('cx0', 1):
            a('s_cmp_ge_u32 %s, 4' % s(sGam))
            a('s_cbranch_scc1 L_fin')
        clean_b_prep()
        a('s_cmp_eq_u32 %s, 0' % s(sGam))
        a('s_cbranch_scc1 %s' % fin)

        def clean_all():
            clean_b()
            if OPT['cend'] & 2:
                clean_a()
            if OPT['cend'] & 1:
                clean_x()
        a('s_waitcnt vmcnt(%d)' % 0)
        clean_all()
        a('s_branch L_fin')
        flush_deferred(False)
        a.label(fin)
        g_pace(3)
        x_gather(3, G_D, work=clean_all, cnt=1 + bin(OPT['cend'] & 3).count('1'))
    else:
        if OPT.get('wb1') and FAST[0]:
            sk = newlabel('nowb')
            a('s_lshl_b32 s55, s2, 2')
            a('s_add_u32 s55, s55, %s' % s(sW))
            a('s_cmp_lg_u32 s55, %d' % (64 * 4))
            a('s_cbranch_scc1 %s' % sk)
            if OPT['wb1'] == 2:
                a('s_waitcnt vmcnt(0)')
            a('buffer_wbl2 sc1')
            a.label(sk)
        a('s_cmp_lg_u32 %s, 0' % s(sGam))
        a('s_cbranch_scc1 L_fin')
        g_pace(3)
        x_gather(3, G_D)
    sc = ' sc1' if OPT['clean'] & 8 else ''
    if OPT.get('opack'):
        a('v_mov_b32 %s, %s' % (v(T + 1), v(T)))
        a('v_permlane16_swap_b32 %s, %s' % (v(T), v(T + 1)))
        a('v_bfi_b32 %s, %s, %s, %s' % (v(T), v(T + 11), v(T), v(T + 1)))
        if OPT['opack'] == 2:
            a('v_mov_b32 %s, %s' % (v(T + 1), v(T)))
            a('v_permlane32_swap_b32 %s, %s' % (v(T), v(T + 1)))
            a('s_mov_b64 exec, 15')
            a('global_store_dwordx2 %s, %s, s[22:23]%s' % (v(T + 12), v(T, 2), sc))
        else:
            a('s_mov_b32 exec_lo, 15')
            a('s_mov_b32 exec_hi, 15')
            a('global_store_dword %s, %s, s[22:23]%s' % (v(T + 12), v(T), sc))
    else:
        a('s_mov_b32 exec_lo, 0x000f000f')
        a('s_mov_b32 exec_hi, 0x000f000f')
        a('global_store_short %s, %s, s[22:23]%s' % (v(vXw), v(T), sc))


front()
FAST[0] = bool(OPT['fast'])
tail()
a.label('L_fin')
if OPT.get('dirty'):
    if 'dx' in OPT:
        a('s_and_b32 s55, s2, 7')
        a('s_cmp_eq_u32 s55, 0')
        a('s_cbranch_scc%d L_nodirty' % OPT['dx'])
    a('s_mov_b64 exec, -1')
    a('s_lshl_b32 s55, s2, 2')
    a('s_add_u32 s55, s55, %s' % s(sW))
    a('s_lshl_b32 s55, s55, 15')
    a('s_add_u32 s55, s55, 0x400000')
    a('v_lshl_add_u32 %s, %s, 4, s55' % (v(T + 1), v(vL)))
    for i in range(OPT['dirty']):
        a('global_store_dwordx4 %s, %s, s[26:27]' % (v(T + 1), v(vD, 4)))
        a('v_add_u32 %s, 1024, %s' % (v(T + 1), v(T + 1)))
if OPT.get('dirty'):
    a.label('L_nodirty')
if OPT.get('dbgpol'):
    a('s_mov_b64 exec, -1')
    a('v_xor_b32 %s, %s, %s' % (v(T + 2), v(vConsG), v(vConsG0)))
    a('v_readfirstlane_b32 s6, %s' % v(T + 2))
    a('s_cmp_lg_u32 s6, 0')
    a('s_cselect_b32 s6, 1, 0')
    a('s_lshr_b32 s7, %s, 2' % s(sXcc))
    a('s_xor_b32 s6, s6, s7')
    a('s_lshr_b32 s7, %s, 1' % s(sW))
    a('s_xor_b32 s6, s6, s7')
    a('s_lshl_b32 s6, s6, 4')
    a('s_lshl_b32 s6, 1, s6')
    a('v_mov_b32 %s, s6' % v(T + 2))
    a('s_and_b32 s7, %s, 7' % s(sXcc))
    a('s_lshl_b32 s7, s7, 2')
    a('v_mov_b32 %s, s7' % v(T + 3))
    a('s_mov_b64 exec, 1')
    a('global_atomic_add %s, %s, s[24:25]' % (v(T + 3), v(T + 2)))
if OPT.get('wb'):
    a('buffer_wbl2 sc1')
if OPT.get('delay'):
    if 'only' in OPT:
        a('s_cmp_lg_u32 s2, %d' % OPT['only'])
        a('s_cbranch_scc1 L_end')
    a.label('L_dly')
    a('s_memrealtime s[6:7]')
    a('s_waitcnt lgkmcnt(0)')
    a('s_sub_u32 s8, s6, s100')
    a('s_cmp_lt_u32 s8, %d' % OPT.get('until', 3000))
    a('s_cbranch_scc1 L_dly')
if DIAG:
    a('s_mov_b64 exec, -1')
    a('s_memrealtime s[4:5]')
    a('s_waitcnt lgkmcnt(0)')
    a('v_mov_b32 %s, 0' % v(T))
    for i in range(len(stamps)):
        a('v_writelane_b32 %s, %s, %d' % (v(T), s(stamp_regs[i]), i))
    a('v_writelane_b32 %s, s4, %d' % (v(T), len(stamps)))
    a('v_xor_b32 %s, %s, %s' % (v(T + 2), v(vConsG), v(vConsG0)))
    a('v_readfirstlane_b32 s6, %s' % v(T + 2))
    a('v_writelane_b32 %s, s6, 62' % v(T))
    a('v_writelane_b32 %s, s12, 61' % v(T))
    a('v_writelane_b32 %s, s13, 60' % v(T))
    a('v_writelane_b32 %s, %s, 63' % (v(T), s(sXcc)))
    a('s_lshl_b32 s55, s2, 2')
    a('s_add_u32 s55, s55, %s' % s(sW))
    a('s_lshl_b32 s55, s55, 8')
    a('s_add_u32 s55, s55, %d' % WS_DIAG)
    a('v_lshl_add_u32 %s, %s, 2, s55' % (v(T + 1), v(vL)))
    a('global_store_dword %s, %s, s[26:27]' % (v(T + 1), v(T)))
a.label('L_end')
a('s_endpgm')
flush_deferred(False)
a.label('L_fastend')
if OPT['fast']:
    a('; ==== the same phases with write-through stores: taken when the group is spread over several XCDs')
    a.label('L_slowtail')
    FAST[0] = False
    a.hist = []
    a('s_nop 1')
    tail()
    a('s_branch L_fin')
    flush_deferred(False)
    a('s_endpgm')
a.raw('''.section .rodata,"a"
.p2align 6
.amdhsa_kernel %s_kernel
  .amdhsa_next_free_vgpr %d
  .amdhsa_next_free_sgpr 102
  .amdhsa_accum_offset %d
  .amdhsa_group_segment_fixed_size 0
  .amdhsa_kernarg_size 96
  .amdhsa_user_sgpr_count 2
  .amdhsa_user_sgpr_kernarg_segment_ptr 1
  .amdhsa_system_sgpr_workgroup_id_x 1
  .amdhsa_float_denorm_mode_32 3
.end_amdhsa_kernel''' % (NAME, NVGPR, NVGPR))
sys.stdout.write(a.text())
if DIAG:
    sys.stderr.write('STAMPS ' + '|'.join(stamps + ['end']) + '\n')
sys.stderr.write('nops inserted: %d\n' % a.nops)
```

```python
import sys, math, struct
from asm import Asm

NAME = 'interleave_layers__sliding_block_cached__glu_gated_swiglu__decode'
OPT = dict(diag=0, fast=1, nt=1, kw=5, fe=0, wol=1, probe=3, vw=1, thr=90, pages=2, cnt=0, early=2, d0=0, refresh=0, spipe=1, late_rs=1, na=0, nsl=0, w2e=0, ff=7, vlate=1, fl=0, flp=0, pad=0, nva=8, ksplit=0, wopos=0, ool=0, stg=1, vq=0, clean=0, cend=1, opre=1)
for a_ in sys.argv[1:]:
    k_, v_ = a_.split('=')
    OPT[k_] = int(v_)
DIAG = OPT['diag']
NT = {0: '', 1: ' nt', 2: ' sc1 nt', 3: ' sc0 sc1 nt', 4: ' sc0 nt', 5: ' sc1', 6: ' sc0 sc1'}[OPT['nt']]
STAGE = not DIAG or DIAG == 6

XB, ONES, QB, OB, HB, MB, DUMMY, PB = 0, 128, 256, 512, 768, 896, 960, 1024
WQ, VI, WO = 4096, 20480, 53248
W1, W3, W2 = WO + 16384, WO + 24576, WO + 32768
W4 = OPT.get('w4', 0)
KI = WO + 38912 + 2048 * W4
LDS_BYTES = KI + 32768
WS_F = 0x10000
WS_L, WS_P, WS_G, WS_DIAG = 0x40000, 0xc0000, 0x100000, 0x200000
WS_L2D = 0x140000 + 0x100000 * OPT['pad']
BUF_A, BUF_X, BUF_B, STATS, VOTES = 0, 1024, 2048, 3072, 7168
ST0 = 8192
PAD = OPT['pad']
GOFF = 4096 * PAD
G_C, G_D, G_H = -GOFF, (2048 << PAD) - GOFF, 1024 << PAD
G_X = (0x20000 << PAD) | 0x2000
WSH = 1 - PAD

vL, vCons, vPubL, vPw, vPubG, vStP, vStC, vTagM, vStP2 = range(1, 10)
vXw, vQw, vHw, vOpR, vXopR, vConsG, vConsG0, vCs, vZero, vMw = range(10, 20)
trq, vTr, vHmask, vX, vCq, vCg, vMean, vRs = 20, 22, 23, 24, 25, 26, 27, 28
vMr, vF = 29, 30
vWQ, vK, vV, vWO, vW13, vW2 = 32, 48, 80, 112, 128, 144
wo0, wo1, f0, f1, vPre, vVo = 144, 145, 146, 147, 148, 149
T = 152
vC = T + 12
vA = 176
vD = 192
vP = 224
vSt, vSt4, vKeep = 232, 236, 238
vCl = 20
vDs, vSs = [240, 244], [248, 252]
NVGPR = 256
sW, sJ, sGam, sPr, sE, sC0, sCnt, sXcc, sTo = 28, 29, 30, 31, 32, 33, 34, 35, 36
sLb, sGb0, sGb1 = 38, 40, 14
sPc, sT1 = 42, 44
sCs, sMaskHi, sInv512, sEps, sNl2e = 50, 51, 52, 53, 54
sM0, sM1, sHi, sCl = 56, 42, 46, 44
sTag = 60

a = Asm()
stamp_regs = list(range(70, 102, 2))
stamps = []
nstamp = [0]
lbl = [0]
FAST = [False]


def v(n, cnt=1):
    return 'v%d' % n if cnt == 1 else 'v[%d:%d]' % (n, n + cnt - 1)


def s(n, cnt=1):
    return 's%d' % n if cnt == 1 else 's[%d:%d]' % (n, n + cnt - 1)


def stamp(name):
    nstamp[0] += 1
    if OPT.get('delay') == 3 and OPT.get('at', 1) == nstamp[0]:
        a('s_memrealtime s[100:101]')
        sys.stderr.write('delay anchored at ' + name + '\n')
    keep = {0: False, 1: name[:2] not in ('L1', 'x ') and name[0] not in 'Gz', 2: name[:2] == 'L1', 5: name[0] == 'G' or name[3:] in ('O pub', 'D pub', 'E3 ok', 'E5 ok') or name in ('L0 E1 ok', 'L0 S pub', 'L0 E2 ok'),
            6: False, 7: name[:2] in ('L1', 'x '), 8: name[:2] == 'z1' or name in ('L1 E1 ok', 'L1 S pub', 'L1 E2 ok', 'L1 O pub', 'L1 E5 ok', 'L1 Q pub')}[DIAG]
    if not (keep or DIAG and name == 'start'):
        return
    if name not in stamps:
        if len(stamps) >= len(stamp_regs):
            return
        stamps.append(name)
    r = stamp_regs[stamps.index(name)]
    if OPT['cnt'] and name != 'start':
        a('s_sub_u32 %s, 0x40000, %s' % (s(r), s(sTo)))
    else:
        a('%s %s' % ('s_memtime' if DIAG in (7, 8) and name != 'x rt0' else 's_memrealtime', s(r, 2)))


def f32(x):
    return '0x%08x' % struct.unpack('<I', struct.pack('<f', x))[0]


def newlabel(p):
    lbl[0] += 1
    return 'L_%s_%d' % (p, lbl[0])


def lgkm(n):
    a('s_waitcnt lgkmcnt(%d)' % (n if STAGE else 0))


def mfma(d, x, y, c=None):
    a('v_mfma_f32_16x16x32_bf16 %s, %s, %s, %s' % (v(d, 4), v(x, 4), v(y, 4), '0' if c is None else v(c, 4)))


def dpp(op, d, x, y, ctl, rm=0xf):
    a('%s_dpp %s, %s, %s %s row_mask:0x%x bank_mask:0xf' % (op, v(d), v(x), v(y), ctl, rm))


X1, X2 = 'quad_perm:[1,0,3,2]', 'quad_perm:[2,3,0,1]'


def lstore(op, addr, data, off):
    a('%s %s, %s, %s offset:%d%s' % (op, addr, data, s(sLb, 2), off, '' if FAST[0] and not OPT.get('allsc') else ' sc1'))


def gload(d, vo, b, im):
    a('global_load_dwordx4 %s, %s, %s offset:%d sc1' % (v(d, 4), v(vo), s(b, 2), im))


def tick():
    a('s_sub_u32 %s, %s, 1' % (s(sTo), s(sTo)))
    a('s_cbranch_scc1 L_end')


deferred = []


def flush_deferred(jump=True):
    if not deferred:
        return
    l = newlabel('skip')
    if jump:
        a('s_branch %s' % l)
    hist = a.hist
    while deferred:
        a.hist = []
        deferred.pop(0)()
    a.hist = hist
    a.label(l)


def poll(loads, check, spec, work=None, cnt=0, issued=False, backoff=0, onretry=None):
    top, ent = newlabel('poll'), newlabel('pent')
    if not issued:
        for x in loads:
            gload(*x)
    if work:
        work()

    def retry():
        a.label(top)
        tick()
        if backoff:
            a('s_sleep %d' % backoff)
        if onretry:
            onretry()
        for x in loads:
            gload(*x)
        if cnt:
            a('s_waitcnt vmcnt(0)')
        if OPT['ool']:
            a('s_branch %s' % ent)
    if OPT['ool']:
        deferred.append(retry)
    else:
        a('s_branch %s' % ent)
        retry()
    a.label(ent)
    a('s_waitcnt vmcnt(%d)' % cnt)
    check()
    if spec:
        spec()
    a('s_cbranch_vccnz %s' % top)


def ring2(sets, issue, check, spec, cnt1, cnt0, first):
    top, ent, done = newlabel('ring'), newlabel('rent'), newlabel('rdone')

    def retry():
        a.label(top)
        tick()
        issue(sets[0])
        a('s_waitcnt vmcnt(%d)' % cnt1)
        check(sets[1])
        spec(sets[1])
        a('s_cbranch_vccz %s' % done)
        issue(sets[1])
        if first != cnt0:
            a('s_waitcnt vmcnt(%d)' % cnt0)
        if OPT['ool']:
            a('s_branch %s' % ent)
    if OPT['ool']:
        deferred.append(retry)
    else:
        a('s_branch %s' % ent)
        retry()
    a.label(ent)
    a('s_waitcnt vmcnt(%d)' % first)
    check(sets[0])
    spec(sets[0])
    a('s_cbranch_vccnz %s' % top)
    a.label(done)


def chk_byte(regs, tag):
    if len(regs) == 1:
        a('v_cmp_ne_u32_sdwa vcc, %s, %s src0_sel:BYTE_0 src1_sel:BYTE_0' % (v(regs[0]), s(tag)))
    else:
        a('v_bitop3_b32 %s, %s, %s, %s bitop3:0x7e' % (v(T + 23), v(regs[0]), v(regs[1]), s(tag)))
        a('v_cmp_ne_u32_sdwa vcc, %s, %s src0_sel:BYTE_0 src1_sel:DWORD' % (v(T + 23), v(vZero)))


def chk_stats(x, k):
    a('v_cmp_ne_u32 vcc, %s, %s' % (s(sTag + k), v(x + (2 if k % 3 == 1 else 1))))


def red_a(x, c):
    a('v_permlane32_swap_b32 %s, %s' % (v(x + 1), v(x + 3)))
    a('v_add_f32 %s, %s, %s' % (v(c + 1), v(x + 1), v(x + 3)))
    a('v_permlane32_swap_b32 %s, %s' % (v(x), v(x + 2)))
    a('v_add_f32 %s, %s, %s' % (v(c), v(x), v(x + 2)))


def red_b(c, out):
    a('v_permlane16_swap_b32 %s, %s' % (v(c), v(c + 1)))
    a('v_add_f32 %s, %s, %s' % (v(c), v(c), v(c + 1)))
    dpp('v_add_f32', out, c, c, 'row_ror:8')


def mask_tag(x):
    a('v_and_b32 %s, %s, %s' % (v(x), s(sMaskHi), v(x)))


def bf16r(dst, src):
    a('v_cvt_pk_bf16_f32 %s, %s, %s' % (v(dst), v(src), v(src)))
    a('v_and_b32 %s, 0xffff0000, %s' % (v(dst), v(dst)))


def allred(op, x, t, bits):
    for b in bits:
        if b < 4:
            dpp(op, x, x, x, {0: X1, 1: X2, 3: 'row_ror:8'}[b])
        else:
            a('v_mov_b32 %s, %s' % (v(t), v(x)))
            a('v_permlane%d_swap_b32 %s, %s' % (16 if b == 4 else 32, v(x), v(t)))
            a('%s %s, %s, %s' % (op, v(x), v(x), v(t)))


def set_tags(k):
    a('v_mov_b32 %s, %s' % (v(vSt + 2), s(sTag + k)))
    if k % 3 != 1:
        a('v_cndmask_b32 %s, %s, %s, %s' % (v(vSt4 + 1), v(vSt + 2), v(vSt + 3), s(sHi, 2)))


def ln_stats(k, addr=None):
    g = vSt4
    a('v_mul_f32 %s, %s, %s' % (v(T + 7), v(vX), v(vX)))
    a('v_permlane32_swap_b32 %s, %s' % (v(g), v(T + 7)))
    a('v_add_f32 %s, %s, %s' % (v(g), v(g), v(T + 7)))
    allred('v_add_f32', g, None, [0, 1])
    dpp('v_add_f32', g, g, g, 'row_bcast:15', 0xa)
    a('s_mov_b64 exec, %s' % s(sM1, 2))
    lstore('global_store_dwordx2', v(addr or vStP2), v(g, 2), 512 * (k & 1))
    a('s_mov_b64 exec, -1')


def ln_spec(x):
    a('v_permlane32_swap_b32 %s, %s' % (v(x), v(x + 2)))
    a('v_add_f32 %s, %s, %s' % (v(vC), v(x), v(x + 2)))


def ln_mean():
    c = vC
    allred('v_add_f32', c, c + 1, [4, 3, 0, 1])
    a('v_mul_f32 %s, %s, %s' % (v(c), s(sInv512), v(c)))
    a('v_mov_b32 %s, %s' % (v(c + 1), v(c)))
    a('v_permlane32_swap_b32 %s, %s' % (v(c), v(c + 1)))
    bf16r(vMean, c)


def ln_rstd_a():
    c = vC
    a('v_fma_f32 %s, -%s, %s, %s' % (v(c + 1), v(c), v(c), v(c + 1)))
    a('v_max_f32 %s, 0, %s' % (v(c + 1), v(c + 1)))
    bf16r(c + 1, c + 1)
    a('v_add_f32 %s, %s, %s' % (v(c + 1), s(sEps), v(c + 1)))
    bf16r(c + 1, c + 1)
    a('v_sqrt_f32 %s, %s' % (v(c + 1), v(c + 1)))


def ln_rstd_b(scale):
    c = vC
    bf16r(c + 1, c + 1)
    a('v_rcp_f32 %s, %s' % (v(vRs), v(c + 1)))
    if scale:
        a('v_mul_f32 %s, %s, %s' % (v(vCs), s(sCs), v(vRs)))


def stats_load(k, x=vSs[0]):
    gload(x, vStC, sLb, 512 * (k & 1))


def l_gather(k, spec, st_spec, chain, hook=None):
    buf = BUF_A if k % 2 == 0 else BUF_B

    def d_issue(x):
        gload(x, vCons, sLb, buf)
    rf = OPT['refresh'] and OPT['d0']

    def s_issue(x):
        stats_load(k, x)
        if rf:
            d_issue(vDs[0])
    if OPT['d0']:
        d_issue(vDs[0])
    if OPT['spipe']:
        stats_load(k, vSs[1])
        flush_deferred()
        ring2(vSs, s_issue, lambda x: chk_stats(x, k), st_spec, 2 if rf else 1, 3 if rf else 1, 2 + OPT['d0'])
    else:
        flush_deferred()
        poll([(vSs[0], vStC, sLb, 512 * (k & 1))], lambda: chk_stats(vSs[0], k), lambda: st_spec(vSs[0]), cnt=1 + OPT['d0'], issued=True)
    if k >= 3:
        stamp('x st%d' % k)
    if not OPT['d0']:
        d_issue(vDs[0])
        chain[0]()
        d_issue(vDs[1])
    else:
        d_issue(vDs[1])
        chain[0]()
    if hook:
        hook()
    for c in chain[1:]:
        c()
    ring2(vDs, d_issue, lambda x: chk_byte([x], sTag + k), spec, 1, 1, 1)


def x_gather(gi, imm, work=None, cnt=0):
    r = vP
    base = sGb0 if gi < 2 else sGb1

    def spec():
        a('v_pk_add_f32 %s, %s, %s' % (v(r + 2, 2), v(r + 2, 2), v(r + 6, 2)))
        a('v_add_f32 %s, %s, %s' % (v(r + 1), v(r + 1), v(r + 5)))
        mask_tag(r)
        mask_tag(r + 4)
        a('v_add_f32 %s, %s, %s' % (v(r), v(r), v(r + 4)))
        red_a(r, r)
    ad, onretry = vConsG, None
    if OPT.get('alt', 0) >> gi & 1:
        ad = T + 21
        a('v_mov_b32 %s, %s' % (v(ad), v(vConsG)))

        def onretry():
            a('v_xor_b32 %s, 0x%x, %s' % (v(ad), G_X, v(ad)))
    poll([(r, ad, base, imm), (r + 4, ad, base, imm + G_H)], lambda: chk_byte([r, r + 4], sTag + 6 + gi), spec, work=work, cnt=cnt,
         backoff=OPT.get('g%ds' % gi, 0), onretry=onretry)
    red_b(r, r)
    dpp('v_add_f32', r, r, r, 'row_ror:4')
    bf16r(r, r)
    a('v_add_f32 %s, %s, %s' % (v(r), v(r), v(vX)))
    a('v_cvt_pk_bf16_f32 %s, %s, %s' % (v(T), v(r), v(r)))


def x_to_lds(k):
    a('ds_write_b16 %s, %s offset:%d' % (v(vXw), v(T), XB))
    a('v_and_b32 %s, 0xffff0000, %s' % (v(vX), v(T)))
    a('v_and_b32 %s, 0xffff0000, %s' % (v(vSt4), v(T)))
    ln_stats(k)


def tr_pair(dst, addr, off, gstride):
    for g in range(2):
        a('ds_read_b64_tr_b16 %s, %s offset:%d' % (v(dst + 2 * g, 2), v(addr), off + g * gstride))


def proj(wreg, k, layer, wsrc=None, first=False, skip=None):
    rd = vXopR if layer == 0 else vOpR
    a('s_barrier')
    for kk in range(2):
        a('ds_read_b128 %s, %s offset:%d' % (v(vA + 4 * kk, 4), v(rd), XB + 64 * kk))
        if wsrc:
            for cg in range(2):
                ad, off, ks, gs = wsrc[cg]
                tr_pair(wreg + 8 * cg + 4 * kk, ad, off + kk * ks, gs)
    if skip:
        a('s_cbranch_scc1 %s' % skip)
    if not first and OPT['early'] == 1:
        stats_load(k)
    lgkm(7 if wsrc else 1)
    mfma(vD, vA, wreg)
    if wsrc:
        lgkm(5)
    mfma(vD + 4, vA, wreg + 8)
    if not first and OPT['early'] == 2:
        stats_load(k)
    lgkm(2 if wsrc else 0)
    mfma(vD, vA + 4, wreg + 4, vD)
    if wsrc:
        lgkm(0)
    mfma(vD + 4, vA + 4, wreg + 12, vD + 4)
    if not first and OPT['early'] == 0:
        stats_load(k)
    if layer == 1:
        a('s_mov_b32 exec_hi, 0')
    a('v_cndmask_b32 %s, %s, %s, %s' % (v(T), v(vD), v(vD + 4), s(sM0, 2)))
    a('v_bfi_b32 %s, %s, %s, %s' % (v(T), v(vTagM), s(sTag + k), v(T)))
    lstore('global_store_dword', v(vPubL), v(T), BUF_A if k % 2 == 0 else BUF_B)
    if layer == 1:
        a('s_mov_b32 exec_hi, -1')


def tr_reads(dst, addr, base, nk, kstride, gstride):
    for kk in range(nk):
        for g in range(2):
            a('ds_read_b64_tr_b16 %s, %s offset:%d' % (v(dst + 4 * kk + 2 * g, 2), v(addr), base + kk * kstride + g * gstride))


def gemv_publish_g(nk, wreg, src, gi, imm, tr=False, mid=None, post=None):
    for kk in range(nk):
        a('ds_read_b128 %s, %s offset:%d' % (v(vA + 4 * kk, 4), v(vOpR), src + 64 * kk))
        if tr:
            tr_pair(wreg + 4 * kk, vTr, 4096 * kk, 512)
    if mid:
        mid()
    for kk in range(nk):
        lgkm((nk - 1 - kk) * (3 if tr else 1))
        mfma(vD, vA + 4 * kk, wreg + 4 * kk, vD if kk else None)
    if post:
        post()
    if not PAD:
        a('s_mov_b32 exec_hi, 0')
    a('v_bfi_b32 %s, %s, %s, %s' % (v(T), v(vTagM), s(sTag + 6 + gi), v(vD)))
    st = 'global_store_dword %s, %s, %s offset:%d sc1' % (v(vPubG), v(T), s(sGb0 if gi < 2 else sGb1, 2), imm)
    if OPT['na'] >> gi & 1:
        a('s_mov_b32 exec_lo, s37')
        a(st)
        a('s_not_b32 exec_lo, s37')
        a(st)
        a('s_mov_b64 exec, -1')
    else:
        a(st)
        if not PAD:
            a('s_mov_b32 exec_hi, -1')


def g_pace(gi):
    flush_deferred()
    if OPT['na'] >> gi & 1:
        a('s_waitcnt vmcnt(1)')
        for i in range(OPT['nsl']):
            a('s_nop 7')
    else:
        a('s_waitcnt vmcnt(0)')
    if OPT.get('g%dd' % gi):
        a('s_sleep %d' % OPT['g%dd' % gi])
    stamp('G%d ack' % gi)


def probe_near():
    a('s_not_b32 s4, %s' % s(sE))
    a('s_xor_b32 s55, %s, 8192' % s(sPr))
    a('s_waitcnt lgkmcnt(0)')
    a('s_load_dword s4, s[26:27], %s' % s(sPr))
    a('s_load_dword s5, s[26:27], s55')
    a('s_lshl_b32 s59, %s, 2' % s(sJ))
    a('s_add_u32 s59, s59, %s' % s(sW))
    a('s_lshl_b32 s59, s59, 3')
    a('s_add_u32 s59, s59, %d' % VOTES)
    a('v_mov_b32 %s, s59' % v(T + 1))
    a('v_mov_b32 %s, %s' % (v(T + 3), s(sTag + 2)))
    a('s_waitcnt lgkmcnt(1)')
    a('s_memtime s[8:9]')
    a('s_cmp_eq_u32 s4, %s' % s(sE))
    a('s_cselect_b32 s6, %d, -1' % OPT['thr'])
    a('s_waitcnt lgkmcnt(0)')
    a('s_memtime s[10:11]')
    a('s_waitcnt lgkmcnt(0)')
    a('s_sub_u32 s7, s10, s8')
    a('s_cmp_gt_u32 s7, s6')
    a('s_cselect_b32 s6, 1, 0')
    if DIAG:
        a('s_mov_b32 s12, s7')
    a('v_mov_b32 %s, s6' % v(T + 2))
    a('s_mov_b64 exec, 1')
    lstore('global_store_dwordx2', v(T + 1), v(T + 2, 2), 0)
    a('s_mov_b64 exec, -1')


def race_prep():
    a('s_not_b32 s4, %s' % s(sE))
    a('s_xor_b32 s5, %s, 8192' % s(sPr))
    a('v_mov_b32 %s, %s' % (v(T + 4), s(sPr)))


def race_start():
    a('global_load_dword %s, %s, s[26:27] sc1' % (v(T + 5), v(T + 4)))
    a('s_load_dword s4, s[26:27], s5')


def race_finish(behind):
    a('s_lshl_b32 s59, %s, 2' % s(sJ))
    a('s_add_u32 s59, s59, %s' % s(sW))
    a('s_lshl_b32 s59, s59, 3')
    a('s_add_u32 s59, s59, %d' % VOTES)
    a('v_mov_b32 %s, s59' % v(T + 1))
    a('v_mov_b32 %s, %s' % (v(T + 3), s(sTag + 2)))
    a('s_waitcnt vmcnt(%d)' % behind)
    a('s_cmp_eq_u32 s4, %s' % s(sE))
    a('s_cselect_b32 s6, 1, 0')
    if DIAG:
        a('s_mov_b32 s12, s6')
    a('v_mov_b32 %s, s6' % v(T + 2))
    a('s_mov_b64 exec, 1')
    lstore('global_store_dwordx2', v(T + 1), v(T + 2, 2), 0)
    a('s_mov_b64 exec, -1')
    a('s_waitcnt lgkmcnt(0)')


def race_pick():
    a('s_lshr_b32 s55, %s, 1' % s(sW))
    a('s_xor_b32 s59, s55, 1')
    a('s_mul_i32 s55, s55, 0x%x' % G_X)
    a('s_mul_i32 s59, s59, 0x%x' % G_X)
    a('s_waitcnt vmcnt(1)')
    a('s_cmp_eq_u32 s4, %s' % s(sE))
    a('s_cselect_b32 s55, s59, s55')
    a('v_xor_b32 %s, s55, %s' % (v(vConsG), v(vConsG0)))
    if OPT['na']:
        a('s_cmp_eq_u32 s55, 0')
        a('s_cselect_b32 s37, 0xffff, %s' % s(sM0))


def count_votes():
    a('v_and_b32 %s, 31, %s' % (v(T + 4), v(vL)))
    a('v_lshlrev_b32 %s, 3, %s' % (v(T + 4), v(T + 4)))
    a('v_add_u32 %s, %d, %s' % (v(T + 4), VOTES, v(T + 4)))
    if OPT['vw'] and not OPT['vlate']:
        a('s_waitcnt vmcnt(0)')
    a('global_load_dwordx2 %s, %s, %s sc1' % (v(T + 2, 2), v(T + 4), s(sLb, 2)))
    a('s_lshr_b32 s55, %s, 1' % s(sW) if WSH else 's_and_b32 s55, %s, 1' % s(sW))
    a('s_xor_b32 s59, s55, 1')
    a('s_waitcnt vmcnt(0)')
    if OPT['probe'] == 2:
        a('v_cmp_eq_u32 vcc, %s, %s' % (s(sTag + 2), v(T + 3)))
        a('v_cmp_eq_u32 s[6:7], 0, %s' % v(T + 2))
        a('s_and_b32 s4, vcc_lo, s6')
        a('s_andn2_b32 s5, vcc_lo, s6')
    else:
        a('v_xor_b32 %s, %s, %s' % (v(T + 3), s(sTag + 2), v(T + 3)))
        a('v_xor_b32 %s, 1, %s' % (v(T + 2), v(T + 2)))
        a('v_or_b32 %s, %s, %s' % (v(T + 2), v(T + 2), v(T + 3)))
        a('v_cmp_eq_u32 vcc, 0, %s' % v(T + 2))
        a('s_and_b32 s4, vcc_lo, 0x%x' % (0x33333333 if WSH else 0x55555555))
        a('s_and_b32 s5, vcc_lo, 0x%x' % (0xcccccccc if WSH else 0xaaaaaaaa))
    a('s_bcnt1_i32_b32 s4, s4')
    a('s_bcnt1_i32_b32 s5, s5')
    if DIAG:
        a('s_lshl_b32 s13, s4, 8')
        a('s_add_u32 s13, s13, s5')
    a('s_cmp_ge_u32 s4, s5')
    a('s_cselect_b32 s55, s55, s59')
    if OPT['na']:
        a('s_cmp_eq_u32 s55, 0')
        a('s_cselect_b32 s37, 0xffff, %s' % s(sM0))
    a('s_mul_i32 s55, s55, 0x%x' % G_X)
    a('v_xor_b32 %s, s55, %s' % (v(vConsG), v(vConsG0)))


def flag_store(val):
    sk = newlabel('nofl')
    a('s_or_b32 s55, %s, %s' % (s(sJ), s(sW)))
    a('s_cbranch_scc1 %s' % sk)
    a('s_lshl_b32 s55, %s, 7' % s(sGam))
    a('s_add_u32 s55, s55, %d' % WS_F)
    a('v_lshl_add_u32 %s, %s, 2, s55' % (v(T + 21), v(vL)))
    a('v_mov_b32 %s, %s' % (v(T + 20), s(val)))
    a('s_mov_b32 exec_hi, 0')
    a('global_store_dword %s, %s, s[26:27] sc1' % (v(T + 21), v(T + 20)))
    a('s_mov_b32 exec_hi, -1')
    a.label(sk)


def flag_load():
    a('s_mov_b32 exec_hi, 0')
    a('global_load_dword %s, %s, s[26:27] sc1' % (v(T + 6), v(T + 5)))
    a('s_mov_b32 exec_hi, -1')


def flag_wait(cnt):
    top, ent = newlabel('fl'), newlabel('fle')
    a('s_branch %s' % ent)
    a.label(top)
    tick()
    flag_load()
    a('s_waitcnt vmcnt(0)')
    a.label(ent)
    a('s_waitcnt vmcnt(%d)' % cnt)
    a('v_cmp_ne_u32 vcc, %s, %s' % (s(sTag + 6), v(T + 6)))
    a('s_cmp_lg_u32 vcc_lo, 0')
    a('s_cbranch_scc1 %s' % top)


def clean_prep():
    a('v_and_b32 %s, 31, %s' % (v(T + 9), v(vL)))
    a('s_and_b32 s59, %s, 3' % s(sJ))
    a('s_lshl_b32 s59, s59, 7')
    a('s_add_u32 s59, s59, %d' % STATS)
    a('v_lshl_add_u32 %s, %s, 2, s59' % (v(T + 9), v(T + 9)))
    a('v_cndmask_b32 %s, %s, %s, %s' % (v(vCl), v(vPubL), v(T + 9), s(sHi, 2)))
    a('s_add_u32 s55, s59, %d' % (VOTES - STATS))
    a('s_add_u32 s59, s59, %d' % ST0)
    a('s_cmp_lt_u32 %s, 4' % s(sJ))
    a('s_cselect_b32 s59, s59, s55')
    a('v_and_b32 %s, 31, %s' % (v(T + 9), v(vL)))
    a('v_lshl_add_u32 %s, %s, 2, s59' % (v(T + 9), v(T + 9)))
    a('v_add_u32 %s, %d, %s' % (v(T + 10), BUF_X, v(vPubL)))
    a('v_cndmask_b32 %s, %s, %s, %s' % (v(vCl + 1), v(T + 10), v(T + 9), s(sHi, 2)))
    a('v_mov_b32 %s, %s' % (v(vCl + 2), s(sTag + 3)))
    a('s_cmp_lt_u32 %s, %d' % (s(sJ), 6 if OPT['probe'] in (1, 2) else 4))
    a('s_cselect_b32 %s, -1, 0' % s(sCl + 1))
    a('s_cmp_lt_u32 %s, 4' % s(sJ))
    a('s_cselect_b32 %s, -1, 0' % s(sCl))
    a('s_cmp_eq_u32 %s, 0' % s(sW))
    a('s_cselect_b32 %s, %s, 0' % (s(sCl), s(sCl)))
    a('s_cselect_b32 %s, %s, 0' % (s(sCl + 1), s(sCl + 1)))


def clean_x():
    a('s_mov_b32 exec_hi, %s' % s(sCl + 1))
    a('global_store_dword %s, %s, %s sc1' % (v(vCl + 1), v(vCl + 2), s(sLb, 2)))
    a('s_mov_b32 exec_hi, -1')


def clean_a():
    a('s_mov_b32 exec_hi, %s' % s(sCl))
    a('global_store_dword %s, %s, %s sc1' % (v(vCl), v(vCl + 2), s(sLb, 2)))
    a('s_mov_b32 exec_hi, -1')


def clean_b_prep():
    a('v_add_u32 %s, %d, %s' % (v(T + 9), 512, v(vCl)))
    a('v_add_u32 %s, %d, %s' % (v(T + 8), BUF_B, v(vCl)))
    a('v_cndmask_b32 %s, %s, %s, %s' % (v(T + 8), v(T + 8), v(T + 9), s(sHi, 2)))
    a('s_mov_b32 exec_lo, 0')
    a('s_mov_b32 exec_hi, %s' % s(sCl))
    sk = newlabel('nold')
    a('s_cbranch_execz %s' % sk)
    a('global_load_dword %s, %s, %s sc1' % (v(vKeep), v(T + 8), s(sLb, 2)))
    a.label(sk)
    a('s_mov_b64 exec, -1')


def clean_b():
    a('s_mov_b32 exec_hi, %s' % s(sCl))
    a('global_store_dword %s, %s, %s sc1' % (v(T + 8), v(vKeep), s(sLb, 2)))
    a('s_mov_b32 exec_hi, -1')


npage = [0]


def only_if(late, fn):
    sk = newlabel('xs')
    a('s_cmp_ge_u32 %s, 4' % s(sXcc))
    a('s_cbranch_scc%d %s' % (0 if late else 1, sk))
    fn()
    a.label(sk)


def page_break(force=False):
    if OPT['pages'] and (FAST[0] or force):
        l = newlabel('page')
        a('s_branch %s' % l)
        flush_deferred(False)
        a.raw('.p2align 12')
        if OPT.get('tramp') and not force:
            npage[0] += 1
            a.label('L_stub_%d' % npage[0])
            a.raw('    s_branch %s' % ('L_stub_2' if npage[0] == 1 and OPT['pages'] == 2 else 'L_stub_back'))
        a.label(l)
        if OPT.get('tramp') and force:
            a('s_branch L_stub_1')
            a.label('L_stub_back')


a.raw('''; kernarg: x, K, V, wq, wo, (B_x unused), w1, w3, w2, out, debug, ws  (8 bytes each)
;
; One persistent launch, 256 workgroups = 32 groups (attention head / 32-48 ffn columns) x 8 members (128 keys / 64 rows of x).
; Weights and the K/V window are read once (LDS-DMA, then transposing LDS reads) and stay in registers for both layers.
; Per layer: q partials -> [group] -> scores, softmax, PV -> [group] -> wo partials -> [32 groups] -> gate/up partials
;            -> [group] -> w2 partials -> [32 groups].   LayerNorm is applied after the projection:
;            rstd * (x.W - mean * colsum(W)), the statistics travel with the group hand-offs.
; Hand-offs go through d_ws in 64-byte sectors whose 16-byte granules carry a tag byte (tag = epoch word found in d_ws + constant + index
; of the hand-off; the epoch is advanced once per launch). Loads of handed-off data always bypass L1. Group hand-offs use plain
; stores only after the members have compared their XCC ids; otherwise the copy of the code at L_slowtail writes through.
; The all-to-all hand-offs are written twice, once into each half of memory; a wave reads the copy that is near to it.
; @launch grid=(256,1,1) block=(256,1,1) lds=%d
.amdgcn_target "amdgcn-amd-amdhsa--gfx950"
.text
.p2align 12
.globl %s_kernel
.p2align 8
.type %s_kernel,@function
%s_kernel:''' % (LDS_BYTES, NAME, NAME, NAME))
a('s_cmp_ge_u32 s2, 256')
a('s_cbranch_scc1 L_end')
a('s_load_dwordx16 s[4:19], s[0:1], 0')
a('s_load_dwordx8 s[20:27], s[0:1], 64')
stamp('start')
stamp('x rt0')
a('s_getpc_b64 %s' % s(sPc, 2))
a.label('L_pc')
a('v_lshlrev_b32 %s, 6, v0' % v(T))
a('v_min_u32 %s, L_fastend-L_pc-64, %s' % (v(T), v(T)))
a('global_load_dword %s, %s, %s' % (v(T + 22), v(T), s(sPc, 2)))
a('v_lshrrev_b32 %s, 6, v0' % v(T))
a('v_and_b32 %s, 63, v0' % v(vL))
a('v_readfirstlane_b32 %s, %s' % (s(sW), v(T)))
a('s_lshr_b32 s3, s2, 3')
a('s_and_b32 %s, s3, 7' % s(sJ))
a('s_lshr_b32 s3, s3, 3')
a('s_and_b32 s31, s2, 7')
a('s_lshl_b32 %s, s31, 2' % s(sGam))
a('s_add_u32 %s, %s, s3' % (s(sGam), s(sGam)))
u16, pos16, u8, pos8, l3, col16 = T + 1, T + 2, T + 3, T + 4, T + 5, T + 6
t0, t1, t2, t3 = T + 8, T + 9, T + 10, T + 11
k0 = T + 12


def pro_wq():
    a('v_lshrrev_b32 %s, 4, %s' % (v(u16), v(vL)))
    a('v_and_b32 %s, 15, %s' % (v(pos16), v(vL)))
    a('v_lshlrev_b32 %s, 1, %s' % (v(t2), v(u16)))
    a('v_xor_b32 %s, %s, %s' % (v(t2), v(t2), v(pos16)))
    a('v_lshlrev_b32 %s, 4, %s' % (v(t2), v(t2)))
    a('v_lshl_add_u32 %s, %s, 13, %s' % (v(t0), v(u16), v(t2)))
    a('v_xor_b32 %s, 0x80, %s' % (v(t1), v(t0)))
    a('v_add_u32 %s, %d, %s' % (v(t1), 2 * 31744, v(t1)))
    a('s_lshl_b32 s49, %s, 12' % s(sW))
    a('s_lshl_b32 s55, %s, 19' % s(sJ))
    a('s_lshl_b32 s56, %s, 17' % s(sW))
    a('s_add_u32 s55, s55, s56')
    a('s_lshl_b32 s56, %s, 8' % s(sGam))
    a('s_add_u32 s55, s55, s56')
    a('s_add_u32 m0, s49, %d' % WQ)


def pro_rest():
    a('v_and_b32 %s, 3, %s' % (v(l3), v(vL)))
    a('v_lshl_add_u32 %s, %s, 2, %s' % (v(col16), v(l3), v(u16)))
    a('s_lshl_b32 s48, %s, 5' % s(sW))
    a('v_lshl_add_u32 %s, %s, 1, s48' % (v(vXw), v(col16)))
    a('v_lshl_add_u32 %s, %s, 8, %s' % (v(vVo), v(u16), v(t2)))
    a('v_xor_b32 %s, 0x80, %s' % (v(vVo + 1), v(vVo)))
    a('v_xor_b32 %s, %s, %s' % (v(k0), v(u16), v(pos16)))
    a('v_lshlrev_b32 %s, 4, %s' % (v(k0), v(k0)))
    a('v_lshl_add_u32 %s, %s, 8, %s' % (v(k0), v(u16), v(k0)))
    for i in range(1, 4):
        a('v_xor_b32 %s, %d, %s' % (v(k0 + i), i << 6, v(k0)))
    a('s_lshl_b32 s48, %s, 7' % s(sJ))
    a('s_lshl_b32 s56, %s, 20' % s(sGam))
    a('s_lshl_b32 s58, %s, 15' % s(sJ))
    a('s_add_u32 s56, s56, s58')
    a('s_lshl_b32 s58, %s, 13' % s(sW))
    a('s_add_u32 s56, s56, s58')
    a('s_add_u32 s56, s56, %d' % (3072 * 256))


def pro_touch():
    a('v_lshl_add_u32 %s, %s, 4, s49' % (v(vCons), v(vL)))
    a('s_lshl_b32 s57, %s, 14' % s(sGam))
    a('s_add_u32 s57, s57, %d' % WS_L)
    a('s_add_u32 s3, s48, s57')
    a('s_add_u32 s59, s3, s49')
    a('v_lshl_add_u32 %s, %s, 10, s59' % (v(t3), v(vL)))
    a('v_cmp_lt_u32 vcc, 2, %s' % v(vL))
    a('s_add_u32 s3, s3, %d' % STATS)
    a('v_mov_b32 %s, s3' % v(T + 17))
    a('v_cndmask_b32 %s, %s, %s, vcc' % (v(t3), v(t3), v(T + 17)))
    if OPT['probe'] in (1, 2):
        a('s_add_u32 s3, s57, %d' % VOTES)
        a('v_writelane_b32 %s, s3, 3' % v(t3))
        a('s_add_u32 s3, s3, 128')
        a('v_writelane_b32 %s, s3, 4' % v(t3))
    a('s_and_b32 s3, s48, 0x180')
    a('s_add_u32 s3, s3, s57')
    a('s_add_u32 s3, s3, %d' % (STATS + ST0))
    a('v_writelane_b32 %s, s3, 5' % v(t3))


PRO = OPT.get('pro', 2)
pro_wq()
if PRO < 2:
    pro_rest()
if PRO < 1:
    pro_touch()
stamp('pre ka')
a('s_waitcnt lgkmcnt(0)')
stamp('ka')
a('s_add_u32 s10, s10, s55')
a('s_addc_u32 s11, s11, 0')
a('global_load_lds_dwordx4 %s, s[10:11] offset:0%s' % (v(t0), NT))
a('v_add_u32 %s, 31744, %s' % (v(t0), v(t0)))
a('s_load_dword %s, s[26:27], 0' % s(sE))
a('global_load_lds_dwordx4 %s, s[10:11] offset:1024%s' % (v(t0), NT))
a('global_load_lds_dwordx4 %s, s[10:11] offset:2048%s' % (v(t1), NT))
a('v_add_u32 %s, 31744, %s' % (v(t1), v(t1)))
a('global_load_lds_dwordx4 %s, s[10:11] offset:3072%s' % (v(t1), NT))
if PRO >= 2:
    pro_rest()
a('s_add_u32 s4, s4, s48')
a('s_addc_u32 s5, s5, 0')
a('global_load_ushort %s, %s, s[4:5]' % (v(vX), v(vXw)))
a('s_add_u32 s6, s6, s56')
a('s_addc_u32 s7, s7, 0')
if PRO < 1:
    a('global_load_dword %s, %s, s[26:27]' % (v(T + 22), v(t3)))
a('s_add_u32 m0, s58, %d' % KI)
stamp('wq iss')
if OPT.get('bar0', 1):
    a('s_barrier')
for i in range(4):
    a('global_load_lds_dwordx4 %s, s[6:7] offset:%d%s' % (v(k0 + i), 1024 * i, NT))


def k_second():
    a('s_add_u32 m0, s58, %d' % (KI + 4096))
    a('s_add_u32 s6, s6, 4096')
    a('s_addc_u32 s7, s7, 0')
    for i in range(4):
        a('global_load_lds_dwordx4 %s, s[6:7] offset:%d%s' % (v(k0 + i), 1024 * i, NT))


if not OPT['ksplit']:
    k_second()
if PRO >= 1:
    pro_touch()
    a('global_load_dword %s, %s, s[26:27]' % (v(T + 22), v(t3)))
stamp('issued')
a('s_add_u32 s8, s8, s56')
a('s_addc_u32 s9, s9, 0')
a('s_add_u32 %s, s26, s57' % s(sLb))
a('s_addc_u32 %s, s27, 0' % s(sLb + 1))
a('s_lshl_b32 s55, %s, %d' % (s(sJ), 14 + PAD))
a('s_add_u32 s55, s55, %d' % (WS_G + GOFF))
a('s_add_u32 %s, s26, s55' % s(sGb0))
a('s_addc_u32 %s, s27, 0' % s(sGb0 + 1))
a('s_add_u32 %s, %s, 0x%x' % (s(sGb1), s(sGb0), 0x40000 << PAD))
a('s_addc_u32 %s, %s, 0' % (s(sGb1 + 1), s(sGb0 + 1)))
a('s_getreg_b32 %s, hwreg(HW_REG_XCC_ID, 0, 4)' % s(sXcc))
a('s_lshl_b32 %s, s2, 2' % s(sPr))
a('s_add_u32 %s, %s, %s' % (s(sPr), s(sPr), s(sW)))
a('s_and_b32 s55, %s, 63' % s(sPr))
a('s_lshl_b32 s55, s55, 7')
a('s_lshr_b32 %s, %s, 6' % (s(sPr), s(sPr)))
a('s_lshl_b32 %s, %s, 14' % (s(sPr), s(sPr)))
a('s_add_u32 %s, %s, s55' % (s(sPr), s(sPr)))
a('s_add_u32 %s, %s, %d' % (s(sPr), s(sPr), WS_P))
if OPT['probe'] == 1:
    a('s_lshl_b32 s55, s49, %d' % PAD)
    a('s_and_b32 s55, s55, 8192')
    a('s_add_u32 %s, %s, s55' % (s(sPr), s(sPr)))
a('s_mov_b32 %s, 0x40000' % s(sTo))
a('s_mov_b32 %s, %s' % (s(sCs), f32(math.log2(math.e) / math.sqrt(128.0))))
a('s_mov_b32 %s, 0xffffff00' % s(sMaskHi))
a('s_mov_b32 %s, %s' % (s(sInv512), f32(1.0 / 512)))
a('s_mov_b32 %s, %s' % (s(sEps), f32(1e-5)))
a('s_mov_b32 %s, %s' % (s(sNl2e), f32(-math.log2(math.e))))
a('s_mov_b32 %s, 0xffff0000' % s(sM0))
a('s_mov_b32 %s, 0xffff0000' % s(sM0 + 1))
a('s_mov_b32 %s, 0x10000' % s(sM1))
a('s_mov_b32 %s, 0x10000' % s(sM1 + 1))
a('s_mov_b32 %s, 0' % s(sHi))
a('s_mov_b32 %s, -1' % s(sHi + 1))
if OPT.get('fal', 5):
    if OPT.get('fal', 5) == 1:
        a('s_cmp_lt_u32 %s, 12' % s(sGam))
        a('s_cselect_b32 %s, 6, 5' % s(sCnt))
        a('s_cselect_b32 s55, 0, 12')
        a('s_mul_i32 %s, %s, %s' % (s(sC0), s(sGam), s(sCnt)))
        a('s_add_u32 %s, %s, s55' % (s(sC0), s(sC0)))
    else:
        pat = {2: [6, 6, 6, 6, 4, 5, 5, 5], 3: [6, 6, 6, 6, 4, 4, 5, 6], 4: [6, 6, 6, 6, 5, 4, 5, 5], 5: [6, 6, 6, 6, 4, 4, 6, 5], 6: [6, 6, 6, 6, 3, 4, 6, 6],
               7: [7, 7, 7, 6, 4, 4, 4, 4], 8: [8, 7, 7, 6, 3, 3, 5, 4], 9: [8, 8, 8, 7, 2, 2, 4, 4], 10: [7, 7, 6, 6, 4, 4, 5, 4]}[OPT.get('fal', 5)]
        assert sum(pat) == 43
        pre_ = [sum(pat[:g]) for g in range(8)]
        a('s_and_b32 s55, %s, 28' % s(sGam))
        a('s_lshr_b32 %s, 0x%x, s55' % (s(sCnt), sum(n << 4 * g for g, n in enumerate(pat))))
        a('s_and_b32 %s, %s, 15' % (s(sCnt), s(sCnt)))
        a('s_lshl_b32 s55, s55, 1')
        a('s_mov_b32 s24, 0x%x' % sum(n << 8 * g for g, n in enumerate(pre_[:4])))
        a('s_mov_b32 s25, 0x%x' % sum(n << 8 * g for g, n in enumerate(pre_[4:])))
        a('s_lshr_b64 s[24:25], s[24:25], s55')
        a('s_and_b32 s55, s24, 0xff')
        a('s_lshl_b32 s55, s55, 2')
        a('s_and_b32 %s, %s, 3' % (s(sC0), s(sGam)))
        a('s_mul_i32 %s, %s, %s' % (s(sC0), s(sC0), s(sCnt)))
        a('s_add_u32 %s, %s, s55' % (s(sC0), s(sC0)))
    a('s_sub_u32 s37, %s, 1' % s(sCnt))
    a('s_lshl_b32 %s, %s, 3' % (s(sCnt), s(sCnt)))
else:
    a('s_mul_i32 %s, %s, 43' % (s(sC0), s(sGam)))
    a('s_add_u32 %s, %s, 43' % (s(sCnt), s(sC0)))
    a('s_lshr_b32 %s, %s, 3' % (s(sC0), s(sC0)))
    a('s_lshr_b32 %s, %s, 3' % (s(sCnt), s(sCnt)))
    a('s_sub_u32 %s, %s, %s' % (s(sCnt), s(sCnt), s(sC0)))
    a('s_lshl_b32 %s, %s, 3' % (s(sCnt), s(sCnt)))
    a('s_mov_b32 s37, 5')
a('v_mov_b32 %s, 0' % v(vZero))
a('v_lshrrev_b32 %s, 3, %s' % (v(u8), v(vL)))
a('v_and_b32 %s, 7, %s' % (v(pos8), v(vL)))
a('s_add_u32 s55, s49, s48')
a('v_and_b32 %s, 31, %s' % (v(t0), v(vL)))
a('v_lshl_add_u32 %s, %s, 2, s55' % (v(vPubL), v(t0)))
a('v_lshrrev_b32 %s, 5, %s' % (v(t3), v(vL)))
a('v_lshl_add_u32 %s, %s, 10, %s' % (v(vPubL), v(t3), v(vPubL)))
a('s_lshl_b32 s55, %s, 6' % s(sW))
a('v_lshl_add_u32 %s, %s, 1, s55' % (v(vPw), v(t0)))
a('v_lshl_add_u32 %s, %s, 2, %s' % (v(t1), v(pos8), v(u16)))
a('v_lshl_add_u32 %s, %s, 1, s55' % (v(vQw), v(t1)))
a('s_lshl_b32 s55, %s, 6' % s(sGam))
a('s_add_u32 s55, s55, s49')
if PAD:
    a('s_lshl_b32 s55, s55, 1')
a('v_lshl_add_u32 %s, %s, 2, s55' % (v(vPubG), v(pos16)))
if PAD:
    a('v_lshl_add_u32 %s, %s, 6, %s' % (v(vPubG), v(t3), v(vPubG)))
a('v_and_b32 %s, 1, %s' % (v(t2), v(u16)))
a('v_mul_u32_u24 %s, 0x%x, %s' % (v(t2), G_X, v(t2)))
a('v_xor_b32 %s, %s, %s' % (v(vPubG), v(vPubG), v(t2)))
a('v_lshl_add_u32 %s, %s, %d, s55' % (v(vPre), v(pos8), 3 + PAD))
a('v_xor_b32 %s, %s, %s' % (v(vPre), v(vPre), v(t2)))
a('v_and_b32 %s, 1, %s' % (v(t2), v(u8)))
a('v_lshl_add_u32 %s, %s, %d, %s' % (v(vPre), v(t2), 11 + PAD, v(vPre)))
a('v_lshl_add_u32 %s, %s, %d, %s' % (v(vPre), v(t3), 18 + PAD, v(vPre)))
a('s_lshl_b32 s55, %s, 2' % s(sJ))
a('s_add_u32 s55, s55, %s' % s(sW))
a('s_lshl_b32 s55, s55, 4')
a('s_add_u32 s55, s55, %d' % STATS)
a('v_mov_b32 %s, s55' % v(vStP))
a('v_lshl_add_u32 %s, %s, 3, s55' % (v(vStP2), v(t3)))
a('v_lshlrev_b32 %s, 4, %s' % (v(t1), v(l3)))
a('v_lshl_add_u32 %s, %s, 6, %s' % (v(t1), v(u8), v(t1)))
a('v_add_u32 %s, %d, %s' % (v(vStC), STATS, v(t1)))
a('v_mov_b32 %s, 0xff' % v(t2))
a('v_cmp_eq_u32 vcc, 0, %s' % v(l3))
a('v_lshlrev_b32 %s, 4, %s' % (v(vOpR), v(u16)))
a('v_and_b32 %s, 8, %s' % (v(t1), v(vL)))
a('v_cndmask_b32 %s, 0, %s, vcc' % (v(vTagM), v(t2)))
a('v_lshl_add_u32 %s, %s, 4, %s' % (v(vXopR), v(t1), v(vOpR)))
a('v_and_b32 %s, 4, %s' % (v(t1), v(vL)))
a('v_cmp_eq_u32 vcc, 0, %s' % v(t1))
a('v_add_u32 %s, %d, %s' % (v(t1), HB, v(vXw)))
a('v_mov_b32 %s, %d' % (v(t2), DUMMY))
a('v_cndmask_b32 %s, %s, %s, vcc' % (v(vHw), v(t2), v(t1)))
a('v_lshrrev_b32 %s, 1, %s' % (v(t1), v(vXw)))
a('v_cmp_gt_u32 vcc, %s, %s' % (s(sCnt), v(t1)))
a('s_lshl_b32 s55, %s, 2' % s(sW))
a('v_mov_b32 %s, s55' % v(vMw))
a('v_lshlrev_b32 %s, 2, %s' % (v(vMr), v(l3)))
a('v_cndmask_b32 %s, 0, -1, vcc' % v(vHmask))
a('v_lshlrev_b32 %s, 2, %s' % (v(t0), v(t0)))
a('v_mov_b32 %s, 0x3f803f80' % v(t1))
a('ds_write_b32 %s, %s offset:%d' % (v(t0), v(t1), ONES))
a('v_lshlrev_b32 %s, 2, %s' % (v(t0), v(pos8)))
if not W4:
    a('ds_write_b32 %s, %s offset:%d' % (v(t0), v(vZero), HB + 96))
if PAD:
    a('v_lshrrev_b32 %s, 2, %s' % (v(t1), v(vL)))
    a('v_lshlrev_b32 %s, 4, %s' % (v(t2), v(l3)))
    a('v_lshl_add_u32 %s, %s, 7, %s' % (v(t1), v(t1), v(t2)))
    a('s_lshl_b32 s59, s49, 1')
    a('v_add_u32 %s, s59, %s' % (v(vConsG), v(t1)))
else:
    a('v_mov_b32 %s, %s' % (v(vConsG), v(vCons)))
a('v_mov_b32 %s, %s' % (v(vConsG0), v(vConsG)))
a('v_mov_b32 %s, %s' % (v(vSt + 3), s(sXcc)))
r_ = T + 16
a('v_lshrrev_b32 %s, 2, %s' % (v(r_), v(pos16)))
a('v_and_b32 %s, 1, %s' % (v(t0), v(u16)))
a('v_lshl_add_u32 %s, %s, 2, %s' % (v(t1), v(t0), v(r_)))
a('v_lshlrev_b32 %s, 1, %s' % (v(t1), v(t1)))
a('v_xor_b32 %s, s55, %s' % (v(t1), v(t1)))
a('v_lshlrev_b32 %s, 4, %s' % (v(t1), v(t1)))
a('v_lshl_add_u32 %s, %s, 3, %s' % (v(t1), v(l3), v(t1)))
a('v_lshl_add_u32 %s, %s, 3, %s' % (v(t2), v(u16), v(r_)))
a('v_lshl_add_u32 %s, %s, 8, %s' % (v(trq), v(t2), v(t1)))
a('v_xor_b32 %s, 32, %s' % (v(trq + 1), v(trq)))
a('v_lshrrev_b32 %s, 1, %s' % (v(t1), v(r_)))
a('v_lshl_add_u32 %s, %s, 1, %s' % (v(t1), v(t0), v(t1)))
a('v_xor_b32 %s, %s, %s' % (v(t1), s(sW), v(t1)))
a('v_lshlrev_b32 %s, 5, %s' % (v(t1), v(t1)))
a('v_lshl_add_u32 %s, %s, 3, %s' % (v(t1), v(l3), v(t1)))
a('v_lshl_add_u32 %s, %s, 7, %s' % (v(vTr), v(t2), v(t1)))
a('v_add_u32 %s, %d, %s' % (v(vTr), WO, v(vTr)))
a('v_and_b32 %s, 2, %s' % (v(t0), v(u8)))
a('v_xor_b32 %s, %s, %s' % (v(t0), v(t0), v(pos8)))
a('v_lshlrev_b32 %s, 4, %s' % (v(t1), v(t0)))
a('v_lshl_add_u32 %s, %s, 10, %s' % (v(wo0), v(u8), v(t1)))
a('v_xor_b32 %s, 64, %s' % (v(wo1), v(wo0)))
a('v_add_u32 %s, 7168, %s' % (v(wo1), v(wo1)))
a('v_mul_u32_u24 %s, 2752, %s' % (v(t2), v(u8)))
a('v_min_u32 %s, s37, %s' % (v(t1), v(t0)))
a('v_lshl_add_u32 %s, %s, 4, %s' % (v(f0), v(t1), v(t2)))
a('v_xor_b32 %s, 4, %s' % (v(t0), v(t0)))
a('v_min_u32 %s, s37, %s' % (v(t1), v(t0)))
a('v_lshl_add_u32 %s, %s, 4, %s' % (v(f1), v(t1), v(t2)))
a('v_add_u32 %s, %d, %s' % (v(f1), 8 * 2752 - 1024, v(f1)))
a('s_lshl_b32 s55, %s, 17' % s(sGam))
a('s_lshl_b32 s59, %s, 15' % s(sW))
a('s_add_u32 s55, s55, s59')
a('s_add_u32 s55, s55, s48')
a('s_add_u32 s12, s12, s55')
a('s_addc_u32 s13, s13, 0')
a('s_lshl_b32 s55, %s, 2' % s(sJ))
a('s_add_u32 s55, s55, %s' % s(sW))
a('s_mul_i32 s55, s55, %d' % (16 * 2752))
a('s_lshl_b32 s59, %s, 4' % s(sC0))
a('s_add_u32 s55, s55, s59')
a('s_add_u32 s16, s16, s55')
a('s_addc_u32 s17, s17, 0')
a('s_add_u32 s18, s18, s55')
a('s_addc_u32 s19, s19, 0')
a('s_lshl_b32 s55, %s, 13' % s(sC0))
a('s_lshr_b32 s59, s37, 1')
a('s_min_u32 s59, %s, s59' % s(sW))
a('s_lshl_b32 s59, s59, 14')
a('s_add_u32 s55, s55, s59')
a('s_add_u32 s55, s55, s48')
a('s_add_u32 s20, s20, s55')
a('s_addc_u32 s21, s21, 0')
if OPT.get('fal', 5):
    a('s_lshr_b32 s59, s59, 10')
    a('s_add_u32 s59, s59, 8')
    a('s_cmp_ge_u32 s59, %s' % s(sCnt))
    a('s_cselect_b32 s59, 8192, 0')
    a('s_sub_u32 s4, s20, s59')
    a('s_subb_u32 s5, s21, 0')
a('s_add_u32 s22, s22, s48')
a('s_addc_u32 s23, s23, 0')
if OPT['ksplit']:
    k_second()
a('s_add_u32 s6, s8, 4096')
a('s_addc_u32 s7, s9, 0')
a('s_waitcnt lgkmcnt(0)')
for k in range(10):
    a('s_add_u32 %s, %s, 0x%x' % (s(sTag + k), s(sE), 0x5a3c7181 + k))


def issue_v(lo, hi):
    for i in range(lo, hi):
        if i == lo or i == 4:
            a('s_add_u32 m0, s58, %d' % (VI + 4096 * (i >> 2)))
            a('s_nop 0')
        a('global_load_lds_dwordx4 %s, %s offset:%d%s' % (v(vVo + ((i >> 1) & 1)), 's[6:7]' if i >= 4 else 's[8:9]', 1024 * (i & 3), NT))


def issue_wo(lo=0, hi=4):
    a('s_add_u32 m0, s49, %d' % WO)
    for i in range(lo, hi):
        ad = wo0 + (i & 1)
        if i >= 2:
            a('v_add_u32 %s, %d, %s' % (v(T + 20), 2 * 7168, v(ad)))
            ad = T + 20
        a('global_load_lds_dwordx4 %s, s[12:13] offset:%d%s' % (v(ad), 1024 * i, NT))


def issue_w13(lo, hi):
    for i in range(lo, hi):
        if i == lo or i == 2:
            a('s_lshl_b32 s59, %s, 11' % s(sW))
            a('s_add_u32 m0, s59, %d' % (W1 if i < 2 else W3))
            a('s_nop 0')
        a('global_load_lds_dwordx4 %s, s[%d:%d] offset:%d%s' % (v(f0 + (i & 1)), 16 + (i & 2), 17 + (i & 2), 1024 * (i & 1), NT))


def issue_w2():
    if W4:
        a('s_lshl_b32 s59, %s, 11' % s(sW))
    else:
        a('s_min_u32 s59, %s, 2' % s(sW))
        a('s_lshl_b32 s59, s59, 11')
    a('s_add_u32 m0, s59, %d' % W2)
    a('s_nop 0')
    a('global_load_lds_dwordx4 %s, s[20:21] offset:0%s' % (v(wo0), NT))
    a('global_load_lds_dwordx4 %s, %s offset:1024%s' % (v(wo1), 's[4:5]' if OPT.get('fal', 5) else 's[20:21]', NT))


r = vP
FE, KW, WOL = OPT['fe'], OPT['kw'], OPT['wol']
NPRE = 1 + bool(OPT['probe'])
NVA = OPT['nva']
NVB = 8 - NVA
WOH = OPT.get('woh', 0)
WV = OPT.get('wv', 6)
ORD = OPT.get('ord', 0)
NF = OPT.get('fs', 6)
ORD6 = ORD and NF == 6
NLATE = WOH if WOL else 4 + FE + 2 * OPT['w2e']


WOETC = []
L0COL = []


def front():
    a('; ---- layer 0: x slice, query projection partials')
    set_tags(0)
    a('v_add_u32 %s, 0x%x, %s' % (v(T + 12), WS_L2D, v(vStP2)))
    a('v_add_u32 %s, 0x%x, %s' % (v(T + 13), WS_L2D, v(vPubL)))
    a('v_add_u32 %s, 0x%x, %s' % (v(T + 14), ST0, v(vStP2)))
    stamp('consts')
    a('s_waitcnt vmcnt(9)')
    stamp('wq landed')
    a('ds_write_b16 %s, %s offset:%d' % (v(vXw), v(vX), XB))
    issue_v(0, OPT['vq'])
    a('v_lshlrev_b32 %s, 16, %s' % (v(vSt4), v(vX)))
    a('v_lshlrev_b32 %s, 16, %s' % (v(vX), v(vX)))
    FAST[0] = True
    ln_stats(0, T + 14)
    a('s_waitcnt lgkmcnt(0)')

    proj(vWQ, 0, 0, wsrc=[(trq, WQ, 8192, 1024), (trq + 1, WQ, 8192, 1024)], first=True)
    FAST[0] = False
    stamp('L0 Q pub')
    if ORD:
        issue_wo()
    if OPT.get('te'):
        h = OPT.get('th', 4)
        issue_v(OPT['vq'], h)
        sk = newlabel('noth')
        a('s_cmp_ge_u32 %s, 4' % s(sXcc))
        a('s_cbranch_scc1 %s' % sk)
        a('s_waitcnt vmcnt(%d)' % max(8 - OPT['te'] + (PRO >= 1) + 2 + h, 0))
        a.label(sk)
        issue_v(h, NVA)
    else:
        issue_v(OPT['vq'], NVA)
    lstore('global_store_dword', v(T + 13), v(T), BUF_A)
    a('s_mov_b64 exec, %s' % s(sM1, 2))
    lstore('global_store_dwordx2', v(T + 12), v(vSt4, 2), 0)
    a('s_mov_b64 exec, -1')
    a('v_mov_b32 %s, %s' % (v(T + 16), s(sE)))
    a('v_mov_b32 %s, %s' % (v(T + 17), s(sE)))
    if PAD:
        a('v_mov_b32 %s, %s' % (v(T + 18), s(sE)))
        a('v_mov_b32 %s, %s' % (v(T + 19), s(sE)))
    if OPT.get('gpre', 1) == 2:
        a('s_mov_b32 exec_lo, 0')
    if OPT.get('gpre', 1) == 0:
        a('s_mov_b64 exec, 1')
    a('global_store_dwordx%d %s, %s, %s offset:%d sc1' % (2 << PAD, v(vPre), v(T + 16, 2 << PAD), s(sGb0, 2), -GOFF))
    if OPT.get('gpre', 1) != 1:
        a('s_mov_b64 exec, -1')
    if OPT['probe']:
        a('v_and_b32 %s, 31, %s' % (v(T + 18), v(vL)))
        a('v_lshl_add_u32 %s, %s, 2, %s' % (v(T + 18), v(T + 18), s(sPr)))
        a('v_lshrrev_b32 %s, 5, %s' % (v(T + 19), v(vL)))
        a('v_lshlrev_b32 %s, 13, %s' % (v(T + 19), v(T + 19)))
        a('v_xor_b32 %s, %s, %s' % (v(T + 18), v(T + 19), v(T + 18)))
        a('global_store_dword %s, %s, s[26:27] sc1' % (v(T + 18), v(T + 16)))
    a('; ---- layer 0: gather q')
    if OPT.get('cp2'):
        a('s_getpc_b64 s[4:5]')
        a.label('L_pc2')
        a('v_lshlrev_b32 %s, 6, v0' % v(T + 19))
        a('v_min_u32 %s, L_fastend-L_pc2-64, %s' % (v(T + 19), v(T + 19)))
        a('global_load_dword %s, %s, s[4:5]' % (v(T + 22), v(T + 19)))
    a('v_xor_b32 %s, %s, %s' % (v(t0), v(u16), v(pos16)))
    a('v_lshlrev_b32 %s, 4, %s' % (v(t0), v(t0)))
    a('v_lshl_add_u32 %s, %s, 8, %s' % (v(t0), v(pos16), v(t0)))
    a('s_add_u32 s55, s58, %d' % KI)
    a('v_add_u32 %s, s55, %s' % (v(t0), v(t0)))
    for kk in range(1, 4):
        a('v_xor_b32 %s, %d, %s' % (v(t0 + kk), kk << 6, v(t0)))
    alt, both, alts, boths = T + 13, T + 14, T + 15, T + 21
    a('v_mov_b32 %s, %s' % (v(alt), v(vCons)))
    a('v_lshlrev_b32 %s, 1, %s' % (v(both), v(vCons)))
    a('v_add_u32 %s, 0x%x, %s' % (v(both), WS_L2D, v(both)))
    a('v_add_u32 %s, 0x%x, %s' % (v(alts), ST0, v(vStC)))
    a('v_lshlrev_b32 %s, 1, %s' % (v(boths), v(vStC)))
    a('v_add_u32 %s, 0x%x, %s' % (v(boths), WS_L2D + ST0, v(boths)))
    page_break(True)
    behind_k = 2 + NVA + 2 + NPRE + (PRO >= 1) + OPT.get('cp2', 0) + 4 * ORD
    a('s_waitcnt vmcnt(%d)' % (8 - KW + behind_k))
    stamp('K part')
    loads = [(vSs[0], alts, sLb, 0), (r, alt, sLb, BUF_A), (r + 4, alt, sLb, BUF_X)]
    for x in loads:
        gload(*x)
    issue_v(NVA, 8)

    if WOH:
        issue_wo(0, WOH)

    def wo_etc():
        if ORD:
            issue_w13(0, min(NF, 4))
            if NF == 6:
                issue_w2()
            return
        issue_wo(WOH, 4)
        if OPT['w2e']:
            issue_w2()
        issue_w13(0, FE)
    if not WOL:
        wo_etc()
    XL = OPT.get('xw', 0) & 8
    if XL:
        only_if(True, wo_etc)
    a('s_waitcnt vmcnt(%d)' % (behind_k + 3 + NVB + NLATE))
    stamp('K landed')
    for g in range(2):
        for kk in range(4):
            a('ds_read_b128 %s, %s offset:%d' % (v(vK + 16 * g + 4 * kk, 4), v(t0 + kk), 4096 * g))
    if WV:
        a('s_waitcnt vmcnt(%d)' % (8 - WV + 2 + NPRE + 3))
        wo_etc()
    a('s_branch L_e1ent')
    a.label('L_e1top')
    tick()
    a('v_sub_u32 %s, %s, %s' % (v(alt), v(both), v(alt)))
    a('v_sub_u32 %s, %s, %s' % (v(alts), v(boths), v(alts)))
    for x in loads:
        gload(*x)
    if NLATE + NVB or XL or WV:
        a('s_waitcnt vmcnt(0)')
    a.label('L_e1ent')
    if XL:
        only_if(False, lambda: a('s_waitcnt vmcnt(%d)' % NVB))
        a('s_waitcnt vmcnt(%d)' % (NVB + 4 + FE))
    else:
        a('s_waitcnt vmcnt(%d)' % (NLATE + NVB + ((NF if ORD else 4 + FE) if WV else 0)))
    a('v_bitop3_b32 %s, %s, %s, %s bitop3:0x7e' % (v(T + 23), v(r), v(r + 4), s(sTag)))
    a('v_cmp_ne_u32 %s, %s, %s' % (s(sT1, 2), s(sTag), v(vSs[0] + 1)))
    a('v_cmp_ne_u32_sdwa vcc, %s, %s src0_sel:BYTE_0 src1_sel:DWORD' % (v(T + 23), v(vZero)))
    a('s_or_b64 vcc, vcc, %s' % s(sT1, 2))
    a('s_cbranch_vccnz L_e1top')
    stamp('L0 E1 ok')
    if OPT['fl']:
        flag_store(sE)
    if XL:
        only_if(False, wo_etc)
    elif OPT.get('xw', 0) & 1:
        only_if(True, wo_etc)
    elif WOL and OPT['wopos'] == 0 and not WV:
        wo_etc()
    WOETC.append(wo_etc)
    a('v_cmp_ne_u32 vcc, %s, %s' % (s(sXcc), v(vSs[0] + 3)))
    c, x, y = vC, vSs[0], r + 4
    ln_spec(x)
    mask_tag(y)
    a('v_mov_b32 %s, %s' % (v(c + 1), v(c)))
    a('v_permlane32_swap_b32 %s, %s' % (v(y + 1), v(y + 3)))
    mask_tag(r)
    a('v_permlane16_swap_b32 %s, %s' % (v(c), v(c + 1)))
    a('v_add_f32 %s, %s, %s' % (v(c), v(c), v(c + 1)))
    a('v_add_f32 %s, %s, %s' % (v(y + 1), v(y + 1), v(y + 3)))
    a('v_permlane32_swap_b32 %s, %s' % (v(y), v(y + 2)))
    dpp('v_add_f32', c, c, c, 'row_ror:8')
    a('v_add_f32 %s, %s, %s' % (v(y), v(y), v(y + 2)))
    a('v_permlane32_swap_b32 %s, %s' % (v(r + 1), v(r + 3)))
    dpp('v_add_f32', c, c, c, X1)
    a('v_add_f32 %s, %s, %s' % (v(r + 1), v(r + 1), v(r + 3)))
    a('v_permlane16_swap_b32 %s, %s' % (v(y), v(y + 1)))
    dpp('v_add_f32', c, c, c, X2)
    a('v_add_f32 %s, %s, %s' % (v(y), v(y), v(y + 1)))
    a('v_mul_f32 %s, %s, %s' % (v(c), s(sInv512), v(c)))
    a('v_mov_b32 %s, %s' % (v(c + 1), v(c)))
    a('v_permlane32_swap_b32 %s, %s' % (v(r), v(r + 2)))
    dpp('v_add_f32', vCq, y, y, 'row_ror:8')
    a('v_permlane32_swap_b32 %s, %s' % (v(c), v(c + 1)))
    a('v_add_f32 %s, %s, %s' % (v(r), v(r), v(r + 2)))
    bf16r(vMean, c)
    if OPT['fast']:
        a('s_cbranch_vccnz L_slowtail')


def CLEAN():
    return OPT['clean'] if FAST[0] else 0


def tail():
    for layer in range(2):
        pre = 'L%d' % layer
        k1, k2, k4 = 3 * layer, 3 * layer + 1, 3 * layer + 2

        def spec(x):
            mask_tag(x)
            red_a(x, r)
        if layer == 1:
            a('; ---- layer 1: x slice, query projection partials')
            set_tags(k1)
            if OPT['pages'] == 1:
                page_break()
            if OPT['probe'] == 3:
                if not (ORD6 and OPT.get('r0', 1)):
                    race_pick()
            elif OPT['probe'] and OPT['vlate']:
                count_votes()
            if CLEAN():
                clean_prep()
            g_pace(1)
            x_gather(1, G_D)
            stamp(pre + ' E5 ok')
            x_to_lds(k1)
            a('s_waitcnt lgkmcnt(0)')
            proj(vWQ, k1, layer)
            stamp(pre + ' Q pub')
            a('; ---- layer 1: gather q')
            l_gather(k1, spec, ln_spec, [ln_mean])
            stamp(pre + ' E1 ok')
        red_b(r, r)
        a('v_fma_f32 %s, -%s, %s, %s' % (v(r), v(vMean), v(vCq), v(r)))
        a('v_cvt_pk_bf16_f32 %s, %s, %s' % (v(r), v(r), v(r)))
        a('ds_write_b16 %s, %s offset:%d' % (v(vQw), v(r), QB))
        if layer == 1 and CLEAN() & 1 and not OPT['cend'] & 1:
            clean_x()
        ln_rstd_a()
        if layer == 0 and WOL and OPT['wopos'] == 1:
            WOETC[0]()
        a('s_waitcnt lgkmcnt(0)')
        stamp('z%d qw' % layer)
        a('s_barrier')
        stamp('z%d qb' % layer)
        a('; ---- layer %d: attention over this member\'s 128 keys' % layer)
        for kk in range(4):
            a('ds_read_b128 %s, %s offset:%d' % (v(vA + 4 * kk, 4), v(vOpR), QB + 64 * kk))
        ln_rstd_b(True)
        set_tags(k2)
        for kk in range(4):
            lgkm(3 - kk)
            for g in range(2):
                mfma(vD + 4 * g, vA + 4 * kk, vK + 16 * g + 4 * kk, vD + 4 * g if kk else None)
        stamp('z%d qk' % layer)
        if layer == 0:
            if OPT.get('xw', 0) & 1:
                only_if(False, WOETC[0])
            elif WOL and OPT['wopos'] == 2:
                WOETC[0]()
            if NVB:
                a('s_waitcnt vmcnt(%d)' % (NF if ORD else 4 + FE + 2 * OPT['w2e']))
                a('s_barrier')
            tr_reads(vV, trq, VI, 4, 8192, 1024)
        sg = vSt
        mx, e0 = T, T + 1
        a('v_max_f32 %s, %s, %s' % (v(mx), v(vD), v(vD + 4)))
        a('v_cndmask_b32 %s, %s, %s, %s' % (v(e0), v(vD), v(vD + 4), s(sM0, 2)))
        for ro in (8, 4, 2, 1):
            dpp('v_max_f32', mx, mx, mx, 'row_ror:%d' % ro)
        a('v_mul_f32 %s, %s, %s' % (v(sg), v(vCs), v(mx)))
        a('v_fma_f32 %s, %s, %s, -%s' % (v(e0), v(e0), v(vCs), v(sg)))
        a('v_exp_f32 %s, %s' % (v(sg + 1), v(e0)))
        stamp('z%d ex' % layer)
        a('ds_write_b32 %s, %s offset:%d' % (v(vMw), v(sg), MB))
        a('v_cvt_pk_bf16_f32 %s, %s, %s' % (v(e0), v(sg + 1), v(sg + 1)))
        a('ds_write_b16 %s, %s offset:%d' % (v(vPw), v(e0), PB))
        if layer == 0:
            tr_reads(vV + 16, trq + 1, VI, 4, 8192, 1024)
        for ro in (8, 4, 2):
            dpp('v_add_f32', sg + 1, sg + 1, sg + 1, 'row_ror:%d' % ro)
        a('s_waitcnt lgkmcnt(0)')
        stamp('z%d pw' % layer)
        a('s_barrier')
        stamp('z%d pb' % layer)
        mm = T + 4
        a('ds_read_b32 %s, %s offset:%d' % (v(mm), v(vMr), MB))
        for kk in range(4):
            a('ds_read_b128 %s, %s offset:%d' % (v(vA + 4 * kk, 4), v(vOpR), PB + 64 * kk))
        dpp('v_add_f32', sg + 1, sg + 1, sg + 1, 'row_ror:1')
        dpp('v_add_f32', sg + 1, sg + 1, sg + 1, 'row_bcast:15', 0xa)
        a('s_mov_b64 exec, 0x10000')
        lstore('global_store_dwordx4', v(vStP), v(sg, 4), 512 * (k2 & 1))
        a('s_mov_b64 exec, -1')

        def sel(kk):
            a('v_cndmask_b32 %s, %s, %s, %s' % (v(T + 8 + kk), v(vD + 8 * kk), v(vD + 8 * kk + 4), s(sM0, 2)))

        def bc(kk):
            a('v_mov_b32_dpp %s, %s quad_perm:[%d,%d,%d,%d] row_mask:0xf bank_mask:0xf' % (v(T + 16 + kk), v(mm), kk, kk, kk, kk))

        def acc(kk):
            a('%s %s, %s, %s' % ('v_fmac_f32' if kk else 'v_mul_f32', v(T), v(T + 16 + kk), v(T + 8 + kk)))
        lgkm(3)
        stamp('z%d pr' % layer)
        mfma(vD, vA, vV)
        dpp('v_max_f32', mx, mm, mm, X1)
        mfma(vD + 4, vA, vV + 16)
        lgkm(2)
        mfma(vD + 8, vA + 4, vV + 4)
        dpp('v_max_f32', mx, mx, mx, X2)
        mfma(vD + 12, vA + 4, vV + 20)
        a('v_sub_f32 %s, %s, %s' % (v(mm), v(mm), v(mx)))
        lgkm(1)
        mfma(vD + 16, vA + 8, vV + 8)
        a('v_exp_f32 %s, %s' % (v(mm), v(mm)))
        mfma(vD + 20, vA + 8, vV + 24)
        lgkm(0)
        bc(0)
        mfma(vD + 24, vA + 12, vV + 12)
        bc(1)
        bc(2)
        mfma(vD + 28, vA + 12, vV + 28)
        stamp('z%d pv' % layer)
        stats_load(k2)
        sel(0)
        sel(1)
        acc(0)
        acc(1)
        sel(2)
        acc(2)
        bc(3)
        a('s_mov_b32 exec_hi, 0')
        sel(3)
        acc(3)
        a('v_bfi_b32 %s, %s, %s, %s' % (v(T), v(vTagM), s(sTag + k2), v(T)))
        lstore('global_store_dword', v(vPubL), v(T), BUF_A if k2 % 2 == 0 else BUF_B)
        a('s_mov_b32 exec_hi, -1')
        stamp(pre + ' S pub')
        if layer == 0 and ORD:
            tr_reads(vWO, vTr, 0, 4, 4096, 512)
        if layer == 0 and OPT['fl'] and OPT['flp'] == 1:
            a('s_waitcnt vmcnt(0)')
            flag_store(sTag + 6)
            stats_load(k2)
            lstore('global_store_dword', v(vStP), v(vSt), 512 * (k2 & 1))
        a('; ---- layer %d: combine the 8 key blocks, output projection partials' % layer)
        mj, mg, mo, lo = T, T + 1, vC, vC + 1

        def sm_spec(x):
            dpp('v_max_f32', mj, x, x, X1)
            a('v_mov_b32 %s, %s' % (v(mo), v(x)))
            a('v_mov_b32 %s, %s' % (v(lo), v(x + 1)))

        def sm0():
            allred('v_max_f32', mj, T + 2, [1])
            dpp('v_max_f32', mg, mj, mj, 'row_ror:8')
            allred('v_max_f32', mg, T + 2, [4, 5])

        def sm1():
            a('v_sub_f32 %s, %s, %s' % (v(mo), v(mo), v(mg)))
            a('v_sub_f32 %s, %s, %s' % (v(mj), v(mj), v(mg)))
            a('v_exp_f32 %s, %s' % (v(mo), v(mo)))
            a('v_exp_f32 %s, %s' % (v(mj), v(mj)))
            a('v_mul_f32 %s, %s, %s' % (v(mo), v(mo), v(lo)))
            allred('v_add_f32', mo, T + 2, [0, 1, 3, 4, 5])
            a('v_rcp_f32 %s, %s' % (v(mo), v(mo)))
            a('v_mul_f32 %s, %s, %s' % (v(vF), v(mj), v(mo)))

        def spec2(x):
            mask_tag(x)
            a('v_pk_mul_f32 %s, %s, %s op_sel_hi:[1,0]' % (v(x + 2, 2), v(x + 2, 2), v(vF, 2)))
            a('v_pk_mul_f32 %s, %s, %s op_sel_hi:[1,0]' % (v(x, 2), v(x, 2), v(vF, 2)))
            red_a(x, r)
        l_gather(k2, spec2, sm_spec, [sm0, sm1], hook=(lambda: flag_store(sTag + 6)) if layer == 0 and OPT['fl'] and OPT['flp'] == 0 else None)
        stamp(pre + ' E2 ok')
        red_b(r, r)
        a('v_cvt_pk_bf16_f32 %s, %s, %s' % (v(r), v(r), v(r)))
        a('ds_write_b16 %s, %s offset:%d' % (v(vQw), v(r), OB))

        def ffn_rest():
            issue_w13(FE, 4)
            if not OPT['w2e']:
                issue_w2()
        if layer == 0 and OPT['ff'] in (2, 3):
            ffn_rest()
        if layer == 0 and OPT['ff'] == 6:
            issue_w13(FE, 4)
        if layer == 0 and OPT['ff'] == 11:
            issue_w13(0, 1)
        if layer == 0 and OPT['ff'] == 12:
            issue_w13(0, 2)
        if layer == 0 and OPT['ff'] == 7 and not ORD:
            if OPT.get('xw', 0) & 2:
                only_if(True, lambda: issue_w13(FE, 2))
            else:
                issue_w13(FE, 2)
        a('s_waitcnt lgkmcnt(0)')
        a('s_barrier')
        if layer == 0 and OPT['ff'] == 5:
            gemv_publish_g(4, vWO, OB, 0, G_C, tr=True, mid=lambda: issue_w13(FE, 2), post=lambda: issue_w13(2, 4))
            issue_w2()
        elif layer == 0 and ORD:
            if OPT.get('r0', 1) and ORD6:
                gemv_publish_g(4, vWO, OB, 0, G_C, mid=race_prep, post=race_start)
            else:
                gemv_publish_g(4, vWO, OB, 0, G_C)
        elif layer == 0 and OPT['probe'] == 2:
            gemv_publish_g(4, vWO, OB, 0, G_C, tr=True, mid=race_prep, post=race_start)
        else:
            gemv_publish_g(4, vWO, OB, 2 * layer, G_C, tr=layer == 0)
        stamp(pre + ' O pub')
        a('; ---- layer %d: x slice, gate/up partials' % layer)
        set_tags(k4)
        if layer == 0 and OPT['ff'] == 1:
            nrest = 4 - FE + (0 if OPT['w2e'] else 2)
            if OPT['fl']:
                a('v_lshlrev_b32 %s, 7, %s' % (v(T + 5), v(vL)))
                a('v_add_u32 %s, %d, %s' % (v(T + 5), WS_F, v(T + 5)))
                flag_load()
            ffn_rest()
            if OPT['fl']:
                flag_wait(nrest)
            else:
                a('s_waitcnt vmcnt(%d)' % nrest)
            stamp('G0 ack')
            x_gather(0, G_C, work=probe_near if OPT['probe'] else None)
        else:
            flush_deferred()
            if layer == 0 and OPT['ff'] == 4:
                ffn_rest()
            if layer == 0 and OPT['ff'] == 10:
                a('s_waitcnt vmcnt(0)')
                ffn_rest()
            if layer == 0 and OPT['ff'] == 11:
                issue_w13(1, 4)
                issue_w2()
            if layer == 0 and OPT['ff'] == 12:
                issue_w13(2, 4)
                a('s_waitcnt vmcnt(2)')
                issue_w2()
            if layer == 0 and ORD and not ORD6:
                issue_w13(NF, 4)
                issue_w2()
            if layer == 0 and ORD and NF == 4:
                tr_reads(vW13, vTr, W1 - WO, 2, 4096, 512)
                tr_reads(vW13 + 8, vTr, W3 - WO, 2, 4096, 512)
            if layer == 0 and ORD6:
                if OPT.get('r0', 1):
                    race_pick()
                    a('s_waitcnt lgkmcnt(0)')
                tr_reads(vW13, vTr, W1 - WO, 2, 4096, 512)
                tr_reads(vW13 + 8, vTr, W3 - WO, 2, 4096, 512)
                a('v_and_b32 %s, 32, %s' % (v(T + 1), v(vL)))
                a('v_lshlrev_b32 %s, 6, %s' % (v(T + 1), v(T + 1)))
                a('v_sub_u32 %s, %s, %s' % (v(T + 1), v(vTr), v(T + 1)))
                tr_reads(vW2, vTr, W2 - WO, 1, 4096, 512)
                tr_reads(vW2 + 4, T + 1, W2 - WO + 4096, 1, 4096, 512)
            if layer == 0 and OPT['ff'] == 7 and not ORD:
                if OPT.get('xw', 0) & 2:
                    only_if(False, lambda: issue_w13(FE, 2))
                if OPT.get('xw', 0) & 4:
                    only_if(False, lambda: a('s_waitcnt vmcnt(0)'))
                issue_w13(2, 4)
            if layer == 0 and OPT['ff'] in (6, 7) and not ORD:
                issue_w2()
            if OPT['pages'] == 2:
                page_break()
            if layer == 0 and OPT.get('otouch'):
                sk = newlabel('noout')
                a('s_cmp_lg_u32 %s, 0' % s(sGam))
                a('s_cbranch_scc1 %s' % sk)
                a('global_load_ushort %s, %s, s[22:23]' % (v(T + 22), v(vXw)))
                a.label(sk)
            if layer == 0 and (OPT['opre'] and OPT['clean'] & 8 or OPT['opre'] == 2):
                sk = newlabel('noout')
                a('s_cmp_lg_u32 %s, 0' % s(sGam))
                a('s_cbranch_scc1 %s' % sk)
                a('s_mov_b32 exec_lo, 0x000f000f')
                a('s_mov_b32 exec_hi, 0x000f000f')
                a('global_store_short %s, %s, s[22:23] sc1' % (v(vXw), v(vZero)))
                a('s_mov_b64 exec, -1')
                a.label(sk)
            if layer == 0 and OPT['probe'] == 2:
                assert OPT['ff'] == 4
                race_finish(1 + 4 - FE + 2)
                if not OPT['vlate']:
                    count_votes()
            if layer == 0 and OPT['probe'] == 1:
                probe_near()
                if not OPT['vlate']:
                    count_votes()
            if layer == 0 and OPT['fl']:
                a('v_lshlrev_b32 %s, 7, %s' % (v(T + 5), v(vL)))
                a('v_add_u32 %s, %d, %s' % (v(T + 5), WS_F, v(T + 5)))
                flag_load()
                flag_wait(0)
            if layer == 0 and OPT.get('g0w'):
                flush_deferred()
                a('s_waitcnt vmcnt(%d)' % OPT['g0w'])
            elif layer or OPT['ff'] != 3:
                g_pace(2 * layer)
            else:
                for i in range(OPT.get('xs', 0)):
                    a('s_nop 15')
                stamp('G0 ack')
            x_gather(2 * layer, G_C)
        stamp(pre + ' E3 ok')
        x_to_lds(k4)
        if not W4:
            a('s_cmp_eq_u32 %s, 3' % s(sW))
        a('s_waitcnt lgkmcnt(0)')
        idle = None if W4 else newlabel('idle')

        proj(vW13, k4, layer, wsrc=[(vTr, W1 - WO, 4096, 512), (vTr, W3 - WO, 4096, 512)] if layer == 0 and not (ORD and NF >= 4) else None, skip=idle)
        stamp(pre + ' G pub')
        if layer == 1 and CLEAN():
            a('v_mov_b32 %s, %s' % (v(vKeep), v(T)))
        a('; ---- layer %d: gather gate/up, activation' % layer)

        def w2_regs():
            if ORD6:
                return
            if W4:
                tr_reads(vW2, vTr, W2 - WO, 2, 4096, 512)
                return
            a('v_and_b32 %s, 32, %s' % (v(T + 1), v(vL)))
            a('v_lshlrev_b32 %s, 6, %s' % (v(T + 1), v(T + 1)))
            a('v_sub_u32 %s, %s, %s' % (v(T + 1), v(vTr), v(T + 1)))
            tr_reads(vW2, vTr, W2 - WO, 1, 4096, 512)
            tr_reads(vW2 + 4, T + 1, W2 - WO + 4096, 1, 4096, 512)

        def ln_all():
            w2_regs()
            ln_mean()
            ln_rstd_a()
            ln_rstd_b(False)
        if layer == 0 and OPT.get('r4', 1):
            cs = {vDs[0]: vD + 16, vDs[1]: vD + 20}

            def issue4(x):
                gload(x, vCons, sLb, BUF_A)
                gload(cs[x], vCons, sLb, BUF_X)

            def spec4(x):
                y = cs[x]
                mask_tag(x)
                mask_tag(y)
                a('v_permlane32_swap_b32 %s, %s' % (v(x + 1), v(x + 3)))
                a('v_permlane32_swap_b32 %s, %s' % (v(y + 1), v(y + 3)))
                a('v_add_f32 %s, %s, %s' % (v(r + 1), v(x + 1), v(x + 3)))
                a('v_add_f32 %s, %s, %s' % (v(r + 5), v(y + 1), v(y + 3)))
                a('v_permlane32_swap_b32 %s, %s' % (v(x), v(x + 2)))
                a('v_permlane32_swap_b32 %s, %s' % (v(y), v(y + 2)))
                a('v_add_f32 %s, %s, %s' % (v(r + 4), v(y), v(y + 2)))
                a('v_add_f32 %s, %s, %s' % (v(r), v(x), v(x + 2)))
            stats_load(k4, vSs[1])
            flush_deferred()
            ring2(vSs, lambda x: stats_load(2, x), lambda x: chk_stats(x, 2), ln_spec, 1, 1, 2)
            issue4(vDs[0])
            ln_mean()
            issue4(vDs[1])
            ln_rstd_a()
            ln_rstd_b(False)
            w2_regs()
            ring2(vDs, issue4, lambda x: chk_byte([x, cs[x]], sTag + 2), spec4, 2, 2, 2)
            a('v_permlane16_swap_b32 %s, %s' % (v(r + 4), v(r + 5)))
            a('v_add_f32 %s, %s, %s' % (v(r + 4), v(r + 4), v(r + 5)))
            L0COL.append(1)
        elif layer == 0:
            loads = [(r, vCons, sLb, BUF_A), (r + 4, vCons, sLb, BUF_X)]

            def data():
                ln_spec(vSs[0])
                for x in loads:
                    gload(*x)

            def spec4():
                mask_tag(r)
                mask_tag(r + 4)
                red_a(r, r)
            flush_deferred()
            poll([(vSs[0], vStC, sLb, 0)], lambda: chk_stats(vSs[0], k4), data, cnt=1, issued=True)
            poll(loads, lambda: chk_byte([r, r + 4], sTag + k4), spec4, work=ln_all, issued=True)
            red_a(r + 4, r + 4)
            red_b(r + 4, vCg)
        else:
            l_gather(k4, spec, ln_spec, [ln_mean, ln_rstd_a, lambda: ln_rstd_b(False)])
        stamp(pre + ' E4 ok')
        if L0COL:
            L0COL.pop()
            a('v_permlane16_swap_b32 %s, %s' % (v(r), v(r + 1)))
            a('v_add_f32 %s, %s, %s' % (v(r), v(r), v(r + 1)))
            dpp('v_add_f32', vCg, r + 4, r + 4, 'row_ror:8')
            dpp('v_add_f32', r, r, r, 'row_ror:8')
        else:
            red_b(r, r)
        a('v_fma_f32 %s, -%s, %s, %s' % (v(r), v(vMean), v(vCg), v(r)))
        a('v_mul_f32 %s, %s, %s' % (v(r), v(r), v(vRs)))
        bf16r(r, r)
        a('v_mul_f32 %s, %s, %s' % (v(r + 1), s(sNl2e), v(r)))
        a('v_exp_f32 %s, %s' % (v(r + 1), v(r + 1)))
        a('v_and_b32_dpp %s, %s, %s row_shl:4 row_mask:0xf bank_mask:0xf' % (v(r + 2), v(r), v(vHmask)))
        a('v_add_f32 %s, 1.0, %s' % (v(r + 1), v(r + 1)))
        a('v_rcp_f32 %s, %s' % (v(r + 1), v(r + 1)))
        a('v_mul_f32 %s, %s, %s' % (v(r), v(r), v(r + 1)))
        bf16r(r, r)
        a('v_mul_f32 %s, %s, %s' % (v(r), v(r), v(r + 2)))
        a('v_cvt_pk_bf16_f32 %s, %s, %s' % (v(r), v(r), v(r)))
        a('ds_write_b16 %s, %s' % (v(vHw), v(r)))
        if W4:
            pass
        elif layer == 0:
            join = newlabel('join')

            def idle_path(idle=idle, join=join, w2_regs=w2_regs):
                a.label(idle)
                w2_regs()
                a('s_branch %s' % join)
            deferred.append(idle_path)
            a.label(join)
        else:
            join = newlabel('join')

            def idle_path1(idle=idle, join=join):
                a.label(idle)
                a('v_mov_b32 %s, %s' % (v(vKeep), s(sTag + 5)))
                a('s_cmp_lg_u32 s2, 255')
                a('s_cbranch_scc1 %s' % join)
                a('s_add_u32 s55, %s, 16' % s(sE))
                a('v_mov_b32 %s, s55' % v(T + 2))
                a('s_mov_b64 exec, 1')
                a('global_store_dword %s, %s, s[26:27] sc1' % (v(vZero), v(T + 2)))
                a('s_mov_b64 exec, -1')
                a('s_branch %s' % join)
            deferred.append(idle_path1)
            a.label(join)
        a('s_waitcnt lgkmcnt(0)')
        a('s_barrier')
        if layer == 0 and OPT['probe'] == 3 and not (ORD6 and OPT.get('r0', 1)):
            gemv_publish_g(2, vW2, HB, 1, G_D, mid=race_prep, post=race_start)
        else:
            gemv_publish_g(2, vW2, HB, 2 * layer + 1, G_D, mid=clean_a if layer == 1 and CLEAN() & 2 and not OPT['cend'] & 2 else None)
        stamp(pre + ' D pub')

    a('; ---- final sum (group 0 only)')
    if OPT.get('opack'):
        a('v_mov_b32 %s, 0xffff' % v(T + 11))
        a('v_and_b32 %s, 0x7c, %s' % (v(T + 12), v(vXw)))
    if CLEAN() & 4:
        fin = newlabel('last')
        if OPT.get('cx0', 1):
            a('s_cmp_ge_u32 %s, 4' % s(sGam))
            a('s_cbranch_scc1 L_fin')
        clean_b_prep()
        a('s_cmp_eq_u32 %s, 0' % s(sGam))
        a('s_cbranch_scc1 %s' % fin)

        def clean_all():
            clean_b()
            if OPT['cend'] & 2:
                clean_a()
            if OPT['cend'] & 1:
                clean_x()
        a('s_waitcnt vmcnt(%d)' % 0)
        clean_all()
        a('s_branch L_fin')
        flush_deferred(False)
        a.label(fin)
        g_pace(3)
        x_gather(3, G_D, work=clean_all, cnt=1 + bin(OPT['cend'] & 3).count('1'))
    else:
        if W4:
            sk = newlabel('noep')
            a('s_lshl_b32 s55, s2, 2')
            a('s_add_u32 s55, s55, %s' % s(sW))
            a('s_cmp_lg_u32 s55, %d' % (255 * 4))
            a('s_cbranch_scc1 %s' % sk)
            a('s_add_u32 s55, %s, 16' % s(sE))
            a('v_mov_b32 %s, s55' % v(T + 2))
            a('s_mov_b64 exec, 1')
            a('global_store_dword %s, %s, s[26:27]' % (v(vZero), v(T + 2)))
            a('s_branch L_fin')
            a.label(sk)
        if OPT.get('wb1') and FAST[0]:
            sk = newlabel('nowb')
            a('s_lshl_b32 s55, s2, 2')
            a('s_add_u32 s55, s55, %s' % s(sW))
            a('s_cmp_lg_u32 s55, %d' % (64 * 4))
            a('s_cbranch_scc1 %s' % sk)
            if OPT['wb1'] == 2:
                a('s_waitcnt vmcnt(0)')
            a('buffer_wbl2 sc1')
            a.label(sk)
        a('s_cmp_lg_u32 %s, 0' % s(sGam))
        a('s_cbranch_scc1 L_fin')
        g_pace(3)
        x_gather(3, G_D)
    sc = ' sc1' if OPT['clean'] & 8 else ''
    if OPT.get('opack'):
        a('v_mov_b32 %s, %s' % (v(T + 1), v(T)))
        a('v_permlane16_swap_b32 %s, %s' % (v(T), v(T + 1)))
        a('v_bfi_b32 %s, %s, %s, %s' % (v(T), v(T + 11), v(T), v(T + 1)))
        if OPT['opack'] == 2:
            a('v_mov_b32 %s, %s' % (v(T + 1), v(T)))
            a('v_permlane32_swap_b32 %s, %s' % (v(T), v(T + 1)))
            a('s_mov_b64 exec, 15')
            a('global_store_dwordx2 %s, %s, s[22:23]%s' % (v(T + 12), v(T, 2), sc))
        else:
            a('s_mov_b32 exec_lo, 15')
            a('s_mov_b32 exec_hi, 15')
            a('global_store_dword %s, %s, s[22:23]%s' % (v(T + 12), v(T), sc))
    else:
        a('s_mov_b32 exec_lo, 0x000f000f')
        a('s_mov_b32 exec_hi, 0x000f000f')
        a('global_store_short %s, %s, s[22:23]%s' % (v(vXw), v(T), sc))


front()
FAST[0] = bool(OPT['fast'])
tail()
a.label('L_fin')
if OPT.get('dirty'):
    if 'dx' in OPT:
        a('s_and_b32 s55, s2, 7')
        a('s_cmp_eq_u32 s55, 0')
        a('s_cbranch_scc%d L_nodirty' % OPT['dx'])
    a('s_mov_b64 exec, -1')
    a('s_lshl_b32 s55, s2, 2')
    a('s_add_u32 s55, s55, %s' % s(sW))
    a('s_lshl_b32 s55, s55, 15')
    a('s_add_u32 s55, s55, 0x400000')
    a('v_lshl_add_u32 %s, %s, 4, s55' % (v(T + 1), v(vL)))
    for i in range(OPT['dirty']):
        a('global_store_dwordx4 %s, %s, s[26:27]' % (v(T + 1), v(vD, 4)))
        a('v_add_u32 %s, 1024, %s' % (v(T + 1), v(T + 1)))
if OPT.get('dirty'):
    a.label('L_nodirty')
if OPT.get('dbgpol'):
    a('s_mov_b64 exec, -1')
    a('v_xor_b32 %s, %s, %s' % (v(T + 2), v(vConsG), v(vConsG0)))
    a('v_readfirstlane_b32 s6, %s' % v(T + 2))
    a('s_cmp_lg_u32 s6, 0')
    a('s_cselect_b32 s6, 1, 0')
    a('s_lshr_b32 s7, %s, 2' % s(sXcc))
    a('s_xor_b32 s6, s6, s7')
    a('s_lshr_b32 s7, %s, 1' % s(sW))
    a('s_xor_b32 s6, s6, s7')
    a('s_lshl_b32 s6, s6, 4')
    a('s_lshl_b32 s6, 1, s6')
    a('v_mov_b32 %s, s6' % v(T + 2))
    a('s_and_b32 s7, %s, 7' % s(sXcc))
    a('s_lshl_b32 s7, s7, 2')
    a('v_mov_b32 %s, s7' % v(T + 3))
    a('s_mov_b64 exec, 1')
    a('global_atomic_add %s, %s, s[24:25]' % (v(T + 3), v(T + 2)))
if OPT.get('wb'):
    a('buffer_wbl2 sc1')
if OPT.get('delay'):
    if 'only' in OPT:
        a('s_cmp_lg_u32 s2, %d' % OPT['only'])
        a('s_cbranch_scc1 L_end')
    a.label('L_dly')
    a('s_memrealtime s[6:7]')
    a('s_waitcnt lgkmcnt(0)')
    a('s_sub_u32 s8, s6, s100')
    a('s_cmp_lt_u32 s8, %d' % OPT.get('until', 3000))
    a('s_cbranch_scc1 L_dly')
if DIAG:
    a('s_mov_b64 exec, -1')
    a('s_memrealtime s[4:5]')
    a('s_waitcnt lgkmcnt(0)')
    a('v_mov_b32 %s, 0' % v(T))
    for i in range(len(stamps)):
        a('v_writelane_b32 %s, %s, %d' % (v(T), s(stamp_regs[i]), i))
    a('v_writelane_b32 %s, s4, %d' % (v(T), len(stamps)))
    a('v_xor_b32 %s, %s, %s' % (v(T + 2), v(vConsG), v(vConsG0)))
    a('v_readfirstlane_b32 s6, %s' % v(T + 2))
    a('v_writelane_b32 %s, s6, 62' % v(T))
    a('v_writelane_b32 %s, s12, 61' % v(T))
    a('v_writelane_b32 %s, s13, 60' % v(T))
    a('v_writelane_b32 %s, %s, 63' % (v(T), s(sXcc)))
    a('s_lshl_b32 s55, s2, 2')
    a('s_add_u32 s55, s55, %s' % s(sW))
    a('s_lshl_b32 s55, s55, 8')
    a('s_add_u32 s55, s55, %d' % WS_DIAG)
    a('v_lshl_add_u32 %s, %s, 2, s55' % (v(T + 1), v(vL)))
    a('global_store_dword %s, %s, s[26:27]' % (v(T + 1), v(T)))
a.label('L_end')
a('s_endpgm')
flush_deferred(False)
a.label('L_fastend')
if OPT['fast']:
    a('; ==== the same phases with write-through stores: taken when the group is spread over several XCDs')
    a.label('L_slowtail')
    FAST[0] = False
    a.hist = []
    a('s_nop 1')
    tail()
    a('s_branch L_fin')
    flush_deferred(False)
    a('s_endpgm')
a.raw('''.section .rodata,"a"
.p2align 6
.amdhsa_kernel %s_kernel
  .amdhsa_next_free_vgpr %d
  .amdhsa_next_free_sgpr 102
  .amdhsa_accum_offset %d
  .amdhsa_group_segment_fixed_size 0
  .amdhsa_kernarg_size 96
  .amdhsa_user_sgpr_count 2
  .amdhsa_user_sgpr_kernarg_segment_ptr 1
  .amdhsa_system_sgpr_workgroup_id_x 1
  .amdhsa_float_denorm_mode_32 3
.end_amdhsa_kernel''' % (NAME, NVGPR, NVGPR))
sys.stdout.write(a.text())
if DIAG:
    sys.stderr.write('STAMPS ' + '|'.join(stamps + ['end']) + '\n')
sys.stderr.write('nops inserted: %d\n' % a.nops)
```

```python
import sys, math, struct
from asm import Asm

NAME = 'interleave_layers__sliding_block_cached__glu_gated_swiglu__decode'
OPT = dict(diag=0, fast=1, nt=1, kw=5, fe=0, wol=1, probe=3, vw=1, thr=90, pages=2, cnt=0, early=2, d0=0, refresh=0, spipe=1, late_rs=1, na=0, nsl=0, w2e=0, ff=7, vlate=1, fl=0, flp=0, pad=0, nva=8, ksplit=0, wopos=0, ool=0, stg=1, vq=0, clean=0, cend=1, opre=1)
for a_ in sys.argv[1:]:
    k_, v_ = a_.split('=')
    OPT[k_] = int(v_)
DIAG = OPT['diag']
NT = {0: '', 1: ' nt', 2: ' sc1 nt', 3: ' sc0 sc1 nt', 4: ' sc0 nt', 5: ' sc1', 6: ' sc0 sc1'}[OPT['nt']]
STAGE = not DIAG or DIAG == 6

XB, ONES, QB, OB, HB, MB, DUMMY, PB = 0, 128, 256, 512, 768, 896, 960, 1024
WQ, VI, WO = 4096, 20480, 53248
W1, W3, W2 = WO + 16384, WO + 24576, WO + 32768
W4 = OPT.get('w4', 0)
KI = WO + 38912 + 2048 * W4
LDS_BYTES = KI + 32768
WS_F = 0x10000
WS_L, WS_P, WS_G, WS_DIAG = 0x40000, 0xc0000, 0x100000, 0x200000
WS_L2D = 0x140000 + 0x100000 * OPT['pad']
BUF_A, BUF_X, BUF_B, STATS, VOTES = 0, 1024, 2048, 3072, 7168
ST0 = 8192
LZ, PB_, FL2 = OPT.get('lz', 1), OPT.get('pb', 2), OPT.get('fl2', 0)
PAD = OPT['pad']
GOFF = 4096 * PAD
G_C, G_D, G_H = -GOFF, (2048 << PAD) - GOFF, 1024 << PAD
G_X = (0x20000 << PAD) | 0x2000
WSH = 1 - PAD

vL, vCons, vPubL, vPw, vPubG, vStP, vStC, vTagM, vStP2 = range(1, 10)
vXw, vQw, vHw, vOpR, vXopR, vConsG, vConsG0, vCs, vZero, vMw = range(10, 20)
trq, vTr, vHmask, vX, vCq, vCg, vMean, vRs = 20, 22, 23, 24, 25, 26, 27, 28
vMr, vF = 29, 30
vWQ, vK, vV, vWO, vW13, vW2 = 32, 48, 80, 112, 128, 144
wo0, wo1, f0, f1, vPre, vVo = 144, 145, 146, 147, 148, 149
T = 152
vC = T + 12
vA = 176
vD = 192
vP = 224
vSt, vSt4, vKeep = 232, 236, 238
vCl = 20
vDs, vSs = [240, 244], [248, 252]
NVGPR = 256
sW, sJ, sGam, sPr, sE, sC0, sCnt, sXcc, sTo = 28, 29, 30, 31, 32, 33, 34, 35, 36
sLb, sGb0, sGb1 = 38, 40, 14
sPc, sT1 = 42, 44
sCs, sMaskHi, sInv512, sEps, sNl2e = 50, 51, 52, 53, 54
sM0, sM1, sHi, sCl = 56, 42, 46, 44
sTag = 60

a = Asm()
stamp_regs = list(range(70, 102, 2))
stamps = []
nstamp = [0]
lbl = [0]
FAST = [False]


def v(n, cnt=1):
    return 'v%d' % n if cnt == 1 else 'v[%d:%d]' % (n, n + cnt - 1)


def s(n, cnt=1):
    return 's%d' % n if cnt == 1 else 's[%d:%d]' % (n, n + cnt - 1)


def stamp(name):
    nstamp[0] += 1
    if OPT.get('delay') == 3 and OPT.get('at', 1) == nstamp[0]:
        a('s_memrealtime s[100:101]')
        sys.stderr.write('delay anchored at ' + name + '\n')
    keep = {0: False, 1: name[:2] not in ('L1', 'x ') and name[0] not in 'Gz', 2: name[:2] == 'L1', 5: name[0] == 'G' or name[3:] in ('O pub', 'D pub', 'E3 ok', 'E5 ok') or name in ('L0 E1 ok', 'L0 S pub', 'L0 E2 ok'),
            6: False, 7: name[:2] in ('L1', 'x '), 8: name[:2] == 'z1' or name in ('L1 E1 ok', 'L1 S pub', 'L1 E2 ok', 'L1 O pub', 'L1 E5 ok', 'L1 Q pub')}[DIAG]
    if not (keep or DIAG and name == 'start'):
        return
    if name not in stamps:
        if len(stamps) >= len(stamp_regs):
            return
        stamps.append(name)
    r = stamp_regs[stamps.index(name)]
    if OPT['cnt'] and name != 'start':
        a('s_sub_u32 %s, 0x40000, %s' % (s(r), s(sTo)))
    else:
        a('%s %s' % ('s_memtime' if DIAG in (7, 8) and name != 'x rt0' else 's_memrealtime', s(r, 2)))


def f32(x):
    return '0x%08x' % struct.unpack('<I', struct.pack('<f', x))[0]


def newlabel(p):
    lbl[0] += 1
    return 'L_%s_%d' % (p, lbl[0])


def lgkm(n):
    a('s_waitcnt lgkmcnt(%d)' % (n if STAGE else 0))


def mfma(d, x, y, c=None):
    a('v_mfma_f32_16x16x32_bf16 %s, %s, %s, %s' % (v(d, 4), v(x, 4), v(y, 4), '0' if c is None else v(c, 4)))


def dpp(op, d, x, y, ctl, rm=0xf):
    a('%s_dpp %s, %s, %s %s row_mask:0x%x bank_mask:0xf' % (op, v(d), v(x), v(y), ctl, rm))


X1, X2 = 'quad_perm:[1,0,3,2]', 'quad_perm:[2,3,0,1]'


def lstore(op, addr, data, off):
    a('%s %s, %s, %s offset:%d%s' % (op, addr, data, s(sLb, 2), off, '' if FAST[0] and not OPT.get('allsc') else ' sc1'))


def gload(d, vo, b, im):
    a('global_load_dwordx4 %s, %s, %s offset:%d sc1' % (v(d, 4), v(vo), s(b, 2), im))


def tick():
    a('s_sub_u32 %s, %s, 1' % (s(sTo), s(sTo)))
    a('s_cbranch_scc1 L_end')


deferred = []


def flush_deferred(jump=True):
    if not deferred:
        return
    l = newlabel('skip')
    if jump:
        a('s_branch %s' % l)
    hist = a.hist
    while deferred:
        a.hist = []
        deferred.pop(0)()
    a.hist = hist
    a.label(l)


def poll(loads, check, spec, work=None, cnt=0, issued=False, backoff=0, onretry=None):
    top, ent = newlabel('poll'), newlabel('pent')
    if not issued:
        for x in loads:
            gload(*x)
    if work:
        work()

    def retry():
        a.label(top)
        tick()
        if backoff:
            a('s_sleep %d' % backoff)
        if onretry:
            onretry()
        for x in loads:
            gload(*x)
        if cnt:
            a('s_waitcnt vmcnt(0)')
        if OPT['ool']:
            a('s_branch %s' % ent)
    if OPT['ool']:
        deferred.append(retry)
    else:
        a('s_branch %s' % ent)
        retry()
    a.label(ent)
    a('s_waitcnt vmcnt(%d)' % cnt)
    check()
    if spec:
        spec()
    a('s_cbranch_vccnz %s' % top)


def ring2(sets, issue, check, spec, cnt1, cnt0, first):
    top, ent, done = newlabel('ring'), newlabel('rent'), newlabel('rdone')

    def retry():
        a.label(top)
        tick()
        issue(sets[0])
        a('s_waitcnt vmcnt(%d)' % cnt1)
        check(sets[1])
        spec(sets[1])
        a('s_cbranch_vccz %s' % done)
        issue(sets[1])
        if first != cnt0:
            a('s_waitcnt vmcnt(%d)' % cnt0)
        if OPT['ool']:
            a('s_branch %s' % ent)
    if OPT['ool']:
        deferred.append(retry)
    else:
        a('s_branch %s' % ent)
        retry()
    a.label(ent)
    a('s_waitcnt vmcnt(%d)' % first)
    check(sets[0])
    spec(sets[0])
    a('s_cbranch_vccnz %s' % top)
    a.label(done)


def chk_byte(regs, tag):
    if len(regs) == 1:
        a('v_cmp_ne_u32_sdwa vcc, %s, %s src0_sel:BYTE_0 src1_sel:BYTE_0' % (v(regs[0]), s(tag)))
    else:
        a('v_bitop3_b32 %s, %s, %s, %s bitop3:0x7e' % (v(T + 23), v(regs[0]), v(regs[1]), s(tag)))
        a('v_cmp_ne_u32_sdwa vcc, %s, %s src0_sel:BYTE_0 src1_sel:DWORD' % (v(T + 23), v(vZero)))


def chk_stats(x, k):
    a('v_cmp_ne_u32 vcc, %s, %s' % (s(sTag + k), v(x + (2 if k % 3 == 1 else 1))))


def red_a(x, c):
    a('v_permlane32_swap_b32 %s, %s' % (v(x + 1), v(x + 3)))
    a('v_add_f32 %s, %s, %s' % (v(c + 1), v(x + 1), v(x + 3)))
    a('v_permlane32_swap_b32 %s, %s' % (v(x), v(x + 2)))
    a('v_add_f32 %s, %s, %s' % (v(c), v(x), v(x + 2)))


def red_b(c, out):
    a('v_permlane16_swap_b32 %s, %s' % (v(c), v(c + 1)))
    a('v_add_f32 %s, %s, %s' % (v(c), v(c), v(c + 1)))
    dpp('v_add_f32', out, c, c, 'row_ror:8')


def mask_tag(x):
    a('v_and_b32 %s, %s, %s' % (v(x), s(sMaskHi), v(x)))


def bf16r(dst, src):
    a('v_cvt_pk_bf16_f32 %s, %s, %s' % (v(dst), v(src), v(src)))
    a('v_and_b32 %s, 0xffff0000, %s' % (v(dst), v(dst)))


def allred(op, x, t, bits):
    for b in bits:
        if b < 4:
            dpp(op, x, x, x, {0: X1, 1: X2, 3: 'row_ror:8'}[b])
        else:
            a('v_mov_b32 %s, %s' % (v(t), v(x)))
            a('v_permlane%d_swap_b32 %s, %s' % (16 if b == 4 else 32, v(x), v(t)))
            a('%s %s, %s, %s' % (op, v(x), v(x), v(t)))


def set_tags(k):
    a('v_mov_b32 %s, %s' % (v(vSt + 2), s(sTag + k)))
    if k % 3 != 1:
        a('v_cndmask_b32 %s, %s, %s, %s' % (v(vSt4 + 1), v(vSt + 2), v(vSt + 3), s(sHi, 2)))


def ln_stats(k, addr=None):
    g = vSt4
    a('v_mul_f32 %s, %s, %s' % (v(T + 7), v(vX), v(vX)))
    a('v_permlane32_swap_b32 %s, %s' % (v(g), v(T + 7)))
    a('v_add_f32 %s, %s, %s' % (v(g), v(g), v(T + 7)))
    allred('v_add_f32', g, None, [0, 1])
    dpp('v_add_f32', g, g, g, 'row_bcast:15', 0xa)
    a('s_mov_b64 exec, %s' % s(sM1, 2))
    lstore('global_store_dwordx2', v(addr or vStP2), v(g, 2), 512 * (k & 1))
    a('s_mov_b64 exec, -1')


def ln_spec(x):
    a('v_permlane32_swap_b32 %s, %s' % (v(x), v(x + 2)))
    a('v_add_f32 %s, %s, %s' % (v(vC), v(x), v(x + 2)))


def ln_mean():
    c = vC
    allred('v_add_f32', c, c + 1, [4, 3, 0, 1])
    a('v_mul_f32 %s, %s, %s' % (v(c), s(sInv512), v(c)))
    a('v_mov_b32 %s, %s' % (v(c + 1), v(c)))
    a('v_permlane32_swap_b32 %s, %s' % (v(c), v(c + 1)))
    bf16r(vMean, c)


def ln_rstd_a():
    c = vC
    a('v_fma_f32 %s, -%s, %s, %s' % (v(c + 1), v(c), v(c), v(c + 1)))
    a('v_max_f32 %s, 0, %s' % (v(c + 1), v(c + 1)))
    bf16r(c + 1, c + 1)
    a('v_add_f32 %s, %s, %s' % (v(c + 1), s(sEps), v(c + 1)))
    bf16r(c + 1, c + 1)
    a('v_sqrt_f32 %s, %s' % (v(c + 1), v(c + 1)))


def ln_rstd_b(scale):
    c = vC
    bf16r(c + 1, c + 1)
    a('v_rcp_f32 %s, %s' % (v(vRs), v(c + 1)))
    if scale:
        a('v_mul_f32 %s, %s, %s' % (v(vCs), s(sCs), v(vRs)))


def stats_load(k, x=vSs[0]):
    gload(x, vStC, sLb, 512 * (k & 1))


def l_gather(k, spec, st_spec, chain, hook=None):
    buf = BUF_A if k % 2 == 0 else BUF_B

    def d_issue(x):
        gload(x, vCons, sLb, buf)
    rf = OPT['refresh'] and OPT['d0']

    def s_issue(x):
        stats_load(k, x)
        if rf:
            d_issue(vDs[0])
    if OPT['d0']:
        d_issue(vDs[0])
    if OPT['spipe']:
        stats_load(k, vSs[1])
        flush_deferred()
        ring2(vSs, s_issue, lambda x: chk_stats(x, k), st_spec, 2 if rf else 1, 3 if rf else 1, 2 + OPT['d0'])
    else:
        flush_deferred()
        poll([(vSs[0], vStC, sLb, 512 * (k & 1))], lambda: chk_stats(vSs[0], k), lambda: st_spec(vSs[0]), cnt=1 + OPT['d0'], issued=True)
    if k >= 3:
        stamp('x st%d' % k)
    if not OPT['d0']:
        d_issue(vDs[0])
        chain[0]()
        d_issue(vDs[1])
    else:
        d_issue(vDs[1])
        chain[0]()
    if hook:
        hook()
    for c in chain[1:]:
        c()
    ring2(vDs, d_issue, lambda x: chk_byte([x], sTag + k), spec, 1, 1, 1)


def x_gather(gi, imm, work=None, cnt=0):
    r = vP
    base = sGb0 if gi < 2 else sGb1

    def spec():
        a('v_pk_add_f32 %s, %s, %s' % (v(r + 2, 2), v(r + 2, 2), v(r + 6, 2)))
        a('v_add_f32 %s, %s, %s' % (v(r + 1), v(r + 1), v(r + 5)))
        mask_tag(r)
        mask_tag(r + 4)
        a('v_add_f32 %s, %s, %s' % (v(r), v(r), v(r + 4)))
        red_a(r, r)
    ad, onretry = vConsG, None
    if OPT.get('alt', 0) >> gi & 1:
        ad = T + 21
        a('v_mov_b32 %s, %s' % (v(ad), v(vConsG)))

        def onretry():
            a('v_xor_b32 %s, 0x%x, %s' % (v(ad), G_X, v(ad)))
    poll([(r, ad, base, imm), (r + 4, ad, base, imm + G_H)], lambda: chk_byte([r, r + 4], sTag + 6 + gi), spec, work=work, cnt=cnt,
         backoff=OPT.get('g%ds' % gi, 0), onretry=onretry)
    red_b(r, r)
    dpp('v_add_f32', r, r, r, 'row_ror:4')
    bf16r(r, r)
    a('v_add_f32 %s, %s, %s' % (v(r), v(r), v(vX)))
    a('v_cvt_pk_bf16_f32 %s, %s, %s' % (v(T), v(r), v(r)))


def x_to_lds(k):
    a('ds_write_b16 %s, %s offset:%d' % (v(vXw), v(T), XB))
    a('v_and_b32 %s, 0xffff0000, %s' % (v(vX), v(T)))
    a('v_and_b32 %s, 0xffff0000, %s' % (v(vSt4), v(T)))
    ln_stats(k)


def tr_pair(dst, addr, off, gstride):
    for g in range(2):
        a('ds_read_b64_tr_b16 %s, %s offset:%d' % (v(dst + 2 * g, 2), v(addr), off + g * gstride))


def proj(wreg, k, layer, wsrc=None, first=False, skip=None):
    rd = vXopR if layer == 0 else vOpR
    a('s_barrier')
    for kk in range(2):
        a('ds_read_b128 %s, %s offset:%d' % (v(vA + 4 * kk, 4), v(rd), XB + 64 * kk))
        if wsrc:
            for cg in range(2):
                ad, off, ks, gs = wsrc[cg]
                tr_pair(wreg + 8 * cg + 4 * kk, ad, off + kk * ks, gs)
    if skip:
        a('s_cbranch_scc1 %s' % skip)
    if not first and OPT['early'] == 1:
        stats_load(k)
    lgkm(7 if wsrc else 1)
    mfma(vD, vA, wreg)
    if wsrc:
        lgkm(5)
    mfma(vD + 4, vA, wreg + 8)
    if not first and OPT['early'] == 2:
        stats_load(k)
    lgkm(2 if wsrc else 0)
    mfma(vD, vA + 4, wreg + 4, vD)
    if wsrc:
        lgkm(0)
    mfma(vD + 4, vA + 4, wreg + 12, vD + 4)
    if not first and OPT['early'] == 0:
        stats_load(k)
    if layer == 1:
        a('s_mov_b32 exec_hi, 0')
    a('v_cndmask_b32 %s, %s, %s, %s' % (v(T), v(vD), v(vD + 4), s(sM0, 2)))
    a('v_bfi_b32 %s, %s, %s, %s' % (v(T), v(vTagM), s(sTag + k), v(T)))
    lstore('global_store_dword', v(vPubL), v(T), BUF_A if k % 2 == 0 else BUF_B)
    if layer == 1:
        a('s_mov_b32 exec_hi, -1')


def tr_reads(dst, addr, base, nk, kstride, gstride):
    for kk in range(nk):
        for g in range(2):
            a('ds_read_b64_tr_b16 %s, %s offset:%d' % (v(dst + 4 * kk + 2 * g, 2), v(addr), base + kk * kstride + g * gstride))


def gemv_publish_g(nk, wreg, src, gi, imm, tr=False, mid=None, post=None):
    for kk in range(nk):
        a('ds_read_b128 %s, %s offset:%d' % (v(vA + 4 * kk, 4), v(vOpR), src + 64 * kk))
        if tr:
            tr_pair(wreg + 4 * kk, vTr, 4096 * kk, 512)
    if mid:
        mid()
    for kk in range(nk):
        lgkm((nk - 1 - kk) * (3 if tr else 1))
        mfma(vD, vA + 4 * kk, wreg + 4 * kk, vD if kk else None)
    if post:
        post()
    if not PAD:
        a('s_mov_b32 exec_hi, 0')
    a('v_bfi_b32 %s, %s, %s, %s' % (v(T), v(vTagM), s(sTag + 6 + gi), v(vD)))
    st = 'global_store_dword %s, %s, %s offset:%d sc1' % (v(vPubG), v(T), s(sGb0 if gi < 2 else sGb1, 2), imm)
    if OPT['na'] >> gi & 1:
        a('s_mov_b32 exec_lo, s37')
        a(st)
        a('s_not_b32 exec_lo, s37')
        a(st)
        a('s_mov_b64 exec, -1')
    else:
        a(st)
        if not PAD:
            a('s_mov_b32 exec_hi, -1')


def g_pace(gi):
    flush_deferred()
    if OPT['na'] >> gi & 1:
        a('s_waitcnt vmcnt(1)')
        for i in range(OPT['nsl']):
            a('s_nop 7')
    else:
        a('s_waitcnt vmcnt(0)')
    if OPT.get('g%dd' % gi):
        a('s_sleep %d' % OPT['g%dd' % gi])
    stamp('G%d ack' % gi)


def probe_near():
    a('s_not_b32 s4, %s' % s(sE))
    a('s_xor_b32 s55, %s, 8192' % s(sPr))
    a('s_waitcnt lgkmcnt(0)')
    a('s_load_dword s4, s[26:27], %s' % s(sPr))
    a('s_load_dword s5, s[26:27], s55')
    a('s_lshl_b32 s59, %s, 2' % s(sJ))
    a('s_add_u32 s59, s59, %s' % s(sW))
    a('s_lshl_b32 s59, s59, 3')
    a('s_add_u32 s59, s59, %d' % VOTES)
    a('v_mov_b32 %s, s59' % v(T + 1))
    a('v_mov_b32 %s, %s' % (v(T + 3), s(sTag + 2)))
    a('s_waitcnt lgkmcnt(1)')
    a('s_memtime s[8:9]')
    a('s_cmp_eq_u32 s4, %s' % s(sE))
    a('s_cselect_b32 s6, %d, -1' % OPT['thr'])
    a('s_waitcnt lgkmcnt(0)')
    a('s_memtime s[10:11]')
    a('s_waitcnt lgkmcnt(0)')
    a('s_sub_u32 s7, s10, s8')
    a('s_cmp_gt_u32 s7, s6')
    a('s_cselect_b32 s6, 1, 0')
    if DIAG:
        a('s_mov_b32 s12, s7')
    a('v_mov_b32 %s, s6' % v(T + 2))
    a('s_mov_b64 exec, 1')
    lstore('global_store_dwordx2', v(T + 1), v(T + 2, 2), 0)
    a('s_mov_b64 exec, -1')


def race_prep():
    a('s_not_b32 s4, %s' % s(sTag + 6 if PB_ else sE))
    a('s_xor_b32 s5, %s, 8192' % s(sPr))
    a('v_mov_b32 %s, %s' % (v(T + 4), s(sPr)))


def race_start():
    a('global_load_dword %s, %s, s[26:27] sc1' % (v(T + 5), v(T + 4)))
    a('s_load_dword s4, s[26:27], s5')


def race_finish(behind):
    a('s_lshl_b32 s59, %s, 2' % s(sJ))
    a('s_add_u32 s59, s59, %s' % s(sW))
    a('s_lshl_b32 s59, s59, 3')
    a('s_add_u32 s59, s59, %d' % VOTES)
    a('v_mov_b32 %s, s59' % v(T + 1))
    a('v_mov_b32 %s, %s' % (v(T + 3), s(sTag + 2)))
    a('s_waitcnt vmcnt(%d)' % behind)
    a('s_cmp_eq_u32 s4, %s' % s(sE))
    a('s_cselect_b32 s6, 1, 0')
    if DIAG:
        a('s_mov_b32 s12, s6')
    a('v_mov_b32 %s, s6' % v(T + 2))
    a('s_mov_b64 exec, 1')
    lstore('global_store_dwordx2', v(T + 1), v(T + 2, 2), 0)
    a('s_mov_b64 exec, -1')
    a('s_waitcnt lgkmcnt(0)')


def race_pick():
    a('s_lshr_b32 s55, %s, 1' % s(sW))
    a('s_xor_b32 s59, s55, 1')
    a('s_mul_i32 s55, s55, 0x%x' % G_X)
    a('s_mul_i32 s59, s59, 0x%x' % G_X)
    if PB_:
        a('s_not_b32 s6, %s' % s(sTag + 6))
    a('s_waitcnt vmcnt(1)')
    a('s_cmp_lg_u32 s4, s6' if PB_ else 's_cmp_eq_u32 s4, %s' % s(sE))
    a('s_cselect_b32 s55, s59, s55')
    a('v_xor_b32 %s, s55, %s' % (v(vConsG), v(vConsG0)))
    if OPT['na']:
        a('s_cmp_eq_u32 s55, 0')
        a('s_cselect_b32 s37, 0xffff, %s' % s(sM0))


def count_votes():
    a('v_and_b32 %s, 31, %s' % (v(T + 4), v(vL)))
    a('v_lshlrev_b32 %s, 3, %s' % (v(T + 4), v(T + 4)))
    a('v_add_u32 %s, %d, %s' % (v(T + 4), VOTES, v(T + 4)))
    if OPT['vw'] and not OPT['vlate']:
        a('s_waitcnt vmcnt(0)')
    a('global_load_dwordx2 %s, %s, %s sc1' % (v(T + 2, 2), v(T + 4), s(sLb, 2)))
    a('s_lshr_b32 s55, %s, 1' % s(sW) if WSH else 's_and_b32 s55, %s, 1' % s(sW))
    a('s_xor_b32 s59, s55, 1')
    a('s_waitcnt vmcnt(0)')
    if OPT['probe'] == 2:
        a('v_cmp_eq_u32 vcc, %s, %s' % (s(sTag + 2), v(T + 3)))
        a('v_cmp_eq_u32 s[6:7], 0, %s' % v(T + 2))
        a('s_and_b32 s4, vcc_lo, s6')
        a('s_andn2_b32 s5, vcc_lo, s6')
    else:
        a('v_xor_b32 %s, %s, %s' % (v(T + 3), s(sTag + 2), v(T + 3)))
        a('v_xor_b32 %s, 1, %s' % (v(T + 2), v(T + 2)))
        a('v_or_b32 %s, %s, %s' % (v(T + 2), v(T + 2), v(T + 3)))
        a('v_cmp_eq_u32 vcc, 0, %s' % v(T + 2))
        a('s_and_b32 s4, vcc_lo, 0x%x' % (0x33333333 if WSH else 0x55555555))
        a('s_and_b32 s5, vcc_lo, 0x%x' % (0xcccccccc if WSH else 0xaaaaaaaa))
    a('s_bcnt1_i32_b32 s4, s4')
    a('s_bcnt1_i32_b32 s5, s5')
    if DIAG:
        a('s_lshl_b32 s13, s4, 8')
        a('s_add_u32 s13, s13, s5')
    a('s_cmp_ge_u32 s4, s5')
    a('s_cselect_b32 s55, s55, s59')
    if OPT['na']:
        a('s_cmp_eq_u32 s55, 0')
        a('s_cselect_b32 s37, 0xffff, %s' % s(sM0))
    a('s_mul_i32 s55, s55, 0x%x' % G_X)
    a('v_xor_b32 %s, s55, %s' % (v(vConsG), v(vConsG0)))


def flag_store(val):
    sk = newlabel('nofl')
    a('s_or_b32 s55, %s, %s' % (s(sJ), s(sW)))
    a('s_cbranch_scc1 %s' % sk)
    a('s_lshl_b32 s55, %s, 7' % s(sGam))
    a('s_add_u32 s55, s55, %d' % WS_F)
    a('v_lshl_add_u32 %s, %s, 2, s55' % (v(T + 21), v(vL)))
    a('v_mov_b32 %s, %s' % (v(T + 20), s(val)))
    a('s_mov_b32 exec_hi, 0')
    a('global_store_dword %s, %s, s[26:27] sc1' % (v(T + 21), v(T + 20)))
    a('s_mov_b32 exec_hi, -1')
    a.label(sk)


def flag_load():
    a('s_mov_b32 exec_hi, 0')
    a('global_load_dword %s, %s, s[26:27] sc1' % (v(T + 6), v(T + 5)))
    a('s_mov_b32 exec_hi, -1')


def flag_wait(cnt):
    top, ent = newlabel('fl'), newlabel('fle')
    a('s_branch %s' % ent)
    a.label(top)
    tick()
    flag_load()
    a('s_waitcnt vmcnt(0)')
    a.label(ent)
    a('s_waitcnt vmcnt(%d)' % cnt)
    a('v_cmp_ne_u32 vcc, %s, %s' % (s(sTag + 6), v(T + 6)))
    a('s_cmp_lg_u32 vcc_lo, 0')
    a('s_cbranch_scc1 %s' % top)


def clean_prep():
    a('v_and_b32 %s, 31, %s' % (v(T + 9), v(vL)))
    a('s_and_b32 s59, %s, 3' % s(sJ))
    a('s_lshl_b32 s59, s59, 7')
    a('s_add_u32 s59, s59, %d' % STATS)
    a('v_lshl_add_u32 %s, %s, 2, s59' % (v(T + 9), v(T + 9)))
    a('v_cndmask_b32 %s, %s, %s, %s' % (v(vCl), v(vPubL), v(T + 9), s(sHi, 2)))
    a('s_add_u32 s55, s59, %d' % (VOTES - STATS))
    a('s_add_u32 s59, s59, %d' % ST0)
    a('s_cmp_lt_u32 %s, 4' % s(sJ))
    a('s_cselect_b32 s59, s59, s55')
    a('v_and_b32 %s, 31, %s' % (v(T + 9), v(vL)))
    a('v_lshl_add_u32 %s, %s, 2, s59' % (v(T + 9), v(T + 9)))
    a('v_add_u32 %s, %d, %s' % (v(T + 10), BUF_X, v(vPubL)))
    a('v_cndmask_b32 %s, %s, %s, %s' % (v(vCl + 1), v(T + 10), v(T + 9), s(sHi, 2)))
    a('v_mov_b32 %s, %s' % (v(vCl + 2), s(sTag + 3)))
    a('s_cmp_lt_u32 %s, %d' % (s(sJ), 6 if OPT['probe'] in (1, 2) else 4))
    a('s_cselect_b32 %s, -1, 0' % s(sCl + 1))
    a('s_cmp_lt_u32 %s, 4' % s(sJ))
    a('s_cselect_b32 %s, -1, 0' % s(sCl))
    a('s_cmp_eq_u32 %s, 0' % s(sW))
    a('s_cselect_b32 %s, %s, 0' % (s(sCl), s(sCl)))
    a('s_cselect_b32 %s, %s, 0' % (s(sCl + 1), s(sCl + 1)))


def clean_x():
    a('s_mov_b32 exec_hi, %s' % s(sCl + 1))
    a('global_store_dword %s, %s, %s sc1' % (v(vCl + 1), v(vCl + 2), s(sLb, 2)))
    a('s_mov_b32 exec_hi, -1')


def clean_a():
    a('s_mov_b32 exec_hi, %s' % s(sCl))
    a('global_store_dword %s, %s, %s sc1' % (v(vCl), v(vCl + 2), s(sLb, 2)))
    a('s_mov_b32 exec_hi, -1')


def clean_b_prep():
    a('v_add_u32 %s, %d, %s' % (v(T + 9), 512, v(vCl)))
    a('v_add_u32 %s, %d, %s' % (v(T + 8), BUF_B, v(vCl)))
    a('v_cndmask_b32 %s, %s, %s, %s' % (v(T + 8), v(T + 8), v(T + 9), s(sHi, 2)))
    a('s_mov_b32 exec_lo, 0')
    a('s_mov_b32 exec_hi, %s' % s(sCl))
    sk = newlabel('nold')
    a('s_cbranch_execz %s' % sk)
    a('global_load_dword %s, %s, %s sc1' % (v(vKeep), v(T + 8), s(sLb, 2)))
    a.label(sk)
    a('s_mov_b64 exec, -1')


def clean_b():
    a('s_mov_b32 exec_hi, %s' % s(sCl))
    a('global_store_dword %s, %s, %s sc1' % (v(T + 8), v(vKeep), s(sLb, 2)))
    a('s_mov_b32 exec_hi, -1')


npage = [0]


def only_if(late, fn):
    sk = newlabel('xs')
    a('s_cmp_ge_u32 %s, 4' % s(sXcc))
    a('s_cbranch_scc%d %s' % (0 if late else 1, sk))
    fn()
    a.label(sk)


def late_pre():
    a('v_mov_b32 %s, %s' % (v(T + 16), s(sE)))
    a('v_mov_b32 %s, %s' % (v(T + 17), s(sE)))
    a('s_mov_b32 exec_lo, 0x%x' % (0xffffffff if OPT.get('gpre') == 6 else 0 if OPT.get('gpre') == 4 else 0xffff0000 if FL2 else 0xff00ff00))
    a('global_store_dwordx2 %s, %s, %s sc1' % (v(vPre), v(T + 16, 2), s(sGb0, 2)))
    a('s_mov_b32 exec_lo, -1')


def page_break(force=False):
    if OPT['pages'] and (FAST[0] or force):
        l = newlabel('page')
        a('s_branch %s' % l)
        flush_deferred(False)
        a.raw('.p2align 12')
        if OPT.get('tramp') and not force:
            npage[0] += 1
            a.label('L_stub_%d' % npage[0])
            a.raw('    s_branch %s' % ('L_stub_2' if npage[0] == 1 and OPT['pages'] == 2 else 'L_stub_back'))
        a.label(l)
        if OPT.get('tramp') and force:
            a('s_branch L_stub_1')
            a.label('L_stub_back')


a.raw('''; kernarg: x, K, V, wq, wo, (B_x unused), w1, w3, w2, out, debug, ws  (8 bytes each)
;
; One persistent launch, 256 workgroups = 32 groups (attention head / 32-48 ffn columns) x 8 members (128 keys / 64 rows of x).
; Weights and the K/V window are read once (LDS-DMA, then transposing LDS reads) and stay in registers for both layers.
; Per layer: q partials -> [group] -> scores, softmax, PV -> [group] -> wo partials -> [32 groups] -> gate/up partials
;            -> [group] -> w2 partials -> [32 groups].   LayerNorm is applied after the projection:
;            rstd * (x.W - mean * colsum(W)), the statistics travel with the group hand-offs.
; Hand-offs go through d_ws in 64-byte sectors whose 16-byte granules carry a tag byte (tag = epoch word found in d_ws + constant + index
; of the hand-off; the epoch is advanced once per launch). Loads of handed-off data always bypass L1. Group hand-offs use plain
; stores only after the members have compared their XCC ids; otherwise the copy of the code at L_slowtail writes through.
; The all-to-all hand-offs are written twice, once into each half of memory; a wave reads the copy that is near to it.
; @launch grid=(256,1,1) block=(256,1,1) lds=%d
.amdgcn_target "amdgcn-amd-amdhsa--gfx950"
.text
.p2align 12
.globl %s_kernel
.p2align 8
.type %s_kernel,@function
%s_kernel:''' % (LDS_BYTES, NAME, NAME, NAME))
a('s_cmp_ge_u32 s2, 256')
a('s_cbranch_scc1 L_end')
a('s_load_dwordx16 s[4:19], s[0:1], 0')
a('s_load_dwordx8 s[20:27], s[0:1], 64')
stamp('start')
stamp('x rt0')
a('s_getpc_b64 %s' % s(sPc, 2))
a.label('L_pc')
a('v_lshlrev_b32 %s, 6, v0' % v(T))
a('v_min_u32 %s, L_fastend-L_pc-64, %s' % (v(T), v(T)))
if OPT.get('cpf', 32):
    a('s_cmp_lt_u32 s2, %d' % OPT.get('cpf', 32))
    a('s_cselect_b64 exec, -1, 1')
a('global_load_dword %s, %s, %s' % (v(T + 22), v(T), s(sPc, 2)))
if OPT.get('cpf', 32):
    a('s_mov_b64 exec, -1')
a('v_lshrrev_b32 %s, 6, v0' % v(T))
a('v_and_b32 %s, 63, v0' % v(vL))
a('v_readfirstlane_b32 %s, %s' % (s(sW), v(T)))
a('s_lshr_b32 s3, s2, 3')
a('s_and_b32 %s, s3, 7' % s(sJ))
a('s_lshr_b32 s3, s3, 3')
a('s_and_b32 s31, s2, 7')
a('s_lshl_b32 %s, s31, 2' % s(sGam))
a('s_add_u32 %s, %s, s3' % (s(sGam), s(sGam)))
u16, pos16, u8, pos8, l3, col16 = T + 1, T + 2, T + 3, T + 4, T + 5, T + 6
t0, t1, t2, t3 = T + 8, T + 9, T + 10, T + 11
k0 = T + 12


def pro_wq():
    a('v_lshrrev_b32 %s, 4, %s' % (v(u16), v(vL)))
    a('v_and_b32 %s, 15, %s' % (v(pos16), v(vL)))
    a('v_lshlrev_b32 %s, 1, %s' % (v(t2), v(u16)))
    a('v_xor_b32 %s, %s, %s' % (v(t2), v(t2), v(pos16)))
    a('v_lshlrev_b32 %s, 4, %s' % (v(t2), v(t2)))
    a('v_lshl_add_u32 %s, %s, 13, %s' % (v(t0), v(u16), v(t2)))
    a('v_xor_b32 %s, 0x80, %s' % (v(t1), v(t0)))
    a('v_add_u32 %s, %d, %s' % (v(t1), 2 * 31744, v(t1)))
    a('s_lshl_b32 s49, %s, 12' % s(sW))
    a('s_lshl_b32 s55, %s, 19' % s(sJ))
    a('s_lshl_b32 s56, %s, 17' % s(sW))
    a('s_add_u32 s55, s55, s56')
    a('s_lshl_b32 s56, %s, 8' % s(sGam))
    a('s_add_u32 s55, s55, s56')
    a('s_add_u32 m0, s49, %d' % WQ)


def pro_rest():
    a('v_and_b32 %s, 3, %s' % (v(l3), v(vL)))
    a('v_lshl_add_u32 %s, %s, 2, %s' % (v(col16), v(l3), v(u16)))
    a('s_lshl_b32 s48, %s, 5' % s(sW))
    a('v_lshl_add_u32 %s, %s, 1, s48' % (v(vXw), v(col16)))
    a('v_lshl_add_u32 %s, %s, 8, %s' % (v(vVo), v(u16), v(t2)))
    a('v_xor_b32 %s, 0x80, %s' % (v(vVo + 1), v(vVo)))
    a('v_xor_b32 %s, %s, %s' % (v(k0), v(u16), v(pos16)))
    a('v_lshlrev_b32 %s, 4, %s' % (v(k0), v(k0)))
    a('v_lshl_add_u32 %s, %s, 8, %s' % (v(k0), v(u16), v(k0)))
    for i in range(1, 4):
        a('v_xor_b32 %s, %d, %s' % (v(k0 + i), i << 6, v(k0)))
    a('s_lshl_b32 s48, %s, 7' % s(sJ))
    a('s_lshl_b32 s56, %s, 20' % s(sGam))
    a('s_lshl_b32 s58, %s, 15' % s(sJ))
    a('s_add_u32 s56, s56, s58')
    a('s_lshl_b32 s58, %s, 13' % s(sW))
    a('s_add_u32 s56, s56, s58')
    a('s_add_u32 s56, s56, %d' % (3072 * 256))


def pro_touch():
    a('v_lshl_add_u32 %s, %s, 4, s49' % (v(vCons), v(vL)))
    a('s_lshl_b32 s57, %s, 14' % s(sGam))
    a('s_add_u32 s57, s57, %d' % WS_L)
    a('s_add_u32 s3, s48, s57')
    if OPT.get('pt', 1) >= 2:
        a('s_add_u32 s3, s3, %d' % STATS)
        a('v_mov_b32 %s, s3' % v(t3))
        if OPT['pt'] == 3:
            a('s_and_b32 s3, s48, 0x180')
            a('s_add_u32 s3, s3, s57')
            a('s_add_u32 s3, s3, %d' % (STATS + ST0))
            a('v_writelane_b32 %s, s3, 5' % v(t3))
        return
    a('s_add_u32 s59, s3, s49')
    if OPT.get('pt', 1) == -1:
        a('v_and_b32 %s, 2, %s' % (v(t3), v(vL)))
        a('v_lshl_add_u32 %s, %s, 10, s59' % (v(t3), v(t3)))
    elif OPT.get('pt', 1):
        a('s_add_u32 s59, s59, %d' % BUF_B)
        a('v_mov_b32 %s, s59' % v(t3))
    else:
        a('v_lshl_add_u32 %s, %s, 10, s59' % (v(t3), v(vL)))
    a('v_cmp_lt_u32 vcc, 2, %s' % v(vL))
    a('s_add_u32 s3, s3, %d' % STATS)
    a('v_mov_b32 %s, s3' % v(T + 17))
    a('v_cndmask_b32 %s, %s, %s, vcc' % (v(t3), v(t3), v(T + 17)))
    if OPT['probe'] in (1, 2):
        a('s_add_u32 s3, s57, %d' % VOTES)
        a('v_writelane_b32 %s, s3, 3' % v(t3))
        a('s_add_u32 s3, s3, 128')
        a('v_writelane_b32 %s, s3, 4' % v(t3))
    a('s_and_b32 s3, s48, 0x180')
    a('s_add_u32 s3, s3, s57')
    a('s_add_u32 s3, s3, %d' % (STATS + ST0))
    a('v_writelane_b32 %s, s3, 5' % v(t3))


PRO = OPT.get('pro', 2)
pro_wq()
if PRO < 2:
    pro_rest()
if PRO < 1:
    pro_touch()
stamp('pre ka')
a('s_waitcnt lgkmcnt(0)')
stamp('ka')
a('s_add_u32 s10, s10, s55')
a('s_addc_u32 s11, s11, 0')
a('global_load_lds_dwordx4 %s, s[10:11] offset:0%s' % (v(t0), NT))
a('v_add_u32 %s, 31744, %s' % (v(t0), v(t0)))
a('s_load_dword %s, s[26:27], 0' % s(sE))
a('global_load_lds_dwordx4 %s, s[10:11] offset:1024%s' % (v(t0), NT))
a('global_load_lds_dwordx4 %s, s[10:11] offset:2048%s' % (v(t1), NT))
a('v_add_u32 %s, 31744, %s' % (v(t1), v(t1)))
a('global_load_lds_dwordx4 %s, s[10:11] offset:3072%s' % (v(t1), NT))
if PRO >= 2:
    pro_rest()
a('s_add_u32 s4, s4, s48')
a('s_addc_u32 s5, s5, 0')
a('global_load_ushort %s, %s, s[4:5]' % (v(vX), v(vXw)))
a('s_add_u32 s6, s6, s56')
a('s_addc_u32 s7, s7, 0')
if PRO < 1:
    a('global_load_dword %s, %s, s[26:27]' % (v(T + 22), v(t3)))
a('s_add_u32 m0, s58, %d' % KI)
stamp('wq iss')
if OPT.get('bar0', 1):
    a('s_barrier')
for i in range(4):
    a('global_load_lds_dwordx4 %s, s[6:7] offset:%d%s' % (v(k0 + i), 1024 * i, NT))


def k_second():
    a('s_add_u32 m0, s58, %d' % (KI + 4096))
    a('s_add_u32 s6, s6, 4096')
    a('s_addc_u32 s7, s7, 0')
    for i in range(4):
        a('global_load_lds_dwordx4 %s, s[6:7] offset:%d%s' % (v(k0 + i), 1024 * i, NT))


if not OPT['ksplit']:
    k_second()
if PRO >= 1:
    pro_touch()
    a('global_load_dword %s, %s, s[26:27]' % (v(T + 22), v(t3)))
stamp('issued')
a('s_add_u32 s8, s8, s56')
a('s_addc_u32 s9, s9, 0')
a('s_add_u32 %s, s26, s57' % s(sLb))
a('s_addc_u32 %s, s27, 0' % s(sLb + 1))
a('s_lshl_b32 s55, %s, %d' % (s(sJ), 14 + PAD))
a('s_add_u32 s55, s55, %d' % (WS_G + GOFF))
a('s_add_u32 %s, s26, s55' % s(sGb0))
a('s_addc_u32 %s, s27, 0' % s(sGb0 + 1))
a('s_add_u32 %s, %s, 0x%x' % (s(sGb1), s(sGb0), 0x40000 << PAD))
a('s_addc_u32 %s, %s, 0' % (s(sGb1 + 1), s(sGb0 + 1)))
a('s_getreg_b32 %s, hwreg(HW_REG_XCC_ID, 0, 4)' % s(sXcc))
if PB_:
    if PB_ == 1:
        a('s_and_b32 %s, %s, 3' % (s(sPr), s(sGam)))
        a('s_lshl_b32 %s, %s, 2' % (s(sPr), s(sPr)))
        a('s_add_u32 %s, %s, %s' % (s(sPr), s(sPr), s(sW)))
        a('s_lshl_b32 %s, %s, 7' % (s(sPr), s(sPr)))
    else:
        a('s_and_b32 %s, %s, 15' % (s(sPr), s(sGam)))
        a('s_lshl_b32 %s, %s, 7' % (s(sPr), s(sPr)))
        a('s_lshr_b32 s59, %s, 4' % s(sGam))
        a('s_lshl_b32 s59, s59, 12')
        a('s_add_u32 %s, %s, s59' % (s(sPr), s(sPr)))
    a('s_add_u32 %s, %s, s55' % (s(sPr), s(sPr)))
    a('s_add_u32 %s, %s, 0x20000' % (s(sPr), s(sPr)))
else:
    a('s_lshl_b32 %s, s2, 2' % s(sPr))
    a('s_add_u32 %s, %s, %s' % (s(sPr), s(sPr), s(sW)))
    a('s_and_b32 s55, %s, 63' % s(sPr))
    a('s_lshl_b32 s55, s55, 7')
    a('s_lshr_b32 %s, %s, 6' % (s(sPr), s(sPr)))
    a('s_lshl_b32 %s, %s, 14' % (s(sPr), s(sPr)))
    a('s_add_u32 %s, %s, s55' % (s(sPr), s(sPr)))
    a('s_add_u32 %s, %s, %d' % (s(sPr), s(sPr), WS_P))
if OPT['probe'] == 1:
    a('s_lshl_b32 s55, s49, %d' % PAD)
    a('s_and_b32 s55, s55, 8192')
    a('s_add_u32 %s, %s, s55' % (s(sPr), s(sPr)))
a('s_mov_b32 %s, 0x40000' % s(sTo))
a('s_mov_b32 %s, %s' % (s(sCs), f32(math.log2(math.e) / math.sqrt(128.0))))
a('s_mov_b32 %s, 0xffffff00' % s(sMaskHi))
a('s_mov_b32 %s, %s' % (s(sInv512), f32(1.0 / 512)))
a('s_mov_b32 %s, %s' % (s(sEps), f32(1e-5)))
a('s_mov_b32 %s, %s' % (s(sNl2e), f32(-math.log2(math.e))))
a('s_mov_b32 %s, 0xffff0000' % s(sM0))
a('s_mov_b32 %s, 0xffff0000' % s(sM0 + 1))
a('s_mov_b32 %s, 0x10000' % s(sM1))
a('s_mov_b32 %s, 0x10000' % s(sM1 + 1))
a('s_mov_b32 %s, 0' % s(sHi))
a('s_mov_b32 %s, -1' % s(sHi + 1))
if OPT.get('fal', 5):
    if OPT.get('fal', 5) == 1:
        a('s_cmp_lt_u32 %s, 12' % s(sGam))
        a('s_cselect_b32 %s, 6, 5' % s(sCnt))
        a('s_cselect_b32 s55, 0, 12')
        a('s_mul_i32 %s, %s, %s' % (s(sC0), s(sGam), s(sCnt)))
        a('s_add_u32 %s, %s, s55' % (s(sC0), s(sC0)))
    else:
        pat = {2: [6, 6, 6, 6, 4, 5, 5, 5], 3: [6, 6, 6, 6, 4, 4, 5, 6], 4: [6, 6, 6, 6, 5, 4, 5, 5], 5: [6, 6, 6, 6, 4, 4, 6, 5], 6: [6, 6, 6, 6, 3, 4, 6, 6],
               7: [7, 7, 7, 6, 4, 4, 4, 4], 8: [8, 7, 7, 6, 3, 3, 5, 4], 9: [8, 8, 8, 7, 2, 2, 4, 4], 10: [7, 7, 6, 6, 4, 4, 5, 4]}[OPT.get('fal', 5)]
        assert sum(pat) == 43
        pre_ = [sum(pat[:g]) for g in range(8)]
        a('s_and_b32 s55, %s, 28' % s(sGam))
        a('s_lshr_b32 %s, 0x%x, s55' % (s(sCnt), sum(n << 4 * g for g, n in enumerate(pat))))
        a('s_and_b32 %s, %s, 15' % (s(sCnt), s(sCnt)))
        a('s_lshl_b32 s55, s55, 1')
        a('s_mov_b32 s24, 0x%x' % sum(n << 8 * g for g, n in enumerate(pre_[:4])))
        a('s_mov_b32 s25, 0x%x' % sum(n << 8 * g for g, n in enumerate(pre_[4:])))
        a('s_lshr_b64 s[24:25], s[24:25], s55')
        a('s_and_b32 s55, s24, 0xff')
        a('s_lshl_b32 s55, s55, 2')
        a('s_and_b32 %s, %s, 3' % (s(sC0), s(sGam)))
        a('s_mul_i32 %s, %s, %s' % (s(sC0), s(sC0), s(sCnt)))
        a('s_add_u32 %s, %s, s55' % (s(sC0), s(sC0)))
    a('s_sub_u32 s37, %s, 1' % s(sCnt))
    a('s_lshl_b32 %s, %s, 3' % (s(sCnt), s(sCnt)))
else:
    a('s_mul_i32 %s, %s, 43' % (s(sC0), s(sGam)))
    a('s_add_u32 %s, %s, 43' % (s(sCnt), s(sC0)))
    a('s_lshr_b32 %s, %s, 3' % (s(sC0), s(sC0)))
    a('s_lshr_b32 %s, %s, 3' % (s(sCnt), s(sCnt)))
    a('s_sub_u32 %s, %s, %s' % (s(sCnt), s(sCnt), s(sC0)))
    a('s_lshl_b32 %s, %s, 3' % (s(sCnt), s(sCnt)))
    a('s_mov_b32 s37, 5')
a('v_mov_b32 %s, 0' % v(vZero))
a('v_lshrrev_b32 %s, 3, %s' % (v(u8), v(vL)))
a('v_and_b32 %s, 7, %s' % (v(pos8), v(vL)))
a('s_add_u32 s55, s49, s48')
a('v_and_b32 %s, 31, %s' % (v(t0), v(vL)))
a('v_lshl_add_u32 %s, %s, 2, s55' % (v(vPubL), v(t0)))
a('v_lshrrev_b32 %s, 5, %s' % (v(t3), v(vL)))
a('v_lshl_add_u32 %s, %s, 10, %s' % (v(vPubL), v(t3), v(vPubL)))
a('s_lshl_b32 s55, %s, 6' % s(sW))
a('v_lshl_add_u32 %s, %s, 1, s55' % (v(vPw), v(t0)))
a('v_lshl_add_u32 %s, %s, 2, %s' % (v(t1), v(pos8), v(u16)))
a('v_lshl_add_u32 %s, %s, 1, s55' % (v(vQw), v(t1)))
a('s_lshl_b32 s55, %s, 6' % s(sGam))
a('s_add_u32 s55, s55, s49')
if PAD:
    a('s_lshl_b32 s55, s55, 1')
a('v_lshl_add_u32 %s, %s, 2, s55' % (v(vPubG), v(pos16)))
if PAD:
    a('v_lshl_add_u32 %s, %s, 6, %s' % (v(vPubG), v(t3), v(vPubG)))
a('v_and_b32 %s, 1, %s' % (v(t2), v(u16)))
a('v_mul_u32_u24 %s, 0x%x, %s' % (v(t2), G_X, v(t2)))
a('v_xor_b32 %s, %s, %s' % (v(vPubG), v(vPubG), v(t2)))
if FL2:
    a('v_lshl_add_u32 %s, %s, 3, s55' % (v(vPre), v(pos8)))
    a('v_and_b32 %s, 1, %s' % (v(t2), v(u8)))
    a('v_mul_u32_u24 %s, 0x%x, %s' % (v(t2), G_X, v(t2)))
    a('v_xor_b32 %s, %s, %s' % (v(vPre), v(vPre), v(t2)))
    a('s_and_b32 s55, s55, 0xffffffbf')
    a('s_and_b32 s59, %s, 1' % s(sGam))
    a('s_mul_i32 s59, s59, 0x%x' % G_X)
    a('s_xor_b32 s55, s55, s59')
    a('v_lshl_add_u32 %s, %s, 3, s55' % (v(t2), v(pos16)))
    a('v_and_b32 %s, 1, %s' % (v(t1), v(u16)))
    a('v_lshl_add_u32 %s, %s, 11, %s' % (v(t2), v(t1), v(t2)))
    a('v_lshl_add_u32 %s, %s, 18, %s' % (v(t2), v(t3), v(t2)))
    a('v_cmp_lt_u32 vcc, 15, %s' % v(vL))
    a('v_cndmask_b32 %s, %s, %s, vcc' % (v(vPre), v(vPre), v(t2)))
else:
    a('v_lshl_add_u32 %s, %s, %d, s55' % (v(vPre), v(pos8), 3 + PAD))
    a('v_xor_b32 %s, %s, %s' % (v(vPre), v(vPre), v(t2)))
    a('v_and_b32 %s, 1, %s' % (v(t2), v(u8)))
    a('v_lshl_add_u32 %s, %s, %d, %s' % (v(vPre), v(t2), 11 + PAD, v(vPre)))
    a('v_lshl_add_u32 %s, %s, %d, %s' % (v(vPre), v(t3), 18 + PAD, v(vPre)))
a('s_lshl_b32 s55, %s, 2' % s(sJ))
a('s_add_u32 s55, s55, %s' % s(sW))
a('s_lshl_b32 s55, s55, 4')
a('s_add_u32 s55, s55, %d' % STATS)
a('v_mov_b32 %s, s55' % v(vStP))
a('v_lshl_add_u32 %s, %s, 3, s55' % (v(vStP2), v(t3)))
a('v_lshlrev_b32 %s, 4, %s' % (v(t1), v(l3)))
a('v_lshl_add_u32 %s, %s, 6, %s' % (v(t1), v(u8), v(t1)))
a('v_add_u32 %s, %d, %s' % (v(vStC), STATS, v(t1)))
a('v_mov_b32 %s, 0xff' % v(t2))
a('v_cmp_eq_u32 vcc, 0, %s' % v(l3))
a('v_lshlrev_b32 %s, 4, %s' % (v(vOpR), v(u16)))
a('v_and_b32 %s, 8, %s' % (v(t1), v(vL)))
a('v_cndmask_b32 %s, 0, %s, vcc' % (v(vTagM), v(t2)))
a('v_lshl_add_u32 %s, %s, 4, %s' % (v(vXopR), v(t1), v(vOpR)))
a('v_and_b32 %s, 4, %s' % (v(t1), v(vL)))
a('v_cmp_eq_u32 vcc, 0, %s' % v(t1))
a('v_add_u32 %s, %d, %s' % (v(t1), HB, v(vXw)))
a('v_mov_b32 %s, %d' % (v(t2), DUMMY))
a('v_cndmask_b32 %s, %s, %s, vcc' % (v(vHw), v(t2), v(t1)))
a('v_lshrrev_b32 %s, 1, %s' % (v(t1), v(vXw)))
a('v_cmp_gt_u32 vcc, %s, %s' % (s(sCnt), v(t1)))
a('s_lshl_b32 s55, %s, 2' % s(sW))
a('v_mov_b32 %s, s55' % v(vMw))
a('v_lshlrev_b32 %s, 2, %s' % (v(vMr), v(l3)))
a('v_cndmask_b32 %s, 0, -1, vcc' % v(vHmask))
a('v_lshlrev_b32 %s, 2, %s' % (v(t0), v(t0)))
a('v_mov_b32 %s, 0x3f803f80' % v(t1))
a('ds_write_b32 %s, %s offset:%d' % (v(t0), v(t1), ONES))
a('v_lshlrev_b32 %s, 2, %s' % (v(t0), v(pos8)))
if not W4:
    a('ds_write_b32 %s, %s offset:%d' % (v(t0), v(vZero), HB + 96))
if PAD:
    a('v_lshrrev_b32 %s, 2, %s' % (v(t1), v(vL)))
    a('v_lshlrev_b32 %s, 4, %s' % (v(t2), v(l3)))
    a('v_lshl_add_u32 %s, %s, 7, %s' % (v(t1), v(t1), v(t2)))
    a('s_lshl_b32 s59, s49, 1')
    a('v_add_u32 %s, s59, %s' % (v(vConsG), v(t1)))
else:
    a('v_mov_b32 %s, %s' % (v(vConsG), v(vCons)))
a('v_mov_b32 %s, %s' % (v(vConsG0), v(vConsG)))
a('v_mov_b32 %s, %s' % (v(vSt + 3), s(sXcc)))
r_ = T + 16
a('v_lshrrev_b32 %s, 2, %s' % (v(r_), v(pos16)))
a('v_and_b32 %s, 1, %s' % (v(t0), v(u16)))
a('v_lshl_add_u32 %s, %s, 2, %s' % (v(t1), v(t0), v(r_)))
a('v_lshlrev_b32 %s, 1, %s' % (v(t1), v(t1)))
a('v_xor_b32 %s, s55, %s' % (v(t1), v(t1)))
a('v_lshlrev_b32 %s, 4, %s' % (v(t1), v(t1)))
a('v_lshl_add_u32 %s, %s, 3, %s' % (v(t1), v(l3), v(t1)))
a('v_lshl_add_u32 %s, %s, 3, %s' % (v(t2), v(u16), v(r_)))
a('v_lshl_add_u32 %s, %s, 8, %s' % (v(trq), v(t2), v(t1)))
a('v_xor_b32 %s, 32, %s' % (v(trq + 1), v(trq)))
a('v_lshrrev_b32 %s, 1, %s' % (v(t1), v(r_)))
a('v_lshl_add_u32 %s, %s, 1, %s' % (v(t1), v(t0), v(t1)))
a('v_xor_b32 %s, %s, %s' % (v(t1), s(sW), v(t1)))
a('v_lshlrev_b32 %s, 5, %s' % (v(t1), v(t1)))
a('v_lshl_add_u32 %s, %s, 3, %s' % (v(t1), v(l3), v(t1)))
a('v_lshl_add_u32 %s, %s, 7, %s' % (v(vTr), v(t2), v(t1)))
a('v_add_u32 %s, %d, %s' % (v(vTr), WO, v(vTr)))
a('v_and_b32 %s, 2, %s' % (v(t0), v(u8)))
a('v_xor_b32 %s, %s, %s' % (v(t0), v(t0), v(pos8)))
a('v_lshlrev_b32 %s, 4, %s' % (v(t1), v(t0)))
a('v_lshl_add_u32 %s, %s, 10, %s' % (v(wo0), v(u8), v(t1)))
a('v_xor_b32 %s, 64, %s' % (v(wo1), v(wo0)))
a('v_add_u32 %s, 7168, %s' % (v(wo1), v(wo1)))
a('v_mul_u32_u24 %s, 2752, %s' % (v(t2), v(u8)))
a('v_min_u32 %s, s37, %s' % (v(t1), v(t0)))
a('v_lshl_add_u32 %s, %s, 4, %s' % (v(f0), v(t1), v(t2)))
a('v_xor_b32 %s, 4, %s' % (v(t0), v(t0)))
a('v_min_u32 %s, s37, %s' % (v(t1), v(t0)))
a('v_lshl_add_u32 %s, %s, 4, %s' % (v(f1), v(t1), v(t2)))
a('v_add_u32 %s, %d, %s' % (v(f1), 8 * 2752 - 1024, v(f1)))
a('s_lshl_b32 s55, %s, 17' % s(sGam))
a('s_lshl_b32 s59, %s, 15' % s(sW))
a('s_add_u32 s55, s55, s59')
a('s_add_u32 s55, s55, s48')
a('s_add_u32 s12, s12, s55')
a('s_addc_u32 s13, s13, 0')
a('s_lshl_b32 s55, %s, 2' % s(sJ))
a('s_add_u32 s55, s55, %s' % s(sW))
a('s_mul_i32 s55, s55, %d' % (16 * 2752))
a('s_lshl_b32 s59, %s, 4' % s(sC0))
a('s_add_u32 s55, s55, s59')
a('s_add_u32 s16, s16, s55')
a('s_addc_u32 s17, s17, 0')
a('s_add_u32 s18, s18, s55')
a('s_addc_u32 s19, s19, 0')
a('s_lshl_b32 s55, %s, 13' % s(sC0))
a('s_lshr_b32 s59, s37, 1')
a('s_min_u32 s59, %s, s59' % s(sW))
a('s_lshl_b32 s59, s59, 14')
a('s_add_u32 s55, s55, s59')
a('s_add_u32 s55, s55, s48')
a('s_add_u32 s20, s20, s55')
a('s_addc_u32 s21, s21, 0')
if OPT.get('fal', 5):
    a('s_lshr_b32 s59, s59, 10')
    a('s_add_u32 s59, s59, 8')
    a('s_cmp_ge_u32 s59, %s' % s(sCnt))
    a('s_cselect_b32 s59, 8192, 0')
    a('s_sub_u32 s4, s20, s59')
    a('s_subb_u32 s5, s21, 0')
a('s_add_u32 s22, s22, s48')
a('s_addc_u32 s23, s23, 0')
if OPT['ksplit']:
    k_second()
a('s_add_u32 s6, s8, 4096')
a('s_addc_u32 s7, s9, 0')
a('s_waitcnt lgkmcnt(0)')
for k in range(10):
    a('s_add_u32 %s, %s, 0x%x' % (s(sTag + k), s(sE), 0x5a3c7181 + k))


def issue_v(lo, hi):
    for i in range(lo, hi):
        if i == lo or i == 4:
            a('s_add_u32 m0, s58, %d' % (VI + 4096 * (i >> 2)))
            a('s_nop 0')
        a('global_load_lds_dwordx4 %s, %s offset:%d%s' % (v(vVo + ((i >> 1) & 1)), 's[6:7]' if i >= 4 else 's[8:9]', 1024 * (i & 3), NT))


def issue_wo(lo=0, hi=4):
    a('s_add_u32 m0, s49, %d' % WO)
    for i in range(lo, hi):
        ad = wo0 + (i & 1)
        if i >= 2:
            a('v_add_u32 %s, %d, %s' % (v(T + 20), 2 * 7168, v(ad)))
            ad = T + 20
        a('global_load_lds_dwordx4 %s, s[12:13] offset:%d%s' % (v(ad), 1024 * i, NT))


def issue_w13(lo, hi):
    for i in range(lo, hi):
        if i == lo or i == 2:
            a('s_lshl_b32 s59, %s, 11' % s(sW))
            a('s_add_u32 m0, s59, %d' % (W1 if i < 2 else W3))
            a('s_nop 0')
        a('global_load_lds_dwordx4 %s, s[%d:%d] offset:%d%s' % (v(f0 + (i & 1)), 16 + (i & 2), 17 + (i & 2), 1024 * (i & 1), NT))


def issue_w2():
    if W4:
        a('s_lshl_b32 s59, %s, 11' % s(sW))
    else:
        a('s_min_u32 s59, %s, 2' % s(sW))
        a('s_lshl_b32 s59, s59, 11')
    a('s_add_u32 m0, s59, %d' % W2)
    a('s_nop 0')
    a('global_load_lds_dwordx4 %s, s[20:21] offset:0%s' % (v(wo0), NT))
    a('global_load_lds_dwordx4 %s, %s offset:1024%s' % (v(wo1), 's[4:5]' if OPT.get('fal', 5) else 's[20:21]', NT))


r = vP
FE, KW, WOL = OPT['fe'], OPT['kw'], OPT['wol']
NPRE = (OPT.get('gpre', 5) != 6) + (bool(OPT['probe']) and not PB_)
NVA = OPT['nva']
NVB = 8 - NVA
WOH = OPT.get('woh', 0)
WV = OPT.get('wv', 6)
ORD = OPT.get('ord', 0)
NF = OPT.get('fs', 6)
ORD6 = ORD and NF == 6
NLATE = WOH if WOL else 4 + FE + 2 * OPT['w2e']


def sc_copies():
    lstore('global_store_dword', v(vD + 8), v(vD + 9), BUF_A)
    a('s_mov_b64 exec, %s' % s(sM1, 2))
    lstore('global_store_dwordx2', v(vD + 10), v(vSt4, 2), 0)
    a('s_mov_b64 exec, -1')


WOETC = []
L0COL = []


def front():
    a('; ---- layer 0: x slice, query projection partials')
    set_tags(0)
    a('v_add_u32 %s, 0x%x, %s' % (v(T + 12), WS_L2D, v(vStP2)))
    a('v_add_u32 %s, 0x%x, %s' % (v(T + 13), WS_L2D, v(vPubL)))
    a('v_add_u32 %s, 0x%x, %s' % (v(T + 14), ST0, v(vStP2)))
    stamp('consts')
    a('s_waitcnt vmcnt(9)')
    stamp('wq landed')
    a('ds_write_b16 %s, %s offset:%d' % (v(vXw), v(vX), XB))
    issue_v(0, OPT['vq'])
    a('v_lshlrev_b32 %s, 16, %s' % (v(vSt4), v(vX)))
    a('v_lshlrev_b32 %s, 16, %s' % (v(vX), v(vX)))
    FAST[0] = True
    ln_stats(0, T + 14)
    a('s_waitcnt lgkmcnt(0)')

    proj(vWQ, 0, 0, wsrc=[(trq, WQ, 8192, 1024), (trq + 1, WQ, 8192, 1024)], first=True)
    FAST[0] = False
    stamp('L0 Q pub')
    SP = OPT.get('sp', 0)
    a('v_mov_b32 %s, %s' % (v(vD + 8), v(T + 13)))
    a('v_mov_b32 %s, %s' % (v(vD + 9), v(T)))
    a('v_mov_b32 %s, %s' % (v(vD + 10), v(T + 12)))

    def side_stores():
        if not LZ:
            sc_copies()
        a('v_mov_b32 %s, %s' % (v(T + 16), s(sE)))
        a('v_mov_b32 %s, %s' % (v(T + 17), s(sE)))
        if OPT.get('pt', 1) >= 2:
            a('s_mov_b32 exec_hi, 0')
            a('global_store_dword %s, %s, %s offset:%d' % (v(vPubL), v(T + 16), s(sLb, 2), BUF_B))
            a('s_mov_b32 exec_hi, -1')
        if PAD:
            a('v_mov_b32 %s, %s' % (v(T + 18), s(sE)))
            a('v_mov_b32 %s, %s' % (v(T + 19), s(sE)))
        if OPT.get('gpre', 5) == 2:
            a('s_mov_b32 exec_lo, 0')
        if OPT.get('gpre', 5) == 0:
            a('s_mov_b64 exec, 1')
        if OPT.get('gpre', 5) in (3, 5, 7):
            a('s_mov_b64 exec, 0x%x' % (0xffff if FL2 else 0x00ff00ff))
        if OPT.get('gpre', 5) == 4:
            a('s_mov_b32 exec_hi, 0')
        if OPT.get('gpre', 5) == 6:
            return
        a('global_store_dwordx%d %s, %s, %s offset:%d sc1' % (2 << PAD, v(vPre), v(T + 16, 2 << PAD), s(sGb0, 2), -GOFF))
        if OPT.get('gpre', 5) != 1:
            a('s_mov_b64 exec, -1')
        if OPT['probe'] and not PB_:
            a('v_and_b32 %s, 31, %s' % (v(T + 18), v(vL)))
            a('v_lshl_add_u32 %s, %s, 2, %s' % (v(T + 18), v(T + 18), s(sPr)))
            a('v_lshrrev_b32 %s, 5, %s' % (v(T + 19), v(vL)))
            a('v_lshlrev_b32 %s, 13, %s' % (v(T + 19), v(T + 19)))
            a('v_xor_b32 %s, %s, %s' % (v(T + 18), v(T + 19), v(T + 18)))
            a('global_store_dword %s, %s, s[26:27] sc1' % (v(T + 18), v(T + 16)))
    if SP == 2:
        side_stores()
    if ORD:
        issue_wo()
    if OPT.get('te'):
        h = OPT.get('th', 4)
        issue_v(OPT['vq'], h)
        sk = newlabel('noth')
        a('s_cmp_ge_u32 %s, 4' % s(sXcc))
        a('s_cbranch_scc1 %s' % sk)
        a('s_waitcnt vmcnt(%d)' % max(8 - OPT['te'] + (PRO >= 1) + 2 + h, 0))
        a.label(sk)
        issue_v(h, NVA)
    else:
        issue_v(OPT['vq'], NVA)
    if SP == 0:
        side_stores()
    a('; ---- layer 0: gather q')
    if OPT.get('cp2'):
        a('s_getpc_b64 s[4:5]')
        a.label('L_pc2')
        a('v_lshlrev_b32 %s, 6, v0' % v(T + 19))
        a('v_min_u32 %s, L_fastend-L_pc2-64, %s' % (v(T + 19), v(T + 19)))
        a('global_load_dword %s, %s, s[4:5]' % (v(T + 22), v(T + 19)))
    a('v_xor_b32 %s, %s, %s' % (v(t0), v(u16), v(pos16)))
    a('v_lshlrev_b32 %s, 4, %s' % (v(t0), v(t0)))
    a('v_lshl_add_u32 %s, %s, 8, %s' % (v(t0), v(pos16), v(t0)))
    a('s_add_u32 s55, s58, %d' % KI)
    a('v_add_u32 %s, s55, %s' % (v(t0), v(t0)))
    for kk in range(1, 4):
        a('v_xor_b32 %s, %d, %s' % (v(t0 + kk), kk << 6, v(t0)))
    alt, both, alts, boths = T + 13, T + 14, T + 15, T + 21
    a('v_mov_b32 %s, %s' % (v(alt), v(vCons)))
    a('v_lshlrev_b32 %s, 1, %s' % (v(both), v(vCons)))
    a('v_add_u32 %s, 0x%x, %s' % (v(both), WS_L2D, v(both)))
    a('v_add_u32 %s, 0x%x, %s' % (v(alts), ST0, v(vStC)))
    a('v_lshlrev_b32 %s, 1, %s' % (v(boths), v(vStC)))
    a('v_add_u32 %s, 0x%x, %s' % (v(boths), WS_L2D + ST0, v(boths)))
    page_break(True)
    NS = (0 if LZ else 2) + NPRE + (OPT.get('pt', 1) >= 2)
    behind_k = 2 + NVA + (0 if SP == 1 else NS) + (PRO >= 1) + OPT.get('cp2', 0) + 4 * ORD
    PL = OPT.get('pl', 0)
    loads = [(vSs[0], alts, sLb, 0), (r, alt, sLb, BUF_A), (r + 4, alt, sLb, BUF_X)]
    if not PL:
        a('s_waitcnt vmcnt(%d)' % (8 - KW + behind_k))
        stamp('K part')
        for x in loads:
            gload(*x)
    issue_v(NVA, 8)

    if WOH:
        issue_wo(0, WOH)

    def wo_etc():
        if ORD:
            issue_w13(0, min(NF, 4))
            if NF == 6:
                issue_w2()
            return
        issue_wo(WOH, 4)
        if OPT['w2e']:
            issue_w2()
        issue_w13(0, FE)
    if not WOL:
        wo_etc()
    XL = OPT.get('xw', 0) & 8
    if XL:
        only_if(True, wo_etc)
    a('s_waitcnt vmcnt(%d)' % (behind_k + (0 if PL else 3) + NVB + NLATE))
    stamp('K landed')
    for g in range(2):
        for kk in range(4):
            a('ds_read_b128 %s, %s offset:%d' % (v(vK + 16 * g + 4 * kk, 4), v(t0 + kk), 4096 * g))
    if PL:
        assert WV and not NVB
        pv_ = OPT.get('pv', WV)
        a('s_waitcnt vmcnt(%d)' % (8 - pv_ + 2 + NPRE))
        for x in loads:
            gload(*x)
    if WV:
        if not PL or pv_ != WV:
            a('s_waitcnt vmcnt(%d)' % (8 - WV + (NS if SP == 0 else 0) + 3))
        wo_etc()
        if OPT.get('gpre') == 7:
            late_pre()
        if SP == 1:
            side_stores()
    a('s_branch L_e1ent')
    a.label('L_e1top')
    tick()
    if LZ:
        sc_copies()
    for x in loads:
        gload(*x)
    a('v_sub_u32 %s, %s, %s' % (v(alt), v(both), v(alt)))
    a('v_sub_u32 %s, %s, %s' % (v(alts), v(boths), v(alts)))
    if NLATE + NVB or XL or WV:
        a('s_waitcnt vmcnt(0)')
    a.label('L_e1ent')
    if XL:
        only_if(False, lambda: a('s_waitcnt vmcnt(%d)' % NVB))
        a('s_waitcnt vmcnt(%d)' % (NVB + 4 + FE))
    else:
        a('s_waitcnt vmcnt(%d)' % (NLATE + NVB + ((NF if ORD else 4 + FE) if WV else 0) + (NS if SP == 1 else 0) + (OPT.get('gpre') == 7)))
    a('v_bitop3_b32 %s, %s, %s, %s bitop3:0x7e' % (v(T + 23), v(r), v(r + 4), s(sTag)))
    a('v_cmp_ne_u32 %s, %s, %s' % (s(sT1, 2), s(sTag), v(vSs[0] + 1)))
    a('v_cmp_ne_u32_sdwa vcc, %s, %s src0_sel:BYTE_0 src1_sel:DWORD' % (v(T + 23), v(vZero)))
    a('s_or_b64 vcc, vcc, %s' % s(sT1, 2))
    a('s_cbranch_vccnz L_e1top')
    stamp('L0 E1 ok')
    if OPT['fl']:
        flag_store(sE)
    if XL:
        only_if(False, wo_etc)
    elif OPT.get('xw', 0) & 1:
        only_if(True, wo_etc)
    elif WOL and OPT['wopos'] == 0 and not WV:
        wo_etc()
    WOETC.append(wo_etc)
    a('v_cmp_ne_u32 vcc, %s, %s' % (s(sXcc), v(vSs[0] + 3)))
    c, x, y = vC, vSs[0], r + 4
    ln_spec(x)
    mask_tag(y)
    a('v_mov_b32 %s, %s' % (v(c + 1), v(c)))
    a('v_permlane32_swap_b32 %s, %s' % (v(y + 1), v(y + 3)))
    mask_tag(r)
    a('v_permlane16_swap_b32 %s, %s' % (v(c), v(c + 1)))
    a('v_add_f32 %s, %s, %s' % (v(c), v(c), v(c + 1)))
    a('v_add_f32 %s, %s, %s' % (v(y + 1), v(y + 1), v(y + 3)))
    a('v_permlane32_swap_b32 %s, %s' % (v(y), v(y + 2)))
    dpp('v_add_f32', c, c, c, 'row_ror:8')
    a('v_add_f32 %s, %s, %s' % (v(y), v(y), v(y + 2)))
    a('v_permlane32_swap_b32 %s, %s' % (v(r + 1), v(r + 3)))
    dpp('v_add_f32', c, c, c, X1)
    a('v_add_f32 %s, %s, %s' % (v(r + 1), v(r + 1), v(r + 3)))
    a('v_permlane16_swap_b32 %s, %s' % (v(y), v(y + 1)))
    dpp('v_add_f32', c, c, c, X2)
    a('v_add_f32 %s, %s, %s' % (v(y), v(y), v(y + 1)))
    a('v_mul_f32 %s, %s, %s' % (v(c), s(sInv512), v(c)))
    a('v_mov_b32 %s, %s' % (v(c + 1), v(c)))
    a('v_permlane32_swap_b32 %s, %s' % (v(r), v(r + 2)))
    dpp('v_add_f32', vCq, y, y, 'row_ror:8')
    a('v_permlane32_swap_b32 %s, %s' % (v(c), v(c + 1)))
    a('v_add_f32 %s, %s, %s' % (v(r), v(r), v(r + 2)))
    bf16r(vMean, c)
    if OPT['fast']:
        a('s_cbranch_vccnz L_slowtail')


def CLEAN():
    return OPT['clean'] if FAST[0] else 0


def tail():
    for layer in range(2):
        pre = 'L%d' % layer
        k1, k2, k4 = 3 * layer, 3 * layer + 1, 3 * layer + 2

        def spec(x):
            mask_tag(x)
            red_a(x, r)
        if layer == 1:
            a('; ---- layer 1: x slice, query projection partials')
            set_tags(k1)
            if OPT['pages'] == 1:
                page_break()
            if OPT['probe'] == 3:
                if not (ORD6 and OPT.get('r0', 1)):
                    race_pick()
            elif OPT['probe'] and OPT['vlate']:
                count_votes()
            if CLEAN():
                clean_prep()
            g_pace(1)
            x_gather(1, G_D)
            stamp(pre + ' E5 ok')
            x_to_lds(k1)
            a('s_waitcnt lgkmcnt(0)')
            proj(vWQ, k1, layer)
            stamp(pre + ' Q pub')
            a('; ---- layer 1: gather q')
            l_gather(k1, spec, ln_spec, [ln_mean])
            stamp(pre + ' E1 ok')
        red_b(r, r)
        a('v_fma_f32 %s, -%s, %s, %s' % (v(r), v(vMean), v(vCq), v(r)))
        a('v_cvt_pk_bf16_f32 %s, %s, %s' % (v(r), v(r), v(r)))
        a('ds_write_b16 %s, %s offset:%d' % (v(vQw), v(r), QB))
        if layer == 0 and OPT.get('gpre', 5) in (5, 6):
            late_pre()
        if layer == 1 and CLEAN() & 1 and not OPT['cend'] & 1:
            clean_x()
        ln_rstd_a()
        if layer == 0 and WOL and OPT['wopos'] == 1:
            WOETC[0]()
        a('s_waitcnt lgkmcnt(0)')
        stamp('z%d qw' % layer)
        a('s_barrier')
        stamp('z%d qb' % layer)
        a('; ---- layer %d: attention over this member\'s 128 keys' % layer)
        for kk in range(4):
            a('ds_read_b128 %s, %s offset:%d' % (v(vA + 4 * kk, 4), v(vOpR), QB + 64 * kk))
        ln_rstd_b(True)
        set_tags(k2)
        for kk in range(4):
            lgkm(3 - kk)
            for g in range(2):
                mfma(vD + 4 * g, vA + 4 * kk, vK + 16 * g + 4 * kk, vD + 4 * g if kk else None)
        stamp('z%d qk' % layer)
        if layer == 0:
            if OPT.get('xw', 0) & 1:
                only_if(False, WOETC[0])
            elif WOL and OPT['wopos'] == 2:
                WOETC[0]()
            if NVB:
                a('s_waitcnt vmcnt(%d)' % (NF if ORD else 4 + FE + 2 * OPT['w2e']))
                a('s_barrier')
            tr_reads(vV, trq, VI, 4, 8192, 1024)
        sg = vSt
        mx, e0 = T, T + 1
        a('v_max_f32 %s, %s, %s' % (v(mx), v(vD), v(vD + 4)))
        a('v_cndmask_b32 %s, %s, %s, %s' % (v(e0), v(vD), v(vD + 4), s(sM0, 2)))
        for ro in (8, 4, 2, 1):
            dpp('v_max_f32', mx, mx, mx, 'row_ror:%d' % ro)
        a('v_mul_f32 %s, %s, %s' % (v(sg), v(vCs), v(mx)))
        a('v_fma_f32 %s, %s, %s, -%s' % (v(e0), v(e0), v(vCs), v(sg)))
        a('v_exp_f32 %s, %s' % (v(sg + 1), v(e0)))
        stamp('z%d ex' % layer)
        a('ds_write_b32 %s, %s offset:%d' % (v(vMw), v(sg), MB))
        a('v_cvt_pk_bf16_f32 %s, %s, %s' % (v(e0), v(sg + 1), v(sg + 1)))
        a('ds_write_b16 %s, %s offset:%d' % (v(vPw), v(e0), PB))
        if layer == 0:
            tr_reads(vV + 16, trq + 1, VI, 4, 8192, 1024)
        for ro in (8, 4, 2):
            dpp('v_add_f32', sg + 1, sg + 1, sg + 1, 'row_ror:%d' % ro)
        a('s_waitcnt lgkmcnt(0)')
        stamp('z%d pw' % layer)
        a('s_barrier')
        stamp('z%d pb' % layer)
        mm = T + 4
        a('ds_read_b32 %s, %s offset:%d' % (v(mm), v(vMr), MB))
        for kk in range(4):
            a('ds_read_b128 %s, %s offset:%d' % (v(vA + 4 * kk, 4), v(vOpR), PB + 64 * kk))
        dpp('v_add_f32', sg + 1, sg + 1, sg + 1, 'row_ror:1')
        dpp('v_add_f32', sg + 1, sg + 1, sg + 1, 'row_bcast:15', 0xa)
        a('s_mov_b64 exec, 0x10000')
        lstore('global_store_dwordx4', v(vStP), v(sg, 4), 512 * (k2 & 1))
        a('s_mov_b64 exec, -1')

        def sel(kk):
            a('v_cndmask_b32 %s, %s, %s, %s' % (v(T + 8 + kk), v(vD + 8 * kk), v(vD + 8 * kk + 4), s(sM0, 2)))

        def bc(kk):
            a('v_mov_b32_dpp %s, %s quad_perm:[%d,%d,%d,%d] row_mask:0xf bank_mask:0xf' % (v(T + 16 + kk), v(mm), kk, kk, kk, kk))

        def acc(kk):
            a('%s %s, %s, %s' % ('v_fmac_f32' if kk else 'v_mul_f32', v(T), v(T + 16 + kk), v(T + 8 + kk)))
        lgkm(3)
        stamp('z%d pr' % layer)
        mfma(vD, vA, vV)
        dpp('v_max_f32', mx, mm, mm, X1)
        mfma(vD + 4, vA, vV + 16)
        lgkm(2)
        mfma(vD + 8, vA + 4, vV + 4)
        dpp('v_max_f32', mx, mx, mx, X2)
        mfma(vD + 12, vA + 4, vV + 20)
        a('v_sub_f32 %s, %s, %s' % (v(mm), v(mm), v(mx)))
        lgkm(1)
        mfma(vD + 16, vA + 8, vV + 8)
        a('v_exp_f32 %s, %s' % (v(mm), v(mm)))
        mfma(vD + 20, vA + 8, vV + 24)
        lgkm(0)
        bc(0)
        mfma(vD + 24, vA + 12, vV + 12)
        bc(1)
        bc(2)
        mfma(vD + 28, vA + 12, vV + 28)
        stamp('z%d pv' % layer)
        stats_load(k2)
        sel(0)
        sel(1)
        acc(0)
        acc(1)
        sel(2)
        acc(2)
        bc(3)
        a('s_mov_b32 exec_hi, 0')
        sel(3)
        acc(3)
        a('v_bfi_b32 %s, %s, %s, %s' % (v(T), v(vTagM), s(sTag + k2), v(T)))
        lstore('global_store_dword', v(vPubL), v(T), BUF_A if k2 % 2 == 0 else BUF_B)
        a('s_mov_b32 exec_hi, -1')
        stamp(pre + ' S pub')
        if layer == 0 and ORD:
            tr_reads(vWO, vTr, 0, 4, 4096, 512)
        if layer == 0 and OPT['fl'] and OPT['flp'] == 1:
            a('s_waitcnt vmcnt(0)')
            flag_store(sTag + 6)
            stats_load(k2)
            lstore('global_store_dword', v(vStP), v(vSt), 512 * (k2 & 1))
        a('; ---- layer %d: combine the 8 key blocks, output projection partials' % layer)
        mj, mg, mo, lo = T, T + 1, vC, vC + 1

        def sm_spec(x):
            dpp('v_max_f32', mj, x, x, X1)
            a('v_mov_b32 %s, %s' % (v(mo), v(x)))
            a('v_mov_b32 %s, %s' % (v(lo), v(x + 1)))

        def sm0():
            allred('v_max_f32', mj, T + 2, [1])
            dpp('v_max_f32', mg, mj, mj, 'row_ror:8')
            allred('v_max_f32', mg, T + 2, [4, 5])

        def sm1():
            a('v_sub_f32 %s, %s, %s' % (v(mo), v(mo), v(mg)))
            a('v_sub_f32 %s, %s, %s' % (v(mj), v(mj), v(mg)))
            a('v_exp_f32 %s, %s' % (v(mo), v(mo)))
            a('v_exp_f32 %s, %s' % (v(mj), v(mj)))
            a('v_mul_f32 %s, %s, %s' % (v(mo), v(mo), v(lo)))
            allred('v_add_f32', mo, T + 2, [0, 1, 3, 4, 5])
            a('v_rcp_f32 %s, %s' % (v(mo), v(mo)))
            a('v_mul_f32 %s, %s, %s' % (v(vF), v(mj), v(mo)))

        def spec2(x):
            mask_tag(x)
            a('v_pk_mul_f32 %s, %s, %s op_sel_hi:[1,0]' % (v(x + 2, 2), v(x + 2, 2), v(vF, 2)))
            a('v_pk_mul_f32 %s, %s, %s op_sel_hi:[1,0]' % (v(x, 2), v(x, 2), v(vF, 2)))
            red_a(x, r)
        l_gather(k2, spec2, sm_spec, [sm0, sm1], hook=(lambda: flag_store(sTag + 6)) if layer == 0 and OPT['fl'] and OPT['flp'] == 0 else None)
        stamp(pre + ' E2 ok')
        red_b(r, r)
        a('v_cvt_pk_bf16_f32 %s, %s, %s' % (v(r), v(r), v(r)))
        a('ds_write_b16 %s, %s offset:%d' % (v(vQw), v(r), OB))

        def ffn_rest():
            issue_w13(FE, 4)
            if not OPT['w2e']:
                issue_w2()
        if layer == 0 and OPT['ff'] in (2, 3):
            ffn_rest()
        if layer == 0 and OPT['ff'] == 6:
            issue_w13(FE, 4)
        if layer == 0 and OPT['ff'] == 11:
            issue_w13(0, 1)
        if layer == 0 and OPT['ff'] == 12:
            issue_w13(0, 2)
        if layer == 0 and OPT['ff'] == 7 and not ORD:
            if OPT.get('xw', 0) & 2:
                only_if(True, lambda: issue_w13(FE, 2))
            else:
                issue_w13(FE, 2)
        a('s_waitcnt lgkmcnt(0)')
        a('s_barrier')
        if layer == 0 and OPT['ff'] == 5:
            gemv_publish_g(4, vWO, OB, 0, G_C, tr=True, mid=lambda: issue_w13(FE, 2), post=lambda: issue_w13(2, 4))
            issue_w2()
        elif layer == 0 and ORD:
            if OPT.get('r0', 1) and ORD6:
                gemv_publish_g(4, vWO, OB, 0, G_C, mid=race_prep, post=race_start)
            else:
                gemv_publish_g(4, vWO, OB, 0, G_C)
        elif layer == 0 and OPT['probe'] == 2:
            gemv_publish_g(4, vWO, OB, 0, G_C, tr=True, mid=race_prep, post=race_start)
        else:
            gemv_publish_g(4, vWO, OB, 2 * layer, G_C, tr=layer == 0)
        stamp(pre + ' O pub')
        a('; ---- layer %d: x slice, gate/up partials' % layer)
        set_tags(k4)
        if layer == 0 and OPT['ff'] == 1:
            nrest = 4 - FE + (0 if OPT['w2e'] else 2)
            if OPT['fl']:
                a('v_lshlrev_b32 %s, 7, %s' % (v(T + 5), v(vL)))
                a('v_add_u32 %s, %d, %s' % (v(T + 5), WS_F, v(T + 5)))
                flag_load()
            ffn_rest()
            if OPT['fl']:
                flag_wait(nrest)
            else:
                a('s_waitcnt vmcnt(%d)' % nrest)
            stamp('G0 ack')
            x_gather(0, G_C, work=probe_near if OPT['probe'] else None)
        else:
            flush_deferred()
            if layer == 0 and OPT['ff'] == 4:
                ffn_rest()
            if layer == 0 and OPT['ff'] == 10:
                a('s_waitcnt vmcnt(0)')
                ffn_rest()
            if layer == 0 and OPT['ff'] == 11:
                issue_w13(1, 4)
                issue_w2()
            if layer == 0 and OPT['ff'] == 12:
                issue_w13(2, 4)
                a('s_waitcnt vmcnt(2)')
                issue_w2()
            if layer == 0 and ORD and not ORD6:
                issue_w13(NF, 4)
                issue_w2()
            if layer == 0 and ORD and NF == 4:
                tr_reads(vW13, vTr, W1 - WO, 2, 4096, 512)
                tr_reads(vW13 + 8, vTr, W3 - WO, 2, 4096, 512)
            if layer == 0 and ORD6:
                if OPT.get('r0', 1):
                    race_pick()
                    a('s_waitcnt lgkmcnt(0)')
                tr_reads(vW13, vTr, W1 - WO, 2, 4096, 512)
                tr_reads(vW13 + 8, vTr, W3 - WO, 2, 4096, 512)
                a('v_and_b32 %s, 32, %s' % (v(T + 1), v(vL)))
                a('v_lshlrev_b32 %s, 6, %s' % (v(T + 1), v(T + 1)))
                a('v_sub_u32 %s, %s, %s' % (v(T + 1), v(vTr), v(T + 1)))
                tr_reads(vW2, vTr, W2 - WO, 1, 4096, 512)
                tr_reads(vW2 + 4, T + 1, W2 - WO + 4096, 1, 4096, 512)
            if layer == 0 and OPT['ff'] == 7 and not ORD:
                if OPT.get('xw', 0) & 2:
                    only_if(False, lambda: issue_w13(FE, 2))
                if OPT.get('xw', 0) & 4:
                    only_if(False, lambda: a('s_waitcnt vmcnt(0)'))
                issue_w13(2, 4)
            if layer == 0 and OPT['ff'] in (6, 7) and not ORD:
                issue_w2()
            if layer == 0 and OPT.get('gpre', 5) in (3, 4):
                late_pre()
            if OPT['pages'] == 2:
                page_break()
            if layer == 0 and OPT.get('otouch'):
                sk = newlabel('noout')
                a('s_cmp_lg_u32 %s, 0' % s(sGam))
                a('s_cbranch_scc1 %s' % sk)
                a('global_load_ushort %s, %s, s[22:23]' % (v(T + 22), v(vXw)))
                a.label(sk)
            if layer == 0 and (OPT['opre'] and OPT['clean'] & 8 or OPT['opre'] == 2):
                sk = newlabel('noout')
                a('s_cmp_lg_u32 %s, 0' % s(sGam))
                a('s_cbranch_scc1 %s' % sk)
                a('s_mov_b32 exec_lo, 0x000f000f')
                a('s_mov_b32 exec_hi, 0x000f000f')
                a('global_store_short %s, %s, s[22:23] sc1' % (v(vXw), v(vZero)))
                a('s_mov_b64 exec, -1')
                a.label(sk)
            if layer == 0 and OPT['probe'] == 2:
                assert OPT['ff'] == 4
                race_finish(1 + 4 - FE + 2)
                if not OPT['vlate']:
                    count_votes()
            if layer == 0 and OPT['probe'] == 1:
                probe_near()
                if not OPT['vlate']:
                    count_votes()
            if layer == 0 and OPT['fl']:
                a('v_lshlrev_b32 %s, 7, %s' % (v(T + 5), v(vL)))
                a('v_add_u32 %s, %d, %s' % (v(T + 5), WS_F, v(T + 5)))
                flag_load()
                flag_wait(0)
            if layer == 0 and OPT.get('g0w'):
                flush_deferred()
                a('s_waitcnt vmcnt(%d)' % OPT['g0w'])
            elif layer or OPT['ff'] != 3:
                g_pace(2 * layer)
            else:
                for i in range(OPT.get('xs', 0)):
                    a('s_nop 15')
                stamp('G0 ack')
            x_gather(2 * layer, G_C)
        stamp(pre + ' E3 ok')
        x_to_lds(k4)
        if not W4:
            a('s_cmp_eq_u32 %s, 3' % s(sW))
        a('s_waitcnt lgkmcnt(0)')
        idle = None if W4 else newlabel('idle')

        proj(vW13, k4, layer, wsrc=[(vTr, W1 - WO, 4096, 512), (vTr, W3 - WO, 4096, 512)] if layer == 0 and not (ORD and NF >= 4) else None, skip=idle)
        stamp(pre + ' G pub')
        if layer == 1 and CLEAN():
            a('v_mov_b32 %s, %s' % (v(vKeep), v(T)))
        a('; ---- layer %d: gather gate/up, activation' % layer)

        def w2_regs():
            if ORD6:
                return
            if W4:
                tr_reads(vW2, vTr, W2 - WO, 2, 4096, 512)
                return
            a('v_and_b32 %s, 32, %s' % (v(T + 1), v(vL)))
            a('v_lshlrev_b32 %s, 6, %s' % (v(T + 1), v(T + 1)))
            a('v_sub_u32 %s, %s, %s' % (v(T + 1), v(vTr), v(T + 1)))
            tr_reads(vW2, vTr, W2 - WO, 1, 4096, 512)
            tr_reads(vW2 + 4, T + 1, W2 - WO + 4096, 1, 4096, 512)

        def ln_all():
            w2_regs()
            ln_mean()
            ln_rstd_a()
            ln_rstd_b(False)
        if layer == 0 and OPT.get('r4', 1):
            cs = {vDs[0]: vD + 16, vDs[1]: vD + 20}

            def issue4(x):
                gload(x, vCons, sLb, BUF_A)
                gload(cs[x], vCons, sLb, BUF_X)

            def spec4(x):
                y = cs[x]
                mask_tag(x)
                mask_tag(y)
                a('v_permlane32_swap_b32 %s, %s' % (v(x + 1), v(x + 3)))
                a('v_permlane32_swap_b32 %s, %s' % (v(y + 1), v(y + 3)))
                a('v_add_f32 %s, %s, %s' % (v(r + 1), v(x + 1), v(x + 3)))
                a('v_add_f32 %s, %s, %s' % (v(r + 5), v(y + 1), v(y + 3)))
                a('v_permlane32_swap_b32 %s, %s' % (v(x), v(x + 2)))
                a('v_permlane32_swap_b32 %s, %s' % (v(y), v(y + 2)))
                a('v_add_f32 %s, %s, %s' % (v(r + 4), v(y), v(y + 2)))
                a('v_add_f32 %s, %s, %s' % (v(r), v(x), v(x + 2)))
            stats_load(k4, vSs[1])
            flush_deferred()
            ring2(vSs, lambda x: stats_load(2, x), lambda x: chk_stats(x, 2), ln_spec, 1, 1, 2)
            issue4(vDs[0])
            ln_mean()
            issue4(vDs[1])
            ln_rstd_a()
            ln_rstd_b(False)
            w2_regs()
            ring2(vDs, issue4, lambda x: chk_byte([x, cs[x]], sTag + 2), spec4, 2, 2, 2)
            a('v_permlane16_swap_b32 %s, %s' % (v(r + 4), v(r + 5)))
            a('v_add_f32 %s, %s, %s' % (v(r + 4), v(r + 4), v(r + 5)))
            L0COL.append(1)
        elif layer == 0:
            loads = [(r, vCons, sLb, BUF_A), (r + 4, vCons, sLb, BUF_X)]

            def data():
                ln_spec(vSs[0])
                for x in loads:
                    gload(*x)

            def spec4():
                mask_tag(r)
                mask_tag(r + 4)
                red_a(r, r)
            flush_deferred()
            poll([(vSs[0], vStC, sLb, 0)], lambda: chk_stats(vSs[0], k4), data, cnt=1, issued=True)
            poll(loads, lambda: chk_byte([r, r + 4], sTag + k4), spec4, work=ln_all, issued=True)
            red_a(r + 4, r + 4)
            red_b(r + 4, vCg)
        else:
            l_gather(k4, spec, ln_spec, [ln_mean, ln_rstd_a, lambda: ln_rstd_b(False)])
        stamp(pre + ' E4 ok')
        if L0COL:
            L0COL.pop()
            a('v_permlane16_swap_b32 %s, %s' % (v(r), v(r + 1)))
            a('v_add_f32 %s, %s, %s' % (v(r), v(r), v(r + 1)))
            dpp('v_add_f32', vCg, r + 4, r + 4, 'row_ror:8')
            dpp('v_add_f32', r, r, r, 'row_ror:8')
        else:
            red_b(r, r)
        a('v_fma_f32 %s, -%s, %s, %s' % (v(r), v(vMean), v(vCg), v(r)))
        a('v_mul_f32 %s, %s, %s' % (v(r), v(r), v(vRs)))
        bf16r(r, r)
        a('v_mul_f32 %s, %s, %s' % (v(r + 1), s(sNl2e), v(r)))
        a('v_exp_f32 %s, %s' % (v(r + 1), v(r + 1)))
        a('v_and_b32_dpp %s, %s, %s row_shl:4 row_mask:0xf bank_mask:0xf' % (v(r + 2), v(r), v(vHmask)))
        a('v_add_f32 %s, 1.0, %s' % (v(r + 1), v(r + 1)))
        a('v_rcp_f32 %s, %s' % (v(r + 1), v(r + 1)))
        a('v_mul_f32 %s, %s, %s' % (v(r), v(r), v(r + 1)))
        bf16r(r, r)
        a('v_mul_f32 %s, %s, %s' % (v(r), v(r), v(r + 2)))
        a('v_cvt_pk_bf16_f32 %s, %s, %s' % (v(r), v(r), v(r)))
        a('ds_write_b16 %s, %s' % (v(vHw), v(r)))
        if W4:
            pass
        elif layer == 0:
            join = newlabel('join')

            def idle_path(idle=idle, join=join, w2_regs=w2_regs):
                a.label(idle)
                w2_regs()
                a('s_branch %s' % join)
            deferred.append(idle_path)
            a.label(join)
        else:
            join = newlabel('join')

            def idle_path1(idle=idle, join=join):
                a.label(idle)
                a('v_mov_b32 %s, %s' % (v(vKeep), s(sTag + 5)))
                a('s_cmp_lg_u32 s2, 255')
                a('s_cbranch_scc1 %s' % join)
                a('s_add_u32 s55, %s, 16' % s(sE))
                a('v_mov_b32 %s, s55' % v(T + 2))
                a('s_mov_b64 exec, 1')
                a('global_store_dword %s, %s, s[26:27] sc1' % (v(vZero), v(T + 2)))
                a('s_mov_b64 exec, -1')
                a('s_branch %s' % join)
            deferred.append(idle_path1)
            a.label(join)
        a('s_waitcnt lgkmcnt(0)')
        a('s_barrier')
        if layer == 0 and OPT['probe'] == 3 and not (ORD6 and OPT.get('r0', 1)):
            gemv_publish_g(2, vW2, HB, 1, G_D, mid=race_prep, post=race_start)
        else:
            gemv_publish_g(2, vW2, HB, 2 * layer + 1, G_D, mid=clean_a if layer == 1 and CLEAN() & 2 and not OPT['cend'] & 2 else None)
        stamp(pre + ' D pub')

    a('; ---- final sum (group 0 only)')
    if OPT.get('opack'):
        a('v_mov_b32 %s, 0xffff' % v(T + 11))
        a('v_and_b32 %s, 0x7c, %s' % (v(T + 12), v(vXw)))
    if CLEAN() & 4:
        fin = newlabel('last')
        if OPT.get('cx0', 1):
            a('s_cmp_ge_u32 %s, 4' % s(sGam))
            a('s_cbranch_scc1 L_fin')
        clean_b_prep()
        a('s_cmp_eq_u32 %s, 0' % s(sGam))
        a('s_cbranch_scc1 %s' % fin)

        def clean_all():
            clean_b()
            if OPT['cend'] & 2:
                clean_a()
            if OPT['cend'] & 1:
                clean_x()
        a('s_waitcnt vmcnt(%d)' % 0)
        clean_all()
        a('s_branch L_fin')
        flush_deferred(False)
        a.label(fin)
        g_pace(3)
        x_gather(3, G_D, work=clean_all, cnt=1 + bin(OPT['cend'] & 3).count('1'))
    else:
        if W4:
            sk = newlabel('noep')
            a('s_lshl_b32 s55, s2, 2')
            a('s_add_u32 s55, s55, %s' % s(sW))
            a('s_cmp_lg_u32 s55, %d' % (255 * 4))
            a('s_cbranch_scc1 %s' % sk)
            a('s_add_u32 s55, %s, 16' % s(sE))
            a('v_mov_b32 %s, s55' % v(T + 2))
            a('s_mov_b64 exec, 1')
            a('global_store_dword %s, %s, s[26:27]' % (v(vZero), v(T + 2)))
            a('s_branch L_fin')
            a.label(sk)
        if OPT.get('wb1') and FAST[0]:
            sk = newlabel('nowb')
            a('s_lshl_b32 s55, s2, 2')
            a('s_add_u32 s55, s55, %s' % s(sW))
            a('s_cmp_lg_u32 s55, %d' % (64 * 4))
            a('s_cbranch_scc1 %s' % sk)
            if OPT['wb1'] == 2:
                a('s_waitcnt vmcnt(0)')
            a('buffer_wbl2 sc1')
            a.label(sk)
        a('s_cmp_lg_u32 %s, 0' % s(sGam))
        a('s_cbranch_scc1 L_fin')
        g_pace(3)
        x_gather(3, G_D)
    sc = ' sc1' if OPT['clean'] & 8 else ''
    if OPT.get('opack'):
        a('v_mov_b32 %s, %s' % (v(T + 1), v(T)))
        a('v_permlane16_swap_b32 %s, %s' % (v(T), v(T + 1)))
        a('v_bfi_b32 %s, %s, %s, %s' % (v(T), v(T + 11), v(T), v(T + 1)))
        if OPT['opack'] == 2:
            a('v_mov_b32 %s, %s' % (v(T + 1), v(T)))
            a('v_permlane32_swap_b32 %s, %s' % (v(T), v(T + 1)))
            a('s_mov_b64 exec, 15')
            a('global_store_dwordx2 %s, %s, s[22:23]%s' % (v(T + 12), v(T, 2), sc))
        else:
            a('s_mov_b32 exec_lo, 15')
            a('s_mov_b32 exec_hi, 15')
            a('global_store_dword %s, %s, s[22:23]%s' % (v(T + 12), v(T), sc))
    else:
        a('s_mov_b32 exec_lo, 0x000f000f')
        a('s_mov_b32 exec_hi, 0x000f000f')
        a('global_store_short %s, %s, s[22:23]%s' % (v(vXw), v(T), sc))


front()
FAST[0] = bool(OPT['fast'])
tail()
a.label('L_fin')
if OPT.get('dirty'):
    if 'dx' in OPT:
        a('s_and_b32 s55, s2, 7')
        a('s_cmp_eq_u32 s55, 0')
        a('s_cbranch_scc%d L_nodirty' % OPT['dx'])
    a('s_mov_b64 exec, -1')
    a('s_lshl_b32 s55, s2, 2')
    a('s_add_u32 s55, s55, %s' % s(sW))
    a('s_lshl_b32 s55, s55, 15')
    a('s_add_u32 s55, s55, 0x400000')
    a('v_lshl_add_u32 %s, %s, 4, s55' % (v(T + 1), v(vL)))
    for i in range(OPT['dirty']):
        a('global_store_dwordx4 %s, %s, s[26:27]' % (v(T + 1), v(vD, 4)))
        a('v_add_u32 %s, 1024, %s' % (v(T + 1), v(T + 1)))
if OPT.get('dirty'):
    a.label('L_nodirty')
if OPT.get('dbgpol'):
    a('s_mov_b64 exec, -1')
    a('v_xor_b32 %s, %s, %s' % (v(T + 2), v(vConsG), v(vConsG0)))
    a('v_readfirstlane_b32 s6, %s' % v(T + 2))
    a('s_cmp_lg_u32 s6, 0')
    a('s_cselect_b32 s6, 1, 0')
    a('s_lshr_b32 s7, %s, 2' % s(sXcc))
    a('s_xor_b32 s6, s6, s7')
    a('s_lshr_b32 s7, %s, 1' % s(sW))
    a('s_xor_b32 s6, s6, s7')
    a('s_lshl_b32 s6, s6, 4')
    a('s_lshl_b32 s6, 1, s6')
    a('v_mov_b32 %s, s6' % v(T + 2))
    a('s_and_b32 s7, %s, 7' % s(sXcc))
    a('s_lshl_b32 s7, s7, 2')
    a('v_mov_b32 %s, s7' % v(T + 3))
    a('s_mov_b64 exec, 1')
    a('global_atomic_add %s, %s, s[24:25]' % (v(T + 3), v(T + 2)))
if OPT.get('wb'):
    a('buffer_wbl2 sc1')
if OPT.get('delay'):
    if 'only' in OPT:
        a('s_cmp_lg_u32 s2, %d' % OPT['only'])
        a('s_cbranch_scc1 L_end')
    a.label('L_dly')
    a('s_memrealtime s[6:7]')
    a('s_waitcnt lgkmcnt(0)')
    a('s_sub_u32 s8, s6, s100')
    a('s_cmp_lt_u32 s8, %d' % OPT.get('until', 3000))
    a('s_cbranch_scc1 L_dly')
if DIAG:
    a('s_mov_b64 exec, -1')
    a('s_memrealtime s[4:5]')
    a('s_waitcnt lgkmcnt(0)')
    a('v_mov_b32 %s, 0' % v(T))
    for i in range(len(stamps)):
        a('v_writelane_b32 %s, %s, %d' % (v(T), s(stamp_regs[i]), i))
    a('v_writelane_b32 %s, s4, %d' % (v(T), len(stamps)))
    a('v_xor_b32 %s, %s, %s' % (v(T + 2), v(vConsG), v(vConsG0)))
    a('v_readfirstlane_b32 s6, %s' % v(T + 2))
    a('v_writelane_b32 %s, s6, 62' % v(T))
    a('v_writelane_b32 %s, s12, 61' % v(T))
    a('v_writelane_b32 %s, s13, 60' % v(T))
    a('v_writelane_b32 %s, %s, 63' % (v(T), s(sXcc)))
    a('s_lshl_b32 s55, s2, 2')
    a('s_add_u32 s55, s55, %s' % s(sW))
    a('s_lshl_b32 s55, s55, 8')
    a('s_add_u32 s55, s55, %d' % WS_DIAG)
    a('v_lshl_add_u32 %s, %s, 2, s55' % (v(T + 1), v(vL)))
    a('global_store_dword %s, %s, s[26:27]' % (v(T + 1), v(T)))
a.label('L_end')
a('s_endpgm')
flush_deferred(False)
a.label('L_fastend')
if OPT['fast']:
    a('; ==== the same phases with write-through stores: taken when the group is spread over several XCDs')
    a.label('L_slowtail')
    FAST[0] = False
    a.hist = []
    a('s_nop 1')
    if LZ:
        sc_copies()
    tail()
    a('s_branch L_fin')
    flush_deferred(False)
    a('s_endpgm')
a.raw('''.section .rodata,"a"
.p2align 6
.amdhsa_kernel %s_kernel
  .amdhsa_next_free_vgpr %d
  .amdhsa_next_free_sgpr 102
  .amdhsa_accum_offset %d
  .amdhsa_group_segment_fixed_size 0
  .amdhsa_kernarg_size 96
  .amdhsa_user_sgpr_count 2
  .amdhsa_user_sgpr_kernarg_segment_ptr 1
  .amdhsa_system_sgpr_workgroup_id_x 1
  .amdhsa_float_denorm_mode_32 3
.end_amdhsa_kernel''' % (NAME, NVGPR, NVGPR))
sys.stdout.write(a.text())
if DIAG:
    sys.stderr.write('STAMPS ' + '|'.join(stamps + ['end']) + '\n')
sys.stderr.write('nops inserted: %d\n' % a.nops)
```

```python
import sys, math, struct
from asm import Asm

NAME = 'interleave_layers__sliding_block_cached__glu_gated_swiglu__decode'
OPT = dict(diag=0, fast=1, nt=1, kw=5, fe=0, wol=1, probe=3, vw=1, thr=90, pages=2, cnt=0, early=2, d0=0, refresh=0, spipe=1, late_rs=1, na=0, nsl=0, w2e=0, ff=7, vlate=1, fl=0, flp=0, pad=0, nva=8, ksplit=0, wopos=0, ool=0, stg=1, vq=0, clean=0, cend=1, opre=1)
for a_ in sys.argv[1:]:
    k_, v_ = a_.split('=')
    OPT[k_] = int(v_)
DIAG = OPT['diag']
NT = {0: '', 1: ' nt', 2: ' sc1 nt', 3: ' sc0 sc1 nt', 4: ' sc0 nt', 5: ' sc1', 6: ' sc0 sc1'}[OPT['nt']]
STAGE = not DIAG or DIAG == 6

XB, ONES, QB, OB, HB, MB, DUMMY, PB = 0, 128, 256, 512, 768, 896, 960, 1024
WQ, VI, WO = 4096, 20480, 53248
W1, W3, W2 = WO + 16384, WO + 24576, WO + 32768
W4 = OPT.get('w4', 0)
KI = WO + 38912 + 2048 * W4
LDS_BYTES = KI + 32768
WS_F = 0x10000
WS_L, WS_P, WS_G, WS_DIAG = 0x40000, 0xc0000, 0x100000, 0x200000
WS_L2D = 0x140000 + 0x100000 * OPT['pad']
BUF_A, BUF_X, BUF_B, STATS, VOTES = 0, 1024, 2048, 3072, 7168
ST0 = 8192
LZ, PB_, FL2 = OPT.get('lz', 1), OPT.get('pb', 2), OPT.get('fl2', 0)
PAD = OPT['pad']
GOFF = 4096 * PAD
G_C, G_D, G_H = -GOFF, (2048 << PAD) - GOFF, 1024 << PAD
G_X = (0x20000 << PAD) | 0x2000
WSH = 1 - PAD

vL, vCons, vPubL, vPw, vPubG, vStP, vStC, vTagM, vStP2 = range(1, 10)
vXw, vQw, vHw, vOpR, vXopR, vConsG, vConsG0, vCs, vZero, vMw = range(10, 20)
trq, vTr, vHmask, vX, vCq, vCg, vMean, vRs = 20, 22, 23, 24, 25, 26, 27, 28
vMr, vF = 29, 30
vWQ, vK, vV, vWO, vW13, vW2 = 32, 48, 80, 112, 128, 144
wo0, wo1, f0, f1, vPre, vVo = 144, 145, 146, 147, 148, 149
T = 152
vC = T + 12
vA = 176
vD = 192
vP = 224
vSt, vSt4, vKeep = 232, 236, 238
vCl = 20
vDs, vSs = [240, 244], [248, 252]
NVGPR = 256
sW, sJ, sGam, sPr, sE, sC0, sCnt, sXcc, sTo = 28, 29, 30, 31, 32, 33, 34, 35, 36
sLb, sGb0, sGb1 = 38, 40, 14
sPc, sT1 = 42, 44
sCs, sMaskHi, sInv512, sEps, sNl2e = 50, 51, 52, 53, 54
sM0, sM1, sHi, sCl = 56, 42, 46, 44
sTag = 60

a = Asm()
stamp_regs = list(range(70, 102, 2))
stamps = []
nstamp = [0]
lbl = [0]
FAST = [False]


def v(n, cnt=1):
    return 'v%d' % n if cnt == 1 else 'v[%d:%d]' % (n, n + cnt - 1)


def s(n, cnt=1):
    return 's%d' % n if cnt == 1 else 's[%d:%d]' % (n, n + cnt - 1)


def stamp(name):
    nstamp[0] += 1
    if OPT.get('delay') == 3 and OPT.get('at', 1) == nstamp[0]:
        a('s_memrealtime s[100:101]')
        sys.stderr.write('delay anchored at ' + name + '\n')
    keep = {0: False, 1: name[:2] not in ('L1', 'x ') and name[0] not in 'Gz', 2: name[:2] == 'L1', 5: name[0] == 'G' or name[3:] in ('O pub', 'D pub', 'E3 ok', 'E5 ok') or name in ('L0 E1 ok', 'L0 S pub', 'L0 E2 ok'),
            6: False, 7: name[:2] in ('L1', 'x '), 8: name[:2] == 'z1' or name in ('L1 E1 ok', 'L1 S pub', 'L1 E2 ok', 'L1 O pub', 'L1 E5 ok', 'L1 Q pub')}[DIAG]
    if not (keep or DIAG and name == 'start'):
        return
    if name not in stamps:
        if len(stamps) >= len(stamp_regs):
            return
        stamps.append(name)
    r = stamp_regs[stamps.index(name)]
    if OPT['cnt'] and name != 'start':
        a('s_sub_u32 %s, 0x40000, %s' % (s(r), s(sTo)))
    else:
        a('%s %s' % ('s_memtime' if DIAG in (7, 8) and name != 'x rt0' else 's_memrealtime', s(r, 2)))


def f32(x):
    return '0x%08x' % struct.unpack('<I', struct.pack('<f', x))[0]


def newlabel(p):
    lbl[0] += 1
    return 'L_%s_%d' % (p, lbl[0])


def lgkm(n):
    a('s_waitcnt lgkmcnt(%d)' % (n if STAGE else 0))


def mfma(d, x, y, c=None):
    a('v_mfma_f32_16x16x32_bf16 %s, %s, %s, %s' % (v(d, 4), v(x, 4), v(y, 4), '0' if c is None else v(c, 4)))


def dpp(op, d, x, y, ctl, rm=0xf):
    a('%s_dpp %s, %s, %s %s row_mask:0x%x bank_mask:0xf' % (op, v(d), v(x), v(y), ctl, rm))


X1, X2 = 'quad_perm:[1,0,3,2]', 'quad_perm:[2,3,0,1]'


def lstore(op, addr, data, off):
    a('%s %s, %s, %s offset:%d%s' % (op, addr, data, s(sLb, 2), off, '' if FAST[0] and not OPT.get('allsc') else ' sc1'))


def gload(d, vo, b, im):
    a('global_load_dwordx4 %s, %s, %s offset:%d sc1' % (v(d, 4), v(vo), s(b, 2), im))


def tick():
    a('s_sub_u32 %s, %s, 1' % (s(sTo), s(sTo)))
    a('s_cbranch_scc1 L_end')


deferred = []


def flush_deferred(jump=True):
    if not deferred:
        return
    l = newlabel('skip')
    if jump:
        a('s_branch %s' % l)
    hist = a.hist
    while deferred:
        a.hist = []
        deferred.pop(0)()
    a.hist = hist
    a.label(l)


def poll(loads, check, spec, work=None, cnt=0, issued=False, backoff=0, onretry=None):
    top, ent = newlabel('poll'), newlabel('pent')
    if not issued:
        for x in loads:
            gload(*x)
    if work:
        work()

    def retry():
        a.label(top)
        tick()
        if backoff:
            a('s_sleep %d' % backoff)
        if onretry:
            onretry()
        for x in loads:
            gload(*x)
        if cnt:
            a('s_waitcnt vmcnt(0)')
        if OPT['ool']:
            a('s_branch %s' % ent)
    if OPT['ool']:
        deferred.append(retry)
    else:
        a('s_branch %s' % ent)
        retry()
    a.label(ent)
    a('s_waitcnt vmcnt(%d)' % cnt)
    check()
    if spec:
        spec()
    a('s_cbranch_vccnz %s' % top)


def ring2(sets, issue, check, spec, cnt1, cnt0, first):
    top, ent, done = newlabel('ring'), newlabel('rent'), newlabel('rdone')

    def retry():
        a.label(top)
        tick()
        issue(sets[0])
        a('s_waitcnt vmcnt(%d)' % cnt1)
        check(sets[1])
        spec(sets[1])
        a('s_cbranch_vccz %s' % done)
        issue(sets[1])
        if first != cnt0:
            a('s_waitcnt vmcnt(%d)' % cnt0)
        if OPT['ool']:
            a('s_branch %s' % ent)
    if OPT['ool']:
        deferred.append(retry)
    else:
        a('s_branch %s' % ent)
        retry()
    a.label(ent)
    a('s_waitcnt vmcnt(%d)' % first)
    check(sets[0])
    spec(sets[0])
    a('s_cbranch_vccnz %s' % top)
    a.label(done)


def chk_byte(regs, tag):
    if len(regs) == 1:
        a('v_cmp_ne_u32_sdwa vcc, %s, %s src0_sel:BYTE_0 src1_sel:BYTE_0' % (v(regs[0]), s(tag)))
    else:
        a('v_bitop3_b32 %s, %s, %s, %s bitop3:0x7e' % (v(T + 23), v(regs[0]), v(regs[1]), s(tag)))
        a('v_cmp_ne_u32_sdwa vcc, %s, %s src0_sel:BYTE_0 src1_sel:DWORD' % (v(T + 23), v(vZero)))


def chk_stats(x, k):
    a('v_cmp_ne_u32 vcc, %s, %s' % (s(sTag + k), v(x + (2 if k % 3 == 1 else 1))))


def red_a(x, c):
    a('v_permlane32_swap_b32 %s, %s' % (v(x + 1), v(x + 3)))
    a('v_add_f32 %s, %s, %s' % (v(c + 1), v(x + 1), v(x + 3)))
    a('v_permlane32_swap_b32 %s, %s' % (v(x), v(x + 2)))
    a('v_add_f32 %s, %s, %s' % (v(c), v(x), v(x + 2)))


def red_b(c, out):
    a('v_permlane16_swap_b32 %s, %s' % (v(c), v(c + 1)))
    a('v_add_f32 %s, %s, %s' % (v(c), v(c), v(c + 1)))
    dpp('v_add_f32', out, c, c, 'row_ror:8')


def mask_tag(x):
    a('v_and_b32 %s, %s, %s' % (v(x), s(sMaskHi), v(x)))


def bf16r(dst, src):
    a('v_cvt_pk_bf16_f32 %s, %s, %s' % (v(dst), v(src), v(src)))
    a('v_and_b32 %s, 0xffff0000, %s' % (v(dst), v(dst)))


def allred(op, x, t, bits):
    for b in bits:
        if b < 4:
            dpp(op, x, x, x, {0: X1, 1: X2, 3: 'row_ror:8'}[b])
        else:
            a('v_mov_b32 %s, %s' % (v(t), v(x)))
            a('v_permlane%d_swap_b32 %s, %s' % (16 if b == 4 else 32, v(x), v(t)))
            a('%s %s, %s, %s' % (op, v(x), v(x), v(t)))


def set_tags(k):
    a('v_mov_b32 %s, %s' % (v(vSt + 2), s(sTag + k)))
    if k % 3 != 1:
        a('v_cndmask_b32 %s, %s, %s, %s' % (v(vSt4 + 1), v(vSt + 2), v(vSt + 3), s(sHi, 2)))


def ln_stats(k, addr=None, mid=None):
    g = vSt4
    a('v_mul_f32 %s, %s, %s' % (v(T + 7), v(g), v(g)))
    if mid:
        mid()
    a('v_permlane32_swap_b32 %s, %s' % (v(g), v(T + 7)))
    a('v_add_f32 %s, %s, %s' % (v(g), v(g), v(T + 7)))
    allred('v_add_f32', g, None, [0, 1])
    dpp('v_add_f32', g, g, g, 'row_bcast:15', 0xa)
    a('s_mov_b64 exec, %s' % s(sM1, 2))
    lstore('global_store_dwordx2', v(addr or vStP2), v(g, 2), 512 * (k & 1))
    a('s_mov_b64 exec, -1')


def ln_spec(x):
    a('v_permlane32_swap_b32 %s, %s' % (v(x), v(x + 2)))
    a('v_add_f32 %s, %s, %s' % (v(vC), v(x), v(x + 2)))


def ln_mean():
    c = vC
    allred('v_add_f32', c, c + 1, [4, 3, 0, 1])
    a('v_mul_f32 %s, %s, %s' % (v(c), s(sInv512), v(c)))
    a('v_mov_b32 %s, %s' % (v(c + 1), v(c)))
    a('v_permlane32_swap_b32 %s, %s' % (v(c), v(c + 1)))
    bf16r(vMean, c)


def ln_rstd_a():
    c = vC
    a('v_fma_f32 %s, -%s, %s, %s' % (v(c + 1), v(c), v(c), v(c + 1)))
    a('v_max_f32 %s, 0, %s' % (v(c + 1), v(c + 1)))
    bf16r(c + 1, c + 1)
    a('v_add_f32 %s, %s, %s' % (v(c + 1), s(sEps), v(c + 1)))
    bf16r(c + 1, c + 1)
    a('v_sqrt_f32 %s, %s' % (v(c + 1), v(c + 1)))


def ln_rstd_b(scale):
    c = vC
    bf16r(c + 1, c + 1)
    a('v_rcp_f32 %s, %s' % (v(vRs), v(c + 1)))
    if scale:
        a('v_mul_f32 %s, %s, %s' % (v(vCs), s(sCs), v(vRs)))


def stats_load(k, x=vSs[0]):
    gload(x, vStC, sLb, 512 * (k & 1))


def l_gather(k, spec, st_spec, chain, hook=None):
    buf = BUF_A if k % 2 == 0 else BUF_B

    def d_issue(x):
        gload(x, vCons, sLb, buf)
    rf = OPT['refresh'] and OPT['d0']

    def s_issue(x):
        stats_load(k, x)
        if rf:
            d_issue(vDs[0])
    if OPT['d0']:
        d_issue(vDs[0])
    if OPT['spipe']:
        stats_load(k, vSs[1])
        flush_deferred()
        ring2(vSs, s_issue, lambda x: chk_stats(x, k), st_spec, 2 if rf else 1, 3 if rf else 1, 2 + OPT['d0'])
    else:
        flush_deferred()
        poll([(vSs[0], vStC, sLb, 512 * (k & 1))], lambda: chk_stats(vSs[0], k), lambda: st_spec(vSs[0]), cnt=1 + OPT['d0'], issued=True)
    if k >= 3:
        stamp('x st%d' % k)
    if not OPT['d0']:
        d_issue(vDs[0])
        chain[0]()
        d_issue(vDs[1])
    else:
        d_issue(vDs[1])
        chain[0]()
    if hook:
        hook()
    for c in chain[1:]:
        c()
    ring2(vDs, d_issue, lambda x: chk_byte([x], sTag + k), spec, 1, 1, 1)


def x_gather(gi, imm, work=None, cnt=0):
    r = vP
    base = sGb0 if gi < 2 else sGb1

    XO = OPT.get('xo', 0)

    def check():
        if XO:
            a('v_bitop3_b32 %s, %s, %s, %s bitop3:0x7e' % (v(T + 23), v(r), v(r + 4), s(sTag + 6 + gi)))
        else:
            chk_byte([r, r + 4], sTag + 6 + gi)

    def spec():
        a('v_pk_add_f32 %s, %s, %s' % (v(r + 2, 2), v(r + 2, 2), v(r + 6, 2)))
        a('v_add_f32 %s, %s, %s' % (v(r + 1), v(r + 1), v(r + 5)))
        mask_tag(r)
        mask_tag(r + 4)
        a('v_add_f32 %s, %s, %s' % (v(r), v(r), v(r + 4)))
        red_a(r, r)
        if XO:
            a('v_cmp_ne_u32_sdwa vcc, %s, %s src0_sel:BYTE_0 src1_sel:DWORD' % (v(T + 23), v(vZero)))
            red_b(r, r)
    ad, onretry = vConsG, None
    if OPT.get('alt', 0) >> gi & 1:
        ad = T + 21
        a('v_mov_b32 %s, %s' % (v(ad), v(vConsG)))

        def onretry():
            a('v_xor_b32 %s, 0x%x, %s' % (v(ad), G_X, v(ad)))
    poll([(r, ad, base, imm), (r + 4, ad, base, imm + G_H)], check, spec, work=work, cnt=cnt,
         backoff=OPT.get('g%ds' % gi, 0), onretry=onretry)
    if not XO:
        red_b(r, r)
    dpp('v_add_f32', r, r, r, 'row_ror:4')
    bf16r(r, r)
    a('v_add_f32 %s, %s, %s' % (v(r), v(r), v(vX)))
    a('v_cvt_pk_bf16_f32 %s, %s, %s' % (v(T), v(r), v(r)))


def x_to_lds(k):
    a('ds_write_b16 %s, %s offset:%d' % (v(vXw), v(T), XB))
    a('v_and_b32 %s, 0xffff0000, %s' % (v(vSt4), v(T)))
    ln_stats(k, mid=lambda: a('v_and_b32 %s, 0xffff0000, %s' % (v(vX), v(T))))


def tr_pair(dst, addr, off, gstride):
    for g in range(2):
        a('ds_read_b64_tr_b16 %s, %s offset:%d' % (v(dst + 2 * g, 2), v(addr), off + g * gstride))


def proj(wreg, k, layer, wsrc=None, first=False, skip=None):
    rd = vXopR if layer == 0 else vOpR
    a('s_barrier')
    for kk in range(2):
        a('ds_read_b128 %s, %s offset:%d' % (v(vA + 4 * kk, 4), v(rd), XB + 64 * kk))
        if wsrc:
            for cg in range(2):
                ad, off, ks, gs = wsrc[cg]
                tr_pair(wreg + 8 * cg + 4 * kk, ad, off + kk * ks, gs)
    if skip:
        a('s_cbranch_scc1 %s' % skip)
    if not first and OPT['early'] == 1:
        stats_load(k)
    lgkm(7 if wsrc else 1)
    mfma(vD, vA, wreg)
    if wsrc:
        lgkm(5)
    mfma(vD + 4, vA, wreg + 8)
    if not first and OPT['early'] == 2:
        stats_load(k)
    lgkm(2 if wsrc else 0)
    mfma(vD, vA + 4, wreg + 4, vD)
    if wsrc:
        lgkm(0)
    mfma(vD + 4, vA + 4, wreg + 12, vD + 4)
    if not first and OPT['early'] == 0:
        stats_load(k)
    if layer == 1:
        a('s_mov_b32 exec_hi, 0')
    a('v_cndmask_b32 %s, %s, %s, %s' % (v(T), v(vD), v(vD + 4), s(sM0, 2)))
    a('v_bfi_b32 %s, %s, %s, %s' % (v(T), v(vTagM), s(sTag + k), v(T)))
    lstore('global_store_dword', v(vPubL), v(T), BUF_A if k % 2 == 0 else BUF_B)
    if layer == 1:
        a('s_mov_b32 exec_hi, -1')


def tr_reads(dst, addr, base, nk, kstride, gstride):
    for kk in range(nk):
        for g in range(2):
            a('ds_read_b64_tr_b16 %s, %s offset:%d' % (v(dst + 4 * kk + 2 * g, 2), v(addr), base + kk * kstride + g * gstride))


def gemv_publish_g(nk, wreg, src, gi, imm, tr=False, mid=None, post=None):
    for kk in range(nk):
        a('ds_read_b128 %s, %s offset:%d' % (v(vA + 4 * kk, 4), v(vOpR), src + 64 * kk))
        if tr:
            tr_pair(wreg + 4 * kk, vTr, 4096 * kk, 512)
    if mid:
        mid()
    for kk in range(nk):
        lgkm((nk - 1 - kk) * (3 if tr else 1))
        mfma(vD, vA + 4 * kk, wreg + 4 * kk, vD if kk else None)
    if post:
        post()
    if not PAD:
        a('s_mov_b32 exec_hi, 0')
    a('v_bfi_b32 %s, %s, %s, %s' % (v(T), v(vTagM), s(sTag + 6 + gi), v(vD)))
    st = 'global_store_dword %s, %s, %s offset:%d sc1' % (v(vPubG), v(T), s(sGb0 if gi < 2 else sGb1, 2), imm)
    if OPT['na'] >> gi & 1:
        a('s_mov_b32 exec_lo, s37')
        a(st)
        a('s_not_b32 exec_lo, s37')
        a(st)
        a('s_mov_b64 exec, -1')
    else:
        a(st)
        if not PAD:
            a('s_mov_b32 exec_hi, -1')


def g_pace(gi):
    flush_deferred()
    if OPT['na'] >> gi & 1:
        a('s_waitcnt vmcnt(1)')
        for i in range(OPT['nsl']):
            a('s_nop 7')
    else:
        a('s_waitcnt vmcnt(0)')
    if OPT.get('g%dd' % gi):
        a('s_sleep %d' % OPT['g%dd' % gi])
    stamp('G%d ack' % gi)


def probe_near():
    a('s_not_b32 s4, %s' % s(sE))
    a('s_xor_b32 s55, %s, 8192' % s(sPr))
    a('s_waitcnt lgkmcnt(0)')
    a('s_load_dword s4, s[26:27], %s' % s(sPr))
    a('s_load_dword s5, s[26:27], s55')
    a('s_lshl_b32 s59, %s, 2' % s(sJ))
    a('s_add_u32 s59, s59, %s' % s(sW))
    a('s_lshl_b32 s59, s59, 3')
    a('s_add_u32 s59, s59, %d' % VOTES)
    a('v_mov_b32 %s, s59' % v(T + 1))
    a('v_mov_b32 %s, %s' % (v(T + 3), s(sTag + 2)))
    a('s_waitcnt lgkmcnt(1)')
    a('s_memtime s[8:9]')
    a('s_cmp_eq_u32 s4, %s' % s(sE))
    a('s_cselect_b32 s6, %d, -1' % OPT['thr'])
    a('s_waitcnt lgkmcnt(0)')
    a('s_memtime s[10:11]')
    a('s_waitcnt lgkmcnt(0)')
    a('s_sub_u32 s7, s10, s8')
    a('s_cmp_gt_u32 s7, s6')
    a('s_cselect_b32 s6, 1, 0')
    if DIAG:
        a('s_mov_b32 s12, s7')
    a('v_mov_b32 %s, s6' % v(T + 2))
    a('s_mov_b64 exec, 1')
    lstore('global_store_dwordx2', v(T + 1), v(T + 2, 2), 0)
    a('s_mov_b64 exec, -1')


def race_prep():
    a('s_not_b32 s4, %s' % s(sTag + 6 if PB_ else sE))
    a('s_xor_b32 s5, %s, 8192' % s(sPr))
    a('v_mov_b32 %s, %s' % (v(T + 4), s(sPr)))


def race_start():
    a('global_load_dword %s, %s, s[26:27] sc1' % (v(T + 5), v(T + 4)))
    a('s_load_dword s4, s[26:27], s5')


def race_finish(behind):
    a('s_lshl_b32 s59, %s, 2' % s(sJ))
    a('s_add_u32 s59, s59, %s' % s(sW))
    a('s_lshl_b32 s59, s59, 3')
    a('s_add_u32 s59, s59, %d' % VOTES)
    a('v_mov_b32 %s, s59' % v(T + 1))
    a('v_mov_b32 %s, %s' % (v(T + 3), s(sTag + 2)))
    a('s_waitcnt vmcnt(%d)' % behind)
    a('s_cmp_eq_u32 s4, %s' % s(sE))
    a('s_cselect_b32 s6, 1, 0')
    if DIAG:
        a('s_mov_b32 s12, s6')
    a('v_mov_b32 %s, s6' % v(T + 2))
    a('s_mov_b64 exec, 1')
    lstore('global_store_dwordx2', v(T + 1), v(T + 2, 2), 0)
    a('s_mov_b64 exec, -1')
    a('s_waitcnt lgkmcnt(0)')


def race_pick():
    a('s_lshr_b32 s55, %s, 1' % s(sW))
    a('s_xor_b32 s59, s55, 1')
    a('s_mul_i32 s55, s55, 0x%x' % G_X)
    a('s_mul_i32 s59, s59, 0x%x' % G_X)
    if PB_:
        a('s_not_b32 s6, %s' % s(sTag + 6))
    a('s_waitcnt vmcnt(1)')
    a('s_cmp_lg_u32 s4, s6' if PB_ else 's_cmp_eq_u32 s4, %s' % s(sE))
    a('s_cselect_b32 s55, s59, s55')
    a('v_xor_b32 %s, s55, %s' % (v(vConsG), v(vConsG0)))
    if OPT['na']:
        a('s_cmp_eq_u32 s55, 0')
        a('s_cselect_b32 s37, 0xffff, %s' % s(sM0))


def count_votes():
    a('v_and_b32 %s, 31, %s' % (v(T + 4), v(vL)))
    a('v_lshlrev_b32 %s, 3, %s' % (v(T + 4), v(T + 4)))
    a('v_add_u32 %s, %d, %s' % (v(T + 4), VOTES, v(T + 4)))
    if OPT['vw'] and not OPT['vlate']:
        a('s_waitcnt vmcnt(0)')
    a('global_load_dwordx2 %s, %s, %s sc1' % (v(T + 2, 2), v(T + 4), s(sLb, 2)))
    a('s_lshr_b32 s55, %s, 1' % s(sW) if WSH else 's_and_b32 s55, %s, 1' % s(sW))
    a('s_xor_b32 s59, s55, 1')
    a('s_waitcnt vmcnt(0)')
    if OPT['probe'] == 2:
        a('v_cmp_eq_u32 vcc, %s, %s' % (s(sTag + 2), v(T + 3)))
        a('v_cmp_eq_u32 s[6:7], 0, %s' % v(T + 2))
        a('s_and_b32 s4, vcc_lo, s6')
        a('s_andn2_b32 s5, vcc_lo, s6')
    else:
        a('v_xor_b32 %s, %s, %s' % (v(T + 3), s(sTag + 2), v(T + 3)))
        a('v_xor_b32 %s, 1, %s' % (v(T + 2), v(T + 2)))
        a('v_or_b32 %s, %s, %s' % (v(T + 2), v(T + 2), v(T + 3)))
        a('v_cmp_eq_u32 vcc, 0, %s' % v(T + 2))
        a('s_and_b32 s4, vcc_lo, 0x%x' % (0x33333333 if WSH else 0x55555555))
        a('s_and_b32 s5, vcc_lo, 0x%x' % (0xcccccccc if WSH else 0xaaaaaaaa))
    a('s_bcnt1_i32_b32 s4, s4')
    a('s_bcnt1_i32_b32 s5, s5')
    if DIAG:
        a('s_lshl_b32 s13, s4, 8')
        a('s_add_u32 s13, s13, s5')
    a('s_cmp_ge_u32 s4, s5')
    a('s_cselect_b32 s55, s55, s59')
    if OPT['na']:
        a('s_cmp_eq_u32 s55, 0')
        a('s_cselect_b32 s37, 0xffff, %s' % s(sM0))
    a('s_mul_i32 s55, s55, 0x%x' % G_X)
    a('v_xor_b32 %s, s55, %s' % (v(vConsG), v(vConsG0)))


def flag_store(val):
    sk = newlabel('nofl')
    a('s_or_b32 s55, %s, %s' % (s(sJ), s(sW)))
    a('s_cbranch_scc1 %s' % sk)
    a('s_lshl_b32 s55, %s, 7' % s(sGam))
    a('s_add_u32 s55, s55, %d' % WS_F)
    a('v_lshl_add_u32 %s, %s, 2, s55' % (v(T + 21), v(vL)))
    a('v_mov_b32 %s, %s' % (v(T + 20), s(val)))
    a('s_mov_b32 exec_hi, 0')
    a('global_store_dword %s, %s, s[26:27] sc1' % (v(T + 21), v(T + 20)))
    a('s_mov_b32 exec_hi, -1')
    a.label(sk)


def flag_load():
    a('s_mov_b32 exec_hi, 0')
    a('global_load_dword %s, %s, s[26:27] sc1' % (v(T + 6), v(T + 5)))
    a('s_mov_b32 exec_hi, -1')


def flag_wait(cnt):
    top, ent = newlabel('fl'), newlabel('fle')
    a('s_branch %s' % ent)
    a.label(top)
    tick()
    flag_load()
    a('s_waitcnt vmcnt(0)')
    a.label(ent)
    a('s_waitcnt vmcnt(%d)' % cnt)
    a('v_cmp_ne_u32 vcc, %s, %s' % (s(sTag + 6), v(T + 6)))
    a('s_cmp_lg_u32 vcc_lo, 0')
    a('s_cbranch_scc1 %s' % top)


def clean_prep():
    a('v_and_b32 %s, 31, %s' % (v(T + 9), v(vL)))
    a('s_and_b32 s59, %s, 3' % s(sJ))
    a('s_lshl_b32 s59, s59, 7')
    a('s_add_u32 s59, s59, %d' % STATS)
    a('v_lshl_add_u32 %s, %s, 2, s59' % (v(T + 9), v(T + 9)))
    a('v_cndmask_b32 %s, %s, %s, %s' % (v(vCl), v(vPubL), v(T + 9), s(sHi, 2)))
    a('s_add_u32 s55, s59, %d' % (VOTES - STATS))
    a('s_add_u32 s59, s59, %d' % ST0)
    a('s_cmp_lt_u32 %s, 4' % s(sJ))
    a('s_cselect_b32 s59, s59, s55')
    a('v_and_b32 %s, 31, %s' % (v(T + 9), v(vL)))
    a('v_lshl_add_u32 %s, %s, 2, s59' % (v(T + 9), v(T + 9)))
    a('v_add_u32 %s, %d, %s' % (v(T + 10), BUF_X, v(vPubL)))
    a('v_cndmask_b32 %s, %s, %s, %s' % (v(vCl + 1), v(T + 10), v(T + 9), s(sHi, 2)))
    a('v_mov_b32 %s, %s' % (v(vCl + 2), s(sTag + 3)))
    a('s_cmp_lt_u32 %s, %d' % (s(sJ), 6 if OPT['probe'] in (1, 2) else 4))
    a('s_cselect_b32 %s, -1, 0' % s(sCl + 1))
    a('s_cmp_lt_u32 %s, 4' % s(sJ))
    a('s_cselect_b32 %s, -1, 0' % s(sCl))
    a('s_cmp_eq_u32 %s, 0' % s(sW))
    a('s_cselect_b32 %s, %s, 0' % (s(sCl), s(sCl)))
    a('s_cselect_b32 %s, %s, 0' % (s(sCl + 1), s(sCl + 1)))


def clean_x():
    a('s_mov_b32 exec_hi, %s' % s(sCl + 1))
    a('global_store_dword %s, %s, %s sc1' % (v(vCl + 1), v(vCl + 2), s(sLb, 2)))
    a('s_mov_b32 exec_hi, -1')


def clean_a():
    a('s_mov_b32 exec_hi, %s' % s(sCl))
    a('global_store_dword %s, %s, %s sc1' % (v(vCl), v(vCl + 2), s(sLb, 2)))
    a('s_mov_b32 exec_hi, -1')


def clean_b_prep():
    a('v_add_u32 %s, %d, %s' % (v(T + 9), 512, v(vCl)))
    a('v_add_u32 %s, %d, %s' % (v(T + 8), BUF_B, v(vCl)))
    a('v_cndmask_b32 %s, %s, %s, %s' % (v(T + 8), v(T + 8), v(T + 9), s(sHi, 2)))
    a('s_mov_b32 exec_lo, 0')
    a('s_mov_b32 exec_hi, %s' % s(sCl))
    sk = newlabel('nold')
    a('s_cbranch_execz %s' % sk)
    a('global_load_dword %s, %s, %s sc1' % (v(vKeep), v(T + 8), s(sLb, 2)))
    a.label(sk)
    a('s_mov_b64 exec, -1')


def clean_b():
    a('s_mov_b32 exec_hi, %s' % s(sCl))
    a('global_store_dword %s, %s, %s sc1' % (v(T + 8), v(vKeep), s(sLb, 2)))
    a('s_mov_b32 exec_hi, -1')


npage = [0]


def only_if(late, fn):
    sk = newlabel('xs')
    a('s_cmp_ge_u32 %s, 4' % s(sXcc))
    a('s_cbranch_scc%d %s' % (0 if late else 1, sk))
    fn()
    a.label(sk)


THIN = {0: 0xffffffff, 1: 0x01010101, 2: 0x11111111, 3: 0x0f0f0f0f}[OPT.get('thin', 0)]


def late_pre():
    a('v_mov_b32 %s, %s' % (v(T + 16), s(sE)))
    a('v_mov_b32 %s, %s' % (v(T + 17), s(sE)))
    a('s_mov_b32 exec_lo, 0x%x' % (0xffffffff if OPT.get('gpre') == 6 else 0 if OPT.get('gpre') == 4 else 0xffff0000 if FL2 else 0xff00ff00 & THIN))
    if THIN != 0xffffffff:
        a('s_mov_b32 exec_hi, 0x%x' % THIN)
    a('global_store_dwordx2 %s, %s, %s sc1' % (v(vPre), v(T + 16, 2), s(sGb0, 2)))
    a('s_mov_b64 exec, -1')


def page_break(force=False):
    if OPT['pages'] and (FAST[0] or force):
        l = newlabel('page')
        a('s_branch %s' % l)
        flush_deferred(False)
        a.raw('.p2align 12')
        if OPT.get('tramp') and not force:
            npage[0] += 1
            a.label('L_stub_%d' % npage[0])
            a.raw('    s_branch %s' % ('L_stub_2' if npage[0] == 1 and OPT['pages'] == 2 else 'L_stub_back'))
        a.label(l)
        if OPT.get('tramp') and force:
            a('s_branch L_stub_1')
            a.label('L_stub_back')


a.raw('''; kernarg: x, K, V, wq, wo, (B_x unused), w1, w3, w2, out, debug, ws  (8 bytes each)
;
; One persistent launch, 256 workgroups = 32 groups (attention head / 32-48 ffn columns) x 8 members (128 keys / 64 rows of x).
; Weights and the K/V window are read once (LDS-DMA, then transposing LDS reads) and stay in registers for both layers.
; Per layer: q partials -> [group] -> scores, softmax, PV -> [group] -> wo partials -> [32 groups] -> gate/up partials
;            -> [group] -> w2 partials -> [32 groups].   LayerNorm is applied after the projection:
;            rstd * (x.W - mean * colsum(W)), the statistics travel with the group hand-offs.
; Hand-offs go through d_ws in 64-byte sectors whose 16-byte granules carry a tag byte (tag = epoch word found in d_ws + constant + index
; of the hand-off; the epoch is advanced once per launch). Loads of handed-off data always bypass L1. Group hand-offs use plain
; stores only after the members have compared their XCC ids; otherwise the copy of the code at L_slowtail writes through.
; The all-to-all hand-offs are written twice, once into each half of memory; a wave reads the copy that is near to it.
; @launch grid=(256,1,1) block=(256,1,1) lds=%d
.amdgcn_target "amdgcn-amd-amdhsa--gfx950"
.text
.p2align 12
.globl %s_kernel
.p2align 8
.type %s_kernel,@function
%s_kernel:''' % (LDS_BYTES, NAME, NAME, NAME))
a('s_cmp_ge_u32 s2, 256')
a('s_cbranch_scc1 L_end')
a('s_load_dwordx16 s[4:19], s[0:1], 0')
a('s_load_dwordx8 s[20:27], s[0:1], 64')
stamp('start')
stamp('x rt0')
a('s_getpc_b64 %s' % s(sPc, 2))
a.label('L_pc')
a('v_lshlrev_b32 %s, 6, v0' % v(T))
a('v_min_u32 %s, L_fastend-L_pc-64, %s' % (v(T), v(T)))
if OPT.get('cpf', 32):
    a('s_cmp_lt_u32 s2, %d' % OPT.get('cpf', 32))
    a('s_cselect_b64 exec, -1, 1')
a('global_load_dword %s, %s, %s' % (v(T + 22), v(T), s(sPc, 2)))
if OPT.get('cpf', 32):
    a('s_mov_b64 exec, -1')
a('v_lshrrev_b32 %s, 6, v0' % v(T))
a('v_and_b32 %s, 63, v0' % v(vL))
a('v_readfirstlane_b32 %s, %s' % (s(sW), v(T)))
a('s_lshr_b32 s3, s2, 3')
a('s_and_b32 %s, s3, 7' % s(sJ))
a('s_lshr_b32 s3, s3, 3')
a('s_and_b32 s31, s2, 7')
a('s_lshl_b32 %s, s31, 2' % s(sGam))
a('s_add_u32 %s, %s, s3' % (s(sGam), s(sGam)))
u16, pos16, u8, pos8, l3, col16 = T + 1, T + 2, T + 3, T + 4, T + 5, T + 6
t0, t1, t2, t3 = T + 8, T + 9, T + 10, T + 11
k0 = T + 12


def pro_wq():
    a('v_lshrrev_b32 %s, 4, %s' % (v(u16), v(vL)))
    a('v_and_b32 %s, 15, %s' % (v(pos16), v(vL)))
    a('v_lshlrev_b32 %s, 1, %s' % (v(t2), v(u16)))
    a('v_xor_b32 %s, %s, %s' % (v(t2), v(t2), v(pos16)))
    a('v_lshlrev_b32 %s, 4, %s' % (v(t2), v(t2)))
    a('v_lshl_add_u32 %s, %s, 13, %s' % (v(t0), v(u16), v(t2)))
    a('v_xor_b32 %s, 0x80, %s' % (v(t1), v(t0)))
    a('v_add_u32 %s, %d, %s' % (v(t1), 2 * 31744, v(t1)))
    a('s_lshl_b32 s49, %s, 12' % s(sW))
    a('s_lshl_b32 s55, %s, 19' % s(sJ))
    a('s_lshl_b32 s56, %s, 17' % s(sW))
    a('s_add_u32 s55, s55, s56')
    a('s_lshl_b32 s56, %s, 8' % s(sGam))
    a('s_add_u32 s55, s55, s56')
    a('s_add_u32 m0, s49, %d' % WQ)


def pro_rest():
    a('v_and_b32 %s, 3, %s' % (v(l3), v(vL)))
    a('v_lshl_add_u32 %s, %s, 2, %s' % (v(col16), v(l3), v(u16)))
    a('s_lshl_b32 s48, %s, 5' % s(sW))
    a('v_lshl_add_u32 %s, %s, 1, s48' % (v(vXw), v(col16)))
    a('v_lshl_add_u32 %s, %s, 8, %s' % (v(vVo), v(u16), v(t2)))
    a('v_xor_b32 %s, 0x80, %s' % (v(vVo + 1), v(vVo)))
    a('v_xor_b32 %s, %s, %s' % (v(k0), v(u16), v(pos16)))
    a('v_lshlrev_b32 %s, 4, %s' % (v(k0), v(k0)))
    a('v_lshl_add_u32 %s, %s, 8, %s' % (v(k0), v(u16), v(k0)))
    for i in range(1, 4):
        a('v_xor_b32 %s, %d, %s' % (v(k0 + i), i << 6, v(k0)))
    a('s_lshl_b32 s48, %s, 7' % s(sJ))
    a('s_lshl_b32 s56, %s, 20' % s(sGam))
    a('s_lshl_b32 s58, %s, 15' % s(sJ))
    a('s_add_u32 s56, s56, s58')
    a('s_lshl_b32 s58, %s, 13' % s(sW))
    a('s_add_u32 s56, s56, s58')
    a('s_add_u32 s56, s56, %d' % (3072 * 256))


def pro_touch():
    a('v_lshl_add_u32 %s, %s, 4, s49' % (v(vCons), v(vL)))
    a('s_lshl_b32 s57, %s, 14' % s(sGam))
    a('s_add_u32 s57, s57, %d' % WS_L)
    a('s_add_u32 s3, s48, s57')
    if OPT.get('pt', 1) >= 2:
        a('s_add_u32 s3, s3, %d' % STATS)
        a('v_mov_b32 %s, s3' % v(t3))
        if OPT['pt'] == 3:
            a('s_and_b32 s3, s48, 0x180')
            a('s_add_u32 s3, s3, s57')
            a('s_add_u32 s3, s3, %d' % (STATS + ST0))
            a('v_writelane_b32 %s, s3, 5' % v(t3))
        return
    a('s_add_u32 s59, s3, s49')
    if OPT.get('pt', 1) == -1:
        a('v_and_b32 %s, 2, %s' % (v(t3), v(vL)))
        a('v_lshl_add_u32 %s, %s, 10, s59' % (v(t3), v(t3)))
    elif OPT.get('pt', 1):
        a('s_add_u32 s59, s59, %d' % BUF_B)
        a('v_mov_b32 %s, s59' % v(t3))
    else:
        a('v_lshl_add_u32 %s, %s, 10, s59' % (v(t3), v(vL)))
    a('v_cmp_lt_u32 vcc, 2, %s' % v(vL))
    a('s_add_u32 s3, s3, %d' % STATS)
    a('v_mov_b32 %s, s3' % v(T + 17))
    a('v_cndmask_b32 %s, %s, %s, vcc' % (v(t3), v(t3), v(T + 17)))
    if OPT['probe'] in (1, 2):
        a('s_add_u32 s3, s57, %d' % VOTES)
        a('v_writelane_b32 %s, s3, 3' % v(t3))
        a('s_add_u32 s3, s3, 128')
        a('v_writelane_b32 %s, s3, 4' % v(t3))
    a('s_and_b32 s3, s48, 0x180')
    a('s_add_u32 s3, s3, s57')
    a('s_add_u32 s3, s3, %d' % (STATS + ST0))
    a('v_writelane_b32 %s, s3, 5' % v(t3))


PRO = OPT.get('pro', 2)
pro_wq()
if PRO < 2:
    pro_rest()
if PRO < 1:
    pro_touch()
stamp('pre ka')
a('s_waitcnt lgkmcnt(0)')
stamp('ka')
a('s_add_u32 s10, s10, s55')
a('s_addc_u32 s11, s11, 0')
a('global_load_lds_dwordx4 %s, s[10:11] offset:0%s' % (v(t0), NT))
a('v_add_u32 %s, 31744, %s' % (v(t0), v(t0)))
a('s_load_dword %s, s[26:27], 0' % s(sE))
a('global_load_lds_dwordx4 %s, s[10:11] offset:1024%s' % (v(t0), NT))
a('global_load_lds_dwordx4 %s, s[10:11] offset:2048%s' % (v(t1), NT))
a('v_add_u32 %s, 31744, %s' % (v(t1), v(t1)))
a('global_load_lds_dwordx4 %s, s[10:11] offset:3072%s' % (v(t1), NT))
if PRO >= 2:
    pro_rest()
a('s_add_u32 s4, s4, s48')
a('s_addc_u32 s5, s5, 0')
a('global_load_ushort %s, %s, s[4:5]' % (v(vX), v(vXw)))
a('s_add_u32 s6, s6, s56')
a('s_addc_u32 s7, s7, 0')
if PRO < 1:
    a('global_load_dword %s, %s, s[26:27]' % (v(T + 22), v(t3)))
a('s_add_u32 m0, s58, %d' % KI)
stamp('wq iss')
if OPT.get('bar0', 1):
    a('s_barrier')
for i in range(4):
    a('global_load_lds_dwordx4 %s, s[6:7] offset:%d%s' % (v(k0 + i), 1024 * i, NT))


def k_second():
    a('s_add_u32 m0, s58, %d' % (KI + 4096))
    a('s_add_u32 s6, s6, 4096')
    a('s_addc_u32 s7, s7, 0')
    for i in range(4):
        a('global_load_lds_dwordx4 %s, s[6:7] offset:%d%s' % (v(k0 + i), 1024 * i, NT))


if not OPT['ksplit']:
    k_second()
if PRO >= 1:
    pro_touch()
    a('global_load_dword %s, %s, s[26:27]' % (v(T + 22), v(t3)))
stamp('issued')
a('s_add_u32 s8, s8, s56')
a('s_addc_u32 s9, s9, 0')
a('s_add_u32 %s, s26, s57' % s(sLb))
a('s_addc_u32 %s, s27, 0' % s(sLb + 1))
a('s_lshl_b32 s55, %s, %d' % (s(sJ), 14 + PAD))
a('s_add_u32 s55, s55, %d' % (WS_G + GOFF))
a('s_add_u32 %s, s26, s55' % s(sGb0))
a('s_addc_u32 %s, s27, 0' % s(sGb0 + 1))
a('s_add_u32 %s, %s, 0x%x' % (s(sGb1), s(sGb0), 0x40000 << PAD))
a('s_addc_u32 %s, %s, 0' % (s(sGb1 + 1), s(sGb0 + 1)))
a('s_getreg_b32 %s, hwreg(HW_REG_XCC_ID, 0, 4)' % s(sXcc))
if PB_:
    if PB_ == 1:
        a('s_and_b32 %s, %s, 3' % (s(sPr), s(sGam)))
        a('s_lshl_b32 %s, %s, 2' % (s(sPr), s(sPr)))
        a('s_add_u32 %s, %s, %s' % (s(sPr), s(sPr), s(sW)))
        a('s_lshl_b32 %s, %s, 7' % (s(sPr), s(sPr)))
    else:
        a('s_and_b32 %s, %s, 15' % (s(sPr), s(sGam)))
        a('s_lshl_b32 %s, %s, 7' % (s(sPr), s(sPr)))
        a('s_lshr_b32 s59, %s, 4' % s(sGam))
        a('s_lshl_b32 s59, s59, 12')
        a('s_add_u32 %s, %s, s59' % (s(sPr), s(sPr)))
    a('s_add_u32 %s, %s, s55' % (s(sPr), s(sPr)))
    a('s_add_u32 %s, %s, 0x20000' % (s(sPr), s(sPr)))
else:
    a('s_lshl_b32 %s, s2, 2' % s(sPr))
    a('s_add_u32 %s, %s, %s' % (s(sPr), s(sPr), s(sW)))
    a('s_and_b32 s55, %s, 63' % s(sPr))
    a('s_lshl_b32 s55, s55, 7')
    a('s_lshr_b32 %s, %s, 6' % (s(sPr), s(sPr)))
    a('s_lshl_b32 %s, %s, 14' % (s(sPr), s(sPr)))
    a('s_add_u32 %s, %s, s55' % (s(sPr), s(sPr)))
    a('s_add_u32 %s, %s, %d' % (s(sPr), s(sPr), WS_P))
if OPT['probe'] == 1:
    a('s_lshl_b32 s55, s49, %d' % PAD)
    a('s_and_b32 s55, s55, 8192')
    a('s_add_u32 %s, %s, s55' % (s(sPr), s(sPr)))
a('s_mov_b32 %s, 0x40000' % s(sTo))
a('s_mov_b32 %s, %s' % (s(sCs), f32(math.log2(math.e) / math.sqrt(128.0))))
a('s_mov_b32 %s, 0xffffff00' % s(sMaskHi))
a('s_mov_b32 %s, %s' % (s(sInv512), f32(1.0 / 512)))
a('s_mov_b32 %s, %s' % (s(sEps), f32(1e-5)))
a('s_mov_b32 %s, %s' % (s(sNl2e), f32(-math.log2(math.e))))
a('s_mov_b32 %s, 0xffff0000' % s(sM0))
a('s_mov_b32 %s, 0xffff0000' % s(sM0 + 1))
a('s_mov_b32 %s, 0x10000' % s(sM1))
a('s_mov_b32 %s, 0x10000' % s(sM1 + 1))
a('s_mov_b32 %s, 0' % s(sHi))
a('s_mov_b32 %s, -1' % s(sHi + 1))
if OPT.get('fal', 5):
    if OPT.get('fal', 5) == 1:
        a('s_cmp_lt_u32 %s, 12' % s(sGam))
        a('s_cselect_b32 %s, 6, 5' % s(sCnt))
        a('s_cselect_b32 s55, 0, 12')
        a('s_mul_i32 %s, %s, %s' % (s(sC0), s(sGam), s(sCnt)))
        a('s_add_u32 %s, %s, s55' % (s(sC0), s(sC0)))
    else:
        pat = {2: [6, 6, 6, 6, 4, 5, 5, 5], 3: [6, 6, 6, 6, 4, 4, 5, 6], 4: [6, 6, 6, 6, 5, 4, 5, 5], 5: [6, 6, 6, 6, 4, 4, 6, 5], 6: [6, 6, 6, 6, 3, 4, 6, 6],
               7: [7, 7, 7, 6, 4, 4, 4, 4], 8: [8, 7, 7, 6, 3, 3, 5, 4], 9: [8, 8, 8, 7, 2, 2, 4, 4], 10: [7, 7, 6, 6, 4, 4, 5, 4]}[OPT.get('fal', 5)]
        assert sum(pat) == 43
        pre_ = [sum(pat[:g]) for g in range(8)]
        a('s_and_b32 s55, %s, 28' % s(sGam))
        a('s_lshr_b32 %s, 0x%x, s55' % (s(sCnt), sum(n << 4 * g for g, n in enumerate(pat))))
        a('s_and_b32 %s, %s, 15' % (s(sCnt), s(sCnt)))
        a('s_lshl_b32 s55, s55, 1')
        a('s_mov_b32 s24, 0x%x' % sum(n << 8 * g for g, n in enumerate(pre_[:4])))
        a('s_mov_b32 s25, 0x%x' % sum(n << 8 * g for g, n in enumerate(pre_[4:])))
        a('s_lshr_b64 s[24:25], s[24:25], s55')
        a('s_and_b32 s55, s24, 0xff')
        a('s_lshl_b32 s55, s55, 2')
        a('s_and_b32 %s, %s, 3' % (s(sC0), s(sGam)))
        a('s_mul_i32 %s, %s, %s' % (s(sC0), s(sC0), s(sCnt)))
        a('s_add_u32 %s, %s, s55' % (s(sC0), s(sC0)))
    a('s_sub_u32 s37, %s, 1' % s(sCnt))
    a('s_lshl_b32 %s, %s, 3' % (s(sCnt), s(sCnt)))
else:
    a('s_mul_i32 %s, %s, 43' % (s(sC0), s(sGam)))
    a('s_add_u32 %s, %s, 43' % (s(sCnt), s(sC0)))
    a('s_lshr_b32 %s, %s, 3' % (s(sC0), s(sC0)))
    a('s_lshr_b32 %s, %s, 3' % (s(sCnt), s(sCnt)))
    a('s_sub_u32 %s, %s, %s' % (s(sCnt), s(sCnt), s(sC0)))
    a('s_lshl_b32 %s, %s, 3' % (s(sCnt), s(sCnt)))
    a('s_mov_b32 s37, 5')
a('v_mov_b32 %s, 0' % v(vZero))
a('v_lshrrev_b32 %s, 3, %s' % (v(u8), v(vL)))
a('v_and_b32 %s, 7, %s' % (v(pos8), v(vL)))
a('s_add_u32 s55, s49, s48')
a('v_and_b32 %s, 31, %s' % (v(t0), v(vL)))
a('v_lshl_add_u32 %s, %s, 2, s55' % (v(vPubL), v(t0)))
a('v_lshrrev_b32 %s, 5, %s' % (v(t3), v(vL)))
a('v_lshl_add_u32 %s, %s, 10, %s' % (v(vPubL), v(t3), v(vPubL)))
a('s_lshl_b32 s55, %s, 6' % s(sW))
a('v_lshl_add_u32 %s, %s, 1, s55' % (v(vPw), v(t0)))
a('v_lshl_add_u32 %s, %s, 2, %s' % (v(t1), v(pos8), v(u16)))
a('v_lshl_add_u32 %s, %s, 1, s55' % (v(vQw), v(t1)))
a('s_lshl_b32 s55, %s, 6' % s(sGam))
a('s_add_u32 s55, s55, s49')
if PAD:
    a('s_lshl_b32 s55, s55, 1')
a('v_lshl_add_u32 %s, %s, 2, s55' % (v(vPubG), v(pos16)))
if PAD:
    a('v_lshl_add_u32 %s, %s, 6, %s' % (v(vPubG), v(t3), v(vPubG)))
a('v_and_b32 %s, 1, %s' % (v(t2), v(u16)))
a('v_mul_u32_u24 %s, 0x%x, %s' % (v(t2), G_X, v(t2)))
a('v_xor_b32 %s, %s, %s' % (v(vPubG), v(vPubG), v(t2)))
if FL2:
    a('v_lshl_add_u32 %s, %s, 3, s55' % (v(vPre), v(pos8)))
    a('v_and_b32 %s, 1, %s' % (v(t2), v(u8)))
    a('v_mul_u32_u24 %s, 0x%x, %s' % (v(t2), G_X, v(t2)))
    a('v_xor_b32 %s, %s, %s' % (v(vPre), v(vPre), v(t2)))
    a('s_and_b32 s55, s55, 0xffffffbf')
    a('s_and_b32 s59, %s, 1' % s(sGam))
    a('s_mul_i32 s59, s59, 0x%x' % G_X)
    a('s_xor_b32 s55, s55, s59')
    a('v_lshl_add_u32 %s, %s, 3, s55' % (v(t2), v(pos16)))
    a('v_and_b32 %s, 1, %s' % (v(t1), v(u16)))
    a('v_lshl_add_u32 %s, %s, 11, %s' % (v(t2), v(t1), v(t2)))
    a('v_lshl_add_u32 %s, %s, 18, %s' % (v(t2), v(t3), v(t2)))
    a('v_cmp_lt_u32 vcc, 15, %s' % v(vL))
    a('v_cndmask_b32 %s, %s, %s, vcc' % (v(vPre), v(vPre), v(t2)))
else:
    a('v_lshl_add_u32 %s, %s, %d, s55' % (v(vPre), v(pos8), 3 + PAD))
    a('v_xor_b32 %s, %s, %s' % (v(vPre), v(vPre), v(t2)))
    a('v_and_b32 %s, 1, %s' % (v(t2), v(u8)))
    a('v_lshl_add_u32 %s, %s, %d, %s' % (v(vPre), v(t2), 11 + PAD, v(vPre)))
    a('v_lshl_add_u32 %s, %s, %d, %s' % (v(vPre), v(t3), 18 + PAD, v(vPre)))
a('s_lshl_b32 s55, %s, 2' % s(sJ))
a('s_add_u32 s55, s55, %s' % s(sW))
a('s_lshl_b32 s55, s55, 4')
a('s_add_u32 s55, s55, %d' % STATS)
a('v_mov_b32 %s, s55' % v(vStP))
a('v_lshl_add_u32 %s, %s, 3, s55' % (v(vStP2), v(t3)))
a('v_lshlrev_b32 %s, 4, %s' % (v(t1), v(l3)))
a('v_lshl_add_u32 %s, %s, 6, %s' % (v(t1), v(u8), v(t1)))
a('v_add_u32 %s, %d, %s' % (v(vStC), STATS, v(t1)))
a('v_mov_b32 %s, 0xff' % v(t2))
a('v_cmp_eq_u32 vcc, 0, %s' % v(l3))
a('v_lshlrev_b32 %s, 4, %s' % (v(vOpR), v(u16)))
a('v_and_b32 %s, 8, %s' % (v(t1), v(vL)))
a('v_cndmask_b32 %s, 0, %s, vcc' % (v(vTagM), v(t2)))
a('v_lshl_add_u32 %s, %s, 4, %s' % (v(vXopR), v(t1), v(vOpR)))
a('v_and_b32 %s, 4, %s' % (v(t1), v(vL)))
a('v_cmp_eq_u32 vcc, 0, %s' % v(t1))
a('v_add_u32 %s, %d, %s' % (v(t1), HB, v(vXw)))
a('v_mov_b32 %s, %d' % (v(t2), DUMMY))
a('v_cndmask_b32 %s, %s, %s, vcc' % (v(vHw), v(t2), v(t1)))
a('v_lshrrev_b32 %s, 1, %s' % (v(t1), v(vXw)))
a('v_cmp_gt_u32 vcc, %s, %s' % (s(sCnt), v(t1)))
a('s_lshl_b32 s55, %s, 2' % s(sW))
a('v_mov_b32 %s, s55' % v(vMw))
a('v_lshlrev_b32 %s, 2, %s' % (v(vMr), v(l3)))
a('v_cndmask_b32 %s, 0, -1, vcc' % v(vHmask))
a('v_lshlrev_b32 %s, 2, %s' % (v(t0), v(t0)))
a('v_mov_b32 %s, 0x3f803f80' % v(t1))
a('ds_write_b32 %s, %s offset:%d' % (v(t0), v(t1), ONES))
a('v_lshlrev_b32 %s, 2, %s' % (v(t0), v(pos8)))
if not W4:
    a('ds_write_b32 %s, %s offset:%d' % (v(t0), v(vZero), HB + 96))
if PAD:
    a('v_lshrrev_b32 %s, 2, %s' % (v(t1), v(vL)))
    a('v_lshlrev_b32 %s, 4, %s' % (v(t2), v(l3)))
    a('v_lshl_add_u32 %s, %s, 7, %s' % (v(t1), v(t1), v(t2)))
    a('s_lshl_b32 s59, s49, 1')
    a('v_add_u32 %s, s59, %s' % (v(vConsG), v(t1)))
else:
    a('v_mov_b32 %s, %s' % (v(vConsG), v(vCons)))
a('v_mov_b32 %s, %s' % (v(vConsG0), v(vConsG)))
a('v_mov_b32 %s, %s' % (v(vSt + 3), s(sXcc)))
r_ = T + 16
a('v_lshrrev_b32 %s, 2, %s' % (v(r_), v(pos16)))
a('v_and_b32 %s, 1, %s' % (v(t0), v(u16)))
a('v_lshl_add_u32 %s, %s, 2, %s' % (v(t1), v(t0), v(r_)))
a('v_lshlrev_b32 %s, 1, %s' % (v(t1), v(t1)))
a('v_xor_b32 %s, s55, %s' % (v(t1), v(t1)))
a('v_lshlrev_b32 %s, 4, %s' % (v(t1), v(t1)))
a('v_lshl_add_u32 %s, %s, 3, %s' % (v(t1), v(l3), v(t1)))
a('v_lshl_add_u32 %s, %s, 3, %s' % (v(t2), v(u16), v(r_)))
a('v_lshl_add_u32 %s, %s, 8, %s' % (v(trq), v(t2), v(t1)))
a('v_xor_b32 %s, 32, %s' % (v(trq + 1), v(trq)))
a('v_lshrrev_b32 %s, 1, %s' % (v(t1), v(r_)))
a('v_lshl_add_u32 %s, %s, 1, %s' % (v(t1), v(t0), v(t1)))
a('v_xor_b32 %s, %s, %s' % (v(t1), s(sW), v(t1)))
a('v_lshlrev_b32 %s, 5, %s' % (v(t1), v(t1)))
a('v_lshl_add_u32 %s, %s, 3, %s' % (v(t1), v(l3), v(t1)))
a('v_lshl_add_u32 %s, %s, 7, %s' % (v(vTr), v(t2), v(t1)))
a('v_add_u32 %s, %d, %s' % (v(vTr), WO, v(vTr)))
a('v_and_b32 %s, 2, %s' % (v(t0), v(u8)))
a('v_xor_b32 %s, %s, %s' % (v(t0), v(t0), v(pos8)))
a('v_lshlrev_b32 %s, 4, %s' % (v(t1), v(t0)))
a('v_lshl_add_u32 %s, %s, 10, %s' % (v(wo0), v(u8), v(t1)))
a('v_xor_b32 %s, 64, %s' % (v(wo1), v(wo0)))
a('v_add_u32 %s, 7168, %s' % (v(wo1), v(wo1)))
a('v_mul_u32_u24 %s, 2752, %s' % (v(t2), v(u8)))
a('v_min_u32 %s, s37, %s' % (v(t1), v(t0)))
a('v_lshl_add_u32 %s, %s, 4, %s' % (v(f0), v(t1), v(t2)))
a('v_xor_b32 %s, 4, %s' % (v(t0), v(t0)))
a('v_min_u32 %s, s37, %s' % (v(t1), v(t0)))
a('v_lshl_add_u32 %s, %s, 4, %s' % (v(f1), v(t1), v(t2)))
a('v_add_u32 %s, %d, %s' % (v(f1), 8 * 2752 - 1024, v(f1)))
a('s_lshl_b32 s55, %s, 17' % s(sGam))
a('s_lshl_b32 s59, %s, 15' % s(sW))
a('s_add_u32 s55, s55, s59')
a('s_add_u32 s55, s55, s48')
a('s_add_u32 s12, s12, s55')
a('s_addc_u32 s13, s13, 0')
a('s_lshl_b32 s55, %s, 2' % s(sJ))
a('s_add_u32 s55, s55, %s' % s(sW))
a('s_mul_i32 s55, s55, %d' % (16 * 2752))
a('s_lshl_b32 s59, %s, 4' % s(sC0))
a('s_add_u32 s55, s55, s59')
a('s_add_u32 s16, s16, s55')
a('s_addc_u32 s17, s17, 0')
a('s_add_u32 s18, s18, s55')
a('s_addc_u32 s19, s19, 0')
a('s_lshl_b32 s55, %s, 13' % s(sC0))
a('s_lshr_b32 s59, s37, 1')
a('s_min_u32 s59, %s, s59' % s(sW))
a('s_lshl_b32 s59, s59, 14')
a('s_add_u32 s55, s55, s59')
a('s_add_u32 s55, s55, s48')
a('s_add_u32 s20, s20, s55')
a('s_addc_u32 s21, s21, 0')
if OPT.get('fal', 5):
    a('s_lshr_b32 s59, s59, 10')
    a('s_add_u32 s59, s59, 8')
    a('s_cmp_ge_u32 s59, %s' % s(sCnt))
    a('s_cselect_b32 s59, 8192, 0')
    a('s_sub_u32 s4, s20, s59')
    a('s_subb_u32 s5, s21, 0')
a('s_add_u32 s22, s22, s48')
a('s_addc_u32 s23, s23, 0')
if OPT['ksplit']:
    k_second()
a('s_add_u32 s6, s8, 4096')
a('s_addc_u32 s7, s9, 0')
a('s_waitcnt lgkmcnt(0)')
for k in range(10):
    a('s_add_u32 %s, %s, 0x%x' % (s(sTag + k), s(sE), 0x5a3c7181 + k))


def issue_v(lo, hi):
    for i in range(lo, hi):
        if i == lo or i == 4:
            a('s_add_u32 m0, s58, %d' % (VI + 4096 * (i >> 2)))
            a('s_nop 0')
        a('global_load_lds_dwordx4 %s, %s offset:%d%s' % (v(vVo + ((i >> 1) & 1)), 's[6:7]' if i >= 4 else 's[8:9]', 1024 * (i & 3), NT))


def issue_wo(lo=0, hi=4):
    a('s_add_u32 m0, s49, %d' % WO)
    for i in range(lo, hi):
        ad = wo0 + (i & 1)
        if i >= 2:
            a('v_add_u32 %s, %d, %s' % (v(T + 20), 2 * 7168, v(ad)))
            ad = T + 20
        a('global_load_lds_dwordx4 %s, s[12:13] offset:%d%s' % (v(ad), 1024 * i, NT))


def issue_w13(lo, hi):
    for i in range(lo, hi):
        if i == lo or i == 2:
            a('s_lshl_b32 s59, %s, 11' % s(sW))
            a('s_add_u32 m0, s59, %d' % (W1 if i < 2 else W3))
            a('s_nop 0')
        a('global_load_lds_dwordx4 %s, s[%d:%d] offset:%d%s' % (v(f0 + (i & 1)), 16 + (i & 2), 17 + (i & 2), 1024 * (i & 1), NT))


def issue_w2():
    if OPT.get('w2s', 1) and not W4:
        sk = newlabel('now2')
        a('s_cmp_eq_u32 %s, 3' % s(sW))
        a('s_cbranch_scc1 %s' % sk)
        issue_w2_()
        a.label(sk)
    else:
        issue_w2_()


def issue_w2_():
    if W4:
        a('s_lshl_b32 s59, %s, 11' % s(sW))
    else:
        a('s_min_u32 s59, %s, 2' % s(sW))
        a('s_lshl_b32 s59, s59, 11')
    a('s_add_u32 m0, s59, %d' % W2)
    a('s_nop 0')
    a('global_load_lds_dwordx4 %s, s[20:21] offset:0%s' % (v(wo0), NT))
    a('global_load_lds_dwordx4 %s, %s offset:1024%s' % (v(wo1), 's[4:5]' if OPT.get('fal', 5) else 's[20:21]', NT))


r = vP
FE, KW, WOL = OPT['fe'], OPT['kw'], OPT['wol']
NPRE = (OPT.get('gpre', 5) != 6) + (bool(OPT['probe']) and not PB_)
NVA = OPT['nva']
NVB = 8 - NVA
WOH = OPT.get('woh', 0)
WV = OPT.get('wv', 6)
ORD = OPT.get('ord', 0)
NF = OPT.get('fs', 6)
ORD6 = ORD and NF == 6
NLATE = WOH if WOL else 4 + FE + 2 * OPT['w2e']


def sc_copies():
    lstore('global_store_dword', v(vD + 8), v(vD + 9), BUF_A)
    a('s_mov_b64 exec, %s' % s(sM1, 2))
    lstore('global_store_dwordx2', v(vD + 10), v(vSt4, 2), 0)
    a('s_mov_b64 exec, -1')


WOETC = []
L0COL = []


def front():
    a('; ---- layer 0: x slice, query projection partials')
    set_tags(0)
    a('v_add_u32 %s, 0x%x, %s' % (v(T + 12), WS_L2D, v(vStP2)))
    a('v_add_u32 %s, 0x%x, %s' % (v(T + 13), WS_L2D, v(vPubL)))
    a('v_add_u32 %s, 0x%x, %s' % (v(T + 14), ST0, v(vStP2)))
    stamp('consts')
    a('s_waitcnt vmcnt(9)')
    stamp('wq landed')
    a('ds_write_b16 %s, %s offset:%d' % (v(vXw), v(vX), XB))
    issue_v(0, OPT['vq'])
    a('v_lshlrev_b32 %s, 16, %s' % (v(vSt4), v(vX)))
    a('v_lshlrev_b32 %s, 16, %s' % (v(vX), v(vX)))
    FAST[0] = True
    ln_stats(0, T + 14)
    a('s_waitcnt lgkmcnt(0)')

    proj(vWQ, 0, 0, wsrc=[(trq, WQ, 8192, 1024), (trq + 1, WQ, 8192, 1024)], first=True)
    FAST[0] = False
    stamp('L0 Q pub')
    SP = OPT.get('sp', 0)
    a('v_mov_b32 %s, %s' % (v(vD + 8), v(T + 13)))
    a('v_mov_b32 %s, %s' % (v(vD + 9), v(T)))
    a('v_mov_b32 %s, %s' % (v(vD + 10), v(T + 12)))

    def side_stores():
        if not LZ:
            sc_copies()
        a('v_mov_b32 %s, %s' % (v(T + 16), s(sE)))
        a('v_mov_b32 %s, %s' % (v(T + 17), s(sE)))
        if OPT.get('pt', 1) >= 2:
            a('s_mov_b32 exec_hi, 0')
            a('global_store_dword %s, %s, %s offset:%d' % (v(vPubL), v(T + 16), s(sLb, 2), BUF_B))
            a('s_mov_b32 exec_hi, -1')
        if PAD:
            a('v_mov_b32 %s, %s' % (v(T + 18), s(sE)))
            a('v_mov_b32 %s, %s' % (v(T + 19), s(sE)))
        if OPT.get('gpre', 5) == 2:
            a('s_mov_b32 exec_lo, 0')
        if OPT.get('gpre', 5) == 0:
            a('s_mov_b64 exec, 1')
        if OPT.get('gpre', 5) in (3, 5, 7):
            a('s_mov_b64 exec, 0x%x' % ((0xffff if FL2 else 0x00ff00ff) & THIN))
        if OPT.get('gpre', 5) == 4:
            a('s_mov_b32 exec_hi, 0')
        if OPT.get('gpre', 5) == 6:
            return
        a('global_store_dwordx%d %s, %s, %s offset:%d sc1' % (2 << PAD, v(vPre), v(T + 16, 2 << PAD), s(sGb0, 2), -GOFF))
        if OPT.get('gpre', 5) != 1:
            a('s_mov_b64 exec, -1')
        if OPT['probe'] and not PB_:
            a('v_and_b32 %s, 31, %s' % (v(T + 18), v(vL)))
            a('v_lshl_add_u32 %s, %s, 2, %s' % (v(T + 18), v(T + 18), s(sPr)))
            a('v_lshrrev_b32 %s, 5, %s' % (v(T + 19), v(vL)))
            a('v_lshlrev_b32 %s, 13, %s' % (v(T + 19), v(T + 19)))
            a('v_xor_b32 %s, %s, %s' % (v(T + 18), v(T + 19), v(T + 18)))
            a('global_store_dword %s, %s, s[26:27] sc1' % (v(T + 18), v(T + 16)))
    if SP == 2:
        side_stores()
    if ORD:
        issue_wo()
    if OPT.get('te'):
        h = OPT.get('th', 4)
        issue_v(OPT['vq'], h)
        sk = newlabel('noth')
        a('s_cmp_ge_u32 %s, 4' % s(sXcc))
        a('s_cbranch_scc1 %s' % sk)
        a('s_waitcnt vmcnt(%d)' % max(8 - OPT['te'] + (PRO >= 1) + 2 + h, 0))
        a.label(sk)
        issue_v(h, NVA)
    else:
        issue_v(OPT['vq'], NVA)
    if SP == 0:
        side_stores()
    a('; ---- layer 0: gather q')
    if OPT.get('cp2'):
        a('s_getpc_b64 s[4:5]')
        a.label('L_pc2')
        a('v_lshlrev_b32 %s, 6, v0' % v(T + 19))
        a('v_min_u32 %s, L_fastend-L_pc2-64, %s' % (v(T + 19), v(T + 19)))
        a('global_load_dword %s, %s, s[4:5]' % (v(T + 22), v(T + 19)))
    a('v_xor_b32 %s, %s, %s' % (v(t0), v(u16), v(pos16)))
    a('v_lshlrev_b32 %s, 4, %s' % (v(t0), v(t0)))
    a('v_lshl_add_u32 %s, %s, 8, %s' % (v(t0), v(pos16), v(t0)))
    a('s_add_u32 s55, s58, %d' % KI)
    a('v_add_u32 %s, s55, %s' % (v(t0), v(t0)))
    for kk in range(1, 4):
        a('v_xor_b32 %s, %d, %s' % (v(t0 + kk), kk << 6, v(t0)))
    alt, both, alts, boths = T + 13, T + 14, T + 15, T + 21
    a('v_mov_b32 %s, %s' % (v(alt), v(vCons)))
    a('v_lshlrev_b32 %s, 1, %s' % (v(both), v(vCons)))
    a('v_add_u32 %s, 0x%x, %s' % (v(both), WS_L2D, v(both)))
    a('v_add_u32 %s, 0x%x, %s' % (v(alts), ST0, v(vStC)))
    a('v_lshlrev_b32 %s, 1, %s' % (v(boths), v(vStC)))
    a('v_add_u32 %s, 0x%x, %s' % (v(boths), WS_L2D + ST0, v(boths)))
    page_break(True)
    NS = (0 if LZ else 2) + NPRE + (OPT.get('pt', 1) >= 2)
    behind_k = 2 + NVA + (0 if SP == 1 else NS) + (PRO >= 1) + OPT.get('cp2', 0) + 4 * ORD
    PL = OPT.get('pl', 0)
    loads = [(vSs[0], alts, sLb, 0), (r, alt, sLb, BUF_A), (r + 4, alt, sLb, BUF_X)]
    if not PL:
        a('s_waitcnt vmcnt(%d)' % (8 - KW + behind_k))
        stamp('K part')
        for x in loads:
            gload(*x)
    issue_v(NVA, 8)

    if WOH:
        issue_wo(0, WOH)

    def wo_etc():
        if ORD:
            issue_w13(0, min(NF, 4))
            if NF == 6:
                issue_w2()
            return
        issue_wo(WOH, 4)
        if OPT['w2e']:
            issue_w2()
        issue_w13(0, FE)
    if not WOL:
        wo_etc()
    XL = OPT.get('xw', 0) & 8
    if XL:
        only_if(True, wo_etc)
    a('s_waitcnt vmcnt(%d)' % (behind_k + (0 if PL else 3) + NVB + NLATE))
    stamp('K landed')
    for g in range(2):
        for kk in range(4):
            a('ds_read_b128 %s, %s offset:%d' % (v(vK + 16 * g + 4 * kk, 4), v(t0 + kk), 4096 * g))
    if PL:
        assert WV and not NVB
        pv_ = OPT.get('pv', WV)
        a('s_waitcnt vmcnt(%d)' % (8 - pv_ + 2 + NPRE))
        for x in loads:
            gload(*x)
    if WV:
        if not PL or pv_ != WV:
            a('s_waitcnt vmcnt(%d)' % (8 - WV + (NS if SP == 0 else 0) + 3))
        wo_etc()
        if OPT.get('gpre') == 7:
            late_pre()
        if SP == 1:
            side_stores()
    a('s_branch L_e1ent')
    a.label('L_e1top')
    tick()
    if LZ:
        sc_copies()
    for x in loads:
        gload(*x)
    a('v_sub_u32 %s, %s, %s' % (v(alt), v(both), v(alt)))
    a('v_sub_u32 %s, %s, %s' % (v(alts), v(boths), v(alts)))
    if NLATE + NVB or XL or WV:
        a('s_waitcnt vmcnt(0)')
    a.label('L_e1ent')
    if XL:
        only_if(False, lambda: a('s_waitcnt vmcnt(%d)' % NVB))
        a('s_waitcnt vmcnt(%d)' % (NVB + 4 + FE))
    else:
        a('s_waitcnt vmcnt(%d)' % (NLATE + NVB + ((NF if ORD else 4 + FE) if WV else 0) + (NS if SP == 1 else 0) + (OPT.get('gpre') == 7)))
    a('v_bitop3_b32 %s, %s, %s, %s bitop3:0x7e' % (v(T + 23), v(r), v(r + 4), s(sTag)))
    a('v_cmp_ne_u32 %s, %s, %s' % (s(sT1, 2), s(sTag), v(vSs[0] + 1)))
    a('v_cmp_ne_u32_sdwa vcc, %s, %s src0_sel:BYTE_0 src1_sel:DWORD' % (v(T + 23), v(vZero)))
    a('s_or_b64 vcc, vcc, %s' % s(sT1, 2))
    a('s_cbranch_vccnz L_e1top')
    stamp('L0 E1 ok')
    if OPT['fl']:
        flag_store(sE)
    if XL:
        only_if(False, wo_etc)
    elif OPT.get('xw', 0) & 1:
        only_if(True, wo_etc)
    elif WOL and OPT['wopos'] == 0 and not WV:
        wo_etc()
    WOETC.append(wo_etc)
    a('v_cmp_ne_u32 vcc, %s, %s' % (s(sXcc), v(vSs[0] + 3)))
    c, x, y = vC, vSs[0], r + 4
    ln_spec(x)
    mask_tag(y)
    a('v_mov_b32 %s, %s' % (v(c + 1), v(c)))
    a('v_permlane32_swap_b32 %s, %s' % (v(y + 1), v(y + 3)))
    mask_tag(r)
    a('v_permlane16_swap_b32 %s, %s' % (v(c), v(c + 1)))
    a('v_add_f32 %s, %s, %s' % (v(c), v(c), v(c + 1)))
    a('v_add_f32 %s, %s, %s' % (v(y + 1), v(y + 1), v(y + 3)))
    a('v_permlane32_swap_b32 %s, %s' % (v(y), v(y + 2)))
    dpp('v_add_f32', c, c, c, 'row_ror:8')
    a('v_add_f32 %s, %s, %s' % (v(y), v(y), v(y + 2)))
    a('v_permlane32_swap_b32 %s, %s' % (v(r + 1), v(r + 3)))
    dpp('v_add_f32', c, c, c, X1)
    a('v_add_f32 %s, %s, %s' % (v(r + 1), v(r + 1), v(r + 3)))
    a('v_permlane16_swap_b32 %s, %s' % (v(y), v(y + 1)))
    dpp('v_add_f32', c, c, c, X2)
    a('v_add_f32 %s, %s, %s' % (v(y), v(y), v(y + 1)))
    a('v_mul_f32 %s, %s, %s' % (v(c), s(sInv512), v(c)))
    a('v_mov_b32 %s, %s' % (v(c + 1), v(c)))
    a('v_permlane32_swap_b32 %s, %s' % (v(r), v(r + 2)))
    dpp('v_add_f32', vCq, y, y, 'row_ror:8')
    a('v_permlane32_swap_b32 %s, %s' % (v(c), v(c + 1)))
    a('v_add_f32 %s, %s, %s' % (v(r), v(r), v(r + 2)))
    bf16r(vMean, c)
    if OPT['fast']:
        a('s_cbranch_vccnz L_slowtail')


EP = OPT.get('ep', 2)


def epoch(join):
    a('s_cmp_lg_u32 s2, 255')
    a('s_cbranch_scc1 %s' % join)
    a('s_add_u32 s55, %s, 16' % s(sE))
    a('v_mov_b32 %s, s55' % v(T + 2))
    a('v_lshlrev_b32 %s, 2, %s' % (v(T + 3), v(vL)))
    if EP == 0:
        a('s_mov_b64 exec, 1')
    else:
        a('s_mov_b32 exec_hi, 0')
    a('global_store_dword %s, %s, s[26:27]%s' % (v(T + 3), v(T + 2), ' sc1' if EP in (0, 3, 4) else ''))
    a('s_mov_b64 exec, -1')


def CLEAN():
    return OPT['clean'] if FAST[0] else 0


def tail():
    for layer in range(2):
        pre = 'L%d' % layer
        k1, k2, k4 = 3 * layer, 3 * layer + 1, 3 * layer + 2

        def spec(x):
            mask_tag(x)
            red_a(x, r)
        if layer == 1:
            a('; ---- layer 1: x slice, query projection partials')
            set_tags(k1)
            if OPT['pages'] == 1:
                page_break()
            if OPT['probe'] == 3:
                if not (ORD6 and OPT.get('r0', 1)):
                    race_pick()
            elif OPT['probe'] and OPT['vlate']:
                count_votes()
            if CLEAN():
                clean_prep()
            g_pace(1)
            x_gather(1, G_D)
            stamp(pre + ' E5 ok')
            x_to_lds(k1)
            a('s_waitcnt lgkmcnt(0)')
            proj(vWQ, k1, layer)
            stamp(pre + ' Q pub')
            a('; ---- layer 1: gather q')
            l_gather(k1, spec, ln_spec, [ln_mean])
            stamp(pre + ' E1 ok')
        red_b(r, r)
        a('v_fma_f32 %s, -%s, %s, %s' % (v(r), v(vMean), v(vCq), v(r)))
        a('v_cvt_pk_bf16_f32 %s, %s, %s' % (v(r), v(r), v(r)))
        a('ds_write_b16 %s, %s offset:%d' % (v(vQw), v(r), QB))
        if layer == 0 and OPT.get('gpre', 5) in (5, 6):
            late_pre()
        if layer == 1 and CLEAN() & 1 and not OPT['cend'] & 1:
            clean_x()
        ln_rstd_a()
        if layer == 0 and WOL and OPT['wopos'] == 1:
            WOETC[0]()
        a('s_waitcnt lgkmcnt(0)')
        stamp('z%d qw' % layer)
        a('s_barrier')
        stamp('z%d qb' % layer)
        a('; ---- layer %d: attention over this member\'s 128 keys' % layer)
        for kk in range(4):
            a('ds_read_b128 %s, %s offset:%d' % (v(vA + 4 * kk, 4), v(vOpR), QB + 64 * kk))
        ln_rstd_b(True)
        set_tags(k2)
        for kk in range(4):
            lgkm(3 - kk)
            for g in range(2):
                mfma(vD + 4 * g, vA + 4 * kk, vK + 16 * g + 4 * kk, vD + 4 * g if kk else None)
        stamp('z%d qk' % layer)
        if layer == 0:
            if OPT.get('xw', 0) & 1:
                only_if(False, WOETC[0])
            elif WOL and OPT['wopos'] == 2:
                WOETC[0]()
            if NVB:
                a('s_waitcnt vmcnt(%d)' % (NF if ORD else 4 + FE + 2 * OPT['w2e']))
                a('s_barrier')
            tr_reads(vV, trq, VI, 4, 8192, 1024)
        sg = vSt
        mx, e0 = T, T + 1
        a('v_max_f32 %s, %s, %s' % (v(mx), v(vD), v(vD + 4)))
        a('v_cndmask_b32 %s, %s, %s, %s' % (v(e0), v(vD), v(vD + 4), s(sM0, 2)))
        for ro in (8, 4, 2, 1):
            dpp('v_max_f32', mx, mx, mx, 'row_ror:%d' % ro)
        a('v_mul_f32 %s, %s, %s' % (v(sg), v(vCs), v(mx)))
        a('v_fma_f32 %s, %s, %s, -%s' % (v(e0), v(e0), v(vCs), v(sg)))
        a('v_exp_f32 %s, %s' % (v(sg + 1), v(e0)))
        stamp('z%d ex' % layer)
        a('ds_write_b32 %s, %s offset:%d' % (v(vMw), v(sg), MB))
        a('v_cvt_pk_bf16_f32 %s, %s, %s' % (v(e0), v(sg + 1), v(sg + 1)))
        a('ds_write_b16 %s, %s offset:%d' % (v(vPw), v(e0), PB))
        if layer == 0:
            tr_reads(vV + 16, trq + 1, VI, 4, 8192, 1024)
        for ro in (8, 4, 2):
            dpp('v_add_f32', sg + 1, sg + 1, sg + 1, 'row_ror:%d' % ro)
        a('s_waitcnt lgkmcnt(0)')
        stamp('z%d pw' % layer)
        a('s_barrier')
        stamp('z%d pb' % layer)
        mm = T + 4
        a('ds_read_b32 %s, %s offset:%d' % (v(mm), v(vMr), MB))
        for kk in range(4):
            a('ds_read_b128 %s, %s offset:%d' % (v(vA + 4 * kk, 4), v(vOpR), PB + 64 * kk))
        dpp('v_add_f32', sg + 1, sg + 1, sg + 1, 'row_ror:1')
        dpp('v_add_f32', sg + 1, sg + 1, sg + 1, 'row_bcast:15', 0xa)
        a('s_mov_b64 exec, 0x10000')
        lstore('global_store_dwordx4', v(vStP), v(sg, 4), 512 * (k2 & 1))
        a('s_mov_b64 exec, -1')

        def sel(kk):
            a('v_cndmask_b32 %s, %s, %s, %s' % (v(T + 8 + kk), v(vD + 8 * kk), v(vD + 8 * kk + 4), s(sM0, 2)))

        def bc(kk):
            a('v_mov_b32_dpp %s, %s quad_perm:[%d,%d,%d,%d] row_mask:0xf bank_mask:0xf' % (v(T + 16 + kk), v(mm), kk, kk, kk, kk))

        def acc(kk):
            a('%s %s, %s, %s' % ('v_fmac_f32' if kk else 'v_mul_f32', v(T), v(T + 16 + kk), v(T + 8 + kk)))
        lgkm(3)
        stamp('z%d pr' % layer)
        mfma(vD, vA, vV)
        dpp('v_max_f32', mx, mm, mm, X1)
        mfma(vD + 4, vA, vV + 16)
        lgkm(2)
        mfma(vD + 8, vA + 4, vV + 4)
        dpp('v_max_f32', mx, mx, mx, X2)
        mfma(vD + 12, vA + 4, vV + 20)
        a('v_sub_f32 %s, %s, %s' % (v(mm), v(mm), v(mx)))
        lgkm(1)
        mfma(vD + 16, vA + 8, vV + 8)
        a('v_exp_f32 %s, %s' % (v(mm), v(mm)))
        mfma(vD + 20, vA + 8, vV + 24)
        lgkm(0)
        bc(0)
        mfma(vD + 24, vA + 12, vV + 12)
        bc(1)
        bc(2)
        mfma(vD + 28, vA + 12, vV + 28)
        stamp('z%d pv' % layer)
        stats_load(k2)
        sel(0)
        sel(1)
        acc(0)
        acc(1)
        sel(2)
        acc(2)
        bc(3)
        a('s_mov_b32 exec_hi, 0')
        sel(3)
        acc(3)
        a('v_bfi_b32 %s, %s, %s, %s' % (v(T), v(vTagM), s(sTag + k2), v(T)))
        lstore('global_store_dword', v(vPubL), v(T), BUF_A if k2 % 2 == 0 else BUF_B)
        a('s_mov_b32 exec_hi, -1')
        stamp(pre + ' S pub')
        if layer == 0 and ORD:
            tr_reads(vWO, vTr, 0, 4, 4096, 512)
        if layer == 0 and OPT['fl'] and OPT['flp'] == 1:
            a('s_waitcnt vmcnt(0)')
            flag_store(sTag + 6)
            stats_load(k2)
            lstore('global_store_dword', v(vStP), v(vSt), 512 * (k2 & 1))
        a('; ---- layer %d: combine the 8 key blocks, output projection partials' % layer)
        mj, mg, mo, lo = T, T + 1, vC, vC + 1

        def sm_spec(x):
            dpp('v_max_f32', mj, x, x, X1)
            a('v_mov_b32 %s, %s' % (v(mo), v(x)))
            a('v_mov_b32 %s, %s' % (v(lo), v(x + 1)))

        def sm0():
            allred('v_max_f32', mj, T + 2, [1])
            dpp('v_max_f32', mg, mj, mj, 'row_ror:8')
            allred('v_max_f32', mg, T + 2, [4, 5])

        def sm1():
            a('v_sub_f32 %s, %s, %s' % (v(mo), v(mo), v(mg)))
            a('v_sub_f32 %s, %s, %s' % (v(mj), v(mj), v(mg)))
            a('v_exp_f32 %s, %s' % (v(mo), v(mo)))
            a('v_exp_f32 %s, %s' % (v(mj), v(mj)))
            a('v_mul_f32 %s, %s, %s' % (v(mo), v(mo), v(lo)))
            allred('v_add_f32', mo, T + 2, [0, 1, 3, 4, 5])
            a('v_rcp_f32 %s, %s' % (v(mo), v(mo)))
            a('v_mul_f32 %s, %s, %s' % (v(vF), v(mj), v(mo)))

        def spec2(x):
            mask_tag(x)
            a('v_pk_mul_f32 %s, %s, %s op_sel_hi:[1,0]' % (v(x + 2, 2), v(x + 2, 2), v(vF, 2)))
            a('v_pk_mul_f32 %s, %s, %s op_sel_hi:[1,0]' % (v(x, 2), v(x, 2), v(vF, 2)))
            red_a(x, r)
        l_gather(k2, spec2, sm_spec, [sm0, sm1], hook=(lambda: flag_store(sTag + 6)) if layer == 0 and OPT['fl'] and OPT['flp'] == 0 else None)
        stamp(pre + ' E2 ok')
        red_b(r, r)
        a('v_cvt_pk_bf16_f32 %s, %s, %s' % (v(r), v(r), v(r)))
        a('ds_write_b16 %s, %s offset:%d' % (v(vQw), v(r), OB))

        def ffn_rest():
            issue_w13(FE, 4)
            if not OPT['w2e']:
                issue_w2()
        if layer == 0 and OPT['ff'] in (2, 3):
            ffn_rest()
        if layer == 0 and OPT['ff'] == 6:
            issue_w13(FE, 4)
        if layer == 0 and OPT['ff'] == 11:
            issue_w13(0, 1)
        if layer == 0 and OPT['ff'] == 12:
            issue_w13(0, 2)
        if layer == 0 and OPT['ff'] == 7 and not ORD:
            if OPT.get('xw', 0) & 2:
                only_if(True, lambda: issue_w13(FE, 2))
            else:
                issue_w13(FE, 2)
        a('s_waitcnt lgkmcnt(0)')
        a('s_barrier')
        if layer == 0 and OPT['ff'] == 5:
            gemv_publish_g(4, vWO, OB, 0, G_C, tr=True, mid=lambda: issue_w13(FE, 2), post=lambda: issue_w13(2, 4))
            issue_w2()
        elif layer == 0 and ORD:
            if OPT.get('r0', 1) and ORD6:
                gemv_publish_g(4, vWO, OB, 0, G_C, mid=race_prep, post=race_start)
            else:
                gemv_publish_g(4, vWO, OB, 0, G_C)
        elif layer == 0 and OPT['probe'] == 2:
            gemv_publish_g(4, vWO, OB, 0, G_C, tr=True, mid=race_prep, post=race_start)
        else:
            gemv_publish_g(4, vWO, OB, 2 * layer, G_C, tr=layer == 0)
        stamp(pre + ' O pub')
        a('; ---- layer %d: x slice, gate/up partials' % layer)
        set_tags(k4)
        if layer == 0 and OPT['ff'] == 1:
            nrest = 4 - FE + (0 if OPT['w2e'] else 2)
            if OPT['fl']:
                a('v_lshlrev_b32 %s, 7, %s' % (v(T + 5), v(vL)))
                a('v_add_u32 %s, %d, %s' % (v(T + 5), WS_F, v(T + 5)))
                flag_load()
            ffn_rest()
            if OPT['fl']:
                flag_wait(nrest)
            else:
                a('s_waitcnt vmcnt(%d)' % nrest)
            stamp('G0 ack')
            x_gather(0, G_C, work=probe_near if OPT['probe'] else None)
        else:
            flush_deferred()
            if layer == 0 and OPT['ff'] == 4:
                ffn_rest()
            if layer == 0 and OPT['ff'] == 10:
                a('s_waitcnt vmcnt(0)')
                ffn_rest()
            if layer == 0 and OPT['ff'] == 11:
                issue_w13(1, 4)
                issue_w2()
            if layer == 0 and OPT['ff'] == 12:
                issue_w13(2, 4)
                a('s_waitcnt vmcnt(2)')
                issue_w2()
            if layer == 0 and ORD and not ORD6:
                issue_w13(NF, 4)
                issue_w2()
            if layer == 0 and ORD and NF == 4:
                tr_reads(vW13, vTr, W1 - WO, 2, 4096, 512)
                tr_reads(vW13 + 8, vTr, W3 - WO, 2, 4096, 512)
            if layer == 0 and ORD6:
                if OPT.get('r0', 1):
                    race_pick()
                    a('s_waitcnt lgkmcnt(0)')
                tr_reads(vW13, vTr, W1 - WO, 2, 4096, 512)
                tr_reads(vW13 + 8, vTr, W3 - WO, 2, 4096, 512)
                a('v_and_b32 %s, 32, %s' % (v(T + 1), v(vL)))
                a('v_lshlrev_b32 %s, 6, %s' % (v(T + 1), v(T + 1)))
                a('v_sub_u32 %s, %s, %s' % (v(T + 1), v(vTr), v(T + 1)))
                tr_reads(vW2, vTr, W2 - WO, 1, 4096, 512)
                tr_reads(vW2 + 4, T + 1, W2 - WO + 4096, 1, 4096, 512)
            if layer == 0 and OPT['ff'] == 7 and not ORD:
                if OPT.get('xw', 0) & 2:
                    only_if(False, lambda: issue_w13(FE, 2))
                if OPT.get('xw', 0) & 4:
                    only_if(False, lambda: a('s_waitcnt vmcnt(0)'))
                issue_w13(2, 4)
            if layer == 0 and OPT['ff'] in (6, 7) and not ORD:
                issue_w2()
            if layer == 0 and OPT.get('gpre', 5) in (3, 4):
                late_pre()
            if OPT['pages'] == 2:
                page_break()
            if layer == 0 and OPT.get('otouch'):
                sk = newlabel('noout')
                a('s_cmp_lg_u32 %s, 0' % s(sGam))
                a('s_cbranch_scc1 %s' % sk)
                a('global_load_ushort %s, %s, s[22:23]' % (v(T + 22), v(vXw)))
                a.label(sk)
            if layer == 0 and (OPT['opre'] and OPT['clean'] & 8 or OPT['opre'] == 2):
                sk = newlabel('noout')
                a('s_cmp_lg_u32 %s, 0' % s(sGam))
                a('s_cbranch_scc1 %s' % sk)
                a('s_mov_b32 exec_lo, 0x000f000f')
                a('s_mov_b32 exec_hi, 0x000f000f')
                a('global_store_short %s, %s, s[22:23] sc1' % (v(vXw), v(vZero)))
                a('s_mov_b64 exec, -1')
                a.label(sk)
            if layer == 0 and OPT['probe'] == 2:
                assert OPT['ff'] == 4
                race_finish(1 + 4 - FE + 2)
                if not OPT['vlate']:
                    count_votes()
            if layer == 0 and OPT['probe'] == 1:
                probe_near()
                if not OPT['vlate']:
                    count_votes()
            if layer == 0 and OPT['fl']:
                a('v_lshlrev_b32 %s, 7, %s' % (v(T + 5), v(vL)))
                a('v_add_u32 %s, %d, %s' % (v(T + 5), WS_F, v(T + 5)))
                flag_load()
                flag_wait(0)
            if layer == 0 and OPT.get('g0w'):
                flush_deferred()
                a('s_waitcnt vmcnt(%d)' % OPT['g0w'])
            elif layer or OPT['ff'] != 3:
                g_pace(2 * layer)
            else:
                for i in range(OPT.get('xs', 0)):
                    a('s_nop 15')
                stamp('G0 ack')
            x_gather(2 * layer, G_C)
        stamp(pre + ' E3 ok')
        x_to_lds(k4)
        if not W4:
            a('s_cmp_eq_u32 %s, 3' % s(sW))
        a('s_waitcnt lgkmcnt(0)')
        idle = None if W4 else newlabel('idle')

        proj(vW13, k4, layer, wsrc=[(vTr, W1 - WO, 4096, 512), (vTr, W3 - WO, 4096, 512)] if layer == 0 and not (ORD and NF >= 4) else None, skip=idle)
        stamp(pre + ' G pub')
        if layer == 1 and CLEAN():
            a('v_mov_b32 %s, %s' % (v(vKeep), v(T)))
        a('; ---- layer %d: gather gate/up, activation' % layer)

        def w2_regs():
            if ORD6:
                return
            if W4:
                tr_reads(vW2, vTr, W2 - WO, 2, 4096, 512)
                return
            a('v_and_b32 %s, 32, %s' % (v(T + 1), v(vL)))
            a('v_lshlrev_b32 %s, 6, %s' % (v(T + 1), v(T + 1)))
            a('v_sub_u32 %s, %s, %s' % (v(T + 1), v(vTr), v(T + 1)))
            tr_reads(vW2, vTr, W2 - WO, 1, 4096, 512)
            tr_reads(vW2 + 4, T + 1, W2 - WO + 4096, 1, 4096, 512)

        def ln_all():
            w2_regs()
            ln_mean()
            ln_rstd_a()
            ln_rstd_b(False)
        if layer == 0 and OPT.get('r4', 1):
            cs = {vDs[0]: vD + 16, vDs[1]: vD + 20}

            def issue4(x):
                gload(x, vCons, sLb, BUF_A)
                gload(cs[x], vCons, sLb, BUF_X)

            def spec4(x):
                y = cs[x]
                mask_tag(x)
                mask_tag(y)
                a('v_permlane32_swap_b32 %s, %s' % (v(x + 1), v(x + 3)))
                a('v_permlane32_swap_b32 %s, %s' % (v(y + 1), v(y + 3)))
                a('v_add_f32 %s, %s, %s' % (v(r + 1), v(x + 1), v(x + 3)))
                a('v_add_f32 %s, %s, %s' % (v(r + 5), v(y + 1), v(y + 3)))
                a('v_permlane32_swap_b32 %s, %s' % (v(x), v(x + 2)))
                a('v_permlane32_swap_b32 %s, %s' % (v(y), v(y + 2)))
                a('v_add_f32 %s, %s, %s' % (v(r + 4), v(y), v(y + 2)))
                a('v_add_f32 %s, %s, %s' % (v(r), v(x), v(x + 2)))
            stats_load(k4, vSs[1])
            flush_deferred()
            ring2(vSs, lambda x: stats_load(2, x), lambda x: chk_stats(x, 2), ln_spec, 1, 1, 2)
            issue4(vDs[0])
            ln_mean()
            issue4(vDs[1])
            ln_rstd_a()
            ln_rstd_b(False)
            w2_regs()
            ring2(vDs, issue4, lambda x: chk_byte([x, cs[x]], sTag + 2), spec4, 2, 2, 2)
            a('v_permlane16_swap_b32 %s, %s' % (v(r + 4), v(r + 5)))
            a('v_add_f32 %s, %s, %s' % (v(r + 4), v(r + 4), v(r + 5)))
            L0COL.append(1)
        elif layer == 0:
            loads = [(r, vCons, sLb, BUF_A), (r + 4, vCons, sLb, BUF_X)]

            def data():
                ln_spec(vSs[0])
                for x in loads:
                    gload(*x)

            def spec4():
                mask_tag(r)
                mask_tag(r + 4)
                red_a(r, r)
            flush_deferred()
            poll([(vSs[0], vStC, sLb, 0)], lambda: chk_stats(vSs[0], k4), data, cnt=1, issued=True)
            poll(loads, lambda: chk_byte([r, r + 4], sTag + k4), spec4, work=ln_all, issued=True)
            red_a(r + 4, r + 4)
            red_b(r + 4, vCg)
        else:
            l_gather(k4, spec, ln_spec, [ln_mean, ln_rstd_a, lambda: ln_rstd_b(False)])
        stamp(pre + ' E4 ok')
        if L0COL:
            L0COL.pop()
            a('v_permlane16_swap_b32 %s, %s' % (v(r), v(r + 1)))
            a('v_add_f32 %s, %s, %s' % (v(r), v(r), v(r + 1)))
            dpp('v_add_f32', vCg, r + 4, r + 4, 'row_ror:8')
            dpp('v_add_f32', r, r, r, 'row_ror:8')
        else:
            red_b(r, r)
        a('v_fma_f32 %s, -%s, %s, %s' % (v(r), v(vMean), v(vCg), v(r)))
        a('v_mul_f32 %s, %s, %s' % (v(r), v(r), v(vRs)))
        bf16r(r, r)
        a('v_mul_f32 %s, %s, %s' % (v(r + 1), s(sNl2e), v(r)))
        a('v_exp_f32 %s, %s' % (v(r + 1), v(r + 1)))
        a('v_and_b32_dpp %s, %s, %s row_shl:4 row_mask:0xf bank_mask:0xf' % (v(r + 2), v(r), v(vHmask)))
        a('v_add_f32 %s, 1.0, %s' % (v(r + 1), v(r + 1)))
        a('v_rcp_f32 %s, %s' % (v(r + 1), v(r + 1)))
        a('v_mul_f32 %s, %s, %s' % (v(r), v(r), v(r + 1)))
        bf16r(r, r)
        a('v_mul_f32 %s, %s, %s' % (v(r), v(r), v(r + 2)))
        a('v_cvt_pk_bf16_f32 %s, %s, %s' % (v(r), v(r), v(r)))
        a('ds_write_b16 %s, %s' % (v(vHw), v(r)))
        if W4:
            pass
        elif layer == 0:
            join = newlabel('join')

            def idle_path(idle=idle, join=join, w2_regs=w2_regs):
                a.label(idle)
                w2_regs()
                if EP in (2, 4):
                    epoch(join)
                a('s_branch %s' % join)
            deferred.append(idle_path)
            a.label(join)
        else:
            join = newlabel('join')

            def idle_path1(idle=idle, join=join):
                a.label(idle)
                a('v_mov_b32 %s, %s' % (v(vKeep), s(sTag + 5)))
                if EP in (0, 1, 3):
                    epoch(join)
                a('s_branch %s' % join)
            deferred.append(idle_path1)
            a.label(join)
        a('s_waitcnt lgkmcnt(0)')
        a('s_barrier')
        if layer == 0 and OPT['probe'] == 3 and not (ORD6 and OPT.get('r0', 1)):
            gemv_publish_g(2, vW2, HB, 1, G_D, mid=race_prep, post=race_start)
        else:
            gemv_publish_g(2, vW2, HB, 2 * layer + 1, G_D, mid=clean_a if layer == 1 and CLEAN() & 2 and not OPT['cend'] & 2 else None)
        stamp(pre + ' D pub')

    a('; ---- final sum (group 0 only)')
    if OPT.get('opack'):
        a('v_mov_b32 %s, 0xffff' % v(T + 11))
        a('v_and_b32 %s, 0x7c, %s' % (v(T + 12), v(vXw)))
    if CLEAN() & 4:
        fin = newlabel('last')
        if OPT.get('cx0', 1):
            a('s_cmp_ge_u32 %s, 4' % s(sGam))
            a('s_cbranch_scc1 L_fin')
        clean_b_prep()
        a('s_cmp_eq_u32 %s, 0' % s(sGam))
        a('s_cbranch_scc1 %s' % fin)

        def clean_all():
            clean_b()
            if OPT['cend'] & 2:
                clean_a()
            if OPT['cend'] & 1:
                clean_x()
        a('s_waitcnt vmcnt(%d)' % 0)
        clean_all()
        a('s_branch L_fin')
        flush_deferred(False)
        a.label(fin)
        g_pace(3)
        x_gather(3, G_D, work=clean_all, cnt=1 + bin(OPT['cend'] & 3).count('1'))
    else:
        if W4:
            sk = newlabel('noep')
            a('s_lshl_b32 s55, s2, 2')
            a('s_add_u32 s55, s55, %s' % s(sW))
            a('s_cmp_lg_u32 s55, %d' % (255 * 4))
            a('s_cbranch_scc1 %s' % sk)
            a('s_add_u32 s55, %s, 16' % s(sE))
            a('v_mov_b32 %s, s55' % v(T + 2))
            a('s_mov_b64 exec, 1')
            a('global_store_dword %s, %s, s[26:27]' % (v(vZero), v(T + 2)))
            a('s_branch L_fin')
            a.label(sk)
        if OPT.get('wb1') and FAST[0]:
            sk = newlabel('nowb')
            a('s_lshl_b32 s55, s2, 2')
            a('s_add_u32 s55, s55, %s' % s(sW))
            a('s_cmp_lg_u32 s55, %d' % (64 * 4))
            a('s_cbranch_scc1 %s' % sk)
            if OPT['wb1'] == 2:
                a('s_waitcnt vmcnt(0)')
            a('buffer_wbl2 sc1')
            a.label(sk)
        a('s_cmp_lg_u32 %s, 0' % s(sGam))
        a('s_cbranch_scc1 L_fin')
        g_pace(3)
        x_gather(3, G_D)
    sc = ' sc1' if OPT['clean'] & 8 else ''
    if OPT.get('opack'):
        a('v_mov_b32 %s, %s' % (v(T + 1), v(T)))
        a('v_permlane16_swap_b32 %s, %s' % (v(T), v(T + 1)))
        a('v_bfi_b32 %s, %s, %s, %s' % (v(T), v(T + 11), v(T), v(T + 1)))
        if OPT['opack'] == 2:
            a('v_mov_b32 %s, %s' % (v(T + 1), v(T)))
            a('v_permlane32_swap_b32 %s, %s' % (v(T), v(T + 1)))
            a('s_mov_b64 exec, 15')
            a('global_store_dwordx2 %s, %s, s[22:23]%s' % (v(T + 12), v(T, 2), sc))
        else:
            a('s_mov_b32 exec_lo, 15')
            a('s_mov_b32 exec_hi, 15')
            a('global_store_dword %s, %s, s[22:23]%s' % (v(T + 12), v(T), sc))
    else:
        a('s_mov_b32 exec_lo, 0x000f000f')
        a('s_mov_b32 exec_hi, 0x000f000f')
        a('global_store_short %s, %s, s[22:23]%s' % (v(vXw), v(T), sc))


front()
FAST[0] = bool(OPT['fast'])
tail()
a.label('L_fin')
if OPT.get('dirty'):
    if 'dx' in OPT:
        a('s_and_b32 s55, s2, 7')
        a('s_cmp_eq_u32 s55, 0')
        a('s_cbranch_scc%d L_nodirty' % OPT['dx'])
    a('s_mov_b64 exec, -1')
    a('s_lshl_b32 s55, s2, 2')
    a('s_add_u32 s55, s55, %s' % s(sW))
    a('s_lshl_b32 s55, s55, 15')
    a('s_add_u32 s55, s55, 0x400000')
    a('v_lshl_add_u32 %s, %s, 4, s55' % (v(T + 1), v(vL)))
    for i in range(OPT['dirty']):
        a('global_store_dwordx4 %s, %s, s[26:27]' % (v(T + 1), v(vD, 4)))
        a('v_add_u32 %s, 1024, %s' % (v(T + 1), v(T + 1)))
if OPT.get('dirty'):
    a.label('L_nodirty')
if OPT.get('dbgpol'):
    a('s_mov_b64 exec, -1')
    a('v_xor_b32 %s, %s, %s' % (v(T + 2), v(vConsG), v(vConsG0)))
    a('v_readfirstlane_b32 s6, %s' % v(T + 2))
    a('s_cmp_lg_u32 s6, 0')
    a('s_cselect_b32 s6, 1, 0')
    a('s_lshr_b32 s7, %s, 2' % s(sXcc))
    a('s_xor_b32 s6, s6, s7')
    a('s_lshr_b32 s7, %s, 1' % s(sW))
    a('s_xor_b32 s6, s6, s7')
    a('s_lshl_b32 s6, s6, 4')
    a('s_lshl_b32 s6, 1, s6')
    a('v_mov_b32 %s, s6' % v(T + 2))
    a('s_and_b32 s7, %s, 7' % s(sXcc))
    a('s_lshl_b32 s7, s7, 2')
    a('v_mov_b32 %s, s7' % v(T + 3))
    a('s_mov_b64 exec, 1')
    a('global_atomic_add %s, %s, s[24:25]' % (v(T + 3), v(T + 2)))
if OPT.get('wb'):
    a('buffer_wbl2 sc1')
if OPT.get('delay'):
    if 'only' in OPT:
        a('s_cmp_lg_u32 s2, %d' % OPT['only'])
        a('s_cbranch_scc1 L_end')
    a.label('L_dly')
    a('s_memrealtime s[6:7]')
    a('s_waitcnt lgkmcnt(0)')
    a('s_sub_u32 s8, s6, s100')
    a('s_cmp_lt_u32 s8, %d' % OPT.get('until', 3000))
    a('s_cbranch_scc1 L_dly')
if DIAG:
    a('s_mov_b64 exec, -1')
    a('s_memrealtime s[4:5]')
    a('s_waitcnt lgkmcnt(0)')
    a('v_mov_b32 %s, 0' % v(T))
    for i in range(len(stamps)):
        a('v_writelane_b32 %s, %s, %d' % (v(T), s(stamp_regs[i]), i))
    a('v_writelane_b32 %s, s4, %d' % (v(T), len(stamps)))
    a('v_xor_b32 %s, %s, %s' % (v(T + 2), v(vConsG), v(vConsG0)))
    a('v_readfirstlane_b32 s6, %s' % v(T + 2))
    a('v_writelane_b32 %s, s6, 62' % v(T))
    a('v_writelane_b32 %s, s12, 61' % v(T))
    a('v_writelane_b32 %s, s13, 60' % v(T))
    a('v_writelane_b32 %s, %s, 63' % (v(T), s(sXcc)))
    a('s_lshl_b32 s55, s2, 2')
    a('s_add_u32 s55, s55, %s' % s(sW))
    a('s_lshl_b32 s55, s55, 8')
    a('s_add_u32 s55, s55, %d' % WS_DIAG)
    a('v_lshl_add_u32 %s, %s, 2, s55' % (v(T + 1), v(vL)))
    a('global_store_dword %s, %s, s[26:27]' % (v(T + 1), v(T)))
a.label('L_end')
a('s_endpgm')
flush_deferred(False)
a.label('L_fastend')
if OPT['fast']:
    a('; ==== the same phases with write-through stores: taken when the group is spread over several XCDs')
    a.label('L_slowtail')
    FAST[0] = False
    a.hist = []
    a('s_nop 1')
    if LZ:
        sc_copies()
    tail()
    a('s_branch L_fin')
    flush_deferred(False)
    a('s_endpgm')
a.raw('''.section .rodata,"a"
.p2align 6
.amdhsa_kernel %s_kernel
  .amdhsa_next_free_vgpr %d
  .amdhsa_next_free_sgpr 102
  .amdhsa_accum_offset %d
  .amdhsa_group_segment_fixed_size 0
  .amdhsa_kernarg_size 96
  .amdhsa_user_sgpr_count 2
  .amdhsa_user_sgpr_kernarg_segment_ptr 1
  .amdhsa_system_sgpr_workgroup_id_x 1
  .amdhsa_float_denorm_mode_32 3
.end_amdhsa_kernel''' % (NAME, NVGPR, NVGPR))
sys.stdout.write(a.text())
if DIAG:
    sys.stderr.write('STAMPS ' + '|'.join(stamps + ['end']) + '\n')
sys.stderr.write('nops inserted: %d\n' % a.nops)
```

```python
import sys, math, struct
from asm import Asm

NAME = 'interleave_layers__sliding_block_cached__glu_gated_swiglu__decode'
OPT = dict(diag=0, fast=1, nt=1, kw=5, fe=0, wol=1, probe=3, vw=1, thr=90, pages=2, cnt=0, early=2, d0=0, refresh=0, spipe=1, late_rs=1, na=0, nsl=0, w2e=0, ff=7, vlate=1, fl=0, flp=0, pad=0, nva=8, ksplit=0, wopos=0, ool=0, stg=1, vq=0, clean=0, cend=1, opre=1)
for a_ in sys.argv[1:]:
    k_, v_ = a_.split('=')
    OPT[k_] = int(v_)
DIAG = OPT['diag']
NT = {0: '', 1: ' nt', 2: ' sc1 nt', 3: ' sc0 sc1 nt', 4: ' sc0 nt', 5: ' sc1', 6: ' sc0 sc1'}[OPT['nt']]
STAGE = not DIAG or DIAG == 6

XB, ONES, QB, OB, HB, MB, DUMMY, PB = 0, 128, 256, 512, 768, 896, 960, 1024
WQ, VI, WO = 4096, 20480, 53248
W1, W3, W2 = WO + 16384, WO + 24576, WO + 32768
W4 = OPT.get('w4', 0)
KI = WO + 38912 + 2048 * W4
LDS_BYTES = KI + 32768
WS_F = 0x10000
WS_L, WS_P, WS_G, WS_DIAG = 0x40000, 0xc0000, 0x100000, 0x200000
WS_L2D = 0x140000 + 0x100000 * OPT['pad']
BUF_A, BUF_X, BUF_B, STATS, VOTES = 0, 1024, 2048, 3072, 7168
ST0 = 8192
LZ, PB_, FL2 = OPT.get('lz', 1), OPT.get('pb', 2), OPT.get('fl2', 0)
PAD = OPT['pad']
GOFF = 4096 * PAD
G_C, G_D, G_H = -GOFF, (2048 << PAD) - GOFF, 1024 << PAD
G_X = (0x20000 << PAD) | 0x2000
WSH = 1 - PAD

vL, vCons, vPubL, vPw, vPubG, vStP, vStC, vTagM, vStP2 = range(1, 10)
vXw, vQw, vHw, vOpR, vXopR, vConsG, vConsG0, vCs, vZero, vMw = range(10, 20)
trq, vTr, vHmask, vX, vCq, vCg, vMean, vRs = 20, 22, 23, 24, 25, 26, 27, 28
vMr, vF = 29, 30
vWQ, vK, vV, vWO, vW13, vW2 = 32, 48, 80, 112, 128, 144
wo0, wo1, f0, f1, vPre, vVo = 144, 145, 146, 147, 148, 149
T = 152
vC = T + 12
vA = 176
vD = 192
vP = 224
vSt, vSt4, vKeep = 232, 236, 238
vCl = 20
vDs, vSs = [240, 244], [248, 252]
NVGPR = 256
sW, sJ, sGam, sPr, sE, sC0, sCnt, sXcc, sTo = 28, 29, 30, 31, 32, 33, 34, 35, 36
sLb, sGb0, sGb1 = 38, 40, 14
sPc, sT1 = 42, 44
sCs, sMaskHi, sInv512, sEps, sNl2e = 50, 51, 52, 53, 54
sM0, sM1, sHi, sCl = 56, 42, 46, 44
sTag = 60

a = Asm()
stamp_regs = list(range(70, 102, 2))
stamps = []
nstamp = [0]
lbl = [0]
FAST = [False]


def v(n, cnt=1):
    return 'v%d' % n if cnt == 1 else 'v[%d:%d]' % (n, n + cnt - 1)


def s(n, cnt=1):
    return 's%d' % n if cnt == 1 else 's[%d:%d]' % (n, n + cnt - 1)


def stamp(name):
    nstamp[0] += 1
    if OPT.get('delay') == 3 and OPT.get('at', 1) == nstamp[0]:
        a('s_memrealtime s[100:101]')
        sys.stderr.write('delay anchored at ' + name + '\n')
    keep = {0: False, 1: name[:2] not in ('L1', 'x ') and name[0] not in 'Gz', 2: name[:2] == 'L1', 5: name[0] == 'G' or name[3:] in ('O pub', 'D pub', 'E3 ok', 'E5 ok') or name in ('L0 E1 ok', 'L0 S pub', 'L0 E2 ok'),
            6: False, 7: name[:2] in ('L1', 'x '), 8: name[:2] == 'z1' or name in ('L1 E1 ok', 'L1 S pub', 'L1 E2 ok', 'L1 O pub', 'L1 E5 ok', 'L1 Q pub')}[DIAG]
    if not (keep or DIAG and name == 'start'):
        return
    if name not in stamps:
        if len(stamps) >= len(stamp_regs):
            return
        stamps.append(name)
    r = stamp_regs[stamps.index(name)]
    if OPT['cnt'] and name != 'start':
        a('s_sub_u32 %s, 0x40000, %s' % (s(r), s(sTo)))
    else:
        a('%s %s' % ('s_memtime' if DIAG in (7, 8) and name != 'x rt0' else 's_memrealtime', s(r, 2)))


def f32(x):
    return '0x%08x' % struct.unpack('<I', struct.pack('<f', x))[0]


def newlabel(p):
    lbl[0] += 1
    return 'L_%s_%d' % (p, lbl[0])


def lgkm(n):
    a('s_waitcnt lgkmcnt(%d)' % (n if STAGE else 0))


def mfma(d, x, y, c=None):
    a('v_mfma_f32_16x16x32_bf16 %s, %s, %s, %s' % (v(d, 4), v(x, 4), v(y, 4), '0' if c is None else v(c, 4)))


def dpp(op, d, x, y, ctl, rm=0xf):
    a('%s_dpp %s, %s, %s %s row_mask:0x%x bank_mask:0xf' % (op, v(d), v(x), v(y), ctl, rm))


X1, X2 = 'quad_perm:[1,0,3,2]', 'quad_perm:[2,3,0,1]'


def lstore(op, addr, data, off):
    a('%s %s, %s, %s offset:%d%s' % (op, addr, data, s(sLb, 2), off, '' if FAST[0] and not OPT.get('allsc') else ' sc1'))


def gload(d, vo, b, im):
    a('global_load_dwordx4 %s, %s, %s offset:%d sc1' % (v(d, 4), v(vo), s(b, 2), im))


def tick():
    a('s_sub_u32 %s, %s, 1' % (s(sTo), s(sTo)))
    a('s_cbranch_scc1 L_end')


deferred = []


def flush_deferred(jump=True):
    if not deferred:
        return
    l = newlabel('skip')
    if jump:
        a('s_branch %s' % l)
    hist = a.hist
    while deferred:
        a.hist = []
        deferred.pop(0)()
    a.hist = hist
    a.label(l)


def poll(loads, check, spec, work=None, cnt=0, issued=False, backoff=0, onretry=None):
    top, ent = newlabel('poll'), newlabel('pent')
    if not issued:
        for x in loads:
            gload(*x)
    if work:
        work()

    def retry():
        a.label(top)
        tick()
        if backoff:
            a('s_sleep %d' % backoff)
        if onretry:
            onretry()
        for x in loads:
            gload(*x)
        if cnt:
            a('s_waitcnt vmcnt(0)')
        if OPT['ool']:
            a('s_branch %s' % ent)
    if OPT['ool']:
        deferred.append(retry)
    else:
        a('s_branch %s' % ent)
        retry()
    a.label(ent)
    a('s_waitcnt vmcnt(%d)' % cnt)
    check()
    if spec:
        spec()
    a('s_cbranch_vccnz %s' % top)


def ring2(sets, issue, check, spec, cnt1, cnt0, first):
    top, ent, done = newlabel('ring'), newlabel('rent'), newlabel('rdone')

    def retry():
        a.label(top)
        tick()
        issue(sets[0])
        a('s_waitcnt vmcnt(%d)' % cnt1)
        check(sets[1])
        spec(sets[1])
        a('s_cbranch_vccz %s' % done)
        issue(sets[1])
        if first != cnt0:
            a('s_waitcnt vmcnt(%d)' % cnt0)
        if OPT['ool']:
            a('s_branch %s' % ent)
    if OPT['ool']:
        deferred.append(retry)
    else:
        a('s_branch %s' % ent)
        retry()
    a.label(ent)
    a('s_waitcnt vmcnt(%d)' % first)
    check(sets[0])
    spec(sets[0])
    a('s_cbranch_vccnz %s' % top)
    a.label(done)


def chk_byte(regs, tag):
    if len(regs) == 1:
        a('v_cmp_ne_u32_sdwa vcc, %s, %s src0_sel:BYTE_0 src1_sel:BYTE_0' % (v(regs[0]), s(tag)))
    else:
        a('v_bitop3_b32 %s, %s, %s, %s bitop3:0x7e' % (v(T + 23), v(regs[0]), v(regs[1]), s(tag)))
        a('v_cmp_ne_u32_sdwa vcc, %s, %s src0_sel:BYTE_0 src1_sel:DWORD' % (v(T + 23), v(vZero)))


def chk_stats(x, k):
    a('v_cmp_ne_u32 vcc, %s, %s' % (s(sTag + k), v(x + (2 if k % 3 == 1 else 1))))


def red_a(x, c):
    a('v_permlane32_swap_b32 %s, %s' % (v(x + 1), v(x + 3)))
    a('v_add_f32 %s, %s, %s' % (v(c + 1), v(x + 1), v(x + 3)))
    a('v_permlane32_swap_b32 %s, %s' % (v(x), v(x + 2)))
    a('v_add_f32 %s, %s, %s' % (v(c), v(x), v(x + 2)))


def red_b(c, out):
    a('v_permlane16_swap_b32 %s, %s' % (v(c), v(c + 1)))
    a('v_add_f32 %s, %s, %s' % (v(c), v(c), v(c + 1)))
    dpp('v_add_f32', out, c, c, 'row_ror:8')


def mask_tag(x):
    a('v_and_b32 %s, %s, %s' % (v(x), s(sMaskHi), v(x)))


def bf16r(dst, src):
    a('v_cvt_pk_bf16_f32 %s, %s, %s' % (v(dst), v(src), v(src)))
    a('v_and_b32 %s, 0xffff0000, %s' % (v(dst), v(dst)))


def allred(op, x, t, bits):
    for b in bits:
        if b < 4:
            dpp(op, x, x, x, {0: X1, 1: X2, 3: 'row_ror:8'}[b])
        else:
            a('v_mov_b32 %s, %s' % (v(t), v(x)))
            a('v_permlane%d_swap_b32 %s, %s' % (16 if b == 4 else 32, v(x), v(t)))
            a('%s %s, %s, %s' % (op, v(x), v(x), v(t)))


def set_tags(k):
    a('v_mov_b32 %s, %s' % (v(vSt + 2), s(sTag + k)))
    if k % 3 != 1:
        a('v_cndmask_b32 %s, %s, %s, %s' % (v(vSt4 + 1), v(vSt + 2), v(vSt + 3), s(sHi, 2)))


def ln_stats(k, addr=None, mid=None):
    g = vSt4
    a('v_mul_f32 %s, %s, %s' % (v(T + 7), v(g), v(g)))
    if mid:
        mid()
    a('v_permlane32_swap_b32 %s, %s' % (v(g), v(T + 7)))
    a('v_add_f32 %s, %s, %s' % (v(g), v(g), v(T + 7)))
    allred('v_add_f32', g, None, [0, 1])
    dpp('v_add_f32', g, g, g, 'row_bcast:15', 0xa)
    a('s_mov_b64 exec, %s' % s(sM1, 2))
    lstore('global_store_dwordx2', v(addr or vStP2), v(g, 2), 512 * (k & 1))
    a('s_mov_b64 exec, -1')


def ln_spec(x):
    a('v_permlane32_swap_b32 %s, %s' % (v(x), v(x + 2)))
    a('v_add_f32 %s, %s, %s' % (v(vC), v(x), v(x + 2)))


def ln_mean():
    c = vC
    allred('v_add_f32', c, c + 1, [4, 3, 0, 1])
    a('v_mul_f32 %s, %s, %s' % (v(c), s(sInv512), v(c)))
    a('v_mov_b32 %s, %s' % (v(c + 1), v(c)))
    a('v_permlane32_swap_b32 %s, %s' % (v(c), v(c + 1)))
    bf16r(vMean, c)


def ln_rstd_a():
    c = vC
    a('v_fma_f32 %s, -%s, %s, %s' % (v(c + 1), v(c), v(c), v(c + 1)))
    a('v_max_f32 %s, 0, %s' % (v(c + 1), v(c + 1)))
    bf16r(c + 1, c + 1)
    a('v_add_f32 %s, %s, %s' % (v(c + 1), s(sEps), v(c + 1)))
    bf16r(c + 1, c + 1)
    a('v_sqrt_f32 %s, %s' % (v(c + 1), v(c + 1)))


def ln_rstd_b(scale):
    c = vC
    bf16r(c + 1, c + 1)
    a('v_rcp_f32 %s, %s' % (v(vRs), v(c + 1)))
    if scale:
        a('v_mul_f32 %s, %s, %s' % (v(vCs), s(sCs), v(vRs)))


def stats_load(k, x=vSs[0]):
    gload(x, vStC, sLb, 512 * (k & 1))


def stats_ring_u(k, st_spec, first_data, nd):
    top, mid, done = newlabel('su'), newlabel('sm'), newlabel('sd')
    a('s_waitcnt vmcnt(2)')
    first_data()
    chk_stats(vSs[0], k)
    st_spec(vSs[0])
    a('s_cbranch_vccz %s' % done)
    stats_load(k, vSs[0])
    a('s_waitcnt vmcnt(%d)' % (1 + nd))
    a('s_branch %s' % mid)
    a.label(top)
    tick()
    stats_load(k, vSs[0])
    a('s_waitcnt vmcnt(1)')
    a.label(mid)
    chk_stats(vSs[1], k)
    st_spec(vSs[1])
    a('s_cbranch_vccz %s' % done)
    stats_load(k, vSs[1])
    a('s_waitcnt vmcnt(1)')
    chk_stats(vSs[0], k)
    st_spec(vSs[0])
    a('s_cbranch_vccnz %s' % top)
    a.label(done)


def l_gather(k, spec, st_spec, chain, hook=None):
    buf = BUF_A if k % 2 == 0 else BUF_B

    def d_issue(x):
        gload(x, vCons, sLb, buf)
    rf = OPT['refresh'] and OPT['d0']

    def s_issue(x):
        stats_load(k, x)
        if rf:
            d_issue(vDs[0])
    U0 = OPT.get('u0', 0) >> (k % 3) & 1
    if U0:
        stats_load(k, vSs[1])
        flush_deferred()
        stats_ring_u(k, st_spec, lambda: d_issue(vDs[0]), 1)
        if OPT.get('u1', 0):
            chain[0]()
            d_issue(vDs[1])
        else:
            d_issue(vDs[1])
            chain[0]()
        for c in chain[1:]:
            c()
        ring2(vDs, d_issue, lambda x: chk_byte([x], sTag + k), spec, 1, 1, 1)
        return
    if OPT['d0']:
        d_issue(vDs[0])
    if OPT['spipe']:
        stats_load(k, vSs[1])
        flush_deferred()
        ring2(vSs, s_issue, lambda x: chk_stats(x, k), st_spec, 2 if rf else 1, 3 if rf else 1, 2 + OPT['d0'])
    else:
        flush_deferred()
        poll([(vSs[0], vStC, sLb, 512 * (k & 1))], lambda: chk_stats(vSs[0], k), lambda: st_spec(vSs[0]), cnt=1 + OPT['d0'], issued=True)
    if k >= 3:
        stamp('x st%d' % k)
    if not OPT['d0']:
        d_issue(vDs[0])
        chain[0]()
        d_issue(vDs[1])
    else:
        d_issue(vDs[1])
        chain[0]()
    if hook:
        hook()
    for c in chain[1:]:
        c()
    ring2(vDs, d_issue, lambda x: chk_byte([x], sTag + k), spec, 1, 1, 1)


def x_gather(gi, imm, work=None, cnt=0):
    r = vP
    base = sGb0 if gi < 2 else sGb1

    XO = OPT.get('xo', 0)

    def check():
        if XO:
            a('v_bitop3_b32 %s, %s, %s, %s bitop3:0x7e' % (v(T + 23), v(r), v(r + 4), s(sTag + 6 + gi)))
        else:
            chk_byte([r, r + 4], sTag + 6 + gi)

    def spec():
        a('v_pk_add_f32 %s, %s, %s' % (v(r + 2, 2), v(r + 2, 2), v(r + 6, 2)))
        a('v_add_f32 %s, %s, %s' % (v(r + 1), v(r + 1), v(r + 5)))
        mask_tag(r)
        mask_tag(r + 4)
        a('v_add_f32 %s, %s, %s' % (v(r), v(r), v(r + 4)))
        red_a(r, r)
        if XO:
            a('v_cmp_ne_u32_sdwa vcc, %s, %s src0_sel:BYTE_0 src1_sel:DWORD' % (v(T + 23), v(vZero)))
            red_b(r, r)
    ad, onretry = vConsG, None
    if OPT.get('alt', 0) >> gi & 1:
        ad = T + 21
        a('v_mov_b32 %s, %s' % (v(ad), v(vConsG)))

        def onretry():
            a('v_xor_b32 %s, 0x%x, %s' % (v(ad), G_X, v(ad)))
    poll([(r, ad, base, imm), (r + 4, ad, base, imm + G_H)], check, spec, work=work, cnt=cnt,
         backoff=OPT.get('g%ds' % gi, 0), onretry=onretry)
    if not XO:
        red_b(r, r)
    dpp('v_add_f32', r, r, r, 'row_ror:4')
    bf16r(r, r)
    a('v_add_f32 %s, %s, %s' % (v(r), v(r), v(vX)))
    a('v_cvt_pk_bf16_f32 %s, %s, %s' % (v(T), v(r), v(r)))


def x_to_lds(k):
    a('ds_write_b16 %s, %s offset:%d' % (v(vXw), v(T), XB))
    a('v_and_b32 %s, 0xffff0000, %s' % (v(vSt4), v(T)))
    ln_stats(k, mid=lambda: a('v_and_b32 %s, 0xffff0000, %s' % (v(vX), v(T))))


def tr_pair(dst, addr, off, gstride):
    for g in range(2):
        a('ds_read_b64_tr_b16 %s, %s offset:%d' % (v(dst + 2 * g, 2), v(addr), off + g * gstride))


def proj(wreg, k, layer, wsrc=None, first=False, skip=None):
    rd = vXopR if layer == 0 else vOpR
    a('s_barrier')
    for kk in range(2):
        a('ds_read_b128 %s, %s offset:%d' % (v(vA + 4 * kk, 4), v(rd), XB + 64 * kk))
        if wsrc:
            for cg in range(2):
                ad, off, ks, gs = wsrc[cg]
                tr_pair(wreg + 8 * cg + 4 * kk, ad, off + kk * ks, gs)
    if skip:
        a('s_cbranch_scc1 %s' % skip)
    if not first and OPT['early'] == 1:
        stats_load(k)
    lgkm(7 if wsrc else 1)
    mfma(vD, vA, wreg)
    if wsrc:
        lgkm(5)
    mfma(vD + 4, vA, wreg + 8)
    if not first and OPT['early'] == 2:
        stats_load(k)
    lgkm(2 if wsrc else 0)
    mfma(vD, vA + 4, wreg + 4, vD)
    if wsrc:
        lgkm(0)
    mfma(vD + 4, vA + 4, wreg + 12, vD + 4)
    if not first and OPT['early'] == 0:
        stats_load(k)
    if layer == 1:
        a('s_mov_b32 exec_hi, 0')
    a('v_cndmask_b32 %s, %s, %s, %s' % (v(T), v(vD), v(vD + 4), s(sM0, 2)))
    a('v_bfi_b32 %s, %s, %s, %s' % (v(T), v(vTagM), s(sTag + k), v(T)))
    lstore('global_store_dword', v(vPubL), v(T), BUF_A if k % 2 == 0 else BUF_B)
    if layer == 1:
        a('s_mov_b32 exec_hi, -1')


def tr_reads(dst, addr, base, nk, kstride, gstride):
    for kk in range(nk):
        for g in range(2):
            a('ds_read_b64_tr_b16 %s, %s offset:%d' % (v(dst + 4 * kk + 2 * g, 2), v(addr), base + kk * kstride + g * gstride))


def gemv_publish_g(nk, wreg, src, gi, imm, tr=False, mid=None, post=None):
    for kk in range(nk):
        a('ds_read_b128 %s, %s offset:%d' % (v(vA + 4 * kk, 4), v(vOpR), src + 64 * kk))
        if tr:
            tr_pair(wreg + 4 * kk, vTr, 4096 * kk, 512)
    if mid:
        mid()
    for kk in range(nk):
        lgkm((nk - 1 - kk) * (3 if tr else 1))
        mfma(vD, vA + 4 * kk, wreg + 4 * kk, vD if kk else None)
    if post:
        post()
    if not PAD:
        a('s_mov_b32 exec_hi, 0')
    a('v_bfi_b32 %s, %s, %s, %s' % (v(T), v(vTagM), s(sTag + 6 + gi), v(vD)))
    st = 'global_store_dword %s, %s, %s offset:%d sc1' % (v(vPubG), v(T), s(sGb0 if gi < 2 else sGb1, 2), imm)
    if OPT['na'] >> gi & 1:
        a('s_mov_b32 exec_lo, s37')
        a(st)
        a('s_not_b32 exec_lo, s37')
        a(st)
        a('s_mov_b64 exec, -1')
    else:
        a(st)
        if not PAD:
            a('s_mov_b32 exec_hi, -1')


def g_pace(gi):
    flush_deferred()
    if OPT['na'] >> gi & 1:
        a('s_waitcnt vmcnt(1)')
        for i in range(OPT['nsl']):
            a('s_nop 7')
    else:
        a('s_waitcnt vmcnt(0)')
    if OPT.get('g%dd' % gi):
        a('s_sleep %d' % OPT['g%dd' % gi])
    stamp('G%d ack' % gi)


def probe_near():
    a('s_not_b32 s4, %s' % s(sE))
    a('s_xor_b32 s55, %s, 8192' % s(sPr))
    a('s_waitcnt lgkmcnt(0)')
    a('s_load_dword s4, s[26:27], %s' % s(sPr))
    a('s_load_dword s5, s[26:27], s55')
    a('s_lshl_b32 s59, %s, 2' % s(sJ))
    a('s_add_u32 s59, s59, %s' % s(sW))
    a('s_lshl_b32 s59, s59, 3')
    a('s_add_u32 s59, s59, %d' % VOTES)
    a('v_mov_b32 %s, s59' % v(T + 1))
    a('v_mov_b32 %s, %s' % (v(T + 3), s(sTag + 2)))
    a('s_waitcnt lgkmcnt(1)')
    a('s_memtime s[8:9]')
    a('s_cmp_eq_u32 s4, %s' % s(sE))
    a('s_cselect_b32 s6, %d, -1' % OPT['thr'])
    a('s_waitcnt lgkmcnt(0)')
    a('s_memtime s[10:11]')
    a('s_waitcnt lgkmcnt(0)')
    a('s_sub_u32 s7, s10, s8')
    a('s_cmp_gt_u32 s7, s6')
    a('s_cselect_b32 s6, 1, 0')
    if DIAG:
        a('s_mov_b32 s12, s7')
    a('v_mov_b32 %s, s6' % v(T + 2))
    a('s_mov_b64 exec, 1')
    lstore('global_store_dwordx2', v(T + 1), v(T + 2, 2), 0)
    a('s_mov_b64 exec, -1')


def race_prep():
    a('s_not_b32 s4, %s' % s(sTag + 6 if PB_ else sE))
    a('s_xor_b32 s5, %s, 8192' % s(sPr))
    a('v_mov_b32 %s, %s' % (v(T + 4), s(sPr)))


def race_start():
    a('global_load_dword %s, %s, s[26:27] sc1' % (v(T + 5), v(T + 4)))
    a('s_load_dword s4, s[26:27], s5')


def race_finish(behind):
    a('s_lshl_b32 s59, %s, 2' % s(sJ))
    a('s_add_u32 s59, s59, %s' % s(sW))
    a('s_lshl_b32 s59, s59, 3')
    a('s_add_u32 s59, s59, %d' % VOTES)
    a('v_mov_b32 %s, s59' % v(T + 1))
    a('v_mov_b32 %s, %s' % (v(T + 3), s(sTag + 2)))
    a('s_waitcnt vmcnt(%d)' % behind)
    a('s_cmp_eq_u32 s4, %s' % s(sE))
    a('s_cselect_b32 s6, 1, 0')
    if DIAG:
        a('s_mov_b32 s12, s6')
    a('v_mov_b32 %s, s6' % v(T + 2))
    a('s_mov_b64 exec, 1')
    lstore('global_store_dwordx2', v(T + 1), v(T + 2, 2), 0)
    a('s_mov_b64 exec, -1')
    a('s_waitcnt lgkmcnt(0)')


def race_pick():
    a('s_lshr_b32 s55, %s, 1' % s(sW))
    a('s_xor_b32 s59, s55, 1')
    a('s_mul_i32 s55, s55, 0x%x' % G_X)
    a('s_mul_i32 s59, s59, 0x%x' % G_X)
    if PB_:
        a('s_not_b32 s6, %s' % s(sTag + 6))
    a('s_waitcnt vmcnt(1)')
    a('s_cmp_lg_u32 s4, s6' if PB_ else 's_cmp_eq_u32 s4, %s' % s(sE))
    a('s_cselect_b32 s55, s59, s55')
    a('v_xor_b32 %s, s55, %s' % (v(vConsG), v(vConsG0)))
    if OPT['na']:
        a('s_cmp_eq_u32 s55, 0')
        a('s_cselect_b32 s37, 0xffff, %s' % s(sM0))


def count_votes():
    a('v_and_b32 %s, 31, %s' % (v(T + 4), v(vL)))
    a('v_lshlrev_b32 %s, 3, %s' % (v(T + 4), v(T + 4)))
    a('v_add_u32 %s, %d, %s' % (v(T + 4), VOTES, v(T + 4)))
    if OPT['vw'] and not OPT['vlate']:
        a('s_waitcnt vmcnt(0)')
    a('global_load_dwordx2 %s, %s, %s sc1' % (v(T + 2, 2), v(T + 4), s(sLb, 2)))
    a('s_lshr_b32 s55, %s, 1' % s(sW) if WSH else 's_and_b32 s55, %s, 1' % s(sW))
    a('s_xor_b32 s59, s55, 1')
    a('s_waitcnt vmcnt(0)')
    if OPT['probe'] == 2:
        a('v_cmp_eq_u32 vcc, %s, %s' % (s(sTag + 2), v(T + 3)))
        a('v_cmp_eq_u32 s[6:7], 0, %s' % v(T + 2))
        a('s_and_b32 s4, vcc_lo, s6')
        a('s_andn2_b32 s5, vcc_lo, s6')
    else:
        a('v_xor_b32 %s, %s, %s' % (v(T + 3), s(sTag + 2), v(T + 3)))
        a('v_xor_b32 %s, 1, %s' % (v(T + 2), v(T + 2)))
        a('v_or_b32 %s, %s, %s' % (v(T + 2), v(T + 2), v(T + 3)))
        a('v_cmp_eq_u32 vcc, 0, %s' % v(T + 2))
        a('s_and_b32 s4, vcc_lo, 0x%x' % (0x33333333 if WSH else 0x55555555))
        a('s_and_b32 s5, vcc_lo, 0x%x' % (0xcccccccc if WSH else 0xaaaaaaaa))
    a('s_bcnt1_i32_b32 s4, s4')
    a('s_bcnt1_i32_b32 s5, s5')
    if DIAG:
        a('s_lshl_b32 s13, s4, 8')
        a('s_add_u32 s13, s13, s5')
    a('s_cmp_ge_u32 s4, s5')
    a('s_cselect_b32 s55, s55, s59')
    if OPT['na']:
        a('s_cmp_eq_u32 s55, 0')
        a('s_cselect_b32 s37, 0xffff, %s' % s(sM0))
    a('s_mul_i32 s55, s55, 0x%x' % G_X)
    a('v_xor_b32 %s, s55, %s' % (v(vConsG), v(vConsG0)))


def flag_store(val):
    sk = newlabel('nofl')
    a('s_or_b32 s55, %s, %s' % (s(sJ), s(sW)))
    a('s_cbranch_scc1 %s' % sk)
    a('s_lshl_b32 s55, %s, 7' % s(sGam))
    a('s_add_u32 s55, s55, %d' % WS_F)
    a('v_lshl_add_u32 %s, %s, 2, s55' % (v(T + 21), v(vL)))
    a('v_mov_b32 %s, %s' % (v(T + 20), s(val)))
    a('s_mov_b32 exec_hi, 0')
    a('global_store_dword %s, %s, s[26:27] sc1' % (v(T + 21), v(T + 20)))
    a('s_mov_b32 exec_hi, -1')
    a.label(sk)


def flag_load():
    a('s_mov_b32 exec_hi, 0')
    a('global_load_dword %s, %s, s[26:27] sc1' % (v(T + 6), v(T + 5)))
    a('s_mov_b32 exec_hi, -1')


def flag_wait(cnt):
    top, ent = newlabel('fl'), newlabel('fle')
    a('s_branch %s' % ent)
    a.label(top)
    tick()
    flag_load()
    a('s_waitcnt vmcnt(0)')
    a.label(ent)
    a('s_waitcnt vmcnt(%d)' % cnt)
    a('v_cmp_ne_u32 vcc, %s, %s' % (s(sTag + 6), v(T + 6)))
    a('s_cmp_lg_u32 vcc_lo, 0')
    a('s_cbranch_scc1 %s' % top)


def clean_prep():
    a('v_and_b32 %s, 31, %s' % (v(T + 9), v(vL)))
    a('s_and_b32 s59, %s, 3' % s(sJ))
    a('s_lshl_b32 s59, s59, 7')
    a('s_add_u32 s59, s59, %d' % STATS)
    a('v_lshl_add_u32 %s, %s, 2, s59' % (v(T + 9), v(T + 9)))
    a('v_cndmask_b32 %s, %s, %s, %s' % (v(vCl), v(vPubL), v(T + 9), s(sHi, 2)))
    a('s_add_u32 s55, s59, %d' % (VOTES - STATS))
    a('s_add_u32 s59, s59, %d' % ST0)
    a('s_cmp_lt_u32 %s, 4' % s(sJ))
    a('s_cselect_b32 s59, s59, s55')
    a('v_and_b32 %s, 31, %s' % (v(T + 9), v(vL)))
    a('v_lshl_add_u32 %s, %s, 2, s59' % (v(T + 9), v(T + 9)))
    a('v_add_u32 %s, %d, %s' % (v(T + 10), BUF_X, v(vPubL)))
    a('v_cndmask_b32 %s, %s, %s, %s' % (v(vCl + 1), v(T + 10), v(T + 9), s(sHi, 2)))
    a('v_mov_b32 %s, %s' % (v(vCl + 2), s(sTag + 3)))
    a('s_cmp_lt_u32 %s, %d' % (s(sJ), 6 if OPT['probe'] in (1, 2) else 4))
    a('s_cselect_b32 %s, -1, 0' % s(sCl + 1))
    a('s_cmp_lt_u32 %s, 4' % s(sJ))
    a('s_cselect_b32 %s, -1, 0' % s(sCl))
    a('s_cmp_eq_u32 %s, 0' % s(sW))
    a('s_cselect_b32 %s, %s, 0' % (s(sCl), s(sCl)))
    a('s_cselect_b32 %s, %s, 0' % (s(sCl + 1), s(sCl + 1)))


def clean_x():
    a('s_mov_b32 exec_hi, %s' % s(sCl + 1))
    a('global_store_dword %s, %s, %s sc1' % (v(vCl + 1), v(vCl + 2), s(sLb, 2)))
    a('s_mov_b32 exec_hi, -1')


def clean_a():
    a('s_mov_b32 exec_hi, %s' % s(sCl))
    a('global_store_dword %s, %s, %s sc1' % (v(vCl), v(vCl + 2), s(sLb, 2)))
    a('s_mov_b32 exec_hi, -1')


def clean_b_prep():
    a('v_add_u32 %s, %d, %s' % (v(T + 9), 512, v(vCl)))
    a('v_add_u32 %s, %d, %s' % (v(T + 8), BUF_B, v(vCl)))
    a('v_cndmask_b32 %s, %s, %s, %s' % (v(T + 8), v(T + 8), v(T + 9), s(sHi, 2)))
    a('s_mov_b32 exec_lo, 0')
    a('s_mov_b32 exec_hi, %s' % s(sCl))
    sk = newlabel('nold')
    a('s_cbranch_execz %s' % sk)
    a('global_load_dword %s, %s, %s sc1' % (v(vKeep), v(T + 8), s(sLb, 2)))
    a.label(sk)
    a('s_mov_b64 exec, -1')


def clean_b():
    a('s_mov_b32 exec_hi, %s' % s(sCl))
    a('global_store_dword %s, %s, %s sc1' % (v(T + 8), v(vKeep), s(sLb, 2)))
    a('s_mov_b32 exec_hi, -1')


npage = [0]


def only_if(late, fn):
    sk = newlabel('xs')
    a('s_cmp_ge_u32 %s, 4' % s(sXcc))
    a('s_cbranch_scc%d %s' % (0 if late else 1, sk))
    fn()
    a.label(sk)


THIN = {0: 0xffffffff, 1: 0x01010101, 2: 0x11111111, 3: 0x0f0f0f0f}[OPT.get('thin', 0)]


def late_pre():
    a('v_mov_b32 %s, %s' % (v(T + 16), s(sE)))
    a('v_mov_b32 %s, %s' % (v(T + 17), s(sE)))
    a('s_mov_b32 exec_lo, 0x%x' % (0xffffffff if OPT.get('gpre') == 6 else 0 if OPT.get('gpre') == 4 else 0xffff0000 if FL2 else 0xff00ff00 & THIN))
    if THIN != 0xffffffff:
        a('s_mov_b32 exec_hi, 0x%x' % THIN)
    a('global_store_dwordx2 %s, %s, %s sc1' % (v(vPre), v(T + 16, 2), s(sGb0, 2)))
    a('s_mov_b64 exec, -1')


def page_break(force=False):
    if OPT['pages'] and (FAST[0] or force):
        l = newlabel('page')
        a('s_branch %s' % l)
        flush_deferred(False)
        a.raw('.p2align 12')
        if OPT.get('tramp') and not force:
            npage[0] += 1
            a.label('L_stub_%d' % npage[0])
            a.raw('    s_branch %s' % ('L_stub_2' if npage[0] == 1 and OPT['pages'] == 2 else 'L_stub_back'))
        a.label(l)
        if OPT.get('tramp') and force:
            a('s_branch L_stub_1')
            a.label('L_stub_back')


a.raw('''; kernarg: x, K, V, wq, wo, (B_x unused), w1, w3, w2, out, debug, ws  (8 bytes each)
;
; One persistent launch, 256 workgroups = 32 groups (attention head / 32-48 ffn columns) x 8 members (128 keys / 64 rows of x).
; Weights and the K/V window are read once (LDS-DMA, then transposing LDS reads) and stay in registers for both layers.
; Per layer: q partials -> [group] -> scores, softmax, PV -> [group] -> wo partials -> [32 groups] -> gate/up partials
;            -> [group] -> w2 partials -> [32 groups].   LayerNorm is applied after the projection:
;            rstd * (x.W - mean * colsum(W)), the statistics travel with the group hand-offs.
; Hand-offs go through d_ws in 64-byte sectors whose 16-byte granules carry a tag byte (tag = epoch word found in d_ws + constant + index
; of the hand-off; the epoch is advanced once per launch). Loads of handed-off data always bypass L1. Group hand-offs use plain
; stores only after the members have compared their XCC ids; otherwise the copy of the code at L_slowtail writes through.
; The all-to-all hand-offs are written twice, once into each half of memory; a wave reads the copy that is near to it.
; @launch grid=(256,1,1) block=(256,1,1) lds=%d
.amdgcn_target "amdgcn-amd-amdhsa--gfx950"
.text
.p2align 12
.globl %s_kernel
.p2align 8
.type %s_kernel,@function
%s_kernel:''' % (LDS_BYTES, NAME, NAME, NAME))
a('s_cmp_ge_u32 s2, 256')
a('s_cbranch_scc1 L_end')
a('s_load_dwordx16 s[4:19], s[0:1], 0')
a('s_load_dwordx8 s[20:27], s[0:1], 64')
stamp('start')
stamp('x rt0')
a('s_getpc_b64 %s' % s(sPc, 2))
a.label('L_pc')
a('v_lshlrev_b32 %s, 6, v0' % v(T))
a('v_min_u32 %s, L_fastend-L_pc-64, %s' % (v(T), v(T)))
if OPT.get('cpf', 32):
    a('s_cmp_lt_u32 s2, %d' % OPT.get('cpf', 32))
    a('s_cselect_b64 exec, -1, 1')
a('global_load_dword %s, %s, %s' % (v(T + 22), v(T), s(sPc, 2)))
if OPT.get('cpf', 32):
    a('s_mov_b64 exec, -1')
a('v_lshrrev_b32 %s, 6, v0' % v(T))
a('v_and_b32 %s, 63, v0' % v(vL))
a('v_readfirstlane_b32 %s, %s' % (s(sW), v(T)))
a('s_lshr_b32 s3, s2, 3')
a('s_and_b32 %s, s3, 7' % s(sJ))
a('s_lshr_b32 s3, s3, 3')
a('s_and_b32 s31, s2, 7')
a('s_lshl_b32 %s, s31, 2' % s(sGam))
a('s_add_u32 %s, %s, s3' % (s(sGam), s(sGam)))
u16, pos16, u8, pos8, l3, col16 = T + 1, T + 2, T + 3, T + 4, T + 5, T + 6
t0, t1, t2, t3 = T + 8, T + 9, T + 10, T + 11
k0 = T + 12


def pro_wq():
    a('v_lshrrev_b32 %s, 4, %s' % (v(u16), v(vL)))
    a('v_and_b32 %s, 15, %s' % (v(pos16), v(vL)))
    a('v_lshlrev_b32 %s, 1, %s' % (v(t2), v(u16)))
    a('v_xor_b32 %s, %s, %s' % (v(t2), v(t2), v(pos16)))
    a('v_lshlrev_b32 %s, 4, %s' % (v(t2), v(t2)))
    a('v_lshl_add_u32 %s, %s, 13, %s' % (v(t0), v(u16), v(t2)))
    a('v_xor_b32 %s, 0x80, %s' % (v(t1), v(t0)))
    a('v_add_u32 %s, %d, %s' % (v(t1), 2 * 31744, v(t1)))
    a('s_lshl_b32 s49, %s, 12' % s(sW))
    a('s_lshl_b32 s55, %s, 19' % s(sJ))
    a('s_lshl_b32 s56, %s, 17' % s(sW))
    a('s_add_u32 s55, s55, s56')
    a('s_lshl_b32 s56, %s, 8' % s(sGam))
    a('s_add_u32 s55, s55, s56')
    a('s_add_u32 m0, s49, %d' % WQ)


def pro_rest():
    a('v_and_b32 %s, 3, %s' % (v(l3), v(vL)))
    a('v_lshl_add_u32 %s, %s, 2, %s' % (v(col16), v(l3), v(u16)))
    a('s_lshl_b32 s48, %s, 5' % s(sW))
    a('v_lshl_add_u32 %s, %s, 1, s48' % (v(vXw), v(col16)))
    a('v_lshl_add_u32 %s, %s, 8, %s' % (v(vVo), v(u16), v(t2)))
    a('v_xor_b32 %s, 0x80, %s' % (v(vVo + 1), v(vVo)))
    a('v_xor_b32 %s, %s, %s' % (v(k0), v(u16), v(pos16)))
    a('v_lshlrev_b32 %s, 4, %s' % (v(k0), v(k0)))
    a('v_lshl_add_u32 %s, %s, 8, %s' % (v(k0), v(u16), v(k0)))
    for i in range(1, 4):
        a('v_xor_b32 %s, %d, %s' % (v(k0 + i), i << 6, v(k0)))
    a('s_lshl_b32 s48, %s, 7' % s(sJ))
    a('s_lshl_b32 s56, %s, 20' % s(sGam))
    a('s_lshl_b32 s58, %s, 15' % s(sJ))
    a('s_add_u32 s56, s56, s58')
    a('s_lshl_b32 s58, %s, 13' % s(sW))
    a('s_add_u32 s56, s56, s58')
    a('s_add_u32 s56, s56, %d' % (3072 * 256))


def pro_touch():
    a('v_lshl_add_u32 %s, %s, 4, s49' % (v(vCons), v(vL)))
    a('s_lshl_b32 s57, %s, 14' % s(sGam))
    a('s_add_u32 s57, s57, %d' % WS_L)
    a('s_add_u32 s3, s48, s57')
    if OPT.get('pt', 1) >= 2:
        a('s_add_u32 s3, s3, %d' % STATS)
        a('v_mov_b32 %s, s3' % v(t3))
        if OPT['pt'] == 3:
            a('s_and_b32 s3, s48, 0x180')
            a('s_add_u32 s3, s3, s57')
            a('s_add_u32 s3, s3, %d' % (STATS + ST0))
            a('v_writelane_b32 %s, s3, 5' % v(t3))
        return
    a('s_add_u32 s59, s3, s49')
    if OPT.get('pt', 1) == -1:
        a('v_and_b32 %s, 2, %s' % (v(t3), v(vL)))
        a('v_lshl_add_u32 %s, %s, 10, s59' % (v(t3), v(t3)))
    elif OPT.get('pt', 1):
        a('s_add_u32 s59, s59, %d' % BUF_B)
        a('v_mov_b32 %s, s59' % v(t3))
    else:
        a('v_lshl_add_u32 %s, %s, 10, s59' % (v(t3), v(vL)))
    a('v_cmp_lt_u32 vcc, 2, %s' % v(vL))
    a('s_add_u32 s3, s3, %d' % STATS)
    a('v_mov_b32 %s, s3' % v(T + 17))
    a('v_cndmask_b32 %s, %s, %s, vcc' % (v(t3), v(t3), v(T + 17)))
    if OPT['probe'] in (1, 2):
        a('s_add_u32 s3, s57, %d' % VOTES)
        a('v_writelane_b32 %s, s3, 3' % v(t3))
        a('s_add_u32 s3, s3, 128')
        a('v_writelane_b32 %s, s3, 4' % v(t3))
    a('s_and_b32 s3, s48, 0x180')
    a('s_add_u32 s3, s3, s57')
    a('s_add_u32 s3, s3, %d' % (STATS + ST0))
    a('v_writelane_b32 %s, s3, 5' % v(t3))


PRO = OPT.get('pro', 2)
pro_wq()
if PRO < 2:
    pro_rest()
if PRO < 1:
    pro_touch()
stamp('pre ka')
a('s_waitcnt lgkmcnt(0)')
stamp('ka')
a('s_add_u32 s10, s10, s55')
a('s_addc_u32 s11, s11, 0')
a('global_load_lds_dwordx4 %s, s[10:11] offset:0%s' % (v(t0), NT))
a('v_add_u32 %s, 31744, %s' % (v(t0), v(t0)))
a('s_load_dword %s, s[26:27], 0' % s(sE))
a('global_load_lds_dwordx4 %s, s[10:11] offset:1024%s' % (v(t0), NT))
a('global_load_lds_dwordx4 %s, s[10:11] offset:2048%s' % (v(t1), NT))
a('v_add_u32 %s, 31744, %s' % (v(t1), v(t1)))
a('global_load_lds_dwordx4 %s, s[10:11] offset:3072%s' % (v(t1), NT))
if PRO >= 2:
    pro_rest()
a('s_add_u32 s4, s4, s48')
a('s_addc_u32 s5, s5, 0')
a('global_load_ushort %s, %s, s[4:5]' % (v(vX), v(vXw)))
a('s_add_u32 s6, s6, s56')
a('s_addc_u32 s7, s7, 0')
if PRO < 1:
    a('global_load_dword %s, %s, s[26:27]' % (v(T + 22), v(t3)))
a('s_add_u32 m0, s58, %d' % KI)
stamp('wq iss')
if OPT.get('bar0', 1):
    a('s_barrier')
for i in range(4):
    a('global_load_lds_dwordx4 %s, s[6:7] offset:%d%s' % (v(k0 + i), 1024 * i, NT))


def k_second():
    a('s_add_u32 m0, s58, %d' % (KI + 4096))
    a('s_add_u32 s6, s6, 4096')
    a('s_addc_u32 s7, s7, 0')
    for i in range(4):
        a('global_load_lds_dwordx4 %s, s[6:7] offset:%d%s' % (v(k0 + i), 1024 * i, NT))


if not OPT['ksplit']:
    k_second()
if PRO >= 1:
    pro_touch()
    a('global_load_dword %s, %s, s[26:27]' % (v(T + 22), v(t3)))
stamp('issued')
a('s_add_u32 s8, s8, s56')
a('s_addc_u32 s9, s9, 0')
a('s_add_u32 %s, s26, s57' % s(sLb))
a('s_addc_u32 %s, s27, 0' % s(sLb + 1))
a('s_lshl_b32 s55, %s, %d' % (s(sJ), 14 + PAD))
a('s_add_u32 s55, s55, %d' % (WS_G + GOFF))
a('s_add_u32 %s, s26, s55' % s(sGb0))
a('s_addc_u32 %s, s27, 0' % s(sGb0 + 1))
a('s_add_u32 %s, %s, 0x%x' % (s(sGb1), s(sGb0), 0x40000 << PAD))
a('s_addc_u32 %s, %s, 0' % (s(sGb1 + 1), s(sGb0 + 1)))
a('s_getreg_b32 %s, hwreg(HW_REG_XCC_ID, 0, 4)' % s(sXcc))
if PB_:
    if PB_ == 1:
        a('s_and_b32 %s, %s, 3' % (s(sPr), s(sGam)))
        a('s_lshl_b32 %s, %s, 2' % (s(sPr), s(sPr)))
        a('s_add_u32 %s, %s, %s' % (s(sPr), s(sPr), s(sW)))
        a('s_lshl_b32 %s, %s, 7' % (s(sPr), s(sPr)))
    else:
        a('s_and_b32 %s, %s, 15' % (s(sPr), s(sGam)))
        a('s_lshl_b32 %s, %s, 7' % (s(sPr), s(sPr)))
        a('s_lshr_b32 s59, %s, 4' % s(sGam))
        a('s_lshl_b32 s59, s59, 12')
        a('s_add_u32 %s, %s, s59' % (s(sPr), s(sPr)))
    a('s_add_u32 %s, %s, s55' % (s(sPr), s(sPr)))
    a('s_add_u32 %s, %s, 0x20000' % (s(sPr), s(sPr)))
else:
    a('s_lshl_b32 %s, s2, 2' % s(sPr))
    a('s_add_u32 %s, %s, %s' % (s(sPr), s(sPr), s(sW)))
    a('s_and_b32 s55, %s, 63' % s(sPr))
    a('s_lshl_b32 s55, s55, 7')
    a('s_lshr_b32 %s, %s, 6' % (s(sPr), s(sPr)))
    a('s_lshl_b32 %s, %s, 14' % (s(sPr), s(sPr)))
    a('s_add_u32 %s, %s, s55' % (s(sPr), s(sPr)))
    a('s_add_u32 %s, %s, %d' % (s(sPr), s(sPr), WS_P))
if OPT['probe'] == 1:
    a('s_lshl_b32 s55, s49, %d' % PAD)
    a('s_and_b32 s55, s55, 8192')
    a('s_add_u32 %s, %s, s55' % (s(sPr), s(sPr)))
a('s_mov_b32 %s, 0xffff0000' % s(sM0))
a('s_mov_b32 %s, 0xffff0000' % s(sM0 + 1))
a('s_mov_b32 %s, 0x10000' % s(sM1))
a('s_mov_b32 %s, 0x10000' % s(sM1 + 1))
a('s_mov_b32 %s, 0' % s(sHi))
a('s_mov_b32 %s, -1' % s(sHi + 1))
a('v_mov_b32 %s, 0' % v(vZero))
a('v_lshrrev_b32 %s, 3, %s' % (v(u8), v(vL)))
a('v_and_b32 %s, 7, %s' % (v(pos8), v(vL)))
a('s_add_u32 s55, s49, s48')
a('v_and_b32 %s, 31, %s' % (v(t0), v(vL)))
a('v_lshl_add_u32 %s, %s, 2, s55' % (v(vPubL), v(t0)))
a('v_lshrrev_b32 %s, 5, %s' % (v(t3), v(vL)))
a('v_lshl_add_u32 %s, %s, 10, %s' % (v(vPubL), v(t3), v(vPubL)))
a('s_lshl_b32 s55, %s, 6' % s(sW))
a('v_lshl_add_u32 %s, %s, 1, s55' % (v(vPw), v(t0)))
a('v_lshl_add_u32 %s, %s, 2, %s' % (v(t1), v(pos8), v(u16)))
a('v_lshl_add_u32 %s, %s, 1, s55' % (v(vQw), v(t1)))
a('s_lshl_b32 s55, %s, 6' % s(sGam))
a('s_add_u32 s55, s55, s49')
if PAD:
    a('s_lshl_b32 s55, s55, 1')
a('v_lshl_add_u32 %s, %s, 2, s55' % (v(vPubG), v(pos16)))
if PAD:
    a('v_lshl_add_u32 %s, %s, 6, %s' % (v(vPubG), v(t3), v(vPubG)))
a('v_and_b32 %s, 1, %s' % (v(t2), v(u16)))
a('v_mul_u32_u24 %s, 0x%x, %s' % (v(t2), G_X, v(t2)))
a('v_xor_b32 %s, %s, %s' % (v(vPubG), v(vPubG), v(t2)))
if FL2:
    a('v_lshl_add_u32 %s, %s, 3, s55' % (v(vPre), v(pos8)))
    a('v_and_b32 %s, 1, %s' % (v(t2), v(u8)))
    a('v_mul_u32_u24 %s, 0x%x, %s' % (v(t2), G_X, v(t2)))
    a('v_xor_b32 %s, %s, %s' % (v(vPre), v(vPre), v(t2)))
    a('s_and_b32 s55, s55, 0xffffffbf')
    a('s_and_b32 s59, %s, 1' % s(sGam))
    a('s_mul_i32 s59, s59, 0x%x' % G_X)
    a('s_xor_b32 s55, s55, s59')
    a('v_lshl_add_u32 %s, %s, 3, s55' % (v(t2), v(pos16)))
    a('v_and_b32 %s, 1, %s' % (v(t1), v(u16)))
    a('v_lshl_add_u32 %s, %s, 11, %s' % (v(t2), v(t1), v(t2)))
    a('v_lshl_add_u32 %s, %s, 18, %s' % (v(t2), v(t3), v(t2)))
    a('v_cmp_lt_u32 vcc, 15, %s' % v(vL))
    a('v_cndmask_b32 %s, %s, %s, vcc' % (v(vPre), v(vPre), v(t2)))
else:
    a('v_lshl_add_u32 %s, %s, %d, s55' % (v(vPre), v(pos8), 3 + PAD))
    a('v_xor_b32 %s, %s, %s' % (v(vPre), v(vPre), v(t2)))
    a('v_and_b32 %s, 1, %s' % (v(t2), v(u8)))
    a('v_lshl_add_u32 %s, %s, %d, %s' % (v(vPre), v(t2), 11 + PAD, v(vPre)))
    a('v_lshl_add_u32 %s, %s, %d, %s' % (v(vPre), v(t3), 18 + PAD, v(vPre)))
a('s_lshl_b32 s55, %s, 2' % s(sJ))
a('s_add_u32 s55, s55, %s' % s(sW))
a('s_lshl_b32 s55, s55, 4')
a('s_add_u32 s55, s55, %d' % STATS)
a('v_mov_b32 %s, s55' % v(vStP))
a('v_lshl_add_u32 %s, %s, 3, s55' % (v(vStP2), v(t3)))
a('v_lshlrev_b32 %s, 4, %s' % (v(t1), v(l3)))
a('v_lshl_add_u32 %s, %s, 6, %s' % (v(t1), v(u8), v(t1)))
a('v_add_u32 %s, %d, %s' % (v(vStC), STATS, v(t1)))
a('v_mov_b32 %s, 0xff' % v(t2))
a('v_cmp_eq_u32 vcc, 0, %s' % v(l3))
a('v_lshlrev_b32 %s, 4, %s' % (v(vOpR), v(u16)))
a('v_and_b32 %s, 8, %s' % (v(t1), v(vL)))
a('v_cndmask_b32 %s, 0, %s, vcc' % (v(vTagM), v(t2)))
a('v_lshl_add_u32 %s, %s, 4, %s' % (v(vXopR), v(t1), v(vOpR)))
a('s_lshl_b32 s55, %s, 2' % s(sW))
a('v_mov_b32 %s, s55' % v(vMw))
a('v_lshlrev_b32 %s, 2, %s' % (v(vMr), v(l3)))
a('v_lshlrev_b32 %s, 2, %s' % (v(t0), v(t0)))
a('v_mov_b32 %s, 0x3f803f80' % v(t1))
a('ds_write_b32 %s, %s offset:%d' % (v(t0), v(t1), ONES))
a('v_lshlrev_b32 %s, 2, %s' % (v(t0), v(pos8)))
if not W4:
    a('ds_write_b32 %s, %s offset:%d' % (v(t0), v(vZero), HB + 96))
if PAD:
    a('v_lshrrev_b32 %s, 2, %s' % (v(t1), v(vL)))
    a('v_lshlrev_b32 %s, 4, %s' % (v(t2), v(l3)))
    a('v_lshl_add_u32 %s, %s, 7, %s' % (v(t1), v(t1), v(t2)))
    a('s_lshl_b32 s59, s49, 1')
    a('v_add_u32 %s, s59, %s' % (v(vConsG), v(t1)))
else:
    a('v_mov_b32 %s, %s' % (v(vConsG), v(vCons)))
a('v_mov_b32 %s, %s' % (v(vConsG0), v(vConsG)))
a('v_mov_b32 %s, %s' % (v(vSt + 3), s(sXcc)))
r_ = T + 16
a('v_lshrrev_b32 %s, 2, %s' % (v(r_), v(pos16)))
a('v_and_b32 %s, 1, %s' % (v(t0), v(u16)))
a('v_lshl_add_u32 %s, %s, 2, %s' % (v(t1), v(t0), v(r_)))
a('v_lshlrev_b32 %s, 1, %s' % (v(t1), v(t1)))
a('v_xor_b32 %s, s55, %s' % (v(t1), v(t1)))
a('v_lshlrev_b32 %s, 4, %s' % (v(t1), v(t1)))
a('v_lshl_add_u32 %s, %s, 3, %s' % (v(t1), v(l3), v(t1)))
a('v_lshl_add_u32 %s, %s, 3, %s' % (v(t2), v(u16), v(r_)))
a('v_lshl_add_u32 %s, %s, 8, %s' % (v(trq), v(t2), v(t1)))
a('v_xor_b32 %s, 32, %s' % (v(trq + 1), v(trq)))
a('v_lshrrev_b32 %s, 1, %s' % (v(t1), v(r_)))
a('v_lshl_add_u32 %s, %s, 1, %s' % (v(t1), v(t0), v(t1)))
a('v_xor_b32 %s, %s, %s' % (v(t1), s(sW), v(t1)))
a('v_lshlrev_b32 %s, 5, %s' % (v(t1), v(t1)))
a('v_lshl_add_u32 %s, %s, 3, %s' % (v(t1), v(l3), v(t1)))
a('v_lshl_add_u32 %s, %s, 7, %s' % (v(vTr), v(t2), v(t1)))
a('v_add_u32 %s, %d, %s' % (v(vTr), WO, v(vTr)))


def late_consts():
    a('s_mov_b32 %s, 0x40000' % s(sTo))
    a('s_mov_b32 %s, %s' % (s(sCs), f32(math.log2(math.e) / math.sqrt(128.0))))
    a('s_mov_b32 %s, 0xffffff00' % s(sMaskHi))
    a('s_mov_b32 %s, %s' % (s(sInv512), f32(1.0 / 512)))
    a('s_mov_b32 %s, %s' % (s(sEps), f32(1e-5)))
    a('s_mov_b32 %s, %s' % (s(sNl2e), f32(-math.log2(math.e))))
    if OPT.get('fal', 5):
        if OPT.get('fal', 5) == 1:
            a('s_cmp_lt_u32 %s, 12' % s(sGam))
            a('s_cselect_b32 %s, 6, 5' % s(sCnt))
            a('s_cselect_b32 s55, 0, 12')
            a('s_mul_i32 %s, %s, %s' % (s(sC0), s(sGam), s(sCnt)))
            a('s_add_u32 %s, %s, s55' % (s(sC0), s(sC0)))
        else:
            pat = {2: [6, 6, 6, 6, 4, 5, 5, 5], 3: [6, 6, 6, 6, 4, 4, 5, 6], 4: [6, 6, 6, 6, 5, 4, 5, 5], 5: [6, 6, 6, 6, 4, 4, 6, 5], 6: [6, 6, 6, 6, 3, 4, 6, 6],
                   7: [7, 7, 7, 6, 4, 4, 4, 4], 8: [8, 7, 7, 6, 3, 3, 5, 4], 9: [8, 8, 8, 7, 2, 2, 4, 4], 10: [7, 7, 6, 6, 4, 4, 5, 4],
                   11: [6, 6, 6, 6, 5, 5, 5, 4], 12: [6, 6, 6, 6, 4, 5, 6, 4], 13: [6, 6, 6, 6, 5, 4, 6, 4]}[OPT.get('fal', 5)]
            assert sum(pat) == 43
            pre_ = [sum(pat[:g]) for g in range(8)]
            a('s_and_b32 s55, %s, 28' % s(sGam))
            a('s_lshr_b32 %s, 0x%x, s55' % (s(sCnt), sum(n << 4 * g for g, n in enumerate(pat))))
            a('s_and_b32 %s, %s, 15' % (s(sCnt), s(sCnt)))
            a('s_lshl_b32 s55, s55, 1')
            a('s_mov_b32 s24, 0x%x' % sum(n << 8 * g for g, n in enumerate(pre_[:4])))
            a('s_mov_b32 s25, 0x%x' % sum(n << 8 * g for g, n in enumerate(pre_[4:])))
            a('s_lshr_b64 s[24:25], s[24:25], s55')
            a('s_and_b32 s55, s24, 0xff')
            a('s_lshl_b32 s55, s55, 2')
            a('s_and_b32 %s, %s, 3' % (s(sC0), s(sGam)))
            a('s_mul_i32 %s, %s, %s' % (s(sC0), s(sC0), s(sCnt)))
            a('s_add_u32 %s, %s, s55' % (s(sC0), s(sC0)))
        a('s_sub_u32 s37, %s, 1' % s(sCnt))
        a('s_lshl_b32 %s, %s, 3' % (s(sCnt), s(sCnt)))
    else:
        a('s_mul_i32 %s, %s, 43' % (s(sC0), s(sGam)))
        a('s_add_u32 %s, %s, 43' % (s(sCnt), s(sC0)))
        a('s_lshr_b32 %s, %s, 3' % (s(sC0), s(sC0)))
        a('s_lshr_b32 %s, %s, 3' % (s(sCnt), s(sCnt)))
        a('s_sub_u32 %s, %s, %s' % (s(sCnt), s(sCnt), s(sC0)))
        a('s_lshl_b32 %s, %s, 3' % (s(sCnt), s(sCnt)))
        a('s_mov_b32 s37, 5')
    a('v_and_b32 %s, 4, %s' % (v(t1), v(vL)))
    a('v_cmp_eq_u32 vcc, 0, %s' % v(t1))
    a('v_add_u32 %s, %d, %s' % (v(t1), HB, v(vXw)))
    a('v_mov_b32 %s, %d' % (v(t2), DUMMY))
    a('v_cndmask_b32 %s, %s, %s, vcc' % (v(vHw), v(t2), v(t1)))
    a('v_lshrrev_b32 %s, 1, %s' % (v(t1), v(vXw)))
    a('v_cmp_gt_u32 vcc, %s, %s' % (s(sCnt), v(t1)))
    a('v_cndmask_b32 %s, 0, -1, vcc' % v(vHmask))
    a('v_and_b32 %s, 2, %s' % (v(t0), v(u8)))
    a('v_xor_b32 %s, %s, %s' % (v(t0), v(t0), v(pos8)))
    a('v_lshlrev_b32 %s, 4, %s' % (v(t1), v(t0)))
    a('v_lshl_add_u32 %s, %s, 10, %s' % (v(wo0), v(u8), v(t1)))
    a('v_xor_b32 %s, 64, %s' % (v(wo1), v(wo0)))
    a('v_add_u32 %s, 7168, %s' % (v(wo1), v(wo1)))
    a('v_mul_u32_u24 %s, 2752, %s' % (v(t2), v(u8)))
    a('v_min_u32 %s, s37, %s' % (v(t1), v(t0)))
    a('v_lshl_add_u32 %s, %s, 4, %s' % (v(f0), v(t1), v(t2)))
    a('v_xor_b32 %s, 4, %s' % (v(t0), v(t0)))
    a('v_min_u32 %s, s37, %s' % (v(t1), v(t0)))
    a('v_lshl_add_u32 %s, %s, 4, %s' % (v(f1), v(t1), v(t2)))
    a('v_add_u32 %s, %d, %s' % (v(f1), 8 * 2752 - 1024, v(f1)))
    a('s_lshl_b32 s55, %s, 17' % s(sGam))
    a('s_lshl_b32 s59, %s, 15' % s(sW))
    a('s_add_u32 s55, s55, s59')
    a('s_add_u32 s55, s55, s48')
    a('s_add_u32 s12, s12, s55')
    a('s_addc_u32 s13, s13, 0')
    a('s_lshl_b32 s55, %s, 2' % s(sJ))
    a('s_add_u32 s55, s55, %s' % s(sW))
    a('s_mul_i32 s55, s55, %d' % (16 * 2752))
    a('s_lshl_b32 s59, %s, 4' % s(sC0))
    a('s_add_u32 s55, s55, s59')
    a('s_add_u32 s16, s16, s55')
    a('s_addc_u32 s17, s17, 0')
    a('s_add_u32 s18, s18, s55')
    a('s_addc_u32 s19, s19, 0')
    a('s_lshl_b32 s55, %s, 13' % s(sC0))
    a('s_lshr_b32 s59, s37, 1')
    a('s_min_u32 s59, %s, s59' % s(sW))
    a('s_lshl_b32 s59, s59, 14')
    a('s_add_u32 s55, s55, s59')
    a('s_add_u32 s55, s55, s48')
    a('s_add_u32 s20, s20, s55')
    a('s_addc_u32 s21, s21, 0')
    if OPT.get('fal', 5):
        a('s_lshr_b32 s59, s59, 10')
        a('s_add_u32 s59, s59, 8')
        a('s_cmp_ge_u32 s59, %s' % s(sCnt))
        a('s_cselect_b32 s59, 8192, 0')
        a('s_sub_u32 s4, s20, s59')
        a('s_subb_u32 s5, s21, 0')
    a('s_add_u32 s22, s22, s48')
    a('s_addc_u32 s23, s23, 0')


if not OPT.get('cl', 0):
    late_consts()
if OPT['ksplit']:
    k_second()
a('s_add_u32 s6, s8, 4096')
a('s_addc_u32 s7, s9, 0')
a('s_waitcnt lgkmcnt(0)')
for k in range(10):
    a('s_add_u32 %s, %s, 0x%x' % (s(sTag + k), s(sE), 0x5a3c7181 + k))


def issue_v(lo, hi):
    for i in range(lo, hi):
        if i == lo or i == 4:
            a('s_add_u32 m0, s58, %d' % (VI + 4096 * (i >> 2)))
            a('s_nop 0')
        a('global_load_lds_dwordx4 %s, %s offset:%d%s' % (v(vVo + ((i >> 1) & 1)), 's[6:7]' if i >= 4 else 's[8:9]', 1024 * (i & 3), NT))


def issue_wo(lo=0, hi=4):
    a('s_add_u32 m0, s49, %d' % WO)
    for i in range(lo, hi):
        ad = wo0 + (i & 1)
        if i >= 2:
            a('v_add_u32 %s, %d, %s' % (v(T + 20), 2 * 7168, v(ad)))
            ad = T + 20
        a('global_load_lds_dwordx4 %s, s[12:13] offset:%d%s' % (v(ad), 1024 * i, NT))


def issue_w13(lo, hi):
    for i in range(lo, hi):
        if i == lo or i == 2:
            a('s_lshl_b32 s59, %s, 11' % s(sW))
            a('s_add_u32 m0, s59, %d' % (W1 if i < 2 else W3))
            a('s_nop 0')
        a('global_load_lds_dwordx4 %s, s[%d:%d] offset:%d%s' % (v(f0 + (i & 1)), 16 + (i & 2), 17 + (i & 2), 1024 * (i & 1), NT))


def issue_w2():
    if OPT.get('w2s', 1) and not W4:
        sk = newlabel('now2')
        a('s_cmp_eq_u32 %s, 3' % s(sW))
        a('s_cbranch_scc1 %s' % sk)
        issue_w2_()
        a.label(sk)
    else:
        issue_w2_()


def issue_w2_():
    if W4:
        a('s_lshl_b32 s59, %s, 11' % s(sW))
    else:
        a('s_min_u32 s59, %s, 2' % s(sW))
        a('s_lshl_b32 s59, s59, 11')
    a('s_add_u32 m0, s59, %d' % W2)
    a('s_nop 0')
    a('global_load_lds_dwordx4 %s, s[20:21] offset:0%s' % (v(wo0), NT))
    a('global_load_lds_dwordx4 %s, %s offset:1024%s' % (v(wo1), 's[4:5]' if OPT.get('fal', 5) else 's[20:21]', NT))


r = vP
FE, KW, WOL = OPT['fe'], OPT['kw'], OPT['wol']
NPRE = (OPT.get('gpre', 5) != 6) + (bool(OPT['probe']) and not PB_)
NVA = OPT['nva']
NVB = 8 - NVA
WOH = OPT.get('woh', 0)
WV = OPT.get('wv', 6)
ORD = OPT.get('ord', 0)
NF = OPT.get('fs', 6)
ORD6 = ORD and NF == 6
NLATE = WOH if WOL else 4 + FE + 2 * OPT['w2e']


def sc_copies():
    lstore('global_store_dword', v(vD + 8), v(vD + 9), BUF_A)
    if LZ:
        a('s_waitcnt vmcnt(0)')
    a('s_mov_b64 exec, %s' % s(sM1, 2))
    lstore('global_store_dwordx2', v(vD + 10), v(vSt4, 2), 0)
    a('s_mov_b64 exec, -1')


WOETC = []
L0COL = []


def front():
    a('; ---- layer 0: x slice, query projection partials')
    set_tags(0)
    a('v_add_u32 %s, 0x%x, %s' % (v(T + 12), WS_L2D, v(vStP2)))
    a('v_add_u32 %s, 0x%x, %s' % (v(T + 13), WS_L2D, v(vPubL)))
    a('v_add_u32 %s, 0x%x, %s' % (v(T + 14), ST0, v(vStP2)))
    stamp('consts')
    a('s_waitcnt vmcnt(9)')
    stamp('wq landed')
    a('ds_write_b16 %s, %s offset:%d' % (v(vXw), v(vX), XB))
    issue_v(0, OPT['vq'])
    a('v_lshlrev_b32 %s, 16, %s' % (v(vSt4), v(vX)))
    a('v_lshlrev_b32 %s, 16, %s' % (v(vX), v(vX)))
    FAST[0] = True
    ln_stats(0, T + 14)
    a('s_waitcnt lgkmcnt(0)')

    proj(vWQ, 0, 0, wsrc=[(trq, WQ, 8192, 1024), (trq + 1, WQ, 8192, 1024)], first=True)
    FAST[0] = False
    stamp('L0 Q pub')
    SP = OPT.get('sp', 0)
    a('v_mov_b32 %s, %s' % (v(vD + 8), v(T + 13)))
    a('v_mov_b32 %s, %s' % (v(vD + 9), v(T)))
    a('v_mov_b32 %s, %s' % (v(vD + 10), v(T + 12)))

    def side_stores():
        if not LZ:
            sc_copies()
        a('v_mov_b32 %s, %s' % (v(T + 16), s(sE)))
        a('v_mov_b32 %s, %s' % (v(T + 17), s(sE)))
        if OPT.get('pt', 1) >= 2:
            a('s_mov_b32 exec_hi, 0')
            a('global_store_dword %s, %s, %s offset:%d' % (v(vPubL), v(T + 16), s(sLb, 2), BUF_B))
            a('s_mov_b32 exec_hi, -1')
        if PAD:
            a('v_mov_b32 %s, %s' % (v(T + 18), s(sE)))
            a('v_mov_b32 %s, %s' % (v(T + 19), s(sE)))
        if OPT.get('gpre', 5) == 2:
            a('s_mov_b32 exec_lo, 0')
        if OPT.get('gpre', 5) == 0:
            a('s_mov_b64 exec, 1')
        if OPT.get('gpre', 5) in (3, 5, 7):
            a('s_mov_b64 exec, 0x%x' % ((0xffff if FL2 else 0x00ff00ff) & THIN))
        if OPT.get('gpre', 5) == 4:
            a('s_mov_b32 exec_hi, 0')
        if OPT.get('gpre', 5) == 6:
            return
        a('global_store_dwordx%d %s, %s, %s offset:%d sc1' % (2 << PAD, v(vPre), v(T + 16, 2 << PAD), s(sGb0, 2), -GOFF))
        if OPT.get('gpre', 5) != 1:
            a('s_mov_b64 exec, -1')
        if OPT['probe'] and not PB_:
            a('v_and_b32 %s, 31, %s' % (v(T + 18), v(vL)))
            a('v_lshl_add_u32 %s, %s, 2, %s' % (v(T + 18), v(T + 18), s(sPr)))
            a('v_lshrrev_b32 %s, 5, %s' % (v(T + 19), v(vL)))
            a('v_lshlrev_b32 %s, 13, %s' % (v(T + 19), v(T + 19)))
            a('v_xor_b32 %s, %s, %s' % (v(T + 18), v(T + 19), v(T + 18)))
            a('global_store_dword %s, %s, s[26:27] sc1' % (v(T + 18), v(T + 16)))
    if SP == 2:
        side_stores()
    if ORD:
        issue_wo()
    if OPT.get('te'):
        h = OPT.get('th', 4)
        issue_v(OPT['vq'], h)
        sk = newlabel('noth')
        a('s_cmp_ge_u32 %s, 4' % s(sXcc))
        a('s_cbranch_scc1 %s' % sk)
        a('s_waitcnt vmcnt(%d)' % max(8 - OPT['te'] + (PRO >= 1) + 2 + h, 0))
        a.label(sk)
        issue_v(h, NVA)
    else:
        issue_v(OPT['vq'], NVA)
    if SP == 0:
        side_stores()
    if OPT.get('cl', 0):
        late_consts()
    a('; ---- layer 0: gather q')
    if OPT.get('cp2'):
        a('s_getpc_b64 s[4:5]')
        a.label('L_pc2')
        a('v_lshlrev_b32 %s, 6, v0' % v(T + 19))
        a('v_min_u32 %s, L_fastend-L_pc2-64, %s' % (v(T + 19), v(T + 19)))
        a('global_load_dword %s, %s, s[4:5]' % (v(T + 22), v(T + 19)))
    a('v_xor_b32 %s, %s, %s' % (v(t0), v(u16), v(pos16)))
    a('v_lshlrev_b32 %s, 4, %s' % (v(t0), v(t0)))
    a('v_lshl_add_u32 %s, %s, 8, %s' % (v(t0), v(pos16), v(t0)))
    a('s_add_u32 s55, s58, %d' % KI)
    a('v_add_u32 %s, s55, %s' % (v(t0), v(t0)))
    for kk in range(1, 4):
        a('v_xor_b32 %s, %d, %s' % (v(t0 + kk), kk << 6, v(t0)))
    alt, both, alts, boths = T + 13, T + 14, T + 15, T + 21
    a('v_mov_b32 %s, %s' % (v(alt), v(vCons)))
    a('v_lshlrev_b32 %s, 1, %s' % (v(both), v(vCons)))
    a('v_add_u32 %s, 0x%x, %s' % (v(both), WS_L2D, v(both)))
    a('v_add_u32 %s, 0x%x, %s' % (v(alts), ST0, v(vStC)))
    a('v_lshlrev_b32 %s, 1, %s' % (v(boths), v(vStC)))
    a('v_add_u32 %s, 0x%x, %s' % (v(boths), WS_L2D + ST0, v(boths)))
    page_break(True)
    NS = (0 if LZ else 2) + NPRE + (OPT.get('pt', 1) >= 2)
    behind_k = 2 + NVA + (0 if SP == 1 else NS) + (PRO >= 1) + OPT.get('cp2', 0) + 4 * ORD
    PL = OPT.get('pl', 0)
    loads = [(vSs[0], alts, sLb, 0), (r, alt, sLb, BUF_A), (r + 4, alt, sLb, BUF_X)]
    if not PL:
        a('s_waitcnt vmcnt(%d)' % (8 - KW + behind_k))
        stamp('K part')
        for x in loads:
            gload(*x)
    issue_v(NVA, 8)

    if WOH:
        issue_wo(0, WOH)

    def wo_etc():
        if ORD:
            issue_w13(0, min(NF, 4))
            if NF == 6:
                issue_w2()
            return
        issue_wo(WOH, 4)
        if OPT['w2e']:
            issue_w2()
        issue_w13(0, FE)
    if not WOL:
        wo_etc()
    XL = OPT.get('xw', 0) & 8
    if XL:
        only_if(True, wo_etc)
    a('s_waitcnt vmcnt(%d)' % (behind_k + (0 if PL else 3) + NVB + NLATE))
    stamp('K landed')
    for g in range(2):
        for kk in range(4):
            a('ds_read_b128 %s, %s offset:%d' % (v(vK + 16 * g + 4 * kk, 4), v(t0 + kk), 4096 * g))
    if PL:
        assert WV and not NVB
        pv_ = OPT.get('pv', WV)
        a('s_waitcnt vmcnt(%d)' % (8 - pv_ + 2 + NPRE))
        for x in loads:
            gload(*x)
    if WV:
        if not PL or pv_ != WV:
            a('s_waitcnt vmcnt(%d)' % (8 - WV + (NS if SP == 0 else 0) + 3))
        wo_etc()
        if OPT.get('gpre') == 7:
            late_pre()
        if SP == 1:
            side_stores()
    a('s_branch L_e1ent')
    a.label('L_e1top')
    tick()
    if LZ:
        a('s_bitcmp1_b32 %s, 0' % s(sTo))
        a('s_cbranch_scc1 L_e1plain')
        sc_copies()
        a.label('L_e1plain')
    for x in loads:
        gload(*x)
    a('v_sub_u32 %s, %s, %s' % (v(alt), v(both), v(alt)))
    a('v_sub_u32 %s, %s, %s' % (v(alts), v(boths), v(alts)))
    if NLATE + NVB or XL or WV:
        a('s_waitcnt vmcnt(0)')
    a.label('L_e1ent')
    if XL:
        only_if(False, lambda: a('s_waitcnt vmcnt(%d)' % NVB))
        a('s_waitcnt vmcnt(%d)' % (NVB + 4 + FE))
    else:
        a('s_waitcnt vmcnt(%d)' % (NLATE + NVB + ((NF if ORD else 4 + FE) if WV else 0) + (NS if SP == 1 else 0) + (OPT.get('gpre') == 7)))
    a('v_bitop3_b32 %s, %s, %s, %s bitop3:0x7e' % (v(T + 23), v(r), v(r + 4), s(sTag)))
    a('v_cmp_ne_u32 %s, %s, %s' % (s(sT1, 2), s(sTag), v(vSs[0] + 1)))
    a('v_cmp_ne_u32_sdwa vcc, %s, %s src0_sel:BYTE_0 src1_sel:DWORD' % (v(T + 23), v(vZero)))
    a('s_or_b64 vcc, vcc, %s' % s(sT1, 2))
    a('s_cbranch_vccnz L_e1top')
    stamp('L0 E1 ok')
    if OPT['fl']:
        flag_store(sE)
    if XL:
        only_if(False, wo_etc)
    elif OPT.get('xw', 0) & 1:
        only_if(True, wo_etc)
    elif WOL and OPT['wopos'] == 0 and not WV:
        wo_etc()
    WOETC.append(wo_etc)
    a('v_cmp_ne_u32 vcc, %s, %s' % (s(sXcc), v(vSs[0] + 3)))
    c, x, y = vC, vSs[0], r + 4
    ln_spec(x)
    mask_tag(y)
    a('v_mov_b32 %s, %s' % (v(c + 1), v(c)))
    a('v_permlane32_swap_b32 %s, %s' % (v(y + 1), v(y + 3)))
    mask_tag(r)
    a('v_permlane16_swap_b32 %s, %s' % (v(c), v(c + 1)))
    a('v_add_f32 %s, %s, %s' % (v(c), v(c), v(c + 1)))
    a('v_add_f32 %s, %s, %s' % (v(y + 1), v(y + 1), v(y + 3)))
    a('v_permlane32_swap_b32 %s, %s' % (v(y), v(y + 2)))
    dpp('v_add_f32', c, c, c, 'row_ror:8')
    a('v_add_f32 %s, %s, %s' % (v(y), v(y), v(y + 2)))
    a('v_permlane32_swap_b32 %s, %s' % (v(r + 1), v(r + 3)))
    dpp('v_add_f32', c, c, c, X1)
    a('v_add_f32 %s, %s, %s' % (v(r + 1), v(r + 1), v(r + 3)))
    a('v_permlane16_swap_b32 %s, %s' % (v(y), v(y + 1)))
    dpp('v_add_f32', c, c, c, X2)
    a('v_add_f32 %s, %s, %s' % (v(y), v(y), v(y + 1)))
    a('v_mul_f32 %s, %s, %s' % (v(c), s(sInv512), v(c)))
    a('v_mov_b32 %s, %s' % (v(c + 1), v(c)))
    a('v_permlane32_swap_b32 %s, %s' % (v(r), v(r + 2)))
    dpp('v_add_f32', vCq, y, y, 'row_ror:8')
    a('v_permlane32_swap_b32 %s, %s' % (v(c), v(c + 1)))
    a('v_add_f32 %s, %s, %s' % (v(r), v(r), v(r + 2)))
    bf16r(vMean, c)
    if OPT['fast']:
        a('s_cbranch_vccnz L_slowtail')


EP = OPT.get('ep', 2)


def epoch(join):
    a('s_cmp_lg_u32 s2, 255')
    a('s_cbranch_scc1 %s' % join)
    a('s_add_u32 s55, %s, 16' % s(sE))
    a('v_mov_b32 %s, s55' % v(T + 2))
    a('v_lshlrev_b32 %s, 2, %s' % (v(T + 3), v(vL)))
    if EP == 0:
        a('s_mov_b64 exec, 1')
    else:
        a('s_mov_b32 exec_hi, 0')
    a('global_store_dword %s, %s, s[26:27]%s' % (v(T + 3), v(T + 2), ' sc1' if EP in (0, 3, 4) else ''))
    a('s_mov_b64 exec, -1')


def CLEAN():
    return OPT['clean'] if FAST[0] else 0


def tail():
    for layer in range(2):
        pre = 'L%d' % layer
        k1, k2, k4 = 3 * layer, 3 * layer + 1, 3 * layer + 2

        def spec(x):
            mask_tag(x)
            red_a(x, r)
        if layer == 1:
            a('; ---- layer 1: x slice, query projection partials')
            set_tags(k1)
            if OPT['pages'] == 1:
                page_break()
            if OPT['probe'] == 3:
                if not (ORD6 and OPT.get('r0', 1)):
                    race_pick()
            elif OPT['probe'] and OPT['vlate']:
                count_votes()
            if CLEAN():
                clean_prep()
            g_pace(1)
            x_gather(1, G_D)
            stamp(pre + ' E5 ok')
            x_to_lds(k1)
            a('s_waitcnt lgkmcnt(0)')
            proj(vWQ, k1, layer)
            stamp(pre + ' Q pub')
            a('; ---- layer 1: gather q')
            l_gather(k1, spec, ln_spec, [ln_mean])
            stamp(pre + ' E1 ok')
        red_b(r, r)
        a('v_fma_f32 %s, -%s, %s, %s' % (v(r), v(vMean), v(vCq), v(r)))
        a('v_cvt_pk_bf16_f32 %s, %s, %s' % (v(r), v(r), v(r)))
        a('ds_write_b16 %s, %s offset:%d' % (v(vQw), v(r), QB))
        if layer == 0 and OPT.get('gpre', 5) in (5, 6):
            late_pre()
        if layer == 1 and CLEAN() & 1 and not OPT['cend'] & 1:
            clean_x()
        ln_rstd_a()
        if layer == 0 and WOL and OPT['wopos'] == 1:
            WOETC[0]()
        a('s_waitcnt lgkmcnt(0)')
        stamp('z%d qw' % layer)
        a('s_barrier')
        stamp('z%d qb' % layer)
        a('; ---- layer %d: attention over this member\'s 128 keys' % layer)
        for kk in range(4):
            a('ds_read_b128 %s, %s offset:%d' % (v(vA + 4 * kk, 4), v(vOpR), QB + 64 * kk))
        ln_rstd_b(True)
        set_tags(k2)
        for kk in range(4):
            lgkm(3 - kk)
            for g in range(2):
                mfma(vD + 4 * g, vA + 4 * kk, vK + 16 * g + 4 * kk, vD + 4 * g if kk else None)
        stamp('z%d qk' % layer)
        if layer == 0:
            if OPT.get('xw', 0) & 1:
                only_if(False, WOETC[0])
            elif WOL and OPT['wopos'] == 2:
                WOETC[0]()
            if NVB:
                a('s_waitcnt vmcnt(%d)' % (NF if ORD else 4 + FE + 2 * OPT['w2e']))
                a('s_barrier')
            tr_reads(vV, trq, VI, 4, 8192, 1024)
        sg = vSt
        mx, e0 = T, T + 1
        a('v_max_f32 %s, %s, %s' % (v(mx), v(vD), v(vD + 4)))
        a('v_cndmask_b32 %s, %s, %s, %s' % (v(e0), v(vD), v(vD + 4), s(sM0, 2)))
        for ro in (8, 4, 2, 1):
            dpp('v_max_f32', mx, mx, mx, 'row_ror:%d' % ro)
        a('v_mul_f32 %s, %s, %s' % (v(sg), v(vCs), v(mx)))
        a('v_fma_f32 %s, %s, %s, -%s' % (v(e0), v(e0), v(vCs), v(sg)))
        a('v_exp_f32 %s, %s' % (v(sg + 1), v(e0)))
        stamp('z%d ex' % layer)
        a('ds_write_b32 %s, %s offset:%d' % (v(vMw), v(sg), MB))
        a('v_cvt_pk_bf16_f32 %s, %s, %s' % (v(e0), v(sg + 1), v(sg + 1)))
        a('ds_write_b16 %s, %s offset:%d' % (v(vPw), v(e0), PB))
        if layer == 0:
            tr_reads(vV + 16, trq + 1, VI, 4, 8192, 1024)
        for ro in (8, 4, 2):
            dpp('v_add_f32', sg + 1, sg + 1, sg + 1, 'row_ror:%d' % ro)
        a('s_waitcnt lgkmcnt(0)')
        stamp('z%d pw' % layer)
        a('s_barrier')
        stamp('z%d pb' % layer)
        mm = T + 4
        a('ds_read_b32 %s, %s offset:%d' % (v(mm), v(vMr), MB))
        for kk in range(4):
            a('ds_read_b128 %s, %s offset:%d' % (v(vA + 4 * kk, 4), v(vOpR), PB + 64 * kk))
        dpp('v_add_f32', sg + 1, sg + 1, sg + 1, 'row_ror:1')
        dpp('v_add_f32', sg + 1, sg + 1, sg + 1, 'row_bcast:15', 0xa)
        a('s_mov_b64 exec, 0x10000')
        lstore('global_store_dwordx4', v(vStP), v(sg, 4), 512 * (k2 & 1))
        a('s_mov_b64 exec, -1')

        def sel(kk):
            a('v_cndmask_b32 %s, %s, %s, %s' % (v(T + 8 + kk), v(vD + 8 * kk), v(vD + 8 * kk + 4), s(sM0, 2)))

        def bc(kk):
            a('v_mov_b32_dpp %s, %s quad_perm:[%d,%d,%d,%d] row_mask:0xf bank_mask:0xf' % (v(T + 16 + kk), v(mm), kk, kk, kk, kk))

        def acc(kk):
            a('%s %s, %s, %s' % ('v_fmac_f32' if kk else 'v_mul_f32', v(T), v(T + 16 + kk), v(T + 8 + kk)))
        lgkm(3)
        stamp('z%d pr' % layer)
        mfma(vD, vA, vV)
        dpp('v_max_f32', mx, mm, mm, X1)
        mfma(vD + 4, vA, vV + 16)
        lgkm(2)
        mfma(vD + 8, vA + 4, vV + 4)
        dpp('v_max_f32', mx, mx, mx, X2)
        mfma(vD + 12, vA + 4, vV + 20)
        a('v_sub_f32 %s, %s, %s' % (v(mm), v(mm), v(mx)))
        lgkm(1)
        mfma(vD + 16, vA + 8, vV + 8)
        a('v_exp_f32 %s, %s' % (v(mm), v(mm)))
        mfma(vD + 20, vA + 8, vV + 24)
        lgkm(0)
        bc(0)
        mfma(vD + 24, vA + 12, vV + 12)
        bc(1)
        bc(2)
        mfma(vD + 28, vA + 12, vV + 28)
        stamp('z%d pv' % layer)
        stats_load(k2)
        sel(0)
        sel(1)
        acc(0)
        acc(1)
        sel(2)
        acc(2)
        bc(3)
        a('s_mov_b32 exec_hi, 0')
        sel(3)
        acc(3)
        a('v_bfi_b32 %s, %s, %s, %s' % (v(T), v(vTagM), s(sTag + k2), v(T)))
        lstore('global_store_dword', v(vPubL), v(T), BUF_A if k2 % 2 == 0 else BUF_B)
        a('s_mov_b32 exec_hi, -1')
        stamp(pre + ' S pub')
        if layer == 0 and ORD:
            tr_reads(vWO, vTr, 0, 4, 4096, 512)
        if layer == 0 and OPT['fl'] and OPT['flp'] == 1:
            a('s_waitcnt vmcnt(0)')
            flag_store(sTag + 6)
            stats_load(k2)
            lstore('global_store_dword', v(vStP), v(vSt), 512 * (k2 & 1))
        a('; ---- layer %d: combine the 8 key blocks, output projection partials' % layer)
        mj, mg, mo, lo = T, T + 1, vC, vC + 1

        def sm_spec(x):
            dpp('v_max_f32', mj, x, x, X1)
            a('v_mov_b32 %s, %s' % (v(mo), v(x)))
            a('v_mov_b32 %s, %s' % (v(lo), v(x + 1)))

        def sm0():
            allred('v_max_f32', mj, T + 2, [1])
            dpp('v_max_f32', mg, mj, mj, 'row_ror:8')
            allred('v_max_f32', mg, T + 2, [4, 5])

        def sm1():
            a('v_sub_f32 %s, %s, %s' % (v(mo), v(mo), v(mg)))
            a('v_sub_f32 %s, %s, %s' % (v(mj), v(mj), v(mg)))
            a('v_exp_f32 %s, %s' % (v(mo), v(mo)))
            a('v_exp_f32 %s, %s' % (v(mj), v(mj)))
            a('v_mul_f32 %s, %s, %s' % (v(mo), v(mo), v(lo)))
            allred('v_add_f32', mo, T + 2, [0, 1, 3, 4, 5])
            a('v_rcp_f32 %s, %s' % (v(mo), v(mo)))
            a('v_mul_f32 %s, %s, %s' % (v(vF), v(mj), v(mo)))

        def spec2(x):
            mask_tag(x)
            a('v_pk_mul_f32 %s, %s, %s op_sel_hi:[1,0]' % (v(x + 2, 2), v(x + 2, 2), v(vF, 2)))
            a('v_pk_mul_f32 %s, %s, %s op_sel_hi:[1,0]' % (v(x, 2), v(x, 2), v(vF, 2)))
            red_a(x, r)
        l_gather(k2, spec2, sm_spec, [sm0, sm1], hook=(lambda: flag_store(sTag + 6)) if layer == 0 and OPT['fl'] and OPT['flp'] == 0 else None)
        stamp(pre + ' E2 ok')
        red_b(r, r)
        a('v_cvt_pk_bf16_f32 %s, %s, %s' % (v(r), v(r), v(r)))
        a('ds_write_b16 %s, %s offset:%d' % (v(vQw), v(r), OB))

        def ffn_rest():
            issue_w13(FE, 4)
            if not OPT['w2e']:
                issue_w2()
        if layer == 0 and OPT['ff'] in (2, 3):
            ffn_rest()
        if layer == 0 and OPT['ff'] == 6:
            issue_w13(FE, 4)
        if layer == 0 and OPT['ff'] == 11:
            issue_w13(0, 1)
        if layer == 0 and OPT['ff'] == 12:
            issue_w13(0, 2)
        if layer == 0 and OPT['ff'] == 7 and not ORD:
            if OPT.get('xw', 0) & 2:
                only_if(True, lambda: issue_w13(FE, 2))
            else:
                issue_w13(FE, 2)
        a('s_waitcnt lgkmcnt(0)')
        a('s_barrier')
        if layer == 0 and OPT['ff'] == 5:
            gemv_publish_g(4, vWO, OB, 0, G_C, tr=True, mid=lambda: issue_w13(FE, 2), post=lambda: issue_w13(2, 4))
            issue_w2()
        elif layer == 0 and ORD:
            if OPT.get('r0', 1) and ORD6:
                gemv_publish_g(4, vWO, OB, 0, G_C, mid=race_prep, post=race_start)
            else:
                gemv_publish_g(4, vWO, OB, 0, G_C)
        elif layer == 0 and OPT['probe'] == 2:
            gemv_publish_g(4, vWO, OB, 0, G_C, tr=True, mid=race_prep, post=race_start)
        else:
            gemv_publish_g(4, vWO, OB, 2 * layer, G_C, tr=layer == 0)
        stamp(pre + ' O pub')
        a('; ---- layer %d: x slice, gate/up partials' % layer)
        set_tags(k4)
        if layer == 0 and OPT['ff'] == 1:
            nrest = 4 - FE + (0 if OPT['w2e'] else 2)
            if OPT['fl']:
                a('v_lshlrev_b32 %s, 7, %s' % (v(T + 5), v(vL)))
                a('v_add_u32 %s, %d, %s' % (v(T + 5), WS_F, v(T + 5)))
                flag_load()
            ffn_rest()
            if OPT['fl']:
                flag_wait(nrest)
            else:
                a('s_waitcnt vmcnt(%d)' % nrest)
            stamp('G0 ack')
            x_gather(0, G_C, work=probe_near if OPT['probe'] else None)
        else:
            flush_deferred()
            if layer == 0 and OPT['ff'] == 4:
                ffn_rest()
            if layer == 0 and OPT['ff'] == 10:
                a('s_waitcnt vmcnt(0)')
                ffn_rest()
            if layer == 0 and OPT['ff'] == 11:
                issue_w13(1, 4)
                issue_w2()
            if layer == 0 and OPT['ff'] == 12:
                issue_w13(2, 4)
                a('s_waitcnt vmcnt(2)')
                issue_w2()
            if layer == 0 and ORD and not ORD6:
                issue_w13(NF, 4)
                issue_w2()
            if layer == 0 and ORD and NF == 4:
                tr_reads(vW13, vTr, W1 - WO, 2, 4096, 512)
                tr_reads(vW13 + 8, vTr, W3 - WO, 2, 4096, 512)
            if layer == 0 and ORD6:
                if OPT.get('r0', 1):
                    race_pick()
                    a('s_waitcnt lgkmcnt(0)')
                tr_reads(vW13, vTr, W1 - WO, 2, 4096, 512)
                tr_reads(vW13 + 8, vTr, W3 - WO, 2, 4096, 512)
                a('v_and_b32 %s, 32, %s' % (v(T + 1), v(vL)))
                a('v_lshlrev_b32 %s, 6, %s' % (v(T + 1), v(T + 1)))
                a('v_sub_u32 %s, %s, %s' % (v(T + 1), v(vTr), v(T + 1)))
                tr_reads(vW2, vTr, W2 - WO, 1, 4096, 512)
                tr_reads(vW2 + 4, T + 1, W2 - WO + 4096, 1, 4096, 512)
            if layer == 0 and OPT['ff'] == 7 and not ORD:
                if OPT.get('xw', 0) & 2:
                    only_if(False, lambda: issue_w13(FE, 2))
                if OPT.get('xw', 0) & 4:
                    only_if(False, lambda: a('s_waitcnt vmcnt(0)'))
                issue_w13(2, 4)
            if layer == 0 and OPT['ff'] in (6, 7) and not ORD:
                issue_w2()
            if layer == 0 and OPT.get('gpre', 5) in (3, 4):
                late_pre()
            if OPT['pages'] == 2:
                page_break()
            if layer == 0 and OPT.get('otouch'):
                sk = newlabel('noout')
                a('s_cmp_lg_u32 %s, 0' % s(sGam))
                a('s_cbranch_scc1 %s' % sk)
                a('global_load_ushort %s, %s, s[22:23]' % (v(T + 22), v(vXw)))
                a.label(sk)
            if layer == 0 and (OPT['opre'] and OPT['clean'] & 8 or OPT['opre'] == 2):
                sk = newlabel('noout')
                a('s_cmp_lg_u32 %s, 0' % s(sGam))
                a('s_cbranch_scc1 %s' % sk)
                a('s_mov_b32 exec_lo, 0x000f000f')
                a('s_mov_b32 exec_hi, 0x000f000f')
                a('global_store_short %s, %s, s[22:23] sc1' % (v(vXw), v(vZero)))
                a('s_mov_b64 exec, -1')
                a.label(sk)
            if layer == 0 and OPT['probe'] == 2:
                assert OPT['ff'] == 4
                race_finish(1 + 4 - FE + 2)
                if not OPT['vlate']:
                    count_votes()
            if layer == 0 and OPT['probe'] == 1:
                probe_near()
                if not OPT['vlate']:
                    count_votes()
            if layer == 0 and OPT['fl']:
                a('v_lshlrev_b32 %s, 7, %s' % (v(T + 5), v(vL)))
                a('v_add_u32 %s, %d, %s' % (v(T + 5), WS_F, v(T + 5)))
                flag_load()
                flag_wait(0)
            if layer == 0 and OPT.get('g0w'):
                flush_deferred()
                a('s_waitcnt vmcnt(%d)' % OPT['g0w'])
            elif layer or OPT['ff'] != 3:
                g_pace(2 * layer)
            else:
                for i in range(OPT.get('xs', 0)):
                    a('s_nop 15')
                stamp('G0 ack')
            x_gather(2 * layer, G_C)
        stamp(pre + ' E3 ok')
        x_to_lds(k4)
        if not W4:
            a('s_cmp_eq_u32 %s, 3' % s(sW))
        a('s_waitcnt lgkmcnt(0)')
        idle = None if W4 else newlabel('idle')

        proj(vW13, k4, layer, wsrc=[(vTr, W1 - WO, 4096, 512), (vTr, W3 - WO, 4096, 512)] if layer == 0 and not (ORD and NF >= 4) else None, skip=idle)
        stamp(pre + ' G pub')
        if layer == 1 and CLEAN():
            a('v_mov_b32 %s, %s' % (v(vKeep), v(T)))
        a('; ---- layer %d: gather gate/up, activation' % layer)

        def w2_regs():
            if ORD6:
                return
            if W4:
                tr_reads(vW2, vTr, W2 - WO, 2, 4096, 512)
                return
            a('v_and_b32 %s, 32, %s' % (v(T + 1), v(vL)))
            a('v_lshlrev_b32 %s, 6, %s' % (v(T + 1), v(T + 1)))
            a('v_sub_u32 %s, %s, %s' % (v(T + 1), v(vTr), v(T + 1)))
            tr_reads(vW2, vTr, W2 - WO, 1, 4096, 512)
            tr_reads(vW2 + 4, T + 1, W2 - WO + 4096, 1, 4096, 512)

        def ln_all():
            w2_regs()
            ln_mean()
            ln_rstd_a()
            ln_rstd_b(False)
        if layer == 0 and OPT.get('r4', 1):
            cs = {vDs[0]: vD + 16, vDs[1]: vD + 20}

            def issue4(x):
                gload(x, vCons, sLb, BUF_A)
                gload(cs[x], vCons, sLb, BUF_X)

            def spec4(x):
                y = cs[x]
                mask_tag(x)
                mask_tag(y)
                a('v_permlane32_swap_b32 %s, %s' % (v(x + 1), v(x + 3)))
                a('v_permlane32_swap_b32 %s, %s' % (v(y + 1), v(y + 3)))
                a('v_add_f32 %s, %s, %s' % (v(r + 1), v(x + 1), v(x + 3)))
                a('v_add_f32 %s, %s, %s' % (v(r + 5), v(y + 1), v(y + 3)))
                a('v_permlane32_swap_b32 %s, %s' % (v(x), v(x + 2)))
                a('v_permlane32_swap_b32 %s, %s' % (v(y), v(y + 2)))
                a('v_add_f32 %s, %s, %s' % (v(r + 4), v(y), v(y + 2)))
                a('v_add_f32 %s, %s, %s' % (v(r), v(x), v(x + 2)))
            stats_load(k4, vSs[1])
            flush_deferred()
            if OPT.get('u0', 0) & 4:
                stats_ring_u(2, ln_spec, lambda: issue4(vDs[0]), 2)
                if OPT.get('u1', 0):
                    ln_mean()
                    issue4(vDs[1])
                else:
                    issue4(vDs[1])
                    ln_mean()
            else:
                ring2(vSs, lambda x: stats_load(2, x), lambda x: chk_stats(x, 2), ln_spec, 1, 1, 2)
                issue4(vDs[0])
                ln_mean()
                issue4(vDs[1])
            ln_rstd_a()
            ln_rstd_b(False)
            w2_regs()
            ring2(vDs, issue4, lambda x: chk_byte([x, cs[x]], sTag + 2), spec4, 2, 2, 2)
            a('v_permlane16_swap_b32 %s, %s' % (v(r + 4), v(r + 5)))
            a('v_add_f32 %s, %s, %s' % (v(r + 4), v(r + 4), v(r + 5)))
            L0COL.append(1)
        elif layer == 0:
            loads = [(r, vCons, sLb, BUF_A), (r + 4, vCons, sLb, BUF_X)]

            def data():
                ln_spec(vSs[0])
                for x in loads:
                    gload(*x)

            def spec4():
                mask_tag(r)
                mask_tag(r + 4)
                red_a(r, r)
            flush_deferred()
            poll([(vSs[0], vStC, sLb, 0)], lambda: chk_stats(vSs[0], k4), data, cnt=1, issued=True)
            poll(loads, lambda: chk_byte([r, r + 4], sTag + k4), spec4, work=ln_all, issued=True)
            red_a(r + 4, r + 4)
            red_b(r + 4, vCg)
        else:
            l_gather(k4, spec, ln_spec, [ln_mean, ln_rstd_a, lambda: ln_rstd_b(False)])
        stamp(pre + ' E4 ok')
        if L0COL:
            L0COL.pop()
            a('v_permlane16_swap_b32 %s, %s' % (v(r), v(r + 1)))
            a('v_add_f32 %s, %s, %s' % (v(r), v(r), v(r + 1)))
            dpp('v_add_f32', vCg, r + 4, r + 4, 'row_ror:8')
            dpp('v_add_f32', r, r, r, 'row_ror:8')
        else:
            red_b(r, r)
        a('v_fma_f32 %s, -%s, %s, %s' % (v(r), v(vMean), v(vCg), v(r)))
        a('v_mul_f32 %s, %s, %s' % (v(r), v(r), v(vRs)))
        bf16r(r, r)
        a('v_mul_f32 %s, %s, %s' % (v(r + 1), s(sNl2e), v(r)))
        a('v_exp_f32 %s, %s' % (v(r + 1), v(r + 1)))
        a('v_and_b32_dpp %s, %s, %s row_shl:4 row_mask:0xf bank_mask:0xf' % (v(r + 2), v(r), v(vHmask)))
        a('v_add_f32 %s, 1.0, %s' % (v(r + 1), v(r + 1)))
        a('v_rcp_f32 %s, %s' % (v(r + 1), v(r + 1)))
        a('v_mul_f32 %s, %s, %s' % (v(r), v(r), v(r + 1)))
        bf16r(r, r)
        a('v_mul_f32 %s, %s, %s' % (v(r), v(r), v(r + 2)))
        a('v_cvt_pk_bf16_f32 %s, %s, %s' % (v(r), v(r), v(r)))
        a('ds_write_b16 %s, %s' % (v(vHw), v(r)))
        if W4:
            pass
        elif layer == 0:
            join = newlabel('join')

            def idle_path(idle=idle, join=join, w2_regs=w2_regs):
                a.label(idle)
                w2_regs()
                if EP in (2, 4):
                    epoch(join)
                a('s_branch %s' % join)
            deferred.append(idle_path)
            a.label(join)
        else:
            join = newlabel('join')

            def idle_path1(idle=idle, join=join):
                a.label(idle)
                a('v_mov_b32 %s, %s' % (v(vKeep), s(sTag + 5)))
                if EP in (0, 1, 3):
                    epoch(join)
                a('s_branch %s' % join)
            deferred.append(idle_path1)
            a.label(join)
        a('s_waitcnt lgkmcnt(0)')
        a('s_barrier')
        if layer == 0 and OPT['probe'] == 3 and not (ORD6 and OPT.get('r0', 1)):
            gemv_publish_g(2, vW2, HB, 1, G_D, mid=race_prep, post=race_start)
        else:
            gemv_publish_g(2, vW2, HB, 2 * layer + 1, G_D, mid=clean_a if layer == 1 and CLEAN() & 2 and not OPT['cend'] & 2 else None)
        stamp(pre + ' D pub')

    a('; ---- final sum (group 0 only)')
    if OPT.get('opack'):
        a('v_mov_b32 %s, 0xffff' % v(T + 11))
        a('v_and_b32 %s, 0x7c, %s' % (v(T + 12), v(vXw)))
    if CLEAN() & 4:
        fin = newlabel('last')
        if OPT.get('cx0', 1):
            a('s_cmp_ge_u32 %s, 4' % s(sGam))
            a('s_cbranch_scc1 L_fin')
        clean_b_prep()
        a('s_cmp_eq_u32 %s, 0' % s(sGam))
        a('s_cbranch_scc1 %s' % fin)

        def clean_all():
            clean_b()
            if OPT['cend'] & 2:
                clean_a()
            if OPT['cend'] & 1:
                clean_x()
        a('s_waitcnt vmcnt(%d)' % 0)
        clean_all()
        a('s_branch L_fin')
        flush_deferred(False)
        a.label(fin)
        g_pace(3)
        x_gather(3, G_D, work=clean_all, cnt=1 + bin(OPT['cend'] & 3).count('1'))
    else:
        if W4:
            sk = newlabel('noep')
            a('s_lshl_b32 s55, s2, 2')
            a('s_add_u32 s55, s55, %s' % s(sW))
            a('s_cmp_lg_u32 s55, %d' % (255 * 4))
            a('s_cbranch_scc1 %s' % sk)
            a('s_add_u32 s55, %s, 16' % s(sE))
            a('v_mov_b32 %s, s55' % v(T + 2))
            a('s_mov_b64 exec, 1')
            a('global_store_dword %s, %s, s[26:27]' % (v(vZero), v(T + 2)))
            a('s_branch L_fin')
            a.label(sk)
        if OPT.get('wb1') and FAST[0]:
            sk = newlabel('nowb')
            a('s_lshl_b32 s55, s2, 2')
            a('s_add_u32 s55, s55, %s' % s(sW))
            a('s_cmp_lg_u32 s55, %d' % (64 * 4))
            a('s_cbranch_scc1 %s' % sk)
            if OPT['wb1'] == 2:
                a('s_waitcnt vmcnt(0)')
            a('buffer_wbl2 sc1')
            a.label(sk)
        a('s_cmp_lg_u32 %s, 0' % s(sGam))
        a('s_cbranch_scc1 L_fin')
        g_pace(3)
        x_gather(3, G_D)
    sc = ' sc1' if OPT['clean'] & 8 else ''
    if OPT.get('opack'):
        a('v_mov_b32 %s, %s' % (v(T + 1), v(T)))
        a('v_permlane16_swap_b32 %s, %s' % (v(T), v(T + 1)))
        a('v_bfi_b32 %s, %s, %s, %s' % (v(T), v(T + 11), v(T), v(T + 1)))
        if OPT['opack'] == 2:
            a('v_mov_b32 %s, %s' % (v(T + 1), v(T)))
            a('v_permlane32_swap_b32 %s, %s' % (v(T), v(T + 1)))
            a('s_mov_b64 exec, 15')
            a('global_store_dwordx2 %s, %s, s[22:23]%s' % (v(T + 12), v(T, 2), sc))
        else:
            a('s_mov_b32 exec_lo, 15')
            a('s_mov_b32 exec_hi, 15')
            a('global_store_dword %s, %s, s[22:23]%s' % (v(T + 12), v(T), sc))
    else:
        a('s_mov_b32 exec_lo, 0x000f000f')
        a('s_mov_b32 exec_hi, 0x000f000f')
        a('global_store_short %s, %s, s[22:23]%s' % (v(vXw), v(T), sc))


front()
FAST[0] = bool(OPT['fast'])
tail()
a.label('L_fin')
if OPT.get('dirty'):
    if 'dx' in OPT:
        a('s_and_b32 s55, s2, 7')
        a('s_cmp_eq_u32 s55, 0')
        a('s_cbranch_scc%d L_nodirty' % OPT['dx'])
    a('s_mov_b64 exec, -1')
    a('s_lshl_b32 s55, s2, 2')
    a('s_add_u32 s55, s55, %s' % s(sW))
    a('s_lshl_b32 s55, s55, 15')
    a('s_add_u32 s55, s55, 0x400000')
    a('v_lshl_add_u32 %s, %s, 4, s55' % (v(T + 1), v(vL)))
    for i in range(OPT['dirty']):
        a('global_store_dwordx4 %s, %s, s[26:27]' % (v(T + 1), v(vD, 4)))
        a('v_add_u32 %s, 1024, %s' % (v(T + 1), v(T + 1)))
if OPT.get('dirty'):
    a.label('L_nodirty')
if OPT.get('dbgpol'):
    a('s_mov_b64 exec, -1')
    a('v_xor_b32 %s, %s, %s' % (v(T + 2), v(vConsG), v(vConsG0)))
    a('v_readfirstlane_b32 s6, %s' % v(T + 2))
    a('s_cmp_lg_u32 s6, 0')
    a('s_cselect_b32 s6, 1, 0')
    a('s_lshr_b32 s7, %s, 2' % s(sXcc))
    a('s_xor_b32 s6, s6, s7')
    a('s_lshr_b32 s7, %s, 1' % s(sW))
    a('s_xor_b32 s6, s6, s7')
    a('s_lshl_b32 s6, s6, 4')
    a('s_lshl_b32 s6, 1, s6')
    a('v_mov_b32 %s, s6' % v(T + 2))
    a('s_and_b32 s7, %s, 7' % s(sXcc))
    a('s_lshl_b32 s7, s7, 2')
    a('v_mov_b32 %s, s7' % v(T + 3))
    a('s_mov_b64 exec, 1')
    a('global_atomic_add %s, %s, s[24:25]' % (v(T + 3), v(T + 2)))
if OPT.get('wb'):
    a('buffer_wbl2 sc1')
if OPT.get('delay'):
    if 'only' in OPT:
        a('s_cmp_lg_u32 s2, %d' % OPT['only'])
        a('s_cbranch_scc1 L_end')
    a.label('L_dly')
    a('s_memrealtime s[6:7]')
    a('s_waitcnt lgkmcnt(0)')
    a('s_sub_u32 s8, s6, s100')
    a('s_cmp_lt_u32 s8, %d' % OPT.get('until', 3000))
    a('s_cbranch_scc1 L_dly')
if DIAG:
    a('s_mov_b64 exec, -1')
    a('s_memrealtime s[4:5]')
    a('s_waitcnt lgkmcnt(0)')
    a('v_mov_b32 %s, 0' % v(T))
    for i in range(len(stamps)):
        a('v_writelane_b32 %s, %s, %d' % (v(T), s(stamp_regs[i]), i))
    a('v_writelane_b32 %s, s4, %d' % (v(T), len(stamps)))
    a('v_xor_b32 %s, %s, %s' % (v(T + 2), v(vConsG), v(vConsG0)))
    a('v_readfirstlane_b32 s6, %s' % v(T + 2))
    a('v_writelane_b32 %s, s6, 62' % v(T))
    a('v_writelane_b32 %s, s12, 61' % v(T))
    a('v_writelane_b32 %s, s13, 60' % v(T))
    a('v_writelane_b32 %s, %s, 63' % (v(T), s(sXcc)))
    a('s_lshl_b32 s55, s2, 2')
    a('s_add_u32 s55, s55, %s' % s(sW))
    a('s_lshl_b32 s55, s55, 8')
    a('s_add_u32 s55, s55, %d' % WS_DIAG)
    a('v_lshl_add_u32 %s, %s, 2, s55' % (v(T + 1), v(vL)))
    a('global_store_dword %s, %s, s[26:27]' % (v(T + 1), v(T)))
a.label('L_end')
a('s_endpgm')
flush_deferred(False)
a.label('L_fastend')
if OPT['fast']:
    a('; ==== the same phases with write-through stores: taken when the group is spread over several XCDs')
    a.label('L_slowtail')
    FAST[0] = False
    a.hist = []
    a('s_nop 1')
    if LZ:
        sc_copies()
    tail()
    a('s_branch L_fin')
    flush_deferred(False)
    a('s_endpgm')
a.raw('''.section .rodata,"a"
.p2align 6
.amdhsa_kernel %s_kernel
  .amdhsa_next_free_vgpr %d
  .amdhsa_next_free_sgpr 102
  .amdhsa_accum_offset %d
  .amdhsa_group_segment_fixed_size 0
  .amdhsa_kernarg_size 96
  .amdhsa_user_sgpr_count 2
  .amdhsa_user_sgpr_kernarg_segment_ptr 1
  .amdhsa_system_sgpr_workgroup_id_x 1
  .amdhsa_float_denorm_mode_32 3
.end_amdhsa_kernel''' % (NAME, NVGPR, NVGPR))
sys.stdout.write(a.text())
if DIAG:
    sys.stderr.write('STAMPS ' + '|'.join(stamps + ['end']) + '\n')
sys.stderr.write('nops inserted: %d\n' % a.nops)
```

```python
import sys, math, struct
from asm import Asm

NAME = 'interleave_layers__sliding_block_cached__glu_gated_swiglu__decode'
OPT = dict(diag=0, fast=1, nt=1, kw=5, fe=0, wol=1, probe=3, vw=1, thr=90, pages=2, cnt=0, early=2, d0=0, refresh=0, spipe=1, late_rs=1, na=0, nsl=0, w2e=0, ff=7, vlate=1, fl=0, flp=0, pad=0, nva=8, ksplit=0, wopos=0, ool=0, stg=1, vq=0, clean=0, cend=1, opre=1)
for a_ in sys.argv[1:]:
    k_, v_ = a_.split('=')
    OPT[k_] = int(v_)
DIAG = OPT['diag']
NT = {0: '', 1: ' nt', 2: ' sc1 nt', 3: ' sc0 sc1 nt', 4: ' sc0 nt', 5: ' sc1', 6: ' sc0 sc1'}[OPT['nt']]
STAGE = not DIAG or DIAG == 6

XB, ONES, QB, OB, HB, MB, DUMMY, PB = 0, 128, 256, 512, 768, 896, 960, 1024
WQ, VI, WO = 4096, 20480, 53248
W1, W3, W2 = WO + 16384, WO + 24576, WO + 32768
W4 = OPT.get('w4', 0)
KI = WO + 38912 + 2048 * W4
LDS_BYTES = KI + 32768
WS_F = 0x10000
WS_L, WS_P, WS_G, WS_DIAG = 0x40000, 0xc0000, 0x100000, 0x200000
WS_L2D = 0x140000 + 0x100000 * OPT['pad']
BUF_A, BUF_X, BUF_B, STATS, VOTES = 0, 1024, 2048, 3072, 7168
ST0 = 8192
LZ, PB_, FL2 = OPT.get('lz', 1), OPT.get('pb', 2), OPT.get('fl2', 0)
PAD = OPT['pad']
GOFF = 4096 * PAD
G_C, G_D, G_H = -GOFF, (2048 << PAD) - GOFF, 1024 << PAD
G_X = (0x20000 << PAD) | 0x2000
WSH = 1 - PAD

vL, vCons, vPubL, vPw, vPubG, vStP, vStC, vTagM, vStP2 = range(1, 10)
vXw, vQw, vHw, vOpR, vXopR, vConsG, vConsG0, vCs, vZero, vMw = range(10, 20)
trq, vTr, vHmask, vX, vCq, vCg, vMean, vRs = 20, 22, 23, 24, 25, 26, 27, 28
vMr, vF = 29, 30
vWQ, vK, vV, vWO, vW13, vW2 = 32, 48, 80, 112, 128, 144
wo0, wo1, f0, f1, vPre, vVo = 144, 145, 146, 147, 148, 149
T = 152
vC = T + 12
vA = 176
vD = 192
vP = 224
vSt, vSt4, vKeep = 232, 236, 238
vCl = 20
vDs, vSs = [240, 244], [248, 252]
NVGPR = 256
sW, sJ, sGam, sPr, sE, sC0, sCnt, sXcc, sTo = 28, 29, 30, 31, 32, 33, 34, 35, 36
sLb, sGb0, sGb1 = 38, 40, 14
sPc, sT1 = 42, 44
sCs, sMaskHi, sInv512, sEps, sNl2e = 50, 51, 52, 53, 54
sM0, sM1, sHi, sCl = 56, 42, 46, 44
sTag = 60

a = Asm()
stamp_regs = list(range(70, 102, 2))
stamps = []
nstamp = [0]
lbl = [0]
FAST = [False]


def v(n, cnt=1):
    return 'v%d' % n if cnt == 1 else 'v[%d:%d]' % (n, n + cnt - 1)


def s(n, cnt=1):
    return 's%d' % n if cnt == 1 else 's[%d:%d]' % (n, n + cnt - 1)


def stamp(name):
    nstamp[0] += 1
    if OPT.get('delay') == 3 and OPT.get('at', 1) == nstamp[0]:
        a('s_memrealtime s[100:101]')
        sys.stderr.write('delay anchored at ' + name + '\n')
    keep = {0: False, 1: name[:2] not in ('L1', 'x ') and name[0] not in 'Gz', 2: name[:2] == 'L1', 5: name[0] == 'G' or name[3:] in ('O pub', 'D pub', 'E3 ok', 'E5 ok') or name in ('L0 E1 ok', 'L0 S pub', 'L0 E2 ok'),
            6: False, 7: name[:2] in ('L1', 'x '), 8: name[:2] == 'z1' or name in ('L1 E1 ok', 'L1 S pub', 'L1 E2 ok', 'L1 O pub', 'L1 E5 ok', 'L1 Q pub')}[DIAG]
    if not (keep or DIAG and name == 'start'):
        return
    if name not in stamps:
        if len(stamps) >= len(stamp_regs):
            return
        stamps.append(name)
    r = stamp_regs[stamps.index(name)]
    if OPT['cnt'] and name != 'start':
        a('s_sub_u32 %s, 0x40000, %s' % (s(r), s(sTo)))
    else:
        a('%s %s' % ('s_memtime' if DIAG in (7, 8) and name != 'x rt0' else 's_memrealtime', s(r, 2)))


def f32(x):
    return '0x%08x' % struct.unpack('<I', struct.pack('<f', x))[0]


def newlabel(p):
    lbl[0] += 1
    return 'L_%s_%d' % (p, lbl[0])


def lgkm(n):
    a('s_waitcnt lgkmcnt(%d)' % (n if STAGE else 0))


def mfma(d, x, y, c=None):
    a('v_mfma_f32_16x16x32_bf16 %s, %s, %s, %s' % (v(d, 4), v(x, 4), v(y, 4), '0' if c is None else v(c, 4)))


def dpp(op, d, x, y, ctl, rm=0xf):
    a('%s_dpp %s, %s, %s %s row_mask:0x%x bank_mask:0xf' % (op, v(d), v(x), v(y), ctl, rm))


X1, X2 = 'quad_perm:[1,0,3,2]', 'quad_perm:[2,3,0,1]'


def lstore(op, addr, data, off):
    a('%s %s, %s, %s offset:%d%s' % (op, addr, data, s(sLb, 2), off, '' if FAST[0] and not OPT.get('allsc') else ' sc1'))


def gload(d, vo, b, im):
    a('global_load_dwordx4 %s, %s, %s offset:%d sc1' % (v(d, 4), v(vo), s(b, 2), im))


def tick():
    a('s_sub_u32 %s, %s, 1' % (s(sTo), s(sTo)))
    a('s_cbranch_scc1 L_end')


deferred = []


def flush_deferred(jump=True):
    if not deferred:
        return
    l = newlabel('skip')
    if jump:
        a('s_branch %s' % l)
    hist = a.hist
    while deferred:
        a.hist = []
        deferred.pop(0)()
    a.hist = hist
    a.label(l)


def poll(loads, check, spec, work=None, cnt=0, issued=False, backoff=0, onretry=None):
    top, ent = newlabel('poll'), newlabel('pent')
    if not issued:
        for x in loads:
            gload(*x)
    if work:
        work()

    def retry():
        a.label(top)
        tick()
        if backoff:
            a('s_sleep %d' % backoff)
        if onretry:
            onretry()
        for x in loads:
            gload(*x)
        if cnt:
            a('s_waitcnt vmcnt(0)')
        if OPT['ool']:
            a('s_branch %s' % ent)
    if OPT['ool']:
        deferred.append(retry)
    else:
        a('s_branch %s' % ent)
        retry()
    a.label(ent)
    a('s_waitcnt vmcnt(%d)' % cnt)
    check()
    if spec:
        spec()
    a('s_cbranch_vccnz %s' % top)


def ring2(sets, issue, check, spec, cnt1, cnt0, first):
    top, ent, done = newlabel('ring'), newlabel('rent'), newlabel('rdone')

    def retry():
        a.label(top)
        tick()
        issue(sets[0])
        a('s_waitcnt vmcnt(%d)' % cnt1)
        check(sets[1])
        spec(sets[1])
        a('s_cbranch_vccz %s' % done)
        issue(sets[1])
        if first != cnt0:
            a('s_waitcnt vmcnt(%d)' % cnt0)
        if OPT['ool']:
            a('s_branch %s' % ent)
    if OPT['ool']:
        deferred.append(retry)
    else:
        a('s_branch %s' % ent)
        retry()
    a.label(ent)
    a('s_waitcnt vmcnt(%d)' % first)
    check(sets[0])
    spec(sets[0])
    a('s_cbranch_vccnz %s' % top)
    a.label(done)


def chk_byte(regs, tag):
    if len(regs) == 1:
        a('v_cmp_ne_u32_sdwa vcc, %s, %s src0_sel:BYTE_0 src1_sel:BYTE_0' % (v(regs[0]), s(tag)))
    else:
        a('v_bitop3_b32 %s, %s, %s, %s bitop3:0x7e' % (v(T + 23), v(regs[0]), v(regs[1]), s(tag)))
        a('v_cmp_ne_u32_sdwa vcc, %s, %s src0_sel:BYTE_0 src1_sel:DWORD' % (v(T + 23), v(vZero)))


def chk_stats(x, k):
    a('v_cmp_ne_u32 vcc, %s, %s' % (s(sTag + k), v(x + (2 if k % 3 == 1 else 1))))


def red_a(x, c):
    a('v_permlane32_swap_b32 %s, %s' % (v(x + 1), v(x + 3)))
    a('v_add_f32 %s, %s, %s' % (v(c + 1), v(x + 1), v(x + 3)))
    a('v_permlane32_swap_b32 %s, %s' % (v(x), v(x + 2)))
    a('v_add_f32 %s, %s, %s' % (v(c), v(x), v(x + 2)))


def red_b(c, out):
    a('v_permlane16_swap_b32 %s, %s' % (v(c), v(c + 1)))
    a('v_add_f32 %s, %s, %s' % (v(c), v(c), v(c + 1)))
    dpp('v_add_f32', out, c, c, 'row_ror:8')


def mask_tag(x):
    a('v_and_b32 %s, %s, %s' % (v(x), s(sMaskHi), v(x)))


def bf16r(dst, src):
    a('v_cvt_pk_bf16_f32 %s, %s, %s' % (v(dst), v(src), v(src)))
    a('v_and_b32 %s, 0xffff0000, %s' % (v(dst), v(dst)))


def allred(op, x, t, bits):
    for b in bits:
        if b < 4:
            dpp(op, x, x, x, {0: X1, 1: X2, 3: 'row_ror:8'}[b])
        else:
            a('v_mov_b32 %s, %s' % (v(t), v(x)))
            a('v_permlane%d_swap_b32 %s, %s' % (16 if b == 4 else 32, v(x), v(t)))
            a('%s %s, %s, %s' % (op, v(x), v(x), v(t)))


def set_tags(k):
    a('v_mov_b32 %s, %s' % (v(vSt + 2), s(sTag + k)))
    if k % 3 != 1:
        a('v_cndmask_b32 %s, %s, %s, %s' % (v(vSt4 + 1), v(vSt + 2), v(vSt + 3), s(sHi, 2)))


def ln_stats(k, addr=None, mid=None):
    g = vSt4
    a('v_mul_f32 %s, %s, %s' % (v(T + 7), v(g), v(g)))
    if mid:
        mid()
    a('v_permlane32_swap_b32 %s, %s' % (v(g), v(T + 7)))
    a('v_add_f32 %s, %s, %s' % (v(g), v(g), v(T + 7)))
    allred('v_add_f32', g, None, [0, 1])
    dpp('v_add_f32', g, g, g, 'row_bcast:15', 0xa)
    a('s_mov_b64 exec, %s' % s(sM1, 2))
    lstore('global_store_dwordx2', v(addr or vStP2), v(g, 2), 512 * (k & 1))
    a('s_mov_b64 exec, -1')


def ln_spec(x):
    a('v_permlane32_swap_b32 %s, %s' % (v(x), v(x + 2)))
    a('v_add_f32 %s, %s, %s' % (v(vC), v(x), v(x + 2)))


def ln_mean():
    c = vC
    allred('v_add_f32', c, c + 1, [4, 3, 0, 1])
    a('v_mul_f32 %s, %s, %s' % (v(c), s(sInv512), v(c)))
    a('v_mov_b32 %s, %s' % (v(c + 1), v(c)))
    a('v_permlane32_swap_b32 %s, %s' % (v(c), v(c + 1)))
    bf16r(vMean, c)


def ln_rstd_a():
    c = vC
    a('v_fma_f32 %s, -%s, %s, %s' % (v(c + 1), v(c), v(c), v(c + 1)))
    a('v_max_f32 %s, 0, %s' % (v(c + 1), v(c + 1)))
    bf16r(c + 1, c + 1)
    a('v_add_f32 %s, %s, %s' % (v(c + 1), s(sEps), v(c + 1)))
    bf16r(c + 1, c + 1)
    a('v_sqrt_f32 %s, %s' % (v(c + 1), v(c + 1)))


def ln_rstd_b(scale):
    c = vC
    bf16r(c + 1, c + 1)
    a('v_rcp_f32 %s, %s' % (v(vRs), v(c + 1)))
    if scale:
        a('v_mul_f32 %s, %s, %s' % (v(vCs), s(sCs), v(vRs)))


def stats_load(k, x=vSs[0]):
    gload(x, vStC, sLb, 512 * (k & 1))


def stats_ring_u(k, st_spec, first_data, nd):
    top, mid, done = newlabel('su'), newlabel('sm'), newlabel('sd')
    a('s_waitcnt vmcnt(2)')
    first_data()
    chk_stats(vSs[0], k)
    st_spec(vSs[0])
    a('s_cbranch_vccz %s' % done)
    stats_load(k, vSs[0])
    a('s_waitcnt vmcnt(%d)' % (1 + nd))
    a('s_branch %s' % mid)
    a.label(top)
    tick()
    stats_load(k, vSs[0])
    a('s_waitcnt vmcnt(1)')
    a.label(mid)
    chk_stats(vSs[1], k)
    st_spec(vSs[1])
    a('s_cbranch_vccz %s' % done)
    stats_load(k, vSs[1])
    a('s_waitcnt vmcnt(1)')
    chk_stats(vSs[0], k)
    st_spec(vSs[0])
    a('s_cbranch_vccnz %s' % top)
    a.label(done)


def l_gather(k, spec, st_spec, chain, hook=None):
    buf = BUF_A if k % 2 == 0 else BUF_B

    def d_issue(x):
        gload(x, vCons, sLb, buf)
    rf = OPT['refresh'] and OPT['d0']

    def s_issue(x):
        stats_load(k, x)
        if rf:
            d_issue(vDs[0])
    U0 = OPT.get('u0', 0) >> (k % 3) & 1
    if U0:
        stats_load(k, vSs[1])
        flush_deferred()
        stats_ring_u(k, st_spec, lambda: d_issue(vDs[0]), 1)
        if OPT.get('u1', 0):
            chain[0]()
            d_issue(vDs[1])
        else:
            d_issue(vDs[1])
            chain[0]()
        for c in chain[1:]:
            c()
        ring2(vDs, d_issue, lambda x: chk_byte([x], sTag + k), spec, 1, 1, 1)
        return
    if OPT['d0']:
        d_issue(vDs[0])
    if OPT['spipe']:
        stats_load(k, vSs[1])
        flush_deferred()
        ring2(vSs, s_issue, lambda x: chk_stats(x, k), st_spec, 2 if rf else 1, 3 if rf else 1, 2 + OPT['d0'])
    else:
        flush_deferred()
        poll([(vSs[0], vStC, sLb, 512 * (k & 1))], lambda: chk_stats(vSs[0], k), lambda: st_spec(vSs[0]), cnt=1 + OPT['d0'], issued=True)
    if k >= 3:
        stamp('x st%d' % k)
    if not OPT['d0']:
        d_issue(vDs[0])
        chain[0]()
        d_issue(vDs[1])
    else:
        d_issue(vDs[1])
        chain[0]()
    if hook:
        hook()
    for c in chain[1:]:
        c()
    ring2(vDs, d_issue, lambda x: chk_byte([x], sTag + k), spec, 1, 1, 1)


def x_gather(gi, imm, work=None, cnt=0):
    r = vP
    base = sGb0 if gi < 2 else sGb1

    XO = OPT.get('xo', 0)

    def check():
        if XO:
            a('v_bitop3_b32 %s, %s, %s, %s bitop3:0x7e' % (v(T + 23), v(r), v(r + 4), s(sTag + 6 + gi)))
        else:
            chk_byte([r, r + 4], sTag + 6 + gi)

    def spec():
        a('v_pk_add_f32 %s, %s, %s' % (v(r + 2, 2), v(r + 2, 2), v(r + 6, 2)))
        a('v_add_f32 %s, %s, %s' % (v(r + 1), v(r + 1), v(r + 5)))
        mask_tag(r)
        mask_tag(r + 4)
        a('v_add_f32 %s, %s, %s' % (v(r), v(r), v(r + 4)))
        red_a(r, r)
        if XO:
            a('v_cmp_ne_u32_sdwa vcc, %s, %s src0_sel:BYTE_0 src1_sel:DWORD' % (v(T + 23), v(vZero)))
            red_b(r, r)
    ad, onretry = vConsG, None
    if OPT.get('alt', 0) >> gi & 1:
        ad = T + 21
        a('v_mov_b32 %s, %s' % (v(ad), v(vConsG)))

        def onretry():
            a('v_xor_b32 %s, 0x%x, %s' % (v(ad), G_X, v(ad)))
    poll([(r, ad, base, imm), (r + 4, ad, base, imm + G_H)], check, spec, work=work, cnt=cnt,
         backoff=OPT.get('g%ds' % gi, 0), onretry=onretry)
    if not XO:
        red_b(r, r)
    dpp('v_add_f32', r, r, r, 'row_ror:4')
    bf16r(r, r)
    a('v_add_f32 %s, %s, %s' % (v(r), v(r), v(vX)))
    a('v_cvt_pk_bf16_f32 %s, %s, %s' % (v(T), v(r), v(r)))


def x_to_lds(k):
    a('ds_write_b16 %s, %s offset:%d' % (v(vXw), v(T), XB))
    a('v_and_b32 %s, 0xffff0000, %s' % (v(vSt4), v(T)))
    ln_stats(k, mid=lambda: a('v_and_b32 %s, 0xffff0000, %s' % (v(vX), v(T))))


def tr_pair(dst, addr, off, gstride):
    for g in range(2):
        a('ds_read_b64_tr_b16 %s, %s offset:%d' % (v(dst + 2 * g, 2), v(addr), off + g * gstride))


def proj(wreg, k, layer, wsrc=None, first=False, skip=None):
    rd = vXopR if layer == 0 else vOpR
    a('s_barrier')
    for kk in range(2):
        a('ds_read_b128 %s, %s offset:%d' % (v(vA + 4 * kk, 4), v(rd), XB + 64 * kk))
        if wsrc:
            for cg in range(2):
                ad, off, ks, gs = wsrc[cg]
                tr_pair(wreg + 8 * cg + 4 * kk, ad, off + kk * ks, gs)
    if skip:
        a('s_cbranch_scc1 %s' % skip)
    if not first and OPT['early'] == 1:
        stats_load(k)
    lgkm(7 if wsrc else 1)
    mfma(vD, vA, wreg)
    if wsrc:
        lgkm(5)
    mfma(vD + 4, vA, wreg + 8)
    if not first and OPT['early'] == 2:
        stats_load(k)
    lgkm(2 if wsrc else 0)
    mfma(vD, vA + 4, wreg + 4, vD)
    if wsrc:
        lgkm(0)
    mfma(vD + 4, vA + 4, wreg + 12, vD + 4)
    if not first and OPT['early'] == 0:
        stats_load(k)
    if layer == 1:
        a('s_mov_b32 exec_hi, 0')
    a('v_cndmask_b32 %s, %s, %s, %s' % (v(T), v(vD), v(vD + 4), s(sM0, 2)))
    a('v_bfi_b32 %s, %s, %s, %s' % (v(T), v(vTagM), s(sTag + k), v(T)))
    lstore('global_store_dword', v(vPubL), v(T), BUF_A if k % 2 == 0 else BUF_B)
    if layer == 1:
        a('s_mov_b32 exec_hi, -1')


def tr_reads(dst, addr, base, nk, kstride, gstride):
    for kk in range(nk):
        for g in range(2):
            a('ds_read_b64_tr_b16 %s, %s offset:%d' % (v(dst + 4 * kk + 2 * g, 2), v(addr), base + kk * kstride + g * gstride))


def gemv_publish_g(nk, wreg, src, gi, imm, tr=False, mid=None, post=None):
    for kk in range(nk):
        a('ds_read_b128 %s, %s offset:%d' % (v(vA + 4 * kk, 4), v(vOpR), src + 64 * kk))
        if tr:
            tr_pair(wreg + 4 * kk, vTr, 4096 * kk, 512)
    if mid:
        mid()
    for kk in range(nk):
        lgkm((nk - 1 - kk) * (3 if tr else 1))
        mfma(vD, vA + 4 * kk, wreg + 4 * kk, vD if kk else None)
    if post:
        post()
    if not PAD:
        a('s_mov_b32 exec_hi, 0')
    a('v_bfi_b32 %s, %s, %s, %s' % (v(T), v(vTagM), s(sTag + 6 + gi), v(vD)))
    st = 'global_store_dword %s, %s, %s offset:%d sc1' % (v(vPubG), v(T), s(sGb0 if gi < 2 else sGb1, 2), imm)
    if OPT['na'] >> gi & 1:
        a('s_mov_b32 exec_lo, s37')
        a(st)
        a('s_not_b32 exec_lo, s37')
        a(st)
        a('s_mov_b64 exec, -1')
    else:
        a(st)
        if not PAD:
            a('s_mov_b32 exec_hi, -1')


def g_pace(gi):
    flush_deferred()
    if OPT['na'] >> gi & 1:
        a('s_waitcnt vmcnt(1)')
        for i in range(OPT['nsl']):
            a('s_nop 7')
    else:
        a('s_waitcnt vmcnt(0)')
    if OPT.get('g%dd' % gi):
        a('s_sleep %d' % OPT['g%dd' % gi])
    stamp('G%d ack' % gi)


def probe_near():
    a('s_not_b32 s4, %s' % s(sE))
    a('s_xor_b32 s55, %s, 8192' % s(sPr))
    a('s_waitcnt lgkmcnt(0)')
    a('s_load_dword s4, s[26:27], %s' % s(sPr))
    a('s_load_dword s5, s[26:27], s55')
    a('s_lshl_b32 s59, %s, 2' % s(sJ))
    a('s_add_u32 s59, s59, %s' % s(sW))
    a('s_lshl_b32 s59, s59, 3')
    a('s_add_u32 s59, s59, %d' % VOTES)
    a('v_mov_b32 %s, s59' % v(T + 1))
    a('v_mov_b32 %s, %s' % (v(T + 3), s(sTag + 2)))
    a('s_waitcnt lgkmcnt(1)')
    a('s_memtime s[8:9]')
    a('s_cmp_eq_u32 s4, %s' % s(sE))
    a('s_cselect_b32 s6, %d, -1' % OPT['thr'])
    a('s_waitcnt lgkmcnt(0)')
    a('s_memtime s[10:11]')
    a('s_waitcnt lgkmcnt(0)')
    a('s_sub_u32 s7, s10, s8')
    a('s_cmp_gt_u32 s7, s6')
    a('s_cselect_b32 s6, 1, 0')
    if DIAG:
        a('s_mov_b32 s12, s7')
    a('v_mov_b32 %s, s6' % v(T + 2))
    a('s_mov_b64 exec, 1')
    lstore('global_store_dwordx2', v(T + 1), v(T + 2, 2), 0)
    a('s_mov_b64 exec, -1')


def race_prep():
    a('s_not_b32 s4, %s' % s(sTag + 6 if PB_ else sE))
    a('s_xor_b32 s5, %s, 8192' % s(sPr))
    a('v_mov_b32 %s, %s' % (v(T + 4), s(sPr)))


def race_start():
    a('global_load_dword %s, %s, s[26:27] sc1' % (v(T + 5), v(T + 4)))
    a('s_load_dword s4, s[26:27], s5')


def race_finish(behind):
    a('s_lshl_b32 s59, %s, 2' % s(sJ))
    a('s_add_u32 s59, s59, %s' % s(sW))
    a('s_lshl_b32 s59, s59, 3')
    a('s_add_u32 s59, s59, %d' % VOTES)
    a('v_mov_b32 %s, s59' % v(T + 1))
    a('v_mov_b32 %s, %s' % (v(T + 3), s(sTag + 2)))
    a('s_waitcnt vmcnt(%d)' % behind)
    a('s_cmp_eq_u32 s4, %s' % s(sE))
    a('s_cselect_b32 s6, 1, 0')
    if DIAG:
        a('s_mov_b32 s12, s6')
    a('v_mov_b32 %s, s6' % v(T + 2))
    a('s_mov_b64 exec, 1')
    lstore('global_store_dwordx2', v(T + 1), v(T + 2, 2), 0)
    a('s_mov_b64 exec, -1')
    a('s_waitcnt lgkmcnt(0)')


def race_pick():
    a('s_lshr_b32 s55, %s, 1' % s(sW))
    a('s_xor_b32 s59, s55, 1')
    a('s_mul_i32 s55, s55, 0x%x' % G_X)
    a('s_mul_i32 s59, s59, 0x%x' % G_X)
    if PB_:
        a('s_not_b32 s6, %s' % s(sTag + 6))
    a('s_waitcnt vmcnt(1)')
    a('s_cmp_lg_u32 s4, s6' if PB_ else 's_cmp_eq_u32 s4, %s' % s(sE))
    a('s_cselect_b32 s55, s59, s55')
    a('v_xor_b32 %s, s55, %s' % (v(vConsG), v(vConsG0)))
    if OPT['na']:
        a('s_cmp_eq_u32 s55, 0')
        a('s_cselect_b32 s37, 0xffff, %s' % s(sM0))


def count_votes():
    a('v_and_b32 %s, 31, %s' % (v(T + 4), v(vL)))
    a('v_lshlrev_b32 %s, 3, %s' % (v(T + 4), v(T + 4)))
    a('v_add_u32 %s, %d, %s' % (v(T + 4), VOTES, v(T + 4)))
    if OPT['vw'] and not OPT['vlate']:
        a('s_waitcnt vmcnt(0)')
    a('global_load_dwordx2 %s, %s, %s sc1' % (v(T + 2, 2), v(T + 4), s(sLb, 2)))
    a('s_lshr_b32 s55, %s, 1' % s(sW) if WSH else 's_and_b32 s55, %s, 1' % s(sW))
    a('s_xor_b32 s59, s55, 1')
    a('s_waitcnt vmcnt(0)')
    if OPT['probe'] == 2:
        a('v_cmp_eq_u32 vcc, %s, %s' % (s(sTag + 2), v(T + 3)))
        a('v_cmp_eq_u32 s[6:7], 0, %s' % v(T + 2))
        a('s_and_b32 s4, vcc_lo, s6')
        a('s_andn2_b32 s5, vcc_lo, s6')
    else:
        a('v_xor_b32 %s, %s, %s' % (v(T + 3), s(sTag + 2), v(T + 3)))
        a('v_xor_b32 %s, 1, %s' % (v(T + 2), v(T + 2)))
        a('v_or_b32 %s, %s, %s' % (v(T + 2), v(T + 2), v(T + 3)))
        a('v_cmp_eq_u32 vcc, 0, %s' % v(T + 2))
        a('s_and_b32 s4, vcc_lo, 0x%x' % (0x33333333 if WSH else 0x55555555))
        a('s_and_b32 s5, vcc_lo, 0x%x' % (0xcccccccc if WSH else 0xaaaaaaaa))
    a('s_bcnt1_i32_b32 s4, s4')
    a('s_bcnt1_i32_b32 s5, s5')
    if DIAG:
        a('s_lshl_b32 s13, s4, 8')
        a('s_add_u32 s13, s13, s5')
    a('s_cmp_ge_u32 s4, s5')
    a('s_cselect_b32 s55, s55, s59')
    if OPT['na']:
        a('s_cmp_eq_u32 s55, 0')
        a('s_cselect_b32 s37, 0xffff, %s' % s(sM0))
    a('s_mul_i32 s55, s55, 0x%x' % G_X)
    a('v_xor_b32 %s, s55, %s' % (v(vConsG), v(vConsG0)))


def flag_store(val):
    sk = newlabel('nofl')
    a('s_or_b32 s55, %s, %s' % (s(sJ), s(sW)))
    a('s_cbranch_scc1 %s' % sk)
    a('s_lshl_b32 s55, %s, 7' % s(sGam))
    a('s_add_u32 s55, s55, %d' % WS_F)
    a('v_lshl_add_u32 %s, %s, 2, s55' % (v(T + 21), v(vL)))
    a('v_mov_b32 %s, %s' % (v(T + 20), s(val)))
    a('s_mov_b32 exec_hi, 0')
    a('global_store_dword %s, %s, s[26:27] sc1' % (v(T + 21), v(T + 20)))
    a('s_mov_b32 exec_hi, -1')
    a.label(sk)


def flag_load():
    a('s_mov_b32 exec_hi, 0')
    a('global_load_dword %s, %s, s[26:27] sc1' % (v(T + 6), v(T + 5)))
    a('s_mov_b32 exec_hi, -1')


def flag_wait(cnt):
    top, ent = newlabel('fl'), newlabel('fle')
    a('s_branch %s' % ent)
    a.label(top)
    tick()
    flag_load()
    a('s_waitcnt vmcnt(0)')
    a.label(ent)
    a('s_waitcnt vmcnt(%d)' % cnt)
    a('v_cmp_ne_u32 vcc, %s, %s' % (s(sTag + 6), v(T + 6)))
    a('s_cmp_lg_u32 vcc_lo, 0')
    a('s_cbranch_scc1 %s' % top)


def clean_prep():
    a('v_and_b32 %s, 31, %s' % (v(T + 9), v(vL)))
    a('s_and_b32 s59, %s, 3' % s(sJ))
    a('s_lshl_b32 s59, s59, 7')
    a('s_add_u32 s59, s59, %d' % STATS)
    a('v_lshl_add_u32 %s, %s, 2, s59' % (v(T + 9), v(T + 9)))
    a('v_cndmask_b32 %s, %s, %s, %s' % (v(vCl), v(vPubL), v(T + 9), s(sHi, 2)))
    a('s_add_u32 s55, s59, %d' % (VOTES - STATS))
    a('s_add_u32 s59, s59, %d' % ST0)
    a('s_cmp_lt_u32 %s, 4' % s(sJ))
    a('s_cselect_b32 s59, s59, s55')
    a('v_and_b32 %s, 31, %s' % (v(T + 9), v(vL)))
    a('v_lshl_add_u32 %s, %s, 2, s59' % (v(T + 9), v(T + 9)))
    a('v_add_u32 %s, %d, %s' % (v(T + 10), BUF_X, v(vPubL)))
    a('v_cndmask_b32 %s, %s, %s, %s' % (v(vCl + 1), v(T + 10), v(T + 9), s(sHi, 2)))
    a('v_mov_b32 %s, %s' % (v(vCl + 2), s(sTag + 3)))
    a('s_cmp_lt_u32 %s, %d' % (s(sJ), 6 if OPT['probe'] in (1, 2) else 4))
    a('s_cselect_b32 %s, -1, 0' % s(sCl + 1))
    a('s_cmp_lt_u32 %s, 4' % s(sJ))
    a('s_cselect_b32 %s, -1, 0' % s(sCl))
    a('s_cmp_eq_u32 %s, 0' % s(sW))
    a('s_cselect_b32 %s, %s, 0' % (s(sCl), s(sCl)))
    a('s_cselect_b32 %s, %s, 0' % (s(sCl + 1), s(sCl + 1)))


def clean_x():
    a('s_mov_b32 exec_hi, %s' % s(sCl + 1))
    a('global_store_dword %s, %s, %s sc1' % (v(vCl + 1), v(vCl + 2), s(sLb, 2)))
    a('s_mov_b32 exec_hi, -1')


def clean_a():
    a('s_mov_b32 exec_hi, %s' % s(sCl))
    a('global_store_dword %s, %s, %s sc1' % (v(vCl), v(vCl + 2), s(sLb, 2)))
    a('s_mov_b32 exec_hi, -1')


def clean_b_prep():
    a('v_add_u32 %s, %d, %s' % (v(T + 9), 512, v(vCl)))
    a('v_add_u32 %s, %d, %s' % (v(T + 8), BUF_B, v(vCl)))
    a('v_cndmask_b32 %s, %s, %s, %s' % (v(T + 8), v(T + 8), v(T + 9), s(sHi, 2)))
    a('s_mov_b32 exec_lo, 0')
    a('s_mov_b32 exec_hi, %s' % s(sCl))
    sk = newlabel('nold')
    a('s_cbranch_execz %s' % sk)
    a('global_load_dword %s, %s, %s sc1' % (v(vKeep), v(T + 8), s(sLb, 2)))
    a.label(sk)
    a('s_mov_b64 exec, -1')


def clean_b():
    a('s_mov_b32 exec_hi, %s' % s(sCl))
    a('global_store_dword %s, %s, %s sc1' % (v(T + 8), v(vKeep), s(sLb, 2)))
    a('s_mov_b32 exec_hi, -1')


npage = [0]


def only_if(late, fn):
    sk = newlabel('xs')
    a('s_cmp_ge_u32 %s, 4' % s(sXcc))
    a('s_cbranch_scc%d %s' % (0 if late else 1, sk))
    fn()
    a.label(sk)


THIN = {0: 0xffffffff, 1: 0x01010101, 2: 0x11111111, 3: 0x0f0f0f0f}[OPT.get('thin', 0)]


def late_pre():
    a('v_mov_b32 %s, %s' % (v(T + 16), s(sE)))
    a('v_mov_b32 %s, %s' % (v(T + 17), s(sE)))
    a('s_mov_b32 exec_lo, 0x%x' % (0xffffffff if OPT.get('gpre') == 6 else 0 if OPT.get('gpre') == 4 else 0xffff0000 if FL2 else 0xff00ff00 & THIN))
    if THIN != 0xffffffff:
        a('s_mov_b32 exec_hi, 0x%x' % THIN)
    a('global_store_dwordx2 %s, %s, %s sc1' % (v(vPre), v(T + 16, 2), s(sGb0, 2)))
    a('s_mov_b64 exec, -1')


def page_break(force=False):
    if OPT['pages'] and (FAST[0] or force):
        l = newlabel('page')
        a('s_branch %s' % l)
        flush_deferred(False)
        a.raw('.p2align 12')
        if OPT.get('tramp') and not force:
            npage[0] += 1
            a.label('L_stub_%d' % npage[0])
            a.raw('    s_branch %s' % ('L_stub_2' if npage[0] == 1 and OPT['pages'] == 2 else 'L_stub_back'))
        a.label(l)
        if OPT.get('tramp') and force:
            a('s_branch L_stub_1')
            a.label('L_stub_back')


a.raw('''; kernarg: x, K, V, wq, wo, (B_x unused), w1, w3, w2, out, debug, ws  (8 bytes each)
;
; One persistent launch, 256 workgroups = 32 groups (attention head / 32-48 ffn columns) x 8 members (128 keys / 64 rows of x).
; Weights and the K/V window are read once (LDS-DMA, then transposing LDS reads) and stay in registers for both layers.
; Per layer: q partials -> [group] -> scores, softmax, PV -> [group] -> wo partials -> [32 groups] -> gate/up partials
;            -> [group] -> w2 partials -> [32 groups].   LayerNorm is applied after the projection:
;            rstd * (x.W - mean * colsum(W)), the statistics travel with the group hand-offs.
; Hand-offs go through d_ws in 64-byte sectors whose 16-byte granules carry a tag byte (tag = epoch word found in d_ws + constant + index
; of the hand-off; the epoch is advanced once per launch). Loads of handed-off data always bypass L1. Group hand-offs use plain
; stores only after the members have compared their XCC ids; otherwise the copy of the code at L_slowtail writes through.
; The all-to-all hand-offs are written twice, once into each half of memory; a wave reads the copy that is near to it.
; @launch grid=(256,1,1) block=(256,1,1) lds=%d
.amdgcn_target "amdgcn-amd-amdhsa--gfx950"
.text
.p2align 12
.globl %s_kernel
.p2align 8
.type %s_kernel,@function
%s_kernel:''' % (LDS_BYTES, NAME, NAME, NAME))
a('s_cmp_ge_u32 s2, 256')
a('s_cbranch_scc1 L_end')
a('s_load_dwordx16 s[4:19], s[0:1], 0')
a('s_load_dwordx8 s[20:27], s[0:1], 64')
stamp('start')
stamp('x rt0')
a('s_getpc_b64 %s' % s(sPc, 2))
a.label('L_pc')
a('v_lshlrev_b32 %s, 6, v0' % v(T))
a('v_min_u32 %s, L_fastend-L_pc-64, %s' % (v(T), v(T)))
if OPT.get('cpf', 32):
    a('s_cmp_lt_u32 s2, %d' % OPT.get('cpf', 32))
    a('s_cselect_b64 exec, -1, 1')
a('global_load_dword %s, %s, %s' % (v(T + 22), v(T), s(sPc, 2)))
if OPT.get('cpf', 32):
    a('s_mov_b64 exec, -1')
a('v_lshrrev_b32 %s, 6, v0' % v(T))
a('v_and_b32 %s, 63, v0' % v(vL))
a('v_readfirstlane_b32 %s, %s' % (s(sW), v(T)))
a('s_lshr_b32 s3, s2, 3')
a('s_and_b32 %s, s3, 7' % s(sJ))
a('s_lshr_b32 s3, s3, 3')
a('s_and_b32 s31, s2, 7')
a('s_lshl_b32 %s, s31, 2' % s(sGam))
a('s_add_u32 %s, %s, s3' % (s(sGam), s(sGam)))
u16, pos16, u8, pos8, l3, col16 = T + 1, T + 2, T + 3, T + 4, T + 5, T + 6
t0, t1, t2, t3 = T + 8, T + 9, T + 10, T + 11
k0 = T + 12


def pro_wq():
    a('v_lshrrev_b32 %s, 4, %s' % (v(u16), v(vL)))
    a('v_and_b32 %s, 15, %s' % (v(pos16), v(vL)))
    a('v_lshlrev_b32 %s, 1, %s' % (v(t2), v(u16)))
    a('v_xor_b32 %s, %s, %s' % (v(t2), v(t2), v(pos16)))
    a('v_lshlrev_b32 %s, 4, %s' % (v(t2), v(t2)))
    a('v_lshl_add_u32 %s, %s, 13, %s' % (v(t0), v(u16), v(t2)))
    a('v_xor_b32 %s, 0x80, %s' % (v(t1), v(t0)))
    a('v_add_u32 %s, %d, %s' % (v(t1), 2 * 31744, v(t1)))
    a('s_lshl_b32 s49, %s, 12' % s(sW))
    a('s_lshl_b32 s55, %s, 19' % s(sJ))
    a('s_lshl_b32 s56, %s, 17' % s(sW))
    a('s_add_u32 s55, s55, s56')
    a('s_lshl_b32 s56, %s, 8' % s(sGam))
    a('s_add_u32 s55, s55, s56')
    a('s_add_u32 m0, s49, %d' % WQ)


def pro_rest():
    a('v_and_b32 %s, 3, %s' % (v(l3), v(vL)))
    a('v_lshl_add_u32 %s, %s, 2, %s' % (v(col16), v(l3), v(u16)))
    a('s_lshl_b32 s48, %s, 5' % s(sW))
    a('v_lshl_add_u32 %s, %s, 1, s48' % (v(vXw), v(col16)))
    a('v_lshl_add_u32 %s, %s, 8, %s' % (v(vVo), v(u16), v(t2)))
    a('v_xor_b32 %s, 0x80, %s' % (v(vVo + 1), v(vVo)))
    a('v_xor_b32 %s, %s, %s' % (v(k0), v(u16), v(pos16)))
    a('v_lshlrev_b32 %s, 4, %s' % (v(k0), v(k0)))
    a('v_lshl_add_u32 %s, %s, 8, %s' % (v(k0), v(u16), v(k0)))
    for i in range(1, 4):
        a('v_xor_b32 %s, %d, %s' % (v(k0 + i), i << 6, v(k0)))
    a('s_lshl_b32 s48, %s, 7' % s(sJ))
    a('s_lshl_b32 s56, %s, 20' % s(sGam))
    a('s_lshl_b32 s58, %s, 15' % s(sJ))
    a('s_add_u32 s56, s56, s58')
    a('s_lshl_b32 s58, %s, 13' % s(sW))
    a('s_add_u32 s56, s56, s58')
    a('s_add_u32 s56, s56, %d' % (3072 * 256))


def pro_touch():
    a('v_lshl_add_u32 %s, %s, 4, s49' % (v(vCons), v(vL)))
    a('s_lshl_b32 s57, %s, 14' % s(sGam))
    a('s_add_u32 s57, s57, %d' % WS_L)
    a('s_add_u32 s3, s48, s57')
    if OPT.get('pt', 1) >= 2:
        a('s_add_u32 s3, s3, %d' % STATS)
        a('v_mov_b32 %s, s3' % v(t3))
        if OPT['pt'] == 3:
            a('s_and_b32 s3, s48, 0x180')
            a('s_add_u32 s3, s3, s57')
            a('s_add_u32 s3, s3, %d' % (STATS + ST0))
            a('v_writelane_b32 %s, s3, 5' % v(t3))
        return
    a('s_add_u32 s59, s3, s49')
    if OPT.get('pt', 1) == -1:
        a('v_and_b32 %s, 2, %s' % (v(t3), v(vL)))
        a('v_lshl_add_u32 %s, %s, 10, s59' % (v(t3), v(t3)))
    elif OPT.get('pt', 1):
        a('s_add_u32 s59, s59, %d' % BUF_B)
        a('v_mov_b32 %s, s59' % v(t3))
    else:
        a('v_lshl_add_u32 %s, %s, 10, s59' % (v(t3), v(vL)))
    a('v_cmp_lt_u32 vcc, 2, %s' % v(vL))
    a('s_add_u32 s3, s3, %d' % STATS)
    a('v_mov_b32 %s, s3' % v(T + 17))
    a('v_cndmask_b32 %s, %s, %s, vcc' % (v(t3), v(t3), v(T + 17)))
    if OPT['probe'] in (1, 2):
        a('s_add_u32 s3, s57, %d' % VOTES)
        a('v_writelane_b32 %s, s3, 3' % v(t3))
        a('s_add_u32 s3, s3, 128')
        a('v_writelane_b32 %s, s3, 4' % v(t3))
    a('s_and_b32 s3, s48, 0x180')
    a('s_add_u32 s3, s3, s57')
    a('s_add_u32 s3, s3, %d' % (STATS + ST0))
    a('v_writelane_b32 %s, s3, 5' % v(t3))


PRO = OPT.get('pro', 2)
pro_wq()
if PRO < 2:
    pro_rest()
if PRO < 1:
    pro_touch()
stamp('pre ka')
a('s_waitcnt lgkmcnt(0)')
stamp('ka')
a('s_add_u32 s10, s10, s55')
a('s_addc_u32 s11, s11, 0')
a('global_load_lds_dwordx4 %s, s[10:11] offset:0%s' % (v(t0), NT))
a('v_add_u32 %s, 31744, %s' % (v(t0), v(t0)))
a('s_load_dword %s, s[26:27], 0' % s(sE))
a('global_load_lds_dwordx4 %s, s[10:11] offset:1024%s' % (v(t0), NT))
a('global_load_lds_dwordx4 %s, s[10:11] offset:2048%s' % (v(t1), NT))
a('v_add_u32 %s, 31744, %s' % (v(t1), v(t1)))
a('global_load_lds_dwordx4 %s, s[10:11] offset:3072%s' % (v(t1), NT))
if PRO >= 2:
    pro_rest()
a('s_add_u32 s4, s4, s48')
a('s_addc_u32 s5, s5, 0')
a('global_load_ushort %s, %s, s[4:5]' % (v(vX), v(vXw)))
a('s_add_u32 s6, s6, s56')
a('s_addc_u32 s7, s7, 0')
if PRO < 1:
    a('global_load_dword %s, %s, s[26:27]' % (v(T + 22), v(t3)))
a('s_add_u32 m0, s58, %d' % KI)
stamp('wq iss')
if OPT.get('bar0', 1):
    a('s_barrier')
for i in range(4):
    a('global_load_lds_dwordx4 %s, s[6:7] offset:%d%s' % (v(k0 + i), 1024 * i, NT))


def k_second():
    a('s_add_u32 m0, s58, %d' % (KI + 4096))
    a('s_add_u32 s6, s6, 4096')
    a('s_addc_u32 s7, s7, 0')
    for i in range(4):
        a('global_load_lds_dwordx4 %s, s[6:7] offset:%d%s' % (v(k0 + i), 1024 * i, NT))


if not OPT['ksplit']:
    k_second()
if PRO >= 1:
    pro_touch()
    a('global_load_dword %s, %s, s[26:27]' % (v(T + 22), v(t3)))
stamp('issued')
a('s_add_u32 s8, s8, s56')
a('s_addc_u32 s9, s9, 0')
a('s_add_u32 %s, s26, s57' % s(sLb))
a('s_addc_u32 %s, s27, 0' % s(sLb + 1))
a('s_lshl_b32 s55, %s, %d' % (s(sJ), 14 + PAD))
a('s_add_u32 s55, s55, %d' % (WS_G + GOFF))
a('s_add_u32 %s, s26, s55' % s(sGb0))
a('s_addc_u32 %s, s27, 0' % s(sGb0 + 1))
a('s_add_u32 %s, %s, 0x%x' % (s(sGb1), s(sGb0), 0x40000 << PAD))
a('s_addc_u32 %s, %s, 0' % (s(sGb1 + 1), s(sGb0 + 1)))
a('s_getreg_b32 %s, hwreg(HW_REG_XCC_ID, 0, 4)' % s(sXcc))
if PB_:
    if PB_ == 1:
        a('s_and_b32 %s, %s, 3' % (s(sPr), s(sGam)))
        a('s_lshl_b32 %s, %s, 2' % (s(sPr), s(sPr)))
        a('s_add_u32 %s, %s, %s' % (s(sPr), s(sPr), s(sW)))
        a('s_lshl_b32 %s, %s, 7' % (s(sPr), s(sPr)))
    else:
        a('s_and_b32 %s, %s, 15' % (s(sPr), s(sGam)))
        a('s_lshl_b32 %s, %s, 7' % (s(sPr), s(sPr)))
        a('s_lshr_b32 s59, %s, 4' % s(sGam))
        a('s_lshl_b32 s59, s59, 12')
        a('s_add_u32 %s, %s, s59' % (s(sPr), s(sPr)))
    a('s_add_u32 %s, %s, s55' % (s(sPr), s(sPr)))
    a('s_add_u32 %s, %s, 0x20000' % (s(sPr), s(sPr)))
else:
    a('s_lshl_b32 %s, s2, 2' % s(sPr))
    a('s_add_u32 %s, %s, %s' % (s(sPr), s(sPr), s(sW)))
    a('s_and_b32 s55, %s, 63' % s(sPr))
    a('s_lshl_b32 s55, s55, 7')
    a('s_lshr_b32 %s, %s, 6' % (s(sPr), s(sPr)))
    a('s_lshl_b32 %s, %s, 14' % (s(sPr), s(sPr)))
    a('s_add_u32 %s, %s, s55' % (s(sPr), s(sPr)))
    a('s_add_u32 %s, %s, %d' % (s(sPr), s(sPr), WS_P))
if OPT['probe'] == 1:
    a('s_lshl_b32 s55, s49, %d' % PAD)
    a('s_and_b32 s55, s55, 8192')
    a('s_add_u32 %s, %s, s55' % (s(sPr), s(sPr)))
a('s_mov_b32 %s, 0xffff0000' % s(sM0))
a('s_mov_b32 %s, 0xffff0000' % s(sM0 + 1))
a('s_mov_b32 %s, 0x10000' % s(sM1))
a('s_mov_b32 %s, 0x10000' % s(sM1 + 1))
a('s_mov_b32 %s, 0' % s(sHi))
a('s_mov_b32 %s, -1' % s(sHi + 1))
a('v_mov_b32 %s, 0' % v(vZero))
a('v_lshrrev_b32 %s, 3, %s' % (v(u8), v(vL)))
a('v_and_b32 %s, 7, %s' % (v(pos8), v(vL)))
a('s_add_u32 s55, s49, s48')
a('v_and_b32 %s, 31, %s' % (v(t0), v(vL)))
a('v_lshl_add_u32 %s, %s, 2, s55' % (v(vPubL), v(t0)))
a('v_lshrrev_b32 %s, 5, %s' % (v(t3), v(vL)))
a('v_lshl_add_u32 %s, %s, 10, %s' % (v(vPubL), v(t3), v(vPubL)))
a('s_lshl_b32 s55, %s, 6' % s(sW))
a('v_lshl_add_u32 %s, %s, 1, s55' % (v(vPw), v(t0)))
a('v_lshl_add_u32 %s, %s, 2, %s' % (v(t1), v(pos8), v(u16)))
a('v_lshl_add_u32 %s, %s, 1, s55' % (v(vQw), v(t1)))
a('s_lshl_b32 s55, %s, 6' % s(sGam))
a('s_add_u32 s55, s55, s49')
if PAD:
    a('s_lshl_b32 s55, s55, 1')
a('v_lshl_add_u32 %s, %s, 2, s55' % (v(vPubG), v(pos16)))
if PAD:
    a('v_lshl_add_u32 %s, %s, 6, %s' % (v(vPubG), v(t3), v(vPubG)))
a('v_and_b32 %s, 1, %s' % (v(t2), v(u16)))
a('v_mul_u32_u24 %s, 0x%x, %s' % (v(t2), G_X, v(t2)))
a('v_xor_b32 %s, %s, %s' % (v(vPubG), v(vPubG), v(t2)))
if FL2:
    a('v_lshl_add_u32 %s, %s, 3, s55' % (v(vPre), v(pos8)))
    a('v_and_b32 %s, 1, %s' % (v(t2), v(u8)))
    a('v_mul_u32_u24 %s, 0x%x, %s' % (v(t2), G_X, v(t2)))
    a('v_xor_b32 %s, %s, %s' % (v(vPre), v(vPre), v(t2)))
    a('s_and_b32 s55, s55, 0xffffffbf')
    a('s_and_b32 s59, %s, 1' % s(sGam))
    a('s_mul_i32 s59, s59, 0x%x' % G_X)
    a('s_xor_b32 s55, s55, s59')
    a('v_lshl_add_u32 %s, %s, 3, s55' % (v(t2), v(pos16)))
    a('v_and_b32 %s, 1, %s' % (v(t1), v(u16)))
    a('v_lshl_add_u32 %s, %s, 11, %s' % (v(t2), v(t1), v(t2)))
    a('v_lshl_add_u32 %s, %s, 18, %s' % (v(t2), v(t3), v(t2)))
    a('v_cmp_lt_u32 vcc, 15, %s' % v(vL))
    a('v_cndmask_b32 %s, %s, %s, vcc' % (v(vPre), v(vPre), v(t2)))
else:
    a('v_lshl_add_u32 %s, %s, %d, s55' % (v(vPre), v(pos8), 3 + PAD))
    a('v_xor_b32 %s, %s, %s' % (v(vPre), v(vPre), v(t2)))
    a('v_and_b32 %s, 1, %s' % (v(t2), v(u8)))
    a('v_lshl_add_u32 %s, %s, %d, %s' % (v(vPre), v(t2), 11 + PAD, v(vPre)))
    a('v_lshl_add_u32 %s, %s, %d, %s' % (v(vPre), v(t3), 18 + PAD, v(vPre)))
a('s_lshl_b32 s55, %s, 2' % s(sJ))
a('s_add_u32 s55, s55, %s' % s(sW))
a('s_lshl_b32 s55, s55, 4')
a('s_add_u32 s55, s55, %d' % STATS)
a('v_mov_b32 %s, s55' % v(vStP))
a('v_lshl_add_u32 %s, %s, 3, s55' % (v(vStP2), v(t3)))
a('v_lshlrev_b32 %s, 4, %s' % (v(t1), v(l3)))
a('v_lshl_add_u32 %s, %s, 6, %s' % (v(t1), v(u8), v(t1)))
a('v_add_u32 %s, %d, %s' % (v(vStC), STATS, v(t1)))
a('v_mov_b32 %s, 0xff' % v(t2))
a('v_cmp_eq_u32 vcc, 0, %s' % v(l3))
a('v_lshlrev_b32 %s, 4, %s' % (v(vOpR), v(u16)))
a('v_and_b32 %s, 8, %s' % (v(t1), v(vL)))
a('v_cndmask_b32 %s, 0, %s, vcc' % (v(vTagM), v(t2)))
a('v_lshl_add_u32 %s, %s, 4, %s' % (v(vXopR), v(t1), v(vOpR)))
a('s_lshl_b32 s55, %s, 2' % s(sW))
a('v_mov_b32 %s, s55' % v(vMw))
a('v_lshlrev_b32 %s, 2, %s' % (v(vMr), v(l3)))
a('v_lshlrev_b32 %s, 2, %s' % (v(t0), v(t0)))
a('v_mov_b32 %s, 0x3f803f80' % v(t1))
a('ds_write_b32 %s, %s offset:%d' % (v(t0), v(t1), ONES))
a('v_lshlrev_b32 %s, 2, %s' % (v(t0), v(pos8)))
if not W4:
    a('ds_write_b32 %s, %s offset:%d' % (v(t0), v(vZero), HB + 96))
if PAD:
    a('v_lshrrev_b32 %s, 2, %s' % (v(t1), v(vL)))
    a('v_lshlrev_b32 %s, 4, %s' % (v(t2), v(l3)))
    a('v_lshl_add_u32 %s, %s, 7, %s' % (v(t1), v(t1), v(t2)))
    a('s_lshl_b32 s59, s49, 1')
    a('v_add_u32 %s, s59, %s' % (v(vConsG), v(t1)))
else:
    a('v_mov_b32 %s, %s' % (v(vConsG), v(vCons)))
a('v_mov_b32 %s, %s' % (v(vConsG0), v(vConsG)))
a('v_mov_b32 %s, %s' % (v(vSt + 3), s(sXcc)))
r_ = T + 16
a('v_lshrrev_b32 %s, 2, %s' % (v(r_), v(pos16)))
a('v_and_b32 %s, 1, %s' % (v(t0), v(u16)))
a('v_lshl_add_u32 %s, %s, 2, %s' % (v(t1), v(t0), v(r_)))
a('v_lshlrev_b32 %s, 1, %s' % (v(t1), v(t1)))
a('v_xor_b32 %s, s55, %s' % (v(t1), v(t1)))
a('v_lshlrev_b32 %s, 4, %s' % (v(t1), v(t1)))
a('v_lshl_add_u32 %s, %s, 3, %s' % (v(t1), v(l3), v(t1)))
a('v_lshl_add_u32 %s, %s, 3, %s' % (v(t2), v(u16), v(r_)))
a('v_lshl_add_u32 %s, %s, 8, %s' % (v(trq), v(t2), v(t1)))
a('v_xor_b32 %s, 32, %s' % (v(trq + 1), v(trq)))
a('v_lshrrev_b32 %s, 1, %s' % (v(t1), v(r_)))
a('v_lshl_add_u32 %s, %s, 1, %s' % (v(t1), v(t0), v(t1)))
a('v_xor_b32 %s, %s, %s' % (v(t1), s(sW), v(t1)))
a('v_lshlrev_b32 %s, 5, %s' % (v(t1), v(t1)))
a('v_lshl_add_u32 %s, %s, 3, %s' % (v(t1), v(l3), v(t1)))
a('v_lshl_add_u32 %s, %s, 7, %s' % (v(vTr), v(t2), v(t1)))
a('v_add_u32 %s, %d, %s' % (v(vTr), WO, v(vTr)))


def late_consts():
    a('s_mov_b32 %s, 0x40000' % s(sTo))
    a('s_mov_b32 %s, %s' % (s(sCs), f32(math.log2(math.e) / math.sqrt(128.0))))
    a('s_mov_b32 %s, 0xffffff00' % s(sMaskHi))
    a('s_mov_b32 %s, %s' % (s(sInv512), f32(1.0 / 512)))
    a('s_mov_b32 %s, %s' % (s(sEps), f32(1e-5)))
    a('s_mov_b32 %s, %s' % (s(sNl2e), f32(-math.log2(math.e))))
    if OPT.get('fal', 5):
        if OPT.get('fal', 5) == 1:
            a('s_cmp_lt_u32 %s, 12' % s(sGam))
            a('s_cselect_b32 %s, 6, 5' % s(sCnt))
            a('s_cselect_b32 s55, 0, 12')
            a('s_mul_i32 %s, %s, %s' % (s(sC0), s(sGam), s(sCnt)))
            a('s_add_u32 %s, %s, s55' % (s(sC0), s(sC0)))
        else:
            pat = {2: [6, 6, 6, 6, 4, 5, 5, 5], 3: [6, 6, 6, 6, 4, 4, 5, 6], 4: [6, 6, 6, 6, 5, 4, 5, 5], 5: [6, 6, 6, 6, 4, 4, 6, 5], 6: [6, 6, 6, 6, 3, 4, 6, 6],
                   7: [7, 7, 7, 6, 4, 4, 4, 4], 8: [8, 7, 7, 6, 3, 3, 5, 4], 9: [8, 8, 8, 7, 2, 2, 4, 4], 10: [7, 7, 6, 6, 4, 4, 5, 4],
                   11: [6, 6, 6, 6, 5, 5, 5, 4], 12: [6, 6, 6, 6, 4, 5, 6, 4], 13: [6, 6, 6, 6, 5, 4, 6, 4]}[OPT.get('fal', 5)]
            assert sum(pat) == 43
            pre_ = [sum(pat[:g]) for g in range(8)]
            a('s_and_b32 s55, %s, 28' % s(sGam))
            a('s_lshr_b32 %s, 0x%x, s55' % (s(sCnt), sum(n << 4 * g for g, n in enumerate(pat))))
            a('s_and_b32 %s, %s, 15' % (s(sCnt), s(sCnt)))
            a('s_lshl_b32 s55, s55, 1')
            a('s_mov_b32 s24, 0x%x' % sum(n << 8 * g for g, n in enumerate(pre_[:4])))
            a('s_mov_b32 s25, 0x%x' % sum(n << 8 * g for g, n in enumerate(pre_[4:])))
            a('s_lshr_b64 s[24:25], s[24:25], s55')
            a('s_and_b32 s55, s24, 0xff')
            a('s_lshl_b32 s55, s55, 2')
            a('s_and_b32 %s, %s, 3' % (s(sC0), s(sGam)))
            a('s_mul_i32 %s, %s, %s' % (s(sC0), s(sC0), s(sCnt)))
            a('s_add_u32 %s, %s, s55' % (s(sC0), s(sC0)))
        a('s_sub_u32 s37, %s, 1' % s(sCnt))
        a('s_lshl_b32 %s, %s, 3' % (s(sCnt), s(sCnt)))
    else:
        a('s_mul_i32 %s, %s, 43' % (s(sC0), s(sGam)))
        a('s_add_u32 %s, %s, 43' % (s(sCnt), s(sC0)))
        a('s_lshr_b32 %s, %s, 3' % (s(sC0), s(sC0)))
        a('s_lshr_b32 %s, %s, 3' % (s(sCnt), s(sCnt)))
        a('s_sub_u32 %s, %s, %s' % (s(sCnt), s(sCnt), s(sC0)))
        a('s_lshl_b32 %s, %s, 3' % (s(sCnt), s(sCnt)))
        a('s_mov_b32 s37, 5')
    a('v_and_b32 %s, 4, %s' % (v(t1), v(vL)))
    a('v_cmp_eq_u32 vcc, 0, %s' % v(t1))
    a('v_add_u32 %s, %d, %s' % (v(t1), HB, v(vXw)))
    a('v_mov_b32 %s, %d' % (v(t2), DUMMY))
    a('v_cndmask_b32 %s, %s, %s, vcc' % (v(vHw), v(t2), v(t1)))
    a('v_lshrrev_b32 %s, 1, %s' % (v(t1), v(vXw)))
    a('v_cmp_gt_u32 vcc, %s, %s' % (s(sCnt), v(t1)))
    a('v_cndmask_b32 %s, 0, -1, vcc' % v(vHmask))
    a('v_and_b32 %s, 2, %s' % (v(t0), v(u8)))
    a('v_xor_b32 %s, %s, %s' % (v(t0), v(t0), v(pos8)))
    a('v_lshlrev_b32 %s, 4, %s' % (v(t1), v(t0)))
    a('v_lshl_add_u32 %s, %s, 10, %s' % (v(wo0), v(u8), v(t1)))
    a('v_xor_b32 %s, 64, %s' % (v(wo1), v(wo0)))
    a('v_add_u32 %s, 7168, %s' % (v(wo1), v(wo1)))
    a('v_mul_u32_u24 %s, 2752, %s' % (v(t2), v(u8)))
    a('v_min_u32 %s, s37, %s' % (v(t1), v(t0)))
    a('v_lshl_add_u32 %s, %s, 4, %s' % (v(f0), v(t1), v(t2)))
    a('v_xor_b32 %s, 4, %s' % (v(t0), v(t0)))
    a('v_min_u32 %s, s37, %s' % (v(t1), v(t0)))
    a('v_lshl_add_u32 %s, %s, 4, %s' % (v(f1), v(t1), v(t2)))
    a('v_add_u32 %s, %d, %s' % (v(f1), 8 * 2752 - 1024, v(f1)))
    a('s_lshl_b32 s55, %s, 17' % s(sGam))
    a('s_lshl_b32 s59, %s, 15' % s(sW))
    a('s_add_u32 s55, s55, s59')
    a('s_add_u32 s55, s55, s48')
    a('s_add_u32 s12, s12, s55')
    a('s_addc_u32 s13, s13, 0')
    a('s_lshl_b32 s55, %s, 2' % s(sJ))
    a('s_add_u32 s55, s55, %s' % s(sW))
    a('s_mul_i32 s55, s55, %d' % (16 * 2752))
    a('s_lshl_b32 s59, %s, 4' % s(sC0))
    a('s_add_u32 s55, s55, s59')
    a('s_add_u32 s16, s16, s55')
    a('s_addc_u32 s17, s17, 0')
    a('s_add_u32 s18, s18, s55')
    a('s_addc_u32 s19, s19, 0')
    a('s_lshl_b32 s55, %s, 13' % s(sC0))
    a('s_lshr_b32 s59, s37, 1')
    a('s_min_u32 s59, %s, s59' % s(sW))
    a('s_lshl_b32 s59, s59, 14')
    a('s_add_u32 s55, s55, s59')
    a('s_add_u32 s55, s55, s48')
    a('s_add_u32 s20, s20, s55')
    a('s_addc_u32 s21, s21, 0')
    if OPT.get('fal', 5):
        a('s_lshr_b32 s59, s59, 10')
        a('s_add_u32 s59, s59, 8')
        a('s_cmp_ge_u32 s59, %s' % s(sCnt))
        a('s_cselect_b32 s59, 8192, 0')
        a('s_sub_u32 s4, s20, s59')
        a('s_subb_u32 s5, s21, 0')
    a('s_add_u32 s22, s22, s48')
    a('s_addc_u32 s23, s23, 0')


if not OPT.get('cl', 0):
    late_consts()
if OPT['ksplit']:
    k_second()
a('s_add_u32 s6, s8, 4096')
a('s_addc_u32 s7, s9, 0')
a('s_waitcnt lgkmcnt(0)')
for k in range(10):
    a('s_add_u32 %s, %s, 0x%x' % (s(sTag + k), s(sE), 0x5a3c7181 + k))


def issue_v(lo, hi):
    for i in range(lo, hi):
        if i == lo or i == 4:
            a('s_add_u32 m0, s58, %d' % (VI + 4096 * (i >> 2)))
            a('s_nop 0')
        a('global_load_lds_dwordx4 %s, %s offset:%d%s' % (v(vVo + ((i >> 1) & 1)), 's[6:7]' if i >= 4 else 's[8:9]', 1024 * (i & 3), NT))


def issue_wo(lo=0, hi=4):
    a('s_add_u32 m0, s49, %d' % WO)
    for i in range(lo, hi):
        ad = wo0 + (i & 1)
        if i >= 2:
            a('v_add_u32 %s, %d, %s' % (v(T + 20), 2 * 7168, v(ad)))
            ad = T + 20
        a('global_load_lds_dwordx4 %s, s[12:13] offset:%d%s' % (v(ad), 1024 * i, NT))


def issue_w13(lo, hi):
    for i in range(lo, hi):
        if i == lo or i == 2:
            a('s_lshl_b32 s59, %s, 11' % s(sW))
            a('s_add_u32 m0, s59, %d' % (W1 if i < 2 else W3))
            a('s_nop 0')
        a('global_load_lds_dwordx4 %s, s[%d:%d] offset:%d%s' % (v(f0 + (i & 1)), 16 + (i & 2), 17 + (i & 2), 1024 * (i & 1), NT))


def issue_w2():
    if OPT.get('w2s', 1) and not W4:
        sk = newlabel('now2')
        a('s_cmp_eq_u32 %s, 3' % s(sW))
        a('s_cbranch_scc1 %s' % sk)
        issue_w2_()
        a.label(sk)
    else:
        issue_w2_()


def issue_w2_():
    if W4:
        a('s_lshl_b32 s59, %s, 11' % s(sW))
    else:
        a('s_min_u32 s59, %s, 2' % s(sW))
        a('s_lshl_b32 s59, s59, 11')
    a('s_add_u32 m0, s59, %d' % W2)
    a('s_nop 0')
    a('global_load_lds_dwordx4 %s, s[20:21] offset:0%s' % (v(wo0), NT))
    a('global_load_lds_dwordx4 %s, %s offset:1024%s' % (v(wo1), 's[4:5]' if OPT.get('fal', 5) else 's[20:21]', NT))


r = vP
FE, KW, WOL = OPT['fe'], OPT['kw'], OPT['wol']
NPRE = (OPT.get('gpre', 5) != 6) + (bool(OPT['probe']) and not PB_)
NVA = OPT['nva']
NVB = 8 - NVA
WOH = OPT.get('woh', 0)
WV = OPT.get('wv', 6)
ORD = OPT.get('ord', 0)
NF = OPT.get('fs', 6)
ORD6 = ORD and NF == 6
NLATE = WOH if WOL else 4 + FE + 2 * OPT['w2e']


def sc_copies():
    lstore('global_store_dword', v(vD + 8), v(vD + 9), BUF_A)
    if LZ:
        a('s_waitcnt vmcnt(0)')
    a('s_mov_b64 exec, %s' % s(sM1, 2))
    lstore('global_store_dwordx2', v(vD + 10), v(vSt4, 2), 0)
    a('s_mov_b64 exec, -1')


WOETC = []
L0COL = []


def front():
    a('; ---- layer 0: x slice, query projection partials')
    set_tags(0)
    a('v_add_u32 %s, 0x%x, %s' % (v(T + 12), WS_L2D, v(vStP2)))
    a('v_add_u32 %s, 0x%x, %s' % (v(T + 13), WS_L2D, v(vPubL)))
    a('v_add_u32 %s, 0x%x, %s' % (v(T + 14), ST0, v(vStP2)))
    stamp('consts')
    a('s_waitcnt vmcnt(9)')
    stamp('wq landed')
    a('ds_write_b16 %s, %s offset:%d' % (v(vXw), v(vX), XB))
    issue_v(0, OPT['vq'])
    a('v_lshlrev_b32 %s, 16, %s' % (v(vSt4), v(vX)))
    a('v_lshlrev_b32 %s, 16, %s' % (v(vX), v(vX)))
    FAST[0] = True
    ln_stats(0, T + 14)
    a('s_waitcnt lgkmcnt(0)')

    proj(vWQ, 0, 0, wsrc=[(trq, WQ, 8192, 1024), (trq + 1, WQ, 8192, 1024)], first=True)
    FAST[0] = False
    stamp('L0 Q pub')
    SP = OPT.get('sp', 0)
    a('v_mov_b32 %s, %s' % (v(vD + 8), v(T + 13)))
    a('v_mov_b32 %s, %s' % (v(vD + 9), v(T)))
    a('v_mov_b32 %s, %s' % (v(vD + 10), v(T + 12)))

    def side_stores():
        if not LZ:
            sc_copies()
        a('v_mov_b32 %s, %s' % (v(T + 16), s(sE)))
        a('v_mov_b32 %s, %s' % (v(T + 17), s(sE)))
        if OPT.get('tlb'):
            a('v_mov_b32 %s, s12' % v(T + 18))
            a('v_mov_b32 %s, s13' % v(T + 19))
            for ln, b in ((1, 16), (2, 18), (3, 20)):
                a('v_writelane_b32 %s, s%d, %d' % (v(T + 18), b, ln))
                a('v_writelane_b32 %s, s%d, %d' % (v(T + 19), b + 1, ln))
            a('s_mov_b64 exec, 15')
            a('global_load_dword %s, %s, off%s' % (v(T + 22), v(T + 18, 2), NT))
            a('s_mov_b64 exec, -1')
        if OPT.get('pt', 1) >= 2:
            a('s_mov_b32 exec_hi, 0')
            a('global_store_dword %s, %s, %s offset:%d' % (v(vPubL), v(T + 16), s(sLb, 2), BUF_B))
            a('s_mov_b32 exec_hi, -1')
        if PAD:
            a('v_mov_b32 %s, %s' % (v(T + 18), s(sE)))
            a('v_mov_b32 %s, %s' % (v(T + 19), s(sE)))
        if OPT.get('gpre', 5) == 2:
            a('s_mov_b32 exec_lo, 0')
        if OPT.get('gpre', 5) == 0:
            a('s_mov_b64 exec, 1')
        if OPT.get('gpre', 5) in (3, 5, 7):
            a('s_mov_b64 exec, 0x%x' % ((0xffff if FL2 else 0x00ff00ff) & THIN))
        if OPT.get('gpre', 5) == 4:
            a('s_mov_b32 exec_hi, 0')
        if OPT.get('gpre', 5) == 6:
            return
        a('global_store_dwordx%d %s, %s, %s offset:%d sc1' % (2 << PAD, v(vPre), v(T + 16, 2 << PAD), s(sGb0, 2), -GOFF))
        if OPT.get('gpre', 5) != 1:
            a('s_mov_b64 exec, -1')
        if OPT['probe'] and not PB_:
            a('v_and_b32 %s, 31, %s' % (v(T + 18), v(vL)))
            a('v_lshl_add_u32 %s, %s, 2, %s' % (v(T + 18), v(T + 18), s(sPr)))
            a('v_lshrrev_b32 %s, 5, %s' % (v(T + 19), v(vL)))
            a('v_lshlrev_b32 %s, 13, %s' % (v(T + 19), v(T + 19)))
            a('v_xor_b32 %s, %s, %s' % (v(T + 18), v(T + 19), v(T + 18)))
            a('global_store_dword %s, %s, s[26:27] sc1' % (v(T + 18), v(T + 16)))
    if SP == 2:
        side_stores()
    if ORD:
        issue_wo()
    if OPT.get('te'):
        h = OPT.get('th', 4)
        issue_v(OPT['vq'], h)
        sk = newlabel('noth')
        a('s_cmp_ge_u32 %s, 4' % s(sXcc))
        a('s_cbranch_scc1 %s' % sk)
        a('s_waitcnt vmcnt(%d)' % max(8 - OPT['te'] + (PRO >= 1) + 2 + h, 0))
        a.label(sk)
        issue_v(h, NVA)
    else:
        issue_v(OPT['vq'], NVA)
    if SP == 0:
        side_stores()
    if OPT.get('cl', 0):
        late_consts()
    a('; ---- layer 0: gather q')
    if OPT.get('cp2'):
        a('s_getpc_b64 s[4:5]')
        a.label('L_pc2')
        a('v_lshlrev_b32 %s, 6, v0' % v(T + 19))
        a('v_min_u32 %s, L_fastend-L_pc2-64, %s' % (v(T + 19), v(T + 19)))
        a('global_load_dword %s, %s, s[4:5]' % (v(T + 22), v(T + 19)))
    a('v_xor_b32 %s, %s, %s' % (v(t0), v(u16), v(pos16)))
    a('v_lshlrev_b32 %s, 4, %s' % (v(t0), v(t0)))
    a('v_lshl_add_u32 %s, %s, 8, %s' % (v(t0), v(pos16), v(t0)))
    a('s_add_u32 s55, s58, %d' % KI)
    a('v_add_u32 %s, s55, %s' % (v(t0), v(t0)))
    for kk in range(1, 4):
        a('v_xor_b32 %s, %d, %s' % (v(t0 + kk), kk << 6, v(t0)))
    alt, both, alts, boths = T + 13, T + 14, T + 15, T + 21
    a('v_mov_b32 %s, %s' % (v(alt), v(vCons)))
    a('v_lshlrev_b32 %s, 1, %s' % (v(both), v(vCons)))
    a('v_add_u32 %s, 0x%x, %s' % (v(both), WS_L2D, v(both)))
    a('v_add_u32 %s, 0x%x, %s' % (v(alts), ST0, v(vStC)))
    a('v_lshlrev_b32 %s, 1, %s' % (v(boths), v(vStC)))
    a('v_add_u32 %s, 0x%x, %s' % (v(boths), WS_L2D + ST0, v(boths)))
    page_break(True)
    NS = (0 if LZ else 2) + NPRE + (OPT.get('pt', 1) >= 2) + OPT.get('tlb', 0)
    behind_k = 2 + NVA + (0 if SP == 1 else NS) + (PRO >= 1) + OPT.get('cp2', 0) + 4 * ORD
    PL = OPT.get('pl', 0)
    loads = [(vSs[0], alts, sLb, 0), (r, alt, sLb, BUF_A), (r + 4, alt, sLb, BUF_X)]
    if not PL:
        a('s_waitcnt vmcnt(%d)' % (8 - KW + behind_k))
        stamp('K part')
        for x in loads:
            gload(*x)
    issue_v(NVA, 8)

    if WOH:
        issue_wo(0, WOH)

    def wo_etc():
        if ORD:
            issue_w13(0, min(NF, 4))
            if NF == 6:
                issue_w2()
            return
        issue_wo(WOH, 4)
        if OPT['w2e']:
            issue_w2()
        issue_w13(0, FE)
    if not WOL:
        wo_etc()
    XL = OPT.get('xw', 0) & 8
    if XL:
        only_if(True, wo_etc)
    a('s_waitcnt vmcnt(%d)' % (behind_k + (0 if PL else 3) + NVB + NLATE))
    stamp('K landed')
    for g in range(2):
        for kk in range(4):
            a('ds_read_b128 %s, %s offset:%d' % (v(vK + 16 * g + 4 * kk, 4), v(t0 + kk), 4096 * g))
    if PL:
        assert WV and not NVB
        pv_ = OPT.get('pv', WV)
        a('s_waitcnt vmcnt(%d)' % (8 - pv_ + 2 + NPRE))
        for x in loads:
            gload(*x)
    if WV:
        if not PL or pv_ != WV:
            a('s_waitcnt vmcnt(%d)' % (8 - WV + (NS if SP == 0 else 0) + 3))
        wo_etc()
        if OPT.get('gpre') == 7:
            late_pre()
        if SP == 1:
            side_stores()
    a('s_branch L_e1ent')
    a.label('L_e1top')
    tick()
    if LZ:
        a('s_bitcmp1_b32 %s, 0' % s(sTo))
        a('s_cbranch_scc1 L_e1plain')
        sc_copies()
        a.label('L_e1plain')
    for x in loads:
        gload(*x)
    a('v_sub_u32 %s, %s, %s' % (v(alt), v(both), v(alt)))
    a('v_sub_u32 %s, %s, %s' % (v(alts), v(boths), v(alts)))
    if NLATE + NVB or XL or WV:
        a('s_waitcnt vmcnt(0)')
    a.label('L_e1ent')
    if XL:
        only_if(False, lambda: a('s_waitcnt vmcnt(%d)' % NVB))
        a('s_waitcnt vmcnt(%d)' % (NVB + 4 + FE))
    else:
        a('s_waitcnt vmcnt(%d)' % (NLATE + NVB + ((NF if ORD else 4 + FE) if WV else 0) + (NS if SP == 1 else 0) + (OPT.get('gpre') == 7)))
    a('v_bitop3_b32 %s, %s, %s, %s bitop3:0x7e' % (v(T + 23), v(r), v(r + 4), s(sTag)))
    a('v_cmp_ne_u32 %s, %s, %s' % (s(sT1, 2), s(sTag), v(vSs[0] + 1)))
    a('v_cmp_ne_u32_sdwa vcc, %s, %s src0_sel:BYTE_0 src1_sel:DWORD' % (v(T + 23), v(vZero)))
    a('s_or_b64 vcc, vcc, %s' % s(sT1, 2))
    a('s_cbranch_vccnz L_e1top')
    stamp('L0 E1 ok')
    if OPT['fl']:
        flag_store(sE)
    if XL:
        only_if(False, wo_etc)
    elif OPT.get('xw', 0) & 1:
        only_if(True, wo_etc)
    elif WOL and OPT['wopos'] == 0 and not WV:
        wo_etc()
    WOETC.append(wo_etc)
    a('v_cmp_ne_u32 vcc, %s, %s' % (s(sXcc), v(vSs[0] + 3)))
    c, x, y = vC, vSs[0], r + 4
    ln_spec(x)
    mask_tag(y)
    a('v_mov_b32 %s, %s' % (v(c + 1), v(c)))
    a('v_permlane32_swap_b32 %s, %s' % (v(y + 1), v(y + 3)))
    mask_tag(r)
    a('v_permlane16_swap_b32 %s, %s' % (v(c), v(c + 1)))
    a('v_add_f32 %s, %s, %s' % (v(c), v(c), v(c + 1)))
    a('v_add_f32 %s, %s, %s' % (v(y + 1), v(y + 1), v(y + 3)))
    a('v_permlane32_swap_b32 %s, %s' % (v(y), v(y + 2)))
    dpp('v_add_f32', c, c, c, 'row_ror:8')
    a('v_add_f32 %s, %s, %s' % (v(y), v(y), v(y + 2)))
    a('v_permlane32_swap_b32 %s, %s' % (v(r + 1), v(r + 3)))
    dpp('v_add_f32', c, c, c, X1)
    a('v_add_f32 %s, %s, %s' % (v(r + 1), v(r + 1), v(r + 3)))
    a('v_permlane16_swap_b32 %s, %s' % (v(y), v(y + 1)))
    dpp('v_add_f32', c, c, c, X2)
    a('v_add_f32 %s, %s, %s' % (v(y), v(y), v(y + 1)))
    a('v_mul_f32 %s, %s, %s' % (v(c), s(sInv512), v(c)))
    a('v_mov_b32 %s, %s' % (v(c + 1), v(c)))
    a('v_permlane32_swap_b32 %s, %s' % (v(r), v(r + 2)))
    dpp('v_add_f32', vCq, y, y, 'row_ror:8')
    a('v_permlane32_swap_b32 %s, %s' % (v(c), v(c + 1)))
    a('v_add_f32 %s, %s, %s' % (v(r), v(r), v(r + 2)))
    bf16r(vMean, c)
    if OPT['fast']:
        a('s_cbranch_vccnz L_slowtail')


EP = OPT.get('ep', 2)


def epoch(join):
    a('s_cmp_lg_u32 s2, 255')
    a('s_cbranch_scc1 %s' % join)
    a('s_add_u32 s55, %s, 16' % s(sE))
    a('v_mov_b32 %s, s55' % v(T + 2))
    a('v_lshlrev_b32 %s, 2, %s' % (v(T + 3), v(vL)))
    if EP == 0:
        a('s_mov_b64 exec, 1')
    else:
        a('s_mov_b32 exec_hi, 0')
    a('global_store_dword %s, %s, s[26:27]%s' % (v(T + 3), v(T + 2), ' sc1' if EP in (0, 3, 4) else ''))
    a('s_mov_b64 exec, -1')


def CLEAN():
    return OPT['clean'] if FAST[0] else 0


def tail():
    for layer in range(2):
        pre = 'L%d' % layer
        k1, k2, k4 = 3 * layer, 3 * layer + 1, 3 * layer + 2

        def spec(x):
            mask_tag(x)
            red_a(x, r)
        if layer == 1:
            a('; ---- layer 1: x slice, query projection partials')
            set_tags(k1)
            if OPT['pages'] == 1:
                page_break()
            if OPT['probe'] == 3:
                if not (ORD6 and OPT.get('r0', 1)):
                    race_pick()
            elif OPT['probe'] and OPT['vlate']:
                count_votes()
            if CLEAN():
                clean_prep()
            g_pace(1)
            x_gather(1, G_D)
            stamp(pre + ' E5 ok')
            x_to_lds(k1)
            a('s_waitcnt lgkmcnt(0)')
            proj(vWQ, k1, layer)
            stamp(pre + ' Q pub')
            a('; ---- layer 1: gather q')
            l_gather(k1, spec, ln_spec, [ln_mean])
            stamp(pre + ' E1 ok')
        red_b(r, r)
        a('v_fma_f32 %s, -%s, %s, %s' % (v(r), v(vMean), v(vCq), v(r)))
        a('v_cvt_pk_bf16_f32 %s, %s, %s' % (v(r), v(r), v(r)))
        a('ds_write_b16 %s, %s offset:%d' % (v(vQw), v(r), QB))
        if layer == 0 and OPT.get('gpre', 5) in (5, 6):
            late_pre()
        if layer == 1 and CLEAN() & 1 and not OPT['cend'] & 1:
            clean_x()
        ln_rstd_a()
        if layer == 0 and WOL and OPT['wopos'] == 1:
            WOETC[0]()
        a('s_waitcnt lgkmcnt(0)')
        stamp('z%d qw' % layer)
        a('s_barrier')
        stamp('z%d qb' % layer)
        a('; ---- layer %d: attention over this member\'s 128 keys' % layer)
        for kk in range(4):
            a('ds_read_b128 %s, %s offset:%d' % (v(vA + 4 * kk, 4), v(vOpR), QB + 64 * kk))
        ln_rstd_b(True)
        set_tags(k2)
        for kk in range(4):
            lgkm(3 - kk)
            for g in range(2):
                mfma(vD + 4 * g, vA + 4 * kk, vK + 16 * g + 4 * kk, vD + 4 * g if kk else None)
        stamp('z%d qk' % layer)
        if layer == 0:
            if OPT.get('xw', 0) & 1:
                only_if(False, WOETC[0])
            elif WOL and OPT['wopos'] == 2:
                WOETC[0]()
            if NVB:
                a('s_waitcnt vmcnt(%d)' % (NF if ORD else 4 + FE + 2 * OPT['w2e']))
                a('s_barrier')
            tr_reads(vV, trq, VI, 4, 8192, 1024)
        sg = vSt
        mx, e0 = T, T + 1
        a('v_max_f32 %s, %s, %s' % (v(mx), v(vD), v(vD + 4)))
        a('v_cndmask_b32 %s, %s, %s, %s' % (v(e0), v(vD), v(vD + 4), s(sM0, 2)))
        for ro in (8, 4, 2, 1):
            dpp('v_max_f32', mx, mx, mx, 'row_ror:%d' % ro)
        a('v_mul_f32 %s, %s, %s' % (v(sg), v(vCs), v(mx)))
        a('v_fma_f32 %s, %s, %s, -%s' % (v(e0), v(e0), v(vCs), v(sg)))
        a('v_exp_f32 %s, %s' % (v(sg + 1), v(e0)))
        stamp('z%d ex' % layer)
        a('ds_write_b32 %s, %s offset:%d' % (v(vMw), v(sg), MB))
        a('v_cvt_pk_bf16_f32 %s, %s, %s' % (v(e0), v(sg + 1), v(sg + 1)))
        a('ds_write_b16 %s, %s offset:%d' % (v(vPw), v(e0), PB))
        if layer == 0:
            tr_reads(vV + 16, trq + 1, VI, 4, 8192, 1024)
        for ro in (8, 4, 2):
            dpp('v_add_f32', sg + 1, sg + 1, sg + 1, 'row_ror:%d' % ro)
        a('s_waitcnt lgkmcnt(0)')
        stamp('z%d pw' % layer)
        a('s_barrier')
        stamp('z%d pb' % layer)
        mm = T + 4
        a('ds_read_b32 %s, %s offset:%d' % (v(mm), v(vMr), MB))
        for kk in range(4):
            a('ds_read_b128 %s, %s offset:%d' % (v(vA + 4 * kk, 4), v(vOpR), PB + 64 * kk))
        dpp('v_add_f32', sg + 1, sg + 1, sg + 1, 'row_ror:1')
        dpp('v_add_f32', sg + 1, sg + 1, sg + 1, 'row_bcast:15', 0xa)
        a('s_mov_b64 exec, 0x10000')
        lstore('global_store_dwordx4', v(vStP), v(sg, 4), 512 * (k2 & 1))
        a('s_mov_b64 exec, -1')

        def sel(kk):
            a('v_cndmask_b32 %s, %s, %s, %s' % (v(T + 8 + kk), v(vD + 8 * kk), v(vD + 8 * kk + 4), s(sM0, 2)))

        def bc(kk):
            a('v_mov_b32_dpp %s, %s quad_perm:[%d,%d,%d,%d] row_mask:0xf bank_mask:0xf' % (v(T + 16 + kk), v(mm), kk, kk, kk, kk))

        def acc(kk):
            a('%s %s, %s, %s' % ('v_fmac_f32' if kk else 'v_mul_f32', v(T), v(T + 16 + kk), v(T + 8 + kk)))
        lgkm(3)
        stamp('z%d pr' % layer)
        mfma(vD, vA, vV)
        dpp('v_max_f32', mx, mm, mm, X1)
        mfma(vD + 4, vA, vV + 16)
        lgkm(2)
        mfma(vD + 8, vA + 4, vV + 4)
        dpp('v_max_f32', mx, mx, mx, X2)
        mfma(vD + 12, vA + 4, vV + 20)
        a('v_sub_f32 %s, %s, %s' % (v(mm), v(mm), v(mx)))
        lgkm(1)
        mfma(vD + 16, vA + 8, vV + 8)
        a('v_exp_f32 %s, %s' % (v(mm), v(mm)))
        mfma(vD + 20, vA + 8, vV + 24)
        lgkm(0)
        bc(0)
        mfma(vD + 24, vA + 12, vV + 12)
        bc(1)
        bc(2)
        mfma(vD + 28, vA + 12, vV + 28)
        stamp('z%d pv' % layer)
        stats_load(k2)
        sel(0)
        sel(1)
        acc(0)
        acc(1)
        sel(2)
        acc(2)
        bc(3)
        a('s_mov_b32 exec_hi, 0')
        sel(3)
        acc(3)
        a('v_bfi_b32 %s, %s, %s, %s' % (v(T), v(vTagM), s(sTag + k2), v(T)))
        lstore('global_store_dword', v(vPubL), v(T), BUF_A if k2 % 2 == 0 else BUF_B)
        a('s_mov_b32 exec_hi, -1')
        stamp(pre + ' S pub')
        if layer == 0 and ORD:
            tr_reads(vWO, vTr, 0, 4, 4096, 512)
        if layer == 0 and OPT['fl'] and OPT['flp'] == 1:
            a('s_waitcnt vmcnt(0)')
            flag_store(sTag + 6)
            stats_load(k2)
            lstore('global_store_dword', v(vStP), v(vSt), 512 * (k2 & 1))
        a('; ---- layer %d: combine the 8 key blocks, output projection partials' % layer)
        mj, mg, mo, lo = T, T + 1, vC, vC + 1

        def sm_spec(x):
            dpp('v_max_f32', mj, x, x, X1)
            a('v_mov_b32 %s, %s' % (v(mo), v(x)))
            a('v_mov_b32 %s, %s' % (v(lo), v(x + 1)))

        def sm0():
            allred('v_max_f32', mj, T + 2, [1])
            dpp('v_max_f32', mg, mj, mj, 'row_ror:8')
            allred('v_max_f32', mg, T + 2, [4, 5])

        def sm1():
            a('v_sub_f32 %s, %s, %s' % (v(mo), v(mo), v(mg)))
            a('v_sub_f32 %s, %s, %s' % (v(mj), v(mj), v(mg)))
            a('v_exp_f32 %s, %s' % (v(mo), v(mo)))
            a('v_exp_f32 %s, %s' % (v(mj), v(mj)))
            a('v_mul_f32 %s, %s, %s' % (v(mo), v(mo), v(lo)))
            allred('v_add_f32', mo, T + 2, [0, 1, 3, 4, 5])
            a('v_rcp_f32 %s, %s' % (v(mo), v(mo)))
            a('v_mul_f32 %s, %s, %s' % (v(vF), v(mj), v(mo)))

        def spec2(x):
            mask_tag(x)
            a('v_pk_mul_f32 %s, %s, %s op_sel_hi:[1,0]' % (v(x + 2, 2), v(x + 2, 2), v(vF, 2)))
            a('v_pk_mul_f32 %s, %s, %s op_sel_hi:[1,0]' % (v(x, 2), v(x, 2), v(vF, 2)))
            red_a(x, r)
        l_gather(k2, spec2, sm_spec, [sm0, sm1], hook=(lambda: flag_store(sTag + 6)) if layer == 0 and OPT['fl'] and OPT['flp'] == 0 else None)
        stamp(pre + ' E2 ok')
        red_b(r, r)
        a('v_cvt_pk_bf16_f32 %s, %s, %s' % (v(r), v(r), v(r)))
        a('ds_write_b16 %s, %s offset:%d' % (v(vQw), v(r), OB))

        def ffn_rest():
            issue_w13(FE, 4)
            if not OPT['w2e']:
                issue_w2()
        if layer == 0 and OPT['ff'] in (2, 3):
            ffn_rest()
        if layer == 0 and OPT['ff'] == 6:
            issue_w13(FE, 4)
        if layer == 0 and OPT['ff'] == 11:
            issue_w13(0, 1)
        if layer == 0 and OPT['ff'] == 12:
            issue_w13(0, 2)
        if layer == 0 and OPT['ff'] == 7 and not ORD:
            if OPT.get('xw', 0) & 2:
                only_if(True, lambda: issue_w13(FE, 2))
            else:
                issue_w13(FE, 2)
        a('s_waitcnt lgkmcnt(0)')
        a('s_barrier')
        if layer == 0 and OPT['ff'] == 5:
            gemv_publish_g(4, vWO, OB, 0, G_C, tr=True, mid=lambda: issue_w13(FE, 2), post=lambda: issue_w13(2, 4))
            issue_w2()
        elif layer == 0 and ORD:
            if OPT.get('r0', 1) and ORD6:
                gemv_publish_g(4, vWO, OB, 0, G_C, mid=race_prep, post=race_start)
            else:
                gemv_publish_g(4, vWO, OB, 0, G_C)
        elif layer == 0 and OPT['probe'] == 2:
            gemv_publish_g(4, vWO, OB, 0, G_C, tr=True, mid=race_prep, post=race_start)
        else:
            gemv_publish_g(4, vWO, OB, 2 * layer, G_C, tr=layer == 0)
        stamp(pre + ' O pub')
        a('; ---- layer %d: x slice, gate/up partials' % layer)
        set_tags(k4)
        if layer == 0 and OPT['ff'] == 1:
            nrest = 4 - FE + (0 if OPT['w2e'] else 2)
            if OPT['fl']:
                a('v_lshlrev_b32 %s, 7, %s' % (v(T + 5), v(vL)))
                a('v_add_u32 %s, %d, %s' % (v(T + 5), WS_F, v(T + 5)))
                flag_load()
            ffn_rest()
            if OPT['fl']:
                flag_wait(nrest)
            else:
                a('s_waitcnt vmcnt(%d)' % nrest)
            stamp('G0 ack')
            x_gather(0, G_C, work=probe_near if OPT['probe'] else None)
        else:
            flush_deferred()
            if layer == 0 and OPT['ff'] == 4:
                ffn_rest()
            if layer == 0 and OPT['ff'] == 10:
                a('s_waitcnt vmcnt(0)')
                ffn_rest()
            if layer == 0 and OPT['ff'] == 11:
                issue_w13(1, 4)
                issue_w2()
            if layer == 0 and OPT['ff'] == 12:
                issue_w13(2, 4)
                a('s_waitcnt vmcnt(2)')
                issue_w2()
            if layer == 0 and ORD and not ORD6:
                issue_w13(NF, 4)
                issue_w2()
            if layer == 0 and ORD and NF == 4:
                tr_reads(vW13, vTr, W1 - WO, 2, 4096, 512)
                tr_reads(vW13 + 8, vTr, W3 - WO, 2, 4096, 512)
            if layer == 0 and ORD6:
                if OPT.get('r0', 1):
                    race_pick()
                    a('s_waitcnt lgkmcnt(0)')
                tr_reads(vW13, vTr, W1 - WO, 2, 4096, 512)
                tr_reads(vW13 + 8, vTr, W3 - WO, 2, 4096, 512)
                a('v_and_b32 %s, 32, %s' % (v(T + 1), v(vL)))
                a('v_lshlrev_b32 %s, 6, %s' % (v(T + 1), v(T + 1)))
                a('v_sub_u32 %s, %s, %s' % (v(T + 1), v(vTr), v(T + 1)))
                tr_reads(vW2, vTr, W2 - WO, 1, 4096, 512)
                tr_reads(vW2 + 4, T + 1, W2 - WO + 4096, 1, 4096, 512)
            if layer == 0 and OPT['ff'] == 7 and not ORD:
                if OPT.get('xw', 0) & 2:
                    only_if(False, lambda: issue_w13(FE, 2))
                if OPT.get('xw', 0) & 4:
                    only_if(False, lambda: a('s_waitcnt vmcnt(0)'))
                issue_w13(2, 4)
            if layer == 0 and OPT['ff'] in (6, 7) and not ORD:
                issue_w2()
            if layer == 0 and OPT.get('gpre', 5) in (3, 4):
                late_pre()
            if OPT['pages'] == 2:
                page_break()
            if layer == 0 and OPT.get('otouch'):
                sk = newlabel('noout')
                a('s_cmp_lg_u32 %s, 0' % s(sGam))
                a('s_cbranch_scc1 %s' % sk)
                a('global_load_ushort %s, %s, s[22:23]' % (v(T + 22), v(vXw)))
                a.label(sk)
            if layer == 0 and (OPT['opre'] and OPT['clean'] & 8 or OPT['opre'] == 2):
                sk = newlabel('noout')
                a('s_cmp_lg_u32 %s, 0' % s(sGam))
                a('s_cbranch_scc1 %s' % sk)
                a('s_mov_b32 exec_lo, 0x000f000f')
                a('s_mov_b32 exec_hi, 0x000f000f')
                a('global_store_short %s, %s, s[22:23] sc1' % (v(vXw), v(vZero)))
                a('s_mov_b64 exec, -1')
                a.label(sk)
            if layer == 0 and OPT['probe'] == 2:
                assert OPT['ff'] == 4
                race_finish(1 + 4 - FE + 2)
                if not OPT['vlate']:
                    count_votes()
            if layer == 0 and OPT['probe'] == 1:
                probe_near()
                if not OPT['vlate']:
                    count_votes()
            if layer == 0 and OPT['fl']:
                a('v_lshlrev_b32 %s, 7, %s' % (v(T + 5), v(vL)))
                a('v_add_u32 %s, %d, %s' % (v(T + 5), WS_F, v(T + 5)))
                flag_load()
                flag_wait(0)
            if layer == 0 and OPT.get('g0w'):
                flush_deferred()
                a('s_waitcnt vmcnt(%d)' % OPT['g0w'])
            elif layer or OPT['ff'] != 3:
                g_pace(2 * layer)
            else:
                for i in range(OPT.get('xs', 0)):
                    a('s_nop 15')
                stamp('G0 ack')
            x_gather(2 * layer, G_C)
        stamp(pre + ' E3 ok')
        x_to_lds(k4)
        if not W4:
            a('s_cmp_eq_u32 %s, 3' % s(sW))
        a('s_waitcnt lgkmcnt(0)')
        idle = None if W4 else newlabel('idle')

        proj(vW13, k4, layer, wsrc=[(vTr, W1 - WO, 4096, 512), (vTr, W3 - WO, 4096, 512)] if layer == 0 and not (ORD and NF >= 4) else None, skip=idle)
        stamp(pre + ' G pub')
        if layer == 1 and CLEAN():
            a('v_mov_b32 %s, %s' % (v(vKeep), v(T)))
        a('; ---- layer %d: gather gate/up, activation' % layer)

        def w2_regs():
            if ORD6:
                return
            if W4:
                tr_reads(vW2, vTr, W2 - WO, 2, 4096, 512)
                return
            a('v_and_b32 %s, 32, %s' % (v(T + 1), v(vL)))
            a('v_lshlrev_b32 %s, 6, %s' % (v(T + 1), v(T + 1)))
            a('v_sub_u32 %s, %s, %s' % (v(T + 1), v(vTr), v(T + 1)))
            tr_reads(vW2, vTr, W2 - WO, 1, 4096, 512)
            tr_reads(vW2 + 4, T + 1, W2 - WO + 4096, 1, 4096, 512)

        def ln_all():
            w2_regs()
            ln_mean()
            ln_rstd_a()
            ln_rstd_b(False)
        if layer == 0 and OPT.get('r4', 1):
            cs = {vDs[0]: vD + 16, vDs[1]: vD + 20}

            def issue4(x):
                gload(x, vCons, sLb, BUF_A)
                gload(cs[x], vCons, sLb, BUF_X)

            def spec4(x):
                y = cs[x]
                mask_tag(x)
                mask_tag(y)
                a('v_permlane32_swap_b32 %s, %s' % (v(x + 1), v(x + 3)))
                a('v_permlane32_swap_b32 %s, %s' % (v(y + 1), v(y + 3)))
                a('v_add_f32 %s, %s, %s' % (v(r + 1), v(x + 1), v(x + 3)))
                a('v_add_f32 %s, %s, %s' % (v(r + 5), v(y + 1), v(y + 3)))
                a('v_permlane32_swap_b32 %s, %s' % (v(x), v(x + 2)))
                a('v_permlane32_swap_b32 %s, %s' % (v(y), v(y + 2)))
                a('v_add_f32 %s, %s, %s' % (v(r + 4), v(y), v(y + 2)))
                a('v_add_f32 %s, %s, %s' % (v(r), v(x), v(x + 2)))
            stats_load(k4, vSs[1])
            flush_deferred()
            if OPT.get('u0', 0) & 4:
                stats_ring_u(2, ln_spec, lambda: issue4(vDs[0]), 2)
                if OPT.get('u1', 0):
                    ln_mean()
                    issue4(vDs[1])
                else:
                    issue4(vDs[1])
                    ln_mean()
            else:
                ring2(vSs, lambda x: stats_load(2, x), lambda x: chk_stats(x, 2), ln_spec, 1, 1, 2)
                issue4(vDs[0])
                ln_mean()
                issue4(vDs[1])
            ln_rstd_a()
            ln_rstd_b(False)
            w2_regs()
            ring2(vDs, issue4, lambda x: chk_byte([x, cs[x]], sTag + 2), spec4, 2, 2, 2)
            a('v_permlane16_swap_b32 %s, %s' % (v(r + 4), v(r + 5)))
            a('v_add_f32 %s, %s, %s' % (v(r + 4), v(r + 4), v(r + 5)))
            L0COL.append(1)
        elif layer == 0:
            loads = [(r, vCons, sLb, BUF_A), (r + 4, vCons, sLb, BUF_X)]

            def data():
                ln_spec(vSs[0])
                for x in loads:
                    gload(*x)

            def spec4():
                mask_tag(r)
                mask_tag(r + 4)
                red_a(r, r)
            flush_deferred()
            poll([(vSs[0], vStC, sLb, 0)], lambda: chk_stats(vSs[0], k4), data, cnt=1, issued=True)
            poll(loads, lambda: chk_byte([r, r + 4], sTag + k4), spec4, work=ln_all, issued=True)
            red_a(r + 4, r + 4)
            red_b(r + 4, vCg)
        else:
            l_gather(k4, spec, ln_spec, [ln_mean, ln_rstd_a, lambda: ln_rstd_b(False)])
        stamp(pre + ' E4 ok')
        if L0COL:
            L0COL.pop()
            a('v_permlane16_swap_b32 %s, %s' % (v(r), v(r + 1)))
            a('v_add_f32 %s, %s, %s' % (v(r), v(r), v(r + 1)))
            dpp('v_add_f32', vCg, r + 4, r + 4, 'row_ror:8')
            dpp('v_add_f32', r, r, r, 'row_ror:8')
        else:
            red_b(r, r)
        a('v_fma_f32 %s, -%s, %s, %s' % (v(r), v(vMean), v(vCg), v(r)))
        a('v_mul_f32 %s, %s, %s' % (v(r), v(r), v(vRs)))
        bf16r(r, r)
        a('v_mul_f32 %s, %s, %s' % (v(r + 1), s(sNl2e), v(r)))
        a('v_exp_f32 %s, %s' % (v(r + 1), v(r + 1)))
        a('v_and_b32_dpp %s, %s, %s row_shl:4 row_mask:0xf bank_mask:0xf' % (v(r + 2), v(r), v(vHmask)))
        a('v_add_f32 %s, 1.0, %s' % (v(r + 1), v(r + 1)))
        a('v_rcp_f32 %s, %s' % (v(r + 1), v(r + 1)))
        a('v_mul_f32 %s, %s, %s' % (v(r), v(r), v(r + 1)))
        bf16r(r, r)
        a('v_mul_f32 %s, %s, %s' % (v(r), v(r), v(r + 2)))
        a('v_cvt_pk_bf16_f32 %s, %s, %s' % (v(r), v(r), v(r)))
        a('ds_write_b16 %s, %s' % (v(vHw), v(r)))
        if W4:
            pass
        elif layer == 0:
            join = newlabel('join')

            def idle_path(idle=idle, join=join, w2_regs=w2_regs):
                a.label(idle)
                w2_regs()
                if EP in (2, 4):
                    epoch(join)
                a('s_branch %s' % join)
            deferred.append(idle_path)
            a.label(join)
        else:
            join = newlabel('join')

            def idle_path1(idle=idle, join=join):
                a.label(idle)
                a('v_mov_b32 %s, %s' % (v(vKeep), s(sTag + 5)))
                if EP in (0, 1, 3):
                    epoch(join)
                a('s_branch %s' % join)
            deferred.append(idle_path1)
            a.label(join)
        a('s_waitcnt lgkmcnt(0)')
        a('s_barrier')
        if layer == 0 and OPT['probe'] == 3 and not (ORD6 and OPT.get('r0', 1)):
            gemv_publish_g(2, vW2, HB, 1, G_D, mid=race_prep, post=race_start)
        else:
            gemv_publish_g(2, vW2, HB, 2 * layer + 1, G_D, mid=clean_a if layer == 1 and CLEAN() & 2 and not OPT['cend'] & 2 else None)
        stamp(pre + ' D pub')

    a('; ---- final sum (group 0 only)')
    if OPT.get('opack'):
        a('v_mov_b32 %s, 0xffff' % v(T + 11))
        a('v_and_b32 %s, 0x7c, %s' % (v(T + 12), v(vXw)))
    if CLEAN() & 4:
        fin = newlabel('last')
        if OPT.get('cx0', 1):
            a('s_cmp_ge_u32 %s, 4' % s(sGam))
            a('s_cbranch_scc1 L_fin')
        clean_b_prep()
        a('s_cmp_eq_u32 %s, 0' % s(sGam))
        a('s_cbranch_scc1 %s' % fin)

        def clean_all():
            clean_b()
            if OPT['cend'] & 2:
                clean_a()
            if OPT['cend'] & 1:
                clean_x()
        a('s_waitcnt vmcnt(%d)' % 0)
        clean_all()
        a('s_branch L_fin')
        flush_deferred(False)
        a.label(fin)
        g_pace(3)
        x_gather(3, G_D, work=clean_all, cnt=1 + bin(OPT['cend'] & 3).count('1'))
    else:
        if W4:
            sk = newlabel('noep')
            a('s_lshl_b32 s55, s2, 2')
            a('s_add_u32 s55, s55, %s' % s(sW))
            a('s_cmp_lg_u32 s55, %d' % (255 * 4))
            a('s_cbranch_scc1 %s' % sk)
            a('s_add_u32 s55, %s, 16' % s(sE))
            a('v_mov_b32 %s, s55' % v(T + 2))
            a('s_mov_b64 exec, 1')
            a('global_store_dword %s, %s, s[26:27]' % (v(vZero), v(T + 2)))
            a('s_branch L_fin')
            a.label(sk)
        if OPT.get('wb1') and FAST[0]:
            sk = newlabel('nowb')
            a('s_lshl_b32 s55, s2, 2')
            a('s_add_u32 s55, s55, %s' % s(sW))
            a('s_cmp_lg_u32 s55, %d' % (64 * 4))
            a('s_cbranch_scc1 %s' % sk)
            if OPT['wb1'] == 2:
                a('s_waitcnt vmcnt(0)')
            a('buffer_wbl2 sc1')
            a.label(sk)
        a('s_cmp_lg_u32 %s, 0' % s(sGam))
        a('s_cbranch_scc1 L_fin')
        g_pace(3)
        x_gather(3, G_D)
    sc = ' sc1' if OPT['clean'] & 8 else ''
    if OPT.get('opack'):
        a('v_mov_b32 %s, %s' % (v(T + 1), v(T)))
        a('v_permlane16_swap_b32 %s, %s' % (v(T), v(T + 1)))
        a('v_bfi_b32 %s, %s, %s, %s' % (v(T), v(T + 11), v(T), v(T + 1)))
        if OPT['opack'] == 2:
            a('v_mov_b32 %s, %s' % (v(T + 1), v(T)))
            a('v_permlane32_swap_b32 %s, %s' % (v(T), v(T + 1)))
            a('s_mov_b64 exec, 15')
            a('global_store_dwordx2 %s, %s, s[22:23]%s' % (v(T + 12), v(T, 2), sc))
        else:
            a('s_mov_b32 exec_lo, 15')
            a('s_mov_b32 exec_hi, 15')
            a('global_store_dword %s, %s, s[22:23]%s' % (v(T + 12), v(T), sc))
    else:
        a('s_mov_b32 exec_lo, 0x000f000f')
        a('s_mov_b32 exec_hi, 0x000f000f')
        a('global_store_short %s, %s, s[22:23]%s' % (v(vXw), v(T), sc))


front()
FAST[0] = bool(OPT['fast'])
tail()
a.label('L_fin')
if OPT.get('dirty'):
    if 'dx' in OPT:
        a('s_and_b32 s55, s2, 7')
        a('s_cmp_eq_u32 s55, 0')
        a('s_cbranch_scc%d L_nodirty' % OPT['dx'])
    a('s_mov_b64 exec, -1')
    a('s_lshl_b32 s55, s2, 2')
    a('s_add_u32 s55, s55, %s' % s(sW))
    a('s_lshl_b32 s55, s55, 15')
    a('s_add_u32 s55, s55, 0x400000')
    a('v_lshl_add_u32 %s, %s, 4, s55' % (v(T + 1), v(vL)))
    for i in range(OPT['dirty']):
        a('global_store_dwordx4 %s, %s, s[26:27]' % (v(T + 1), v(vD, 4)))
        a('v_add_u32 %s, 1024, %s' % (v(T + 1), v(T + 1)))
if OPT.get('dirty'):
    a.label('L_nodirty')
if OPT.get('dbgpol'):
    a('s_mov_b64 exec, -1')
    a('v_xor_b32 %s, %s, %s' % (v(T + 2), v(vConsG), v(vConsG0)))
    a('v_readfirstlane_b32 s6, %s' % v(T + 2))
    a('s_cmp_lg_u32 s6, 0')
    a('s_cselect_b32 s6, 1, 0')
    a('s_lshr_b32 s7, %s, 2' % s(sXcc))
    a('s_xor_b32 s6, s6, s7')
    a('s_lshr_b32 s7, %s, 1' % s(sW))
    a('s_xor_b32 s6, s6, s7')
    a('s_lshl_b32 s6, s6, 4')
    a('s_lshl_b32 s6, 1, s6')
    a('v_mov_b32 %s, s6' % v(T + 2))
    a('s_and_b32 s7, %s, 7' % s(sXcc))
    a('s_lshl_b32 s7, s7, 2')
    a('v_mov_b32 %s, s7' % v(T + 3))
    a('s_mov_b64 exec, 1')
    a('global_atomic_add %s, %s, s[24:25]' % (v(T + 3), v(T + 2)))
if OPT.get('wb'):
    a('buffer_wbl2 sc1')
if OPT.get('delay'):
    if 'only' in OPT:
        a('s_cmp_lg_u32 s2, %d' % OPT['only'])
        a('s_cbranch_scc1 L_end')
    a.label('L_dly')
    a('s_memrealtime s[6:7]')
    a('s_waitcnt lgkmcnt(0)')
    a('s_sub_u32 s8, s6, s100')
    a('s_cmp_lt_u32 s8, %d' % OPT.get('until', 3000))
    a('s_cbranch_scc1 L_dly')
if DIAG:
    a('s_mov_b64 exec, -1')
    a('s_memrealtime s[4:5]')
    a('s_waitcnt lgkmcnt(0)')
    a('v_mov_b32 %s, 0' % v(T))
    for i in range(len(stamps)):
        a('v_writelane_b32 %s, %s, %d' % (v(T), s(stamp_regs[i]), i))
    a('v_writelane_b32 %s, s4, %d' % (v(T), len(stamps)))
    a('v_xor_b32 %s, %s, %s' % (v(T + 2), v(vConsG), v(vConsG0)))
    a('v_readfirstlane_b32 s6, %s' % v(T + 2))
    a('v_writelane_b32 %s, s6, 62' % v(T))
    a('v_writelane_b32 %s, s12, 61' % v(T))
    a('v_writelane_b32 %s, s13, 60' % v(T))
    a('v_writelane_b32 %s, %s, 63' % (v(T), s(sXcc)))
    a('s_lshl_b32 s55, s2, 2')
    a('s_add_u32 s55, s55, %s' % s(sW))
    a('s_lshl_b32 s55, s55, 8')
    a('s_add_u32 s55, s55, %d' % WS_DIAG)
    a('v_lshl_add_u32 %s, %s, 2, s55' % (v(T + 1), v(vL)))
    a('global_store_dword %s, %s, s[26:27]' % (v(T + 1), v(T)))
a.label('L_end')
a('s_endpgm')
flush_deferred(False)
a.label('L_fastend')
if OPT['fast']:
    a('; ==== the same phases with write-through stores: taken when the group is spread over several XCDs')
    a.label('L_slowtail')
    FAST[0] = False
    a.hist = []
    a('s_nop 1')
    if LZ:
        sc_copies()
    tail()
    a('s_branch L_fin')
    flush_deferred(False)
    a('s_endpgm')
a.raw('''.section .rodata,"a"
.p2align 6
.amdhsa_kernel %s_kernel
  .amdhsa_next_free_vgpr %d
  .amdhsa_next_free_sgpr 102
  .amdhsa_accum_offset %d
  .amdhsa_group_segment_fixed_size 0
  .amdhsa_kernarg_size 96
  .amdhsa_user_sgpr_count 2
  .amdhsa_user_sgpr_kernarg_segment_ptr 1
  .amdhsa_system_sgpr_workgroup_id_x 1
  .amdhsa_float_denorm_mode_32 3
.end_amdhsa_kernel''' % (NAME, NVGPR, NVGPR))
sys.stdout.write(a.text())
if DIAG:
    sys.stderr.write('STAMPS ' + '|'.join(stamps + ['end']) + '\n')
sys.stderr.write('nops inserted: %d\n' % a.nops)
```
